```python
import torch

def _softmax(x, axis=-1):
    return torch.softmax(x, dim=axis)
def _gelu(x):
    return torch.nn.functional.gelu(x, approximate="tanh")
def _silu(x):
    return torch.nn.functional.silu(x)
def _sigmoid(x):
    return torch.sigmoid(x)
def _layernorm(x, axis=-1, eps=1e-5):
    m = x.mean(dim=axis, keepdim=True)
    v = x.var(dim=axis, keepdim=True, unbiased=False)
    return (x - m) / torch.sqrt(v + eps)
def _scatter_add(tgt, idx, src, axis=0):
    return tgt.clone().index_add_(axis, idx, src)
def _segment_sum(src, seg, n):
    out = torch.zeros((n,) + src.shape[1:], dtype=src.dtype)
    return out.index_add_(0, seg, src)
def _pad(x, pw):
    flat = tuple(v for pair in reversed(pw) for v in pair)
    return torch.nn.functional.pad(x, flat)

kernel_name = 'interleave_layers__ssm_conv_s5__ssm_conv_h3__prompt'

def setup_inputs():

    _w = (lambda a: (lambda t: t.to(torch.bfloat16) if t.is_floating_point() else t)(torch.as_tensor(a)))
    def _A_setup():
        B, S, D = 1, 2048, 640
        P = D
        Lambda_re = -0.5 * (lambda _x: torch.exp(torch.as_tensor(_x)))((lambda *s: torch.randn(*s, dtype=torch.bfloat16) * 0.2)(P))
        Lambda_im = (lambda *s: torch.randn(*s, dtype=torch.bfloat16) * 0.8)(P) * 1.0
        B_re = (lambda *s: torch.randn(*s, dtype=torch.bfloat16) * 0.2)(P, D) * (D ** -0.5)
        B_im = (lambda *s: torch.randn(*s, dtype=torch.bfloat16) * 0.2)(P, D) * (D ** -0.5)
        C_re = (lambda *s: torch.randn(*s, dtype=torch.bfloat16) * 0.2)(D, P) * (P ** -0.5)
        C_im = (lambda *s: torch.randn(*s, dtype=torch.bfloat16) * 0.2)(D, P) * (P ** -0.5)
        log_dt = (lambda *s: torch.randn(*s, dtype=torch.bfloat16) * 0.2)(P) * 0.3 - 2.0
        Dskip = (lambda *s: torch.randn(*s, dtype=torch.bfloat16) * 0.05)(D)
        return {
            "x": _w((lambda *s: torch.randn(*s, dtype=torch.bfloat16) * 0.05)(B, S, D)),
            "Lambda_re": _w(Lambda_re),
            "Lambda_im": _w(Lambda_im),
            "B_re": _w(B_re),
            "B_im": _w(B_im),
            "C_re": _w(C_re),
            "C_im": _w(C_im),
            "log_dt": _w(log_dt),
            "Dskip": _w(Dskip),
        }
    _A_in = _A_setup()

    def _B_setup():
        B, S, D = 1, 2048, 640
        ks = 4
        return {
            "q": _w((lambda *s: torch.randn(*s, dtype=torch.bfloat16) * 0.05)(B, S, D)),
            "k": _w((lambda *s: torch.randn(*s, dtype=torch.bfloat16) * 0.4)(B, S, D)),
            "v": _w((lambda *s: torch.randn(*s, dtype=torch.bfloat16) * 0.4)(B, S, D)),
            "shift_k": _w((lambda *s: torch.randn(*s, dtype=torch.bfloat16) * 0.4)(D, ks) * 0.5),
            "ssm_k": _w((lambda *s: torch.randn(*s, dtype=torch.bfloat16) * 0.4)(D, S) * (1.0 / S ** 0.5)),
            "ssm_D": _w((lambda *s: torch.randn(*s, dtype=torch.bfloat16) * 0.4)(D)),
        }
    _B_in = _B_setup()

    return {
        "A_x": _A_in["x"],
        "A_Lambda_re": _A_in["Lambda_re"],
        "A_Lambda_im": _A_in["Lambda_im"],
        "A_B_re": _A_in["B_re"],
        "A_B_im": _A_in["B_im"],
        "A_C_re": _A_in["C_re"],
        "A_C_im": _A_in["C_im"],
        "A_log_dt": _A_in["log_dt"],
        "A_Dskip": _A_in["Dskip"],
        "B_q": _B_in["q"],
        "B_k": _B_in["k"],
        "B_v": _B_in["v"],
        "B_shift_k": _B_in["shift_k"],
        "B_ssm_k": _B_in["ssm_k"],
        "B_ssm_D": _B_in["ssm_D"],
    }

def reference(A_x, A_Lambda_re, A_Lambda_im, A_B_re, A_B_im, A_C_re, A_C_im, A_log_dt, A_Dskip, B_q, B_k, B_v, B_shift_k, B_ssm_k, B_ssm_D):
    def _A_ref(x, Lambda_re, Lambda_im, B_re, B_im, C_re, C_im, log_dt, Dskip):
        Bsz, L, H = x.shape
        Lam = Lambda_re + 1j * Lambda_im
        Bmat = B_re + 1j * B_im
        Cmat = C_re + 1j * C_im
        dt = torch.exp(log_dt)
        Lam_bar = torch.exp(dt * Lam)
        B_bar = ((Lam_bar - 1.0) / Lam)[:, None] * Bmat
        Bu = torch.einsum("bld,pd->blp", x + 0j, B_bar)
        h = torch.zeros_like(Bu[:, 0, :])
        hs = []
        for t in range(L):
            h = Lam_bar[None, :] * h + Bu[:, t, :]
            hs.append(h)
        hseq = torch.stack(hs, 1)
        y = 2.0 * torch.einsum("blp,dp->bld", hseq, Cmat).real + x * Dskip[None, None, :]
        return y

    def _B_ref(q, k, v, shift_k, ssm_k, ssm_D):
        B, S, D = q.shape
        ks = shift_k.shape[-1]
        k_pad = _pad(k, ((0, 0), (ks - 1, 0), (0, 0)))
        k_shift = torch.zeros_like(k)
        for t in range(ks):
            k_shift = k_shift + k_pad[:, t:t + S, :] * shift_k[:, ks - 1 - t][None, None, :]
        kv = k_shift * v
        L = 2 * S
        kv_pad = _pad(kv, ((0, 0), (0, S), (0, 0)))
        kf_pad = _pad(ssm_k, ((0, 0), (0, S)))
        kv_f = (lambda x, axes=(-2,-1): torch.fft.rfft2(x.float(), dim=axes))(kv_pad[:, None, :, :], axes=(1, 2))
        kf_f = (lambda x, axes=(-2,-1): torch.fft.rfft2(x.float(), dim=axes))(kf_pad[:, None, :], axes=(1, 2))
        kf_f = (lambda x, *d: x.permute(*d))(kf_f, 1, 2, 0)
        y_f = kv_f * kf_f[None, :, :, :]
        y = (lambda x, s, axes=(-2,-1): torch.fft.irfft2(x, s=s, dim=axes).to(torch.bfloat16))(y_f, (1, L), axes=(1, 2))[:, 0, :S, :]
        y = y + kv * ssm_D[None, None, :]
        return q * y

    x = A_x
    x = x + _A_ref(_layernorm(x, axis=-1), A_Lambda_re, A_Lambda_im, A_B_re, A_B_im, A_C_re, A_C_im, A_log_dt, A_Dskip)
    x = x + _B_ref(_layernorm(x, axis=-1), B_k, B_v, B_shift_k, B_ssm_k, B_ssm_D)
    x = x + _A_ref(_layernorm(x, axis=-1), A_Lambda_re, A_Lambda_im, A_B_re, A_B_im, A_C_re, A_C_im, A_log_dt, A_Dskip)
    x = x + _B_ref(_layernorm(x, axis=-1), B_k, B_v, B_shift_k, B_ssm_k, B_ssm_D)
    return x
```

```python
import re

TRANS = ('v_exp_f32', 'v_log_f32', 'v_rcp_f32', 'v_rsq_f32', 'v_sqrt_f32', 'v_sin_f32', 'v_cos_f32',
         'v_rcp_iflag_f32')


def regs_of(tok):
    tok = tok.strip().lstrip('-')
    if tok.startswith('abs(') or tok.startswith('|'):
        tok = tok.strip('|').replace('abs(', '').rstrip(')')
    m = re.fullmatch(r'([vas])(\d+)', tok)
    if m:
        return {(m.group(1), int(m.group(2)))}
    m = re.fullmatch(r'([vas])\[(\d+):(\d+)\]', tok)
    if m:
        return {(m.group(1), i) for i in range(int(m.group(2)), int(m.group(3)) + 1)}
    if tok == 'vcc':
        return {('s', 'vcc_lo'), ('s', 'vcc_hi')}
    if tok in ('vcc_lo', 'vcc_hi'):
        return {('s', tok)}
    if tok == 'exec':
        return {('s', 'exec_lo'), ('s', 'exec_hi')}
    if tok in ('exec_lo', 'exec_hi'):
        return {('s', tok)}
    if tok == 'm0':
        return {('s', 'm0')}
    return set()


class Ins:
    def __init__(self, text):
        self.text = text
        t = text.split(';')[0].strip()
        self.is_label = t.endswith(':')
        self.is_dir = t.startswith('.')
        self.op = ''
        self.dst = set()
        self.src = set()
        self.kind = 'other'
        self.mods = ''
        self.opsA = self.opsB = self.opsC = set()
        self.data = set()
        if self.is_label or self.is_dir or not t:
            self.kind = 'none'
            return
        parts = t.split(None, 1)
        self.op = op = parts[0]
        rest = parts[1] if len(parts) > 1 else ''
        ops, cur, depth = [], '', 0
        for ch in rest:
            if ch in '[(':
                depth += 1
            if ch in '])':
                depth -= 1
            if ch == ',' and depth == 0:
                ops.append(cur.strip())
                cur = ''
            else:
                cur += ch
        if cur.strip():
            ops.append(cur.strip())
        if ops:
            last = ops[-1].split(None, 1)
            if len(last) > 1 and not op.startswith('s_waitcnt'):
                ops[-1] = last[0]
                self.mods = last[1]
        self.ops = ops
        R = [regs_of(o) for o in ops]
        base = re.sub(r'_(e32|e64|dpp|sdwa)$', '', op)
        self.base = base
        if op.startswith('v_mfma'):
            self.kind = 'mfma'
            self.dst = R[0]
            self.opsA, self.opsB, self.opsC = R[1], R[2], R[3]
            self.src = R[1] | R[2] | R[3]
            self.passes = 8 if '32x32' in op else 4
        elif op.startswith('v_'):
            self.kind = 'valu'
            self.dst = R[0]
            self.src = set().union(*R[1:]) if len(R) > 1 else set()
            if base.startswith('v_permlane'):
                self.dst = R[0] | R[1]
                self.src = R[0] | R[1]
            if base in ('v_fmac_f32', 'v_dot2c_f32_bf16', 'v_writelane_b32') or op.endswith('_dpp'):
                self.src |= R[0]
            if base in ('v_add_co_u32', 'v_addc_co_u32', 'v_sub_co_u32'):
                self.dst = R[0] | R[1]
                self.src = set().union(*R[2:])
            if base == 'v_cndmask_b32' and len(ops) == 3:
                self.src |= regs_of('vcc')
            self.dpp = op.endswith('_dpp')
            self.trans = base in TRANS
            self.dot = base.startswith('v_dot')
        elif op.startswith('ds_'):
            self.kind = 'ds'
            if op.startswith('ds_read') or op.startswith('ds_bpermute') or op.startswith('ds_permute') \
                    or op.startswith('ds_swizzle'):
                self.dst = R[0]
                self.src = set().union(*R[1:])
            else:
                self.src = set().union(*R)
        elif op.startswith('buffer_') or op.startswith('global_'):
            self.kind = 'vmem'
            self.lds = ' lds' in (' ' + self.mods) or 'load_lds' in op
            if op in ('buffer_wbl2', 'buffer_inv'):
                pass
            elif '_load' in op and not self.lds:
                self.dst = R[0]
                self.src = set().union(*R[1:])
                if 'd16' in op:
                    self.src |= R[0]
            elif '_load' in op:
                self.src = set().union(*R) | {('s', 'm0')}
            else:
                self.src = set().union(*R)
                self.data = R[0] if op.startswith('buffer_') else R[1]
            self.wide = ('_store' in op) and (op.endswith('x3') or op.endswith('x4'))
        elif op.startswith('s_load') or op.startswith('s_memtime') or op.startswith('s_memrealtime'):
            self.kind = 'smem'
            self.dst = R[0]
            self.src = set().union(*R[1:]) if len(R) > 1 else set()
        elif op == 's_waitcnt':
            self.kind = 'wait'
            m = re.search(r'vmcnt\((\d+)\)', t)
            self.vm = int(m.group(1)) if m else None
            m = re.search(r'lgkmcnt\((\d+)\)', t)
            self.lgkm = int(m.group(1)) if m else None
        elif op == 's_nop':
            self.kind = 'nop'
            self.n = int(ops[0]) + 1
        elif op.startswith('s_cbranch') or op == 's_branch':
            self.kind = 'branch'
            self.target = ops[0]
        elif op.startswith('s_'):
            self.kind = 'salu'
            if op.startswith('s_cmp') or op.startswith('s_bitcmp') or op in (
                    's_barrier', 's_endpgm', 's_sleep', 's_setprio'):
                self.src = set().union(*R) if R else set()
            else:
                self.dst = R[0] if R else set()
                self.src = set().union(*R[1:]) if len(R) > 1 else set()
                if 'saveexec' in op:
                    self.dst |= regs_of('exec')
                    self.src |= regs_of('exec')
                if op in ('s_addk_i32', 's_mulk_i32'):
                    self.src |= R[0]

    def states(self):
        if self.kind == 'none':
            return 0
        if self.kind == 'nop':
            return self.n
        return 1


def vec(rs):
    return {r for r in rs if r[0] in 'va'}


def sca(rs):
    return {r for r in rs if r[0] == 's'}


def need(p, c):
    n = 0
    if p.kind == 'valu':
        pv, ps = vec(p.dst), sca(p.dst)
        if c.kind == 'valu':
            if pv & c.src:
                if c.dpp:
                    n = max(n, 2)
                if c.base.startswith('v_permlane'):
                    n = max(n, 2)
                if c.base in ('v_readlane_b32', 'v_readfirstlane_b32'):
                    n = max(n, 1)
                if p.trans and not c.trans:
                    n = max(n, 1)
            if p.dot and (pv & (c.src | c.dst)):
                same = c.base == p.base
                if not same:
                    n = max(n, 3)
                else:
                    ab = set().union(*[regs_of(o) for o in c.ops[1:3]])
                    if pv & ab:
                        n = max(n, 3)
            if ps & c.src:
                n = max(n, 4 if c.base in ('v_readlane_b32', 'v_writelane_b32') else 2)
        if c.kind == 'mfma' and pv & c.src:
            n = max(n, 3 if p.dot else 2)
        if c.kind in ('vmem', 'ds'):
            if ps & c.src:
                n = max(n, 5)
            if p.dot and pv & c.src:
                n = max(n, 3)
            if p.trans and pv & c.src:
                n = max(n, 1)
    if p.kind == 'mfma':
        big = p.passes == 8
        if c.kind == 'valu':
            if p.dst & (c.src | c.dst):
                n = max(n, 12 if big else 8)
            if p.opsC & c.dst:
                n = max(n, 7 if big else 3)
        if c.kind in ('vmem', 'ds') and p.dst & (c.src | c.dst):
            n = max(n, 12 if big else 8)
        if c.kind == 'mfma':
            if p.dst & (c.opsA | c.opsB):
                n = max(n, 12 if big else 8)
            if p.dst & c.opsC and not (p.dst == c.opsC and p.passes == c.passes):
                n = max(n, 10 if big else 6)
            if p.dst & c.dst and not (p.dst & c.opsC):
                n = max(n, 10 if big else 6)
    if p.kind == 'vmem' and getattr(p, 'wide', False):
        if c.kind == 'valu' and p.data & c.dst:
            n = max(n, 2)
        elif p.data & c.dst:
            n = max(n, 1)
    if p.kind == 'salu' and ('s', 'm0') in p.dst and c.kind == 'vmem' and getattr(c, 'lds', False):
        n = max(n, 1)
    return n


class Asm:
    def __init__(self):
        self.L = []
        self.cond = {}
        self.nlab = 0
        self.tail = []

    def __call__(self, text):
        for line in text.split('\n'):
            line = line.strip()
            if line:
                self.L.append(Ins(line))

    def label(self, hint='L'):
        self.nlab += 1
        return f'{hint}_{self.nlab}'

    class _If:
        def __init__(self, A, br, pred, hint):
            self.A, self.br, self.pred, self.lab = A, br, pred, A.label(hint)

        def __enter__(self):
            self.A.cond[self.lab] = self.pred
            self.A(f'{self.br} {self.lab}')

        def __exit__(self, *a):
            self.A(f'{self.lab}:')

    def skip_if(self, br, pred, hint='skip'):
        return Asm._If(self, br, pred, hint)

    def fix_hazards(self, window=24):
        out = []
        hist_at = {}
        hists = [[]]
        nins = 0
        for ins in self.L:
            if ins.is_label:
                lab = ins.text.split(':')[0].strip()
                hists = hists + hist_at.get(lab, [])
                out.append(ins)
                continue
            if ins.kind == 'none':
                out.append(ins)
                continue
            pad = 0
            for h in hists:
                dist = 0
                for p in reversed(h):
                    r = need(p, ins)
                    if r > dist:
                        pad = max(pad, r - dist)
                    dist += p.states()
                    if dist > window:
                        break
            if pad:
                nop = Ins(f's_nop {pad - 1}')
                out.append(nop)
                nins += 1
                for h in hists:
                    h.append(nop)
            out.append(ins)
            for h in hists:
                h.append(ins)
                del h[:-window]
            uniq = []
            for h in hists:
                if not any(h == u for u in uniq):
                    uniq.append(h)
            hists = uniq
            if ins.kind == 'branch':
                hist_at.setdefault(ins.target, []).extend([list(h) for h in hists])
                if ins.op == 's_branch':
                    hists = [[]]
        self.L = out
        return nins

    def check_waits(self, cfgs):
        labels = {i.text.split(':')[0].strip(): k for k, i in enumerate(self.L) if i.is_label}
        errs = []
        for cfg in cfgs:
            vm = []
            lg = []
            smem_out = False
            pc = 0
            while pc < len(self.L):
                ins = self.L[pc]
                pc += 1
                if ins.kind == 'none':
                    continue
                if ins.op == 's_endpgm':
                    break
                if ins.kind == 'branch':
                    t = ins.target
                    if ins.op == 's_branch' and t.startswith('PAD_'):
                        pass
                    elif ins.op == 's_branch':
                        pc = labels[t]
                    elif t in self.cond and self.cond[t](cfg):
                        pc = labels[t]
                    continue
                if ins.kind == 'wait':
                    if ins.vm is not None:
                        vm = vm[len(vm) - ins.vm:] if ins.vm < len(vm) else vm
                        if ins.vm == 0:
                            vm = []
                    if ins.lgkm is not None:
                        if ins.lgkm == 0:
                            lg = []
                        elif not any(o.kind == 'smem' for o, _ in lg):
                            lg = lg[len(lg) - ins.lgkm:] if ins.lgkm < len(lg) else lg
                    continue
                touched = ins.dst if 'nocheck' in ins.text else ins.src | ins.dst
                for o, d in vm + lg:
                    if d & touched and ('a', 250) not in d:
                        errs.append(f'cfg {cfg}: "{ins.text}" touches result of outstanding "{o.text}"')
                if ins.kind == 'vmem':
                    vm.append((ins, ins.dst))
                    if len(vm) > 63:
                        vm = vm[-63:]
                if ins.kind in ('ds', 'smem'):
                    lg.append((ins, ins.dst))
        return errs

    def measure(self):
        import subprocess, tempfile, os
        body = [i for i in self.L if i.kind != 'none']
        labs = {i.text.split(':')[0].strip() for i in self.L if i.is_label}
        extra = ''.join(f'{i.target}:\n' for i in body if i.kind == 'branch' and i.target not in labs)
        with tempfile.TemporaryDirectory() as d:
            src, obj = os.path.join(d, 'a.s'), os.path.join(d, 'a.o')
            open(src, 'w').write('.amdgcn_target "amdgcn-amd-amdhsa--gfx950"\n.text\n' + self.text() + '\n' + extra)
            subprocess.run(['clang', '-x', 'assembler', '-target', 'amdgcn-amd-amdhsa',
                            '-mcpu=gfx950', '-c', src, '-o', obj], check=True)
            out = subprocess.run(['llvm-objdump', '-d', '--mcpu=gfx950', obj],
                                 capture_output=True, text=True, check=True).stdout
        sizes = [4 * len(m.group(1).split()) for m in re.finditer(r'// [0-9A-F]{12}: ([0-9A-F ]+)', out)]
        assert len(sizes) == len(body), (len(sizes), len(body))
        for i, s in zip(body, sizes):
            i.size = s

    def add_pads(self, step=960):
        self.measure()
        out, name, n, acc, pads = [], None, 0, 0, {}
        for ins in self.L:
            m = re.match(r';@chain (\w+)', ins.text)
            if m:
                name, n, acc = (None if m.group(1) == 'end' else m.group(1)), 0, step
                continue
            if name and ins.kind != 'none':
                prev = out[-1].text if out else ''
                if acc >= step and prev != 's_mov_b64 exec, 0' and not prev.startswith('RET_'):
                    out.append(Ins(f'PAD_{name}_{n}:'))
                    br = Ins(f's_cbranch_execz PAD_{name}_{n + 1}')
                    out.append(br)
                    pads.setdefault(name, []).append(br)
                    n, acc = n + 1, 4
                acc += ins.size
            out.append(ins)
        for name, l in pads.items():
            k = out.index(l[-1])
            out[k] = Ins(f's_cbranch_execz RET_{name}')
        self.L = out
        return {k: len(v) for k, v in pads.items()}

    def align8(self, min_run=6, in_mfma=False):
        self.measure()
        promotable = lambda i: (i.kind == 'valu' and i.size == 4 and not i.op.endswith(('_e64', '_dpp'))
                                and not i.base.startswith(('v_readfirstlane', 'v_permlane', 'v_accvgpr', 'v_dot2c',
                                                           'v_add_co', 'v_addc_co', 'v_cndmask')))
        out, odd, last4, npro, nnop = [], False, None, 0, 0
        for k, ins in enumerate(self.L):
            if ins.kind == 'none':
                out.append(ins)
                continue
            if ins.size == 8 and odd:
                if last4 is not None and promotable(last4):
                    t = last4.text.split(None, 1)
                    new = Ins(re.sub(r'_e32$', '', t[0]) + '_e64 ' + t[1])
                    new.size = 8
                    out[out.index(last4)] = new
                    odd, npro = False, npro + 1
                else:
                    run = 0
                    for nx in self.L[k:]:
                        if nx.kind == 'none':
                            continue
                        if nx.size != 8 or (nx.kind == 'mfma' and not in_mfma):
                            break
                        run += 1
                    if run >= min_run:
                        nop = Ins('s_nop 0')
                        nop.size = 4
                        out.append(nop)
                        odd, nnop = False, nnop + 1
                last4 = None
            out.append(ins)
            if ins.size == 4:
                odd = not odd
                last4 = ins
            else:
                last4 = None
        self.L = out
        return npro, nnop

    def text(self):
        return '\n'.join(('' if (i.is_label or i.is_dir) else '  ') + i.text for i in self.L)
```

```python
import sys
import os
import re
sys.path.insert(0, os.path.dirname(os.path.abspath(__file__)))
from asmlib import Asm

NAME = 'interleave_layers__ssm_conv_s5__ssm_conv_h3__prompt'
OPT = dict(stamps=0, mimic_kv=0, mimic_y=0, mimic_ln=0, reuse=1, convA=20, nup=3, kvi=12, kv0=60, aearly=1, cfk=4, n0=8, wsoff=0, exp=0, om=1, rt=0, bt=0, rlm=1, wb=2, wbw=3, wbf=33, wbk=16, cw=1, gw=0, g2a=0, hop=0, align=3, shift=0, nt=1, ntx=0, rsp=11, rsc=15, fsp=9, fsc=12, yp=16, yc=32, rb=34, rper=7, cl0=10, clend=19, fsk=4, force_slow=0, stop=99,
           budget=1 << 19, prefetch=1, pscale=0, pspike=0, dbgspan=0, fixdur=0, fixfrom='', probe='')
for a in sys.argv[1:]:
    k, v = a.split('=')
    assert k in OPT, k
    OPT[k] = v if k in ('fixfrom', 'probe') else int(v, 0)

WS_FU = 0x1000
WS_FH = 0x3000
WS_FS = 0x5000
WS_FY = 0x6000
WS_FK = 0x7000
WS_FX = 0x48000
WS_ZROW = 0x8000
WS_RS = 0x40000
WS_CS = 0x4A000
WS_AGG = 0x50000
AGG_L = 16 * 31 * 768
WS_ST = 0x140000
WS_U = 0x400000
WS_H = 0xA00000
WS_KV = WS_U if OPT['reuse'] else 0x1000000
WS_Y = 0x1300000
WS_CF = 0x1600000
WS_U2 = WS_U
WS_H2 = WS_H if OPT['reuse'] else 0x1B00000
WS_DBG = 0x2400000
WS_SIZE = 0x2800000

L_B = 0
L_KV = 0
L_K = 102400
L_SCR = 152320
L_AS = L_SCR + 5760
L_TR = L_SCR
L_SK = 77824
L_SV, L_SS = L_SK + 11520, L_SK + 22080
L_SC = 160000
L_AR = L_K
L_RED = 102400
LDS_SIZE = 163840

P_X, P_LRE, P_LIM, P_BRE, P_BIM, P_CRE, P_CIM, P_LDT = 16, 18, 20, 22, 24, 26, 28, 30
P_DSK, P_Q, P_K, P_V, P_SK, P_SSK, P_SD, P_OUT, P_DBG, P_WS = 32, 34, 36, 38, 40, 42, 44, 46, 48, 50
R_WS, R_BRE, R_BIM, R_T0, R_T1, R_X = 52, 56, 60, 64, 68, 80
sR128, sMem, sR64, sS8, sW, sTag, sMode, sBud, sXcc = 3, 4, 5, 6, 7, 8, 9, 10, 11
sT = [12, 13, 14, 15]
sD, sD4, sChM = 72, 26, 27
sE = 8
sCh = 74
sH = [75, 76, 77, 78, 79]
sAg = list(range(80, 95))
sX = [95, 96, 97, 44, 45]
sSt = 100
sPriv, sEpW = 34, 35
sG, sJ = 0, 1
sFW, sFC, sFK = 73, 17, 16
sL = [18, 19]
sKV = [20, 21, 22, 23, 24, 25]
sDS = [36, 37, 38, 39]
sOnes = 2

vTid, vL, vL16, vI, vQ = 0, 1, 2, 3, 4
vBA = [5, 6, 7, 8]
vAS = 9
vUA = 0
vStamp = 10
vT = [11, 12, 13, 14, 15]
LR, LS, CA, CB = 16, 21, 26, 31
mL8, mL128, mC = 36, 38, 40
vU = [42, 43, 44, 45, 46, 47]
vBd = 47
ACC = 48
BF = 88
RING = 128
NR = 16
A_Y = 208
A_Z = 220
A_DSK = 240
A_X = 220
A_CR = 200

A = Asm()
NT = ' nt' if OPT['nt'] & 1 else ''
NTX = ' nt' if OPT['ntx'] else ''
NTB = ' nt' if OPT['nt'] & 2 else ''
stamp_n = [0]


def s2(n): return f's[{n}:{n + 1}]'
def s4(n): return f's[{n}:{n + 3}]'
def v2(n): return f'v[{n}:{n + 1}]'
def v3(n): return f'v[{n}:{n + 2}]'
def v4(n): return f'v[{n}:{n + 3}]'
def a4(n): return f'a[{n}:{n + 3}]'


def srd(r, p, size):
    A(f's_mov_b32 s{r}, s{p}\ns_and_b32 s{r + 1}, s{p + 1}, 0xffff\ns_mov_b32 s{r + 2}, {size}\n'
      f's_mov_b32 s{r + 3}, 0x20000')


def stamp(name):
    if OPT['probe']:
        a, b, kind = OPT['probe'].split(',')
        op = 's_memtime' if kind == 'c' else 's_memrealtime'
        if name == a:
            A(f'{op} vcc\ns_waitcnt lgkmcnt(0)\nv_mov_b32 v{vStamp}, vcc_lo')
        if name == b:
            A(f'{op} vcc\ns_waitcnt lgkmcnt(0)\nv_sub_u32 v{vStamp}, vcc_lo, v{vStamp}\n'
              + (f'v_lshrrev_b32 v{vStamp}, 2, v{vStamp}' if kind == 'c' else f'v_lshlrev_b32 v{vStamp}, 2, v{vStamp}'))
    if OPT['fixfrom'] == name:
        A(f's_memrealtime {s2(sSt)}\ns_waitcnt lgkmcnt(0)')
    if not OPT['stamps'] or (OPT['stamps'] < 0 and name not in ('start',)):
        return
    i = stamp_n[0]
    stamp_n[0] += 1
    STAMPS.append(name)
    A(f'{"s_memrealtime" if OPT["rt"] else "s_memtime"} {s2(sSt)}\ns_waitcnt lgkmcnt(0)\n'
      f'v_writelane_b32 v{vStamp}, s{sSt}, {i}')


STAMPS = []


class VM:
    def __init__(self):
        self.n = 0

    def __call__(self, text):
        A(text)
        self.n += 1
        return self.n

    def wait(self, tok):
        k = self.n - tok
        assert 0 <= k
        A(f's_waitcnt vmcnt({min(k, 63)})')


class LG(VM):
    def wait(self, tok):
        k = self.n - tok
        assert 0 <= k
        A(f's_waitcnt lgkmcnt({min(k, 15)})')


TAIL = []


class Side:
    def __init__(self):
        self.q = {}

    def add(self, step, *items):
        for it in items:
            if isinstance(it, str):
                self.q.setdefault(step, []).extend(l for l in it.split('\n') if l.strip())
            else:
                self.q.setdefault(step, []).append(it)

    def spread(self, step0, per, items):
        flat = []
        for it in items:
            flat += [l for l in it.split('\n') if l.strip()] if isinstance(it, str) else [it]
        for i, it in enumerate(flat):
            self.add(step0 + i // per, it)
        return step0 + (len(flat) + per - 1) // per

    def run(self, step, slots_left):
        q = self.q.get(step, [])
        n = -(-len(q) // slots_left)
        for it in q[:n]:
            A(it) if isinstance(it, str) else it()
        self.q[step] = q[n:]

    def empty(self):
        return not any(self.q.values())


class Cap:
    def __enter__(self):
        self.save = A.L
        A.L = []
        return self

    def __exit__(self, *a):
        self.lines = [i.text for i in A.L]
        A.L = self.save


def retry(back):
    lab = A.label('retry')
    done = A.label('giveup')
    A.cond[lab] = lambda c: False
    A(f's_cbranch_vccnz {lab}')
    A(f'{done}:')
    TAIL.append(f'{lab}:\ns_sub_u32 s{sBud}, s{sBud}, 1\ns_cmp_gt_i32 s{sBud}, 0\n'
                f's_cbranch_scc1 {back}\ns_branch {done}')


HOPBIT = dict(a=1, b=1, c=2, d=2, e=2, f=2, g=0, h=0, end=7)


def chain(name):
    if OPT['hop'] and not OPT['hop'] & HOPBIT[name]:
        name = 'end'
    if OPT['hop']:
        A(f';@chain {name}')


def hop(name):
    if OPT['hop']:
        A(f's_mov_b64 exec, 0\ns_branch PAD_{name}_0\nRET_{name}:\ns_mov_b64 exec, -1')


def wbl2():
    A(f's_lshl_b32 vcc_lo, s{sJ}, 2\ns_add_u32 vcc_lo, vcc_lo, s{sW}\ns_cmp_lg_u32 vcc_lo, {OPT["wbw"]}')
    with A.skip_if('s_cbranch_scc1', lambda c: True):
        A('buffer_wbl2 sc1')


def poll_flags(addr_v, soff, ndw, tmp=None, masked=False):
    t = tmp if tmp is not None else vU[0]
    back = A.label('poll')
    A(f'{back}:')
    op = {1: 'dword', 2: 'dwordx2', 4: 'dwordx4'}[ndw]
    dst = f'v{t}' if ndw == 1 else f'v[{t}:{t + ndw - 1}]'
    A(f'buffer_load_{op} {dst}, v{addr_v}, {s4(R_WS)}, {soff} offen sc1')
    A('s_waitcnt vmcnt(0)')
    x = vT[4]
    if ndw == 1:
        A(f'v_xor_b32 v{x}, s{sTag}, v{t}')
    else:
        A(f'v_xor_b32 v{x}, s{sTag}, v{t}')
        for i in range(1, ndw):
            A(f'v_xor_b32 v{vT[3]}, s{sTag}, v{t + i}\nv_or_b32 v{x}, v{x}, v{vT[3]}')
    if masked:
        A(f'v_cmp_lt_u32 vcc, 15, v{x}')
    else:
        A(f'v_cmp_ne_u32 vcc, 0, v{x}')
    retry(back)


def mode_stores(lines):
    slow = A.label('slow')
    back = A.label('back')
    A.cond[slow] = lambda c: not c['fast']
    A(f's_cmp_eq_u32 s{sMode}, 0\ns_cbranch_scc1 {slow}')
    for l in lines:
        A(l)
    A(f'{back}:')
    TAIL.append(f'{slow}:\n' + '\n'.join((l + ' sc1') if l.startswith('buffer_store') else l for l in lines)
                + f'\ns_nop 1\ns_branch {back}')


def flag_store(soff, local, val=None):
    t = vT[4]
    A(f'v_mov_b32 v{t}, s{sTag if val is None else val}\ns_mov_b64 exec, 1')
    line = f'buffer_store_dword v{t}, off, {s4(R_WS)}, {soff}'
    if local:
        mode_stores([line])
    else:
        A(line + ' sc1')
    A('s_mov_b64 exec, -1')


def unpack(dst, src, n):
    for i in range(n):
        A(f'v_lshlrev_b32 v{dst + 2 * i}, 16, v{src + i}')
        A(f'v_and_b32 v{dst + 2 * i + 1}, 0xffff0000, v{src + i}')


def rnd_bf16(v):
    A(f'v_cvt_pk_bf16_f32 v{v}, v{v}, v{v}\nv_and_b32 v{v}, 0xffff0000, v{v}')


DPPM = 'row_mask:0xf bank_mask:0xf'
SWP = f'quad_perm:[1,0,3,2] {DPPM}'


sPC = 62 + 36


def code_touch():
    return [f's_and_b32 vcc_lo, s{sJ}, 7', 's_lshl_b32 vcc_lo, vcc_lo, 2', f's_add_u32 vcc_lo, vcc_lo, s{sW}',
            's_lshl_b32 vcc_lo, vcc_lo, 11', f'v_lshl_add_u32 v{vT[4]}, v{vI}, 7, vcc_lo',
            f'v_min_u32 v{vT[4]}, L_codeend-L_pc-4, v{vT[4]}', 's_mov_b64 exec, 0xffff',
            f'global_load_dword a250, v{vT[4]}, {s2(sPC)}', 's_mov_b64 exec, -1']


def prologue():
    A(f's_cmp_ge_u32 s2, 256\ns_cbranch_scc1 L_end')
    A.cond['L_end'] = lambda c: False
    A('s_load_dwordx16 s[16:31], s[0:1], 0\ns_load_dwordx16 s[32:47], s[0:1], 64\n'
      's_load_dwordx4 s[48:51], s[0:1], 128')
    if OPT['stamps']:
        A(f'v_mov_b32 v{vStamp}, 0\ns_memrealtime {s2(sSt)}\ns_waitcnt lgkmcnt(0)\n'
          f'v_writelane_b32 v{vStamp}, s{sSt}, 62')
        stamp('start')
    if OPT['dbgspan'] or OPT['fixdur']:
        A(f's_memrealtime {s2(sSt)}')
    A(f'''v_and_b32 v{vL}, 63, v0
v_lshrrev_b32 v{vT[0]}, 6, v0
v_lshlrev_b32 v{vL16}, 4, v{vL}
v_readfirstlane_b32 s{sW}, v{vT[0]}
v_and_b32 v{vI}, 15, v{vL}
v_lshrrev_b32 v{vQ}, 4, v{vL}
s_and_b32 s{sT[0]}, s2, 7
s_lshr_b32 s{sT[1]}, s2, 3
s_and_b32 s{sMem}, s{sT[1]}, 15
s_lshr_b32 s{sT[2]}, s{sT[1]}, 4
s_lshl_b32 s{sR128}, s{sT[0]}, 1
s_add_u32 s{sR128}, s{sR128}, s{sT[2]}
s_lshr_b32 s{sT[2]}, s{sMem}, 3
s_lshl_b32 s{sR64}, s{sR128}, 1
s_add_u32 s{sR64}, s{sR64}, s{sT[2]}
s_and_b32 s{sS8}, s{sMem}, 7
s_mov_b32 s{sG}, s{sT[0]}
s_mov_b32 s{sJ}, s{sT[1]}
s_getreg_b32 s{sXcc}, hwreg(HW_REG_XCC_ID, 0, 4)
s_mov_b32 s{sBud}, {OPT['budget']}
s_mul_i32 s{sX[0]}, s{sMem}, 31
s_add_u32 s{sX[0]}, s{sX[0]}, s{sR128}
s_mul_i32 s{sX[0]}, s{sX[0]}, 768''')
    A(f's_getpc_b64 {s2(sPC)}\nL_pc:')
    if OPT['prefetch'] & 1:
        for l in code_touch():
            A(l)
    if OPT['hop'] & 1:
        l1, l2 = A.label('h1'), A.label('h2')
        A.cond[l1] = lambda c: c['w'] != 0
        A.cond[l2] = lambda c: c['w'] != 1
        A(f's_cmp_lg_u32 s{sW}, 0\ns_cbranch_scc1 {l1}')
        hop('a')
        A(f'{l1}:\ns_cmp_lg_u32 s{sW}, 1\ns_cbranch_scc1 {l2}')
        hop('b')
        A(f'{l2}:')
    A(f's_mov_b32 s{sOnes}, 0x3f803f80')
    A('s_waitcnt lgkmcnt(0)')
    if OPT['wsoff']:
        A(f's_add_u32 s{P_WS}, s{P_WS}, {OPT["wsoff"]}\ns_addc_u32 s{P_WS + 1}, s{P_WS + 1}, 0')
    A(f'''s_load_dword s{sE}, {s2(P_WS)}, 0
s_lshr_b32 s{sT[0]}, s{sJ}, 1
s_mul_i32 s{sT[0]}, s{sT[0]}, 5
s_mul_i32 s{sT[1]}, s{sG}, 80
s_add_u32 s{sT[0]}, s{sT[0]}, s{sT[1]}
s_and_b32 s{sT[1]}, s{sJ}, 1
s_lshl_b32 s{sT[1]}, s{sT[1]}, 1
s_add_u32 s{sT[2]}, s{sT[1]}, s{sW}
s_cmp_lt_u32 s{sW}, 2
s_cselect_b32 s{sT[2]}, s{sT[2]}, 4
s_add_u32 s{sCh}, s{sT[0]}, s{sT[2]}
s_lshr_b32 s{sT[2]}, s{sW}, 1
s_add_u32 s{sT[2]}, s{sT[2]}, s{sT[1]}
s_add_u32 s{sT[2]}, s{sT[2]}, s{sT[0]}
s_lshl_b32 s{sT[2]}, s{sT[2]}, 1
s_and_b32 s{sT[2]}, s{sT[2]}, 0xfffffffc
s_load_dword s{sD}, {s2(P_SD)}, s{sT[2]}
s_add_u32 s{sT[2]}, s{sT[0]}, 4
s_lshl_b32 s{sT[2]}, s{sT[2]}, 1
s_and_b32 s{sT[2]}, s{sT[2]}, 0xfffffffc
s_load_dword s{sMode}, {s2(P_SD)}, s{sT[2]}''')
    A(f's_mov_b32 s{sX[2]}, s{sT[0]}\ns_mov_b32 s{sX[4]}, s{sT[1]}')
    A(f's_mul_i32 s{sPriv}, s{sW}, 4608\ns_add_u32 s{sPriv}, s{sPriv}, 61440')
    A(f'''s_lshl_b32 s{sFW}, s{sR128}, 8
s_lshl_b32 s{sT[1]}, s{sMem}, 4
s_add_u32 s{sFW}, s{sFW}, s{sT[1]}
s_lshl_b32 s{sT[1]}, s{sW}, 2
s_add_u32 s{sFW}, s{sFW}, s{sT[1]}''')
    srd(R_X, P_X, 2621440)
    srd(R_WS, P_WS, WS_SIZE)
    srd(R_BRE, P_BRE, 819200)
    srd(R_BIM, P_BIM, 819200)


XP, XTA = 128, 174
KK, VV, SKW, WW = 128, 150, 166, 192
KVO = 192
ZG = 248
vKS, vFP, vKVo, vZA, vFA = 211, 212, 216, 222, 223
AF, ACS, ONES, MM, RR = 128, 144, 188, 168, 176
vAR, vAR2, vXd, vXt, RSL, CSA, CSL = 184, 189, 186, 187, 224, 185, 144
CSR = 88
KCZ = [192, 196, 200, 164, 240]
sBm, sBs, sBm2, sBs2 = 30, 31, 40, 41
vCAd = 247
OOB = 0x70000000


def b_dma_addr(re=None, im=None):
    re = vU[3] if re is None else re
    im = vU[4] if im is None else im
    A(f'''v_lshrrev_b32 v{vT[0]}, 3, v{vL}
v_and_b32 v{vT[1]}, 7, v{vL}
v_lshrrev_b32 v{vT[2]}, 1, v{vT[0]}
v_lshlrev_b32 v{vT[2]}, 1, v{vT[2]}
s_movk_i32 s{sT[3]}, 0x78
v_bfe_u32 v{vT[2]}, s{sT[3]}, v{vT[2]}, 2
v_xor_b32 v{vT[1]}, v{vT[1]}, v{vT[2]}
v_mul_u32_u24 v{vT[0]}, 1280, v{vT[0]}
v_lshl_add_u32 v{re}, v{vT[1]}, 4, v{vT[0]}
v_xor_b32 v{im}, 64, v{re}''')


def make_tag():
    A(f"""s_waitcnt lgkmcnt(0)
s_lshr_b32 s{sE}, s{sE}, 4
s_mul_i32 s{sE}, s{sE}, 0x19660d
s_add_u32 s{sE}, s{sE}, 0x3c6ef35f
s_lshl_b32 s{sTag}, s{sE}, 4
s_lshr_b32 s{sT[0]}, s{sW}, 1
s_add_u32 s{sT[0]}, s{sT[0]}, s{sX[2]}
s_bitcmp1_b32 s{sT[0]}, 0
s_cselect_b32 s{sT[0]}, 16, 0
s_lshr_b32 s{sD}, s{sD}, s{sT[0]}
s_and_b32 s{sD}, s{sD}, 0xffff
s_bitcmp1_b32 s{sX[2]}, 0
s_cselect_b32 s{sT[0]}, 16, 0
s_lshr_b32 s{sMode}, s{sMode}, s{sT[0]}
s_lshl_b32 s{sMode}, s{sMode}, 16
s_or_b32 s{sD}, s{sD}, s{sMode}""")


def fx_store(mods):
    A(f"""s_lshl_b32 s{sT[0]}, s{sG}, 8
s_lshl_b32 s{sT[1]}, s{sJ}, 2
s_add_u32 s{sT[0]}, s{sT[0]}, s{sT[1]}
s_add_u32 s{sT[0]}, s{sT[0]}, {WS_FX}
s_or_b32 s{sT[1]}, s{sTag}, s{sXcc}
v_mov_b32 v{vT[4]}, s{sT[1]}
s_mov_b64 exec, 1
buffer_store_dword v{vT[4]}, off, {s4(R_WS)}, s{sT[0]}{mods}
s_mov_b64 exec, -1""")


def c_loads():
    A(f"""s_lshl_b32 s{sT[0]}, s{sR64}, 2
s_add_u32 s{sT[0]}, s{sT[0]}, s{sW}
s_min_u32 s{sT[0]}, s{sT[0]}, 99
s_mul_i32 s{sT[1]}, s{sT[0]}, 205
s_lshr_b32 s{sT[1]}, s{sT[1]}, 10
s_mul_i32 s{sT[2]}, s{sT[1]}, 5
s_sub_u32 s{sT[2]}, s{sT[0]}, s{sT[2]}
s_mul_i32 s{sX[1]}, s{sS8}, 200
s_mul_i32 s{sT[3]}, s{sT[1]}, 10
s_add_u32 s{sX[1]}, s{sX[1]}, s{sT[3]}
s_add_u32 s{sX[1]}, s{sX[1]}, s{sT[2]}
s_lshl_b32 s{sX[1]}, s{sX[1]}, 10
s_add_u32 s{sX[1]}, s{sX[1]}, {WS_CF}
s_mul_i32 s{sT[3]}, s{sS8}, 5
s_add_u32 s{sT[3]}, s{sT[3]}, s{sT[2]}
s_mul_i32 s{sT[3]}, s{sT[3]}, 20480
s_lshl_b32 s{sT[1]}, s{sT[1]}, 6
s_add_u32 s{sT[3]}, s{sT[3]}, s{sT[1]}
v_mul_u32_u24 v{vT[3]}, 1280, v{vI}
v_lshl_add_u32 v{vT[3]}, v{vQ}, 4, v{vT[3]}
v_add_u32 v{vCAd}, s{sT[3]}, v{vT[3]}""")
    return (f'global_load_dwordx4 {a4(A_CR)}, v{vCAd}, {s2(P_CRE)}{NT}\n'
            f'global_load_dwordx4 {a4(A_CR + 4)}, v{vCAd}, {s2(P_CIM)}{NT}')


def b_setup():
    b_dma_addr()
    A(f"""s_bitcmp1_b32 s{sW}, 0
s_cselect_b32 s{R_T0}, s{R_BIM}, s{R_BRE}
s_cselect_b32 s{R_T0 + 1}, s{R_BIM + 1}, s{R_BRE + 1}
s_mov_b32 s{R_T0 + 2}, 819200
s_mov_b32 s{R_T0 + 3}, 0x20000
s_cselect_b32 s{sBm}, 1024, 0
s_cselect_b32 vcc_lo, -1, 0
s_cselect_b32 vcc_hi, -1, 0
s_mul_i32 s{sBs}, s{sMem}, 51200
v_cndmask_b32 v{vBd}, v{vU[3]}, v{vU[4]}, vcc""")


def startup():
    par = vU[0:3]
    nup = OPT['nup']
    lab_ln, lab_2, lab_j = A.label('ln'), A.label('w2'), A.label('join')
    A.cond[lab_ln] = lambda c: c['w'] < 2
    A.cond[lab_2] = lambda c: c['w'] == 2
    A(f'v_mov_b32 v{CSA}, 0')
    A(f's_cmp_lt_u32 s{sW}, 2\ns_cbranch_scc1 {lab_ln}\ns_cmp_eq_u32 s{sW}, 2\ns_cbranch_scc1 {lab_2}')
    chain('a')
    srd(R_T0, P_K, 2621440)
    srd(R_T1, P_V, 2621440)
    A(f"""s_mul_i32 s{sT[1]}, s{sJ}, 81920
s_mul_i32 s{sT[2]}, s{sG}, 160
s_add_u32 s{sT[1]}, s{sT[1]}, s{sT[2]}
v_mul_u32_u24 v{vT[0]}, 205, v{vL}
v_lshrrev_b32 v{vT[0]}, 11, v{vT[0]}
v_mul_u32_u24 v{vT[0]}, 1120, v{vT[0]}
v_add3_u32 v{vT[0]}, v{vT[0]}, v{vL16}, s{sT[1]}
v_subrev_u32 v{vT[1]}, 3840, v{vT[0]}
v_add_u32 v{vT[2]}, 3840, v{vT[0]}
s_mov_b32 exec_hi, 0x0fffffff""")
    for k in range(11):
        if k == 10:
            A('s_mov_b32 exec_hi, 0x0fffffff')
        A(f's_mov_b32 m0, {L_SK + k * 960}\ns_mov_b32 s{sT[0]}, {max(0, k - 1) * 7680}')
        A(f'buffer_load_dwordx4 v{vT[1] if k == 0 else vT[2]}, {s4(R_T0)}, s{sT[0]} offen{NT} lds')
        if k == 10:
            A('s_mov_b32 exec_hi, 0xff')
        A(f's_mov_b32 m0, {L_SV + k * 960}\ns_mov_b32 s{sT[0]}, {k * 7680}')
        A(f'buffer_load_dwordx4 v{vT[0]}, {s4(R_T1)}, s{sT[0]} offen{NT} lds')
    srd(R_T1, P_SK, 5120)
    A(f"""s_mul_i32 s{sT[1]}, s{sG}, 640
s_mov_b32 m0, {L_SS}
s_nop 0
buffer_load_dwordx4 v{vL16}, {s4(R_T1)}, s{sT[1]} offen{NT} lds
s_mov_b64 exec, 0x3ff
s_mov_b32 m0, {L_SK + 11 * 960}
s_mov_b32 s{sT[0]}, {10 * 7680}
buffer_load_dwordx4 v{vT[2]}, {s4(R_T0)}, s{sT[0]} offen{NT} lds
s_mov_b64 exec, -1
s_branch {lab_j}
{lab_2}:""")
    A(f"""v_min_u32 v{vT[0]}, 39, v{vL}
s_mul_i32 s{sT[0]}, s{sMem}, 80
v_lshl_add_u32 v{vT[3]}, v{vT[0]}, 1, s{sT[0]}
global_load_ushort v{par[0]}, v{vT[3]}, {s2(P_LRE)}{NT}
global_load_ushort v{par[1]}, v{vT[3]}, {s2(P_LIM)}{NT}
global_load_ushort v{par[2]}, v{vT[3]}, {s2(P_LDT)}{NT}""")
    A(f's_branch {lab_j}')
    A(f'{lab_ln}:')
    A(f"""v_lshrrev_b32 v{vT[1]}, 1, v{vL}
v_and_b32 v{vT[0]}, 1, v{vL}
v_lshlrev_b32 v{vT[0]}, 7, v{vT[0]}
v_lshl_add_u32 v{vT[0]}, v{vT[1]}, 12, v{vT[0]}
s_lshl_b32 s{sT[0]}, s{sR128}, 8
s_add_u32 s{sT[0]}, s{sT[0]}, {WS_FU}
v_add_u32 v{vT[0]}, s{sT[0]}, v{vT[0]}
s_lshl_b32 s{sT[0]}, s{sG}, 9
s_add_u32 s{sT[0]}, s{sT[0]}, {WS_FK - 8 * 128}
v_lshl_add_u32 v{vT[1]}, v{vL}, 7, s{sT[0]}
v_cmp_lt_u32 vcc, 7, v{vL}
s_lshl_b32 s{sT[0]}, s{sG}, 8
s_add_u32 s{sT[0]}, s{sT[0]}, {WS_FX}
v_cndmask_b32 v{vT[0]}, v{vT[0]}, v{vT[1]}, vcc
v_mov_b32 v{vT[1]}, s{sT[0]}
v_cmp_lt_u32 vcc, 11, v{vL}
s_nop 1
v_cndmask_b32 v{vT[0]}, v{vT[0]}, v{vT[1]}, vcc
buffer_load_dword a250, v{vT[0]}, {s4(R_WS)}, 0 offen{NT}""")
    A(f'{lab_j}:')
    A(f'''s_lshl_b32 s{sT[0]}, s{sR64}, 6
s_lshr_b32 s{sT[1]}, s{sW}, 1
s_lshl_b32 s{sT[1]}, s{sT[1]}, 5
s_add_u32 s{sT[0]}, s{sT[0]}, s{sT[1]}
s_and_b32 s{sT[1]}, s{sW}, 1
s_lshl_b32 s{sT[1]}, s{sT[1]}, 2
s_add_u32 s{sT[0]}, s{sT[0]}, s{sT[1]}
s_mul_i32 s{sT[0]}, s{sT[0]}, 1280
s_mul_i32 s{sT[1]}, s{sS8}, 160
s_add_u32 s{sT[0]}, s{sT[0]}, s{sT[1]}''')
    for z in range(3):
        A(f'''v_add_u32 v{vT[0]}, {64 * z}, v{vL}
v_mul_u32_u24 v{vT[1]}, 205, v{vT[0]}
v_lshrrev_b32 v{vT[1]}, 11, v{vT[1]}
v_lshrrev_b32 v{vT[2]}, 2, v{vT[1]}
v_mul_u32_u24 v{vT[1]}, 1120, v{vT[1]}
v_mul_u32_u24 v{vT[2]}, 5120, v{vT[2]}
v_lshlrev_b32 v{vT[0]}, 4, v{vT[0]}
v_add3_u32 v{vT[0]}, v{vT[0]}, v{vT[1]}, v{vT[2]}
v_add_u32 v{XTA + z}, s{sT[0]}, v{vT[0]}''')
    A(f"""s_mov_b32 s{sX[3]}, s{sW}
s_lshl_b32 s{sFC}, s{sS8}, 9
s_lshl_b32 s{sT[1]}, s{sW}, 2
s_add_u32 s{sFC}, s{sFC}, s{sT[1]}
s_lshl_b32 s{sT[1]}, s{sR64}, 4
s_add_u32 s{sFC}, s{sFC}, s{sT[1]}
s_lshl_b32 s{sFK}, s{sG}, 9
s_lshl_b32 s{sT[1]}, s{sW}, 2
s_add_u32 s{sFK}, s{sFK}, s{sT[1]}
s_lshl_b32 s{sT[1]}, s{sJ}, 4
s_add_u32 s{sFK}, s{sFK}, s{sT[1]}""")
    cl = c_loads()
    b_setup()
    om = sX[3]
    A(f"""s_mul_i32 s{sT[0]}, s{sG}, 80
s_lshl_b32 s{sT[1]}, s{om}, 5
s_add_u32 s{sT[0]}, s{sT[0]}, s{sT[1]}
s_lshl_b32 s{sT[0]}, s{sT[0]}, 12
s_lshl_b32 s{sT[1]}, s{sJ}, 7
s_sub_u32 s{sT[0]}, s{sT[0]}, s{sT[1]}
s_add_u32 s{sT[0]}, s{sT[0]}, {WS_KV + 3968}
s_cmp_lt_u32 s{om}, 3
s_cselect_b32 s{sDS[0]}, s{sT[0]}, {OOB}
s_cmp_lt_u32 s{om}, 2
s_cselect_b32 s{sT[1]}, 0, {OOB}
v_cmp_lt_u32 vcc, 31, v{vL}
v_mov_b32 v{vT[2]}, s{sT[1]}
v_cndmask_b32 v{vT[2]}, 0, v{vT[2]}, vcc
s_cmp_lt_u32 s{sR64}, 25
s_cselect_b32 s{sDS[2]}, s{sX[1]}, {OOB}
s_add_u32 s{sX[0]}, s{sX[0]}, {WS_AGG}
s_cmp_lt_u32 s{sR128}, 15
s_cselect_b32 s{sDS[1]}, s{sX[0]}, {OOB}
v_lshrrev_b32 v{vT[0]}, 3, v{vL}
v_and_b32 v{vT[1]}, 7, v{vL}
v_lshlrev_b32 v{vT[1]}, 4, v{vT[1]}
v_lshl_add_u32 v{vKS}, v{vT[0]}, 14, v{vT[1]}
v_add_u32 v{vKS}, v{vKS}, v{vT[2]}
v_mov_b32 v{ZG}, 0
v_mov_b32 v{ZG + 1}, 0
v_min_u32 v{vZA}, 39, v{vL}
v_lshlrev_b32 v{vZA}, 4, v{vZA}
v_and_b32 v{vFA}, 31, v{vL}
v_lshlrev_b32 v{vFA}, 4, v{vFA}
s_lshr_b32 s{sT[0]}, s{sW}, 1
s_mul_i32 s{sT[1]}, s{sT[0]}, 10240
s_add_u32 s{sBm2}, s{sBm}, s{sT[1]}
s_lshl_b32 s{sT[0]}, s{sT[0]}, 7
s_add_u32 s{sBs2}, s{sBs}, s{sT[0]}""")
    for z in range(6):
        A(f"""s_mul_i32 s{sT[0]}, s{sW}, 6
s_add_u32 s{sT[0]}, s{sT[0]}, {z}
s_lshr_b32 s{sT[1]}, s{sT[0]}, 3
s_and_b32 s{sT[0]}, s{sT[0]}, 7
s_add_u32 s{sT[2]}, s{sT[1]}, s{sX[4]}
s_cmp_lt_u32 s{sT[1]}, 2
s_cselect_b32 s{sT[2]}, s{sT[2]}, 4
s_add_u32 s{sT[2]}, s{sT[2]}, s{sX[2]}
s_lshl_b32 s{sT[2]}, s{sT[2]}, 12
s_add_u32 s{sT[2]}, s{sT[2]}, {WS_KV}
s_cmp_lt_u32 s{sT[0]}, 6
s_cselect_b32 s{sKV[z]}, s{sT[2]}, {OOB}
s_lshl_b32 s{sT[0]}, s{sT[0]}, 6
v_add_u32 v{vT[0]}, s{sT[0]}, v{vL}
v_mul_u32_u24 v{vT[1]}, 171, v{vT[0]}
v_lshrrev_b32 v{vT[1]}, 10, v{vT[1]}
v_lshlrev_b32 v{vT[1]}, 1, v{vT[1]}
v_sub_u32 v{vT[0]}, v{vT[0]}, v{vT[1]}
v_lshlrev_b32 v{vKVo + z}, 4, v{vT[0]}""")
    A(f"""s_lshl_b32 s{sT[0]}, s{sCh}, 12
s_add_u32 s{R_T1}, s{P_SSK}, s{sT[0]}
s_addc_u32 s{R_T1 + 1}, s{P_SSK + 1}, 0
s_and_b32 s{R_T1 + 1}, s{R_T1 + 1}, 0xffff
s_mov_b32 s{R_T1 + 2}, 4096
s_mov_b32 s{R_T1 + 3}, 0x20000""")
    A(f"""v_and_b32 v{vT[0]}, 1, v{vI}
v_lshrrev_b32 v{vT[1]}, 1, v{vI}
v_lshrrev_b32 v{vT[2]}, 2, v{vI}
v_lshlrev_b32 v{vT[2]}, 1, v{vT[2]}
s_movk_i32 s{sT[3]}, 0x78
v_bfe_u32 v{vT[2]}, s{sT[3]}, v{vT[2]}, 2
v_xor_b32 v{vT[2]}, v{vT[2]}, v{vQ}
v_lshl_add_u32 v{vT[2]}, v{vT[0]}, 2, v{vT[2]}
v_lshlrev_b32 v{vT[2]}, 4, v{vT[2]}
v_lshl_add_u32 v{vT[2]}, v{vT[1]}, 7, v{vT[2]}
v_lshl_add_u32 v{vBA[0]}, v{vT[0]}, 10, v{vT[2]}
v_xor_b32 v{vBA[1]}, 64, v{vBA[0]}
v_add_u32 v{vBA[2]}, 51200, v{vBA[0]}
v_add_u32 v{vBA[3]}, 51200, v{vBA[1]}
v_mul_u32_u24 v{vAS}, 144, v{vT[1]}
v_lshl_add_u32 v{vAS}, v{vT[0]}, 2, v{vAS}
v_lshl_add_u32 v{vAS}, v{vQ}, 3, v{vAS}
s_lshl_b32 s{sT[0]}, s{sW}, 5
s_add_u32 s{sT[0]}, s{sT[0]}, {L_AS}
v_add_u32 v{vAS}, s{sT[0]}, v{vAS}""")
    A(f'''v_lshrrev_b32 v{vT[0]}, 2, v{vI}
v_mul_u32_u24 v{vT[0]}, 5120, v{vT[0]}
v_and_b32 v{vT[1]}, 3, v{vI}
v_lshl_add_u32 v{vT[0]}, v{vT[1]}, 4, v{vT[0]}
v_lshl_add_u32 v{vUA}, v{vQ}, 6, v{vT[0]}''')
    A(f"""s_lshl_b32 s{sT[0]}, s{sR128}, 2
s_add_u32 s{sT[0]}, s{sT[0]}, s{sW}
s_mul_i32 s{sT[0]}, s{sT[0]}, 81920
s_mul_i32 s{sT[1]}, s{sMem}, 5""")
    for j in range(5):
        A(f"""s_add_u32 s{sT[2]}, s{sT[1]}, {j}
s_lshr_b32 s{sT[3]}, s{sT[2]}, 2
s_lshl_b32 s{sT[3]}, s{sT[3]}, 11
s_and_b32 s{sT[2]}, s{sT[2]}, 3
s_lshl_b32 s{sT[2]}, s{sT[2]}, 8
s_add_u32 s{sT[2]}, s{sT[2]}, s{sT[3]}
s_add_u32 s{sH[j]}, s{sT[2]}, s{sT[0]}""")
    A(f's_lshl_b32 s{sT[0]}, s{sR64}, 5\ns_lshl_b32 s{sT[1]}, s{sS8}, 2\ns_add_u32 s{sT[0]}, s{sT[0]}, s{sT[1]}\n'
      f's_add_u32 s{sEpW}, s{sT[0]}, s{sW}')
    A(f'''v_lshrrev_b32 v{vT[0]}, 3, v{vL}
v_and_b32 v{vT[1]}, 6, v{vT[0]}
v_xor_b32 v{vT[1]}, v{vT[1]}, v{vL}
v_and_b32 v{vT[1]}, 7, v{vT[1]}
v_lshrrev_b32 v{vT[2]}, 2, v{vT[0]}
v_lshl_add_u32 v{vT[0]}, v{vT[2]}, 2, v{vT[0]}
v_mul_u32_u24 v{vT[0]}, 1280, v{vT[0]}
v_lshl_add_u32 v{vXd}, v{vT[1]}, 4, v{vT[0]}
s_mul_i32 s{sL[1]}, s{sW}, 14336
s_add_u32 s{sL[1]}, s{sL[1]}, {L_AR}
v_and_b32 v{vT[0]}, 6, v{vI}
v_xor_b32 v{vT[0]}, v{vT[0]}, v{vQ}
v_lshlrev_b32 v{vT[0]}, 4, v{vT[0]}
v_lshl_add_u32 v{vT[0]}, v{vI}, 7, v{vT[0]}
v_add_u32 v{vAR}, s{sL[1]}, v{vT[0]}
v_xor_b32 v{vAR2}, 64, v{vAR}
s_lshl_b32 s{sL[0]}, s{sR128}, 2
s_add_u32 s{sL[0]}, s{sL[0]}, s{sW}
s_mul_i32 s{sL[0]}, s{sL[0]}, 40960
v_mul_u32_u24 v{vXt}, 160, v{vI}
v_lshl_add_u32 v{vXt}, v{vQ}, 3, v{vXt}
v_add_u32 v{vXt}, s{sL[1]}, v{vXt}''')
    lab_ln, lab_2, lab_j = A.label('ln'), A.label('w2'), A.label('join')
    A.cond[lab_ln] = lambda c: c['w'] < 2
    A.cond[lab_2] = lambda c: c['w'] == 2
    stamp('setup')
    A(f's_cmp_lt_u32 s{sW}, 2\ns_cbranch_scc1 {lab_ln}\ns_cmp_eq_u32 s{sW}, 2\ns_cbranch_scc1 {lab_2}')

    def bdma(k):
        s2i, j = divmod(k >> 1, 5)
        if not k & 1:
            A(f's_add_u32 s{sT[2]}, s{sBs}, {j * 10240 + s2i * 128}')
        A(f's_mov_b32 m0, {k * 1024}')
        A(f'buffer_load_dwordx4 v{vU[3 + (k & 1)]}, {s4(R_BIM if k & 1 else R_BRE)}, s{sT[2]} offen{NTB} lds')
    A(f"""s_lshl_b32 s{sT[0]}, s{sR128}, 4
s_add_u32 s{sT[0]}, s{sT[0]}, s{sMem}
s_mul_i32 s{sT[0]}, s{sT[0]}, 10240
v_lshrrev_b32 v{vT[0]}, 3, v{vL}
v_mul_u32_u24 v{vT[0]}, 1280, v{vT[0]}
v_and_b32 v{vT[1]}, 7, v{vL}
v_lshl_add_u32 v{vT[0]}, v{vT[1]}, 4, v{vT[0]}""")
    for z in range(10):
        A(f'buffer_load_dwordx4 {v4(XP + 4 * z)}, v{vT[0]}, {s4(R_X)}, s{sT[0]} offen offset:{z * 128}{NTX}')
    make_tag()
    A(f's_branch {lab_j}\n{lab_2}:')
    make_tag()
    fx_store(' offset:128 sc1')
    A('s_waitcnt vmcnt(1)')
    consts()
    A(f's_waitcnt lgkmcnt(0)\ns_branch {lab_j}\n{lab_ln}:')
    A(f's_cmp_eq_u32 s{sW}, 0')
    with A.skip_if('s_cbranch_scc1', lambda c: c['w'] == 0):
        for k in range(20):
            bdma(k)
    make_tag()
    fx_store('')
    if OPT['hop'] & 2:
        l1, l2 = A.label('h1'), A.label('h2')
        A.cond[l1] = lambda c: c['w'] != 0
        A(f's_cmp_lg_u32 s{sW}, 0\ns_cbranch_scc1 {l1}')
        hop('c')
        hop('e')
        A(f's_branch {l2}\n{l1}:')
        hop('d')
        hop('f')
        A(f'{l2}:')
    A(f'{lab_j}:')
    A(f'v_mov_b32 v{ZG + 2}, s{sTag}\nv_mov_b32 v{ZG + 3}, s{sTag}')
    stamp('ln1')
    fa, ft = ACC + 32, ACC + 33
    A(f"""v_and_b32 v{fa}, 31, v{vL}
v_lshlrev_b32 v{fa}, 2, v{fa}
s_lshl_b32 s{sX[1]}, s{sG}, 8
s_add_u32 s{sX[1]}, s{sX[1]}, {WS_FX}""")
    conv_setup()
    for k, r in enumerate(vCA + vCB):
        A(f'v_accvgpr_write_b32 a{208 + k}, v{r}')
    conv_epilogue_setup()
    A(f's_cmp_lg_u32 s{sW}, 3')
    with A.skip_if('s_cbranch_scc1', lambda c: c['w'] != 3):
        A('s_waitcnt vmcnt(10)')
    stamp('kv_land')

    def a_init():
        for p in range(5):
            for h in range(2):
                x_dma(p, h, A)
    if OPT['aearly']:
        A(f's_cmp_eq_u32 s{sW}, 3')
        with A.skip_if('s_cbranch_scc1', lambda c: c['w'] == 3):
            if OPT['aearly'] > 1:
                A(f's_sleep {OPT["aearly"]}')
            a_init()
    A('s_barrier')
    if OPT['stamps'] > 2:
        stamp('.bS')
    if not OPT['aearly']:
        a_init()
    with Cap() as c:
        for z in range(3):
            A(f's_add_u32 m0, s{sL[1]}, {10240 + 1024 * z}')
            if z == 2:
                A('s_mov_b32 exec_hi, 0')
            A(f'buffer_load_dwordx4 v{XTA + z}, {s4(R_X)}, 0 offen{NTX} lds')
        A('s_mov_b32 exec_hi, -1')
        A(f'buffer_load_dword v{ft}, v{fa}, {s4(R_WS)}, s{sX[1]} offen sc1')
        A(cl)
    groups, cur = [], []
    for l in c.lines:
        if l.startswith('s_mov_b32 exec_hi, -1'):
            groups[-1].append(l)
            continue
        cur.append(l)
        if l.startswith('buffer') or l.startswith('global'):
            groups.append(cur)
            cur = []
    lab_3, lab_j = A.label('w3'), A.label('join')
    A.cond[lab_3] = lambda c: c['w'] == 3
    chain('b')
    A(f's_cmp_eq_u32 s{sW}, 3\ns_cbranch_scc1 {lab_3}')
    with Cap() as kc:
        kv_compute()
    first = OPT['kv0']
    step = OPT['kvi']
    for i, l in enumerate(kc.lines):
        if OPT['stamps'] > 2 and i in (50, 90, 160, 200):
            stamp(f'.kv{i}')
        A(l)
        if i >= first and (i - first) % step == 0 and groups:
            A('\n'.join(groups.pop(0)))
    assert not groups
    if OPT['stamps'] > 2:
        stamp('.kvdone')
    A(f's_waitcnt vmcnt(2)\ns_branch {lab_j}\n{lab_3}:')
    if OPT['aearly']:
        a_init()
    A('\n'.join(c.lines[:-2]))
    A(f"""v_lshrrev_b32 v{vT[0]}, 3, v{vL}
v_min_u32 v{vT[0]}, 4, v{vT[0]}
s_mul_i32 s{sT[0]}, s{sR128}, 5
v_add_u32 v{vT[0]}, s{sT[0]}, v{vT[0]}
v_and_b32 v{vT[1]}, 1, v{vT[0]}
v_cmp_eq_u32 vcc, 1, v{vT[1]}
v_lshlrev_b32 v{CSA}, 3, v{vT[0]}
v_lshrrev_b32 v{vT[0]}, 1, v{vT[0]}
s_mul_i32 s{sT[0]}, s{sMem}, 40
v_add_u32 v{vT[0]}, s{sT[0]}, v{vT[0]}
v_mul_u32_u24 v{vT[0]}, 1280, v{vT[0]}
v_and_b32 v{vT[1]}, 7, v{vL}
v_lshl_add_u32 v{vT[0]}, v{vT[1]}, 4, v{vT[0]}
v_mov_b32 v{vT[1]}, s{R_BRE}
v_mov_b32 v{vT[2]}, s{R_BRE + 1}
v_mov_b32 v{vT[3]}, s{R_BIM}
v_mov_b32 v{vT[4]}, s{R_BIM + 1}
v_cndmask_b32 v{vT[1]}, v{vT[1]}, v{vT[3]}, vcc
v_cndmask_b32 v{vT[2]}, v{vT[2]}, v{vT[4]}, vcc
v_add_co_u32 v{vT[1]}, vcc, v{vT[1]}, v{vT[0]}
v_addc_co_u32 v{vT[2]}, vcc, 0, v{vT[2]}, vcc""")
    for z in range(10):
        A(f'global_load_dwordx4 {v4(CSR + 4 * z)}, {v2(vT[1])}, off offset:{128 * z}')
    for k in range(20, 40):
        bdma(k)
    A('\n'.join(c.lines[-2:]))
    A('s_waitcnt vmcnt(46)')
    row_stats()
    for k in range(40, 20 * nup):
        bdma(k)
    cs = vT[1]
    A(f's_mul_i32 s{sT[0]}, s{sMem}, 640\ns_add_u32 s{sT[0]}, s{sT[0]}, {WS_CS}\n'
      f's_waitcnt vmcnt({min(63, 23 + 20 * (nup - 2))})')
    for i in range(40):
        A(f'v_dot2_f32_bf16 v{cs}, v{CSR + i}, s{sOnes}, ' + (f'v{cs}' if i else '0'))
    for mod in ('quad_perm:[1,0,3,2]', 'quad_perm:[2,3,0,1]', 'row_half_mirror'):
        A(f'v_add_f32_dpp v{cs}, v{cs}, v{cs} {mod} {DPPM}')
    A(f"""v_mov_b32 v{cs + 1}, s{sTag}
s_mov_b32 exec_lo, 0x01010101
s_mov_b32 exec_hi, 1
buffer_store_dwordx2 {v2(cs)}, v{CSA}, {s4(R_WS)}, s{sT[0]} offen sc1
s_mov_b64 exec, -1""")
    A(f'{lab_j}:')
    stamp('kv')
    for m in range(5):
        A(f'ds_read_b64 a[{A_X + 2 * m}:{A_X + 2 * m + 1}], v{vXt} offset:{10240 + 32 * m}')
    t, x = ft, vT[4]
    lab, done = A.label('again'), A.label('ok')
    A.cond[lab] = lambda c: False
    A(f"""v_xor_b32 v{x}, s{sTag}, v{t}
v_cmp_lt_u32 vcc, 15, v{x}
s_cbranch_vccnz {lab}
{done}:""")
    TAIL.append(f"""{lab}:
s_sub_u32 s{sBud}, s{sBud}, 1
s_cmp_gt_i32 s{sBud}, 0
s_cbranch_scc0 {done}
buffer_load_dword v{t}, v{fa}, {s4(R_WS)}, s{sX[1]} offen sc1
s_waitcnt vmcnt(0)
v_xor_b32 v{x}, s{sTag}, v{t}
v_cmp_lt_u32 vcc, 15, v{x}
s_cbranch_vccz {done}
s_and_b32 s{sT[1]}, s{sBud}, 3
s_cbranch_scc1 {lab}
buffer_load_dword v{t}, v{fa}, {s4(R_WS)}, s{sX[1]} offen offset:128 sc1
s_waitcnt vmcnt(0)
v_xor_b32 v{x}, s{sTag}, v{t}
v_cmp_lt_u32 vcc, 15, v{x}
s_cbranch_vccnz {lab}
s_branch {done}""")
    A(f"""s_or_b32 s{sT[1]}, s{sTag}, s{sXcc}
v_cmp_ne_u32 vcc, s{sT[1]}, v{t}
s_cmp_eq_u64 vcc, 0
s_cselect_b32 s{sMode}, {0 if OPT['force_slow'] else 1}, 0
s_waitcnt lgkmcnt(0)""")
    lines = []
    for pre, text in startup_stores()[:4]:
        lines += ([pre] if pre else []) + [text.replace(' sc1', '')]
    mode_stores(lines)
    stamp('u1_ready')


CG = ACC + 36


def x_dma(p, h, emit):
    s2i, m = p >> 1, p & 1
    A(f's_add_u32 m0, s{sL[1]}, {(p % 7) * 2048 + h * 1024}\n'
      f's_add_u32 s{sT[3]}, s{sL[0]}, {(16 * h + 4 * m) * 1280 + s2i * 128}')
    return emit(f'buffer_load_dwordx4 v{vXd}, {s4(R_X)}, s{sT[3]} offen{NTX} lds')


def startup_stores():
    W = s4(R_WS)
    out = []
    for z in range(4):
        pre = f's_add_u32 s{sDS[0]}, s{sDS[0]}, 4096' if z else None
        out.append((pre, f'buffer_store_dwordx4 {v4(KVO + 4 * z)}, v{vKS}, {W}, s{sDS[0]} offen sc1'))
    out.append((None, f'buffer_store_dwordx4 {a4(A_CR)}, v{vL16}, {W}, s{sDS[2]} offen sc1'))
    out.append((f's_add_u32 s{sDS[2]}, s{sDS[2]}, 5120',
                f'buffer_store_dwordx4 {a4(A_CR + 4)}, v{vL16}, {W}, s{sDS[2]} offen sc1'))
    out.append((None, f'buffer_store_dwordx4 {v4(ZG)}, v{vZA}, {W}, s{sDS[1]} offen sc1'))
    out.append((f's_add_u32 s{sDS[1]}, s{sDS[1]}, {AGG_L}',
                f'buffer_store_dwordx4 {v4(ZG)}, v{vZA}, {W}, s{sDS[1]} offen sc1'))
    return out


def row_stats():
    S, Q, ad, so = 180, 182, 179, sT[0]
    A(f'''s_lshl_b32 s{so}, s{sR128}, 4
s_add_u32 s{so}, s{so}, s{sMem}
s_lshl_b32 s{so}, s{so}, 7
s_add_u32 s{so}, s{so}, {WS_RS}
v_lshlrev_b32 v{ad}, 1, v{vL}''')
    for i in range(40):
        A(f'v_dot2_f32_bf16 v{S}, v{XP + i}, s{sOnes}, ' + (f'v{S}' if i else '0'))
        A(f'v_dot2_f32_bf16 v{Q}, v{XP + i}, v{XP + i}, ' + (f'v{Q}' if i else '0'))
    for mod in ('quad_perm:[1,0,3,2]', 'quad_perm:[2,3,0,1]', 'row_half_mirror'):
        A(f'v_add_f32_dpp v{S}, v{S}, v{S} {mod} {DPPM}')
        A(f'v_add_f32_dpp v{Q}, v{Q}, v{Q} {mod} {DPPM}')
    inv = 0x3acccccd
    A(f'''v_mul_f32 v{S}, {inv:#x}, v{S}
v_mul_f32 v{Q}, {inv:#x}, v{Q}
v_fma_f32 v{Q}, -v{S}, v{S}, v{Q}
v_max_f32 v{Q}, 0, v{Q}''')
    rnd_bf16(S)
    rnd_bf16(Q)
    A(f'v_add_f32 v{Q}, 0x3727c5ac, v{Q}')
    rnd_bf16(Q)
    A(f'v_sqrt_f32 v{Q}, v{Q}')
    rnd_bf16(Q)
    A(f'''v_rcp_f32 v{S + 1}, v{Q}
v_mov_b32 v{Q}, s{sTag}
v_mov_b32 v{Q + 1}, s{sTag}
s_mov_b32 exec_lo, 0x01010101
s_mov_b32 exec_hi, 0x01010101
buffer_store_dwordx4 {v4(S)}, v{ad}, {s4(R_WS)}, s{so} offen sc1
s_mov_b64 exec, -1''')


def consts():
    lre, lim, ldt = vU[0], vU[1], vU[2]
    t = BF
    zr, zi, e, rev, sn, cs = t, t + 1, t + 2, t + 3, t + 4, t + 5
    O = t + 8
    A(f'''v_lshlrev_b32 v{lre}, 16, v{lre}
v_lshlrev_b32 v{lim}, 16, v{lim}
v_lshlrev_b32 v{ldt}, 16, v{ldt}
v_mul_f32 v{ldt}, 0x3fb8aa3b, v{ldt}
v_exp_f32 v{ldt}, v{ldt}''')
    rnd_bf16(ldt)
    A(f'''v_mul_f32 v{zr}, v{ldt}, v{lre}
v_mul_f32 v{zi}, v{ldt}, v{lim}
v_mul_f32 v{zr}, 0x3fb8aa3b, v{zr}
v_mul_f32 v{zi}, 0x3e22f983, v{zi}''')
    for k, dst in ((1, O), (8, mL8), (128, mL128)):
        kf = {1: '1.0', 8: '0x41000000', 128: '0x43000000'}[k]
        A(f'''v_mul_f32 v{e}, {kf}, v{zr}
v_mul_f32 v{rev}, {kf}, v{zi}
v_exp_f32 v{e}, v{e}
v_fract_f32 v{rev}, v{rev}
v_sin_f32 v{sn}, v{rev}
v_cos_f32 v{cs}, v{rev}
v_mul_f32 v{dst + 1}, v{e}, v{sn}
v_mul_f32 v{dst}, v{e}, v{cs}''')
    A(f'''v_mul_f32 v{e}, v{lre}, v{lre}
v_fmac_f32 v{e}, v{lim}, v{lim}
v_rcp_f32 v{e}, v{e}
v_add_f32 v{rev}, -1.0, v{O}
v_add_f32 v{e}, v{e}, v{e}
v_mul_f32 v{sn}, v{rev}, v{lre}
v_fmac_f32 v{sn}, v{O + 1}, v{lim}
v_mul_f32 v{cs}, v{O + 1}, v{lre}
v_fma_f32 v{cs}, -v{rev}, v{lim}, v{cs}
v_mul_f32 v{O + 2}, v{e}, v{sn}
v_mul_f32 v{O + 3}, v{e}, v{cs}
v_min_u32 v{vT[0]}, 39, v{vL}
v_lshlrev_b32 v{vT[0]}, 5, v{vT[0]}
v_add_u32 v{vT[0]}, {L_SC}, v{vT[0]}
ds_write_b128 v{vT[0]}, {v4(O)}
ds_write_b128 v{vT[0]}, {v4(mL8)} offset:16''')


def kv_compute():
    om = sX[3]
    A(f'''v_lshrrev_b32 v{vT[0]}, 3, v{vL}
v_and_b32 v{vT[1]}, 7, v{vL}
v_mul_u32_u24 v{vT[0]}, 1280, v{vT[0]}
v_lshl_add_u32 v{vT[0]}, v{vT[1]}, 3, v{vT[0]}
s_lshl_b32 s{sT[0]}, s{om}, 6
s_add_u32 s{sT[0]}, s{sT[0]}, {L_SK}
v_add_u32 v{vT[0]}, s{sT[0]}, v{vT[0]}
s_lshl_b32 s{sT[0]}, s{om}, 8
s_add_u32 s{sT[0]}, s{sT[0]}, {L_SS}
v_lshl_add_u32 v{vT[1]}, v{vT[1]}, 5, s{sT[0]}
ds_read_b128 {v4(SKW)}, v{vT[1]}
ds_read_b128 {v4(SKW + 4)}, v{vT[1]} offset:16''')
    for r in range(11):
        A(f'ds_read_b64 {v2(KK + 2 * r)}, v{vT[0]} offset:{160 * r}')
    A('s_waitcnt lgkmcnt(11)')
    for r in range(8):
        A(f'ds_read_b64 {v2(VV + 2 * r)}, v{vT[0]} offset:{L_SV - L_SK + 160 * r}')
    OUT = ACC
    if not OPT['mimic_kv']:
        KF, AC, VF = BF - 4, 128, ACC
        for e in range(4):
            for i in range(4):
                src = SKW + 2 * e + (i >> 1)
                A(f'v_and_b32 v{WW + 4 * i + e}, 0xffff0000, v{src}' if i & 1 else
                  f'v_lshlrev_b32 v{WW + 4 * i + e}, 16, v{src}')
        A('s_waitcnt lgkmcnt(8)')
        unpack(KF, KK, 22)
        A('s_waitcnt lgkmcnt(0)')
        unpack(VF, VV, 16)
        for ta in range(8):
            for p in (0, 2):
                A(f'v_pk_mul_f32 {v2(AC + 4 * ta + p)}, {v2(KF + 4 * ta + p)}, {v2(WW + 12 + p)}')
        for stage in (1, 2, 3):
            for ta in range(8):
                for p in (0, 2):
                    A(f'v_pk_fma_f32 {v2(AC + 4 * ta + p)}, {v2(KF + 4 * (ta + stage) + p)}, '
                      f'{v2(WW + 4 * (3 - stage) + p)}, {v2(AC + 4 * ta + p)}')
        for ta in range(8):
            for p in (0, 2):
                A(f'v_pk_mul_f32 {v2(AC + 4 * ta + p)}, {v2(AC + 4 * ta + p)}, {v2(VF + 4 * ta + p)}')
        for e in range(4):
            for d in range(4):
                A(f'v_cvt_pk_bf16_f32 v{OUT + 4 * e + d}, v{AC + 4 * (7 - 2 * d) + e}, v{AC + 4 * (6 - 2 * d) + e}')
    else:
        for e in range(4):
            for i in range(4):
                src = SKW + 2 * e + (i >> 1)
                dst = WW + 4 * e + i
                hi_src, hi_dst = i & 1, e & 1
                if hi_src == hi_dst:
                    A(f'v_and_b32 v{dst}, {"0xffff0000" if hi_src else "0xffff"}, v{src}')
                elif hi_src:
                    A(f'v_lshrrev_b32 v{dst}, 16, v{src}')
                else:
                    A(f'v_lshlrev_b32 v{dst}, 16, v{src}')
        A('s_waitcnt lgkmcnt(0)')
        P = BF
        for e in range(4):
            kd = lambda row: KK + 2 * row + (e >> 1)
            w = lambda i: WW + 4 * e + i
            if OPT['mimic_kv']:
                a, b = P, P + 8
                for ta in range(8):
                    A(f'v_dot2_f32_bf16 v{a + ta}, v{kd(ta)}, v{w(3)}, 0')
                for stage, tap in ((1, 2), (2, 1), (3, 0)):
                    for ta in range(8):
                        A(f'v_dot2_f32_bf16 v{b + ta}, v{kd(ta + stage)}, v{w(tap)}, 0')
                    for ta in range(8):
                        A(f'v_cvt_pk_bf16_f32 v{a + ta}, v{a + ta}, v{b + ta}')
                    for ta in range(8):
                        A(f'v_dot2_f32_bf16 v{a + ta}, v{a + ta}, s{sOnes}, 0')
                for ta in range(8):
                    if e & 1:
                        A(f'v_cvt_pk_bf16_f32 v{a + ta}, 0, v{a + ta}')
                    else:
                        A(f'v_cvt_pk_bf16_f32 v{a + ta}, v{a + ta}, 0')
                for ta in range(8):
                    A(f'v_dot2_f32_bf16 v{a + ta}, v{a + ta}, v{VV + 2 * ta + (e >> 1)}, 0')
            else:
                a, b = P, P + 8
                for ta in range(8):
                    A(f'v_dot2_f32_bf16 v{a + ta}, v{kd(ta)}, v{w(3)}, 0')
                for stage, tap in ((1, 2), (2, 1), (3, 0)):
                    for ta in range(8):
                        A(f'v_dot2_f32_bf16 v{a + ta}, v{kd(ta + stage)}, v{w(tap)}, v{a + ta}')
                for ta in range(8):
                    src = VV + 2 * ta + (e >> 1)
                    if e & 1:
                        A(f'v_and_b32 v{b + ta}, 0xffff0000, v{src}')
                    else:
                        A(f'v_lshlrev_b32 v{b + ta}, 16, v{src}')
                for ta in range(0, 8, 2):
                    A(f'v_pk_mul_f32 {v2(a + ta)}, {v2(a + ta)}, {v2(b + ta)}')
            for d in range(4):
                A(f'v_cvt_pk_bf16_f32 v{OUT + 4 * e + d}, v{a + 7 - 2 * d}, v{a + 6 - 2 * d}')
    A(f'''v_lshrrev_b32 v{vT[0]}, 3, v{vL}
v_and_b32 v{vT[1]}, 7, v{vL}
v_sub_u32 v{vT[2]}, 7, v{vT[0]}
v_lshlrev_b32 v{vT[2]}, 4, v{vT[2]}
v_mul_u32_u24 v{vT[3]}, 144, v{vT[1]}
v_add3_u32 v{vT[2]}, v{vT[2]}, v{vT[3]}, s{sPriv}
v_lshlrev_b32 v{vT[1]}, 4, v{vT[1]}
v_mul_u32_u24 v{vT[3]}, 144, v{vT[0]}
v_add3_u32 v{vT[3]}, v{vT[3]}, v{vT[1]}, s{sPriv}''')
    for e in range(4):
        A(f'ds_write_b128 v{vT[2]}, {v4(OUT + 4 * e)} offset:{e * 1152}')
        A(f'ds_read_b128 {v4(KVO + 4 * e)}, v{vT[3]} offset:{e * 1152}')


def k_loads(zs):
    return [f'buffer_load_dwordx4 {v4(KCZ[z])}, v{vKVo + (z > 0)}, {s4(R_T1)}, 0 offen '
            f'offset:{max(0, z - 1) * 1008}{NT}' for z in zs]


def kcopy(later):
    A(f"""s_min_u32 s{sT[0]}, s{sW}, 2
s_mul_i32 s{sT[0]}, s{sT[0]}, 16640
s_add_u32 s{sT[0]}, s{sT[0]}, {L_K}
v_add_u32 v{vT[0]}, s{sT[0]}, v{vL16}""")
    T0 = 128
    for z in range(5):
        t = T0 + (z & 1) * 16
        W = [KCZ[z] + i for i in range(4)] + [t + 14, t + 15]
        A(f's_waitcnt vmcnt({4 - z + later})')
        for i in range(2):
            A(f'v_mov_b32_dpp v{W[4 + i]}, v{W[i]} wave_shl:1 {DPPM}')
        for i in range(2):
            A(f'v_mov_b32 v{t + 12 + i}, v{W[2 + i]}')
        for i in range(4):
            A(f'v_alignbit_b32 v{t + i}, v{W[i + 1]}, v{W[i]}, 16')
        for i in range(4):
            A(f'v_mov_b32 v{t + 4 + i}, v{W[i + 1]}')
        for i in range(4):
            A(f'v_alignbit_b32 v{t + 8 + i}, v{W[i + 2]}, v{W[i + 1]}, 16')
        A('s_mov_b64 exec, 0xff' if z == 4 else 's_mov_b32 exec_hi, 0x7fffffff')
        for c in range(4):
            A(f'ds_write_b128 v{vT[0]}, {v4(t + 4 * c)} offset:{c * 4160 + z * 1008}')
        A('s_mov_b64 exec, -1')


def async_check(t, ndw, addr_v, soff, masked=False):
    x = vT[4]
    A(f'v_xor_b32 v{x}, s{sTag}, v{t}')
    for i in range(1, ndw):
        A(f'v_xor_b32 v{vT[3]}, s{sTag}, v{t + i}\nv_or_b32 v{x}, v{x}, v{vT[3]}')
    cmp = f'v_cmp_lt_u32 vcc, 15, v{x}' if masked else f'v_cmp_ne_u32 vcc, 0, v{x}'
    A(cmp)
    lab, done = A.label('again'), A.label('ok')
    A.cond[lab] = lambda c: False
    A(f's_cbranch_vccnz {lab}\n{done}:')
    op = {1: 'dword', 2: 'dwordx2', 4: 'dwordx4'}[ndw]
    dst = f'v{t}' if ndw == 1 else f'v[{t}:{t + ndw - 1}]'
    body = [f'{lab}:', f's_sub_u32 s{sBud}, s{sBud}, 1', f's_cmp_gt_i32 s{sBud}, 0', f's_cbranch_scc0 {done}',
            f'buffer_load_{op} {dst}, v{addr_v}, {s4(R_WS)}, {soff} offen sc1', 's_waitcnt vmcnt(0)',
            f'v_xor_b32 v{x}, s{sTag}, v{t}']
    for i in range(1, ndw):
        body += [f'v_xor_b32 v{vT[3]}, s{sTag}, v{t + i}', f'v_or_b32 v{x}, v{x}, v{vT[3]}']
    body += [cmp, f's_cbranch_vccnz {lab}', f's_branch {done}']
    TAIL.append('\n'.join(body))


def g1_base(layer):
    ub = WS_U2
    A(f"""s_lshl_b32 s{sL[0]}, s{sR128}, 2
s_add_u32 s{sL[0]}, s{sL[0]}, s{sW}
s_mul_i32 s{sL[0]}, s{sL[0]}, 40960
s_add_u32 s{sL[0]}, s{sL[0]}, {ub}
s_add_u32 s{sL[1]}, s{sL[0]}, 20480""")


def gemm1(layer):
    vm, lg = VM(), LG()
    tok = {}
    side = Side()

    order = list(range(20)) if layer == 0 else list(range(6, 20)) + list(range(6))

    def ld(f):
        s, m = divmod(f, 2)
        s = order[s]
        if s == 16:
            A(f's_add_u32 s{sL[m]}, s{sL[m]}, 4096')
        if s == 0 and layer:
            A(f's_sub_u32 s{sL[m]}, s{sL[m]}, 4096')
        tok[f] = vm(f'buffer_load_dwordx4 {v4(RING + 4 * (f % NR))}, v{vUA}, {s4(R_WS)}, s{sL[m]} offen '
                    f'offset:{(s % 16) * 256} sc1')

    btok = {}

    def rd(s, j):
        k = order[s]
        idx = (k >> 1) * 5 + j
        a, off = (vBA[k & 1], idx * 2048) if idx < 25 else (vBA[2 + (k & 1)], (idx - 25) * 2048)
        btok[s, j] = lg(f'ds_read_b128 {v4(BF + 20 * (s & 1) + 4 * j)}, v{a} offset:{off}')

    atok = {}

    def rda(s, m):
        atok[s, m] = lg(f'ds_read_b128 {v4(AF + 8 * (s & 1) + 4 * m)}, v{vAR2 if s & 1 else vAR} '
                        f'offset:{((2 * (s >> 1) + m) % 7) * 2048}')

    n0 = OPT['n0']
    gtok, mark = {}, {}
    if layer == 0:
        if OPT['exp'] & 16:
            A('s_waitcnt vmcnt(0)')
        A('s_barrier')
        rda(0, 0)
        rda(0, 1)
        for p in range(5, 20):
            for h in range(2):
                side.add(max(0, p - 6), lambda p=p, h=h: tok.update({p: x_dma(p, h, vm)}))
    else:
        for f in range(n0):
            ld(f)
        for f in range(n0, 40):
            side.add((f - n0) // 2, lambda f=f: ld(f))
    for j in range(5):
        rd(0, j)
    if layer == 0:
        for g in range(OPT['nup'], 5):
            def dma(g, j):
                A(f's_add_u32 m0, s{sBm2}, {g * 20480 + j * 2048}\ns_add_u32 s{sT[2]}, s{sBs2}, {g * 256 + j * 10240}')
                if OPT['exp'] & 2:
                    gtok[g] = vm(f'buffer_load_dword v244, v{vL16}, {s4(R_T0)}, 0 offen')
                    return
                gtok[g] = vm(f'buffer_load_dwordx4 v{vBd}, {s4(R_T0)}, s{sT[2]} offen{NTB} lds')
            for j in range(5):
                side.add(max(0, 4 * (g - 2)) + j // 3, lambda g=g, j=j, dma=dma: dma(g, j))

        def st(text, pre=None):
            if pre:
                A(pre)
            mark['st'] = vm(text)
        W = s4(R_WS)
        mark['kv'] = 0
        for pre, text in startup_stores()[4:]:
            if OPT['exp'] & 8:
                text = text.replace(' sc1', '')
            side.add(OPT['cfk'], lambda pre=pre, text=text: st(text, pre))
        G = 144
        ctok = {}
        side.add(0, f'''v_lshrrev_b32 v{vT[0]}, 1, v{vI}
v_lshlrev_b32 v{vT[0]}, 5, v{vT[0]}
v_min_u32 v{vT[1]}, 39, v{vL}
v_lshlrev_b32 v{vT[1]}, 5, v{vT[1]}
v_add_u32 v{vT[0]}, {L_SC}, v{vT[0]}
v_add_u32 v{vT[1]}, {L_SC}, v{vT[1]}''')
        for j in range(5):
            side.add(1, lambda j=j: lg(f'ds_read_b128 {v4(G + 4 * j)}, v{vT[0]} offset:{j * 256}'))
        side.add(1, lambda: lg(f'ds_read_b64 {v2(mC)}, v{vT[1]} offset:8'))
        side.add(1, lambda: ctok.update(t=lg(f'ds_read_b128 {v4(mL8)}, v{vT[1]} offset:16')))
        fix = [lambda: lg.wait(ctok['t']), f'v_and_b32 v{vT[2]}, 1, v{vI}', f'v_lshlrev_b32 v{vT[2]}, 31, v{vT[2]}']
        for j in range(5):
            fix += [f'v_mov_b32 v{LR + j}, v{G + 4 * j}', f'v_xor_b32 v{LS + j}, v{vT[2]}, v{G + 4 * j + 1}',
                    f'v_xor_b32 v{CA + j}, v{vT[2]}, v{G + 4 * j + 2}',
                    f'v_xor_b32 v{CB + j}, 0x80000000, v{G + 4 * j + 3}']
        side.spread(3, 6, fix)
        rsl = [f'buffer_load_dwordx3 {v3(RSL)}, v{vXt}, {W}, s{sX[1]} offen sc1',
               f'buffer_load_dwordx2 {v2(RSL + 4)}, v{CSA}, {W}, s{sX[3]} offen sc1',
               f'buffer_load_dwordx2 {v2(RSL + 6)}, v{CSA + 3}, {W}, s{sX[3]} offen offset:512 sc1']
        side.spread(OPT['rsp'] - 2, 7, [f'''s_lshl_b32 s{sX[1]}, s{sR128}, 11
s_lshl_b32 s{sT[0]}, s{sW}, 9
s_add_u32 s{sX[1]}, s{sX[1]}, s{sT[0]}
s_add_u32 s{sX[1]}, s{sX[1]}, {WS_RS}
v_and_b32 v{vXt}, 7, v{vI}
v_lshlrev_b32 v{vXt}, 4, v{vXt}
v_lshl_add_u32 v{vXt}, v{vQ}, 7, v{vXt}
s_mul_i32 s{sX[3]}, s{sMem}, 640
s_add_u32 s{sX[3]}, s{sX[3]}, {WS_CS}
v_lshlrev_b32 v{CSA}, 3, v{vL}
v_lshlrev_b32 v{CSA + 3}, 3, v{vI}'''])
        for t in rsl:
            side.add(OPT['rsp'], lambda t=t: mark.update(rs=vm(t)))

        def rscheck():
            lo, hi = vT[2], vT[3]
            chk = [f'v_min3_u32 v{lo}, v{RSL + 2}, v{RSL + 5}, v{RSL + 7}', f'v_max3_u32 v{hi}, v{RSL + 2}, v{RSL + 5}, v{RSL + 7}',
                   f'v_xor_b32 v{lo}, s{sTag}, v{lo}', f'v_xor_b32 v{hi}, s{sTag}, v{hi}', f'v_or_b32 v{lo}, v{lo}, v{hi}',
                   f'v_cmp_ne_u32 vcc, 0, v{lo}']
            lab, done = A.label('again'), A.label('ok')
            A.cond[lab] = lambda c: False
            vm.wait(mark['rs'])
            A('\n'.join(chk) + f'\ns_cbranch_vccnz {lab}\n{done}:')
            TAIL.append('\n'.join(
                [f'{lab}:', f's_sub_u32 s{sBud}, s{sBud}, 1', f's_cmp_gt_i32 s{sBud}, 0', f's_cbranch_scc0 {done}']
                + rsl + ['s_waitcnt vmcnt(0)'] + chk + [f's_cbranch_vccnz {lab}', f's_branch {done}']))
        side.add(OPT['rsc'], rscheck)
        spread = [f'v_mov_b32_dpp v{MM + t}, v{RSL} row_newbcast:{t} {DPPM}\n'
                  f'v_mov_b32_dpp v{RR + t}, v{RSL + 1} row_newbcast:{t} {DPPM}' for t in range(8)]
        c = lambda j: CSL + 2 * j
        spread.append(f'''v_mov_b32 v{c(0)}, v{RSL + 4}
v_mov_b32 v{c(1)}, v{RSL + 4}
v_mov_b32 v{c(4)}, v{RSL + 6}
v_permlane16_swap_b32 v{c(0)}, v{c(1)}
v_mov_b32 v{c(2)}, v{c(0)}
v_mov_b32 v{c(3)}, v{c(1)}
v_permlane32_swap_b32 v{c(0)}, v{c(2)}
v_permlane32_swap_b32 v{c(1)}, v{c(3)}''')
        side.spread(OPT['rsc'] + 1, 8, spread)

        def fpoll():
            A(f's_and_b32 s{sT[1]}, s{sFK}, 0xe00\ns_add_u32 s{sT[1]}, s{sT[1]}, {WS_FK}')
            mark['fp'] = vm(f'buffer_load_dwordx4 {v4(vFP)}, v{vFA}, {W}, s{sT[1]} offen sc1')
        side.add(OPT['fsp'], fpoll)

        def fcheck():
            vm.wait(mark['fp'])
            async_check(vFP, 4, vFA, f's{sT[1]}')
        side.add(OPT['fsc'], fcheck)
        for z in range(6):
            def kd(z):
                A(f's_mul_i32 s{sT[2]}, s{sW}, 6144\ns_add_u32 m0, s{sT[2]}, {L_KV + z * 1024}')
                vm(f'buffer_load_dwordx4 v{vKVo + z}, {W}, s{sKV[z]} offen sc1 lds')
            side.add(OPT['fsc'] + 1 + z // 2, lambda z=z, kd=kd: kd(z))
        side.add(16, f'v_subrev_u32 v{vKVo}, 64, v{vL16}\nv_add_u32 v{vKVo + 1}, 944, v{vL16}')
        for i, t in enumerate(k_loads(range(5))):
            if i == OPT['fsk']:
                side.add(16 + i * 2 // 5, f's_and_b32 s{sX[1]}, s{sFC}, 0xe00\ns_add_u32 s{sX[1]}, s{sX[1]}, {WS_FS}',
                         f'v_mov_b32 v246, v{vFA}',
                         lambda: vm(f'buffer_load_dwordx4 {v4(204)}, v246, {W}, s{sX[1]} offen sc1'))
            side.add(16 + i * 2 // 5, lambda t=t: vm(t))
    if layer == 1 and OPT['wb'] & 1:
        side.add(OPT['wbk'], wbl2)
    if OPT['prefetch'] & (2 if layer == 0 else 16):
        ct = code_touch()
        side.add(13 if layer == 0 else 16, lambda: (A('\n'.join(ct[:-2])), vm(ct[-2]), A(ct[-1])))
    flagged = False
    for s in range(20):
        if OPT['stamps'] > 1 and s in (0, 4, 8, 12, 16, 17, 18) and layer == 0:
            stamp(f'.s{s}')
        need_tok = tok[2 * s + 1] if layer else tok.get(s + 2, 0) if s & 1 else 0
        g = (s + 1) // 4
        if layer == 0 and (s + 1) % 4 == 0 and g < 5:
            need_tok = max(need_tok, gtok.get(g, 1))
            vm.wait(need_tok)
            A('s_barrier')
        elif layer == 1 and s == 13:
            vm.wait(need_tok)
            A('s_barrier')
        elif need_tok:
            vm.wait(need_tok)
        if layer == 0 and 'kv' in mark and need_tok > mark['kv']:
            del mark['kv']
            A(f's_add_u32 s{sT[0]}, s{sFK}, {WS_FK}')
            flag_store(f's{sT[0]}', True)
            vm.n += 1
        if layer == 0 and not flagged and 'st' in mark and need_tok > mark['st']:
            flagged = True
            A(f's_add_u32 s{sT[0]}, s{sFC}, {WS_FS}')
            flag_store(f's{sT[0]}', False)
            vm.n += 1
        for j in range(5):
            if not OPT['gw'] or s == 0:
                lg.wait(btok[s, j])
            elif j in (0, 3):
                lg.wait(btok[s, 2 if j == 0 else 4])
            for m in range(2):
                d = ACC + 8 * j + 4 * m
                c = '0' if s == 0 else v4(d)
                a = RING + 4 * ((2 * s + m) % NR) if layer else AF + 8 * (s & 1) + 4 * m
                A(f'v_mfma_f32_16x16x32_bf16 {v4(d)}, {v4(a)}, {v4(BF + 20 * (s & 1) + 4 * j)}, {c}')
                if OPT['gw']:
                    n = 2 * j + m
                    plan = ['a0', 'a1', 0, 1, 2, 3, 4] if layer == 0 else [0, 1, 2, 3, 4]
                    if s < 19 and n < len(plan):
                        rda(s + 1, int(plan[n][1])) if isinstance(plan[n], str) else rd(s + 1, plan[n])
                    if layer == 0 and m == 1:
                        side.run(s, 5 - j)
                    if layer == 1 and n >= 5:
                        side.run(s, 10 - n)
                    continue
                if m == 0 and s < 19:
                    if j == 0 and layer == 0:
                        rda(s + 1, 0)
                        rda(s + 1, 1)
                    rd(s + 1, j)
                if m == 1:
                    side.run(s, 5 - j)
    if layer == 0:
        for j in range(5):
            for p in range(4):
                d = ACC + 8 * j + 2 * p
                A(f'v_pk_fma_f32 {v2(d)}, {v2(MM + 2 * p)}, {v2(CSL + 2 * j)}, {v2(d)} op_sel_hi:[1,0,1] '
                  f'neg_lo:[1,0,0] neg_hi:[1,0,0]')
        for j in range(5):
            for p in range(4):
                d = ACC + 8 * j + 2 * p
                A(f'v_pk_mul_f32 {v2(d)}, {v2(d)}, {v2(RR + 2 * p)}')
    assert side.empty() and (flagged or layer)
    stamp(f'g1_{layer}')


MAS = 208
MAG = [128 + 4 * i for i in range(12)] + [240, 244, 248]


def cmul_step(dst, g, lam, add, conj):
    neg = 'neg_hi:[0,1,0]' if conj else 'neg_lo:[0,1,0]'
    A(f'v_pk_fma_f32 {v2(dst)}, {v2(g)}, {v2(lam)}, {v2(add)} op_sel:[1,1,0] op_sel_hi:[0,1,1] {neg}')
    A(f'v_pk_fma_f32 {v2(dst)}, {v2(g)}, {v2(lam)}, {v2(dst)} op_sel:[0,0,0] op_sel_hi:[1,0,1]')


def scan_a(layer):
    b = lambda j, ta: ACC + 8 * j + ta
    pa, pb = 176, 182
    cur = [b(j, 0) for j in range(5)]
    for ta in range(1, 8):
        nx = pa if ta & 1 else pb
        for j in range(5):
            A(f'v_fma_f32 v{nx + j}, v{LR + j}, v{cur[j]}, v{b(j, ta)}')
        for j in range(5):
            A(f'v_fmac_f32_dpp v{nx + j}, -v{cur[j]}, v{LS + j} {SWP}')
        cur = [nx + j for j in range(5)]
    for j in range(5):
        A(f'ds_write_b32 v{vAS}, v{cur[j]} offset:{j * 1152}')
    A(f'''v_min_u32 v{vT[0]}, 39, v{vL}
v_mul_u32_u24 v{vT[1]}, 144, v{vT[0]}
v_add_u32 v{vT[1]}, {L_AS}, v{vT[1]}
s_cmp_lg_u32 s{sW}, 2
s_waitcnt lgkmcnt(0)
s_barrier''')
    with A.skip_if('s_cbranch_scc1', lambda c: c['w'] != 2):
        lg = LG()
        tk = [lg(f'ds_read_b128 {v4(MAS + 4 * i)}, v{vT[1]} offset:{16 * i}') for i in range(8)]
        A(f'''v_lshlrev_b32 v{vT[0]}, 4, v{vT[0]}
s_add_u32 s{sT[0]}, s{sX[0]}, {layer * AGG_L + 15 * 768}
v_mov_b32 v{vU[2]}, s{sTag}
v_mov_b32 v{vU[3]}, s{sTag}''')
        g = MAS
        tmp = [vU[0], vU[4]]
        for s in range(1, 16):
            if s == 1 or s % 2 == 0:
                lg.wait(tk[s // 2])
            d = tmp[0] if (15 - s) % 2 == 0 else tmp[1]
            cmul_step(d, g, mL8, MAS + 2 * s, False)
            g = d
        A(f'buffer_store_dwordx4 {v4(vU[0])}, v{vT[0]}, {s4(R_WS)}, s{sT[0]} offen sc1')
        stamp(f'agg_pub_{layer}')
        for s in range(16):
            r = MAS + 2 * s
            t = vU[4]
            A(f'v_pk_mul_f32 {v2(t)}, {v2(r)}, {v2(mC)} op_sel:[1,1] op_sel_hi:[0,1] neg_lo:[0,1] neg_hi:[0,1]')
            A(f'v_pk_fma_f32 {v2(r)}, {v2(r)}, {v2(mC)}, {v2(t)} op_sel:[0,0,0] op_sel_hi:[1,0,1] neg_hi:[0,1,0]')
        for z in range(3):
            A(f's_add_u32 s{sAg[z]}, s{sX[0]}, {layer * AGG_L + z * 3840}')


def scale_b():
    for j in range(5):
        for ta in range(8):
            A(f'v_mul_f32 v{BF + 8 * j + ta}, v{CA + j}, v{ACC + 8 * j + ta}')
        for ta in range(8):
            A(f'v_fmac_f32_dpp v{BF + 8 * j + ta}, v{ACC + 8 * j + ta}, v{CB + j} {SWP}')


vMA, vMH = 251, 247


MAG2 = [176 + 4 * i for i in range(8)] + [48 + 4 * i for i in range(7)]


TAIL_SKIP = []


def agg_loads(regs=MAG):
    if TAIL_SKIP:
        return
    for z in range(15):
        A(f'buffer_load_dwordx3 {v3(regs[z])}, v{vMA}, {s4(R_WS)}, s{sAg[z // 5]} offen offset:{(z % 5) * 768} sc1')


def agg_addr():
    A(f'''v_min_u32 v{vMA}, 39, v{vL}
v_mul_u32_u24 v{vMH}, 144, v{vMA}
v_add_u32 v{vMH}, {L_AS}, v{vMH}
v_lshlrev_b32 v{vMA}, 4, v{vMA}''')


def agg_check(R):
    lo, hi = vT[2], vT[3]
    A(f'v_min3_u32 v{lo}, v{R[0] + 2}, v{R[1] + 2}, v{R[2] + 2}')
    A(f'v_max3_u32 v{hi}, v{R[0] + 2}, v{R[1] + 2}, v{R[2] + 2}')
    for z in range(3, 15, 2):
        A(f'v_min3_u32 v{lo}, v{lo}, v{R[z] + 2}, v{R[z + 1] + 2}')
        A(f'v_max3_u32 v{hi}, v{hi}, v{R[z] + 2}, v{R[z + 1] + 2}')
    A(f'''v_xor_b32 v{lo}, s{sTag}, v{lo}
v_xor_b32 v{hi}, s{sTag}, v{hi}
v_or_b32 v{lo}, v{lo}, v{hi}
v_cmp_ne_u32 vcc, 0, v{lo}''')


def agg_fold(R):
    g = R[0]
    for z in range(1, 15):
        d = vU[0] if z & 1 else vU[2]
        cmul_step(d, g, mL128, R[z], False)
        g = d
    return g


def scan_master(layer, issued):
    if True:
        back, again = A.label('aggpoll'), A.label('aggagain')
        if issued:
            with Cap() as c:
                agg_loads()
            TAIL.append(f'{again}:\n' + '\n'.join(c.lines) + f'\ns_waitcnt vmcnt(0)\ns_branch {back}')
            A(f'{back}:\ns_waitcnt vmcnt(3)')
            agg_check(MAG)
            retry(again)
            stamp(f'agg_in_{layer}')
            g = agg_fold(MAG)
        else:
            agg_addr()
            A(f'{back}:')
            agg_loads()
            A('s_waitcnt vmcnt(0)')
            agg_check(MAG)
            if not OPT['exp'] & 128:
                retry(back)
            stamp(f'agg_in_{layer}')
            g = agg_fold(MAG)
        Hh = 128
        t = vU[4]
        A(f'v_pk_mul_f32 {v2(t)}, {v2(g)}, {v2(mC)} op_sel:[1,1] op_sel_hi:[0,1] neg_lo:[0,1] neg_hi:[0,1]')
        A(f'v_pk_fma_f32 {v2(Hh)}, {v2(g)}, {v2(mC)}, {v2(t)} op_sel:[0,0,0] op_sel_hi:[1,0,1] neg_hi:[0,1,0]')
        A('s_mov_b32 exec_hi, 0xff')
        for s in range(15):
            cmul_step(Hh + 2 * (s + 1), Hh + 2 * s, mL8, MAS + 2 * s, True)
            if s % 2 == 0:
                A(f'ds_write_b128 v{vMH}, {v4(Hh + 2 * s)} offset:{8 * s}')
        A('s_mov_b32 exec_hi, -1')


vTW, vTR, vTS = 252, 253, 254


def tr_addr():
    A(f'''s_mul_i32 s{sT[0]}, s{sW}, 1280
s_add_u32 s{sT[0]}, s{sT[0]}, {L_TR}
v_mul_u32_u24 v{vT[0]}, 80, v{vI}
v_lshl_add_u32 v{vT[0]}, v{vQ}, 4, v{vT[0]}
v_add_u32 v{vTW}, s{sT[0]}, v{vT[0]}
v_bfe_u32 v{vT[1]}, v{vL}, 2, 2
v_mul_u32_u24 v{vT[1]}, 160, v{vT[1]}
v_and_b32 v{vT[2]}, 3, v{vL}
v_lshl_add_u32 v{vT[1]}, v{vT[2]}, 4, v{vT[1]}
v_lshrrev_b32 v{vT[2]}, 1, v{vQ}
v_mul_u32_u24 v{vT[3]}, 80, v{vT[2]}
v_lshlrev_b32 v{vT[2]}, 10, v{vT[2]}
v_add3_u32 v{vT[1]}, v{vT[1]}, v{vT[3]}, s{sT[0]}
v_and_b32 v{vT[3]}, 1, v{vQ}
v_lshl_add_u32 v{vTR}, v{vT[3]}, 3, v{vT[1]}
v_mul_u32_u24 v{vT[3]}, 40960, v{vT[3]}
v_lshl_add_u32 v{vT[2]}, v{vI}, 4, v{vT[2]}
v_add_u32 v{vTS}, v{vT[2]}, v{vT[3]}''')


def scan_b(layer):
    A('s_waitcnt lgkmcnt(0)\ns_barrier')
    Hs = ACC
    lg = LG()
    tk = [lg(f'ds_read_b32 v{Hs + j}, v{vAS} offset:{j * 1152}') for j in range(5)]
    lg.wait(tk[4])
    hb = WS_H if layer == 0 else WS_H2
    PK, TRD = ACC + 8, ACC + 20
    lg = LG()
    tk = {}

    def steps(js):
        out, prev = [], {j: Hs + j for j in js}
        for ta in range(8):
            out += [f'v_fmac_f32 v{BF + 8 * j + ta}, v{LR + j}, v{prev[j]}' for j in js]
            out += [f'v_fmac_f32_dpp v{BF + 8 * j + ta}, v{prev[j]}, v{LS + j} {SWP}' for j in js]
            prev = {j: BF + 8 * j + ta for j in js}
        return out

    def trans(j):
        p = PK + 4 * (j % 3)
        for d in range(4):
            A(f'v_cvt_pk_bf16_f32 v{p + d}, v{BF + 8 * j + 2 * d}, v{BF + 8 * j + 2 * d + 1}')
        lg(f'ds_write_b128 v{vTW}, {v4(p)}')
        lg(f'ds_read_b64_tr_b16 {v2(TRD + 4 * j)}, v{vTR}')
        tk[j] = lg(f'ds_read_b64_tr_b16 {v2(TRD + 4 * j + 2)}, v{vTR} offset:640')

    def store(js):
        lines = []
        for j in js:
            lines.append(f's_add_u32 s{sT[1]}, s{sH[j]}, {hb}')
            lines.append(f's_waitcnt lgkmcnt({lg.n - tk[j]})')
            lines.append(f'buffer_store_dwordx4 {v4(TRD + 4 * j)}, v{vTS}, {s4(R_WS)}, s{sT[1]} offen')
        mode_stores(lines)
    A('\n'.join(steps((0, 1, 2))))
    with Cap() as c:
        for j in (0, 1, 2):
            trans(j)
    fill = c.lines
    for i, l in enumerate(steps((3, 4))):
        A(l)
        if i % 4 == 1:
            k = 3 if i < 20 else 2
            A('\n'.join(fill[:k]))
            fill = fill[k:]
    assert not fill
    store((0, 1, 2))
    for j in (3, 4):
        trans(j)
    store((3, 4))
    A(f's_add_u32 s{sT[0]}, s{sFW}, {WS_FH + layer * 4096}')
    stamp(f'h_st_{layer}')
    A('s_waitcnt vmcnt(0)')
    flag_store(f's{sT[0]}', True)
    if layer == 0:
        A(f's_add_u32 s{sT[0]}, s{sFK}, {WS_FY}')
        flag_store(f's{sT[0]}', False)
    stamp(f'h_flag_{layer}')


CX, CY = 192, 48
CF = 128
vCA = [252, 253]
vCB = [254, 255]


def conv_setup():
    A(f"""v_and_b32 v{vT[0]}, 3, v{vI}
v_mul_u32_u24 v{vT[0]}, 4160, v{vT[0]}
v_lshrrev_b32 v{vT[1]}, 2, v{vI}
v_lshl_add_u32 v{vT[0]}, v{vT[1]}, 3, v{vT[0]}
v_lshlrev_b32 v{vT[1]}, 4, v{vQ}
v_sub_u32 v{vT[1]}, 48, v{vT[1]}
v_add_u32 v{vT[0]}, v{vT[0]}, v{vT[1]}
v_sub_u32 v{vT[2]}, 15, v{vI}
v_mul_u32_u24 v{vT[2]}, 96, v{vT[2]}
v_add_u32 v{vT[2]}, v{vT[2]}, v{vT[1]}
s_lshr_b32 s{sT[0]}, s{sW}, 1
s_mul_i32 s{sT[1]}, s{sT[0]}, 16640
s_and_b32 s{sT[2]}, s{sW}, 1
s_lshl_b32 s{sT[2]}, s{sT[2]}, 5
s_add_u32 s{sT[1]}, s{sT[1]}, s{sT[2]}
s_add_u32 s{sT[1]}, s{sT[1]}, {L_K}
v_add_u32 v{vCA[0]}, s{sT[1]}, v{vT[0]}
s_lshl_b32 s{sT[0]}, s{sT[0]}, 13
v_add_u32 v{vCB[0]}, s{sT[0]}, v{vT[2]}
s_and_b32 s{sT[2]}, s{sJ}, 1
s_lshl_b32 s{sT[2]}, s{sT[2]}, 5
s_lshl_b32 s{sT[1]}, s{sW}, 8
s_add_u32 s{sT[1]}, s{sT[1]}, s{sT[2]}
s_add_u32 s{sT[1]}, s{sT[1]}, {L_K + 2 * 16640}
v_add_u32 v{vCA[1]}, s{sT[1]}, v{vT[0]}
s_mul_i32 s{sT[1]}, s{sW}, 384
s_add_u32 s{sT[1]}, s{sT[1]}, {L_KV + 2 * 8192}
v_add_u32 v{vCB[1]}, s{sT[1]}, v{vT[2]}""")


c_issued = [0]


def c_load(vm):
    i = c_issued[0]
    c_issued[0] += 1
    if i and i % 4 == 0:
        A(f's_add_u32 s{sL[0]}, s{sL[0]}, 4096')
    vm(f'buffer_load_dwordx4 {a4(4 * i)}, v{vL16}, {s4(R_WS)}, s{sL[0]} offen offset:{(i % 4) * 1024} sc1')


def conv_steps(side, vm):
    lg = LG()
    tk = {}
    PAIRS = [(a, j) for a in range(4) for j in range(a, 4)]
    READS = [[('A', 0)], [('B', 0)], [('B', 1)], [('B', 2)], [('B', 3)], [], [('A', 1)], [('A', 2)], [], [('A', 3)]]
    if OPT['cw']:
        READS = [[('A', 0)], [('B', 0), ('B', 1)], [('B', 2), ('B', 3)], [('A', 1)], [('A', 2)], [('A', 3)], [], [], [], []]

    def rd(it, what):
        k, sp = (0, it) if it < 16 else (1, it - 16)
        kind, x = what
        base = CF + 32 * (it & 1)
        if kind == 'A':
            lg(f'ds_read_b64 {v2(base + 4 * x)}, v{vCA[k]} offset:{64 * sp + 1024 * x}')
            tk[it, what] = lg(f'ds_read_b64 {v2(base + 4 * x + 2)}, v{vCA[k]} offset:{64 * sp + 1024 * x + 8}')
        else:
            tk[it, what] = lg(f'ds_read_b128 {v4(base + 16 + 4 * x)}, v{vCB[k]} offset:{96 * (sp + 16 * (3 - x))}')

    left = 50 - c_issued[0]
    for i in range(left):
        side.add(i * OPT['clend'] // left, lambda: c_load(vm))
    tail = conv_tail_side(side)
    for ws in READS:
        for w in ws:
            rd(0, w)
    waited = 0
    for it in range(20):
        base = CF + 32 * (it & 1)
        acc = CX if it < 16 else CY
        for n, (a, j) in enumerate(PAIRS):
            t = max(tk[it, ('A', a)], tk[it, ('B', j - a)])
            if OPT['cw'] and it:
                t = tk[it, ('A', 1)] if n < 7 else tk[it, ('A', 3)]
            if t > waited:
                lg.wait(t)
                waited = t
            c = '0' if (it in (0, 16) and a == 0) else v4(acc + 4 * j)
            A(f'v_mfma_f32_16x16x32_bf16 {v4(acc + 4 * j)}, {v4(base + 4 * a)}, {v4(base + 16 + 4 * (j - a))}, {c}')
            if it < 19:
                for w in READS[n]:
                    rd(it + 1, w)
            elif n < len(tail):
                lg(tail[n])
            slots = (6, 7, 8, 9) if OPT['cw'] else (5, 8)
            if n in slots:
                side.run(it, len(slots) - slots.index(n))
    A('s_waitcnt lgkmcnt(0)')
    assert side.empty()


ZX, ZU, ZD = 208, 218, 228


def y_finish(acc, kv, dlo, dhi, out, tmp):
    sel = [(1, dhi), (1, dlo), (0, dhi), (0, dlo)]
    if OPT['mimic_y']:
        for r in range(4):
            A(f'v_dot2_f32_bf16 v{tmp + r}, v{kv + sel[r][0]}, s{sel[r][1]}, 0')
        for r in range(4):
            A(f'v_cvt_pk_bf16_f32 v{acc + r}, v{acc + r}, v{tmp + r}')
        for r in range(4):
            A(f'v_dot2_f32_bf16 v{acc + r}, v{acc + r}, s{sOnes}, 0')
    else:
        for r in range(4):
            A(f'v_dot2_f32_bf16 v{acc + r}, v{kv + sel[r][0]}, s{sel[r][1]}, v{acc + r}')
    return [f'v_cvt_pk_bf16_f32 v{out}, v{acc}, v{acc + 1}', f'v_cvt_pk_bf16_f32 v{out + 1}, v{acc + 2}, v{acc + 3}']


LP = L_K
LY = L_K + 16384
PARK = dict(kvm=232, kvx=233, yw=234, pw=235, pr=236, yl=237, bw=238, br=239, gx=251, tw=252, tr=253, ts=254)


def park(name, v):
    A(f'v_accvgpr_write_b32 a{PARK[name]}, v{v}')


def unpark(name, v):
    A(f'v_accvgpr_read_b32 v{v}, a{PARK[name]}')


sYO = [92, 93]


def conv_epilogue_setup():
    aK, aY, aP, aL = vT[0], vT[1], vT[2], vT[3]
    A(f"""v_sub_u32 v{aK}, 15, v{vI}
v_mul_u32_u24 v{aK}, 96, v{aK}
v_lshlrev_b32 v{aY}, 3, v{vQ}
v_sub_u32 v{aK}, v{aK}, v{aY}
s_lshr_b32 s{sT[0]}, s{sW}, 1
s_and_b32 s{sT[1]}, s{sW}, 1
s_lshl_b32 s{sT[1]}, s{sT[1]}, 5
s_lshl_b32 s{sT[2]}, s{sT[0]}, 13
s_sub_u32 s{sT[2]}, s{sT[2]}, s{sT[1]}
s_add_u32 s{sT[2]}, s{sT[2]}, {L_KV + 56}
v_add_u32 v{aP}, s{sT[2]}, v{aK}""")
    park('kvm', aP)
    A(f"""s_and_b32 s{sT[2]}, s{sJ}, 1
s_lshl_b32 s{sT[2]}, s{sT[2]}, 5
s_mul_i32 s{sT[3]}, s{sW}, 1536
s_add_u32 s{sT[2]}, s{sT[2]}, s{sT[3]}
s_sub_u32 s{sT[2]}, {L_KV + 2 * 8192 + 56 + 96 * 48}, s{sT[2]}
v_add_u32 v{aP}, s{sT[2]}, v{aK}""")
    park('kvx', aP)
    A(f"""v_mul_u32_u24 v{aK}, 80, v{vI}
v_add_u32 v{aK}, v{aK}, v{aY}
s_mul_i32 s{sT[2]}, s{sT[0]}, 5120
s_add_u32 s{sT[2]}, s{sT[2]}, s{sT[1]}
s_add_u32 s{sT[2]}, s{sT[2]}, {LY}
v_add_u32 v{aY}, s{sT[2]}, v{aK}""")
    park('yw', aY)
    A(f"""s_lshl_b32 s{sT[2]}, s{sW}, 12
s_add_u32 s{sT[2]}, s{sT[2]}, {LP}
v_add_u32 v{aP}, s{sT[2]}, v{vL16}""")
    park('pw', aP)
    A(f"""s_lshl_b32 s{sT[2]}, s{sW}, 10
s_add_u32 s{sT[2]}, s{sT[2]}, {LP}
v_add_u32 v{aP}, s{sT[2]}, v{vL16}""")
    park('pr', aP)
    A(f"""v_lshrrev_b32 v{aL}, 2, v{vL}
v_mul_u32_u24 v{aL}, 80, v{aL}
v_and_b32 v{aY}, 3, v{vL}
v_lshl_add_u32 v{aL}, v{aY}, 4, v{aL}
s_mul_i32 s{sT[2]}, s{sW}, 2560
s_add_u32 s{sT[2]}, s{sT[2]}, {LY}
v_add_u32 v{aL}, s{sT[2]}, v{aL}""")
    park('yl', aL)
    A(f"""s_mul_i32 s{sT[2]}, s{sW}, 1280
s_add_u32 s{sT[2]}, s{sT[2]}, {LY + 10240}
v_add_u32 v{aK}, s{sT[2]}, v{aK}""")
    park('bw', aK)
    A(f"""v_lshrrev_b32 v{aL}, 1, v{vL}
v_and_b32 v{aY}, 1, v{vL}
v_lshlrev_b32 v{aY}, 4, v{aY}
v_lshl_add_u32 v{aP}, v{aL}, 6, v{aY}
v_mul_u32_u24 v{aL}, 80, v{aL}
v_add3_u32 v{aL}, v{aL}, v{aY}, s{sT[2]}""")
    park('gx', aP)
    park('br', aL)
    A(f"""s_lshr_b32 s{sYO[0]}, s{sJ}, 1
s_mul_i32 s{sYO[0]}, s{sYO[0]}, 5
s_mul_i32 s{sYO[1]}, s{sG}, 80
s_add_u32 s{sYO[0]}, s{sYO[0]}, s{sYO[1]}
s_lshl_b32 s{sYO[0]}, s{sYO[0]}, 12
s_add_u32 s{sYO[0]}, s{sYO[0]}, {WS_Y}
s_and_b32 s{sT[2]}, s{sJ}, 1
s_lshl_b32 s{sYO[1]}, s{sT[2]}, 13
s_lshl_b32 s{sT[3]}, s{sW}, 11
s_add_u32 s{sYO[1]}, s{sYO[1]}, s{sT[3]}
s_add_u32 s{sYO[1]}, s{sYO[1]}, s{sYO[0]}
s_lshl_b32 s{sT[2]}, s{sT[2]}, 5
s_lshl_b32 s{sT[3]}, s{sW}, 10
s_add_u32 s{sYO[0]}, s{sYO[0]}, s{sT[2]}
s_add_u32 s{sYO[0]}, s{sYO[0]}, s{sT[3]}
s_add_u32 s{sYO[0]}, s{sYO[0]}, {4 * 4096}""")
    tr_addr()
    park('tw', vTW)
    park('tr', vTR)
    park('ts', vTS)


KVM, PK, KVX, PKX, YX, PT, YL, TMP = 64, 72, 80, 82, 84, 176, 64, 84


def conv_tail_side(side):
    with Cap() as c:
        unpark('kvm', vT[0])
        unpark('kvx', vT[1])
        unpark('pw', vT[2])
        unpark('yw', vT[3])
    side.add(18, *c.lines)
    return [f'ds_read_b64 {v2(KVM + 2 * j)}, v{vT[0]} offset:{96 * 16 * (3 - j)}' for j in range(4)] + \
        [f'ds_read_b64 {v2(KVX)}, v{vT[1]}']


def conv_epilogue():
    aY, aP = vT[3], vT[2]
    A('s_barrier')
    for j in range(4):
        A(f'ds_write_b128 v{aP}, {v4(CY + 4 * j)} offset:{1024 * j}')
    A(f's_cmp_lg_u32 s{sW}, 2')
    with A.skip_if('s_cbranch_scc1', lambda c: c['w'] != 2):
        agg_loads()
    late = []
    for j in range(4):
        cv = y_finish(CX + 4 * j, KVM + 2 * j, sKV[2], sKV[3], PK + 2 * j, TMP)
        A('\n'.join(late))
        late = cv + [f'ds_write_b64 v{aY}, {v2(PK + 2 * j)} offset:{1280 * j}']
    A('\n'.join(late))
    unpark('yl', vT[0])
    unpark('pr', vT[1])
    unpark('bw', vT[2])
    unpark('br', vT[3])
    unpark('gx', vT[4])
    A('s_waitcnt lgkmcnt(0)\ns_barrier')
    lg = LG()
    ty = [lg(f'ds_read_b128 {v4(YL + 4 * i)}, v{vT[0]} offset:{1280 * i}') for i in range(2)]
    tp = [lg(f'ds_read_b128 {v4(PT + 4 * i)}, v{vT[1]} offset:{4096 * i}') for i in range(4)]
    unpark('tw', vTW)
    unpark('tr', vTR)
    unpark('ts', vTS)
    for i in range(2):
        lg.wait(ty[i])
        A(f'buffer_store_dwordx4 {v4(YL + 4 * i)}, v{vL16}, {s4(R_WS)}, s{sYO[1]} offen offset:{1024 * i} sc1')
    lg.wait(tp[3])
    for i in (0, 2):
        A(f'v_pk_add_f32 {v2(PT + i)}, {v2(PT + i)}, {v2(PT + 4 + i)}\nv_pk_add_f32 {v2(PT + 8 + i)}, {v2(PT + 8 + i)}, {v2(PT + 12 + i)}')
    for i in (0, 2):
        A(f'v_pk_add_f32 {v2(PT + i)}, {v2(PT + i)}, {v2(PT + 8 + i)}')
    A('\n'.join(y_finish(PT, KVX, sKV[4], sKV[5], PKX, TMP)))
    A(f"""ds_write_b64 v{vT[2]}, {v2(PKX)}
ds_read_b128 {v4(YX)}, v{vT[3]}
s_mov_b32 exec_hi, 0
s_waitcnt lgkmcnt(0)
buffer_store_dwordx4 {v4(YX)}, v{vT[4]}, {s4(R_WS)}, s{sYO[0]} offen sc1
s_mov_b32 exec_hi, -1""")
    stamp('y_st')
    A(f's_cmp_lg_u32 s{sW}, 2')
    with A.skip_if('s_cbranch_scc1', lambda c: c['w'] != 2):
        scan_master(0, True)


YF, ZR = BF, BF + 20


def frag_addr():
    A(f'''v_lshrrev_b32 v{vT[0]}, 2, v{vI}
v_mul_u32_u24 v{vT[0]}, 5120, v{vT[0]}
v_and_b32 v{vT[1]}, 3, v{vI}
v_lshl_add_u32 v{vT[0]}, v{vT[1]}, 4, v{vT[0]}
v_lshrrev_b32 v{vT[1]}, 1, v{vQ}
v_lshl_add_u32 v{vT[0]}, v{vT[1]}, 6, v{vT[0]}
v_and_b32 v{vT[1]}, 1, v{vQ}
v_lshl_add_u32 v{vU[5]}, v{vT[1]}, 3, v{vT[0]}
s_lshl_b32 s{sX[1]}, s{sR64}, 2
s_add_u32 s{sX[1]}, s{sX[1]}, s{sW}
s_mul_i32 s{sX[1]}, s{sX[1]}, 20480
s_mul_i32 s{sT[2]}, s{sS8}, 640
s_add_u32 s{sX[1]}, s{sX[1]}, s{sT[2]}''')


def z_loads(vm):
    with Cap() as c:
        A(f'''s_mul_i32 s{sT[2]}, s{sS8}, 160
v_lshl_add_u32 v{vT[0]}, v{vQ}, 3, s{sT[2]}
s_lshl_b32 s{sT[0]}, s{sR64}, 10
s_lshr_b32 s{sT[1]}, s{sW}, 1
s_lshl_b32 s{sT[1]}, s{sT[1]}, 9
s_add_u32 s{sT[0]}, s{sT[0]}, s{sT[1]}
s_and_b32 s{sT[1]}, s{sW}, 1
s_lshl_b32 s{sT[1]}, s{sT[1]}, 6
s_add_u32 s{sT[0]}, s{sT[0]}, s{sT[1]}
s_add_u32 s{sT[0]}, s{sT[0]}, {WS_RS}
v_lshrrev_b32 v{vT[1]}, 2, v{vI}
v_lshlrev_b32 v{vT[1]}, 7, v{vT[1]}
v_and_b32 v{vT[2]}, 3, v{vI}
v_lshl_add_u32 v{vT[1]}, v{vT[2]}, 4, v{vT[1]}''')
    items = list(c.lines)
    items.append(lambda: vm(f'buffer_load_dwordx2 a[230:231], v{vT[1]}, {s4(R_WS)}, s{sT[0]} offen sc1'))
    for m in range(5):
        items.append(lambda m=m: vm(f'global_load_dwordx2 a[{A_DSK + 2 * m}:{A_DSK + 2 * m + 1}], v{vT[0]}, '
                                    f'{s2(P_DSK)} offset:{32 * m}'))
    return items


def z_compute():
    with Cap() as c:
        F1, F2 = 192, 196
        A(f'v_accvgpr_read_b32 v{ZU}, a230\nv_accvgpr_read_b32 v{ZU + 1}, a231')
        A(f'v_mul_f32 v{ZU}, v{ZU}, v{ZU + 1}')
        for m in range(5):
            for i in range(2):
                A(f'v_accvgpr_read_b32 v{ZX + i}, a{A_X + 2 * m + i}')
                A(f'v_accvgpr_read_b32 v{ZD + i}, a{A_DSK + 2 * m + i}')
            unpack(F2, ZD, 2)
            unpack(ZR + 4 * m, ZX, 2)
            for i in range(2):
                A(f'v_pk_fma_f32 {v2(F1 + 2 * i)}, {v2(ZR + 4 * m + 2 * i)}, {v2(ZU)}, {v2(ZU)} '
                  f'op_sel:[0,1,0] op_sel_hi:[1,1,0] neg_lo:[0,0,1] neg_hi:[0,0,1]')
            for i in range(2):
                A(f'v_pk_fma_f32 {v2(ZR + 4 * m + 2 * i)}, {v2(F1 + 2 * i)}, {v2(F2 + 2 * i)}, '
                  f'{v2(ZR + 4 * m + 2 * i)}')
    return c.lines


vHP, vHA = 240, 242
vYP, vYA, vYD = 200, 204, 205
YP = 246


def g2_setup(layer):
    hb = WS_H if layer == 0 else WS_H2
    A(f's_mul_i32 s{sT[1]}, s{sR64}, 163840\ns_mul_i32 s{sT[2]}, s{sW}, 10240\n'
      f's_add_u32 s{sT[1]}, s{sT[1]}, s{sT[2]}\ns_add_u32 s{sT[1]}, s{sT[1]}, {hb}')
    for z in range(4):
        A(f's_add_u32 s{sT[2]}, s{sW}, {z + 1}\ns_and_b32 s{sT[2]}, s{sT[2]}, 3\n'
          f's_mul_i32 s{sT[3]}, s{sT[2]}, 40960\ns_add_u32 s{sDS[z]}, s{sT[3]}, s{sT[1]}')
        if z < 3:
            A(f's_mul_i32 s{sT[3]}, s{sT[2]}, 15360\ns_add_u32 s{sT[3]}, s{sT[3]}, {L_RED + z * 5120}\n'
              f'v_add_u32 v{vU[2 + z]}, s{sT[3]}, v{vL16}')
    A(f'''s_lshl_b32 s{sT[3]}, s{sR128}, 8
s_lshl_b32 s{sT[1]}, s{sW}, 6
s_add_u32 s{sT[3]}, s{sT[3]}, s{sT[1]}
s_and_b32 s{sT[1]}, s{sR64}, 1
s_lshl_b32 s{sT[1]}, s{sT[1]}, 3
s_add_u32 s{sT[3]}, s{sT[3]}, s{sT[1]}
s_add_u32 s{sT[3]}, s{sT[3]}, {WS_FH + layer * 4096}
v_and_b32 v{vHA}, 3, v{vL}
v_lshlrev_b32 v{vHA}, 4, v{vHA}''')


class G2:
    def __init__(self, vm=None):
        self.vm = vm or VM()
        self.tok = {}
        self.nxt = 0

    def ld(self):
        f = self.nxt
        self.nxt += 1
        z, k = divmod(f, 10)
        if k and k % 4 == 0:
            A(f's_add_u32 s{sDS[z]}, s{sDS[z]}, 4096')
        self.tok[f] = self.vm(f'buffer_load_dwordx4 {v4(RING + 4 * (f % NR))}, v{vL16}, {s4(R_WS)}, s{sDS[z]} offen '
                              f'offset:{(k % 4) * 1024} sc1')


RED_TAIL = []


def gemm2(layer, g):
    vm = g.vm
    side = Side()
    n0 = g.nxt
    acc_n = OPT['g2a']
    last = 0
    for f in range(n0, 40):
        i = f - n0
        last = max(i - i // (acc_n + 1) if acc_n else i, f - NR + 1)
        side.add(last, g.ld)
    OPT['yc'] = OPT['wbf'] = last + 1
    mark = {}
    if layer == 0:
        W = s4(R_WS)

        def ypoll():
            A(f's_and_b32 s{sT[1]}, s{sFC}, 0xe00\ns_add_u32 s{sT[1]}, s{sT[1]}, {WS_FY}')
            mark['yp'] = vm(f'buffer_load_dwordx4 {v4(vYP)}, v{vYA}, {W}, s{sT[1]} offen sc1')
        if OPT['yp'] >= 0:
            side.add(OPT['yp'], ypoll)
        else:
            mark['yp'] = g.yp

        def ycheck():
            vm.wait(mark['yp'])
            async_check(vYP, 4, vYA, f's{sT[1]}')
        side.add(OPT['yc'], ycheck)

        def ydma(m):
            A(f's_add_u32 m0, s{sKV[5]}, {m * 1024}')
            mark['yd'] = vm(f'buffer_load_dwordx4 v{vYD}, {W}, s{sKV[4]} offen sc1 lds')
            A(f's_add_u32 s{sKV[4]}, s{sKV[4]}, 65536')
        for m in range(5):
            side.add(OPT['yc'] + m // 3, lambda m=m: ydma(m))
        side.add(OPT['yc'] + 2, f'''s_and_b32 s{sT[0]}, s{sW}, 1
s_lshl_b32 s{sT[0]}, s{sT[0]}, 3
s_add_u32 s{sT[0]}, s{sT[0]}, s{sKV[5]}
v_add_u32 v{vYD}, s{sT[0]}, v{vL16}''')
    if layer == 1 and OPT['wb'] & 2:
        side.add(OPT['wbf'], wbl2)
    if layer == 0 and OPT['prefetch'] & 8:
        ct = code_touch()
        side.add(34, lambda: (A('\n'.join(ct[:-2])), vm(ct[-2]), A(ct[-1])))
    P0, P1 = 206, 160
    rb = OPT['rb']
    add = [f'v_pk_add_f32 {v2(P0 + 2 * i)}, {v2(P0 + 2 * i)}, {v2(P1 + 2 * i)}' for i in range(10)]
    rd = lambda p, k: [f'ds_read_b128 {v4(p + 4 * i)}, v{vU[5]} offset:{1024 * (5 * k + i)}' for i in range(5)]
    side.add(30, f's_mul_i32 s{sT[3]}, s{sW}, 15360\ns_add_u32 s{sT[3]}, s{sT[3]}, {L_RED}\n'
                 f'v_add_u32 v{vU[5]}, s{sT[3]}, v{vL16}')
    work = ['s_waitcnt lgkmcnt(0)', 's_barrier'] + rd(P0, 0) + rd(P1, 1) + ['s_waitcnt lgkmcnt(0)'] + add + rd(P1, 2) \
        + ['s_waitcnt lgkmcnt(0)'] + add
    n = max(0, 40 - rb) * OPT['rper']
    side.spread(rb, OPT['rper'], work[:n])
    RED_TAIL[:] = work[n:]
    for z in range(4):
        if OPT['stamps'] > 1 and layer == 0:
            stamp(f'.z{z}')
        acc = ACC + 20 * (z & 1)
        for k in range(10):
            f = 10 * z + k
            vm.wait(g.tok[f])
            for m in range(5):
                d = acc + 4 * m
                c = v4(d) if k else ('0' if z < 3 else v4(ZR + 4 * m))
                A(f'v_mfma_f32_16x16x32_bf16 {v4(d)}, {a4(4 * (5 * k + m))}, {v4(RING + 4 * (f % NR))}, {c}')
                if z > 0 and k == 1:
                    pa = ACC + 20 * ((z - 1) & 1)
                    A(f'ds_write_b128 v{vU[2 + z - 1]}, {v4(pa + 4 * m)} offset:{1024 * m}')
                side.run(f, 5 - m)
    assert side.empty()
    stamp(f'g2_{layer}')


def b_reload_setup():
    b_dma_addr(244, 245)
    A(f's_mul_i32 s{sT[0]}, s{sMem}, 51200\ns_mul_i32 s{sKV[3]}, s{sW}, 6144')
    for e in range(3):
        A(f'''s_mul_i32 s{sT[2]}, s{sW}, 3
s_add_u32 s{sT[2]}, s{sT[2]}, {e}
s_mul_i32 s{sT[3]}, s{sT[2]}, 205
s_lshr_b32 s{sT[3]}, s{sT[3]}, 10
s_mul_i32 s{sT[1]}, s{sT[3]}, 5
s_sub_u32 s{sT[2]}, s{sT[2]}, s{sT[1]}
s_mul_i32 s{sT[2]}, s{sT[2]}, 10240
s_lshl_b32 s{sT[3]}, s{sT[3]}, 7
s_add_u32 s{sT[2]}, s{sT[2]}, s{sT[3]}
s_add_u32 s{sKV[e]}, s{sT[2]}, s{sT[0]}''')


def b_reload():
    for e in range(3):
        A(f'''s_add_u32 m0, s{sKV[3]}, {e * 2048}
buffer_load_dwordx4 v244, {s4(R_BRE)}, s{sKV[e]} offen lds
s_add_u32 m0, s{sKV[3]}, {e * 2048 + 1024}
buffer_load_dwordx4 v245, {s4(R_BIM)}, s{sKV[e]} offen lds''')


def allreduce_q(r, t):
    for op in ('v_permlane32_swap_b32', 'v_permlane16_swap_b32'):
        A(f'''v_mov_b32 v{t}, v{r}
v_mov_b32 v{t + 1}, v{r + 1}
{op} v{r}, v{t}
{op} v{r + 1}, v{t + 1}
v_add_f32 v{r}, v{r}, v{t}
v_add_f32 v{r + 1}, v{r + 1}, v{t + 1}''')


def epilogue(layer):
    a = ACC + 20
    S = 228
    A('\n'.join(RED_TAIL))
    for i in range(10):
        A(f'v_pk_add_f32 {v2(a + 2 * i)}, {v2(a + 2 * i)}, {v2(206 + 2 * i)}')
    A(f'''s_lshl_b32 s{sT[0]}, s{sR64}, 15
s_lshl_b32 s{sT[1]}, s{sW}, 10
s_add_u32 s{sT[0]}, s{sT[0]}, s{sT[1]}
s_add_u32 s{sT[0]}, s{sT[0]}, {WS_ST + layer * 0x100000}
s_lshl_b32 s{sT[1]}, s{sS8}, 12
s_add_u32 s{sT[1]}, s{sT[1]}, s{sT[0]}''')
    G = 216
    inv = 0x3acccccd
    if layer == 0:
        AY = 160
        A(f'v_pk_add_f32 {v2(S)}, {v2(a)}, {v2(a + 2)}\nv_pk_mul_f32 {v2(S + 2)}, {v2(a)}, {v2(a)}')
        for i in range(1, 10):
            if i >= 2:
                A(f'v_pk_add_f32 {v2(S)}, {v2(S)}, {v2(a + 2 * i)}')
            A(f'v_pk_fma_f32 {v2(S + 2)}, {v2(a + 2 * i)}, {v2(a + 2 * i)}, {v2(S + 2)}')
        A('s_waitcnt vmcnt(0)')
        stamp('y_in')
        lg = LG()
        tk = [lg(f'ds_read_b64_tr_b16 {v2(YP + 2 * m)}, v{vYD} offset:{m * 1024}') for m in range(5)]
        with Cap() as rl:
            b_reload()
        for m in range(5):
            lg.wait(tk[m] if m < 1 else tk[4])
            unpack(YF + 4 * m, YP + 2 * m, 2)
            for i in (2 * m, 2 * m + 1):
                if OPT['rlm'] and 2 <= i < 8:
                    A('\n'.join(rl.lines[2 * (i - 2):2 * (i - 1)]))
                x, y, ay = v2(a + 2 * i), v2(YF + 2 * i), v2(AY + 2 * i)
                A(f'v_pk_mul_f32 {ay}, {x}, {y}')
                if i == 0:
                    A(f'v_pk_mul_f32 {v2(S + 14)}, {y}, {y}\nv_pk_mul_f32 {v2(S + 6)}, {ay}, {x}\n'
                      f'v_pk_mul_f32 {v2(S + 8)}, {ay}, {ay}\nv_pk_mul_f32 {v2(S + 10)}, {ay}, {y}')
                else:
                    p2 = v2(AY) if i == 1 else v2(S + 4)
                    p6 = v2(YF) if i == 1 else v2(S + 12)
                    A(f'v_pk_add_f32 {v2(S + 12)}, {p6}, {y}\nv_pk_fma_f32 {v2(S + 14)}, {y}, {y}, {v2(S + 14)}\n'
                      f'v_pk_add_f32 {v2(S + 4)}, {p2}, {ay}\nv_pk_fma_f32 {v2(S + 6)}, {ay}, {x}, {v2(S + 6)}\n'
                      f'v_pk_fma_f32 {v2(S + 8)}, {ay}, {ay}, {v2(S + 8)}\n'
                      f'v_pk_fma_f32 {v2(S + 10)}, {ay}, {y}, {v2(S + 10)}')
        for k in range(8):
            A(f'v_add_f32 v{S + 2 * k}, v{S + 2 * k}, v{S + 2 * k + 1}')
        for k in range(4):
            A(f'v_permlane16_swap_b32 v{S + 2 * k}, v{S + 2 * k + 8}')
        for k in range(4):
            A(f'v_add_f32 v{G + k}, v{S + 2 * k}, v{S + 2 * k + 8}')
        for k in range(4):
            A(f'v_mov_b32 v{S + k}, v{G + k}')
        for k in range(4):
            A(f'v_permlane32_swap_b32 v{G + k}, v{S + k}')
        A(f's_movk_i32 s{sT[2]}, 0xff')
        for k in range(4):
            A(f'v_add_f32 v{G + k}, v{G + k}, v{S + k}')
        for k in range(4):
            A(f's_lshr_b32 s{sT[3]}, s{sTag}, {8 * k}\nv_mov_b32 v{S + k}, s{sT[3]}\n'
              f'v_bfi_b32 v{G + k}, s{sT[2]}, v{S + k}, v{G + k}')
        A('s_mov_b32 exec_hi, 0')
        mode_stores([f'buffer_store_dwordx4 {v4(G)}, v{vL16}, {s4(R_WS)}, s{sT[1]} offen'])
        A('s_mov_b32 exec_hi, -1')
        stamp('st_pub_0')
        for i in range(10):
            A(f'v_accvgpr_write_b32 a{A_Y + i}, v{YP + i}')
        frag_addr()
        DP, DF = 190, 108
        for i in range(10):
            A(f'v_accvgpr_read_b32 v{DP + i}, a{A_DSK + i}')
        unpack(DF, DP, 10)
        A(f'''v_and_b32 v{vT[0]}, 31, v{vL}
v_lshlrev_b32 v{vT[0]}, 4, v{vT[0]}
v_lshrrev_b32 v{vT[1]}, 5, v{vL}
v_lshl_add_u32 v{vT[0]}, v{vT[1]}, 14, v{vT[0]}
s_mov_b32 s{sT[2]}, 0x0c0c0400
s_mov_b32 s{sT[3]}, 0x04000c0c''')
        back = A.label('stpoll')
        A(f'{back}:')
        Q = 128
        for sl in range(4):
            A(f's_add_u32 s{sT[1]}, s{sT[0]}, {sl * 4096}')
            A(f'buffer_load_dwordx4 {v4(Q + 4 * sl)}, v{vT[0]}, {s4(R_WS)}, s{sT[1]} offen sc1')
        A('s_waitcnt vmcnt(0)')
        for sl in range(4):
            q = Q + 4 * sl
            A(f'v_perm_b32 v{S + 2 * sl}, v{q + 1}, v{q}, s{sT[2]}\nv_perm_b32 v{S + 2 * sl + 1}, v{q + 3}, v{q + 2}, s{sT[3]}')
        for sl in range(4):
            A(f'v_or_b32 v{S + 2 * sl}, v{S + 2 * sl}, v{S + 2 * sl + 1}')
        lo, hi = vT[2], vT[3]
        A(f'''v_min3_u32 v{lo}, v{S}, v{S + 2}, s{sTag}
v_max3_u32 v{hi}, v{S}, v{S + 2}, s{sTag}
v_min3_u32 v{lo}, v{lo}, v{S + 4}, v{S + 6}
v_max3_u32 v{hi}, v{hi}, v{S + 4}, v{S + 6}
v_cmp_ne_u32 vcc, v{lo}, v{hi}''')
        retry(back)
        stamp('st_in_0')
        for hf in (0, 2):
            A(f'v_pk_add_f32 {v2(Q + hf)}, {v2(Q + hf)}, {v2(Q + 4 + hf)}\n'
              f'v_pk_add_f32 {v2(Q + 8 + hf)}, {v2(Q + 8 + hf)}, {v2(Q + 12 + hf)}')
        for hf in (0, 2):
            A(f'v_pk_add_f32 {v2(Q + hf)}, {v2(Q + hf)}, {v2(Q + 8 + hf)}')
        s = lambda k: S + k
        for k in range(4):
            A(f'v_mov_b32 v{Q + 4 + k}, v{Q + k}')
        for k in range(4):
            A(f'v_permlane32_swap_b32 v{Q + k}, v{Q + 4 + k}')
        for k in range(4):
            A(f'v_add_f32 v{s(k)}, v{Q + k}, v{Q + 4 + k}')
        for k in range(4):
            A(f'v_mov_b32 v{s(4 + k)}, v{s(k)}')
        for k in range(4):
            A(f'v_permlane16_swap_b32 v{s(k)}, v{s(4 + k)}')
        m1, r1, k1, t0, t1, r2, k2 = 208, 210, 211, 212, 213, 214, 215
        A(f'''v_mul_f32 v{m1}, {inv:#x}, v{s(0)}
v_mul_f32 v{t0}, {inv:#x}, v{s(1)}
v_fma_f32 v{t0}, -v{m1}, v{m1}, v{t0}
v_max_f32 v{t0}, 0, v{t0}
v_add_f32 v{t0}, 0x3727c5ac, v{t0}
v_rsq_f32 v{r1}, v{t0}
v_mul_f32 v{k1}, v{m1}, v{r1}
v_fma_f32 v{t0}, v{r1}, v{s(2)}, v{s(0)}
v_fma_f32 v{t0}, -v{k1}, v{s(6)}, v{t0}
v_mul_f32 v{t1}, v{r1}, v{s(4)}
v_fma_f32 v{t1}, 2.0, v{s(3)}, v{t1}
v_fma_f32 v{t1}, v{r1}, v{t1}, v{s(1)}
v_fma_f32 v{s(2)}, v{r1}, v{s(5)}, v{s(2)}
v_mul_f32 v{s(7)}, v{k1}, v{s(7)}
v_fma_f32 v{s(2)}, -2.0, v{s(2)}, v{s(7)}
v_fma_f32 v{t1}, v{k1}, v{s(2)}, v{t1}
v_mul_f32 v{t0}, {inv:#x}, v{t0}
v_mul_f32 v{t1}, {inv:#x}, v{t1}
v_fma_f32 v{t1}, -v{t0}, v{t0}, v{t1}
v_max_f32 v{t1}, 0, v{t1}
v_add_f32 v{t1}, 0x3727c5ac, v{t1}
v_rsq_f32 v{r2}, v{t1}
v_mul_f32 v{k2}, v{t0}, v{r2}''')
        bc = 'op_sel:[0,0,1] op_sel_hi:[1,0,1] neg_lo:[0,0,1] neg_hi:[0,0,1]'
        U = 160
        for i in range(10):
            A(f'v_pk_fma_f32 {v2(U + 2 * i)}, {v2(a + 2 * i)}, {v2(r1)}, {v2(r1)} {bc}')
        for i in range(10):
            A(f'v_pk_fma_f32 {v2(a + 2 * i)}, {v2(U + 2 * i)}, {v2(YF + 2 * i)}, {v2(a + 2 * i)}')
        for i in range(10):
            A(f'v_pk_fma_f32 {v2(U + 2 * i)}, {v2(a + 2 * i)}, {v2(r2)}, {v2(r2)} {bc}')
        UP = 180
        for i in range(10):
            A(f'v_cvt_pk_bf16_f32 v{UP + i}, v{U + 2 * i}, v{U + 2 * i + 1}')
        A(f's_add_u32 s{sT[0]}, s{sX[1]}, {WS_U2}')
        mode_stores([f'buffer_store_dwordx2 {v2(UP + 2 * m)}, v{vU[5]}, {s4(R_WS)}, s{sT[0]} offen offset:{128 * m}'
                     for m in range(5)])
        stamp('u2_st')
        for i in range(10):
            A(f'v_pk_fma_f32 {v2(a + 2 * i)}, {v2(U + 2 * i)}, {v2(DF + 2 * i)}, {v2(a + 2 * i)}')
        for i in range(20):
            A(f'v_accvgpr_write_b32 a{A_Z + i}, v{a + i}')
        A(f's_add_u32 s{sT[1]}, s{sFW}, {WS_FU + 4096}\ns_waitcnt vmcnt(0)')
        flag_store(f's{sT[1]}', True)
        A(f's_cmp_lg_u32 s{sEpW}, {31 * 32}')
        with A.skip_if('s_cbranch_scc1', lambda c: True):
            flag_store('0', False)
        if not OPT['rlm']:
            b_reload()
        A(f'''s_lshl_b32 s{sT[0]}, s{sR128}, 8
s_lshr_b32 s{sT[1]}, s{sW}, 1
s_lshl_b32 s{sT[1]}, s{sT[1]}, 7
s_add_u32 s{sT[0]}, s{sT[0]}, s{sT[1]}
s_and_b32 s{sT[1]}, s{sW}, 1
s_lshl_b32 s{sT[1]}, s{sT[1]}, 3
s_add_u32 s{sT[0]}, s{sT[0]}, s{sT[1]}
s_add_u32 s{sT[0]}, s{sT[0]}, {WS_FU + 4096}
v_and_b32 v{vT[0]}, 7, v{vL}
v_lshlrev_b32 v{vT[0]}, 4, v{vT[0]}''')
        g1_base(1)
        poll_flags(vT[0], f's{sT[0]}', 2, tmp=vU[0])
        stamp('u2_ready')
    else:
        A(f'v_pk_add_f32 {v2(S)}, {v2(a)}, {v2(a + 2)}\nv_pk_mul_f32 {v2(S + 2)}, {v2(a)}, {v2(a)}')
        for i in range(1, 10):
            if i >= 2:
                A(f'v_pk_add_f32 {v2(S)}, {v2(S)}, {v2(a + 2 * i)}')
            A(f'v_pk_fma_f32 {v2(S + 2)}, {v2(a + 2 * i)}, {v2(a + 2 * i)}, {v2(S + 2)}')
        A(f'v_add_f32 v{G}, v{S}, v{S + 1}\nv_add_f32 v{G + 1}, v{S + 2}, v{S + 3}\nv_mov_b32 v{G + 2}, s{sTag}\n'
          f'v_mov_b32 v{G + 3}, s{sTag}')
        allreduce_q(G, S)
        A('s_mov_b64 exec, 0xffff')
        mode_stores([f'buffer_store_dwordx4 {v4(G)}, v{vL16}, {s4(R_WS)}, s{sT[1]} offen'])
        A('s_mov_b64 exec, -1')
        stamp('st_pub_1')
        A(f'''v_lshlrev_b32 v{vT[0]}, 13, v{vQ}
v_lshl_add_u32 v{vT[0]}, v{vI}, 4, v{vT[0]}
s_add_u32 s{sT[1]}, s{sT[0]}, 4096
s_mul_i32 s{sT[2]}, s{sW}, 15360
s_add_u32 s{sT[2]}, s{sT[2]}, {L_RED}
v_mul_u32_u24 v{vU[2]}, 336, v{vI}
v_lshl_add_u32 v{vU[2]}, v{vQ}, 4, v{vU[2]}
v_add_u32 v{vU[2]}, s{sT[2]}, v{vU[2]}
s_lshl_b32 s{sT[3]}, s{sR64}, 6
s_lshr_b32 s{sX[1]}, s{sW}, 1
s_lshl_b32 s{sX[1]}, s{sX[1]}, 5
s_add_u32 s{sT[3]}, s{sT[3]}, s{sX[1]}
s_and_b32 s{sX[1]}, s{sW}, 1
s_lshl_b32 s{sX[1]}, s{sX[1]}, 2
s_add_u32 s{sT[3]}, s{sT[3]}, s{sX[1]}
s_mul_i32 s{sT[3]}, s{sT[3]}, 2560
s_mul_i32 s{sX[1]}, s{sS8}, 320
s_add_u32 s{sT[3]}, s{sT[3]}, s{sX[1]}''')
        srd(R_T0, P_OUT, 5242880)
        OA, OL = 192, 198
        for z in range(5):
            A(f'''v_add_u32 v{vT[1]}, {64 * z}, v{vL}
v_mul_u32_u24 v{vT[2]}, 205, v{vT[1]}
v_lshrrev_b32 v{vT[2]}, 12, v{vT[2]}
v_mul_u32_u24 v{vT[3]}, 20, v{vT[2]}
v_sub_u32 v{vT[1]}, v{vT[1]}, v{vT[3]}
v_lshlrev_b32 v{vT[1]}, 4, v{vT[1]}
v_mul_u32_u24 v{vT[3]}, 336, v{vT[2]}
v_add3_u32 v{OL + z}, v{vT[3]}, v{vT[1]}, s{sT[2]}
v_lshrrev_b32 v{vT[3]}, 2, v{vT[2]}
v_lshl_add_u32 v{vT[2]}, v{vT[3]}, 2, v{vT[2]}
v_mul_u32_u24 v{vT[2]}, 2560, v{vT[2]}
v_add_u32 v{OA + z}, v{vT[2]}, v{vT[1]}''')
        back = A.label('stpoll')
        A(f'{back}:')
        Q = 128
        A(f'buffer_load_dwordx3 {v3(Q)}, v{vT[0]}, {s4(R_WS)}, s{sT[0]} offen sc1')
        A(f'buffer_load_dwordx3 {v3(Q + 4)}, v{vT[0]}, {s4(R_WS)}, s{sT[1]} offen sc1')
        A(f'''s_waitcnt vmcnt(0)
v_min3_u32 v{vT[2]}, v{Q + 2}, v{Q + 6}, s{sTag}
v_max3_u32 v{vT[3]}, v{Q + 2}, v{Q + 6}, s{sTag}
v_cmp_ne_u32 vcc, v{vT[2]}, v{vT[3]}''')
        retry(back)
        stamp('st_in_1')
        A(f'v_pk_add_f32 {v2(Q)}, {v2(Q)}, {v2(Q + 4)}')
        allreduce_q(Q, S)
        r1, t0 = 210, 212
        A(f'''v_mul_f32 v{Q}, {inv:#x}, v{Q}
v_mul_f32 v{t0}, {inv:#x}, v{Q + 1}
v_fma_f32 v{t0}, -v{Q}, v{Q}, v{t0}
v_max_f32 v{t0}, 0, v{t0}
v_add_f32 v{t0}, 0x3727c5ac, v{t0}
v_rsq_f32 v{r1}, v{t0}
v_mul_f32 v{r1 + 1}, v{Q}, v{r1}''')
        bc = 'op_sel:[0,0,1] op_sel_hi:[1,0,1] neg_lo:[0,0,1] neg_hi:[0,0,1]'
        U = 160
        for i in range(10):
            A(f'v_pk_fma_f32 {v2(U + 2 * i)}, {v2(a + 2 * i)}, {v2(r1)}, {v2(r1)} {bc}')
        lg = LG()
        for m in range(5):
            for hf in range(2):
                i = 2 * m + hf
                A(f'v_pk_fma_f32 {v2(a + 2 * i)}, {v2(U + 2 * i)}, {v2(YF + 2 * i)}, {v2(a + 2 * i)}')
            if OPT['pscale']:
                import struct
                f = struct.unpack('<I', struct.pack('<f', 1 + OPT['pscale'] / 1000))[0]
                for i in range(4):
                    A(f'v_mul_f32 v{a + 4 * m + i}, {f:#x}, v{a + 4 * m + i}')
            if OPT['pspike'] and m == 0:
                import struct
                f = struct.unpack('<I', struct.pack('<f', OPT['pspike'] / 1000))[0]
                A(f's_cmp_eq_u32 s{sEpW}, 0\ns_cselect_b32 s{sX[2]}, {f:#x}, 0\ns_mov_b64 exec, 1\n'
                  f'v_add_f32 v{a}, s{sX[2]}, v{a}\ns_mov_b64 exec, -1')
            lg(f'ds_write_b128 v{vU[2]}, {v4(a + 4 * m)} offset:{64 * m}')
        tk = [lg(f'ds_read_b128 {v4(RING + 4 * z)}, v{OL + z}') for z in range(5)]
        for z in range(5):
            lg.wait(tk[z])
            A(f'buffer_store_dwordx4 {v4(RING + 4 * z)}, v{OA + z}, {s4(R_T0)}, s{sT[3]} offen' + ['', ' sc1', ' sc1 nt', ' nt', ' sc0 sc1'][OPT['om']])
        stamp('out_st')


def dbg_mark(i):
    if not OPT['dbgspan']:
        return
    A(f'''s_memrealtime s[0:1]
s_waitcnt lgkmcnt(0)
s_not_b32 s1, s{sSt}
v_mov_b32 v{vT[3]}, s0
v_mov_b32 v{vT[4]}, s1
v_mov_b32 v{vT[2]}, 0
s_mov_b64 exec, 1
global_atomic_umax v{vT[2]}, v{vT[3]}, {s2(P_DBG)} offset:{4 * i}''')
    if i == 1:
        A(f'global_atomic_umax v{vT[2]}, v{vT[4]}, {s2(P_DBG)}')
    A('s_mov_b64 exec, -1')


def dump_stamps():
    if OPT['fixdur']:
        if OPT['probe']:
            A(f'v_readfirstlane_b32 s3, v{vStamp}\ns_min_u32 s3, s3, 20000\ns_add_u32 s{sSt}, s{sSt}, s3')
        A(f'''L_fix:
s_memrealtime s[0:1]
s_waitcnt lgkmcnt(0)
s_sub_u32 s0, s0, s{sSt}
s_cmp_lt_i32 s0, {OPT['fixdur']}
s_cbranch_scc1 L_fix''')
    if OPT['dbgspan']:
        A('s_waitcnt vmcnt(0)')
        A(f's_cmp_lg_u32 s{sW}, 0')
        with A.skip_if('s_cbranch_scc1', lambda c: c['w'] != 0):
            dbg_mark(1)
    if not OPT['stamps']:
        return
    A(f'''s_waitcnt vmcnt(0)
s_memrealtime {s2(sSt)}
s_waitcnt lgkmcnt(0)
v_writelane_b32 v{vStamp}, s{sSt}, 63
s_lshl_b32 s{sT[0]}, s{sR64}, 3
s_add_u32 s{sT[0]}, s{sT[0]}, s{sS8}
s_lshl_b32 s{sT[0]}, s{sT[0]}, 2
s_add_u32 s{sT[0]}, s{sT[0]}, s{sW}
s_lshl_b32 s{sT[0]}, s{sT[0]}, 8
s_add_u32 s{sT[0]}, s{sT[0]}, {WS_DBG}
v_lshlrev_b32 v{vT[0]}, 2, v{vL}
buffer_store_dword v{vStamp}, v{vT[0]}, {s4(R_WS)}, s{sT[0]} offen''')


def body():
    prologue()
    for i in range(OPT['shift']):
        A('s_nop 0')
    startup()
    for layer in range(2):
        chain('c' if layer == 0 else 'g')
        gemm1(layer)
        chain('d' if layer == 0 else 'h')
        scan_a(layer)
        scale_b()
        if layer == 1 and OPT['exp'] & 512:
            TAIL_SKIP.append(1)
        if layer == 0:
            n1 = OPT['cl0']
            vm, side = VM(), Side()
            A(f'''s_mul_i32 s{sL[0]}, s{sS8}, 200
s_mul_i32 s{sT[0]}, s{sW}, 50
s_add_u32 s{sL[0]}, s{sL[0]}, s{sT[0]}
s_lshl_b32 s{sL[0]}, s{sL[0]}, 10
s_add_u32 s{sL[0]}, s{sL[0]}, {WS_CF}
s_waitcnt vmcnt({5 - OPT['fsk']})''')
            async_check(204, 4, 246, f's{sX[1]}')
            for k in range(n1):
                c_load(vm)
            for k, r in enumerate(vCA + vCB):
                A(f'v_accvgpr_read_b32 v{r}, a{208 + k}')
            agg_addr()
            A(f'''s_and_b32 s{sKV[2]}, s{sD}, 0xffff
s_lshl_b32 s{sKV[3]}, s{sD}, 16
s_lshr_b32 s{sKV[4]}, s{sD}, 16
s_and_b32 s{sKV[5]}, s{sD}, 0xffff0000
s_cmp_eq_u32 s{sW}, 2''')
            with A.skip_if('s_cbranch_scc1', lambda c: c['w'] == 2):
                kcopy(n1)
            A(f's_waitcnt vmcnt({n1 + 1}) lgkmcnt(0)\ns_barrier')
            stamp('kv_in')
            if OPT['prefetch'] & 4:
                ct = code_touch()
                side.add(12, lambda: (A('\n'.join(ct[:-2])), vm(ct[-2]), A(ct[-1])))
            side.spread(2, 4, z_loads(vm))
            if OPT['bt']:
                side.add(OPT['bt'], f'''s_lshr_b32 s{sT[0]}, s{sW}, 1
s_mul_i32 s{sT[0]}, s{sT[0]}, 60
v_min_u32 v{vT[0]}, 59, v{vL}
v_add_u32 v{vT[0]}, s{sT[0]}, v{vT[0]}
v_mul_u32_u24 v{vT[1]}, 171, v{vT[0]}
v_lshrrev_b32 v{vT[1]}, 9, v{vT[1]}
v_mul_u32_u24 v{vT[1]}, 896, v{vT[1]}
v_lshl_add_u32 v{vT[0]}, v{vT[0]}, 7, v{vT[1]}
s_mul_i32 s{sT[0]}, s{sMem}, 51200''',
                         lambda: vm(f'buffer_load_dword a250, v{vT[0]}, {s4(R_T0)}, s{sT[0]} offen'))
            conv_steps(side, vm)
            stamp('conv')
            chain('e')
            conv_epilogue()
        else:
            tr_addr()
            A(f's_cmp_lg_u32 s{sW}, 2')
            with A.skip_if('s_cbranch_scc1', lambda c: c['w'] != 2):
                scan_master(1, False)
        scan_b(layer)
        if layer == 0:
            A('\n'.join(z_compute()))
            b_reload_setup()
            A(f'''s_mul_i32 s{sKV[4]}, s{sS8}, 327680
s_lshl_b32 s{sKV[5]}, s{sR64}, 7
s_add_u32 s{sKV[4]}, s{sKV[4]}, s{sKV[5]}
s_lshr_b32 s{sKV[5]}, s{sW}, 1
s_lshl_b32 s{sKV[5]}, s{sKV[5]}, 6
s_add_u32 s{sKV[4]}, s{sKV[4]}, s{sKV[5]}
s_add_u32 s{sKV[4]}, s{sKV[4]}, {WS_Y}
s_mul_i32 s{sKV[5]}, s{sW}, 6144
v_lshrrev_b32 v{vYD}, 2, v{vL}
v_lshlrev_b32 v{vYD}, 12, v{vYD}
v_and_b32 v{vT[1]}, 3, v{vL}
v_lshl_add_u32 v{vYD}, v{vT[1]}, 4, v{vYD}
v_and_b32 v{vYA}, 31, v{vL}
v_lshlrev_b32 v{vYA}, 4, v{vYA}''')
        else:
            for i in range(20):
                A(f'v_accvgpr_read_b32 v{ZR + i}, a{A_Z + i}')
            for i in range(10):
                A(f'v_accvgpr_read_b32 v{160 + i}, a{A_Y + i}')
            unpack(YF, 160, 10)
        g2_setup(layer)
        A('s_barrier')
        if not (OPT['exp'] & 256 and layer == 1):
            poll_flags(vHA, f's{sT[3]}', 2, tmp=vU[0])
        stamp(f'h_ready_{layer}')
        g = G2()
        if layer == 0 and OPT['yp'] < 0:
            A(f's_and_b32 s{sT[1]}, s{sFC}, 0xe00\ns_add_u32 s{sT[1]}, s{sT[1]}, {WS_FY}')
        for f in range(OPT['n0']):
            g.ld()
            if layer == 0 and OPT['yp'] == f - OPT['n0']:
                g.yp = g.vm(f'buffer_load_dwordx4 {v4(vYP)}, v{vYA}, {s4(R_WS)}, s{sT[1]} offen sc1')
        gemm2(layer, g)
        if layer == 0:
            chain('f')
        epilogue(layer)
    chain('end')
    dump_stamps()
    A('L_end:\ns_endpgm')
    for t in TAIL:
        A(t)
    A('s_endpgm\nL_codeend:')


def main():
    hdr = open(os.path.join(os.path.dirname(os.path.abspath(__file__)), NAME + '.s.ref')).read().split('; Override')[0]
    A2 = []
    A2.append(hdr.rstrip())
    A2.append(f'; @launch grid=(256,1,1) block=(256,1,1) lds={LDS_SIZE}')
    A2.append('.amdgcn_target "amdgcn-amd-amdhsa--gfx950"\n.text')
    A2.append(f'.globl {NAME}_kernel\n.p2align 8\n.type {NAME}_kernel,@function\n{NAME}_kernel:')
    body()
    if OPT['hop']:
        print('; pads', A.add_pads(), file=sys.stderr)
    n = A.fix_hazards()
    if OPT['align']:
        print('; align: promoted %d, padded %d' % A.align8(*{1: (6, False), 2: (3, True), 3: (999, False), 4: (1, True)}[OPT['align']]), file=sys.stderr)
    cfgs = [dict(w=w, fast=f) for w in range(4) for f in (0, 1)]
    errs = A.check_waits(cfgs)
    for e in sorted(set(errs))[:40]:
        print('WAITCNT:', e, file=sys.stderr)
    print(f'; {n} hazard pads inserted; stamps: {STAMPS}', file=sys.stderr)
    A2.append('; WS ' + '\n; WS '.join(f'{k}={v:#x}' for k, v in dict(RS=WS_RS, H=WS_H, KV=WS_KV, Y=WS_Y, CF=WS_CF,
                                                                   U2=WS_U2, H2=WS_H2, DBG=WS_DBG).items()))
    if STAMPS:
        A2.append('; STAMPS ' + ' '.join(STAMPS))
    A2.append(A.text())
    A2.append(f'''.section .rodata,"a"
.p2align 6
.amdhsa_kernel {NAME}_kernel
  .amdhsa_next_free_vgpr 512
  .amdhsa_next_free_sgpr 102
  .amdhsa_accum_offset 256
  .amdhsa_group_segment_fixed_size 0
  .amdhsa_kernarg_size 144
  .amdhsa_user_sgpr_count 2
  .amdhsa_user_sgpr_kernarg_segment_ptr 1
  .amdhsa_system_sgpr_workgroup_id_x 1
.end_amdhsa_kernel''')
    print('\n'.join(A2))


if __name__ == '__main__':
    main()
```

```python
import re

TRANS = ('v_exp_f32', 'v_log_f32', 'v_rcp_f32', 'v_rsq_f32', 'v_sqrt_f32', 'v_sin_f32', 'v_cos_f32',
         'v_rcp_iflag_f32')


def regs_of(tok):
    tok = tok.strip().lstrip('-')
    if tok.startswith('abs(') or tok.startswith('|'):
        tok = tok.strip('|').replace('abs(', '').rstrip(')')
    m = re.fullmatch(r'([vas])(\d+)', tok)
    if m:
        return {(m.group(1), int(m.group(2)))}
    m = re.fullmatch(r'([vas])\[(\d+):(\d+)\]', tok)
    if m:
        return {(m.group(1), i) for i in range(int(m.group(2)), int(m.group(3)) + 1)}
    if tok == 'vcc':
        return {('s', 'vcc_lo'), ('s', 'vcc_hi')}
    if tok in ('vcc_lo', 'vcc_hi'):
        return {('s', tok)}
    if tok == 'exec':
        return {('s', 'exec_lo'), ('s', 'exec_hi')}
    if tok in ('exec_lo', 'exec_hi'):
        return {('s', tok)}
    if tok == 'm0':
        return {('s', 'm0')}
    return set()


class Ins:
    def __init__(self, text):
        self.text = text
        t = text.split(';')[0].strip()
        self.is_label = t.endswith(':')
        self.is_dir = t.startswith('.')
        self.op = ''
        self.dst = set()
        self.src = set()
        self.kind = 'other'
        self.mods = ''
        self.opsA = self.opsB = self.opsC = set()
        self.data = set()
        if self.is_label or self.is_dir or not t:
            self.kind = 'none'
            return
        parts = t.split(None, 1)
        self.op = op = parts[0]
        rest = parts[1] if len(parts) > 1 else ''
        ops, cur, depth = [], '', 0
        for ch in rest:
            if ch in '[(':
                depth += 1
            if ch in '])':
                depth -= 1
            if ch == ',' and depth == 0:
                ops.append(cur.strip())
                cur = ''
            else:
                cur += ch
        if cur.strip():
            ops.append(cur.strip())
        if ops:
            last = ops[-1].split(None, 1)
            if len(last) > 1 and not op.startswith('s_waitcnt'):
                ops[-1] = last[0]
                self.mods = last[1]
        self.ops = ops
        R = [regs_of(o) for o in ops]
        base = re.sub(r'_(e32|e64|dpp|sdwa)$', '', op)
        self.base = base
        if op.startswith('v_mfma'):
            self.kind = 'mfma'
            self.dst = R[0]
            self.opsA, self.opsB, self.opsC = R[1], R[2], R[3]
            self.src = R[1] | R[2] | R[3]
            self.passes = 8 if '32x32' in op else 4
        elif op.startswith('v_'):
            self.kind = 'valu'
            self.dst = R[0]
            self.src = set().union(*R[1:]) if len(R) > 1 else set()
            if base.startswith('v_permlane') or base == 'v_swap_b32':
                self.dst = R[0] | R[1]
                self.src = R[0] | R[1]
            if base in ('v_fmac_f32', 'v_dot2c_f32_bf16', 'v_writelane_b32') or op.endswith('_dpp'):
                self.src |= R[0]
            if base in ('v_add_co_u32', 'v_addc_co_u32', 'v_sub_co_u32'):
                self.dst = R[0] | R[1]
                self.src = set().union(*R[2:])
            if base == 'v_cndmask_b32' and len(ops) == 3:
                self.src |= regs_of('vcc')
            self.dpp = op.endswith('_dpp')
            self.trans = base in TRANS
            self.dot = base.startswith('v_dot')
        elif op.startswith('ds_'):
            self.kind = 'ds'
            if op.startswith('ds_read') or op.startswith('ds_bpermute') or op.startswith('ds_permute') \
                    or op.startswith('ds_swizzle'):
                self.dst = R[0]
                self.src = set().union(*R[1:])
            else:
                self.src = set().union(*R)
        elif op.startswith('buffer_') or op.startswith('global_'):
            self.kind = 'vmem'
            self.lds = ' lds' in (' ' + self.mods) or 'load_lds' in op
            if op in ('buffer_wbl2', 'buffer_inv'):
                pass
            elif '_load' in op and not self.lds:
                self.dst = R[0]
                self.src = set().union(*R[1:])
                if 'd16' in op:
                    self.src |= R[0]
            elif '_load' in op:
                self.src = set().union(*R) | {('s', 'm0')}
            else:
                self.src = set().union(*R)
                self.data = R[0] if op.startswith('buffer_') else R[1]
            self.wide = ('_store' in op) and (op.endswith('x3') or op.endswith('x4'))
        elif op.startswith('s_load') or op.startswith('s_memtime') or op.startswith('s_memrealtime'):
            self.kind = 'smem'
            self.dst = R[0]
            self.src = set().union(*R[1:]) if len(R) > 1 else set()
        elif op == 's_waitcnt':
            self.kind = 'wait'
            m = re.search(r'vmcnt\((\d+)\)', t)
            self.vm = int(m.group(1)) if m else None
            m = re.search(r'lgkmcnt\((\d+)\)', t)
            self.lgkm = int(m.group(1)) if m else None
        elif op == 's_nop':
            self.kind = 'nop'
            self.n = int(ops[0]) + 1
        elif op.startswith('s_cbranch') or op == 's_branch':
            self.kind = 'branch'
            self.target = ops[0]
        elif op.startswith('s_'):
            self.kind = 'salu'
            if op.startswith('s_cmp') or op.startswith('s_bitcmp') or op in (
                    's_barrier', 's_endpgm', 's_sleep', 's_setprio'):
                self.src = set().union(*R) if R else set()
            else:
                self.dst = R[0] if R else set()
                self.src = set().union(*R[1:]) if len(R) > 1 else set()
                if 'saveexec' in op:
                    self.dst |= regs_of('exec')
                    self.src |= regs_of('exec')
                if op in ('s_addk_i32', 's_mulk_i32'):
                    self.src |= R[0]

    def states(self):
        if self.kind == 'none':
            return 0
        if self.kind == 'nop':
            return self.n
        return 1


def vec(rs):
    return {r for r in rs if r[0] in 'va'}


def sca(rs):
    return {r for r in rs if r[0] == 's'}


def need(p, c):
    n = 0
    if p.kind == 'valu':
        pv, ps = vec(p.dst), sca(p.dst)
        if c.kind == 'valu':
            if pv & c.src:
                if c.dpp:
                    n = max(n, 2)
                if c.base.startswith('v_permlane'):
                    n = max(n, 2)
                if c.base in ('v_readlane_b32', 'v_readfirstlane_b32'):
                    n = max(n, 1)
                if p.trans and not c.trans:
                    n = max(n, 1)
            if p.dot and (pv & (c.src | c.dst)):
                same = c.base == p.base
                if not same:
                    n = max(n, 3)
                else:
                    ab = set().union(*[regs_of(o) for o in c.ops[1:3]])
                    if pv & ab:
                        n = max(n, 3)
            if ps & c.src:
                n = max(n, 4 if c.base in ('v_readlane_b32', 'v_writelane_b32') else 2)
        if c.kind == 'mfma' and pv & c.src:
            n = max(n, 3 if p.dot else 2)
        if c.kind == 'mfma' and p.op.startswith('v_pk_') and re.search(r'op_sel:\[[01,]*1', p.text):
            n = max(n, 1)
        if c.kind in ('vmem', 'ds'):
            if ps & c.src:
                n = max(n, 5)
            if p.dot and pv & c.src:
                n = max(n, 3)
            if p.trans and pv & c.src:
                n = max(n, 1)
    if p.kind == 'mfma':
        big = p.passes == 8
        if c.kind == 'valu':
            if p.dst & (c.src | c.dst):
                n = max(n, 12 if big else 8)
            if p.opsC & c.dst:
                n = max(n, 7 if big else 3)
        if c.kind in ('vmem', 'ds') and p.dst & (c.src | c.dst):
            n = max(n, 12 if big else 8)
        if c.kind == 'mfma':
            if p.dst & (c.opsA | c.opsB):
                n = max(n, 12 if big else 8)
            if p.dst & c.opsC and not (p.dst == c.opsC and p.passes == c.passes):
                n = max(n, 10 if big else 6)
            if p.dst & c.dst and not (p.dst & c.opsC):
                n = max(n, 10 if big else 6)
    if p.kind == 'vmem' and getattr(p, 'wide', False):
        if c.kind == 'valu' and p.data & c.dst:
            n = max(n, 2)
        elif p.data & c.dst:
            n = max(n, 1)
    if p.kind == 'salu' and ('s', 'm0') in p.dst and c.kind == 'vmem' and getattr(c, 'lds', False):
        n = max(n, 1)
    return n


class Asm:
    def __init__(self):
        self.L = []
        self.cond = {}
        self.nlab = 0
        self.tail = []

    def __call__(self, text):
        for line in text.split('\n'):
            line = line.strip()
            if line:
                self.L.append(Ins(line))

    def label(self, hint='L'):
        self.nlab += 1
        return f'{hint}_{self.nlab}'

    class _If:
        def __init__(self, A, br, pred, hint):
            self.A, self.br, self.pred, self.lab = A, br, pred, A.label(hint)

        def __enter__(self):
            self.A.cond[self.lab] = self.pred
            self.A(f'{self.br} {self.lab}')

        def __exit__(self, *a):
            self.A(f'{self.lab}:')

    def skip_if(self, br, pred, hint='skip'):
        return Asm._If(self, br, pred, hint)

    def fix_hazards(self, window=24):
        out = []
        hist_at = {}
        hists = [[]]
        nins = 0
        for ins in self.L:
            if ins.is_label:
                lab = ins.text.split(':')[0].strip()
                hists = hists + hist_at.get(lab, [])
                out.append(ins)
                continue
            if ins.kind == 'none':
                out.append(ins)
                continue
            pad = 0
            for h in hists:
                dist = 0
                for p in reversed(h):
                    r = need(p, ins)
                    if r > dist:
                        pad = max(pad, r - dist)
                    dist += p.states()
                    if dist > window:
                        break
            if pad:
                nop = Ins(f's_nop {pad - 1}')
                out.append(nop)
                nins += 1
                for h in hists:
                    h.append(nop)
            out.append(ins)
            for h in hists:
                h.append(ins)
                del h[:-window]
            uniq = []
            for h in hists:
                if not any(h == u for u in uniq):
                    uniq.append(h)
            hists = uniq
            if ins.kind == 'branch':
                hist_at.setdefault(ins.target, []).extend([list(h) for h in hists])
                if ins.op == 's_branch':
                    hists = [[]]
        self.L = out
        return nins

    def check_waits(self, cfgs):
        labels = {i.text.split(':')[0].strip(): k for k, i in enumerate(self.L) if i.is_label}
        errs = []
        for cfg in cfgs:
            vm = []
            lg = []
            smem_out = False
            pc = 0
            while pc < len(self.L):
                ins = self.L[pc]
                pc += 1
                if ins.kind == 'none':
                    continue
                if ins.op == 's_endpgm':
                    break
                if ins.kind == 'branch':
                    t = ins.target
                    if ins.op == 's_branch' and t.startswith('PAD_'):
                        pass
                    elif ins.op == 's_branch':
                        pc = labels[t]
                    elif t in self.cond and self.cond[t](cfg):
                        pc = labels[t]
                    continue
                if ins.kind == 'wait':
                    if ins.vm is not None:
                        vm = vm[len(vm) - ins.vm:] if ins.vm < len(vm) else vm
                        if ins.vm == 0:
                            vm = []
                    if ins.lgkm is not None:
                        if ins.lgkm == 0:
                            lg = []
                        elif not any(o.kind == 'smem' for o, _ in lg):
                            lg = lg[len(lg) - ins.lgkm:] if ins.lgkm < len(lg) else lg
                    continue
                if ins.op in ('s_memrealtime', 's_memtime') and ';@' in ins.text:
                    continue
                touched = ins.dst if 'nocheck' in ins.text else ins.src | ins.dst
                for o, d in vm + lg:
                    if d & touched and ('a', 250) not in d:
                        errs.append(f'cfg {cfg}: "{ins.text}" touches result of outstanding "{o.text}"')
                if ins.kind == 'vmem':
                    vm.append((ins, ins.dst))
                    if len(vm) > 63:
                        vm = vm[-63:]
                if ins.kind in ('ds', 'smem'):
                    lg.append((ins, ins.dst))
        return errs

    def measure(self):
        import subprocess, tempfile, os
        body = [i for i in self.L if i.kind != 'none']
        labs = {i.text.split(':')[0].strip() for i in self.L if i.is_label}
        extra = ''.join(f'{i.target}:\n' for i in body if i.kind == 'branch' and i.target not in labs)
        with tempfile.TemporaryDirectory() as d:
            src, obj = os.path.join(d, 'a.s'), os.path.join(d, 'a.o')
            open(src, 'w').write('.amdgcn_target "amdgcn-amd-amdhsa--gfx950"\n.text\n' + self.text() + '\n' + extra)
            subprocess.run(['clang', '-x', 'assembler', '-target', 'amdgcn-amd-amdhsa',
                            '-mcpu=gfx950', '-c', src, '-o', obj], check=True)
            out = subprocess.run(['llvm-objdump', '-d', '--mcpu=gfx950', obj],
                                 capture_output=True, text=True, check=True).stdout
        sizes = [4 * len(m.group(1).split()) for m in re.finditer(r'// [0-9A-F]{12}: ([0-9A-F ]+)', out)]
        assert len(sizes) == len(body), (len(sizes), len(body))
        for i, s in zip(body, sizes):
            i.size = s

    def add_pads(self, step=960):
        self.measure()
        out, name, n, acc, pads = [], None, 0, 0, {}
        for ins in self.L:
            m = re.match(r';@chain (\w+)', ins.text)
            if m:
                name, n, acc = (None if m.group(1) == 'end' else m.group(1)), 0, step
                continue
            if name and ins.kind != 'none':
                prev = out[-1].text if out else ''
                if acc >= step and prev != 's_mov_b64 exec, 0' and not prev.startswith('RET_'):
                    out.append(Ins(f'PAD_{name}_{n}:'))
                    br = Ins(f's_cbranch_execz PAD_{name}_{n + 1}')
                    out.append(br)
                    pads.setdefault(name, []).append(br)
                    n, acc = n + 1, 4
                acc += ins.size
            out.append(ins)
        for name, l in pads.items():
            k = out.index(l[-1])
            out[k] = Ins(f's_cbranch_execz RET_{name}')
        self.L = out
        return {k: len(v) for k, v in pads.items()}

    def align8(self, min_run=6, in_mfma=False):
        self.measure()
        promotable = lambda i: (i.kind == 'valu' and i.size == 4 and not i.op.endswith(('_e64', '_dpp'))
                                and not i.base.startswith(('v_readfirstlane', 'v_swap', 'v_permlane', 'v_accvgpr', 'v_dot2c',
                                                           'v_add_co', 'v_addc_co', 'v_cndmask')))
        out, odd, last4, npro, nnop = [], False, None, 0, 0
        for k, ins in enumerate(self.L):
            if ins.kind == 'none':
                out.append(ins)
                continue
            if ins.size == 8 and odd:
                if last4 is not None and promotable(last4):
                    t = last4.text.split(None, 1)
                    new = Ins(re.sub(r'_e32$', '', t[0]) + '_e64 ' + t[1])
                    new.size = 8
                    out[out.index(last4)] = new
                    odd, npro = False, npro + 1
                else:
                    run = 0
                    for nx in self.L[k:]:
                        if nx.kind == 'none':
                            continue
                        if nx.size != 8 or (nx.kind == 'mfma' and not in_mfma):
                            break
                        run += 1
                    if run >= min_run:
                        nop = Ins('s_nop 0')
                        nop.size = 4
                        out.append(nop)
                        odd, nnop = False, nnop + 1
                last4 = None
            out.append(ins)
            if ins.size == 4:
                odd = not odd
                last4 = ins
            else:
                last4 = None
        self.L = out
        return npro, nnop

    def text(self):
        return '\n'.join(('' if (i.is_label or i.is_dir) else '  ') + i.text for i in self.L)
```

```python
import sys
import os
import copy
sys.path.insert(0, os.path.dirname(os.path.abspath(__file__)))
from asmlib import Asm

NAME = 'interleave_layers__ssm_conv_s5__ssm_conv_h3__prompt'
OPT = dict(stamps=0, rt=1, reuse=1, force_slow=0, budget=1 << 16, align=3, nt=0, prefetch=11,
           gw=1, rsc=18, late=13, lper=3, b1s=0, b2s=0, b3s=1, b4s=3, cfs=1, cfper=14, kls=8, kvf=5, cff=9, fsp=10, fsc=12, wv0=10, wv=16,
           aggl=31, clend=34, hfl=1, hp=6, lag=2, gl=2, cs1=7, cb=5, cl2=4, zl=1, ys=0, yper=8, zper=8, csp=14, csc=17, cl0=8,
           order='S,A,M,T,O,G,B0,X0,X1,@setup,R,C,@roles', post='L1',
           n0=8, n00=8, n1=8, yp=26, ra=22, rper=7, rc=34, om=1, wb=2, wbw=3, wbs=0, dbg=0, inl=1, look=14, light=1, fixdur=0, probe='', pick=-1)
for a in sys.argv[1:]:
    k, v = a.split('=')
    assert k in OPT, k
    OPT[k] = v if k in ('probe', 'order', 'post') else int(v, 0)

WS_FU = 0x2000
WS_FH = 0x3000
WS_FS = 0x5000
WS_FY = 0x6000
WS_FK = 0x7000
WS_RS = 0x40000
WS_FX = 0x48000
WS_CS = 0x4A000
WS_AGG = 0x50000
AGG_L = 16 * 32 * 640
WS_ST = 0x140000
WS_U = 0x400000
WS_H = 0xA00000
WS_KV = WS_U if OPT['reuse'] else 0x1000000
WS_Y = 0x1300000
WS_CF = 0x1600000
WS_U2 = WS_U
WS_H2 = WS_H if OPT['reuse'] else 0x1B00000
WS_DBG = 0x2400000
WS_SIZE = 0x2800000
OOB = 0x70000000

L_AR = 102400
L_SK = L_AR + 3 * 8192
L_SV, L_SS, L_V = L_SK + 11520, L_SK + 23040, L_SK + 23808
L_KV = 0
L_TR = 13824
L_K = 102400
L_PM = 102400
L_PS = L_K + 3 * 8320
L_P = L_PS + 16384
L_RED = 102400
L_Y = 143360
L_AS = 152320
L_G = 158400
L_C = 159744
L_L = 160640
LDS_SIZE = 163840

P_X, P_LRE, P_LIM, P_BRE, P_BIM, P_CRE, P_CIM, P_LDT = 16, 18, 20, 22, 24, 26, 28, 30
P_DSK, P_Q, P_K, P_V, P_SK, P_SSK, P_SD, P_OUT, P_DBG, P_WS = 32, 34, 36, 38, 40, 42, 44, 46, 48, 50
R_WS, R_B, R_T0, R_T1, R_X = 52, 56, 60, 64, 68
sG, sJ, sOnes = 0, 1, 2
sR128, sMem, sR64, sS8, sW, sTag, sMode, sBud, sXcc = 3, 4, 5, 6, 7, 8, 9, 10, 11
sT = [12, 13, 14, 15]
sD = [72, 73]
sBs, sBm, sXs, sXm = 74, 75, 76, 77
sH = [78, 79, 80, 81, 82]
sAgg = 83
sFW, sFK = 84, 85
sCb = 86
sX = [87, 88, 89, 90, 91, 92, 93, 94, 95]
sPub = 96
sPC = 98
sSt = 100
sL = [34, 35]
sDS = [16, 17, 18, 19]
sZ = [20, 21, 48, 49]
sYO = [50, 51]
sDm = [30, 31, 25, 45]
sEpW = 44

vUA, vL, vL16, vI, vQ = 0, 1, 2, 3, 4
vBA = [5, 6, 7, 8]
vAS, vStamp = 9, 10
vT = [11, 12, 13, 14, 15]
LR, LS, VA = 16, 21, 26
mL8, mL128, mW = 36, 38, 40
vU = [42, 43, 44, 45, 46, 47]
ACC, BF, RING, NR = 48, 88, 128, 16
A_Y, A_Z, A_DSK = 200, 210, 230
PARK = dict(tw=240, tr=241, ts=242, bd=243, bd2=244, junk=250)
A_CV = 200
A_X, A_ZU = 216, 226

A = Asm()
NT = ' nt' if OPT['nt'] & 1 else ''
STAMPS = []
PREV = [61]
TAIL = []
DPPM = 'row_mask:0xf bank_mask:0xf'
SWP = f'quad_perm:[1,0,3,2] {DPPM}'
W = f's[{R_WS}:{R_WS + 3}]'


def s2(n): return f's[{n}:{n + 1}]'
def s4(n): return f's[{n}:{n + 3}]'
def v2(n): return f'v[{n}:{n + 1}]'
def v3(n): return f'v[{n}:{n + 2}]'
def v4(n): return f'v[{n}:{n + 3}]'
def a4(n): return f'a[{n}:{n + 3}]'


def srd(r, p, size):
    A(f's_mov_b32 s{r}, s{p}\ns_and_b32 s{r + 1}, s{p + 1}, 0xffff\ns_mov_b32 s{r + 2}, {size}\n'
      f's_mov_b32 s{r + 3}, 0x20000')


def stamp(name, level=1):
    if OPT['probe'] == name:
        A(f's_memrealtime vcc\ns_waitcnt lgkmcnt(0)\ns_sub_u32 vcc_lo, vcc_lo, s{sSt}\ns_lshl_b32 vcc_lo, vcc_lo, 2\n'
          f'v_mov_b32 v{vStamp}, vcc_lo')
    if not OPT['stamps'] or (OPT['stamps'] < 0 and name != 'start') or level > abs(OPT['stamps']):
        return
    if name not in STAMPS:
        STAMPS.append(name)
    i = STAMPS.index(name)
    op = 's_memrealtime' if OPT['rt'] else 's_memtime'
    if name == 'start' or not OPT['light']:
        A(f'{op} {s2(sSt)}\ns_waitcnt lgkmcnt(0)\nv_writelane_b32 v{vStamp}, s{sSt}, {i}')
    else:
        A(f'v_writelane_b32 v{vStamp}, s{sSt}, {PREV[0]} ; nocheck\n{op} {s2(sSt)} ;@{i}')
        PREV[0] = i


class Cnt:
    def __init__(self, what, cap):
        self.n, self.t, self.what, self.cap, self.done = 0, {}, what, cap, 0

    def __call__(self, text, name=None):
        A(text)
        self.n += 1
        if name is not None:
            self.t[name] = self.n
        return self.n

    def wait(self, *names):
        tok = max(self.t[x] if not isinstance(x, int) else x for x in names)
        if tok <= self.done:
            return
        k = self.n - tok
        assert k >= 0
        if k <= self.cap:
            A(f's_waitcnt {self.what}({k})')
            self.done = tok
        else:
            A(f's_waitcnt {self.what}({self.cap})')
            self.done = self.n - self.cap

    def merge(self, o):
        n = max(self.n, o.n)
        t = {}
        for k in set(self.t) | set(o.t):
            t[k] = n - min(c.n - c.t[k] for c in (self, o) if k in c.t)
        self.done = n - max(self.n - self.done, o.n - o.done)
        self.n, self.t = n, t


def VM(): return Cnt('vmcnt', 63)
def LG(): return Cnt('lgkmcnt', 15)


def lines(x):
    if isinstance(x, str):
        return [l for l in x.split('\n') if l.strip()]
    if isinstance(x, (list, tuple)):
        return [l for it in x for l in lines(it)]
    return [x]


def atom(*items):
    return lambda: run(items)


def run(items):
    for it in lines(items):
        A(it) if isinstance(it, str) else it()


class Side:
    def __init__(self):
        self.q = {}

    def add(self, step, *items):
        self.q.setdefault(step, []).extend(lines(items))

    def spread(self, step0, per, items):
        flat = lines(items)
        for i, it in enumerate(flat):
            self.add(step0 + i // per, it)
        return step0 + (len(flat) + per - 1) // per

    def run(self, step, slots_left):
        q = self.q.get(step, [])
        n = -(-len(q) // slots_left)
        self.q[step] = q[n:]
        for it in q[:n]:
            A(it) if isinstance(it, str) else it()

    def left(self, lo=0, hi=999):
        return [k for k, v in self.q.items() if v and lo <= k < hi]


class Cap:
    def __enter__(self):
        self.save = A.L
        A.L = []
        return self

    def __exit__(self, *a):
        self.lines = [i.text for i in A.L]
        A.L = self.save


def check_tags(regs, reload, masked=False, x=None, y=None, inline=0):
    x, y = vT[4] if x is None else x, vT[3] if y is None else y
    if len(regs) <= 2:
        chk = [f'v_xor_b32 v{x}, s{sTag}, v{regs[0]}']
        for r in regs[1:]:
            chk += [f'v_xor_b32 v{y}, s{sTag}, v{r}', f'v_or_b32 v{x}, v{x}, v{y}']
        chk.append(f'v_cmp_lt_u32 vcc, 15, v{x}' if masked else f'v_cmp_ne_u32 vcc, 0, v{x}')
    else:
        assert not masked and len(regs) % 2 == 0
        chk = [f'v_min3_u32 v{x}, v{regs[0]}, v{regs[1]}, s{sTag}', f'v_max3_u32 v{y}, v{regs[0]}, v{regs[1]}, s{sTag}']
        for i in range(2, len(regs), 2):
            chk += [f'v_min3_u32 v{x}, v{x}, v{regs[i]}, v{regs[i + 1]}', f'v_max3_u32 v{y}, v{y}, v{regs[i]}, v{regs[i + 1]}']
        chk.append(f'v_cmp_ne_u32 vcc, v{x}, v{y}')
    lab, done = A.label('again'), A.label('ok')
    A.cond[lab] = lambda c: False
    if inline and OPT['inl']:
        if inline == 2:
            A.cond[done] = lambda c: True
            A('\n'.join(chk) + f'\ns_cbranch_vccz {done}')
        out = A.label('out')
        A.cond[out] = lambda c: False
        run([f'{lab}:'] + lines(reload) + [f's_sub_u32 s{sBud}, s{sBud}, 1', f's_cmp_gt_i32 s{sBud}, 0', 's_waitcnt vmcnt(0)']
            + chk + [f's_cbranch_scc0 {out}', f's_cbranch_vccnz {lab}', f'{out}:', f'{done}:'])
        return
    if inline == 1:
        run(lines(reload) + ['s_waitcnt vmcnt(0)'])
    A('\n'.join(chk) + f'\ns_cbranch_vccnz {lab}\n{done}:')
    TAIL.append('\n'.join([f'{lab}:', f's_sub_u32 s{sBud}, s{sBud}, 1', f's_cmp_gt_i32 s{sBud}, 0', f's_cbranch_scc0 {done}']
                          + lines(reload) + ['s_waitcnt vmcnt(0)'] + chk + [f's_cbranch_vccnz {lab}', f's_branch {done}']))


def mode_stores(ls):
    slow, back = A.label('slow'), A.label('back')
    A.cond[slow] = lambda c: not c['fast']
    A(f's_cmp_eq_u32 s{sMode}, 0\ns_cbranch_scc1 {slow}')
    for l in ls:
        A(l)
    A(f'{back}:')
    TAIL.append(f'{slow}:\n' + '\n'.join((l + ' sc1') if l.startswith('buffer_store') else l for l in ls)
                + f'\ns_nop 1\ns_branch {back}')


def flag_store(soff, local, vm=None):
    t = vT[4]
    A(f'v_mov_b32 v{t}, s{sTag}\ns_mov_b64 exec, 1')
    line = f'buffer_store_dword v{t}, off, {W}, {soff}'
    if local:
        mode_stores([line])
    else:
        A(line + ' sc1')
    A('s_mov_b64 exec, -1')
    if vm is not None:
        vm.n += 1


def unpack(dst, src, n):
    out = []
    for i in range(n):
        out += [f'v_lshlrev_b32 v{dst + 2 * i}, 16, v{src + i}', f'v_and_b32 v{dst + 2 * i + 1}, 0xffff0000, v{src + i}']
    return out


def rnd_bf16(v):
    A(f'v_cvt_pk_bf16_f32 v{v}, v{v}, v{v}\nv_and_b32 v{v}, 0xffff0000, v{v}')


def cmul(dst, g, lam, add=None):
    if add is None:
        a = f'v_pk_mul_f32 {v2(dst)}, {v2(g)}, {v2(lam)} op_sel:[1,1] op_sel_hi:[0,1] neg_lo:[0,1]'
    else:
        a = f'v_pk_fma_f32 {v2(dst)}, {v2(g)}, {v2(lam)}, {v2(add)} op_sel:[1,1,0] op_sel_hi:[0,1,1] neg_lo:[0,1,0]'
    return [a, f'v_pk_fma_f32 {v2(dst)}, {v2(g)}, {v2(lam)}, {v2(dst)} op_sel:[0,0,0] op_sel_hi:[1,0,1]']


def park(name, v): A(f'v_accvgpr_write_b32 a{PARK[name]}, v{v}')
def unpark(name, v): return f'v_accvgpr_read_b32 v{v}, a{PARK[name]}'


def code_touch():
    return [f's_and_b32 vcc_lo, s{sJ}, 7', 's_lshl_b32 vcc_lo, vcc_lo, 2', f's_add_u32 vcc_lo, vcc_lo, s{sW}',
            's_lshl_b32 vcc_lo, vcc_lo, 11', f'v_lshl_add_u32 v{vT[4]}, v{vI}, 7, vcc_lo',
            f'v_min_u32 v{vT[4]}, L_codeend-L_pc-4, v{vT[4]}', 's_mov_b64 exec, 0xffff',
            f'global_load_dword a250, v{vT[4]}, {s2(sPC)}', 's_mov_b64 exec, -1']


def wbl2():
    A(f's_lshl_b32 vcc_lo, s{sJ}, 2\ns_add_u32 vcc_lo, vcc_lo, s{sW}\ns_cmp_lg_u32 vcc_lo, {OPT["wbw"]}')
    with A.skip_if('s_cbranch_scc1', lambda c: True):
        A('buffer_wbl2 sc1')


AF = 128
vAR, vAR2, vXd, vXd2, vBd, vBd2, vR, vSgn = 144, 145, 146, 147, 148, 149, 150, 151
CR, CI, CT, CTMP, vCd = 176, 180, 192 if OPT['cfs'] >= 0 else 128, 152, 174
vKV, vKS, vKR, vSR, vFX, vFXa = 169, 171, 172, 173, 184, 185
KK, VV, SKW, WW, AC, KT = 48, 70, 88, 96, 112, 216
OUT = [232, 236, 88, 92]
XP, XS = 48, 88
PAR = 229
KA, KB, vKO, vKP = 192, 204, 186, 163
vZ, vXT = 224, 242
RSL, vRS, CSL = 152, 160, 246
MM, RR = 88, 96
vFP, vFA = 188, 187


def x_dma(vm, p):
    s2i, m = p >> 1, p & 1
    A(f's_add_u32 m0, s{sXm}, {(p % 7) * 8192}\ns_add_u32 s{sT[3]}, s{sXs}, {4 * m * 1280 + s2i * 128}')
    vm(f'buffer_load_dwordx4 v{vXd}, {s4(R_X)}, s{sT[3]} offen lds')
    vm(f'buffer_load_dwordx4 v{vXd2}, {s4(R_X)}, s{sT[3]} offen offset:1024 lds', ('x', p))


def b_dma(vm, g, j, bd=vBd, bd2=vBd2):
    A(f's_add_u32 m0, s{sBm}, {g * 20480 + j * 2048}\ns_add_u32 s{sT[2]}, s{sBs}, {g * 256 + j * 10240}')
    vm(f'buffer_load_dwordx4 v{bd}, {s4(R_B)}, s{sT[2]} offen lds', ('b', g))
    if j < 4:
        vm(f'buffer_load_dwordx4 v{bd2}, {s4(R_B)}, s{sT[2]} offen offset:2048 lds', ('b', g))


def b_all(vm, g):
    t = vT
    srd(R_T1, P_BRE, 819200)
    A(f'v_xor_b32 v{t[0]}, 64, v{vBd}\nv_xor_b32 v{t[1]}, 64, v{vBd2}\ns_mul_i32 s{sT[3]}, s{sMem}, 51200')
    for hf in range(2):
        for j in (0, 2, 4):
            A(f's_add_u32 s{sT[2]}, s{sT[3]}, {g * 256 + hf * 128 + j * 10240}')
            for comp, (r, a, a2) in enumerate(((R_T1, t[0], t[1]), (R_B, vBd, vBd2))):
                A(f's_mov_b32 m0, {g * 20480 + hf * 10240 + j * 2048 + comp * 1024}')
                vm(f'buffer_load_dwordx4 v{a}, {s4(r)}, s{sT[2]} offen lds', ('b', g))
                if j < 4:
                    vm(f'buffer_load_dwordx4 v{a2}, {s4(r)}, s{sT[2]} offen offset:2048 lds', ('b', g))


def prologue():
    A('s_cmp_ge_u32 s2, 256\ns_cbranch_scc1 L_end')
    A.cond['L_end'] = lambda c: False
    if OPT['stamps'] or OPT['fixdur']:
        A(f's_memrealtime {s2(sSt)}\nv_mov_b32 v{vStamp}, 0')
    A('s_load_dwordx16 s[16:31], s[0:1], 0\ns_load_dwordx16 s[32:47], s[0:1], 64\n'
      's_load_dwordx4 s[48:51], s[0:1], 128')
    t = vT
    A(f'''v_and_b32 v{vL}, 63, v0
v_lshrrev_b32 v{t[0]}, 6, v0
v_lshlrev_b32 v{vL16}, 4, v{vL}
v_readfirstlane_b32 s{sW}, v{t[0]}
v_and_b32 v{vI}, 15, v{vL}
v_lshrrev_b32 v{vQ}, 4, v{vL}
s_and_b32 s{sT[0]}, s2, 7
s_lshr_b32 s{sT[1]}, s2, 3
s_getpc_b64 {s2(sPC)}
L_pc:
s_and_b32 s{sMem}, s{sT[1]}, 15
s_lshr_b32 s{sT[2]}, s{sT[1]}, 4
s_lshl_b32 s{sR128}, s{sT[0]}, 1
s_add_u32 s{sR128}, s{sR128}, s{sT[2]}
s_mov_b32 s{sG}, s{sT[0]}
s_mov_b32 s{sJ}, s{sT[1]}''')
    if OPT['prefetch'] & 1:
        A('\n'.join(code_touch()))
    A(f'''v_lshrrev_b32 v{t[0]}, 3, v{vL}
v_and_b32 v{t[2]}, 7, v{vL}
v_mul_u32_u24 v{vR}, 1280, v{t[0]}
v_lshl_add_u32 v{vR}, v{t[2]}, 4, v{vR}''')
    kv_src()
    A('s_waitcnt lgkmcnt(0)')
    if OPT['stamps']:
        A(f'v_writelane_b32 v{vStamp}, s{sSt}, 62')
        stamp('start')


def dma_addr():
    t = vT
    A(f'''v_lshrrev_b32 v{t[0]}, 3, v{vL}
v_and_b32 v{t[1]}, 6, v{t[0]}
v_and_b32 v{t[2]}, 7, v{vL}
s_movk_i32 s{sT[3]}, 0x78
v_bfe_u32 v{t[3]}, s{sT[3]}, v{t[1]}, 2
v_xor_b32 v{t[3]}, v{t[3]}, v{t[2]}
v_mul_u32_u24 v{vXd}, 1280, v{t[0]}
v_lshl_add_u32 v{vBd}, v{t[3]}, 4, v{vXd}
s_and_b32 s{sT[0]}, s{sW}, 1
s_lshl_b32 s{sT[1]}, s{sT[0]}, 6
v_xor_b32 v{vBd}, s{sT[1]}, v{vBd}
v_add_u32 v{vBd2}, {10240 - 2048}, v{vBd}
v_xor_b32 v{t[1]}, v{t[1]}, v{t[2]}
v_and_b32 v{t[0]}, 4, v{t[0]}
v_mul_u32_u24 v{t[0]}, 1280, v{t[0]}
v_lshl_add_u32 v{t[0]}, v{t[1]}, 4, v{t[0]}
v_add_u32 v{vXd}, v{t[0]}, v{vXd}
v_add_u32 v{vXd2}, {20480 - 1024}, v{vXd}
s_lshr_b32 s{sT[1]}, s{sW}, 1
s_mul_i32 s{sBm}, s{sT[1]}, 10240
s_lshl_b32 s{sT[0]}, s{sT[0]}, 10
s_add_u32 s{sBm}, s{sBm}, s{sT[0]}
s_mul_i32 s{sBs}, s{sMem}, 51200
s_lshl_b32 s{sT[1]}, s{sT[1]}, 7
s_add_u32 s{sBs}, s{sBs}, s{sT[1]}
s_lshl_b32 s{sXs}, s{sR128}, 2
s_add_u32 s{sXs}, s{sXs}, s{sW}
s_mul_i32 s{sXs}, s{sXs}, 40960
s_lshl_b32 s{sXm}, s{sW}, 11
s_add_u32 s{sXm}, s{sXm}, {L_AR}''')
    A(f'''s_bitcmp1_b32 s{sW}, 0
s_cselect_b32 s{R_B}, s{P_BIM}, s{P_BRE}
s_cselect_b32 s{R_B + 1}, s{P_BIM + 1}, s{P_BRE + 1}
s_and_b32 s{R_B + 1}, s{R_B + 1}, 0xffff
s_mov_b32 s{R_B + 2}, 819200
s_mov_b32 s{R_B + 3}, 0x20000
s_bitcmp1_b32 s{sR128}, 3
s_cselect_b32 s{R_T0}, s{P_BIM}, s{P_BRE}
s_cselect_b32 s{R_T0 + 1}, s{P_BIM + 1}, s{P_BRE + 1}
s_and_b32 s{R_T0 + 1}, s{R_T0 + 1}, 0xffff
s_mov_b32 s{R_T0 + 2}, 819200
s_mov_b32 s{R_T0 + 3}, 0x20000''')
    srd(R_X, P_X, 2621440)
    srd(R_WS, P_WS, WS_SIZE)


def kv_src():
    t = vT
    A(f'''s_mul_i32 s{sT[1]}, s{sJ}, 81920
s_mul_i32 s{sT[0]}, s{sG}, 160
s_add_u32 s{sT[1]}, s{sT[1]}, s{sT[0]}
s_sub_u32 s{sT[1]}, s{sT[1]}, 10240
s_mul_i32 s{sT[0]}, s{sW}, 6
v_mul_u32_u24 v{t[0]}, 205, v{vL}
v_lshrrev_b32 v{t[0]}, 11, v{t[0]}
v_mul_u32_u24 v{t[1]}, 160, v{t[0]}
v_sub_u32 v{t[1]}, v{vL16}, v{t[1]}
v_add_u32 v{t[0]}, s{sT[0]}, v{t[0]}
v_cmp_lt_u32 vcc, 8, v{t[0]}
v_mul_u32_u24 v{t[2]}, 10240, v{t[0]}
v_add3_u32 v{t[2]}, v{t[2]}, v{t[1]}, s{sT[1]}
v_subrev_u32 v{t[1]}, {9 * 10240 - 1280}, v{t[2]}
v_subrev_u32 v{t[3]}, 9, v{t[0]}
v_cndmask_b32 v{vKV}, v{t[2]}, v{t[1]}, vcc
v_cndmask_b32 v{t[0]}, v{t[0]}, v{t[3]}, vcc
v_cmp_eq_u32 vcc, 0, v{t[0]}
v_mov_b32 v{t[3]}, {OOB}
s_mul_i32 s{sX[8]}, s{sW}, 960
v_cndmask_b32 v{vKV + 1}, v{vKV}, v{t[3]}, vcc''')


def kv_addr():
    t = vT
    A(f'''v_mov_b32 v{t[3]}, {OOB}
v_lshrrev_b32 v{t[0]}, 3, v{vL}
v_and_b32 v{t[1]}, 7, v{vL}
v_mul_u32_u24 v{t[2]}, 160, v{t[1]}
v_lshl_add_u32 v{t[2]}, v{t[0]}, 3, v{t[2]}
s_lshl_b32 s{sT[0]}, s{sW}, 6
s_add_u32 s{sT[0]}, s{sT[0]}, {L_SK}
v_add_u32 v{vKR}, s{sT[0]}, v{t[2]}
s_lshl_b32 s{sT[0]}, s{sW}, 8
s_add_u32 s{sT[0]}, s{sT[0]}, {L_SS}
v_lshl_add_u32 v{vSR}, v{t[0]}, 5, s{sT[0]}
v_sub_u32 v{t[1]}, 7, v{t[1]}
v_lshlrev_b32 v{t[1]}, 4, v{t[1]}
v_lshl_add_u32 v{t[1]}, v{t[0]}, 14, v{t[1]}
s_cmp_lt_u32 s{sW}, 2
s_cselect_b32 s{sT[0]}, 64, 32
v_cmp_gt_u32 vcc, s{sT[0]}, v{vL}
s_mul_i32 s{sT[0]}, s{sG}, 80
s_lshl_b32 s{sT[1]}, s{sW}, 5
s_add_u32 s{sT[0]}, s{sT[0]}, s{sT[1]}
s_lshl_b32 s{sT[0]}, s{sT[0]}, 12
s_lshl_b32 s{sT[1]}, s{sJ}, 7
s_sub_u32 s{sT[0]}, s{sT[0]}, s{sT[1]}
s_add_u32 s{sX[0]}, s{sT[0]}, {WS_KV + 3968}
v_cndmask_b32 v{vKS}, v{t[3]}, v{t[1]}, vcc''')


def kv_loads(vm):
    srd(R_T0, P_K, 2621440)
    srd(R_T1, P_V, 2621440)
    A('s_mov_b32 exec_hi, 0x0fffffff')
    for n in range(4):
        for r, base in ((R_T0, L_SK), (R_T1, L_SV)):
            A(f's_add_u32 m0, s{sX[8]}, {base + n * 2880}')
            if n and r == R_T0:
                A(f's_movk_i32 s{sT[0]}, {n * 2560}')
            vm(f'buffer_load_dwordx4 v{vKV + (r == R_T1 or n < 2)}, {s4(r)}, {"s%d" % sT[0] if n else 0} offen{NT} lds', 'kv')
    A('s_mov_b32 exec_hi, -1')


def c_loads(vm):
    t = vT
    A(f'''v_mul_u32_u24 v{t[0]}, 171, v{vL}
v_lshrrev_b32 v{t[0]}, 11, v{t[0]}
v_mul_u32_u24 v{t[1]}, 12, v{t[0]}
v_sub_u32 v{t[1]}, v{vL}, v{t[1]}
s_mul_i32 s{sT[0]}, s{sMem}, 5
v_min_u32 v{t[2]}, 4, v{t[0]}
v_add_u32 v{t[2]}, s{sT[0]}, v{t[2]}
s_mul_i32 s{sT[1]}, s{sW}, 12
v_add_u32 v{t[1]}, s{sT[1]}, v{t[1]}
v_cmp_gt_u32 vcc, 40, v{t[1]}
v_cmp_gt_u32 {s2(sT[2])}, 5, v{t[0]}
s_lshr_b32 s{sT[1]}, s{sJ}, 4
s_mul_i32 s{sT[1]}, s{sT[1]}, 40
v_min_u32 v{t[1]}, 39, v{t[1]}
s_and_b64 vcc, vcc, {s2(sT[2])}
v_add_u32 v{t[1]}, s{sT[1]}, v{t[1]}
s_mul_i32 s{sT[2]}, s{sG}, 102400
v_mul_u32_u24 v{t[3]}, 1280, v{t[1]}
v_lshl_add_u32 v{t[3]}, v{t[2]}, 4, v{t[3]}
v_add_u32 v{t[3]}, s{sT[2]}, v{t[3]}''')
    vm(f'global_load_dwordx4 {v4(CR)}, v{t[3]}, {s2(P_CRE)}{NT}')
    vm(f'global_load_dwordx4 {v4(CI)}, v{t[3]}, {s2(P_CIM)}{NT}', 'craw')
    A(f'''v_lshrrev_b32 v{t[3]}, 2, v{t[2]}
v_mul_u32_u24 v{t[3]}, 10240, v{t[3]}
v_and_b32 v{t[2]}, 3, v{t[2]}
v_lshl_add_u32 v{t[3]}, v{t[2]}, 8, v{t[3]}
v_lshrrev_b32 v{t[2]}, 4, v{t[1]}
v_lshl_add_u32 v{t[3]}, v{t[2]}, 10, v{t[3]}
v_and_b32 v{t[1]}, 15, v{t[1]}
v_lshl_add_u32 v{t[3]}, v{t[1]}, 4, v{t[3]}
v_mov_b32 v{t[2]}, {OOB}
v_cndmask_b32 v{vCd}, v{t[2]}, v{t[3]}, vcc
v_min_u32 v{t[0]}, 4, v{t[0]}
v_lshlrev_b32 v{t[0]}, 6, v{t[0]}
v_add_u32 v{vCd + 1}, {L_C}, v{t[0]}''')


def cf_work(vm, lg):
    it = [lambda d=d: lg(f'ds_read_b128 {v4(CT + 4 * d)}, v{vCd + 1} offset:{16 * d}', 'ctab') for d in range(4)]
    it.append(lambda: (vm.wait('craw'), lg.wait('ctab')))
    r, i, o = CTMP, CTMP + 2, CTMP + 4
    for d in range(4):
        cr, ci = v2(CT + 4 * d), v2(CT + 4 * d + 2)
        it += unpack(r, CR + d, 1) + unpack(i, CI + d, 1)
        it += [f'v_pk_mul_f32 {v2(o)}, {v2(r)}, {cr}',
               f'v_pk_mul_f32 {v2(o + 2)}, {v2(r)}, {ci} neg_lo:[0,1] neg_hi:[0,1]',
               f'v_pk_fma_f32 {v2(o)}, {v2(i)}, {ci}, {v2(o)} neg_lo:[0,1,0] neg_hi:[0,1,0]',
               f'v_pk_fma_f32 {v2(o + 2)}, {v2(i)}, {cr}, {v2(o + 2)} neg_lo:[0,1,0] neg_hi:[0,1,0]',
               f'v_cvt_pk_bf16_f32 v{CR + d}, v{o}, v{o + 1}',
               f'v_cvt_pk_bf16_f32 v{CI + d}, v{o + 2}, v{o + 3}']
    it.append(atom(f's_mul_i32 s{sT[0]}, s{sG}, 204800', f's_add_u32 s{sT[0]}, s{sT[0]}, {WS_CF}',
                   f's_add_u32 s{sT[1]}, s{sT[0]}, 5120',
                   lambda: vm(f'buffer_store_dwordx4 {v4(CR)}, v{vCd}, {W}, s{sT[0]} offen sc1'),
                   lambda: vm(f'buffer_store_dwordx4 {v4(CI)}, v{vCd}, {W}, s{sT[1]} offen sc1', 'cfst')))
    return it


def consts():
    lre, lim, ldt = PAR, PAR + 1, PAR + 2
    t = 192
    zr, zi, e, rev, sn, cs = t, t + 1, t + 2, t + 3, t + 4, t + 5
    aL, aV, aC = t + 6, t + 7, t + 8
    P = t + 10
    V = ACC
    Wt = 84
    A(f'''v_lshlrev_b32 v{lre}, 16, v{lre}
v_lshlrev_b32 v{lim}, 16, v{lim}
v_lshlrev_b32 v{ldt}, 16, v{ldt}
v_mul_f32 v{ldt}, 0x3fb8aa3b, v{ldt}
v_exp_f32 v{ldt}, v{ldt}
v_min_u32 v{aC}, 39, v{vL}
v_mul_u32_u24 v{aL}, 80, v{aC}
v_mul_u32_u24 v{aV}, 176, v{aC}''')
    rnd_bf16(ldt)
    A(f'''v_mul_f32 v{zr}, v{ldt}, v{lre}
v_mul_f32 v{zi}, v{ldt}, v{lim}
v_mul_f32 v{zr}, 0x3fb8aa3b, v{zr}
v_mul_f32 v{zi}, 0x3e22f983, v{zi}''')
    for kf, dst in (('1.0', P), ('0x41000000', V + 2)):
        A(f'''v_mul_f32 v{e}, {kf}, v{zr}
v_mul_f32 v{rev}, {kf}, v{zi}
v_exp_f32 v{e}, v{e}
v_fract_f32 v{rev}, v{rev}
v_sin_f32 v{sn}, v{rev}
v_cos_f32 v{cs}, v{rev}
v_mul_f32 v{dst + 1}, v{e}, v{sn}
v_mul_f32 v{dst}, v{e}, v{cs}''')
    A(f'''v_mul_f32 v{e}, v{lre}, v{lre}
v_fmac_f32 v{e}, v{lim}, v{lim}
v_rcp_f32 v{e}, v{e}
v_add_f32 v{rev}, -1.0, v{P}
v_add_f32 v{e}, v{e}, v{e}
v_mul_f32 v{sn}, v{rev}, v{lre}
v_fmac_f32 v{sn}, v{P + 1}, v{lim}
v_mul_f32 v{cs}, v{P + 1}, v{lre}
v_fma_f32 v{cs}, -v{rev}, v{lim}, v{cs}
v_mul_f32 v{sn}, v{e}, v{sn}
v_mul_f32 v{cs}, v{e}, v{cs}
v_and_b32 v{e}, 1, v{aC}
v_lshrrev_b32 v{aC}, 1, v{aC}
v_lshlrev_b32 v{aC}, 4, v{aC}
v_lshl_add_u32 v{aC}, v{e}, 2, v{aC}
v_add_u32 v{aC}, {L_C}, v{aC}
v_add_u32 v{aL}, {L_L}, v{aL}
v_add_u32 v{aV}, {L_V}, v{aV}
ds_write2_b32 v{aC}, v{sn}, v{cs} offset0:0 offset1:2
s_waitcnt lgkmcnt(0)
v_mov_b32 v{V}, 1.0
v_mov_b32 v{V + 1}, 0
v_mov_b32 v{Wt}, 1.0
v_mov_b32 v{Wt + 1}, 0''')
    a = [cmul(P + 2 * k, P + 2 * k - 2, P) for k in range(1, 7)]
    b = [cmul(V + 2 * s, V + 2 * s - 2, V + 2) for s in range(2, 17)]
    for s, ops in enumerate(b):
        A(ops[0])
        if s < len(a):
            A(a[s][0])
        A(ops[1])
        if s < len(a):
            A(a[s][1])
        if 6 <= s < 13:
            k = s - 6
            A(f'ds_write2_b32 v{aL}, v{P + 2 * k}, v{P + 2 * k + 1} offset0:{k} offset1:{8 + k}')
        if s % 2 == 1:
            A(f'ds_write_b128 v{aV}, {v4(V + 2 * (s - 1))} offset:{8 * (s - 1)}')
    A(f'ds_write2_b32 v{aL}, v{V + 2}, v{V + 3} offset0:7 offset1:15')
    A(f'ds_write_b128 v{aV}, {v4(V + 28)} offset:112')
    A('\n'.join(cmul(e, V + 32, V + 32) + cmul(Wt + 2, e, e) + cmul(Wt + 4, Wt + 2, Wt + 2) + cmul(Wt + 6, Wt + 4, Wt + 2)))
    A(f'''ds_write_b64 v{aV}, {v2(V + 32)} offset:128
ds_write_b128 v{aV}, {v4(Wt)} offset:144
ds_write_b128 v{aV}, {v4(Wt + 4)} offset:160''')


def const_reads(lg):
    t = vT
    it = lines(f'''v_lshrrev_b32 v{t[0]}, 1, v{vI}
v_mul_u32_u24 v{t[1]}, 176, v{t[0]}
v_mul_u32_u24 v{t[0]}, 80, v{t[0]}
v_and_b32 v{t[2]}, 1, v{vI}
v_lshl_add_u32 v{t[1]}, v{t[2]}, 2, v{t[1]}
v_lshl_add_u32 v{t[1]}, v{vQ}, 3, v{t[1]}
s_lshl_b32 s{sT[0]}, s{sW}, 5
s_add_u32 s{sT[0]}, s{sT[0]}, {L_V}
v_add_u32 v{t[1]}, s{sT[0]}, v{t[1]}
v_add_u32 v{t[0]}, {L_L}, v{t[0]}
v_cvt_f32_u32 v{vSgn}, v{t[2]}
v_min_u32 v{t[2]}, 39, v{vL}
v_mul_u32_u24 v{t[2]}, 176, v{t[2]}
v_fma_f32 v{vSgn}, 2.0, v{vSgn}, -1.0
v_add_u32 v{t[2]}, {L_V}, v{t[2]}
s_lshl_b32 s{sT[0]}, s{sW}, 3''')
    for j in range(5):
        it.append(lambda j=j: lg(f'ds_read_b32 v{LR + j}, v{t[0]} offset:{j * 640}'))
        it.append(lambda j=j: lg(f'ds_read_b32 v{LS + j}, v{t[0]} offset:{j * 640 + 32}'))
        it.append(lambda j=j: lg(f'ds_read_b32 v{VA + 2 * j}, v{t[1]} offset:{j * 1408}'))
    it.append(lambda: lg(f'ds_read_b64 {v2(mL8)}, v{t[2]} offset:8'))
    it.append(lambda: lg(f'ds_read_b64 {v2(mL128)}, v{t[2]} offset:128'))
    it.append(f'v_add_u32 v{t[2]}, s{sT[0]}, v{t[2]}')
    it.append(lambda: lg(f'ds_read_b64 {v2(mW)}, v{t[2]} offset:144', 'cst'))
    fix = [lambda: lg.wait('cst')]
    for j in range(5):
        fix += [f'v_mul_f32 v{LS + j}, v{vSgn}, v{LS + j}',
                f'v_mul_f32_dpp v{VA + 2 * j + 1}, v{VA + 2 * j}, v{vSgn} {SWP}']
    return it, fix


def kv_work(vm, lg):
    rd = [lambda: lg(f'ds_read_b128 {v4(SKW)}, v{vSR}'), lambda: lg(f'ds_read_b128 {v4(SKW + 4)}, v{vSR} offset:16', 'skw')]
    for r in range(11):
        off = (9 * (r - 3) + 1) * 160 if r >= 3 else 9 * (5 + r) * 160
        rd.append(lambda r=r, off=off: lg(f'ds_read_b64 {v2(KK + 2 * r)}, v{vKR} offset:{off}', 'kk'))
    for r in range(8):
        rd.append(lambda r=r: lg(f'ds_read_b64 {v2(VV + 2 * r)}, v{vKR} offset:{11520 + (9 * r + 1) * 160}', 'vv'))
    it = [lambda: lg.wait('skw')]
    for e in range(4):
        for i in range(4):
            src = SKW + 2 * e + (i >> 1)
            it.append(f'v_and_b32 v{WW + 4 * i + e}, 0xffff0000, v{src}' if i & 1 else
                      f'v_lshlrev_b32 v{WW + 4 * i + e}, 16, v{src}')
    it.append(lambda: lg.wait('kk'))
    for d in range(2):
        pend = []
        for r in range(11):
            tmp = KT + 2 * (r % 2)
            it += unpack(tmp, KK + 2 * r + d, 1) if r == 0 else []
            nxt = unpack(KT + 2 * ((r + 1) % 2), KK + 2 * (r + 1) + d, 1) if r < 10 else []
            ops = []
            for stage in range(4):
                ta = r - stage
                if 0 <= ta < 8:
                    w = v2(WW + 4 * (3 - stage) + 2 * d)
                    ac = v2(AC + 2 * ta)
                    ops.append(f'v_pk_mul_f32 {ac}, {v2(tmp)}, {w}' if stage == 0 else
                               f'v_pk_fma_f32 {ac}, {v2(tmp)}, {w}, {ac}')
            it += ops[:1] + nxt + ops[1:]
        it.append(lambda: lg.wait('vv'))
        for ta in range(8):
            tmp = KT + 4 + 2 * (ta % 2)
            it += unpack(tmp, VV + 2 * ta + d, 1) + pend
            pend = [f'v_pk_mul_f32 {v2(AC + 2 * ta)}, {v2(AC + 2 * ta)}, {v2(tmp)}']
        it += pend
        for eo in range(2):
            for dd in range(4):
                it.append(f'v_cvt_pk_bf16_f32 v{OUT[2 * d + eo] + dd}, v{AC + 2 * (7 - 2 * dd) + eo}, '
                          f'v{AC + 2 * (6 - 2 * dd) + eo}')

    def st():
        ls = []
        for e in range(4):
            if e:
                ls.append(f's_add_u32 s{sX[0]}, s{sX[0]}, 4096')
            ls.append(f'buffer_store_dwordx4 {v4(OUT[e])}, v{vKS}, {W}, s{sX[0]} offen')
        mode_stores(ls)
        vm.n += 4
        vm.t['kvst'] = vm.n
    it.append(st)
    return rd, it


def stats_work(vm):
    S, Q, ad = XS, XS + 2, vT[0]
    it = [lambda: vm.wait('xp')]
    for i in range(40):
        it.append(f'v_dot2_f32_bf16 v{S}, v{XP + i}, s{sOnes}, ' + (f'v{S}' if i else '0'))
        it.append(f'v_dot2_f32_bf16 v{Q}, v{XP + i}, v{XP + i}, ' + (f'v{Q}' if i else '0'))
    with Cap() as c:
        for mod in ('quad_perm:[1,0,3,2]', 'quad_perm:[2,3,0,1]', 'row_half_mirror'):
            A(f'v_add_f32_dpp v{S}, v{S}, v{S} {mod} {DPPM}')
            A(f'v_add_f32_dpp v{Q}, v{Q}, v{Q} {mod} {DPPM}')
        inv = 0x3acccccd
        A(f'''v_mul_f32 v{S}, {inv:#x}, v{S}
v_mul_f32 v{Q}, {inv:#x}, v{Q}
v_fma_f32 v{Q}, -v{S}, v{S}, v{Q}
v_max_f32 v{Q}, 0, v{Q}''')
        rnd_bf16(S)
        rnd_bf16(Q)
        A(f'v_add_f32 v{Q}, 0x3727c5ac, v{Q}')
        rnd_bf16(Q)
        A(f'v_sqrt_f32 v{Q}, v{Q}')
        rnd_bf16(Q)
        A(f'''v_rcp_f32 v{S + 1}, v{Q}
v_mov_b32 v{Q}, s{sTag}
v_mov_b32 v{Q + 1}, s{sTag}''')

    def st():
        A(f'''v_lshlrev_b32 v{ad}, 1, v{vL}
s_lshl_b32 s{sT[0]}, s{sR128}, 4
s_add_u32 s{sT[0]}, s{sT[0]}, s{sMem}
s_lshl_b32 s{sT[0]}, s{sT[0]}, 7
s_add_u32 s{sT[0]}, s{sT[0]}, {WS_RS}
s_mov_b32 exec_lo, 0x01010101
s_mov_b32 exec_hi, 0x01010101''')
        vm(f'buffer_store_dwordx4 {v4(S)}, v{ad}, {W}, s{sT[0]} offen sc1')
        A('s_mov_b64 exec, -1')
    return it + c.lines + [st]


def colsum_work(vm):
    cs = XS
    it = [lambda: vm.wait('xp')]
    for i in range(40):
        it.append(f'v_dot2_f32_bf16 v{cs + (i & 1)}, v{XP + i}, s{sOnes}, ' + (f'v{cs + (i & 1)}' if i > 1 else '0'))
    it.append(f'v_add_f32 v{cs}, v{cs}, v{cs + 1}')
    for mod in ('quad_perm:[1,0,3,2]', 'quad_perm:[2,3,0,1]', 'row_half_mirror'):
        it.append(f'v_add_f32_dpp v{cs}, v{cs}, v{cs} {mod} {DPPM}')

    def st():
        A(f"""v_mov_b32 v{cs + 1}, s{sTag}
v_lshlrev_b32 v{vT[0]}, 1, v{vL}
s_lshl_b32 s{sT[0]}, s{sMem}, 3
s_and_b32 s{sT[1]}, s{sR128}, 7
s_add_u32 s{sT[0]}, s{sT[0]}, s{sT[1]}
s_mul_i32 s{sT[0]}, s{sT[0]}, 80
s_and_b32 s{sT[1]}, s{sR128}, 8
s_add_u32 s{sT[0]}, s{sT[0]}, s{sT[1]}
s_add_u32 s{sT[0]}, s{sT[0]}, {WS_CS}
s_mov_b32 exec_lo, 0x01010101
s_mov_b32 exec_hi, 1""")
        vm(f'buffer_store_dwordx2 {v2(cs)}, v{vT[0]}, {W}, s{sT[0]} offen sc1')
        A('s_mov_b64 exec, -1')
    return it + [st]


def fx_store(mods):
    A(f"""s_lshl_b32 s{sT[0]}, s{sG}, 8
s_lshl_b32 s{sT[1]}, s{sJ}, 2
s_add_u32 s{sT[0]}, s{sT[0]}, s{sT[1]}
s_add_u32 s{sT[0]}, s{sT[0]}, {WS_FX}
s_or_b32 s{sT[1]}, s{sTag}, s{sXcc}
v_mov_b32 v{vT[4]}, s{sT[1]}
s_mov_b64 exec, 1
buffer_store_dword v{vT[4]}, off, {W}, s{sT[0]}{mods}
s_mov_b64 exec, -1""")


def mode_check(vm):
    t, x, fa, so = vFX, vT[4], vFXa, sX[2]
    vm.wait('fx')
    lab, done = A.label('again'), A.label('ok')
    A.cond[lab] = lambda c: False
    A(f"""v_xor_b32 v{x}, s{sTag}, v{t}
v_cmp_lt_u32 vcc, 15, v{x}
s_cbranch_vccnz {lab}
{done}:""")
    TAIL.append(f"""{lab}:
s_sub_u32 s{sBud}, s{sBud}, 1
s_cmp_gt_i32 s{sBud}, 0
s_cbranch_scc0 {done}
buffer_load_dword v{t}, v{fa}, {W}, s{so} offen sc1
s_waitcnt vmcnt(0)
v_xor_b32 v{x}, s{sTag}, v{t}
v_cmp_lt_u32 vcc, 15, v{x}
s_cbranch_vccz {done}
s_and_b32 s{sT[1]}, s{sBud}, 3
s_cbranch_scc1 {lab}
buffer_load_dword v{t}, v{fa}, {W}, s{so} offen offset:128 sc1
s_waitcnt vmcnt(0)
v_xor_b32 v{x}, s{sTag}, v{t}
v_cmp_lt_u32 vcc, 15, v{x}
s_cbranch_vccnz {lab}
s_branch {done}""")
    A(f"""s_or_b32 s{sT[1]}, s{sTag}, s{sXcc}
v_cmp_ne_u32 vcc, s{sT[1]}, v{t}
s_cmp_eq_u64 vcc, 0
s_cselect_b32 s{sMode}, {0 if OPT['force_slow'] else 1}, 0""")


def gemm_addr():
    t = vT
    A(f"""v_and_b32 v{t[0]}, 1, v{vI}
v_lshrrev_b32 v{t[1]}, 1, v{vI}
v_and_b32 v{t[2]}, 6, v{t[1]}
s_movk_i32 s{sT[3]}, 0x78
v_bfe_u32 v{t[2]}, s{sT[3]}, v{t[2]}, 2
v_xor_b32 v{t[2]}, v{t[2]}, v{vQ}
v_lshl_add_u32 v{t[2]}, v{t[0]}, 2, v{t[2]}
v_lshlrev_b32 v{t[2]}, 4, v{t[2]}
v_lshl_add_u32 v{t[2]}, v{t[1]}, 7, v{t[2]}
v_lshl_add_u32 v{vBA[0]}, v{t[0]}, 10, v{t[2]}
v_xor_b32 v{vBA[1]}, 64, v{vBA[0]}
v_add_u32 v{vBA[2]}, 51200, v{vBA[0]}
v_add_u32 v{vBA[3]}, 51200, v{vBA[1]}
v_mul_u32_u24 v{vAS}, 144, v{t[1]}
v_lshl_add_u32 v{vAS}, v{t[0]}, 2, v{vAS}
v_lshl_add_u32 v{vAS}, v{vQ}, 3, v{vAS}
s_lshl_b32 s{sT[0]}, s{sW}, 5
v_add_u32 v{vAS}, s{sT[0]}, v{vAS}
v_and_b32 v{t[0]}, 6, v{vI}
v_xor_b32 v{t[0]}, v{t[0]}, v{vQ}
v_lshlrev_b32 v{t[0]}, 4, v{t[0]}
v_lshl_add_u32 v{t[0]}, v{vI}, 7, v{t[0]}
v_add_u32 v{vAR}, s{sXm}, v{t[0]}
v_xor_b32 v{vAR2}, 64, v{vAR}""")


def misc_setup():
    t = vT
    A(f'''s_lshr_b32 s{sT[2]}, s{sMem}, 3
s_lshl_b32 s{sR64}, s{sR128}, 1
s_add_u32 s{sR64}, s{sR64}, s{sT[2]}
s_and_b32 s{sS8}, s{sMem}, 7
s_lshl_b32 s{sFW}, s{sR128}, 8
s_lshl_b32 s{sT[1]}, s{sMem}, 4
s_add_u32 s{sFW}, s{sFW}, s{sT[1]}
s_lshl_b32 s{sT[1]}, s{sW}, 2
s_add_u32 s{sFW}, s{sFW}, s{sT[1]}
s_lshl_b32 s{sFK}, s{sG}, 9
s_add_u32 s{sFK}, s{sFK}, s{sT[1]}
s_lshl_b32 s{sT[1]}, s{sJ}, 4
s_add_u32 s{sFK}, s{sFK}, s{sT[1]}
s_lshl_b32 s{sAgg}, s{sMem}, 5
s_add_u32 s{sAgg}, s{sAgg}, s{sR128}
s_mul_i32 s{sAgg}, s{sAgg}, 640
s_add_u32 s{sAgg}, s{sAgg}, {WS_AGG}
s_cmp_eq_u32 s{sW}, 0
s_cselect_b32 s{sPub}, -1, 0
s_cselect_b32 s{sPub + 1}, 0xff, 0''')
    A(f's_lshl_b32 s{sT[0]}, s{sXs}, 1\ns_mul_i32 s{sT[1]}, s{sMem}, 5')
    for j in range(5):
        A(f"""s_add_u32 s{sT[2]}, s{sT[1]}, {j}
s_lshr_b32 s{sT[3]}, s{sT[2]}, 2
s_lshl_b32 s{sT[3]}, s{sT[3]}, 11
s_and_b32 s{sT[2]}, s{sT[2]}, 3
s_lshl_b32 s{sT[2]}, s{sT[2]}, 8
s_add_u32 s{sT[2]}, s{sT[2]}, s{sT[3]}
s_add_u32 s{sH[j]}, s{sT[2]}, s{sT[0]}""")
    tw, tr, ts = vU[0], vU[1], vU[2]
    A(f'''s_mul_i32 s{sT[0]}, s{sW}, 1280
s_add_u32 s{sT[0]}, s{sT[0]}, {L_TR}
v_mul_u32_u24 v{t[0]}, 80, v{vI}
v_lshl_add_u32 v{t[0]}, v{vQ}, 4, v{t[0]}
v_add_u32 v{tw}, s{sT[0]}, v{t[0]}
v_bfe_u32 v{t[1]}, v{vL}, 2, 2
v_mul_u32_u24 v{t[1]}, 160, v{t[1]}
v_and_b32 v{t[2]}, 3, v{vL}
v_lshl_add_u32 v{t[1]}, v{t[2]}, 4, v{t[1]}
v_lshrrev_b32 v{t[2]}, 1, v{vQ}
v_mul_u32_u24 v{t[3]}, 80, v{t[2]}
v_lshlrev_b32 v{t[2]}, 10, v{t[2]}
v_add3_u32 v{t[1]}, v{t[1]}, v{t[3]}, s{sT[0]}
v_and_b32 v{t[3]}, 1, v{vQ}
v_lshl_add_u32 v{tr}, v{t[3]}, 3, v{t[1]}
v_mul_u32_u24 v{t[3]}, 40960, v{t[3]}
v_lshl_add_u32 v{t[2]}, v{vI}, 4, v{t[2]}
v_add_u32 v{ts}, v{t[2]}, v{t[3]}''')
    park('tw', tw), park('tr', tr), park('ts', ts), park('bd', vBd), park('bd2', vBd2)
    A(f'''v_lshrrev_b32 v{t[0]}, 2, v{vI}
v_mul_u32_u24 v{t[0]}, 5120, v{t[0]}
v_and_b32 v{t[1]}, 3, v{vI}
v_lshl_add_u32 v{t[0]}, v{t[1]}, 4, v{t[0]}
v_lshl_add_u32 v{vUA}, v{vQ}, 6, v{t[0]}''')


def weave(items, extra, first, every):
    extra = list(extra)
    for i, it in enumerate(lines(items)):
        run(it)
        if extra and i >= first and (i - first) % every == 0:
            run(extra.pop(0))
    run(extra)


class Roles:
    def __init__(self, n):
        self.c = [VM() for _ in range(n)]

    def __call__(self, text, name=None):
        A(text)
        for c in self.c:
            c.n += 1
            if name is not None:
                c.t[name] = c.n

    def wait(self, *names):
        k = min(c.n - max(c.t[x] for x in names) for c in self.c)
        A(f's_waitcnt vmcnt({min(k, 63)})')
        for c in self.c:
            c.done = max(c.done, c.n - min(k, 63))

    def each(self, fns):
        lj = A.label('join')
        todo = [w for w in range(4) if fns[w]]
        labs = {w: A.label(f'w{w}') for w in todo}
        for w in todo:
            A.cond[labs[w]] = lambda c, w=w: c['w'] == w
            if w != todo[0] or len(todo) < 4:
                A(f's_cmp_eq_u32 s{sW}, {w}\ns_cbranch_scc1 {labs[w]}')
        if len(todo) < 4:
            A(f's_branch {lj}')
        for w in todo:
            A(f'{labs[w]}:')
            fns[w](self.c[w])
            if w != todo[-1]:
                A(f's_branch {lj}')
        A(f'{lj}:')

    def merged(self):
        for c in self.c[1:]:
            self.c[0].merge(c)
        return self.c[0]


def startup():
    t = vT
    R = Roles(4)

    def bs(vm, g0, g1):
        return [lambda g=g, j=j: b_dma(vm, g, j) for g in range(g0, g1) for j in (0, 2, 4)]

    def head1(vm):
        A(f"""v_min_u32 v{t[0]}, 39, v{vL}
s_mul_i32 s{sT[0]}, s{sMem}, 80
v_lshl_add_u32 v{t[3]}, v{t[0]}, 1, s{sT[0]}""")
        vm(f'global_load_ushort v{PAR}, v{t[3]}, {s2(P_LRE)}{NT}')
        vm(f'global_load_ushort v{PAR + 1}, v{t[3]}, {s2(P_LIM)}{NT}')
        vm(f'global_load_ushort v{PAR + 2}, v{t[3]}, {s2(P_LDT)}{NT}', 'par')

    def head3(vm):
        srd(R_T0, P_SK, 5120)
        srd(R_X, P_X, 2621440)
        A(f'''s_mul_i32 s{sT[1]}, s{sG}, 640
s_mov_b32 m0, {L_SS}
s_lshl_b32 s{sT[0]}, s{sR128}, 4
s_mov_b32 exec_hi, 0xff''')
        vm(f'buffer_load_dwordx4 v{vL16}, {s4(R_T0)}, s{sT[1]} offen{NT} lds', 'kv')
        A(f'''s_mov_b32 exec_hi, -1
s_add_u32 s{sT[0]}, s{sT[0]}, s{sMem}
s_mul_i32 s{sT[0]}, s{sT[0]}, 10240''')
        for z in range(10):
            vm(f'buffer_load_dwordx4 {v4(XP + 4 * z)}, v{vR}, {s4(R_X)}, s{sT[0]} offen offset:{z * 128}', 'xp')
    A(f's_load_dword s{sTag}, {s2(P_WS)}, 0')
    l3, lj = A.label('w3'), A.label('join')
    A.cond[l3] = lambda c: c['w'] == 3
    A(f's_cmp_eq_u32 s{sW}, 3\ns_cbranch_scc1 {l3}\ns_cmp_lg_u32 s{sW}, 1')
    with A.skip_if('s_cbranch_scc1', lambda c: c['w'] != 1):
        head1(R.c[1])
    R3 = Roles(0)
    R3.c = R.c[:3]
    kv_loads(R3)
    A(f's_branch {lj}\n{l3}:')
    head3(R.c[3])
    A(f'{lj}:')

    def scalars():
        A(f'''s_lshr_b32 s{sT[0]}, s{sJ}, 1
s_mul_i32 s{sT[0]}, s{sT[0]}, 5
s_mul_i32 s{sT[1]}, s{sG}, 80
s_add_u32 s{sCb}, s{sT[0]}, s{sT[1]}
s_and_b32 s{sT[1]}, s{sJ}, 1
s_lshl_b32 s{sT[1]}, s{sT[1]}, 1
s_lshr_b32 s{sT[0]}, s{sW}, 1
s_add_u32 s{sT[0]}, s{sT[0]}, s{sT[1]}
s_add_u32 s{sT[0]}, s{sT[0]}, s{sCb}
s_lshl_b32 s{sT[0]}, s{sT[0]}, 1
s_and_b32 s{sT[0]}, s{sT[0]}, 0xfffffffc
s_load_dword s{sD[0]}, {s2(P_SD)}, s{sT[0]}
s_add_u32 s{sT[0]}, s{sCb}, 4
s_lshl_b32 s{sT[0]}, s{sT[0]}, 1
s_and_b32 s{sT[0]}, s{sT[0]}, 0xfffffffc
s_load_dword s{sD[1]}, {s2(P_SD)}, s{sT[0]}
s_getreg_b32 s{sXcc}, hwreg(HW_REG_XCC_ID, 0, 4)
s_mov_b32 s{sBud}, {OPT['budget']}
s_mov_b32 s{sOnes}, 0x3f803f80''')
    with Cap() as cc:
        consts()
    cc.lines.remove('s_waitcnt lgkmcnt(0)')

    def tag():
        A(f"""s_waitcnt lgkmcnt(0)
s_lshr_b32 s{sTag}, s{sTag}, 4
s_mul_i32 s{sTag}, s{sTag}, 0x19660d
s_add_u32 s{sTag}, s{sTag}, 0x3c6ef35f
s_lshl_b32 s{sTag}, s{sTag}, 4""")

    def more():
        with Cap() as c:
            A(f'''s_lshl_b32 s{sX[6]}, s{sR128}, 11
s_lshl_b32 s{sT[0]}, s{sW}, 9
s_add_u32 s{sX[6]}, s{sX[6]}, s{sT[0]}
s_add_u32 s{sX[6]}, s{sX[6]}, {WS_RS}
v_and_b32 v{vRS}, 7, v{vI}
v_lshlrev_b32 v{vRS}, 4, v{vRS}
v_lshl_add_u32 v{vRS}, v{vQ}, 7, v{vRS}
s_mul_i32 s{sX[7]}, s{sMem}, 640
s_add_u32 s{sX[7]}, s{sX[7]}, {WS_CS}
v_lshlrev_b32 v{vRS + 1}, 3, v{vL}
v_lshlrev_b32 v{vRS + 2}, 3, v{vI}
v_and_b32 v{vFA}, 31, v{vL}
v_lshlrev_b32 v{vFA}, 4, v{vFA}
s_lshl_b32 s{sX[1]}, s{sS8}, 9
s_add_u32 s{sX[1]}, s{sX[1]}, {WS_FS}
v_and_b32 v{vFXa}, 31, v{vL}
v_lshlrev_b32 v{vFXa}, 2, v{vFXa}
s_lshl_b32 s{sX[2]}, s{sG}, 8
s_add_u32 s{sX[2]}, s{sX[2]}, {WS_FX}''')
            run(conv_setup())
            g2_setup(0)
            run(y_setup())
            for i, r in enumerate(vCA + vCB + YREG + G2REG):
                A(f'v_accvgpr_write_b32 a{A_CV + i}, v{r}')
            z_addr()
        return c.lines

    def w0(vm):
        A(f"""v_lshrrev_b32 v{t[1]}, 1, v{vL}
v_and_b32 v{t[0]}, 1, v{vL}
v_lshlrev_b32 v{t[0]}, 7, v{t[0]}
v_lshl_add_u32 v{t[0]}, v{t[1]}, 12, v{t[0]}
s_lshl_b32 s{sT[0]}, s{sR128}, 8
s_add_u32 s{sT[0]}, s{sT[0]}, {WS_FU}
v_add_u32 v{t[0]}, s{sT[0]}, v{t[0]}
s_lshl_b32 s{sT[0]}, s{sG}, 9
s_add_u32 s{sT[0]}, s{sT[0]}, {WS_FK - 6 * 128}
v_lshl_add_u32 v{t[1]}, v{vL}, 7, s{sT[0]}
v_cmp_lt_u32 vcc, 5, v{vL}
s_lshl_b32 s{sT[0]}, s{sG}, 8
s_add_u32 s{sT[0]}, s{sT[0]}, {WS_FX}
v_cndmask_b32 v{t[0]}, v{t[0]}, v{t[1]}, vcc
v_mov_b32 v{t[1]}, s{sT[0]}
v_cmp_lt_u32 vcc, 9, v{vL}
v_mov_b32 v{XS}, 0
v_cndmask_b32 v{t[0]}, v{t[0]}, v{t[1]}, vcc""")
        vm(f'buffer_load_dword a250, v{t[0]}, {W}, 0 offen')
        fx_store('')
        fx_store(' offset:128 sc1')
        vm.n += 2
        A(f'''v_mov_b32 v{XS + 1}, 0
v_mov_b32 v{XS + 2}, s{sTag}
v_mov_b32 v{XS + 3}, s{sTag}
s_add_u32 s{sT[0]}, s{sAgg}, {AGG_L}
s_mov_b32 exec_hi, 0xff''')
        vm(f'buffer_store_dwordx4 {v4(XS)}, v{vL16}, {W}, s{sAgg} offen sc1')
        vm(f'buffer_store_dwordx4 {v4(XS)}, v{vL16}, {W}, s{sT[0]} offen sc1')
        A('s_mov_b32 exec_hi, -1')

    def w1(vm):
        vm.wait('par')
        run(cc.lines)
    blocks = dict(A=dma_addr, S=scalars, M=misc_setup, C=lambda: c_loads(R), O=lambda: run(more()), T=tag,
                  G=lambda: (gemm_addr(), kv_addr(), k_addr()), K=lambda: run(k_loads(R)),
                  R=lambda: R.each([None, w1, w0, lambda vm: run(stats_work(vm))]))
    for b in OPT['order'].split(','):
        if b[0] == 'B':
            run(bs(R, int(b[1]), int(b[1]) + 1))
        elif b[0] == 'X':
            x_dma(R, int(b[1]))
        elif b[0] == '@':
            stamp(b[1:])
        else:
            blocks[b]()
    R.wait('kv')
    A('s_waitcnt lgkmcnt(0)\ns_barrier')
    stamp('kv_land')
    R(f'buffer_load_dword v{vFX}, v{vFXa}, {W}, s{sX[2]} offen sc1', 'fx')
    lg = LG()
    crd, fix = const_reads(lg)
    run(crd)
    va, vb = R.c[0], R.c[3]
    va.merge(R.c[1]), va.merge(R.c[2])
    l3, lj = A.label('w3'), A.label('join')
    A.cond[l3] = lambda c: c['w'] == 3
    A(f's_cmp_eq_u32 s{sW}, 3\ns_cbranch_scc1 {l3}')
    def nxt(v):
        out = []
        for b in OPT['post'].split(','):
            if b[0] == 'L':
                if v is vb:
                    out += [lambda g=int(b[1]): b_all(v, g)]
                else:
                    v.t['b', int(b[1])] = 0
                continue
            if b[0] == 'C':
                out.append(lambda: c_loads(v))
                continue
            out += bs(v, int(b[1]), int(b[1]) + 1) if b[0] == 'B' else [lambda b=b: x_dma(v, int(b[1]))] if b[0] == 'X' else \
                [atom(k_loads(v)[:3]), atom(k_loads(v)[3:5]), atom(k_loads(v)[5:])]
        return out
    la = copy.deepcopy(lg)
    rd, it = kv_work(va, la)
    run(rd)
    weave(it[:-1], nxt(va), OPT['wv0'], OPT['wv'])
    mode_check(va)
    run(it[-1])
    A(f's_branch {lj}\n{l3}:')
    A(f'''s_lshl_b32 s{sT[0]}, s{sMem}, 3
s_and_b32 s{sT[1]}, s{sR128}, 7
s_add_u32 s{sT[0]}, s{sT[0]}, s{sT[1]}
s_mul_i32 s{sT[0]}, s{sT[0]}, 6400
s_mov_b32 exec_hi, 0xff''')
    for z in range(10):
        vb(f'buffer_load_dwordx4 {v4(XP + 4 * z)}, v{vR}, {s4(R_T0)}, s{sT[0]} offen offset:{z * 128}', 'xp')
    A('s_mov_b32 exec_hi, -1')
    run(nxt(vb))
    run([f'v_mov_b32 v{XS + 4 + i}, -1' for i in range(4)])
    A(f'''s_sub_u32 s{sT[0]}, s{sYO[0]}, 6144
s_add_u32 s{sT[1]}, s{sT[0]}, 4096
s_bitcmp1_b32 s{sJ}, 0
s_movk_i32 s{sT[2]}, 0x7421
s_cselect_b32 s{sT[2]}, 0x6530, s{sT[2]}
v_lshrrev_b32 v{t[0]}, 5, v{vL}
v_lshlrev_b32 v{t[0]}, 2, v{t[0]}
v_lshrrev_b32 v{t[0]}, v{t[0]}, s{sT[2]}
v_and_b32 v{t[1]}, 31, v{vL}
v_lshlrev_b32 v{t[1]}, 4, v{t[1]}
v_bfe_u32 v{t[2]}, v{t[0]}, 8, 3
v_and_b32 v{t[0]}, 7, v{t[0]}
v_lshl_add_u32 v{t[0]}, v{t[0]}, 9, v{t[1]}
v_lshl_add_u32 v{t[1]}, v{t[2]}, 9, v{t[1]}
s_add_u32 s{sT[2]}, s{sCb}, 4
s_lshl_b32 s{sT[2]}, s{sT[2]}, 12
s_add_u32 s{sT[2]}, s{sT[2]}, {WS_Y}''')
    for i in range(8 * (not OPT['dbg'] & 1)):
        vb(f'buffer_store_dwordx4 {v4(XS + 4)}, v{vL16}, {W}, s{sT[i >> 2]} offen offset:{(i & 3) * 1024} sc1')
    for i in range(2 * (not OPT['dbg'] & 1)):
        vb(f'buffer_store_dwordx4 {v4(XS + 4)}, v{t[i]}, {W}, s{sT[2]} offen sc1')
    mode_check(vb)
    run(colsum_work(vb))
    A(f'{lj}:\ns_waitcnt lgkmcnt(0)')
    va.merge(vb)
    vm = va
    stamp('kv_st')
    run(fix[1:])
    if OPT['cfs'] < 0:
        run(cf_work(vm, LG()))
    stamp('cf_st')
    vm.wait(('x', 1), ('b', 0))
    stamp('land')
    return vm


class G1:
    def __init__(self, layer, vm):
        self.layer, self.vm, self.lg, self.side = layer, vm, LG(), Side()
        self.order = list(range(20)) if layer == 0 else list(range(4, 20)) + list(range(4))

    def rd(self, s, j):
        k = self.order[s]
        idx = (k >> 1) * 5 + j
        a, off = (vBA[k & 1], idx * 2048) if idx < 25 else (vBA[2 + (k & 1)], (idx - 25) * 2048)
        self.lg(f'ds_read_b128 {v4(BF + 20 * (s & 1) + 4 * j)}, v{a} offset:{off}', ('B', s, j))

    def rda(self, s, m):
        self.lg(f'ds_read_b128 {v4(AF + 8 * (s & 1) + 4 * m)}, v{vAR2 if s & 1 else vAR} '
                f'offset:{((2 * (s >> 1) + m) % 7) * 8192}', ('A', s, m))

    def ld(self, f):
        s, m = divmod(f, 2)
        s = self.order[s]
        if s == 16:
            A(f's_add_u32 s{sL[m]}, s{sL[m]}, 4096')
        if s == 0:
            A(f's_sub_u32 s{sL[m]}, s{sL[m]}, 4096')
        self.vm(f'buffer_load_dwordx4 {v4(RING + 4 * (f % NR))}, v{vUA}, {W}, s{sL[m]} offen '
                f'offset:{(s % 16) * 256} sc1', ('u', f))

    def step(self, s):
        vm, lg, layer = self.vm, self.lg, self.layer
        if s in (0, 4, 8, 12, 16):
            stamp(f'.s{s}_{layer}', 2)
        if layer == 0:
            need = [('x', s + 2)] if s & 1 and s < 19 else []
            if (s + 1) % 4 == 0 and s < 19:
                vm.wait(('b', (s + 1) // 4), *need)
                A('s_barrier')
            elif need:
                vm.wait(*need)
        else:
            vm.wait(('u', 2 * s + 1))
            if s == 15:
                A('s_barrier')
        for j in range(5):
            if not OPT['gw'] or s == 0:
                lg.wait(('B', s, j))
            elif j in (0, 3):
                lg.wait(('B', s, 2 if j == 0 else 4))
            if layer == 0 and s == 19 and j == 0:
                A('s_barrier')
            for m in range(2):
                d = ACC + 8 * j + 4 * m
                c = '0' if s == 0 else v4(d)
                a = RING + 4 * ((2 * s + m) % NR) if layer else AF + 8 * (s & 1) + 4 * m
                A(f'v_mfma_f32_16x16x32_bf16 {v4(d)}, {v4(a)}, {v4(BF + 20 * (s & 1) + 4 * j)}, {c}')
                if m == 0 and s < 19:
                    if j == 0 and layer == 0:
                        self.rda(s + 1, 0)
                        self.rda(s + 1, 1)
                    self.rd(s + 1, j)
                if layer == 0 or m == 1:
                    k = 2 * j + m
                    self.side.run(s, 10 - k if layer == 0 else 5 - j)


c_issued = [0]


def c_load(vm):
    i = c_issued[0]
    c_issued[0] += 1
    if i and i % 4 == 0:
        A(f's_add_u32 s{sL[0]}, s{sL[0]}, 4096')
    vm(f'buffer_load_dwordx4 {a4(4 * i)}, v{vL16}, {W}, s{sL[0]} offen offset:{(i % 4) * 1024} sc1', 'cf')


def k_addr():
    A(f'''s_and_b32 s{sT[0]}, s{sJ}, 1
s_lshl_b32 s{sT[0]}, s{sT[0]}, 1
s_add_u32 s{sT[0]}, s{sT[0]}, s{sCb}
s_lshl_b32 s{sT[0]}, s{sT[0]}, 12
s_lshl_b32 s{sT[1]}, s{sW}, 10
s_add_u32 s{sX[3]}, s{sT[0]}, s{sT[1]}
s_add_u32 s{sX[4]}, s{sX[3]}, 4096
s_add_u32 s{sX[5]}, s{sCb}, 4
s_lshl_b32 s{sX[5]}, s{sX[5]}, 12
s_add_u32 s{sX[5]}, s{sX[5]}, s{sT[1]}
s_add_u32 s{sT[1]}, s{sT[1]}, {L_K + 32}
v_add_u32 v{vKO}, s{sT[1]}, v{vL16}
v_lshrrev_b32 v{vT[0]}, 1, v{vL}
v_mul_u32_u24 v{vT[0]}, 4160, v{vT[0]}
v_and_b32 v{vT[1]}, 1, v{vL}
v_lshl_add_u32 v{vT[0]}, v{vT[1]}, 4, v{vT[0]}
v_add_u32 v{vKP}, {L_K}, v{vT[0]}''')


def k_loads(vm):
    it = [lambda: srd(R_T1, P_SSK, 2621440)]
    for sl in range(3):
        it.append(lambda sl=sl: vm(f'buffer_load_dwordx4 {v4(KA + 4 * sl)}, v{vL16}, {s4(R_T1)}, s{sX[3 + sl]} offen'))
        it.append(lambda sl=sl: vm(f'buffer_load_dwordx4 {v4(KB + 4 * sl)}, v{vL16}, {s4(R_T1)}, s{sX[3 + sl]} offen offset:4', 'K'))
    return it


def k_work(vm):
    it = [lambda: vm.wait('K')]
    for sl in range(3):
        it[-1] = atom(it[-1], f'ds_write_b128 v{vKO}, {v4(KA + 4 * sl)} offset:{sl * 8320}')
        it.append(atom([f'v_alignbit_b32 v{KB + 4 * sl + i}, v{KB + 4 * sl + i}, v{KA + 4 * sl + i}, 16' for i in range(4)],
                       f'ds_write_b128 v{vKO}, {v4(KB + 4 * sl)} offset:{sl * 8320 + 4160}'))

    def pads():
        A(f's_cmp_lg_u32 s{sW}, 0')
        with A.skip_if('s_cbranch_scc1', lambda c: c['w'] != 0):
            run([f'v_mov_b32 v{216 + i}, 0' for i in range(4)])
            A(f's_mov_b64 exec, 0xfff\nds_write_b128 v{vKP}, {v4(216)}\ns_mov_b64 exec, 1')
            for sl in range(3):
                A(f'ds_write_b16 v{vKP}, v{KA + 4 * sl} offset:{sl * 8320 + 4160 + 30}')
            A('s_mov_b64 exec, -1')
    return it + [pads]


def front(vm):
    g = G1(0, vm)
    lg, S = g.lg, g.side
    A('s_barrier')
    g.rda(0, 0), g.rda(0, 1)
    for j in range(5):
        g.rd(0, j)
    for p in (2, 3):
        if ('x', p) not in vm.t:
            x_dma(vm, p)
    if OPT['cfs'] >= 0:
        S.spread(OPT['cfs'], OPT['cfper'], cf_work(vm, lg))
    if 'K' not in vm.t:
        S.spread(OPT['kls'], 3, k_loads(vm))
    S.add(0, lambda: x_dma(vm, 4), lambda: x_dma(vm, 5))
    for p in range(6, 20):
        S.add(max(1, p - 6), lambda p=p: x_dma(vm, p))
    for gi in range(1, 5):
        if ('b', gi) in vm.t:
            continue
        for n, j in enumerate((0, 2, 4)):
            S.add(OPT[f'b{gi}s'] + n // 2, lambda gi=gi, j=j: b_dma(vm, gi, j))
    S.add(OPT['kvf'], atom(lambda: vm.wait('kvst'), f's_add_u32 s{sT[0]}, s{sFK}, {WS_FK}',
                           lambda: flag_store(f's{sT[0]}', True, vm)))
    S.add(OPT['cff'], atom(lambda: vm.wait('cfst'), f's_add_u32 s{sT[0]}, s{sFK}, {WS_FS}',
                           lambda: flag_store(f's{sT[0]}', False, vm)))
    fk = f'buffer_load_dwordx4 {v4(vFP)}, v{vFA}, {W}, s{sX[0]} offen sc1'
    S.add(OPT['fsp'], atom(f's_and_b32 s{sX[0]}, s{sFK}, 0xe00', f's_add_u32 s{sX[0]}, s{sX[0]}, {WS_FK}', lambda: vm(fk, 'fk')))

    def fetch():
        vm.wait('fk')
        check_tags([vFP + i for i in range(4)], fk)
        for sl in range(3):
            A(f's_add_u32 s{sT[0]}, s{sX[3 + sl]}, {WS_KV}\ns_lshl_b32 m0, s{sW}, 10')
            if sl:
                A(f's_add_u32 m0, m0, {L_KV + sl * 4608}')
            vm(f'buffer_load_dwordx4 v{vL16}, {W}, s{sT[0]} offen sc1 lds', 'kvT')
    assert OPT['fsc'] >= 7
    S.add(OPT['fsc'], fetch)
    S.add(8, f'''v_lshrrev_b32 v{vT[0]}, 5, v{vL}
v_mul_u32_u24 v{vT[0]}, {4608 - 512}, v{vT[0]}
v_add_u32 v{vT[0]}, v{vT[0]}, v{vL16}''', [f'v_mov_b32 v{216 + i}, 0' for i in range(4)],
          lambda: lg(f'ds_write_b128 v{vT[0]}, {v4(216)} offset:{L_KV + 4096}'),
          lambda: lg(f'ds_write_b128 v{vT[0]}, {v4(216)} offset:{L_KV + 4608 + 4096}'))
    rsl = [f'buffer_load_dwordx3 {v3(RSL)}, v{vRS}, {W}, s{sX[6]} offen sc1',
           f'buffer_load_dwordx2 {v2(RSL + 4)}, v{vRS + 1}, {W}, s{sX[7]} offen sc1',
           f'buffer_load_dwordx2 {v2(RSL + 6)}, v{vRS + 2}, {W}, s{sX[7]} offen offset:512 sc1']
    fc = f'buffer_load_dwordx4 {v4(vFP)}, v{vFA}, {W}, s{sX[1]} offen sc1'
    S.add(OPT['late'], [lambda t=t: vm(t, 'rs') for t in rsl])
    if OPT['zl']:
        S.spread(OPT['late'] + 1, 3, z_loads(vm)[3:])
    S.add(OPT['csp'], lambda: vm(fc, 'fc'))

    def ccheck():
        vm.wait('fc')
        check_tags([vFP + i for i in range(4)], fc)
        A(f'''s_mul_i32 s{sL[0]}, s{sS8}, 200
s_mul_i32 s{sT[0]}, s{sW}, 50
s_add_u32 s{sL[0]}, s{sL[0]}, s{sT[0]}
s_lshl_b32 s{sL[0]}, s{sL[0]}, 10
s_add_u32 s{sL[0]}, s{sL[0]}, {WS_CF}''')
    S.add(OPT['csc'], ccheck)
    for i in range(OPT['cl0']):
        S.add(OPT['csc'] + i * (20 - OPT['csc']) // OPT['cl0'], lambda: c_load(vm))

    def rscheck():
        vm.wait('rs')
        check_tags([RSL + 2, RSL + 2, RSL + 5, RSL + 7], rsl)
    S.q.setdefault(OPT['rsc'], []).insert(0, rscheck)
    c = lambda j: CSL + j
    S.add(19, f'''v_mov_b32 v{c(0)}, v{RSL + 4}
v_mov_b32 v{c(1)}, v{RSL + 4}
v_mov_b32 v{c(4)}, v{RSL + 6}
v_permlane16_swap_b32 v{c(0)}, v{c(1)}
v_mov_b32 v{c(2)}, v{c(0)}
v_mov_b32 v{c(3)}, v{c(1)}
v_permlane32_swap_b32 v{c(0)}, v{c(2)}
v_permlane32_swap_b32 v{c(1)}, v{c(3)}''')
    S.add(19, [f'v_mov_b32_dpp v{MM + t}, v{RSL} row_newbcast:{t} {DPPM}\n'
               f'v_mov_b32_dpp v{RR + t}, v{RSL + 1} row_newbcast:{t} {DPPM}' for t in range(8)])
    for s in range(20):
        g.step(s)
    assert not g.side.left()
    stamp('g1_0')
    kw = k_work(vm)
    kw += [[]] * (7 - len(kw))
    scan_1(0, [[k] + [lambda: c_load(vm)] * (i < OPT['cs1']) for i, k in enumerate(kw)], lambda: vm.wait('kvT'))
    lg = LG()
    h1, h2 = horner(0, vm, lg)
    weave(h1, [lambda: c_load(vm)] * OPT['cb'], 10, 6)
    for i, r in enumerate(vCA + vCB):
        A(f'v_accvgpr_read_b32 v{r}, a{A_CV + i}')
    for k in range(2):
        for i in range(1, 4):
            A(f'v_add_u32 v{vCA[k] + i}, {1024 * i}, v{vCA[k]}')
    return vm, lg


MAS, PP, AGL, GR = 88, 244, 88, 88
LT = [128, 144, 160, 176, 104]
PK = [98, 120]
vTW, vTR, vTS = 254, 255, 47


def scan_1(layer, extra=[], last=None):
    b = lambda j, ta: ACC + 8 * j + ta
    if layer == 0:
        for j in range(5):
            sel = 'op_sel:[0,1,0] op_sel_hi:[1,1,1]' if j & 1 else 'op_sel_hi:[1,0,1]'
            for p in range(4):
                d = ACC + 8 * j + 2 * p
                A(f'v_pk_fma_f32 {v2(d)}, {v2(MM + 2 * p)}, {v2(CSL + (j & ~1))}, {v2(d)} {sel} '
                  f'neg_lo:[1,0,0] neg_hi:[1,0,0]')
        for j in range(5):
            for p in range(4):
                d = ACC + 8 * j + 2 * p
                A(f'v_pk_mul_f32 {v2(d)}, {v2(d)}, {v2(RR + 2 * p)}')
    extra = list(extra)
    for ta in range(1, 8):
        if extra:
            run(extra.pop(0))
        for j in range(5):
            A(f'v_fmac_f32 v{b(j, ta)}, v{LR + j}, v{b(j, ta - 1)}')
        for j in range(5):
            A(f'v_fmac_f32_dpp v{b(j, ta)}, v{b(j, ta - 1)}, v{LS + j} {SWP}')
    A(f'''v_add_u32 v{vT[0]}, {L_AS}, v{vAS}
v_min_u32 v{vT[1]}, 39, v{vL}
v_lshlrev_b32 v{vU[2]}, 3, v{vT[1]}
v_add_u32 v{vU[2]}, {L_G}, v{vU[2]}
v_mov_b32 v{vU[0]}, 0
v_mov_b32 v{vU[1]}, 0''')
    for j in range(5):
        A(f'ds_write_b32 v{vT[0]}, v{b(j, 7)} offset:{j * 1152}')
    A(f'''ds_write_b64 v{vU[2]}, {v2(vU[0])}
v_mul_u32_u24 v{vU[4]}, 144, v{vT[1]}
v_add_u32 v{vU[4]}, {L_AS}, v{vU[4]}''')
    if last:
        last()
    A('s_waitcnt lgkmcnt(0)\ns_barrier')
    stamp(f'scan1_{layer}')


def horner(layer, vm, lg):
    it = [lambda i=i: lg(f'ds_read_b128 {v4(MAS + 4 * i)}, v{vU[4]} offset:{16 * i}', ('as', i)) for i in range(8)]
    for s in range(1, 16):
        if s == 1 or s % 2 == 0:
            it.append(lambda s=s: lg.wait(('as', s // 2)))
        it += cmul(MAS + 2 * s, MAS + 2 * s - 2, mL8, MAS + 2 * s)

    def pub():
        A(f'''v_mov_b32 v{MAS + 32}, s{sTag}
v_mov_b32 v{MAS + 33}, s{sTag}
s_add_u32 s{sT[0]}, s{sAgg}, {layer * AGG_L + 16 * 640}
s_mov_b64 exec, {s2(sPub)}''')
        A(f'buffer_store_dwordx4 {v4(MAS + 30)}, v{vL16}, {W}, s{sT[0]} offen sc1')
        A('s_mov_b64 exec, -1')
        stamp(f'agg_pub_{layer}')
    it.append(pub)
    first, it = it, []
    it.append(f'v_subrev_u32 v{vU[4]}, {L_AS - L_P}, v{vU[4]}')
    it.append(lambda: lg(f'ds_write_b64 v{vU[4]}, {v2(vU[0])} offset:8'))
    it += [lambda i=i: lg(f'ds_write_b128 v{vU[4]}, {v4(MAS + 4 * i)} offset:{16 + 16 * i}') for i in range(8)]
    it.append(f'v_add_u32 v{vU[4]}, {L_P + 8}, v{vAS}')
    it += [lambda j=j: lg(f'ds_read_b32 v{PP + 2 * j}, v{vU[4]} offset:{j * 1152}', 'pp') for j in range(5)]
    it += [f'v_and_b32 v{vU[1]}, 1, v{vI}', f'v_cvt_f32_u32 v{vU[1]}, v{vU[1]}', f'v_fma_f32 v{vU[1]}, 2.0, v{vU[1]}, -1.0']
    it.append(lambda: lg.wait('pp'))
    it += [f'v_mul_f32_dpp v{PP + 2 * j + 1}, v{PP + 2 * j}, v{vU[1]} {SWP}' for j in range(5)]
    return first, it


def agg_ld(layer):
    pre = f'''s_lshl_b32 s{sX[3]}, s{sW}, 2
s_sub_u32 s{sX[3]}, 12, s{sX[3]}
s_mul_i32 s{sX[3]}, s{sX[3]}, 640
s_add_u32 s{sX[3]}, s{sX[3]}, s{sAgg}
s_add_u32 s{sX[3]}, s{sX[3]}, {layer * AGG_L}
v_min_u32 v{vU[0]}, 39, v{vL}
v_lshlrev_b32 v{vU[0]}, 4, v{vU[0]}'''
    return pre, [f'buffer_load_dwordx3 {v3(AGL + 4 * z)}, v{vU[0]}, {W}, s{sX[3]} offen offset:{z * 640} sc1' for z in range(4)]


def scan_2(layer, vm, ld, hook={}):
    lg = LG()
    t = vT
    A(f'''v_lshrrev_b32 v{t[0]}, 1, v{vI}
v_mul_u32_u24 v{t[1]}, 80, v{t[0]}
v_add_u32 v{t[1]}, {L_L}, v{t[1]}
v_lshlrev_b32 v{t[0]}, 3, v{t[0]}
v_add_u32 v{t[0]}, {L_G}, v{t[0]}''')
    for j in range(5):
        for c in range(4):
            lg(f'ds_read_b128 {v4(LT[j] + 4 * c)}, v{t[1]} offset:{j * 640 + 16 * c}', ('L', j))
    A('\n'.join([unpark('tw', vTW), unpark('tr', vTR), unpark('ts', vTS)]))
    vm.wait('agg')
    check_tags([AGL + 2, AGL + 6, AGL + 10, AGL + 14], ld, x=t[3], y=t[4], inline=2)
    stamp(f'agg_in_{layer}')
    for z in range(1, 4):
        A('\n'.join(cmul(AGL + 4 * z, AGL + 4 * z - 4, mL128, AGL + 4 * z)))
    A('\n'.join(cmul(AGL, AGL + 12, mW)))
    A(f'''s_mov_b32 exec_hi, 0xff
ds_add_f32 v{vU[2]}, v{AGL}
ds_add_f32 v{vU[2]}, v{AGL + 1} offset:4
s_mov_b32 exec_hi, -1''')
    if 'fold' in hook:
        hook['fold']()
    A('s_waitcnt lgkmcnt(0)\ns_barrier')
    lg = LG()
    for j in range(5):
        lg(f'ds_read_b64 {v2(GR + 2 * j)}, v{t[0]} offset:{j * 64}', ('G', j))
    hb = WS_H if layer == 0 else WS_H2

    def xy(j):
        lg.wait(('G', j))
        p, a, gq = v2(PP + 2 * j), v2(VA + 2 * j), v2(GR + 2 * j)
        A(f'v_pk_fma_f32 {p}, {a}, {gq}, {p} op_sel:[0,0,0] op_sel_hi:[1,0,1]')
        A(f'v_pk_fma_f32 {p}, {a}, {gq}, {p} op_sel:[1,1,0] op_sel_hi:[0,1,1] neg_hi:[1,0,0]')

    def upd(j):
        p = v2(PP + 2 * j)
        for k in range(4):
            d = v2(ACC + 8 * j + 2 * k)
            A(f'v_pk_fma_f32 {d}, {v2(LT[j] + 2 * k)}, {p}, {d} op_sel:[0,0,0] op_sel_hi:[1,0,1]')
        for k in range(4):
            d = v2(ACC + 8 * j + 2 * k)
            A(f'v_pk_fma_f32 {d}, {v2(LT[j] + 8 + 2 * k)}, {p}, {d} op_sel:[0,1,0] op_sel_hi:[1,1,1]')
        pk = PK[j & 1]
        for d in range(4):
            A(f'v_cvt_pk_bf16_f32 v{pk + d}, v{ACC + 8 * j + 2 * d}, v{ACC + 8 * j + 2 * d + 1}')
        lg(f'ds_write_b128 v{vTW}, {v4(pk)}')
        lg(f'ds_read_b64_tr_b16 {v2(ACC + 8 * j + 4)}, v{vTR}')
        lg(f'ds_read_b64_tr_b16 {v2(ACC + 8 * j + 6)}, v{vTR} offset:640', ('T', j))

    def st(j):
        A(f's_add_u32 s{sT[1]}, s{sH[j]}, {hb}')
        lg.wait(('T', j))
        mode_stores([f'buffer_store_dwordx4 {v4(ACC + 8 * j + 4)}, v{vTS}, {W}, s{sT[1]} offen'])
        vm.n += 1
        vm.t['hst'] = vm.n
    xy(0), xy(1)
    lag = OPT['lag']
    for j in range(5 + lag):
        if j < 5:
            upd(j)
        if j < 3:
            xy(j + 2)
        if j >= lag:
            st(j - lag)
        if j in hook:
            hook[j](lg)
    stamp(f'h_st_{layer}')


def h_flag(layer, vm):
    vm.wait('hst')
    A(f's_add_u32 s{sT[2]}, s{sFW}, {WS_FH + layer * 4096}')
    flag_store(f's{sT[2]}', True, vm)
    stamp(f'h_flag_{layer}')


CA, CB, CX, CY = 128, 160, 192, 104
vCA, vCB = [232, 236], [240, 241]
JSET = [[1, 2, 4, 7], [0, 3, 5, 6]]


def conv_setup():
    t = vT
    return lines(f"""v_add_u32 v{t[0]}, 1, v{vI}
v_and_b32 v{t[1]}, 1, v{t[0]}
v_mul_u32_u24 v{t[1]}, 4160, v{t[1]}
v_lshrrev_b32 v{t[0]}, 1, v{t[0]}
v_lshl_add_u32 v{t[1]}, v{t[0]}, 2, v{t[1]}
v_lshl_add_u32 v{t[1]}, v{vQ}, 4, v{t[1]}
v_sub_u32 v{t[0]}, 15, v{vI}
v_lshlrev_b32 v{t[0]}, 5, v{t[0]}
v_lshl_add_u32 v{t[0]}, v{vQ}, 4, v{t[0]}
s_lshr_b32 s{sT[0]}, s{sW}, 1
s_and_b32 s{sT[1]}, s{sW}, 1
s_lshl_b32 s{sT[1]}, s{sT[1]}, 8
s_mul_i32 s{sX[4]}, s{sT[0]}, 8320
s_add_u32 s{sX[4]}, s{sX[4]}, s{sT[1]}
s_add_u32 s{sX[4]}, s{sX[4]}, {L_K}
v_add_u32 v{vCA[0]}, s{sX[4]}, v{t[1]}
s_mul_i32 s{sX[4]}, s{sT[0]}, 4608
s_add_u32 s{sX[4]}, s{sX[4]}, s{sT[1]}
v_add_u32 v{vCB[0]}, s{sX[4]}, v{t[0]}
s_lshl_b32 s{sT[1]}, s{sW}, 7
s_add_u32 s{sX[4]}, s{sT[1]}, {L_K + 2 * 8320}
v_add_u32 v{vCA[1]}, s{sX[4]}, v{t[1]}
s_add_u32 s{sX[4]}, s{sT[1]}, {L_KV + 2 * 4608}
v_add_u32 v{vCB[1]}, s{sX[4]}, v{t[0]}""")


class Conv:
    def __init__(self, units, lg):
        self.lg, self.seq, self.todo, self.issued = lg, [], [], set()
        free, seen = {}, set()
        for k, u, js, acc in units:
            first, last = {}, {}
            for a in range(max(js), -1, -1):
                for j in js:
                    if j < a:
                        continue
                    for f in (('A', a), ('B', j - a)):
                        first.setdefault(f, len(self.seq))
                        last[f] = len(self.seq)
                    d = acc + 4 * js.index(j)
                    self.seq.append((k, u, a, j - a, d, d in seen))
                    seen.add(d)
            for f, need in first.items():
                self.todo.append((max(free.get(f, -1), need - OPT['look']), need, (k, u, f)))
            free.update(last)
        self.todo.sort(key=lambda x: x[:2])

    def rd(self, key):
        k, u, (kind, x) = key
        self.issued.add(key)
        if kind == 'A':
            o = 16 * u + 128 * (x & 1)
            self.lg(f'ds_read2_b32 {v2(CA + 4 * x)}, v{vCA[k] + (x >> 1)} offset0:{o} offset1:{o + 1}')
            self.lg(f'ds_read2_b32 {v2(CA + 4 * x + 2)}, v{vCA[k] + (x >> 1)} offset0:{o + 2} offset1:{o + 3}', key)
        else:
            self.lg(f'ds_read_b128 {v4(CB + 4 * x)}, v{vCB[k]} offset:{64 * u + 512 * (7 - x)}', key)

    def emit(self, n0, n1, side):
        todo = self.todo
        while n0 == 0 and todo[0][0] < 0 and todo[0][1] < 4:
            self.rd(todo.pop(0)[2])
        for gn in range(n0, n1):
            k, u, a, b, d, chain = self.seq[gn]
            self.lg.wait((k, u, ('A', a)), (k, u, ('B', b)))
            A(f'v_mfma_f32_16x16x32_bf16 {v4(d)}, {v4(CA + 4 * a)}, {v4(CB + 4 * b)}, {v4(d) if chain else 0}')
            did = 0
            while todo and todo[0][0] <= gn and (did < 1 or todo[0][1] <= gn + 3):
                self.rd(todo.pop(0)[2])
                did += 1
            if not did or gn % 4 == 3:
                side.run(gn // 4, 4 - gn % 4)

    def force(self, keys):
        for it in [x for x in self.todo if x[2] in keys]:
            self.todo.remove(it)
            self.rd(it[2])


KVM, KVX = 88, 96
YREG = [246, 247, 248, 249, 250, 251, 252]
yS, yKm, yKx, yPw, yPr, ySr, ySw = YREG


def y_setup():
    t = vT
    return lines(f"""s_and_b32 s{sT[0]}, s{sJ}, 1
s_lshl_b32 s{sT[0]}, s{sT[0]}, 1
s_lshr_b32 s{sT[1]}, s{sW}, 1
s_add_u32 s{sT[0]}, s{sT[0]}, s{sT[1]}
s_add_u32 s{sT[0]}, s{sT[0]}, s{sCb}
s_bitcmp1_b32 s{sT[0]}, 0
s_cselect_b32 s{sX[5]}, 16, 0
s_lshr_b32 s{sD[0]}, s{sD[0]}, s{sX[5]}
s_and_b32 s{sDm[0]}, s{sD[0]}, 0xffff
s_lshl_b32 s{sDm[1]}, s{sD[0]}, 16
s_bitcmp1_b32 s{sCb}, 0
s_cselect_b32 s{sX[5]}, 16, 0
s_lshr_b32 s{sD[1]}, s{sD[1]}, s{sX[5]}
s_and_b32 s{sDm[2]}, s{sD[1]}, 0xffff
s_lshl_b32 s{sDm[3]}, s{sD[1]}, 16
s_lshl_b32 s{sYO[0]}, s{sT[0]}, 12
s_and_b32 s{sT[0]}, s{sW}, 1
s_lshl_b32 s{sT[0]}, s{sT[0]}, 11
s_add_u32 s{sYO[0]}, s{sYO[0]}, s{sT[0]}
s_add_u32 s{sYO[0]}, s{sYO[0]}, {WS_Y}
s_mul_i32 s{sT[1]}, s{sT[1]}, 4608
s_sub_u32 s{sT[1]}, s{sT[1]}, s{sT[0]}
s_add_u32 s{sT[1]}, s{sT[1]}, {L_KV + 4088 - 3 * 512}
v_lshlrev_b32 v{yS}, 5, v{vI}
v_lshl_add_u32 v{yS}, v{vQ}, 3, v{yS}
v_sub_u32 v{yKm}, s{sT[1]}, v{yS}
s_bitcmp1_b32 s{sJ}, 0
s_movk_i32 s{sT[0]}, 0x7421
s_cselect_b32 s{sT[0]}, 0x6530, s{sT[0]}
s_lshl_b32 s{sT[1]}, s{sW}, 2
s_lshr_b32 s{sT[0]}, s{sT[0]}, s{sT[1]}
s_and_b32 s{sT[0]}, s{sT[0]}, 7
s_lshl_b32 s{sT[0]}, s{sT[0]}, 9
s_add_u32 s{sYO[1]}, s{sCb}, 4
s_lshl_b32 s{sYO[1]}, s{sYO[1]}, 12
s_add_u32 s{sYO[1]}, s{sYO[1]}, s{sT[0]}
s_add_u32 s{sYO[1]}, s{sYO[1]}, {WS_Y}
s_sub_u32 s{sT[0]}, {L_KV + 2 * 4608 + 4088}, s{sT[0]}
v_sub_u32 v{yKx}, s{sT[0]}, v{yS}
s_lshl_b32 s{sT[0]}, s{sW}, 12
s_add_u32 s{sT[1]}, s{sT[0]}, {L_PS}
v_add_u32 v{ySw}, s{sT[1]}, v{vL16}
s_add_u32 s{sT[1]}, s{sT[0]}, {L_PM}
v_add_u32 v{yPw}, s{sT[1]}, v{vL16}
s_xor_b32 s{sT[1]}, s{sT[0]}, 4096
s_add_u32 s{sT[1]}, s{sT[1]}, {L_PM}
v_add_u32 v{yPr}, s{sT[1]}, v{vL16}
s_lshl_b32 s{sT[1]}, s{sW}, 10
s_add_u32 s{sT[1]}, s{sT[1]}, {L_PS}
v_add_u32 v{ySr}, s{sT[1]}, v{vL16}""")


def y_dterm(acc, kv, dlo, dhi):
    sel = [(1, dhi), (1, dlo), (0, dhi), (0, dlo)]
    return [f'v_dot2_f32_bf16 v{acc + r}, v{kv + sel[r][0]}, s{sel[r][1]}, v{acc + r}' for r in range(4)]


def conv(vm, lg):
    S = Side()
    e = S.spread(0, 3, horner(0, vm, lg)[1])
    left = 50 - c_issued[0] - OPT['cl2']
    for i in range(left):
        S.add(i * OPT['clend'] // left, lambda: c_load(vm))
    S.spread(0, 1, z_loads(vm)[:3 if OPT['zl'] else 9])
    S.add(20, lambda: vm.wait('xt', 'dsk'),
          [lambda m=m: lg(f'ds_read_b64 a[{A_X + 2 * m}:{A_X + 2 * m + 1}], v{vXT} offset:{32 * m}') for m in range(5)])
    if OPT['prefetch'] & 2:
        S.add(10, atom(code_touch()))
    pre, ld = agg_ld(0)
    S.spread(OPT['aggl'] - 2, 4, pre)
    for z in range(4):
        S.add(OPT['aggl'] + z // 2, lambda z=z: vm(ld[z], 'agg'))
    cv = Conv([(0, u, list(range(8)), CX) for u in range(4)], lg)
    cv.emit(0, 144, S)
    assert not cv.todo and not S.left(), S.left()
    stamp('conv')
    def glue1(lg):
        for i, r in enumerate(YREG + G2REG):
            A(f'v_accvgpr_read_b32 v{r}, a{A_CV + 4 + i}')
        for j in range(4):
            lg(f'ds_read_b64 {v2(KVM + 2 * j)}, v{yKm} offset:{512 * (3 - j)}')
        lg(f'ds_read_b64 {v2(KVX)}, v{yKx}', 'kvm')

    def glue2(lg):
        lp, lj = A.label('odd'), A.label('join')
        A.cond[lp] = lambda c: c['w'] & 1
        A(f's_bitcmp1_b32 s{sW}, 0\ns_cbranch_scc1 {lp}')
        for j in range(4):
            A(f'ds_write_b128 v{yPw}, {v4(CX + 16 + 4 * j)} offset:{1024 * j}')
        A(f's_branch {lj}\n{lp}:')
        for j in range(4):
            A(f'ds_write_b128 v{yPw}, {v4(CX + 4 * j)} offset:{1024 * j}')
        for i in range(8):
            A(f'v_pk_mov_b32 {v2(CX + 2 * i)}, {v2(CX + 16 + 2 * i)}, {v2(CX + 16 + 2 * i)} op_sel:[0,1]')
        A(f'{lj}:')
        lg.n += 4
        lg.wait('kvm')
        for j in range(4):
            run(y_dterm(CX + 4 * j, KVM + 2 * j, sDm[0], sDm[1]))
    scan_2(0, vm, ld, {4: glue1, 4 + OPT['gl']: glue2} if OPT['gl'] else {4: lambda lg: (glue1(lg), glue2(lg))})
    lt, lj = A.label('type'), A.label('join')
    A.cond[lt] = lambda c: c['ty']
    A(f's_bitcmp1_b32 s{sJ}, 0\ns_cbranch_scc1 {lt}')
    p0 = PREV[0]
    for ty in range(2):
        v, lg, S = copy.deepcopy(vm), LG(), Side()
        PREV[0], c_issued[0] = p0, 50 - OPT['cl2']
        for i in range(OPT['cl2']):
            S.add(i * 8 // OPT['cl2'], lambda: c_load(v))
        S.add(OPT['hfl'], lambda: h_flag(0, v))
        S.add(OPT['hp'], lambda: v(H_POLL, 'fh'))
        Conv([(1, u, JSET[ty], CY) for u in range(2)], lg).emit(0, 36, S)
        if ty == 0:
            A(f's_branch {lj}\n{lt}:')
    A(f'{lj}:')
    stamp('conv2')
    PM, PS = 208, 224
    g2 = G2(0, v)
    g2.begin()
    for x in range(4):
        A(f'ds_write_b128 v{ySw}, {v4(CY + 4 * x)} offset:{1024 * x}')
    A('s_waitcnt lgkmcnt(0)\ns_barrier')
    for j in range(4):
        A(f'ds_read_b128 {v4(PM + 4 * j)}, v{yPr} offset:{1024 * j}')
    for x in range(4):
        A(f'ds_read_b128 {v4(PS + 4 * x)}, v{ySr} offset:{4096 * x}')
    it = ['s_waitcnt lgkmcnt(0)']
    for j in range(4):
        p = PM + 4 * j
        it += [f'v_add_f32 v{p + i}, v{CX + 4 * j + i}, v{p + i}' for i in range(4)]
        it += [f'v_cvt_pk_bf16_f32 v{p}, v{p}, v{p + 1}', f'v_cvt_pk_bf16_f32 v{p + 1}, v{p + 2}, v{p + 3}',
               lambda j=j, p=p: v(f'buffer_store_dwordx2 {v2(p)}, v{yS}, {W}, s{sYO[0]} offen offset:{512 * j} sc1')]
    it += y_dterm(PS, KVX, sDm[2], sDm[3])
    it += [f'v_add_f32 v{PS + 4 + i}, v{PS + 4 + i}, v{PS + 8 + i}' for i in range(4)]
    it += [f'v_add_f32 v{PS + i}, v{PS + i}, v{PS + 12 + i}' for i in range(4)]
    it += [f'v_add_f32 v{PS + i}, v{PS + i}, v{PS + 4 + i}' for i in range(4)]
    it += [f'v_cvt_pk_bf16_f32 v{PS}, v{PS}, v{PS + 1}', f'v_cvt_pk_bf16_f32 v{PS + 1}, v{PS + 2}, v{PS + 3}',
           lambda: v(f'buffer_store_dwordx2 {v2(PS)}, v{yS}, {W}, s{sYO[1]} offen sc1')]
    g2.ytail = it
    stamp('y_rd')
    return g2


YF, ZR = BF, BF + 20
P0, P1 = 192, 212
XT, DP, ZU, F1, F2 = 98, 100, 102, 88, 92
vHA, vYD, vYR = 244, 252, 253
G2REG = vU[2:5] + [vHA]
YP = 232


def g2_setup(layer):
    hb = WS_H if layer == 0 else WS_H2
    A(f's_mul_i32 s{sT[1]}, s{sR64}, 163840\ns_mul_i32 s{sT[2]}, s{sW}, 10240\n'
      f's_add_u32 s{sT[1]}, s{sT[1]}, s{sT[2]}\ns_add_u32 s{sT[1]}, s{sT[1]}, {hb}')
    for z in range(4):
        A(f's_add_u32 s{sT[2]}, s{sW}, {z + 1}\ns_and_b32 s{sT[2]}, s{sT[2]}, 3\n'
          f's_mul_i32 s{sT[3]}, s{sT[2]}, 40960\ns_add_u32 s{sDS[z]}, s{sT[3]}, s{sT[1]}')
        if z < 2:
            A(f's_mul_i32 s{sT[3]}, s{sT[2]}, 10240\ns_add_u32 s{sT[3]}, s{sT[3]}, {L_RED + z * 5120}\n'
              f'v_add_u32 v{vU[2 + z]}, s{sT[3]}, v{vL16}')
        if z == 2:
            A(f's_mul_i32 s{sT[3]}, s{sT[2]}, 5120\nv_add_u32 v{vU[2 + z]}, s{sT[3]}, v{vL16}')
    A(f'''s_lshl_b32 s{sZ[3]}, s{sR128}, 8
s_lshl_b32 s{sT[1]}, s{sW}, 6
s_add_u32 s{sZ[3]}, s{sZ[3]}, s{sT[1]}
s_and_b32 s{sT[1]}, s{sR64}, 1
s_lshl_b32 s{sT[1]}, s{sT[1]}, 3
s_add_u32 s{sZ[3]}, s{sZ[3]}, s{sT[1]}
s_add_u32 s{sZ[3]}, s{sZ[3]}, {WS_FH + layer * 4096}
v_and_b32 v{vHA}, 3, v{vL}
v_lshlrev_b32 v{vHA}, 4, v{vHA}''')


def z_addr():
    t = vT
    A(f'''s_lshl_b32 s{sT[0]}, s{sR64}, 6
s_lshr_b32 s{sT[1]}, s{sW}, 1
s_lshl_b32 s{sT[1]}, s{sT[1]}, 5
s_add_u32 s{sT[0]}, s{sT[0]}, s{sT[1]}
s_and_b32 s{sT[1]}, s{sW}, 1
s_lshl_b32 s{sT[1]}, s{sT[1]}, 2
s_add_u32 s{sT[0]}, s{sT[0]}, s{sT[1]}
s_lshl_b32 s{sZ[1]}, s{sT[0]}, 4
s_add_u32 s{sZ[1]}, s{sZ[1]}, {WS_RS}
s_mul_i32 s{sZ[0]}, s{sT[0]}, 1280
s_mul_i32 s{sT[1]}, s{sS8}, 160
s_add_u32 s{sZ[0]}, s{sZ[0]}, s{sT[1]}
s_lshl_b32 s{sZ[2]}, s{sW}, 12
s_add_u32 s{sZ[2]}, s{sZ[2]}, {L_PS}''')
    for z in range(3):
        A(f'''v_add_u32 v{t[0]}, {64 * z}, v{vL}
v_mul_u32_u24 v{t[1]}, 205, v{t[0]}
v_lshrrev_b32 v{t[1]}, 11, v{t[1]}
v_lshrrev_b32 v{t[2]}, 2, v{t[1]}
v_mul_u32_u24 v{t[1]}, 1120, v{t[1]}
v_mul_u32_u24 v{t[2]}, 5120, v{t[2]}
v_lshlrev_b32 v{t[0]}, 4, v{t[0]}
v_add3_u32 v{vZ + z}, v{t[0]}, v{t[1]}, v{t[2]}''')
    A(f'''v_lshl_add_u32 v{vZ + 4}, v{vQ}, 3, s{sT[1]}
v_lshrrev_b32 v{t[1]}, 2, v{vI}
v_lshlrev_b32 v{t[1]}, 7, v{t[1]}
v_and_b32 v{t[2]}, 3, v{vI}
v_lshl_add_u32 v{vZ + 3}, v{t[2]}, 4, v{t[1]}
v_mul_u32_u24 v{vXT}, 160, v{vI}
v_lshl_add_u32 v{vXT}, v{vQ}, 3, v{vXT}
v_add_u32 v{vXT}, s{sZ[2]}, v{vXT}''')


def z_loads(vm):
    it = []
    for z in range(3):
        it.append(atom(f's_add_u32 m0, s{sZ[2]}, {1024 * z}', 's_mov_b32 exec_hi, 0' if z == 2 else [],
                       lambda z=z: vm(f'buffer_load_dwordx4 v{vZ + z}, {s4(R_X)}, s{sZ[0]} offen lds', 'xt'),
                       's_mov_b32 exec_hi, -1' if z == 2 else []))
    it.append(lambda: vm(f'buffer_load_dwordx2 a[{A_ZU}:{A_ZU + 1}], v{vZ + 3}, {W}, s{sZ[1]} offen sc1'))
    for m in range(5):
        it.append(lambda m=m: vm(f'global_load_dwordx2 a[{A_DSK + 2 * m}:{A_DSK + 2 * m + 1}], v{vZ + 4}, {s2(P_DSK)} '
                                 f'offset:{32 * m}', 'dsk'))
    return it


def z_work():
    b = [f'v_accvgpr_read_b32 v{ZU}, a{A_ZU}', f'v_accvgpr_read_b32 v{ZU + 1}, a{A_ZU + 1}', f'v_mul_f32 v{ZU}, v{ZU}, v{ZU + 1}']
    for m in range(5):
        for i in range(2):
            b += [f'v_accvgpr_read_b32 v{XT + i}, a{A_X + 2 * m + i}', f'v_accvgpr_read_b32 v{DP + i}, a{A_DSK + 2 * m + i}']
        b += unpack(ZR + 4 * m, XT, 2) + unpack(F2, DP, 2)
        for i in range(4):
            b.append(f'v_fma_f32 v{F1 + i}, v{ZR + 4 * m + i}, v{ZU + 1}, -v{ZU}')
        for i in range(4):
            b.append(f'v_fmac_f32 v{ZR + 4 * m + i}, v{F1 + i}, v{F2 + i}')
    return b


H_POLL = f'buffer_load_dwordx2 {v2(vU[0])}, v{vHA}, {W}, s{sZ[3]} offen sc1'


class G2:
    def __init__(self, layer, vm):
        self.layer, self.vm, self.nxt = layer, vm, 0

    def ld(self):
        f = self.nxt
        self.nxt += 1
        z, k = divmod(f, 10)
        if k and k % 4 == 0:
            A(f's_add_u32 s{sDS[z]}, s{sDS[z]}, 4096')
        self.vm(f'buffer_load_dwordx4 {v4(RING + 4 * (f % NR))}, v{vL16}, {W}, s{sDS[z]} offen '
                f'offset:{(k % 4) * 1024} sc1', ('h', f))

    def begin(self):
        if self.layer == 0:
            self.vm.wait('fh')
        check_tags([vU[0], vU[1]], H_POLL, inline=2 - self.layer)
        self.vm.done = self.vm.n if self.layer else self.vm.done
        stamp(f'h_ready_{self.layer}')
        for f in range(OPT['n0'] if self.layer else OPT['n00']):
            self.ld()


def gemm2(g2):
    layer, vm, ld = g2.layer, g2.vm, g2.ld
    side, lg = Side(), LG()
    n0 = g2.nxt
    last = 0
    for f in range(n0, 40):
        last = max(f - n0, f - NR + 1)
        side.add(last, ld)
    last += 1
    hooks = []
    if layer == 0:
        e = side.spread(OPT['ys'], OPT['yper'], g2.ytail)
        side.add(e, 's_barrier')
        assert e < 11
        e = side.spread(e, OPT['zper'], z_work())
        assert e <= OPT['ra'] + 1, e
        side.add(OPT['yp'] + 1, f'''s_mul_i32 s{sX[6]}, s{sS8}, 327680
s_lshl_b32 s{sT[0]}, s{sR64}, 7
s_add_u32 s{sX[6]}, s{sX[6]}, s{sT[0]}
s_lshr_b32 s{sT[0]}, s{sW}, 1
s_mul_i32 s{sX[7]}, s{sT[0]}, 5120
s_add_u32 s{sX[7]}, s{sX[7]}, {L_Y}
s_lshl_b32 s{sT[0]}, s{sT[0]}, 6
s_add_u32 s{sX[6]}, s{sX[6]}, s{sT[0]}
s_add_u32 s{sX[6]}, s{sX[6]}, {WS_Y}
s_mov_b32 s{sX[5]}, s{sX[6]}''')
        side.add(OPT['yp'] + 2, f'''s_and_b32 s{sT[0]}, s{sW}, 1
s_mul_i32 s{sT[1]}, s{sT[0]}, {3 * 65536}
s_add_u32 s{sX[6]}, s{sX[6]}, s{sT[1]}
s_mul_i32 s{sT[1]}, s{sT[0]}, 3072
s_add_u32 s{sX[8]}, s{sX[7]}, s{sT[1]}
s_lshl_b32 s{sT[0]}, s{sT[0]}, 3
s_add_u32 s{sX[7]}, s{sX[7]}, s{sT[0]}
v_lshrrev_b32 v{vYD}, 2, v{vL}
v_lshlrev_b32 v{vYD}, 12, v{vYD}
v_and_b32 v{vT[1]}, 3, v{vL}
v_lshl_add_u32 v{vYD}, v{vT[1]}, 4, v{vYD}''')

        def ydma(m):
            A(f's_add_u32 m0, s{sX[8]}, {m * 1024}')
            if m == 2:
                A(f's_bitcmp1_b32 s{sW}, 0\ns_cselect_b32 s{sX[6]}, {OOB}, s{sX[6]}\ns_cselect_b32 m0, {LDS_SIZE}, m0')
            vm(f'buffer_load_dwordx4 v{vYD}, {W}, s{sX[6]} offen sc1 lds', 'yd')
            A(f's_add_u32 s{sX[6]}, s{sX[6]}, 65536')
        side.add(last, *[lambda m=m: ydma(m) for m in range(3)])
        side.add(last + 1, f'v_add_u32 v{vYR}, s{sX[7]}, v{vL16}')
    else:
        if OPT['wb'] & 2:
            side.add(OPT['wbs'] or last + 1, wbl2)
    rd = lambda p, a, off, nm: [lambda i=i: lg(f'ds_read_b128 {v4(p + 4 * i)}, v{a} offset:{off + 1024 * i}', nm) for i in range(5)]
    add = lambda d, s: [f'v_add_f32 v{d + i}, v{d + i}, v{s + i}' for i in range(20)]
    side.add(OPT['ra'] - 1, f's_mul_i32 s{sT[3]}, s{sW}, 10240\ns_add_u32 s{sT[3]}, s{sT[3]}, {L_RED}\n'
                            f'v_add_u32 v{vU[5]}, s{sT[3]}, v{vL16}')
    bar = lambda: (lg.wait('pw'), A('s_barrier'))
    e = side.spread(OPT['ra'], OPT['rper'], [bar] + rd(P0, vU[5], 0, 'p0') + rd(P1, vU[5], 5120, 'p1') + [lambda: lg.wait('p0')]
                    + add(ZR, P0) + [lambda: lg.wait('p1')] + add(ZR, P1))
    assert e <= 30, e
    side.add(OPT['rc'] - 1, f's_mul_i32 s{sT[3]}, s{sW}, 5120\nv_add_u32 v{vU[5]}, s{sT[3]}, v{vL16}')
    side.spread(OPT['rc'], 6, [bar] + rd(P0, vU[5], 0, 'p2'))
    for z in range(4):
        stamp(f'.z{z}_{layer}', 2)
        acc = ACC + 20 * (z & 1)
        for k in range(10):
            f = 10 * z + k
            vm.wait(('h', f))
            for h in list(hooks):
                if vm.t[h[0]] <= vm.done:
                    hooks.remove(h)
                    h[1]()
            for m in range(5):
                d = acc + 4 * m
                c = v4(d) if k else ('0' if z < 3 else v4(ZR + 4 * m))
                A(f'v_mfma_f32_16x16x32_bf16 {v4(d)}, {a4(4 * (5 * k + m))}, {v4(RING + 4 * (f % NR))}, {c}')
                if z > 0 and k == 1:
                    pa = ACC + 20 * ((z - 1) & 1)
                    lg(f'ds_write_b128 v{vU[2 + z - 1]}, {v4(pa + 4 * m)} offset:{1024 * m}', 'pw')
                side.run(f, 5 - m)
    assert not side.left() and not hooks
    stamp(f'g2_{layer}')
    return lg


def allreduce_q(r, t):
    for op in ('v_permlane32_swap_b32', 'v_permlane16_swap_b32'):
        A(f'''v_mov_b32 v{t}, v{r}
v_mov_b32 v{t + 1}, v{r + 1}
{op} v{r}, v{t}
{op} v{r + 1}, v{t + 1}
v_add_f32 v{r}, v{r}, v{t}
v_add_f32 v{r + 1}, v{r + 1}, v{t + 1}''')


def epilogue(layer, vm, lg):
    a = ACC + 20
    S = 212
    G = 228
    inv = 0x3acccccd
    A(f'''s_lshl_b32 s{sT[0]}, s{sR64}, 15
s_lshl_b32 s{sT[1]}, s{sW}, 10
s_add_u32 s{sT[0]}, s{sT[0]}, s{sT[1]}
s_add_u32 s{sT[0]}, s{sT[0]}, {WS_ST + layer * 0x100000}
s_lshl_b32 s{sT[1]}, s{sS8}, 12
s_add_u32 s{sT[1]}, s{sT[1]}, s{sT[0]}''')
    lg.wait('p2')
    if layer == 0:
        vm.wait('yd')
        A('s_barrier')
        stamp('y_in')
        lg = LG()
        yrd = [f'ds_read_b64_tr_b16 {v2(YP + 2 * m)}, v{vYR} offset:{m * 1024}' for m in range(5)]
        for m in range(5):
            lg(yrd[m], ('y', m))
        A(unpark('bd', 244) + '\n' + unpark('bd2', 245))
    for i in range(10):
        A(f'v_pk_add_f32 {v2(a + 2 * i)}, {v2(a + 2 * i)}, {v2(P0 + 2 * i)}')
    A(f'v_pk_add_f32 {v2(S)}, {v2(a)}, {v2(a + 2)}\nv_pk_mul_f32 {v2(S + 2)}, {v2(a)}, {v2(a)}')
    for i in range(1, 10):
        if i >= 2:
            A(f'v_pk_add_f32 {v2(S)}, {v2(S)}, {v2(a + 2 * i)}')
        A(f'v_pk_fma_f32 {v2(S + 2)}, {v2(a + 2 * i)}, {v2(a + 2 * i)}, {v2(S + 2)}')
    if layer == 0:
        AY = 160
        lg.wait(('y', 4))
        x = vT[4]
        chk = [f'v_pk_max_u16 v{x}, v{YP}, v{YP + 1}'] + [f'v_pk_max_u16 v{x}, v{x}, v{YP + i}' for i in range(2, 10)]
        chk += [f'v_lshlrev_b32 v{vT[3]}, 16, v{x}', f'v_max_u32 v{x}, v{x}, v{vT[3]}', f'v_cmp_le_u32 vcc, 0xffff0000, v{x}']
        lab, done = A.label('again'), A.label('ok')
        A.cond[lab] = lambda c: False
        A('\n'.join(chk) + f'\ns_cbranch_vccnz {lab}\n{done}:')
        slow = [f'{lab}:', f's_sub_u32 s{sBud}, s{sBud}, 1', f's_cmp_gt_i32 s{sBud}, 0', f's_cbranch_scc0 {done}',
                f's_mul_i32 s{sX[8]}, s{sW}, 10240', f's_add_u32 s{sX[8]}, s{sX[8]}, {L_RED + 5120}',
                f's_and_b32 s{sX[6]}, s{sW}, 1', f's_lshl_b32 s{sX[6]}, s{sX[6]}, 3', f's_add_u32 s{sX[6]}, s{sX[6]}, s{sX[8]}',
                f'v_add_u32 v{vYR}, s{sX[6]}, v{vL16}']
        for m in range(5):
            slow += [f's_add_u32 m0, s{sX[8]}, {m * 1024}', f's_add_u32 s{sX[6]}, s{sX[5]}, {m * 65536}',
                     f'buffer_load_dwordx4 v{vYD}, {W}, s{sX[6]} offen sc1 lds']
        TAIL.append('\n'.join(slow + ['s_waitcnt vmcnt(0)'] + yrd + ['s_waitcnt lgkmcnt(0)'] + chk
                              + [f's_cbranch_vccnz {lab}', f's_branch {done}']))
        stamp('y_ok')
        for m in range(5):
            lg.wait(('y', m))
            A('\n'.join(unpack(YF + 4 * m, YP + 2 * m, 2)))
            if m in (0, 2, 4):
                b_dma(vm, 0, m, 244, 245)
            for i in (2 * m, 2 * m + 1):
                x, y, ay = v2(a + 2 * i), v2(YF + 2 * i), v2(AY + 2 * i)
                A(f'v_pk_mul_f32 {ay}, {x}, {y}')
                if i == 0:
                    A(f'v_pk_mul_f32 {v2(S + 14)}, {y}, {y}\nv_pk_mul_f32 {v2(S + 6)}, {ay}, {x}\n'
                      f'v_pk_mul_f32 {v2(S + 8)}, {ay}, {ay}\nv_pk_mul_f32 {v2(S + 10)}, {ay}, {y}')
                else:
                    p2 = v2(AY) if i == 1 else v2(S + 4)
                    p6 = v2(YF) if i == 1 else v2(S + 12)
                    A(f'v_pk_add_f32 {v2(S + 12)}, {p6}, {y}\nv_pk_fma_f32 {v2(S + 14)}, {y}, {y}, {v2(S + 14)}\n'
                      f'v_pk_add_f32 {v2(S + 4)}, {p2}, {ay}\nv_pk_fma_f32 {v2(S + 6)}, {ay}, {x}, {v2(S + 6)}\n'
                      f'v_pk_fma_f32 {v2(S + 8)}, {ay}, {ay}, {v2(S + 8)}\n'
                      f'v_pk_fma_f32 {v2(S + 10)}, {ay}, {y}, {v2(S + 10)}')
        for k in range(8):
            A(f'v_add_f32 v{S + 2 * k}, v{S + 2 * k}, v{S + 2 * k + 1}')
        for k in range(4):
            A(f'v_permlane16_swap_b32 v{S + 2 * k}, v{S + 2 * k + 8}')
        for k in range(4):
            A(f'v_add_f32 v{G + k}, v{S + 2 * k}, v{S + 2 * k + 8}')
        for k in range(4):
            A(f'v_mov_b32 v{S + k}, v{G + k}')
        for k in range(4):
            A(f'v_permlane32_swap_b32 v{G + k}, v{S + k}')
        A(f's_movk_i32 s{sT[2]}, 0xff')
        for k in range(4):
            A(f'v_add_f32 v{G + k}, v{G + k}, v{S + k}')
        for k in range(4):
            A(f's_lshr_b32 s{sT[3]}, s{sTag}, {8 * k}\nv_mov_b32 v{S + k}, s{sT[3]}\n'
              f'v_bfi_b32 v{G + k}, s{sT[2]}, v{S + k}, v{G + k}')
        A('s_mov_b32 exec_hi, 0')
        mode_stores([f'buffer_store_dwordx4 {v4(G)}, v{vL16}, {W}, s{sT[1]} offen'])
        A('s_mov_b32 exec_hi, -1')
        stamp('st_pub_0')
        if OPT['prefetch'] & 4:
            run(code_touch())
        for i in range(10):
            A(f'v_accvgpr_write_b32 a{A_Y + i}, v{YP + i}')
        A(f'''v_lshrrev_b32 v{vT[0]}, 2, v{vI}
v_mul_u32_u24 v{vT[0]}, 5120, v{vT[0]}
v_and_b32 v{vT[1]}, 3, v{vI}
v_lshl_add_u32 v{vT[0]}, v{vT[1]}, 4, v{vT[0]}
v_lshrrev_b32 v{vT[1]}, 1, v{vQ}
v_lshl_add_u32 v{vT[0]}, v{vT[1]}, 6, v{vT[0]}
v_and_b32 v{vT[1]}, 1, v{vQ}
v_lshl_add_u32 v{vU[5]}, v{vT[1]}, 3, v{vT[0]}
s_lshl_b32 s{sX[1]}, s{sR64}, 2
s_add_u32 s{sX[1]}, s{sX[1]}, s{sW}
s_mul_i32 s{sX[1]}, s{sX[1]}, 20480
s_mul_i32 s{sT[2]}, s{sS8}, 640
s_add_u32 s{sX[1]}, s{sX[1]}, s{sT[2]}
s_add_u32 s{sX[1]}, s{sX[1]}, {WS_U2}''')
        DPk, DF = 190, 108
        for i in range(10):
            A(f'v_accvgpr_read_b32 v{DPk + i}, a{A_DSK + i}')
        A('\n'.join(unpack(DF, DPk, 10)))
        A(f'''s_lshl_b32 s{sX[0]}, s{sR128}, 8
s_lshr_b32 s{sT[1]}, s{sW}, 1
s_lshl_b32 s{sT[1]}, s{sT[1]}, 7
s_add_u32 s{sX[0]}, s{sX[0]}, s{sT[1]}
s_and_b32 s{sT[1]}, s{sW}, 1
s_lshl_b32 s{sT[1]}, s{sT[1]}, 3
s_add_u32 s{sX[0]}, s{sX[0]}, s{sT[1]}
s_add_u32 s{sX[0]}, s{sX[0]}, {WS_FU}
v_and_b32 v{vU[4]}, 7, v{vL}
v_lshlrev_b32 v{vU[4]}, 4, v{vU[4]}
s_add_u32 s{sL[0]}, s{sXs}, {WS_U2}
s_add_u32 s{sL[1]}, s{sL[0]}, 20480
s_lshl_b32 s{sEpW}, s{sR64}, 5
s_lshl_b32 s{sT[1]}, s{sS8}, 2
s_add_u32 s{sEpW}, s{sEpW}, s{sT[1]}
s_add_u32 s{sEpW}, s{sEpW}, s{sW}''')
        A(f'''v_and_b32 v{vT[0]}, 31, v{vL}
v_lshlrev_b32 v{vT[0]}, 4, v{vT[0]}
v_lshrrev_b32 v{vT[1]}, 5, v{vL}
v_lshl_add_u32 v{vT[0]}, v{vT[1]}, 14, v{vT[0]}
s_mov_b32 s{sT[2]}, 0x0c0c0400
s_mov_b32 s{sT[3]}, 0x04000c0c
s_add_u32 s{sX[2]}, s{sT[0]}, 4096
s_add_u32 s{sX[3]}, s{sT[0]}, 8192
s_add_u32 s{sX[4]}, s{sT[0]}, 12288''')
        back = A.label('stpoll')
        A(f'{back}:')
        Q = 128
        for sl, so in enumerate((sT[0], sX[2], sX[3], sX[4])):
            A(f'buffer_load_dwordx4 {v4(Q + 4 * sl)}, v{vT[0]}, {W}, s{so} offen sc1')
        A('s_waitcnt vmcnt(0)')
        for sl in range(4):
            q = Q + 4 * sl
            A(f'v_perm_b32 v{S + 2 * sl}, v{q + 1}, v{q}, s{sT[2]}\nv_perm_b32 v{S + 2 * sl + 1}, v{q + 3}, v{q + 2}, s{sT[3]}')
        for sl in range(4):
            A(f'v_or_b32 v{S + 2 * sl}, v{S + 2 * sl}, v{S + 2 * sl + 1}')
        lo, hi = vT[2], vT[3]
        A(f'''v_min3_u32 v{lo}, v{S}, v{S + 2}, s{sTag}
v_max3_u32 v{hi}, v{S}, v{S + 2}, s{sTag}
v_min3_u32 v{lo}, v{lo}, v{S + 4}, v{S + 6}
v_max3_u32 v{hi}, v{hi}, v{S + 4}, v{S + 6}
v_cmp_ne_u32 vcc, v{lo}, v{hi}''')
        retry(back)
        stamp('st_in_0')
        for hf in (0, 2):
            A(f'v_pk_add_f32 {v2(Q + hf)}, {v2(Q + hf)}, {v2(Q + 4 + hf)}\n'
              f'v_pk_add_f32 {v2(Q + 8 + hf)}, {v2(Q + 8 + hf)}, {v2(Q + 12 + hf)}')
        for hf in (0, 2):
            A(f'v_pk_add_f32 {v2(Q + hf)}, {v2(Q + hf)}, {v2(Q + 8 + hf)}')
        s = lambda k: S + k
        for k in range(4):
            A(f'v_mov_b32 v{Q + 4 + k}, v{Q + k}')
        for k in range(4):
            A(f'v_permlane32_swap_b32 v{Q + k}, v{Q + 4 + k}')
        for k in range(4):
            A(f'v_add_f32 v{s(k)}, v{Q + k}, v{Q + 4 + k}')
        for k in range(4):
            A(f'v_mov_b32 v{s(4 + k)}, v{s(k)}')
        for k in range(4):
            A(f'v_permlane16_swap_b32 v{s(k)}, v{s(4 + k)}')
        m1, r1, k1, t0, t1, r2, k2 = 200, 202, 203, 204, 205, 206, 207
        A(f'''v_mul_f32 v{m1}, {inv:#x}, v{s(0)}
v_mul_f32 v{t0}, {inv:#x}, v{s(1)}
v_fma_f32 v{t0}, -v{m1}, v{m1}, v{t0}
v_max_f32 v{t0}, 0, v{t0}
v_add_f32 v{t0}, 0x3727c5ac, v{t0}
v_rsq_f32 v{r1}, v{t0}
v_mul_f32 v{k1}, v{m1}, v{r1}
v_fma_f32 v{t0}, v{r1}, v{s(2)}, v{s(0)}
v_fma_f32 v{t0}, -v{k1}, v{s(6)}, v{t0}
v_mul_f32 v{t1}, v{r1}, v{s(4)}
v_fma_f32 v{t1}, 2.0, v{s(3)}, v{t1}
v_fma_f32 v{t1}, v{r1}, v{t1}, v{s(1)}
v_fma_f32 v{s(2)}, v{r1}, v{s(5)}, v{s(2)}
v_mul_f32 v{s(7)}, v{k1}, v{s(7)}
v_fma_f32 v{s(2)}, -2.0, v{s(2)}, v{s(7)}
v_fma_f32 v{t1}, v{k1}, v{s(2)}, v{t1}
v_mul_f32 v{t0}, {inv:#x}, v{t0}
v_mul_f32 v{t1}, {inv:#x}, v{t1}
v_fma_f32 v{t1}, -v{t0}, v{t0}, v{t1}
v_max_f32 v{t1}, 0, v{t1}
v_add_f32 v{t1}, 0x3727c5ac, v{t1}
v_rsq_f32 v{r2}, v{t1}
v_mul_f32 v{k2}, v{t0}, v{r2}''')
        bc = 'op_sel:[0,0,1] op_sel_hi:[1,0,1] neg_lo:[0,0,1] neg_hi:[0,0,1]'
        U, UP = 160, 180
        for i in range(10):
            A(f'v_pk_fma_f32 {v2(U + 2 * i)}, {v2(a + 2 * i)}, {v2(r1)}, {v2(r1)} {bc}')
        for i in range(10):
            A(f'v_pk_fma_f32 {v2(a + 2 * i)}, {v2(U + 2 * i)}, {v2(YF + 2 * i)}, {v2(a + 2 * i)}')
        for i in range(10):
            A(f'v_pk_fma_f32 {v2(U + 2 * i)}, {v2(a + 2 * i)}, {v2(r2)}, {v2(r2)} {bc}')
        for i in range(10):
            A(f'v_cvt_pk_bf16_f32 v{UP + i}, v{U + 2 * i}, v{U + 2 * i + 1}')
        mode_stores([f'buffer_store_dwordx2 {v2(UP + 2 * m)}, v{vU[5]}, {W}, s{sX[1]} offen offset:{128 * m}'
                     for m in range(5)])
        stamp('u2_st')
        for i in range(10):
            A(f'v_pk_fma_f32 {v2(a + 2 * i)}, {v2(U + 2 * i)}, {v2(DF + 2 * i)}, {v2(a + 2 * i)}')
        for i in range(20):
            A(f'v_accvgpr_write_b32 a{A_Z + i}, v{a + i}')
        A(f's_add_u32 s{sT[1]}, s{sFW}, {WS_FU}\ns_waitcnt vmcnt(0)')
        flag_store(f's{sT[1]}', True)
        A(f's_cmp_lg_u32 s{sEpW}, {31 * 32}')
        with A.skip_if('s_cbranch_scc1', lambda c: True):
            flag_store('0', False)
        fl = f'buffer_load_dwordx2 {v2(vU[0])}, v{vU[4]}, {W}, s{sX[0]} offen sc1'
        check_tags([vU[0], vU[1]], fl, inline=1)
        stamp('u2_ready')
    else:
        A(f'v_add_f32 v{G}, v{S}, v{S + 1}\nv_add_f32 v{G + 1}, v{S + 2}, v{S + 3}\nv_mov_b32 v{G + 2}, s{sTag}\n'
          f'v_mov_b32 v{G + 3}, s{sTag}')
        allreduce_q(G, S)
        A('s_mov_b64 exec, 0xffff')
        mode_stores([f'buffer_store_dwordx4 {v4(G)}, v{vL16}, {W}, s{sT[1]} offen'])
        A('s_mov_b64 exec, -1')
        stamp('st_pub_1')
        if OPT['wb'] & 64:
            wbl2()
        lg = LG()
        X3, Y3 = 160, 180
        A(f'''s_mul_i32 s{sT[2]}, s{sW}, 10240
s_add_u32 s{sT[2]}, s{sT[2]}, {L_RED}
v_lshrrev_b32 v{vT[1]}, 1, v{vI}
v_xor_b32 v{vT[1]}, v{vT[1]}, v{vQ}
v_and_b32 v{vT[1]}, 3, v{vT[1]}
v_lshlrev_b32 v{vT[1]}, 4, v{vT[1]}
v_lshl_add_u32 v{vT[1]}, v{vI}, 6, v{vT[1]}
v_add_u32 v{vU[2]}, s{sT[2]}, v{vT[1]}''')
        for m in range(5):
            lg(f'ds_write_b128 v{vU[2]}, {v4(a + 4 * m)} offset:{1024 * m}')
            lg(f'ds_write_b128 v{vU[2]}, {v4(YF + 4 * m)} offset:{5120 + 1024 * m}')
        A(f'''v_lshrrev_b32 v{vT[1]}, 3, v{vL}
v_xor_b32 v{vT[1]}, v{vT[1]}, v{vL}
v_and_b32 v{vT[1]}, 3, v{vT[1]}
v_lshlrev_b32 v{vT[1]}, 4, v{vT[1]}
v_lshrrev_b32 v{vT[2]}, 2, v{vL}
v_lshl_add_u32 v{vT[1]}, v{vT[2]}, 6, v{vT[1]}
v_add_u32 v{vU[3]}, s{sT[2]}, v{vT[1]}''')
        for m in range(5):
            lg(f'ds_read_b128 {v4(X3 + 4 * m)}, v{vU[3]} offset:{1024 * m}')
            lg(f'ds_read_b128 {v4(Y3 + 4 * m)}, v{vU[3]} offset:{5120 + 1024 * m}')
        A(f'''v_and_b32 v{vT[3]}, 3, v{vL}
v_lshlrev_b32 v{vT[0]}, 13, v{vT[3]}
v_lshl_add_u32 v{vT[0]}, v{vT[2]}, 4, v{vT[0]}
s_add_u32 s{sT[1]}, s{sT[0]}, 4096
v_lshrrev_b32 v{vT[1]}, 2, v{vT[2]}
v_lshl_add_u32 v{vT[1]}, v{vT[1]}, 2, v{vT[2]}
v_mul_u32_u24 v{vT[1]}, 2560, v{vT[1]}
v_lshl_add_u32 v{vU[4]}, v{vT[3]}, 4, v{vT[1]}
s_lshl_b32 s{sT[3]}, s{sR64}, 6
s_lshr_b32 s{sX[1]}, s{sW}, 1
s_lshl_b32 s{sX[1]}, s{sX[1]}, 5
s_add_u32 s{sT[3]}, s{sT[3]}, s{sX[1]}
s_and_b32 s{sX[1]}, s{sW}, 1
s_lshl_b32 s{sX[1]}, s{sX[1]}, 2
s_add_u32 s{sT[3]}, s{sT[3]}, s{sX[1]}
s_mul_i32 s{sT[3]}, s{sT[3]}, 2560
s_mul_i32 s{sX[1]}, s{sS8}, 320
s_add_u32 s{sT[3]}, s{sT[3]}, s{sX[1]}''')
        srd(R_T0, P_OUT, 5242880)
        Q = 128
        ld = [f'buffer_load_dwordx3 {v3(Q)}, v{vT[0]}, {W}, s{sT[0]} offen sc1',
              f'buffer_load_dwordx3 {v3(Q + 4)}, v{vT[0]}, {W}, s{sT[1]} offen sc1']
        check_tags([Q + 2, Q + 6], ld, inline=1)
        A('s_waitcnt lgkmcnt(0)')
        stamp('st_in_1')
        if OPT['wb'] & 32:
            wbl2()
        A(f'v_pk_add_f32 {v2(Q)}, {v2(Q)}, {v2(Q + 4)}')
        for mod in ('quad_perm:[1,0,3,2]', 'quad_perm:[2,3,0,1]'):
            A(f'v_add_f32_dpp v{Q}, v{Q}, v{Q} {mod} {DPPM}\nv_add_f32_dpp v{Q + 1}, v{Q + 1}, v{Q + 1} {mod} {DPPM}')
        r1, t0 = 200, 202
        A(f'''v_mul_f32 v{Q}, {inv:#x}, v{Q}
v_mul_f32 v{t0}, {inv:#x}, v{Q + 1}
v_fma_f32 v{t0}, -v{Q}, v{Q}, v{t0}
v_max_f32 v{t0}, 0, v{t0}
v_add_f32 v{t0}, 0x3727c5ac, v{t0}
v_rsq_f32 v{r1}, v{t0}
v_mul_f32 v{r1 + 1}, v{Q}, v{r1}''')
        bc = 'op_sel:[0,0,1] op_sel_hi:[1,0,1] neg_lo:[0,0,1] neg_hi:[0,0,1]'
        U = 132
        for m in range(5):
            u = U + 4 * (m & 1)
            for hf in range(2):
                A(f'v_pk_fma_f32 {v2(u + 2 * hf)}, {v2(X3 + 4 * m + 2 * hf)}, {v2(r1)}, {v2(r1)} {bc}')
            for hf in range(2):
                i = 4 * m + 2 * hf
                A(f'v_pk_fma_f32 {v2(X3 + i)}, {v2(u + 2 * hf)}, {v2(Y3 + i)}, {v2(X3 + i)}')
            A(f'buffer_store_dwordx4 {v4(X3 + 4 * m)}, v{vU[4]}, {s4(R_T0)}, s{sT[3]} offen offset:{64 * m}'
              + ['', ' sc1', ' sc1 nt', ' nt', ' sc0 sc1'][OPT['om']])
        if OPT['wb'] & 16:
            wbl2()
        stamp('out_st')


def retry(back):
    lab, done = A.label('retry'), A.label('giveup')
    A.cond[lab] = lambda c: False
    if OPT['inl']:
        A.cond[back] = A.cond[done] = lambda c: False
        A(f's_sub_u32 s{sBud}, s{sBud}, 1\ns_cmp_gt_i32 s{sBud}, 0\ns_cbranch_scc0 {done}\ns_cbranch_vccnz {back}\n{done}:')
        return
    A(f's_cbranch_vccnz {lab}\n{done}:')
    TAIL.append(f'{lab}:\ns_sub_u32 s{sBud}, s{sBud}, 1\ns_cmp_gt_i32 s{sBud}, 0\n'
                f's_cbranch_scc1 {back}\ns_branch {done}')


def dump_stamps():
    if OPT['fixdur']:
        A(f'v_readfirstlane_b32 s3, v{vStamp}\ns_min_u32 s3, s3, 20000')
        if OPT['pick'] >= 0:
            A(f's_lshl_b32 s4, s{sJ}, 3\ns_add_u32 s4, s4, s{sG}\ns_cmp_eq_u32 s4, {OPT["pick"]}\ns_cselect_b32 s3, s3, 0')
        A(f'''s_add_u32 s{sSt}, s{sSt}, s3
L_fix:
s_memrealtime s[0:1]
s_waitcnt lgkmcnt(0)
s_sub_u32 s0, s0, s{sSt}
s_cmp_lt_i32 s0, {OPT['fixdur']}
s_cbranch_scc1 L_fix''')
    if not OPT['stamps']:
        return
    A(f'''s_waitcnt vmcnt(0) lgkmcnt(0)
v_writelane_b32 v{vStamp}, s{sSt}, {PREV[0]}
s_memrealtime {s2(sSt)}
s_waitcnt lgkmcnt(0)
v_writelane_b32 v{vStamp}, s{sSt}, 63
s_lshl_b32 s{sT[0]}, s{sR64}, 3
s_add_u32 s{sT[0]}, s{sT[0]}, s{sS8}
s_lshl_b32 s{sT[0]}, s{sT[0]}, 2
s_add_u32 s{sT[0]}, s{sT[0]}, s{sW}
s_lshl_b32 s{sT[0]}, s{sT[0]}, 8
s_add_u32 s{sT[0]}, s{sT[0]}, {WS_DBG}
v_lshlrev_b32 v{vT[0]}, 2, v{vL}
buffer_store_dword v{vStamp}, v{vT[0]}, {W}, s{sT[0]} offen''')


def body():
    prologue()
    g2 = conv(*front(startup()))
    vm = g2.vm
    lg = gemm2(g2)
    epilogue(0, vm, lg)
    g = G1(1, VM())
    n1 = OPT['n1']
    for f in range(n1):
        g.ld(f)
    for f in range(n1, 40):
        g.side.add((f - n1) // 2, lambda f=f: g.ld(f))
    for j in range(5):
        g.rd(0, j)
    if OPT['wb'] & 1:
        g.side.add(16, wbl2)
    for s in range(20):
        g.step(s)
    stamp('g1_1')
    scan_1(1)
    vm = VM()
    run(horner(1, vm, LG()))
    if OPT['prefetch'] & 8:
        run(code_touch())
    pre, ld = agg_ld(1)
    A(pre)
    for l in ld:
        vm(l, 'agg')
    scan_2(1, vm, ld)
    g2_setup(1)
    h_flag(1, vm)
    run([f'v_accvgpr_read_b32 v{ZR + i}, a{A_Z + i}' for i in range(20)]
        + [f'v_accvgpr_read_b32 v{YP + i}, a{A_Y + i}' for i in range(10)] + unpack(YF, YP, 10))
    if OPT['wb'] & 8:
        wbl2()
    g2 = G2(1, vm)
    g2.begin()
    lg = gemm2(g2)
    epilogue(1, vm, lg)
    dump_stamps()
    A('L_end:\ns_endpgm')
    for t in TAIL:
        A(t)
    A('s_endpgm\nL_codeend:')


def main():
    hdr = open(os.path.join(os.path.dirname(os.path.abspath(__file__)), NAME + '.s.ref')).read().split('; Override')[0]
    A2 = [hdr.rstrip(), f'; @launch grid=(256,1,1) block=(256,1,1) lds={LDS_SIZE}',
          '.amdgcn_target "amdgcn-amd-amdhsa--gfx950"\n.text',
          f'.globl {NAME}_kernel\n.p2align 8\n.type {NAME}_kernel,@function\n{NAME}_kernel:']
    body()
    n = A.fix_hazards()
    if OPT['align']:
        print('; align: promoted %d, padded %d' % A.align8(999, False), file=sys.stderr)
    cfgs = [dict(w=w, fast=f, ty=ty) for w in range(4) for f in (0, 1) for ty in (0, 1)]
    errs = A.check_waits(cfgs)
    for e in sorted(set(errs))[:40]:
        print('WAITCNT:', e, file=sys.stderr)
    print(f'; {n} hazard pads inserted; {len(A.L)} lines; stamps: {STAMPS}', file=sys.stderr)
    A2.append('; WS ' + '\n; WS '.join(f'{k}={v:#x}' for k, v in dict(RS=WS_RS, H=WS_H, KV=WS_KV, Y=WS_Y, CF=WS_CF,
                                                                   U2=WS_U2, H2=WS_H2, DBG=WS_DBG, CFOLD=1).items()))
    if STAMPS:
        A2.append('; STAMPS ' + ' '.join(STAMPS))
    A2.append(A.text())
    A2.append(f'''.section .rodata,"a"
.p2align 6
.amdhsa_kernel {NAME}_kernel
  .amdhsa_next_free_vgpr 512
  .amdhsa_next_free_sgpr 102
  .amdhsa_accum_offset 256
  .amdhsa_group_segment_fixed_size 0
  .amdhsa_kernarg_size 144
  .amdhsa_user_sgpr_count 2
  .amdhsa_user_sgpr_kernarg_segment_ptr 1
  .amdhsa_system_sgpr_workgroup_id_x 1
.end_amdhsa_kernel''')
    print('\n'.join(A2))


if __name__ == '__main__':
    main()
```

```python
import sys
import os
import copy
sys.path.insert(0, os.path.dirname(os.path.abspath(__file__)))
from asmlib import Asm

NAME = 'interleave_layers__ssm_conv_s5__ssm_conv_h3__prompt'
OPT = dict(stamps=0, rt=1, reuse=1, force_slow=0, budget=1 << 18, align=3, nt=0, prefetch=11,
           gw=1, rsc=18, late=13, lper=3, b1s=0, b2s=0, b3s=1, b4s=3, cfs=1, cfper=14, kls=8, kvf=5, cff=9, fsp=10, fsc=12, wv0=10, wv=16,
           aggl=21, clend=20, cs2=12, nu=3, defer=1, stp=3, cl2s=6, hfl=10, hp=6, yp0=3, clr=3, fbp=-13, fbc=-17, lag=1, cs1=7, cb=5, cl2=8, ys=0, yper=8, zper=8, csp=14, csc=17, cl0=8,
           order='S,A,M,T,O,G,B0,X0,X1,@setup,R,C,@roles', post='L1',
           n0=8, n00=8, n1=8, yp=26, ra=17, rb=24, rper=9, rc=35, wper=2, r3=0, om=1, wb=2, wbw=3, wbs=0, dbg=0, thr=3, tch=12, inl=1, look=14, light=1, fixdur=0, probe='', pick=-1)
for a in sys.argv[1:]:
    k, v = a.split('=')
    assert k in OPT, k
    OPT[k] = v if k in ('probe', 'order', 'post') else int(v, 0)

WS_FU = 0x2000
WS_FH = 0x3000
WS_FS = 0x5000
WS_FY = 0x6000
WS_FK = 0x7000
WS_FB = 0x8000
WS_RS = 0x40000
WS_FX = 0x48000
WS_CS = 0x4A000
WS_AGG = 0x50000
AGG_L = 16 * 32 * 640
WS_ST = 0x140000
WS_U = 0x400000
WS_H = 0xA00000
WS_KV = WS_U if OPT['reuse'] else 0x1000000
WS_Y = 0x1300000
WS_CF = 0x1600000
WS_KB = 0x1900000
WS_U2 = WS_U
WS_H2 = WS_H if OPT['reuse'] else 0x1B00000
WS_DBG = 0x2400000
WS_SIZE = 0x2800000
OOB = 0x70000000

L_AR = 102400
L_SK = L_AR + 2 * 8192
VOFF = 12 * 1056
L_SS, L_SS2, L_V = L_SK + VOFF + 9 * 1056, L_SK + VOFF + 11 * 1056, L_SK + 25 * 1056
L_KV = 0
L_TR = 13824
L_K = 102400
L_PM = 102400
L_PS = L_K + 3 * 8320
L_P = L_PS + 16384
L_RED = 102400
L_Y = 143360
L_AS = 152320
L_G = 149504
L_RS = 158720
L_C = 159744
L_L = 160640
LDS_SIZE = 163840

P_X, P_LRE, P_LIM, P_BRE, P_BIM, P_CRE, P_CIM, P_LDT = 16, 18, 20, 22, 24, 26, 28, 30
P_DSK, P_Q, P_K, P_V, P_SK, P_SSK, P_SD, P_OUT, P_DBG, P_WS = 32, 34, 36, 38, 40, 42, 44, 46, 48, 50
R_WS, R_B, R_T0, R_T1, R_X = 52, 56, 60, 64, 68
sG, sJ, sOnes = 0, 1, 2
sR128, sMem, sR64, sS8, sW, sTag, sMode, sBud, sXcc = 3, 4, 5, 6, 7, 8, 9, 10, 11
sT = [12, 13, 14, 15]
sD = [72, 73]
sBs, sBm, sXs, sXm = 74, 75, 76, 77
sH = [78, 79, 80, 81, 82]
sAgg = 83
sFW, sFK = 84, 85
sC0, sCs = 86, 24
sKm, sKf, sKs = 40, 41, 36
sX = [87, 88, 89, 90, 91, 92, 93, 94, 95]
sPub = 96
sPC = 98
sSt = 100
sL = [34, 35]
sDS = [16, 17, 18, 19]
sZ = [20, 21, 48, 49]
sYO = [50, 51]
sDm = [30, 31, 25, 45]
sEpW = 44

vUA, vL, vL16, vI, vQ = 0, 1, 2, 3, 4
vBA = [5, 6, 7, 8]
vAS, vStamp = 9, 10
vT = [11, 12, 13, 14, 15]
LR, LS, VA = 16, 21, 26
mL8, mL128, mW = 36, 38, 40
vU = [42, 43, 44, 45, 46, 47]
ACC, BF, RING, NR = 48, 88, 128, 16
A_Y, A_Z, A_DSK = 200, 210, 230
PARK = dict(tw=240, tr=241, ts=242, bd=243, bd2=244, junk=250)
A_CV = 200
A_X, A_ZU = 216, 226

A = Asm()
NT = ' nt' if OPT['nt'] & 1 else ''
STAMPS = []
PREV = [61]
TAIL = []
DPPM = 'row_mask:0xf bank_mask:0xf'
SWP = f'quad_perm:[1,0,3,2] {DPPM}'
W = f's[{R_WS}:{R_WS + 3}]'


def s2(n): return f's[{n}:{n + 1}]'
def s4(n): return f's[{n}:{n + 3}]'
def v2(n): return f'v[{n}:{n + 1}]'
def v3(n): return f'v[{n}:{n + 2}]'
def v4(n): return f'v[{n}:{n + 3}]'
def a4(n): return f'a[{n}:{n + 3}]'


def srd(r, p, size):
    A(f's_mov_b32 s{r}, s{p}\ns_and_b32 s{r + 1}, s{p + 1}, 0xffff\ns_mov_b32 s{r + 2}, {size}\n'
      f's_mov_b32 s{r + 3}, 0x20000')


def stamp(name, level=1):
    if ':' in OPT['probe']:
        a, b, kind = OPT['probe'].split(':')
        op = 's_memtime' if kind == 'c' else 's_memrealtime'
        if name == a:
            A(f'{op} vcc\ns_waitcnt lgkmcnt(0)\nv_mov_b32 v{vStamp}, vcc_lo')
        if name == b:
            A(f'{op} vcc\ns_waitcnt lgkmcnt(0)\nv_sub_u32 v{vStamp}, vcc_lo, v{vStamp}\n'
              + (f'v_lshrrev_b32 v{vStamp}, 2, v{vStamp}' if kind == 'c' else f'v_lshlrev_b32 v{vStamp}, 2, v{vStamp}'))
    if OPT['probe'] == name:
        A(f's_memrealtime vcc\ns_waitcnt lgkmcnt(0)\ns_sub_u32 vcc_lo, vcc_lo, s{sSt}\ns_lshl_b32 vcc_lo, vcc_lo, 2\n'
          f'v_mov_b32 v{vStamp}, vcc_lo')
    if not OPT['stamps'] or (OPT['stamps'] < 0 and name != 'start') or level > abs(OPT['stamps']):
        return
    if name not in STAMPS:
        STAMPS.append(name)
    i = STAMPS.index(name)
    op = 's_memrealtime' if OPT['rt'] else 's_memtime'
    if name == 'start' or not OPT['light']:
        A(f'{op} {s2(sSt)}\ns_waitcnt lgkmcnt(0)\nv_writelane_b32 v{vStamp}, s{sSt}, {i}')
    else:
        A(f'v_writelane_b32 v{vStamp}, s{sSt}, {PREV[0]} ; nocheck\n{op} {s2(sSt)} ;@{i}')
        PREV[0] = i


class Cnt:
    def __init__(self, what, cap):
        self.n, self.t, self.what, self.cap, self.done = 0, {}, what, cap, 0

    def __call__(self, text, name=None):
        A(text)
        self.n += 1
        if name is not None:
            self.t[name] = self.n
        return self.n

    def wait(self, *names):
        tok = max(self.t[x] if not isinstance(x, int) else x for x in names)
        if tok <= self.done:
            return
        k = self.n - tok
        assert k >= 0
        if k <= self.cap:
            A(f's_waitcnt {self.what}({k})')
            self.done = tok
        else:
            A(f's_waitcnt {self.what}({self.cap})')
            self.done = self.n - self.cap

    def merge(self, o):
        n = max(self.n, o.n)
        t = {}
        for k in set(self.t) | set(o.t):
            t[k] = n - min(c.n - c.t[k] for c in (self, o) if k in c.t)
        self.done = n - max(self.n - self.done, o.n - o.done)
        self.n, self.t = n, t


def VM(): return Cnt('vmcnt', 63)
def LG(): return Cnt('lgkmcnt', 15)


def lines(x):
    if isinstance(x, str):
        return [l for l in x.split('\n') if l.strip()]
    if isinstance(x, (list, tuple)):
        return [l for it in x for l in lines(it)]
    return [x]


def atom(*items):
    return lambda: run(items)


def run(items):
    for it in lines(items):
        A(it) if isinstance(it, str) else it()


class Side:
    def __init__(self):
        self.q = {}

    def add(self, step, *items):
        self.q.setdefault(step, []).extend(lines(items))

    def spread(self, step0, per, items):
        flat = lines(items)
        for i, it in enumerate(flat):
            self.add(step0 + i // per, it)
        return step0 + (len(flat) + per - 1) // per

    def run(self, step, slots_left):
        q = self.q.get(step, [])
        n = -(-len(q) // slots_left)
        self.q[step] = q[n:]
        for it in q[:n]:
            A(it) if isinstance(it, str) else it()

    def left(self, lo=0, hi=999):
        return [k for k, v in self.q.items() if v and lo <= k < hi]


class Cap:
    def __enter__(self):
        self.save = A.L
        A.L = []
        return self

    def __exit__(self, *a):
        self.lines = [i.text for i in A.L]
        A.L = self.save


def check_tags(regs, reload, masked=False, x=None, y=None, inline=0):
    x, y = vT[4] if x is None else x, vT[3] if y is None else y
    if len(regs) <= 2:
        chk = [f'v_xor_b32 v{x}, s{sTag}, v{regs[0]}']
        for r in regs[1:]:
            chk += [f'v_xor_b32 v{y}, s{sTag}, v{r}', f'v_or_b32 v{x}, v{x}, v{y}']
        chk.append(f'v_cmp_lt_u32 vcc, 15, v{x}' if masked else f'v_cmp_ne_u32 vcc, 0, v{x}')
    else:
        assert not masked and len(regs) % 2 == 0
        chk = [f'v_min3_u32 v{x}, v{regs[0]}, v{regs[1]}, s{sTag}', f'v_max3_u32 v{y}, v{regs[0]}, v{regs[1]}, s{sTag}']
        for i in range(2, len(regs), 2):
            chk += [f'v_min3_u32 v{x}, v{x}, v{regs[i]}, v{regs[i + 1]}', f'v_max3_u32 v{y}, v{y}, v{regs[i]}, v{regs[i + 1]}']
        chk.append(f'v_cmp_ne_u32 vcc, v{x}, v{y}')
    lab, done = A.label('again'), A.label('ok')
    A.cond[lab] = lambda c: False
    if inline and OPT['inl']:
        if inline == 2:
            A.cond[done] = lambda c: True
            A('\n'.join(chk) + f'\ns_cbranch_vccz {done}')
        out = A.label('out')
        A.cond[out] = lambda c: False
        run([f'{lab}:'] + lines(reload) + [f's_sub_u32 s{sBud}, s{sBud}, 1', f's_cmp_gt_i32 s{sBud}, 0', 's_waitcnt vmcnt(0)']
            + chk + [f's_cbranch_scc0 {out}', f's_cbranch_vccnz {lab}', f'{out}:', f'{done}:'])
        return
    if inline == 1:
        run(lines(reload) + ['s_waitcnt vmcnt(0)'])
    A('\n'.join(chk) + f'\ns_cbranch_vccnz {lab}\n{done}:')
    TAIL.append('\n'.join([f'{lab}:', f's_sub_u32 s{sBud}, s{sBud}, 1', f's_cmp_gt_i32 s{sBud}, 0', f's_cbranch_scc0 {done}']
                          + lines(reload) + ['s_waitcnt vmcnt(0)'] + chk + [f's_cbranch_vccnz {lab}', f's_branch {done}']))


def mode_stores(ls, mode=sMode, through=False):
    if through:
        return run([(l + ' sc1') if l.startswith('buffer_store') else l for l in ls])
    slow, back = A.label('slow'), A.label('back')
    A.cond[slow] = lambda c: not c['fast'] or (mode != sMode and c['w'] == 2)
    A(f's_cmp_eq_u32 s{mode}, 0\ns_cbranch_scc1 {slow}')
    for l in ls:
        A(l)
    A(f'{back}:')
    TAIL.append(f'{slow}:\n' + '\n'.join((l + ' sc1') if l.startswith('buffer_store') else l for l in ls)
                + f'\ns_nop 1\ns_branch {back}')


def flag_store(soff, local, vm=None, mode=sMode):
    t = vT[4]
    A(f'v_mov_b32 v{t}, s{sTag}\ns_mov_b64 exec, 1')
    line = f'buffer_store_dword v{t}, off, {W}, {soff}'
    if local:
        mode_stores([line], mode)
    else:
        A(line + ' sc1')
    A('s_mov_b64 exec, -1')
    if vm is not None:
        vm.n += 1


def unpack(dst, src, n):
    out = []
    for i in range(n):
        out += [f'v_lshlrev_b32 v{dst + 2 * i}, 16, v{src + i}', f'v_and_b32 v{dst + 2 * i + 1}, 0xffff0000, v{src + i}']
    return out


def rnd_bf16(v):
    A(f'v_cvt_pk_bf16_f32 v{v}, v{v}, v{v}\nv_and_b32 v{v}, 0xffff0000, v{v}')


def cmul(dst, g, lam, add=None):
    if add is None:
        a = f'v_pk_mul_f32 {v2(dst)}, {v2(g)}, {v2(lam)} op_sel:[1,1] op_sel_hi:[0,1] neg_lo:[0,1]'
    else:
        a = f'v_pk_fma_f32 {v2(dst)}, {v2(g)}, {v2(lam)}, {v2(add)} op_sel:[1,1,0] op_sel_hi:[0,1,1] neg_lo:[0,1,0]'
    return [a, f'v_pk_fma_f32 {v2(dst)}, {v2(g)}, {v2(lam)}, {v2(dst)} op_sel:[0,0,0] op_sel_hi:[1,0,1]']


def park(name, v): A(f'v_accvgpr_write_b32 a{PARK[name]}, v{v}')
def unpark(name, v): return f'v_accvgpr_read_b32 v{v}, a{PARK[name]}'


def code_touch():
    return [f's_and_b32 vcc_lo, s{sJ}, 7', 's_lshl_b32 vcc_lo, vcc_lo, 2', f's_add_u32 vcc_lo, vcc_lo, s{sW}',
            's_lshl_b32 vcc_lo, vcc_lo, 11', f'v_lshl_add_u32 v{vT[4]}, v{vI}, 7, vcc_lo',
            f'v_min_u32 v{vT[4]}, L_codeend-L_pc-4, v{vT[4]}', 's_mov_b64 exec, 0xffff',
            f'global_load_dword a250, v{vT[4]}, {s2(sPC)}', 's_mov_b64 exec, -1']


def wbl2():
    A(f's_lshl_b32 vcc_lo, s{sJ}, 2\ns_add_u32 vcc_lo, vcc_lo, s{sW}\ns_cmp_lg_u32 vcc_lo, {OPT["wbw"]}')
    with A.skip_if('s_cbranch_scc1', lambda c: True):
        A('buffer_wbl2 sc1')


AF = 128
vAR, vAR2, vXd, vXd2, vBd, vBd2, vR, vSgn = 144, 145, 146, 147, 148, 149, 150, 151
CR, CI, CT, CTMP, vCd = 176, 180, 192 if OPT['cfs'] >= 0 else 128, 152, 174
vKV, vKS, vKR, vSR, vFX, vFXa = 169, 171, 172, 173, 184, 185
KK, VV, SKW, WW, AC, KT = 48, 70, 88, 96, 112, 216
OUT = [232, 236, 88, 92]
XP, XS = 48, 88
PAR = 229
KA, KB, vKO, vKP = 192, 204, 186, 163
vZ, vXT = 224, 242
RSL, vRS, CSL = 152, 160, 246
MM, RR = 88, 96
vFP, vFA = 188, 187


def x_dma(vm, p):
    s2i, m = p >> 1, p & 1
    A(f's_add_u32 m0, s{sXm}, {(p % 7) * 8192}\ns_add_u32 s{sT[3]}, s{sXs}, {4 * m * 1280 + s2i * 128}')
    vm(f'buffer_load_dwordx4 v{vXd}, {s4(R_X)}, s{sT[3]} offen lds')
    vm(f'buffer_load_dwordx4 v{vXd2}, {s4(R_X)}, s{sT[3]} offen offset:1024 lds', ('x', p))


def b_dma(vm, g, j, bd=vBd, bd2=vBd2):
    A(f's_add_u32 m0, s{sBm}, {g * 20480 + j * 2048}\ns_add_u32 s{sT[2]}, s{sBs}, {g * 256 + j * 10240}')
    vm(f'buffer_load_dwordx4 v{bd}, {s4(R_B)}, s{sT[2]} offen lds', ('b', g))
    if j < 4:
        vm(f'buffer_load_dwordx4 v{bd2}, {s4(R_B)}, s{sT[2]} offen offset:2048 lds', ('b', g))


def b_all(vm, g):
    t = vT
    srd(R_T1, P_BRE, 819200)
    A(f'v_xor_b32 v{t[0]}, 64, v{vBd}\nv_xor_b32 v{t[1]}, 64, v{vBd2}\ns_mul_i32 s{sT[3]}, s{sMem}, 51200')
    for hf in range(2):
        for j in (0, 2, 4):
            A(f's_add_u32 s{sT[2]}, s{sT[3]}, {g * 256 + hf * 128 + j * 10240}')
            for comp, (r, a, a2) in enumerate(((R_T1, t[0], t[1]), (R_B, vBd, vBd2))):
                A(f's_mov_b32 m0, {g * 20480 + hf * 10240 + j * 2048 + comp * 1024}')
                vm(f'buffer_load_dwordx4 v{a}, {s4(r)}, s{sT[2]} offen lds', ('b', g))
                if j < 4:
                    vm(f'buffer_load_dwordx4 v{a2}, {s4(r)}, s{sT[2]} offen offset:2048 lds', ('b', g))


def prologue():
    A('s_cmp_ge_u32 s2, 256\ns_cbranch_scc1 L_end')
    A.cond['L_end'] = lambda c: False
    if OPT['stamps'] or OPT['fixdur']:
        A(f's_memrealtime {s2(sSt)}\nv_mov_b32 v{vStamp}, 0')
    A('s_load_dwordx16 s[16:31], s[0:1], 0\ns_load_dwordx16 s[32:47], s[0:1], 64\n'
      's_load_dwordx4 s[48:51], s[0:1], 128')
    t = vT
    A(f'''v_and_b32 v{vL}, 63, v0
v_lshrrev_b32 v{t[0]}, 6, v0
v_lshlrev_b32 v{vL16}, 4, v{vL}
v_readfirstlane_b32 s{sW}, v{t[0]}
v_and_b32 v{vI}, 15, v{vL}
v_lshrrev_b32 v{vQ}, 4, v{vL}
s_and_b32 s{sT[0]}, s2, 7
s_lshr_b32 s{sT[1]}, s2, 3
s_getpc_b64 {s2(sPC)}
L_pc:
s_and_b32 s{sMem}, s{sT[1]}, 15
s_lshr_b32 s{sT[2]}, s{sT[1]}, 4
s_lshl_b32 s{sR128}, s{sT[0]}, 1
s_add_u32 s{sR128}, s{sR128}, s{sT[2]}
s_mov_b32 s{sG}, s{sT[0]}
s_mov_b32 s{sJ}, s{sT[1]}''')
    if OPT['prefetch'] & 1:
        A('\n'.join(code_touch()))
    A(f'''v_lshrrev_b32 v{t[0]}, 3, v{vL}
v_and_b32 v{t[2]}, 7, v{vL}
v_mul_u32_u24 v{vR}, 1280, v{t[0]}
v_lshl_add_u32 v{vR}, v{t[2]}, 4, v{vR}''')
    kv_src()
    A('s_waitcnt lgkmcnt(0)')
    if OPT['stamps']:
        A(f'v_writelane_b32 v{vStamp}, s{sSt}, 62')
        stamp('start')


def dma_addr():
    t = vT
    A(f'''v_lshrrev_b32 v{t[0]}, 3, v{vL}
v_and_b32 v{t[1]}, 6, v{t[0]}
v_and_b32 v{t[2]}, 7, v{vL}
s_movk_i32 s{sT[3]}, 0x78
v_bfe_u32 v{t[3]}, s{sT[3]}, v{t[1]}, 2
v_xor_b32 v{t[3]}, v{t[3]}, v{t[2]}
v_mul_u32_u24 v{vXd}, 1280, v{t[0]}
v_lshl_add_u32 v{vBd}, v{t[3]}, 4, v{vXd}
s_and_b32 s{sT[0]}, s{sW}, 1
s_lshl_b32 s{sT[1]}, s{sT[0]}, 6
v_xor_b32 v{vBd}, s{sT[1]}, v{vBd}
v_add_u32 v{vBd2}, {10240 - 2048}, v{vBd}
v_xor_b32 v{t[1]}, v{t[1]}, v{t[2]}
v_and_b32 v{t[0]}, 4, v{t[0]}
v_mul_u32_u24 v{t[0]}, 1280, v{t[0]}
v_lshl_add_u32 v{t[0]}, v{t[1]}, 4, v{t[0]}
v_add_u32 v{vXd}, v{t[0]}, v{vXd}
v_add_u32 v{vXd2}, {20480 - 1024}, v{vXd}
s_lshr_b32 s{sT[1]}, s{sW}, 1
s_mul_i32 s{sBm}, s{sT[1]}, 10240
s_lshl_b32 s{sT[0]}, s{sT[0]}, 10
s_add_u32 s{sBm}, s{sBm}, s{sT[0]}
s_mul_i32 s{sBs}, s{sMem}, 51200
s_lshl_b32 s{sT[1]}, s{sT[1]}, 7
s_add_u32 s{sBs}, s{sBs}, s{sT[1]}
s_lshl_b32 s{sXs}, s{sR128}, 2
s_add_u32 s{sXs}, s{sXs}, s{sW}
s_mul_i32 s{sXs}, s{sXs}, 40960
s_lshl_b32 s{sXm}, s{sW}, 11
s_add_u32 s{sXm}, s{sXm}, {L_AR}''')
    A(f'''s_bitcmp1_b32 s{sW}, 0
s_cselect_b32 s{R_B}, s{P_BIM}, s{P_BRE}
s_cselect_b32 s{R_B + 1}, s{P_BIM + 1}, s{P_BRE + 1}
s_and_b32 s{R_B + 1}, s{R_B + 1}, 0xffff
s_mov_b32 s{R_B + 2}, 819200
s_mov_b32 s{R_B + 3}, 0x20000
s_bitcmp1_b32 s{sR128}, 3
s_cselect_b32 s{R_T0}, s{P_BIM}, s{P_BRE}
s_cselect_b32 s{R_T0 + 1}, s{P_BIM + 1}, s{P_BRE + 1}
s_and_b32 s{R_T0 + 1}, s{R_T0 + 1}, 0xffff
s_mov_b32 s{R_T0 + 2}, 819200
s_mov_b32 s{R_T0 + 3}, 0x20000''')
    srd(R_X, P_X, 2621440)
    srd(R_WS, P_WS, WS_SIZE)


def kv_src():
    A(f'''s_mul_i32 s{sT[0]}, s{sJ}, 81920
s_lshl_b32 s{sT[1]}, s{sG}, 7
s_add_u32 s{sT[0]}, s{sT[0]}, s{sT[1]}
v_add_u32 v{vKV}, s{sT[0]}, v{vR}
s_lshl_b32 s{sX[8]}, s{sG}, 5
s_add_u32 s{sX[8]}, s{sX[8]}, s{sJ}
s_mul_i32 s{sT[0]}, s{sX[8]}, 10240
s_add_u32 s{sT[0]}, s{sT[0]}, 1024
v_add_u32 v{vKV + 1}, s{sT[0]}, v{vR}''')


def kv_addr():
    t = vT
    A(f'''v_lshrrev_b32 v{t[0]}, 3, v{vL}
v_and_b32 v{t[1]}, 7, v{vL}
v_mul_u32_u24 v{t[2]}, 1056, v{t[1]}
v_lshl_add_u32 v{t[2]}, v{t[0]}, 3, v{t[2]}
s_lshl_b32 s{sT[0]}, s{sW}, 6
s_add_u32 s{sT[0]}, s{sT[0]}, {L_SK}
v_add_u32 v{vKR}, s{sT[0]}, v{t[2]}
s_lshl_b32 s{sT[0]}, s{sW}, 8
s_add_u32 s{sT[0]}, s{sT[0]}, {L_SS}
v_lshl_add_u32 v{vSR}, v{t[0]}, 5, s{sT[0]}
v_sub_u32 v{t[2]}, 7, v{t[1]}
v_lshlrev_b32 v{t[2]}, 4, v{t[2]}
v_lshl_add_u32 v{vKS}, v{t[0]}, 14, v{t[2]}
s_mul_i32 s{sT[0]}, s{sG}, 80
s_lshl_b32 s{sT[1]}, s{sW}, 5
s_add_u32 s{sT[0]}, s{sT[0]}, s{sT[1]}
s_lshl_b32 s{sT[0]}, s{sT[0]}, 12
s_lshl_b32 s{sT[1]}, s{sJ}, 7
s_sub_u32 s{sT[0]}, s{sT[0]}, s{sT[1]}
s_add_u32 s{sX[0]}, s{sT[0]}, {WS_KV + 3968}
s_add_u32 s{sKf}, s{sFK}, {WS_FK}
s_movk_i32 s{sKs}, 4096
s_cmp_lg_u32 s{sW}, 2''')
    with A.skip_if('s_cbranch_scc1', lambda c: c['w'] != 2):
        A(f'''v_bfe_u32 v{t[2]}, v{vL}, 4, 1
v_mul_u32_u24 v{t[2]}, 2112, v{t[2]}
v_and_b32 v{t[3]}, 15, v{vL}
v_lshl_add_u32 v{t[2]}, v{t[3]}, 3, v{t[2]}
v_add_u32 v{vKR}, {L_SK + 9 * 1056}, v{t[2]}
v_and_b32 v{t[2]}, 31, v{vL}
v_lshlrev_b32 v{t[2]}, 5, v{t[2]}
v_add_u32 v{vSR}, {L_SS2}, v{t[2]}
v_cmp_gt_u32 vcc, 32, v{vL}
v_mov_b32 v{t[3]}, {OOB}
s_lshl_b32 s{sX[0]}, s{sX[8]}, 11
s_add_u32 s{sX[0]}, s{sX[0]}, {WS_KB}
v_cndmask_b32 v{vKS}, v{t[3]}, v{vL16}, vcc
s_lshl_b32 s{sKf}, s{sX[8]}, 2
s_add_u32 s{sKf}, s{sKf}, {WS_FB}
s_movk_i32 s{sKs}, 512''')


def kv_dma(vm, r, a, so, pos, halo=False):
    if halo:
        A(f'v_subrev_u32 v{vT[0]}, 10240, v{a}\ns_mov_b32 exec_lo, 0\ns_mov_b32 exec_hi, 0xffffff00')
    A(f's_mov_b32 m0, {L_SK + pos * 1056}')
    if so > 64:
        A(f's_mov_b32 s{sT[0]}, {so}')
    vm(f'buffer_load_dwordx4 v{vT[0] if halo else a}, {s4(r)}, {"s%d" % sT[0] if so > 64 else so} offen{NT} lds', 'kv')
    if halo:
        A('s_mov_b64 exec, -1')


def kv_loads0(vm):
    srd(R_T0, P_K, 2621440)
    for p in range(1, 8):
        kv_dma(vm, R_T0, vKV, (p - 1) * 10240, p)
    kv_dma(vm, R_T0, vKV, 0, 0, True)


def kv_loads1(vm):
    srd(R_T1, P_V, 2621440)
    for p in range(1, 9):
        kv_dma(vm, R_T1, vKV, (p - 1) * 10240, 12 + p)


def kv_loads2(vm):
    srd(R_T0, P_K, 2621440)
    srd(R_T1, P_V, 2621440)
    kv_dma(vm, R_T0, vKV, 7 * 10240, 8)
    for hf in range(2):
        kv_dma(vm, R_T0, vKV + 1, 128 * hf, 10 + 2 * hf)
        kv_dma(vm, R_T1, vKV + 1, 128 * hf, 22 + 2 * hf)
    for hf in range(2):
        kv_dma(vm, R_T0, vKV + 1, 128 * hf, 9 + 2 * hf, True)
    srd(R_T1, P_SK, 5120)
    A(f's_mov_b32 m0, {L_SS2}\ns_movk_i32 s{sT[0]}, 4096')
    vm(f'buffer_load_dwordx4 v{vL16}, {s4(R_T1)}, s{sT[0]} offen{NT} lds', 'kv')
    A(f's_mov_b32 m0, {L_SS}\ns_lshl_b32 s{sT[0]}, s{sG}, 9\ns_mov_b32 exec_hi, 0')
    vm(f'buffer_load_dwordx4 v{vL16}, {s4(R_T1)}, s{sT[0]} offen{NT} lds', 'kv')
    A('s_mov_b32 exec_hi, -1')


def c_loads(vm):
    t = vT
    A(f'''v_mul_u32_u24 v{t[0]}, 171, v{vL}
v_lshrrev_b32 v{t[0]}, 11, v{t[0]}
v_mul_u32_u24 v{t[1]}, 12, v{t[0]}
v_sub_u32 v{t[1]}, v{vL}, v{t[1]}
s_mul_i32 s{sT[0]}, s{sMem}, 5
v_min_u32 v{t[2]}, 4, v{t[0]}
v_add_u32 v{t[2]}, s{sT[0]}, v{t[2]}
s_mul_i32 s{sT[1]}, s{sW}, 12
v_add_u32 v{t[1]}, s{sT[1]}, v{t[1]}
v_cmp_gt_u32 vcc, 40, v{t[1]}
v_cmp_gt_u32 {s2(sT[2])}, 5, v{t[0]}
s_lshr_b32 s{sT[1]}, s{sJ}, 4
s_mul_i32 s{sT[1]}, s{sT[1]}, 40
v_min_u32 v{t[1]}, 39, v{t[1]}
s_and_b64 vcc, vcc, {s2(sT[2])}
v_add_u32 v{t[1]}, s{sT[1]}, v{t[1]}
s_mul_i32 s{sT[2]}, s{sG}, 102400
v_mul_u32_u24 v{t[3]}, 1280, v{t[1]}
v_lshl_add_u32 v{t[3]}, v{t[2]}, 4, v{t[3]}
v_add_u32 v{t[3]}, s{sT[2]}, v{t[3]}''')
    if OPT['dbg'] & 16:
        A(f'v_mov_b32 v{t[3]}, v{vL16}')
    vm(f'global_load_dwordx4 {v4(CR)}, v{t[3]}, {s2(P_CRE)}{NT}')
    vm(f'global_load_dwordx4 {v4(CI)}, v{t[3]}, {s2(P_CIM)}{NT}', 'craw')
    A(f'''v_lshrrev_b32 v{t[3]}, 2, v{t[2]}
v_mul_u32_u24 v{t[3]}, 10240, v{t[3]}
v_and_b32 v{t[2]}, 3, v{t[2]}
v_lshl_add_u32 v{t[3]}, v{t[2]}, 8, v{t[3]}
v_lshrrev_b32 v{t[2]}, 4, v{t[1]}
v_lshl_add_u32 v{t[3]}, v{t[2]}, 10, v{t[3]}
v_and_b32 v{t[1]}, 15, v{t[1]}
v_lshl_add_u32 v{t[3]}, v{t[1]}, 4, v{t[3]}
v_mov_b32 v{t[2]}, {OOB}
v_cndmask_b32 v{vCd}, v{t[2]}, v{t[3]}, vcc
v_min_u32 v{t[0]}, 4, v{t[0]}
v_lshlrev_b32 v{t[0]}, 6, v{t[0]}
v_add_u32 v{vCd + 1}, {L_C}, v{t[0]}''')


def cf_work(vm, lg):
    it = [lambda d=d: lg(f'ds_read_b128 {v4(CT + 4 * d)}, v{vCd + 1} offset:{16 * d}', 'ctab') for d in range(4)]
    it.append(lambda: (vm.wait('craw'), lg.wait('ctab')))
    r, i, o = CTMP, CTMP + 2, CTMP + 4
    for d in range(4):
        cr, ci = v2(CT + 4 * d), v2(CT + 4 * d + 2)
        it += unpack(r, CR + d, 1) + unpack(i, CI + d, 1)
        it += [f'v_pk_mul_f32 {v2(o)}, {v2(r)}, {cr}',
               f'v_pk_mul_f32 {v2(o + 2)}, {v2(r)}, {ci} neg_lo:[0,1] neg_hi:[0,1]',
               f'v_pk_fma_f32 {v2(o)}, {v2(i)}, {ci}, {v2(o)} neg_lo:[0,1,0] neg_hi:[0,1,0]',
               f'v_pk_fma_f32 {v2(o + 2)}, {v2(i)}, {cr}, {v2(o + 2)} neg_lo:[0,1,0] neg_hi:[0,1,0]',
               f'v_cvt_pk_bf16_f32 v{CR + d}, v{o}, v{o + 1}',
               f'v_cvt_pk_bf16_f32 v{CI + d}, v{o + 2}, v{o + 3}']
    it.append(atom(f's_mul_i32 s{sT[0]}, s{sG}, 204800', f's_add_u32 s{sT[0]}, s{sT[0]}, {WS_CF}',
                   f's_add_u32 s{sT[1]}, s{sT[0]}, 5120',
                   lambda: vm(f'buffer_store_dwordx4 {v4(CR)}, v{vCd}, {W}, s{sT[0]} offen sc1'),
                   lambda: vm(f'buffer_store_dwordx4 {v4(CI)}, v{vCd}, {W}, s{sT[1]} offen sc1', 'cfst')))
    return it


def consts():
    lre, lim, ldt = PAR, PAR + 1, PAR + 2
    t = 192
    zr, zi, e, rev, sn, cs = t, t + 1, t + 2, t + 3, t + 4, t + 5
    aL, aV, aC = t + 6, t + 7, t + 8
    P = t + 10
    V = ACC
    Wt = 84
    A(f'''v_lshlrev_b32 v{lre}, 16, v{lre}
v_lshlrev_b32 v{lim}, 16, v{lim}
v_lshlrev_b32 v{ldt}, 16, v{ldt}
v_mul_f32 v{ldt}, 0x3fb8aa3b, v{ldt}
v_exp_f32 v{ldt}, v{ldt}
v_min_u32 v{aC}, 39, v{vL}
v_mul_u32_u24 v{aL}, 80, v{aC}
v_mul_u32_u24 v{aV}, 176, v{aC}''')
    rnd_bf16(ldt)
    A(f'''v_mul_f32 v{zr}, v{ldt}, v{lre}
v_mul_f32 v{zi}, v{ldt}, v{lim}
v_mul_f32 v{zr}, 0x3fb8aa3b, v{zr}
v_mul_f32 v{zi}, 0x3e22f983, v{zi}''')
    for kf, dst in (('1.0', P), ('0x41000000', V + 2)):
        A(f'''v_mul_f32 v{e}, {kf}, v{zr}
v_mul_f32 v{rev}, {kf}, v{zi}
v_exp_f32 v{e}, v{e}
v_fract_f32 v{rev}, v{rev}
v_sin_f32 v{sn}, v{rev}
v_cos_f32 v{cs}, v{rev}
v_mul_f32 v{dst + 1}, v{e}, v{sn}
v_mul_f32 v{dst}, v{e}, v{cs}''')
    A(f'''v_mul_f32 v{e}, v{lre}, v{lre}
v_fmac_f32 v{e}, v{lim}, v{lim}
v_rcp_f32 v{e}, v{e}
v_add_f32 v{rev}, -1.0, v{P}
v_add_f32 v{e}, v{e}, v{e}
v_mul_f32 v{sn}, v{rev}, v{lre}
v_fmac_f32 v{sn}, v{P + 1}, v{lim}
v_mul_f32 v{cs}, v{P + 1}, v{lre}
v_fma_f32 v{cs}, -v{rev}, v{lim}, v{cs}
v_mul_f32 v{sn}, v{e}, v{sn}
v_mul_f32 v{cs}, v{e}, v{cs}
v_and_b32 v{e}, 1, v{aC}
v_lshrrev_b32 v{aC}, 1, v{aC}
v_lshlrev_b32 v{aC}, 4, v{aC}
v_lshl_add_u32 v{aC}, v{e}, 2, v{aC}
v_add_u32 v{aC}, {L_C}, v{aC}
v_add_u32 v{aL}, {L_L}, v{aL}
v_add_u32 v{aV}, {L_V}, v{aV}
ds_write2_b32 v{aC}, v{sn}, v{cs} offset0:0 offset1:2
s_waitcnt lgkmcnt(0)
v_mov_b32 v{V}, 1.0
v_mov_b32 v{V + 1}, 0
v_mov_b32 v{Wt}, 1.0
v_mov_b32 v{Wt + 1}, 0''')
    a = [cmul(P + 2 * k, P + 2 * k - 2, P) for k in range(1, 7)]
    b = [cmul(V + 2 * s, V + 2 * s - 2, V + 2) for s in range(2, 17)]
    for s, ops in enumerate(b):
        A(ops[0])
        if s < len(a):
            A(a[s][0])
        A(ops[1])
        if s < len(a):
            A(a[s][1])
        if 6 <= s < 13:
            k = s - 6
            A(f'ds_write2_b32 v{aL}, v{P + 2 * k}, v{P + 2 * k + 1} offset0:{k} offset1:{8 + k}')
        if s % 2 == 1:
            A(f'ds_write_b128 v{aV}, {v4(V + 2 * (s - 1))} offset:{8 * (s - 1)}')
    A(f'ds_write2_b32 v{aL}, v{V + 2}, v{V + 3} offset0:7 offset1:15')
    A(f'ds_write_b128 v{aV}, {v4(V + 28)} offset:112')
    A('\n'.join(cmul(e, V + 32, V + 32) + cmul(Wt + 2, e, e) + cmul(Wt + 4, Wt + 2, Wt + 2) + cmul(Wt + 6, Wt + 4, Wt + 2)))
    A(f'''ds_write_b64 v{aV}, {v2(V + 32)} offset:128
ds_write_b128 v{aV}, {v4(Wt)} offset:144
ds_write_b128 v{aV}, {v4(Wt + 4)} offset:160''')


def const_reads(lg):
    t = vT
    it = lines(f'''v_lshrrev_b32 v{t[0]}, 1, v{vI}
v_mul_u32_u24 v{t[1]}, 176, v{t[0]}
v_mul_u32_u24 v{t[0]}, 80, v{t[0]}
v_and_b32 v{t[2]}, 1, v{vI}
v_lshl_add_u32 v{t[1]}, v{t[2]}, 2, v{t[1]}
v_lshl_add_u32 v{t[1]}, v{vQ}, 3, v{t[1]}
s_lshl_b32 s{sT[0]}, s{sW}, 5
s_add_u32 s{sT[0]}, s{sT[0]}, {L_V}
v_add_u32 v{t[1]}, s{sT[0]}, v{t[1]}
v_add_u32 v{t[0]}, {L_L}, v{t[0]}
v_cvt_f32_u32 v{vSgn}, v{t[2]}
v_min_u32 v{t[2]}, 39, v{vL}
v_mul_u32_u24 v{t[2]}, 176, v{t[2]}
v_fma_f32 v{vSgn}, 2.0, v{vSgn}, -1.0
v_add_u32 v{t[2]}, {L_V}, v{t[2]}
s_lshl_b32 s{sT[0]}, s{sW}, 3''')
    for j in range(5):
        it.append(lambda j=j: lg(f'ds_read_b32 v{LR + j}, v{t[0]} offset:{j * 640}'))
        it.append(lambda j=j: lg(f'ds_read_b32 v{LS + j}, v{t[0]} offset:{j * 640 + 32}'))
        it.append(lambda j=j: lg(f'ds_read_b32 v{VA + 2 * j}, v{t[1]} offset:{j * 1408}'))
    it.append(lambda: lg(f'ds_read_b64 {v2(mL8)}, v{t[2]} offset:8'))
    it.append(lambda: lg(f'ds_read_b64 {v2(mL128)}, v{t[2]} offset:128'))
    it.append(f'v_add_u32 v{t[2]}, s{sT[0]}, v{t[2]}')
    it.append(lambda: lg(f'ds_read_b64 {v2(mW)}, v{t[2]} offset:144', 'cst'))
    fix = [lambda: lg.wait('cst')]
    for j in range(5):
        fix += [f'v_mul_f32 v{LS + j}, v{vSgn}, v{LS + j}',
                f'v_mul_f32_dpp v{VA + 2 * j + 1}, v{VA + 2 * j}, v{vSgn} {SWP}']
    return it, fix


def kv_work(vm, lg):
    rd = [lambda: lg(f'ds_read_b128 {v4(SKW)}, v{vSR}'), lambda: lg(f'ds_read_b128 {v4(SKW + 4)}, v{vSR} offset:16', 'skw')]
    for r in range(11):
        off = 1056 + (r - 3) * 128 if r >= 3 else (5 + r) * 128
        rd.append(lambda r=r, off=off: lg(f'ds_read_b64 {v2(KK + 2 * r)}, v{vKR} offset:{off}', 'kk'))
    for r in range(8):
        rd.append(lambda r=r: lg(f'ds_read_b64 {v2(VV + 2 * r)}, v{vKR} offset:{VOFF + 1056 + r * 128}', 'vv'))
    it = [lambda: lg.wait('skw')]
    for e in range(4):
        for i in range(4):
            src = SKW + 2 * e + (i >> 1)
            it.append(f'v_and_b32 v{WW + 4 * i + e}, 0xffff0000, v{src}' if i & 1 else
                      f'v_lshlrev_b32 v{WW + 4 * i + e}, 16, v{src}')
    it.append(lambda: lg.wait('kk'))
    for d in range(2):
        pend = []
        for r in range(11):
            tmp = KT + 2 * (r % 2)
            it += unpack(tmp, KK + 2 * r + d, 1) if r == 0 else []
            nxt = unpack(KT + 2 * ((r + 1) % 2), KK + 2 * (r + 1) + d, 1) if r < 10 else []
            ops = []
            for stage in range(4):
                ta = r - stage
                if 0 <= ta < 8:
                    w = v2(WW + 4 * (3 - stage) + 2 * d)
                    ac = v2(AC + 2 * ta)
                    ops.append(f'v_pk_mul_f32 {ac}, {v2(tmp)}, {w}' if stage == 0 else
                               f'v_pk_fma_f32 {ac}, {v2(tmp)}, {w}, {ac}')
            it += ops[:1] + nxt + ops[1:]
        it.append(lambda: lg.wait('vv'))
        for ta in range(8):
            tmp = KT + 4 + 2 * (ta % 2)
            it += unpack(tmp, VV + 2 * ta + d, 1) + pend
            pend = [f'v_pk_mul_f32 {v2(AC + 2 * ta)}, {v2(AC + 2 * ta)}, {v2(tmp)}']
        it += pend
        for eo in range(2):
            for dd in range(4):
                it.append(f'v_cvt_pk_bf16_f32 v{OUT[2 * d + eo] + dd}, v{AC + 2 * (7 - 2 * dd) + eo}, '
                          f'v{AC + 2 * (6 - 2 * dd) + eo}')

    def st():
        ls = []
        for e in range(4):
            if e:
                ls.append(f's_add_u32 s{sX[0]}, s{sX[0]}, s{sKs}')
            ls.append(f'buffer_store_dwordx4 {v4(OUT[e])}, v{vKS}, {W}, s{sX[0]} offen')
        mode_stores(ls, sKm, OPT['thr'] & 1)
        vm.n += 4
        vm.t['kvst'] = vm.n
    it.append(st)
    return rd, it


def stats_work(vm):
    S, Q, ad = XS, XS + 2, vT[0]
    it = [lambda: vm.wait('xp')]
    for i in range(40):
        it.append(f'v_dot2_f32_bf16 v{S}, v{XP + i}, s{sOnes}, ' + (f'v{S}' if i else '0'))
        it.append(f'v_dot2_f32_bf16 v{Q}, v{XP + i}, v{XP + i}, ' + (f'v{Q}' if i else '0'))
    with Cap() as c:
        for mod in ('quad_perm:[1,0,3,2]', 'quad_perm:[2,3,0,1]', 'row_half_mirror'):
            A(f'v_add_f32_dpp v{S}, v{S}, v{S} {mod} {DPPM}')
            A(f'v_add_f32_dpp v{Q}, v{Q}, v{Q} {mod} {DPPM}')
        inv = 0x3acccccd
        A(f'''v_mul_f32 v{S}, {inv:#x}, v{S}
v_mul_f32 v{Q}, {inv:#x}, v{Q}
v_fma_f32 v{Q}, -v{S}, v{S}, v{Q}
v_max_f32 v{Q}, 0, v{Q}''')
        rnd_bf16(S)
        rnd_bf16(Q)
        A(f'v_add_f32 v{Q}, 0x3727c5ac, v{Q}')
        rnd_bf16(Q)
        A(f'v_sqrt_f32 v{Q}, v{Q}')
        rnd_bf16(Q)
        A(f'''v_rcp_f32 v{S + 1}, v{Q}
v_mov_b32 v{Q}, s{sTag}
v_mov_b32 v{Q + 1}, s{sTag}''')

    def st():
        A(f'''v_lshlrev_b32 v{ad}, 1, v{vL}
s_lshl_b32 s{sT[0]}, s{sR128}, 4
s_add_u32 s{sT[0]}, s{sT[0]}, s{sMem}
s_lshl_b32 s{sT[0]}, s{sT[0]}, 7
s_add_u32 s{sT[0]}, s{sT[0]}, {WS_RS}
s_mov_b32 exec_lo, 0x01010101
s_mov_b32 exec_hi, 0x01010101''')
        vm(f'buffer_store_dwordx4 {v4(S)}, v{ad}, {W}, s{sT[0]} offen sc1')
        A('s_mov_b64 exec, -1')
    return it + c.lines + [st]


def colsum_work(vm):
    cs = XS
    it = [lambda: vm.wait('xp')]
    for i in range(40):
        it.append(f'v_dot2_f32_bf16 v{cs + (i & 1)}, v{XP + i}, s{sOnes}, ' + (f'v{cs + (i & 1)}' if i > 1 else '0'))
    it.append(f'v_add_f32 v{cs}, v{cs}, v{cs + 1}')
    for mod in ('quad_perm:[1,0,3,2]', 'quad_perm:[2,3,0,1]', 'row_half_mirror'):
        it.append(f'v_add_f32_dpp v{cs}, v{cs}, v{cs} {mod} {DPPM}')

    def st():
        A(f"""v_mov_b32 v{cs + 1}, s{sTag}
v_lshlrev_b32 v{vT[0]}, 1, v{vL}
s_lshl_b32 s{sT[0]}, s{sMem}, 3
s_and_b32 s{sT[1]}, s{sR128}, 7
s_add_u32 s{sT[0]}, s{sT[0]}, s{sT[1]}
s_mul_i32 s{sT[0]}, s{sT[0]}, 80
s_and_b32 s{sT[1]}, s{sR128}, 8
s_add_u32 s{sT[0]}, s{sT[0]}, s{sT[1]}
s_add_u32 s{sT[0]}, s{sT[0]}, {WS_CS}
s_mov_b32 exec_lo, 0x01010101
s_mov_b32 exec_hi, 1""")
        vm(f'buffer_store_dwordx2 {v2(cs)}, v{vT[0]}, {W}, s{sT[0]} offen sc1')
        A('s_mov_b64 exec, -1')
    return it + [st]


def fx_store(mods):
    A(f"""s_lshl_b32 s{sT[0]}, s{sG}, 8
s_lshl_b32 s{sT[1]}, s{sJ}, 2
s_add_u32 s{sT[0]}, s{sT[0]}, s{sT[1]}
s_add_u32 s{sT[0]}, s{sT[0]}, {WS_FX}
s_or_b32 s{sT[1]}, s{sTag}, s{sXcc}
v_mov_b32 v{vT[4]}, s{sT[1]}
s_mov_b64 exec, 1
buffer_store_dword v{vT[4]}, off, {W}, s{sT[0]}{mods}
s_mov_b64 exec, -1""")


def mode_check(vm):
    t, x, fa, so = vFX, vT[4], vFXa, sX[2]
    vm.wait('fx')
    lab, done = A.label('again'), A.label('ok')
    A.cond[lab] = lambda c: False
    A(f"""v_xor_b32 v{x}, s{sTag}, v{t}
v_cmp_lt_u32 vcc, 15, v{x}
s_cbranch_vccnz {lab}
{done}:""")
    TAIL.append(f"""{lab}:
s_sub_u32 s{sBud}, s{sBud}, 1
s_cmp_gt_i32 s{sBud}, 0
s_cbranch_scc0 {done}
buffer_load_dword v{t}, v{fa}, {W}, s{so} offen sc1
s_waitcnt vmcnt(0)
v_xor_b32 v{x}, s{sTag}, v{t}
v_cmp_lt_u32 vcc, 15, v{x}
s_cbranch_vccz {done}
s_and_b32 s{sT[1]}, s{sBud}, 3
s_cbranch_scc1 {lab}
buffer_load_dword v{t}, v{fa}, {W}, s{so} offen offset:128 sc1
s_waitcnt vmcnt(0)
v_xor_b32 v{x}, s{sTag}, v{t}
v_cmp_lt_u32 vcc, 15, v{x}
s_cbranch_vccnz {lab}
s_branch {done}""")
    A(f"""s_or_b32 s{sT[1]}, s{sTag}, s{sXcc}
v_cmp_ne_u32 vcc, s{sT[1]}, v{t}
s_cmp_eq_u64 vcc, 0
s_cselect_b32 s{sMode}, {0 if OPT['force_slow'] else 1}, 0
s_cmp_eq_u32 s{sW}, 2
s_cselect_b32 s{sKm}, 0, s{sMode}""")


def gemm_addr():
    t = vT
    A(f"""v_and_b32 v{t[0]}, 1, v{vI}
v_lshrrev_b32 v{t[1]}, 1, v{vI}
v_and_b32 v{t[2]}, 6, v{t[1]}
s_movk_i32 s{sT[3]}, 0x78
v_bfe_u32 v{t[2]}, s{sT[3]}, v{t[2]}, 2
v_xor_b32 v{t[2]}, v{t[2]}, v{vQ}
v_lshl_add_u32 v{t[2]}, v{t[0]}, 2, v{t[2]}
v_lshlrev_b32 v{t[2]}, 4, v{t[2]}
v_lshl_add_u32 v{t[2]}, v{t[1]}, 7, v{t[2]}
v_lshl_add_u32 v{vBA[0]}, v{t[0]}, 10, v{t[2]}
v_xor_b32 v{vBA[1]}, 64, v{vBA[0]}
v_add_u32 v{vBA[2]}, 51200, v{vBA[0]}
v_add_u32 v{vBA[3]}, 51200, v{vBA[1]}
v_mul_u32_u24 v{vAS}, 144, v{t[1]}
v_lshl_add_u32 v{vAS}, v{t[0]}, 2, v{vAS}
v_lshl_add_u32 v{vAS}, v{vQ}, 3, v{vAS}
s_lshl_b32 s{sT[0]}, s{sW}, 5
v_add_u32 v{vAS}, s{sT[0]}, v{vAS}
v_and_b32 v{t[0]}, 6, v{vI}
v_xor_b32 v{t[0]}, v{t[0]}, v{vQ}
v_lshlrev_b32 v{t[0]}, 4, v{t[0]}
v_lshl_add_u32 v{t[0]}, v{vI}, 7, v{t[0]}
v_add_u32 v{vAR}, s{sXm}, v{t[0]}
v_xor_b32 v{vAR2}, 64, v{vAR}""")


def misc_setup():
    t = vT
    A(f'''s_lshr_b32 s{sT[2]}, s{sMem}, 3
s_lshl_b32 s{sR64}, s{sR128}, 1
s_add_u32 s{sR64}, s{sR64}, s{sT[2]}
s_and_b32 s{sS8}, s{sMem}, 7
s_lshl_b32 s{sFW}, s{sR128}, 8
s_lshl_b32 s{sT[1]}, s{sMem}, 4
s_add_u32 s{sFW}, s{sFW}, s{sT[1]}
s_lshl_b32 s{sT[1]}, s{sW}, 2
s_add_u32 s{sFW}, s{sFW}, s{sT[1]}
s_lshl_b32 s{sFK}, s{sG}, 9
s_add_u32 s{sFK}, s{sFK}, s{sT[1]}
s_lshl_b32 s{sT[1]}, s{sJ}, 4
s_add_u32 s{sFK}, s{sFK}, s{sT[1]}
s_lshl_b32 s{sAgg}, s{sMem}, 5
s_add_u32 s{sAgg}, s{sAgg}, s{sR128}
s_mul_i32 s{sAgg}, s{sAgg}, 640
s_add_u32 s{sAgg}, s{sAgg}, {WS_AGG}
s_cmp_eq_u32 s{sW}, 0
s_cselect_b32 s{sPub}, -1, 0
s_cselect_b32 s{sPub + 1}, 0xff, 0''')
    A(f's_lshl_b32 s{sT[0]}, s{sXs}, 1\ns_mul_i32 s{sT[1]}, s{sMem}, 5')
    for j in range(5):
        A(f"""s_add_u32 s{sT[2]}, s{sT[1]}, {j}
s_lshr_b32 s{sT[3]}, s{sT[2]}, 2
s_lshl_b32 s{sT[3]}, s{sT[3]}, 11
s_and_b32 s{sT[2]}, s{sT[2]}, 3
s_lshl_b32 s{sT[2]}, s{sT[2]}, 8
s_add_u32 s{sT[2]}, s{sT[2]}, s{sT[3]}
s_add_u32 s{sH[j]}, s{sT[2]}, s{sT[0]}""")
    tw, tr, ts = vU[0], vU[1], vU[2]
    A(f'''s_mul_i32 s{sT[0]}, s{sW}, 1280
s_add_u32 s{sT[0]}, s{sT[0]}, {L_TR}
v_mul_u32_u24 v{t[0]}, 80, v{vI}
v_lshl_add_u32 v{t[0]}, v{vQ}, 4, v{t[0]}
v_add_u32 v{tw}, s{sT[0]}, v{t[0]}
v_bfe_u32 v{t[1]}, v{vL}, 2, 2
v_mul_u32_u24 v{t[1]}, 160, v{t[1]}
v_and_b32 v{t[2]}, 3, v{vL}
v_lshl_add_u32 v{t[1]}, v{t[2]}, 4, v{t[1]}
v_lshrrev_b32 v{t[2]}, 1, v{vQ}
v_mul_u32_u24 v{t[3]}, 80, v{t[2]}
v_lshlrev_b32 v{t[2]}, 10, v{t[2]}
v_add3_u32 v{t[1]}, v{t[1]}, v{t[3]}, s{sT[0]}
v_and_b32 v{t[3]}, 1, v{vQ}
v_lshl_add_u32 v{tr}, v{t[3]}, 3, v{t[1]}
v_mul_u32_u24 v{t[3]}, 40960, v{t[3]}
v_lshl_add_u32 v{t[2]}, v{vI}, 4, v{t[2]}
v_add_u32 v{ts}, v{t[2]}, v{t[3]}''')
    park('tw', tw), park('tr', tr), park('ts', ts), park('bd', vBd), park('bd2', vBd2)
    A(f'''v_lshrrev_b32 v{t[0]}, 2, v{vI}
v_mul_u32_u24 v{t[0]}, 5120, v{t[0]}
v_and_b32 v{t[1]}, 3, v{vI}
v_lshl_add_u32 v{t[0]}, v{t[1]}, 4, v{t[0]}
v_lshl_add_u32 v{vUA}, v{vQ}, 6, v{t[0]}''')


def weave(items, extra, first, every):
    extra = list(extra)
    for i, it in enumerate(lines(items)):
        run(it)
        if extra and i >= first and (i - first) % every == 0:
            run(extra.pop(0))
    run(extra)


class Roles:
    def __init__(self, n):
        self.c = [VM() for _ in range(n)]

    def __call__(self, text, name=None):
        A(text)
        for c in self.c:
            c.n += 1
            if name is not None:
                c.t[name] = c.n

    def wait(self, *names):
        k = min(c.n - max(c.t[x] for x in names) for c in self.c)
        A(f's_waitcnt vmcnt({min(k, 63)})')
        for c in self.c:
            c.done = max(c.done, c.n - min(k, 63))

    def each(self, fns):
        lj = A.label('join')
        todo = [w for w in range(4) if fns[w]]
        labs = {w: A.label(f'w{w}') for w in todo}
        for w in todo:
            A.cond[labs[w]] = lambda c, w=w: c['w'] == w
            if w != todo[0] or len(todo) < 4:
                A(f's_cmp_eq_u32 s{sW}, {w}\ns_cbranch_scc1 {labs[w]}')
        if len(todo) < 4:
            A(f's_branch {lj}')
        for w in todo:
            A(f'{labs[w]}:')
            fns[w](self.c[w])
            if w != todo[-1]:
                A(f's_branch {lj}')
        A(f'{lj}:')

    def merged(self):
        for c in self.c[1:]:
            self.c[0].merge(c)
        return self.c[0]


def startup():
    t = vT
    R = Roles(4)

    def bs(vm, g0, g1):
        return [lambda g=g, j=j: b_dma(vm, g, j) for g in range(g0, g1) for j in (0, 2, 4)]

    def head1(vm):
        A(f"""v_min_u32 v{t[0]}, 39, v{vL}
s_mul_i32 s{sT[0]}, s{sMem}, 80
v_lshl_add_u32 v{t[3]}, v{t[0]}, 1, s{sT[0]}""")
        vm(f'global_load_ushort v{PAR}, v{t[3]}, {s2(P_LRE)}{NT}')
        vm(f'global_load_ushort v{PAR + 1}, v{t[3]}, {s2(P_LIM)}{NT}')
        vm(f'global_load_ushort v{PAR + 2}, v{t[3]}, {s2(P_LDT)}{NT}', 'par')

    def head3(vm):
        srd(R_X, P_X, 2621440)
        A(f'''s_lshl_b32 s{sT[0]}, s{sR128}, 4
s_add_u32 s{sT[0]}, s{sT[0]}, s{sMem}
s_mul_i32 s{sT[0]}, s{sT[0]}, 10240''')
        vm.t['kv'] = 0
        for z in range(10):
            vm(f'buffer_load_dwordx4 {v4(XP + 4 * z)}, v{vR}, {s4(R_X)}, s{sT[0]} offen offset:{z * 128}', 'xp')
    A(f's_load_dword s{sTag}, {s2(P_WS)}, 0')
    R.each([kv_loads0, lambda vm: (head1(vm), kv_loads1(vm)), kv_loads2, head3])

    def scalars():
        A(f'''s_lshl_b32 s{sC0}, s{sX[8]}, 1
s_lshl_b32 s{sT[0]}, s{sC0}, 1
s_load_dword s{sD[0]}, {s2(P_SD)}, s{sT[0]}
s_and_b32 s{sT[0]}, s{sX[8]}, 0xfffffffc
s_add_u32 s{sT[0]}, s{sT[0]}, 1024
s_load_dword s{sD[1]}, {s2(P_SD)}, s{sT[0]}
s_getreg_b32 s{sXcc}, hwreg(HW_REG_XCC_ID, 0, 4)
s_mov_b32 s{sBud}, {OPT['budget']}
s_mov_b32 s{sOnes}, 0x3f803f80''')
    with Cap() as cc:
        consts()
    cc.lines.remove('s_waitcnt lgkmcnt(0)')

    def tag():
        A(f"""s_waitcnt lgkmcnt(0)
s_lshr_b32 s{sTag}, s{sTag}, 4
s_mul_i32 s{sTag}, s{sTag}, 0x19660d
s_add_u32 s{sTag}, s{sTag}, 0x3c6ef35f
s_lshl_b32 s{sTag}, s{sTag}, 4""")

    def more():
        with Cap() as c:
            A(f'''s_lshl_b32 s{sX[6]}, s{sR128}, 11
s_lshl_b32 s{sT[0]}, s{sW}, 9
s_add_u32 s{sX[6]}, s{sX[6]}, s{sT[0]}
s_add_u32 s{sX[6]}, s{sX[6]}, {WS_RS}
v_and_b32 v{vRS}, 7, v{vI}
v_lshlrev_b32 v{vRS}, 4, v{vRS}
v_lshl_add_u32 v{vRS}, v{vQ}, 7, v{vRS}
s_mul_i32 s{sX[7]}, s{sMem}, 640
s_add_u32 s{sX[7]}, s{sX[7]}, {WS_CS}
v_lshlrev_b32 v{vRS + 1}, 3, v{vL}
v_lshlrev_b32 v{vRS + 2}, 3, v{vI}
v_and_b32 v{vFA}, 31, v{vL}
v_lshlrev_b32 v{vFA}, 4, v{vFA}
s_lshl_b32 s{sX[1]}, s{sS8}, 9
s_add_u32 s{sX[1]}, s{sX[1]}, {WS_FS}
v_and_b32 v{vFXa}, 31, v{vL}
v_lshlrev_b32 v{vFXa}, 2, v{vFXa}
s_lshl_b32 s{sX[2]}, s{sG}, 8
s_add_u32 s{sX[2]}, s{sX[2]}, {WS_FX}''')
            run(conv_setup())
            g2_setup(0)
            run(y_setup())
            for i, r in enumerate(vCA + vCB + YREG + G2REG):
                A(f'v_accvgpr_write_b32 a{A_CV + i}, v{r}')
            z_addr()
        return c.lines

    def w0(vm):
        A(f"""v_lshrrev_b32 v{t[1]}, 1, v{vL}
v_and_b32 v{t[0]}, 1, v{vL}
v_lshlrev_b32 v{t[0]}, 7, v{t[0]}
v_lshl_add_u32 v{t[0]}, v{t[1]}, 12, v{t[0]}
s_lshl_b32 s{sT[0]}, s{sR128}, 8
s_add_u32 s{sT[0]}, s{sT[0]}, {WS_FU}
v_add_u32 v{t[0]}, s{sT[0]}, v{t[0]}
s_lshl_b32 s{sT[0]}, s{sG}, 9
s_add_u32 s{sT[0]}, s{sT[0]}, {WS_FK - 6 * 128}
v_lshl_add_u32 v{t[1]}, v{vL}, 7, s{sT[0]}
v_cmp_lt_u32 vcc, 5, v{vL}
s_lshl_b32 s{sT[0]}, s{sG}, 8
s_add_u32 s{sT[0]}, s{sT[0]}, {WS_FX}
v_cndmask_b32 v{t[0]}, v{t[0]}, v{t[1]}, vcc
v_mov_b32 v{t[1]}, s{sT[0]}
v_cmp_lt_u32 vcc, 9, v{vL}
v_mov_b32 v{XS}, 0
v_cndmask_b32 v{t[0]}, v{t[0]}, v{t[1]}, vcc""")
        vm(f'buffer_load_dword a250, v{t[0]}, {W}, 0 offen')
        fx_store('')
        fx_store(' offset:128 sc1')
        vm.n += 2
        A(f'''v_mov_b32 v{XS + 1}, 0
v_mov_b32 v{XS + 2}, s{sTag}
v_mov_b32 v{XS + 3}, s{sTag}
s_add_u32 s{sT[0]}, s{sAgg}, {AGG_L}
s_mov_b32 exec_hi, 0xff''')
        vm(f'buffer_store_dwordx4 {v4(XS)}, v{vL16}, {W}, s{sAgg} offen sc1')
        vm(f'buffer_store_dwordx4 {v4(XS)}, v{vL16}, {W}, s{sT[0]} offen sc1')
        A('s_mov_b32 exec_hi, -1')

    def w1(vm):
        vm.wait('par')
        run(cc.lines)
    blocks = dict(A=dma_addr, S=scalars, M=misc_setup, C=lambda: c_loads(R), O=lambda: run(more()), T=tag,
                  G=lambda: (gemm_addr(), kv_addr(), k_addr()), K=lambda: run(k_loads(R)),
                  R=lambda: R.each([None, w1, w0, lambda vm: run(stats_work(vm))]))
    for b in OPT['order'].split(','):
        if b[0] == 'B':
            run(bs(R, int(b[1]), int(b[1]) + 1))
        elif b[0] == 'X':
            x_dma(R, int(b[1]))
        elif b[0] == '@':
            stamp(b[1:])
        else:
            blocks[b]()
    R.wait('kv')
    A('s_waitcnt lgkmcnt(0)\ns_barrier')
    stamp('kv_land')
    R(f'buffer_load_dword v{vFX}, v{vFXa}, {W}, s{sX[2]} offen sc1', 'fx')
    lg = LG()
    crd, fix = const_reads(lg)
    run(crd)
    va, vb = R.c[0], R.c[3]
    va.merge(R.c[1]), va.merge(R.c[2])
    l3, lj = A.label('w3'), A.label('join')
    A.cond[l3] = lambda c: c['w'] == 3
    A(f's_cmp_eq_u32 s{sW}, 3\ns_cbranch_scc1 {l3}')
    def nxt(v):
        out = []
        for b in OPT['post'].split(','):
            if b[0] == 'L':
                if v is vb:
                    out += [lambda g=int(b[1]): b_all(v, g)]
                else:
                    v.t['b', int(b[1])] = 0
                continue
            if b[0] == 'C':
                out.append(lambda: c_loads(v))
                continue
            out += bs(v, int(b[1]), int(b[1]) + 1) if b[0] == 'B' else [lambda b=b: x_dma(v, int(b[1]))] if b[0] == 'X' else \
                [atom(k_loads(v)[:3]), atom(k_loads(v)[3:5]), atom(k_loads(v)[5:])]
        return out
    la = copy.deepcopy(lg)
    rd, it = kv_work(va, la)
    run(rd)
    weave(it[:-1], nxt(va), OPT['wv0'], OPT['wv'])
    mode_check(va)
    run(it[-1])
    A(f's_branch {lj}\n{l3}:')
    A(f'''s_lshl_b32 s{sT[0]}, s{sMem}, 3
s_and_b32 s{sT[1]}, s{sR128}, 7
s_add_u32 s{sT[0]}, s{sT[0]}, s{sT[1]}
s_mul_i32 s{sT[0]}, s{sT[0]}, 6400
s_mov_b32 exec_hi, 0xff''')
    for z in range(1 if OPT['dbg'] & 8 else 10):
        vb(f'buffer_load_dwordx4 {v4(XP + 4 * z)}, v{vR}, {s4(R_T0)}, s{sT[0]} offen offset:{z * 128}', 'xp')
    A('s_mov_b32 exec_hi, -1')
    run(nxt(vb))
    mode_check(vb)
    run(colsum_work(vb))
    A(f'{lj}:\ns_waitcnt lgkmcnt(0)')
    va.merge(vb)
    vm = va
    stamp('kv_st')
    run(fix[1:])
    if OPT['cfs'] < 0:
        run(cf_work(vm, LG()))
    stamp('cf_st')
    vm.wait(('x', 1), ('b', 0))
    stamp('land')
    return vm


class G1:
    def __init__(self, layer, vm):
        self.layer, self.vm, self.lg, self.side = layer, vm, LG(), Side()
        self.order = list(range(20)) if layer == 0 else list(range(4, 20)) + list(range(4))

    def rd(self, s, j):
        k = self.order[s]
        idx = (k >> 1) * 5 + j
        a, off = (vBA[k & 1], idx * 2048) if idx < 25 else (vBA[2 + (k & 1)], (idx - 25) * 2048)
        self.lg(f'ds_read_b128 {v4(BF + 20 * (s & 1) + 4 * j)}, v{a} offset:{off}', ('B', s, j))

    def rda(self, s, m):
        self.lg(f'ds_read_b128 {v4(AF + 8 * (s & 1) + 4 * m)}, v{vAR2 if s & 1 else vAR} '
                f'offset:{((2 * (s >> 1) + m) % 7) * 8192}', ('A', s, m))

    def ld(self, f):
        s, m = divmod(f, 2)
        s = self.order[s]
        if s == 16:
            A(f's_add_u32 s{sL[m]}, s{sL[m]}, 4096')
        if s == 0:
            A(f's_sub_u32 s{sL[m]}, s{sL[m]}, 4096')
        self.vm(f'buffer_load_dwordx4 {v4(RING + 4 * (f % NR))}, v{vUA}, {W}, s{sL[m]} offen '
                f'offset:{(s % 16) * 256} sc1', ('u', f))

    def step(self, s):
        vm, lg, layer = self.vm, self.lg, self.layer
        if s in (0, 4, 8, 12, 16) and OPT['stamps'] != 3:
            stamp(f'.s{s}_{layer}', 2)
        if layer == 0:
            need = [('x', s + 2)] if s & 1 and s < 19 else []
            if (s + 1) % 4 == 0 and s < 19:
                vm.wait(('b', (s + 1) // 4), *need)
                A('s_barrier')
            elif need:
                vm.wait(*need)
        else:
            vm.wait(('u', 2 * s + 1))
            if s == 15:
                A('s_barrier')
        for j in range(5):
            if not OPT['gw'] or s == 0:
                lg.wait(('B', s, j))
            elif j in (0, 3):
                lg.wait(('B', s, 2 if j == 0 else 4))
            if layer == 0 and s == 19 and j == 0:
                A('s_barrier')
            for m in range(2):
                d = ACC + 8 * j + 4 * m
                c = '0' if s == 0 else v4(d)
                a = RING + 4 * ((2 * s + m) % NR) if layer else AF + 8 * (s & 1) + 4 * m
                A(f'v_mfma_f32_16x16x32_bf16 {v4(d)}, {v4(a)}, {v4(BF + 20 * (s & 1) + 4 * j)}, {c}')
                if m == 0 and s < 19:
                    if j == 0 and layer == 0:
                        self.rda(s + 1, 0)
                        self.rda(s + 1, 1)
                    self.rd(s + 1, j)
                if layer == 0 or m == 1:
                    k = 2 * j + m
                    self.side.run(s, 10 - k if layer == 0 else 5 - j)


c_issued = [0]


def c_load(vm):
    i = c_issued[0]
    c_issued[0] += 1
    if i and i % 4 == 0:
        A(f's_add_u32 s{sL[0]}, s{sL[0]}, 4096')
    vm(f'buffer_load_dwordx4 {a4(4 * i)}, v{vL16}, {W}, s{sL[0]} offen offset:{(i % 4) * 1024} sc1', 'cf')


def k_addr():
    A(f'''s_lshl_b32 s{sT[0]}, s{sC0}, 12
s_lshl_b32 s{sT[1]}, s{sW}, 10
s_add_u32 s{sX[3]}, s{sT[0]}, s{sT[1]}
s_add_u32 s{sX[4]}, s{sX[3]}, 4096
s_lshl_b32 s{sX[5]}, s{sCs}, 12
s_add_u32 s{sX[5]}, s{sX[5]}, s{sT[1]}
s_add_u32 s{sT[1]}, s{sT[1]}, {L_K + 32}
v_add_u32 v{vKO}, s{sT[1]}, v{vL16}
v_lshrrev_b32 v{vT[0]}, 1, v{vL}
v_mul_u32_u24 v{vT[0]}, 4160, v{vT[0]}
v_and_b32 v{vT[1]}, 1, v{vL}
v_lshl_add_u32 v{vT[0]}, v{vT[1]}, 4, v{vT[0]}
v_add_u32 v{vKP}, {L_K}, v{vT[0]}''')


def k_loads(vm):
    it = [lambda: srd(R_T1, P_SSK, 2621440)]
    for sl in range(3):
        if not OPT['dbg'] & 2:
            it.append(lambda sl=sl: vm(f'buffer_load_dwordx4 {v4(KA + 4 * sl)}, v{vL16}, {s4(R_T1)}, s{sX[3 + sl]} offen'))
        it.append(lambda sl=sl: vm(f'buffer_load_dwordx4 {v4(KB + 4 * sl)}, v{vL16}, {s4(R_T1)}, s{sX[3 + sl]} offen offset:4', 'K'))
    return it


def k_work(vm):
    it = [lambda: vm.wait('K')]
    for sl in range(3):
        it[-1] = atom(it[-1], f'ds_write_b128 v{vKO}, {v4(KA + 4 * sl)} offset:{sl * 8320}')
        it.append(atom([f'v_alignbit_b32 v{KB + 4 * sl + i}, v{KB + 4 * sl + i}, v{KA + 4 * sl + i}, 16' for i in range(4)],
                       f'ds_write_b128 v{vKO}, {v4(KB + 4 * sl)} offset:{sl * 8320 + 4160}'))

    def pads():
        A(f's_cmp_lg_u32 s{sW}, 0')
        with A.skip_if('s_cbranch_scc1', lambda c: c['w'] != 0):
            run([f'v_mov_b32 v{216 + i}, 0' for i in range(4)])
            A(f's_mov_b64 exec, 0xfff\nds_write_b128 v{vKP}, {v4(216)}\ns_mov_b64 exec, 1')
            for sl in range(3):
                A(f'ds_write_b16 v{vKP}, v{KA + 4 * sl} offset:{sl * 8320 + 4160 + 30}')
            A('s_mov_b64 exec, -1')
    return it + [pads]


def front(vm):
    g = G1(0, vm)
    lg, S = g.lg, g.side
    A('s_barrier')
    g.rda(0, 0), g.rda(0, 1)
    for j in range(5):
        g.rd(0, j)
    for p in (2, 3):
        if ('x', p) not in vm.t:
            x_dma(vm, p)
    if OPT['cfs'] >= 0:
        S.spread(OPT['cfs'], OPT['cfper'], cf_work(vm, lg))
    if 'K' not in vm.t:
        S.spread(OPT['kls'], 3, k_loads(vm))
    S.add(0, lambda: x_dma(vm, 4), lambda: x_dma(vm, 5))
    for p in range(6, 20):
        S.add(max(1, p - 6), lambda p=p: x_dma(vm, p))
    for gi in range(1, 5):
        if ('b', gi) in vm.t:
            continue
        for n, j in enumerate((0, 2, 4)):
            S.add(OPT[f'b{gi}s'] + n // 2, lambda gi=gi, j=j: b_dma(vm, gi, j))
    S.add(OPT['kvf'], atom(lambda: vm.wait('kvst'), lambda: flag_store(f's{sKf}', True, vm, sKm)))
    S.add(OPT['cff'], atom(lambda: vm.wait('cfst'), f's_add_u32 s{sT[0]}, s{sFK}, {WS_FS}',
                           lambda: flag_store(f's{sT[0]}', False, vm)))
    fk = f'buffer_load_dwordx2 {v2(vFP)}, v{vFA}, {W}, s{sX[0]} offen sc1'
    S.add(OPT['fsp'], atom(f's_and_b32 s{sX[0]}, s{sFK}, 0xe00', f's_add_u32 s{sX[0]}, s{sX[0]}, {WS_FK}', lambda: vm(fk, 'fk')))

    def fetch():
        vm.wait('fk')
        check_tags([vFP, vFP + 1], fk)
        for sl in range(2):
            A(f's_lshl_b32 s{sT[0]}, s{sG}, 16\ns_add_u32 s{sT[0]}, s{sT[0]}, s{sX[3 + sl]}\n'
              f's_add_u32 s{sT[0]}, s{sT[0]}, {WS_KV}\ns_lshl_b32 m0, s{sW}, 10')
            if sl:
                A(f's_add_u32 m0, m0, {L_KV + sl * 4608}')
            vm(f'buffer_load_dwordx4 v{vL16}, {W}, s{sT[0]} offen sc1 lds', 'kvT')
    assert OPT['fsc'] >= 7
    S.add(OPT['fsc'], fetch)
    S.add(8, f'''v_lshrrev_b32 v{vT[0]}, 5, v{vL}
v_mul_u32_u24 v{vT[0]}, {4608 - 512}, v{vT[0]}
v_add_u32 v{vT[0]}, v{vT[0]}, v{vL16}''', [f'v_mov_b32 v{216 + i}, 0' for i in range(4)],
          lambda: lg(f'ds_write_b128 v{vT[0]}, {v4(216)} offset:{L_KV + 4096}'),
          lambda: lg(f'ds_write_b128 v{vT[0]}, {v4(216)} offset:{L_KV + 4608 + 4096}'))
    rsl = [f'buffer_load_dwordx3 {v3(RSL)}, v{vRS}, {W}, s{sX[6]} offen sc1',
           f'buffer_load_dwordx2 {v2(RSL + 4)}, v{vRS + 1}, {W}, s{sX[7]} offen sc1',
           f'buffer_load_dwordx2 {v2(RSL + 6)}, v{vRS + 2}, {W}, s{sX[7]} offen offset:512 sc1']
    fc = f'buffer_load_dwordx4 {v4(vFP)}, v{vFA}, {W}, s{sX[1]} offen sc1'
    S.add(OPT['late'], [lambda t=t: vm(t, 'rs') for t in rsl])
    S.add(OPT['csp'], lambda: vm(fc, 'fc'))

    def ccheck():
        vm.wait('fc')
        check_tags([vFP + i for i in range(4)], fc)
        A(f'''s_mul_i32 s{sL[0]}, s{sS8}, 200
s_mul_i32 s{sT[0]}, s{sW}, 50
s_add_u32 s{sL[0]}, s{sL[0]}, s{sT[0]}
s_lshl_b32 s{sL[0]}, s{sL[0]}, 10
s_add_u32 s{sL[0]}, s{sL[0]}, {WS_CF}''')
    marks_gather(S, vm, -1)
    S.add(OPT['csc'], ccheck)
    for i in range(OPT['cl0']):
        S.add(OPT['csc'] + i * (20 - OPT['csc']) // OPT['cl0'], lambda: c_load(vm))

    def rscheck():
        vm.wait('rs')
        check_tags([RSL + 2, RSL + 2, RSL + 5, RSL + 7], rsl)
    S.q.setdefault(OPT['rsc'], []).insert(0, rscheck)
    c = lambda j: CSL + j
    S.add(19, f'''v_mov_b32 v{c(0)}, v{RSL + 4}
v_mov_b32 v{c(1)}, v{RSL + 4}
v_mov_b32 v{c(4)}, v{RSL + 6}
v_permlane16_swap_b32 v{c(0)}, v{c(1)}
v_mov_b32 v{c(2)}, v{c(0)}
v_mov_b32 v{c(3)}, v{c(1)}
v_permlane32_swap_b32 v{c(0)}, v{c(2)}
v_permlane32_swap_b32 v{c(1)}, v{c(3)}''')
    S.add(19, [f'v_mov_b32_dpp v{MM + t}, v{RSL} row_newbcast:{t} {DPPM}\n'
               f'v_mov_b32_dpp v{RR + t}, v{RSL + 1} row_newbcast:{t} {DPPM}' for t in range(8)])
    for s in range(20):
        g.step(s)
    assert not g.side.left()
    stamp('g1_0')
    kw = k_work(vm)
    kw += [f'ds_write_b64 v{vZ + 4}, {v2(RSL)}'] + [[]] * (6 - len(kw))
    scan_1(0, [[k] + [lambda: c_load(vm)] * (i < OPT['cs1']) for i, k in enumerate(kw)], lambda: vm.wait('kvT'))
    lg = LG()
    h1, h2 = horner(0, vm, lg)
    weave(h1, [lambda: c_load(vm)] * OPT['cb'], 10, 6)
    for i, r in enumerate(vCA + vCB):
        A(f'v_accvgpr_read_b32 v{r}, a{A_CV + i}')
    for k in range(2):
        for i in range(1, 4):
            A(f'v_add_u32 v{vCA[k] + i}, {1024 * i}, v{vCA[k]}')
    return vm, lg


MAS, PP, AGL, GR = 90, 244, 88, 88
LT = [128, 144, 160, 176, 104]
PK = [120, 124]
vTW, vTR, vTS = 254, 255, 47


def scan_1(layer, extra=[], last=None):
    b = lambda j, ta: ACC + 8 * j + ta
    if layer == 0:
        for j in range(5):
            sel = 'op_sel:[0,1,0] op_sel_hi:[1,1,1]' if j & 1 else 'op_sel_hi:[1,0,1]'
            for p in range(4):
                d = ACC + 8 * j + 2 * p
                A(f'v_pk_fma_f32 {v2(d)}, {v2(MM + 2 * p)}, {v2(CSL + (j & ~1))}, {v2(d)} {sel} '
                  f'neg_lo:[1,0,0] neg_hi:[1,0,0]')
        for j in range(5):
            for p in range(4):
                d = ACC + 8 * j + 2 * p
                A(f'v_pk_mul_f32 {v2(d)}, {v2(d)}, {v2(RR + 2 * p)}')
    extra = list(extra)
    for ta in range(1, 8):
        if extra:
            run(extra.pop(0))
        for j in range(5):
            A(f'v_fmac_f32 v{b(j, ta)}, v{LR + j}, v{b(j, ta - 1)}')
        for j in range(5):
            A(f'v_fmac_f32_dpp v{b(j, ta)}, v{b(j, ta - 1)}, v{LS + j} {SWP}')
    A(f'''v_add_u32 v{vT[0]}, {L_AS}, v{vAS}
v_min_u32 v{vT[1]}, 39, v{vL}
v_mul_u32_u24 v{vU[2]}, 48, v{vT[1]}
s_lshl_b32 s{sT[0]}, s{sW}, 3
s_add_u32 s{sT[0]}, s{sT[0]}, {L_G}
v_add_u32 v{vU[2]}, s{sT[0]}, v{vU[2]}''')
    for j in range(5):
        A(f'ds_write_b32 v{vT[0]}, v{b(j, 7)} offset:{j * 1152}')
    A(f'''v_mul_u32_u24 v{vU[4]}, 144, v{vT[1]}
v_add_u32 v{vU[4]}, {L_AS}, v{vU[4]}''')
    if last:
        last()
    A('s_waitcnt lgkmcnt(0)\ns_barrier')
    stamp(f'scan1_{layer}')


def horner(layer, vm, lg):
    it = [lambda i=i: lg(f'ds_read_b128 {v4(MAS + 4 * i)}, v{vU[4]} offset:{16 * i}', ('as', i)) for i in range(8)]
    for s in range(1, 16):
        if s == 1 or s % 2 == 0:
            it.append(lambda s=s: lg.wait(('as', s // 2)))
        it += cmul(MAS + 2 * s, MAS + 2 * s - 2, mL8, MAS + 2 * s)

    def pub():
        A(f'''v_mov_b32 v{MAS + 32}, s{sTag}
v_mov_b32 v{MAS + 33}, s{sTag}
s_add_u32 s{sT[0]}, s{sAgg}, {layer * AGG_L + 16 * 640}
s_mov_b64 exec, {s2(sPub)}''')
        A(f'buffer_store_dwordx4 {v4(MAS + 30)}, v{vL16}, {W}, s{sT[0]} offen sc1')
        A('s_mov_b64 exec, -1')
        stamp(f'agg_pub_{layer}')
    it.append(pub)
    first, it = it, []
    def own():
        A(f'v_subrev_u32 v{vU[4]}, {L_AS - L_P}, v{vU[4]}\nv_mov_b32 v{MAS - 2}, 0\nv_mov_b32 v{MAS - 1}, 0\ns_mov_b32 exec_hi, 0xff')
        Roles(4).each([lambda c, w=w: [A(f'ds_write_b128 v{vU[4]}, {v4(MAS - 2 + 8 * w + 4 * i)} offset:{32 * w + 16 * i}')
                                       for i in range(2)] for w in range(4)])
        A('s_mov_b32 exec_hi, -1')
        lg.n += 2
    it.append(own)
    it.append(f'v_add_u32 v{vU[4]}, {L_P}, v{vAS}')
    it += [lambda j=j: lg(f'ds_read_b32 v{PP + 2 * j}, v{vU[4]} offset:{j * 1152}', 'pp') for j in range(5)]
    it += [f'v_and_b32 v{vU[1]}, 1, v{vI}', f'v_cvt_f32_u32 v{vU[1]}, v{vU[1]}', f'v_fma_f32 v{vU[1]}, 2.0, v{vU[1]}, -1.0']
    it.append(lambda: lg.wait('pp'))
    it += [f'v_mul_f32_dpp v{PP + 2 * j + 1}, v{PP + 2 * j}, v{vU[1]} {SWP}' for j in range(5)]
    return first, it


def agg_ld(layer):
    pre = f'''s_lshl_b32 s{sX[3]}, s{sW}, 2
s_sub_u32 s{sX[3]}, 12, s{sX[3]}
s_mul_i32 s{sX[3]}, s{sX[3]}, 640
s_add_u32 s{sX[3]}, s{sX[3]}, s{sAgg}
s_add_u32 s{sX[3]}, s{sX[3]}, {layer * AGG_L}
v_min_u32 v{vU[0]}, 39, v{vL}
v_lshlrev_b32 v{vU[0]}, 4, v{vU[0]}'''
    return pre, [f'buffer_load_dwordx3 {v3(AGL + 4 * z)}, v{vU[0]}, {W}, s{sX[3]} offen offset:{z * 640} sc1' for z in range(4)]


def scan_2(layer, vm, ld, hook={}, defer=False, extra=[]):
    lg = LG()
    t = vT
    A(f'''v_lshrrev_b32 v{t[0]}, 1, v{vI}
v_mul_u32_u24 v{t[1]}, 80, v{t[0]}
v_add_u32 v{t[1]}, {L_L}, v{t[1]}
v_mul_u32_u24 v{t[0]}, 48, v{t[0]}
v_add_u32 v{t[0]}, {L_G}, v{t[0]}''')
    for j in range(5):
        for c in range(4):
            lg(f'ds_read_b128 {v4(LT[j] + 4 * c)}, v{t[1]} offset:{j * 640 + 16 * c}', ('L', j))
    A('\n'.join([unpark('tw', vTW), unpark('tr', vTR), unpark('ts', vTS)]))
    vm.wait('agg')
    check_tags([AGL + 2, AGL + 6, AGL + 10, AGL + 14], ld, x=t[3], y=t[4], inline=2)
    stamp(f'agg_in_{layer}')
    for z in range(1, 4):
        A('\n'.join(cmul(AGL + 4 * z, AGL + 4 * z - 4, mL128, AGL + 4 * z)))
    A('\n'.join(cmul(AGL, AGL + 12, mW)))
    if extra:
        extra.pop()()
    A(f'''s_mov_b32 exec_hi, 0xff
ds_write_b64 v{vU[2]}, {v2(AGL)}
s_mov_b32 exec_hi, -1''')
    stamp(f'.fold{layer}', 3)
    A('s_waitcnt lgkmcnt(0)')
    stamp(f'.added{layer}', 3)
    A('s_barrier')
    stamp(f'.gbar{layer}', 3)
    lg = LG()
    GQ = [88, 96, 224, 88, 96]

    def grd(j):
        lg(f'ds_read_b128 {v4(GQ[j])}, v{t[0]} offset:{j * 384}')
        lg(f'ds_read_b128 {v4(GQ[j] + 4)}, v{t[0]} offset:{j * 384 + 16}', ('G', j))
    for j in range(3):
        grd(j)
    hb = WS_H if layer == 0 else WS_H2

    def more():
        if extra:
            extra.pop()()
    more()

    def xy(j):
        lg.wait(('G', j))
        q = GQ[j]
        p, a, gq = v2(PP + 2 * j), v2(VA + 2 * j), v2(q)
        A(f'v_pk_add_f32 {gq}, {gq}, {v2(q + 2)}\nv_pk_add_f32 {v2(q + 4)}, {v2(q + 4)}, {v2(q + 6)}\n'
          f'v_pk_add_f32 {gq}, {gq}, {v2(q + 4)}')
        A(f'v_pk_fma_f32 {p}, {a}, {gq}, {p} op_sel:[0,0,0] op_sel_hi:[1,0,1]')
        A(f'v_pk_fma_f32 {p}, {a}, {gq}, {p} op_sel:[1,1,0] op_sel_hi:[0,1,1] neg_hi:[1,0,0]')
        if j < 2:
            grd(j + 3)

    def upd(j):
        p = v2(PP + 2 * j)
        for k in range(4):
            d = v2(ACC + 8 * j + 2 * k)
            A(f'v_pk_fma_f32 {d}, {v2(LT[j] + 2 * k)}, {p}, {d} op_sel:[0,0,0] op_sel_hi:[1,0,1]')
        more()
        for k in range(4):
            d = v2(ACC + 8 * j + 2 * k)
            A(f'v_pk_fma_f32 {d}, {v2(LT[j] + 8 + 2 * k)}, {p}, {d} op_sel:[0,1,0] op_sel_hi:[1,1,1]')
        pk = PK[j & 1]
        for d in range(4):
            A(f'v_cvt_pk_bf16_f32 v{pk + d}, v{ACC + 8 * j + 2 * d}, v{ACC + 8 * j + 2 * d + 1}')
        lg(f'ds_write_b128 v{vTW}, {v4(pk)}')
        more()
        lg(f'ds_read_b64_tr_b16 {v2(ACC + 8 * j + 4)}, v{vTR}')
        lg(f'ds_read_b64_tr_b16 {v2(ACC + 8 * j + 6)}, v{vTR} offset:640', ('T', j))

    def st(j, vm=vm):
        A(f's_add_u32 s{sT[1]}, s{sH[j]}, {hb}')
        lg.wait(('T', j))
        mode_stores([f'buffer_store_dwordx4 {v4(ACC + 8 * j + 4)}, v{vTS}, {W}, s{sT[1]} offen'], through=OPT['thr'] & (2 << layer))
        vm.n += 1
        vm.t['hst'] = vm.n
    xy(0), xy(1)
    lag = OPT['lag']
    for j in range(5 + lag):
        stamp(f'.j{j}_{layer}', 3)
        if j < 5:
            upd(j)
        if j < 3:
            xy(j + 2)
        if j >= lag and j - lag < (defer or 5):
            st(j - lag)
        if j in hook:
            hook[j](lg)
    if defer:
        lg.wait(('T', 4))
        stamp(f'h_st_{layer}')
        return st
    stamp(f'h_st_{layer}')


def h_flag(layer, vm):
    vm.wait('hst')
    A(f's_add_u32 s{sT[2]}, s{sFW}, {WS_FH + layer * 4096}')
    flag_store(f's{sT[2]}', True, vm)
    stamp(f'h_flag_{layer}')


CA, CB, CX, CY = 128, 160, 192, 104
vCA, vCB = [232, 236], [240, 241]
JSET = [[1, 2, 4, 7], [0, 3, 5, 6]]


def conv_setup():
    t = vT
    return lines(f"""v_add_u32 v{t[0]}, 1, v{vI}
v_and_b32 v{t[1]}, 1, v{t[0]}
v_mul_u32_u24 v{t[1]}, 4160, v{t[1]}
v_lshrrev_b32 v{t[0]}, 1, v{t[0]}
v_lshl_add_u32 v{t[1]}, v{t[0]}, 2, v{t[1]}
v_lshl_add_u32 v{t[1]}, v{vQ}, 4, v{t[1]}
v_sub_u32 v{t[0]}, 15, v{vI}
v_lshlrev_b32 v{t[0]}, 5, v{t[0]}
v_lshl_add_u32 v{t[0]}, v{vQ}, 4, v{t[0]}
s_lshr_b32 s{sT[0]}, s{sW}, 1
s_and_b32 s{sT[1]}, s{sW}, 1
s_lshl_b32 s{sT[1]}, s{sT[1]}, 8
s_mul_i32 s{sX[4]}, s{sT[0]}, 8320
s_add_u32 s{sX[4]}, s{sX[4]}, s{sT[1]}
s_add_u32 s{sX[4]}, s{sX[4]}, {L_K}
v_add_u32 v{vCA[0]}, s{sX[4]}, v{t[1]}
s_mul_i32 s{sX[4]}, s{sT[0]}, 4608
s_add_u32 s{sX[4]}, s{sX[4]}, s{sT[1]}
v_add_u32 v{vCB[0]}, s{sX[4]}, v{t[0]}
s_lshl_b32 s{sT[1]}, s{sW}, 7
s_add_u32 s{sX[4]}, s{sT[1]}, {L_K + 2 * 8320}
v_add_u32 v{vCA[1]}, s{sX[4]}, v{t[1]}
s_add_u32 s{sX[4]}, s{sT[1]}, {L_KV + 2 * 4608}
v_add_u32 v{vCB[1]}, s{sX[4]}, v{t[0]}""")


class Conv:
    def __init__(self, units, lg, cont=False):
        self.lg, self.seq, self.todo, self.issued = lg, [], [], set()
        free, seen = {}, ({CX + 4 * j for j in range(8)} if cont else set())
        for k, u, js, acc in units:
            first, last = {}, {}
            for a in range(max(js), -1, -1):
                for j in js:
                    if j < a:
                        continue
                    for f in (('A', a), ('B', j - a)):
                        first.setdefault(f, len(self.seq))
                        last[f] = len(self.seq)
                    d = acc + 4 * js.index(j)
                    self.seq.append((k, u, a, j - a, d, d in seen))
                    seen.add(d)
            for f, need in first.items():
                self.todo.append((max(free.get(f, -1), need - OPT['look']), need, (k, u, f)))
            free.update(last)
        self.todo.sort(key=lambda x: x[:2])

    def rd(self, key):
        k, u, (kind, x) = key
        self.issued.add(key)
        if kind == 'A':
            o = 16 * u + 128 * (x & 1)
            self.lg(f'ds_read2_b32 {v2(CA + 4 * x)}, v{vCA[k] + (x >> 1)} offset0:{o} offset1:{o + 1}')
            self.lg(f'ds_read2_b32 {v2(CA + 4 * x + 2)}, v{vCA[k] + (x >> 1)} offset0:{o + 2} offset1:{o + 3}', key)
        else:
            self.lg(f'ds_read_b128 {v4(CB + 4 * x)}, v{vCB[k]} offset:{64 * u + 512 * (7 - x)}', key)

    def emit(self, n0, n1, side):
        todo = self.todo
        while n0 == 0 and todo[0][0] < 0 and todo[0][1] < 4:
            self.rd(todo.pop(0)[2])
        for gn in range(n0, n1):
            k, u, a, b, d, chain = self.seq[gn]
            self.lg.wait((k, u, ('A', a)), (k, u, ('B', b)))
            A(f'v_mfma_f32_16x16x32_bf16 {v4(d)}, {v4(CA + 4 * a)}, {v4(CB + 4 * b)}, {v4(d) if chain else 0}')
            did = 0
            while todo and todo[0][0] <= gn and (did < 1 or todo[0][1] <= gn + 3):
                self.rd(todo.pop(0)[2])
                did += 1
            if not did or gn % 4 == 3:
                side.run(gn // 4, 4 - gn % 4)

    def force(self, keys):
        for it in [x for x in self.todo if x[2] in keys]:
            self.todo.remove(it)
            self.rd(it[2])


vFY = 120
KVM, KVX = 88, 96
YREG = [246, 247, 248, 249, 250, 251, 252]
yS, yKm, yKx, yPw, yPr, ySr, ySw = YREG


def y_setup():
    t = vT
    return lines(f"""s_lshr_b32 s{sCs}, s{sX[8]}, 1
s_add_u32 s{sCs}, s{sCs}, 512
s_lshr_b32 s{sT[1]}, s{sW}, 1
s_add_u32 s{sT[0]}, s{sC0}, s{sT[1]}
s_bitcmp1_b32 s{sT[0]}, 0
s_cselect_b32 s{sX[5]}, 16, 0
s_lshr_b32 s{sD[0]}, s{sD[0]}, s{sX[5]}
s_and_b32 s{sDm[0]}, s{sD[0]}, 0xffff
s_lshl_b32 s{sDm[1]}, s{sD[0]}, 16
s_bitcmp1_b32 s{sCs}, 0
s_cselect_b32 s{sX[5]}, 16, 0
s_lshr_b32 s{sD[1]}, s{sD[1]}, s{sX[5]}
s_and_b32 s{sDm[2]}, s{sD[1]}, 0xffff
s_lshl_b32 s{sDm[3]}, s{sD[1]}, 16
s_lshl_b32 s{sYO[0]}, s{sT[0]}, 12
s_and_b32 s{sT[0]}, s{sW}, 1
s_lshl_b32 s{sT[0]}, s{sT[0]}, 11
s_add_u32 s{sYO[0]}, s{sYO[0]}, s{sT[0]}
s_add_u32 s{sYO[0]}, s{sYO[0]}, {WS_Y}
s_mul_i32 s{sT[1]}, s{sT[1]}, 4608
s_sub_u32 s{sT[1]}, s{sT[1]}, s{sT[0]}
s_add_u32 s{sT[1]}, s{sT[1]}, {L_KV + 4088 - 3 * 512}
v_lshlrev_b32 v{yS}, 5, v{vI}
v_lshl_add_u32 v{yS}, v{vQ}, 3, v{yS}
v_sub_u32 v{yKm}, s{sT[1]}, v{yS}
s_bitcmp1_b32 s{sJ}, 0
s_movk_i32 s{sT[0]}, 0x7421
s_cselect_b32 s{sT[0]}, 0x6530, s{sT[0]}
s_lshl_b32 s{sT[1]}, s{sW}, 2
s_lshr_b32 s{sT[0]}, s{sT[0]}, s{sT[1]}
s_and_b32 s{sT[0]}, s{sT[0]}, 7
s_lshl_b32 s{sT[0]}, s{sT[0]}, 9
s_lshl_b32 s{sYO[1]}, s{sCs}, 12
s_add_u32 s{sYO[1]}, s{sYO[1]}, s{sT[0]}
s_add_u32 s{sYO[1]}, s{sYO[1]}, {WS_Y}
s_sub_u32 s{sT[0]}, {L_KV + 2 * 4608 + 4088}, s{sT[0]}
v_sub_u32 v{yKx}, s{sT[0]}, v{yS}
s_lshl_b32 s{sT[0]}, s{sW}, 12
s_add_u32 s{sT[1]}, s{sT[0]}, {L_PM}
v_add_u32 v{ySw}, s{sT[1]}, v{vL16}
s_add_u32 s{sT[1]}, s{sT[0]}, {L_PS}
v_add_u32 v{yPw}, s{sT[1]}, v{vL16}
s_xor_b32 s{sT[1]}, s{sT[0]}, 4096
s_add_u32 s{sT[1]}, s{sT[1]}, {L_PS}
v_add_u32 v{yPr}, s{sT[1]}, v{vL16}
s_lshl_b32 s{sT[1]}, s{sW}, 10
s_add_u32 s{sT[1]}, s{sT[1]}, {L_PM}
v_add_u32 v{ySr}, s{sT[1]}, v{vL16}""")


def y_dterm(acc, kv, dlo, dhi):
    sel = [(1, dhi), (1, dlo), (0, dhi), (0, dlo)]
    return [f'v_dot2_f32_bf16 v{acc + r}, v{kv + sel[r][0]}, s{sel[r][1]}, v{acc + r}' for r in range(4)]


def marks_gather(S, vm, sg):
    if OPT['clr'] * sg > 0:
        marks(S, vm, abs(OPT['clr']), 228 if sg > 0 else 216)
    if OPT['fbp'] * sg > 0:
        gather(S, vm, abs(OPT['fbp']), abs(OPT['fbc']), 124 if sg > 0 else 220)


def marks(S, vm, at, r):
    S.add(at, [f'v_mov_b32 v{r + i}, -1' for i in range(4)], f'v_lshlrev_b32 v{vT[0]}, 3, v{vL}',
          lambda: vm(f'buffer_store_dwordx2 {v2(r)}, v{vT[0]}, {W}, s{sYO[1]} offen sc1'))
    for i in range(2):
        S.add(at + 1 + i, lambda i=i: vm(f'buffer_store_dwordx4 {v4(r)}, v{vL16}, {W}, s{sYO[0]} offen offset:{1024 * i} sc1'))


def gather(S, vm, at, at2, r):
    fb = f'buffer_load_dwordx4 {v4(r)}, v{vL16}, {W}, s{sKs} offen sc1'
    S.add(at, atom(f's_mov_b32 s{sKs}, {WS_FB}', lambda: vm(fb, 'fb')))

    def go():
        vm.wait('fb')
        check_tags([r + i for i in range(4)], fb)
        A(f'''s_lshl_b32 s{sT[1]}, s{sW}, 6
s_sub_u32 s{sT[0]}, 255, s{sT[1]}
v_sub_u32 v{vT[0]}, s{sT[0]}, v{vL}
v_lshlrev_b32 v{vT[0]}, 11, v{vT[0]}
s_and_b32 s{sT[0]}, s{sCs}, 3
s_lshl_b32 s{sT[0]}, s{sT[0]}, 9
s_bfe_u32 s{sT[2]}, s{sCs}, 0x50002
s_lshl_b32 s{sT[2]}, s{sT[2]}, 4
s_add_u32 s{sT[0]}, s{sT[0]}, s{sT[2]}
s_add_u32 s{sT[0]}, s{sT[0]}, {WS_KB}
s_lshl_b32 s{sT[1]}, s{sT[1]}, 4
s_add_u32 m0, s{sT[1]}, {L_KV + 2 * 4608}''')
        vm(f'buffer_load_dwordx4 v{vT[0]}, {W}, s{sT[0]} offen sc1 lds')
    S.add(at2, go)


def conv(vm, lg):
    S = Side()
    e = S.spread(0, 3, horner(0, vm, lg)[1])
    left = 50 - c_issued[0] - OPT['cl2'] - OPT['cs2']
    for i in range(left):
        S.add(i * OPT['clend'] // left, lambda: c_load(vm))
    S.spread(0, 1, z_loads(vm))
    S.add(0, lambda: lg(f'ds_read_b64 a[{A_ZU}:{A_ZU + 1}], v{vZ + 3}'))
    S.spread(14, 2, [lambda: vm.wait('xt')]
             + [lambda m=m: lg(f'ds_read_b64 a[{A_X + 2 * m}:{A_X + 2 * m + 1}], v{vXT} offset:{32 * m}') for m in range(5)]
             + [lambda m=m: lg(f'ds_read_b64 a[{A_DSK + 2 * m}:{A_DSK + 2 * m + 1}], v{vXT + 1} offset:{2560 + 32 * m}')
                for m in range(5)])
    marks_gather(S, vm, 1)
    if OPT['tch']:
        t = vT
        S.add(OPT['tch'], atom(f'''s_lshl_b32 s{sT[0]}, s{sJ}, 2
s_add_u32 s{sT[0]}, s{sT[0]}, s{sW}
s_lshl_b32 s{sT[0]}, s{sT[0]}, 9
s_mul_i32 s{sT[1]}, s{sG}, 327680
s_add_u32 s{sT[0]}, s{sT[0]}, s{sT[1]}
s_add_u32 s{sT[0]}, s{sT[0]}, {WS_U + 262144}
s_lshl_b32 s{sT[1]}, s{sR64}, 3
s_add_u32 s{sT[1]}, s{sT[1]}, s{sS8}
s_lshl_b32 s{sT[1]}, s{sT[1]}, 2
s_add_u32 s{sT[1]}, s{sT[1]}, s{sW}
s_lshl_b32 s{sT[1]}, s{sT[1]}, 10
s_add_u32 s{sT[1]}, s{sT[1]}, {WS_ST}
v_lshrrev_b32 v{t[0]}, 3, v{vL}
v_lshlrev_b32 v{t[0]}, 20, v{t[0]}
v_add_u32 v{t[0]}, s{sT[1]}, v{t[0]}
v_mov_b32 v{t[1]}, s{sT[0]}
v_cmp_gt_u32 vcc, 4, v{vL}
v_cndmask_b32 v{t[0]}, v{t[0]}, v{t[1]}, vcc
v_and_b32 v{t[1]}, 3, v{vL}
v_lshl_add_u32 v{t[0]}, v{t[1]}, 7, v{t[0]}
s_mov_b64 exec, 0x3ff''', lambda: vm(f'buffer_load_dword a250, v{t[0]}, {W}, 0 offen'), 's_mov_b64 exec, -1'))
    if OPT['prefetch'] & 2:
        S.add(10, atom(code_touch()))
    pre, ld = agg_ld(0)
    S.spread(OPT['aggl'] - 2, 4, pre)
    for z in range(4):
        S.add(OPT['aggl'] + z // 2, lambda z=z: vm(ld[z], 'agg'))
    nu = OPT['nu']
    cv = Conv([(0, u, list(range(8)), CX) for u in range(nu)], lg)
    cv.emit(0, 36 * nu, S)
    assert not cv.todo and not S.left(), S.left()
    stamp('conv')
    def glue1(lg):
        for i, r in enumerate(YREG + G2REG):
            A(f'v_accvgpr_read_b32 v{r}, a{A_CV + 4 + i}')
        for j in range(4):
            lg(f'ds_read_b64 {v2(KVM + 2 * j)}, v{yKm} offset:{512 * (3 - j)}')
        lg(f'ds_read_b64 {v2(KVX)}, v{yKx}', 'kvm')

    def glue2():
        A(f's_bitcmp0_b32 s{sW}, 0')
        with A.skip_if('s_cbranch_scc1', lambda c: not c['w'] & 1):
            for i in range(16):
                A(f'v_swap_b32 v{CX + i}, v{CX + 16 + i}')

    def yflag(lg):
        A(f'''s_lshr_b32 s{sT[0]}, s{sFK}, 2
s_add_u32 s{sT[0]}, s{sT[0]}, {WS_FY}
v_mov_b32 v{vT[4]}, s{sTag}
s_and_b32 exec_lo, s{sPub}, 1
s_mov_b32 exec_hi, 0
buffer_store_dword v{vT[4]}, off, {W}, s{sT[0]} sc1
s_mov_b64 exec, -1''')
    fy = f'buffer_load_dwordx4 {v4(vFY)}, v{vL16}, {W}, s{sX[5]} offen sc1'
    extra = [lambda: c_load(vm)] * OPT['cs2']
    st = scan_2(0, vm, ld, {0: yflag, 4: glue1}, OPT['defer'], extra)
    assert not extra
    lt, lj = A.label('type'), A.label('join')
    A.cond[lt] = lambda c: c['ty']
    A(f's_bitcmp1_b32 s{sJ}, 0\ns_cbranch_scc1 {lt}')
    p0 = PREV[0]
    for ty in range(2):
        v, lg, S = copy.deepcopy(vm), LG(), Side()
        PREV[0], c_issued[0] = p0, 50 - OPT['cl2']
        o = 9 * (4 - nu)
        for j in range(OPT['defer'], 5):
            S.add((j - OPT['defer']) * OPT['stp'] // 2, lambda j=j: st(j, v))
        for i in range(OPT['cl2']):
            S.add(OPT['cl2s'] + i * (o + 8 - OPT['cl2s']) // OPT['cl2'], lambda: c_load(v))
        S.add(OPT['hfl'], lambda: h_flag(0, v))
        S.add(o + 1, glue2)
        for j in range(4):
            S.add(o + 2 + j, lambda j=j: lg(f'ds_write_b128 v{yPw}, {v4(CX + 16 + 4 * j)} offset:{1024 * j}'))
        S.add(o + 4, 's_barrier')
        S.add(o + OPT['yp0'], atom(f's_mov_b32 s{sX[5]}, {WS_FY}', lambda: v(fy, 'fy')))
        S.add(o + OPT['hp'], lambda: v(H_POLL, 'fh'))
        cv = Conv([(0, u, list(range(8)), CX) for u in range(nu, 4)] + [(1, u, JSET[ty], CY) for u in range(2)], lg, True)
        cv.emit(0, len(cv.seq), S)
        assert not S.left()
        if ty == 0:
            A(f's_branch {lj}\n{lt}:')
    A(f'{lj}:')
    stamp('conv2')
    PM, PS = 208, 224
    for x in range(4):
        A(f'ds_write_b128 v{ySw}, {v4(CY + 4 * x)} offset:{1024 * x}')
    for j in range(4):
        run(y_dterm(CX + 4 * j, KVM + 2 * j, sDm[0], sDm[1]))
    v.wait('fy')
    check_tags([vFY + i for i in range(4)], fy)
    g2 = G2(0, v)
    g2.begin()
    A('s_waitcnt lgkmcnt(0)\ns_barrier')
    for j in range(4):
        A(f'ds_read_b128 {v4(PM + 4 * j)}, v{yPr} offset:{1024 * j}')
    for x in range(4):
        A(f'ds_read_b128 {v4(PS + 4 * x)}, v{ySr} offset:{4096 * x}')
    it = ['s_waitcnt lgkmcnt(0)']
    for j in range(4):
        p = PM + 4 * j
        it += [f'v_add_f32 v{p + i}, v{CX + 4 * j + i}, v{p + i}' for i in range(4)]
        it += [f'v_cvt_pk_bf16_f32 v{p}, v{p}, v{p + 1}', f'v_cvt_pk_bf16_f32 v{p + 1}, v{p + 2}, v{p + 3}',
               lambda j=j, p=p: v(f'buffer_store_dwordx2 {v2(p)}, v{yS}, {W}, s{sYO[0]} offen offset:{512 * j} sc1')]
    it += y_dterm(PS, KVX, sDm[2], sDm[3])
    it += [f'v_add_f32 v{PS + 4 + i}, v{PS + 4 + i}, v{PS + 8 + i}' for i in range(4)]
    it += [f'v_add_f32 v{PS + i}, v{PS + i}, v{PS + 12 + i}' for i in range(4)]
    it += [f'v_add_f32 v{PS + i}, v{PS + i}, v{PS + 4 + i}' for i in range(4)]
    it += [f'v_cvt_pk_bf16_f32 v{PS}, v{PS}, v{PS + 1}', f'v_cvt_pk_bf16_f32 v{PS + 1}, v{PS + 2}, v{PS + 3}',
           lambda: v(f'buffer_store_dwordx2 {v2(PS)}, v{yS}, {W}, s{sYO[1]} offen sc1')]
    g2.ytail = it
    stamp('y_rd')
    return g2


YF, ZR = BF, BF + 20
P0, P1 = 192, 212
XT, DP, ZU, F1, F2 = 98, 100, 102, 88, 92
vHA, vYD, vYR = 244, 252, 253
G2REG = vU[2:5] + [vHA]
YP = 232


def g2_setup(layer):
    hb = WS_H if layer == 0 else WS_H2
    A(f's_mul_i32 s{sT[1]}, s{sR64}, 163840\ns_mul_i32 s{sT[2]}, s{sW}, 10240\n'
      f's_add_u32 s{sT[1]}, s{sT[1]}, s{sT[2]}\ns_add_u32 s{sT[1]}, s{sT[1]}, {hb}')
    for z in range(4):
        A(f's_add_u32 s{sT[2]}, s{sW}, {z + 1}\ns_and_b32 s{sT[2]}, s{sT[2]}, 3\n'
          f's_mul_i32 s{sT[3]}, s{sT[2]}, 40960\ns_add_u32 s{sDS[z]}, s{sT[3]}, s{sT[1]}')
        if z < 2:
            A(f's_mul_i32 s{sT[3]}, s{sT[2]}, 10240\ns_add_u32 s{sT[3]}, s{sT[3]}, {L_RED + z * 5120}\n'
              f'v_add_u32 v{vU[2 + z]}, s{sT[3]}, v{vL16}')
        if z == 2:
            A(f's_mul_i32 s{sT[3]}, s{sT[2]}, 5120\nv_add_u32 v{vU[2 + z]}, s{sT[3]}, v{vL16}')
    A(f'''s_lshl_b32 s{sZ[3]}, s{sR128}, 8
s_lshl_b32 s{sT[1]}, s{sW}, 6
s_add_u32 s{sZ[3]}, s{sZ[3]}, s{sT[1]}
s_and_b32 s{sT[1]}, s{sR64}, 1
s_lshl_b32 s{sT[1]}, s{sT[1]}, 3
s_add_u32 s{sZ[3]}, s{sZ[3]}, s{sT[1]}
s_add_u32 s{sZ[3]}, s{sZ[3]}, {WS_FH + layer * 4096}
v_and_b32 v{vHA}, 3, v{vL}
v_lshlrev_b32 v{vHA}, 4, v{vHA}''')


def z_addr():
    t = vT
    A(f'''s_lshl_b32 s{sT[0]}, s{sR64}, 6
s_lshr_b32 s{sT[1]}, s{sW}, 1
s_lshl_b32 s{sT[1]}, s{sT[1]}, 5
s_add_u32 s{sT[0]}, s{sT[0]}, s{sT[1]}
s_and_b32 s{sT[1]}, s{sW}, 1
s_lshl_b32 s{sT[1]}, s{sT[1]}, 2
s_add_u32 s{sT[0]}, s{sT[0]}, s{sT[1]}
s_mul_i32 s{sZ[0]}, s{sT[0]}, 1280
s_mul_i32 s{sT[1]}, s{sS8}, 160
s_add_u32 s{sZ[0]}, s{sZ[0]}, s{sT[1]}
s_lshl_b32 s{sZ[2]}, s{sW}, 12
s_add_u32 s{sZ[2]}, s{sZ[2]}, {L_PS}''')
    for z in range(3):
        A(f'''v_add_u32 v{t[0]}, {64 * z}, v{vL}
v_mul_u32_u24 v{t[1]}, 205, v{t[0]}
v_lshrrev_b32 v{t[1]}, 11, v{t[1]}
v_lshrrev_b32 v{t[2]}, 2, v{t[1]}
v_mul_u32_u24 v{t[1]}, 1120, v{t[1]}
v_mul_u32_u24 v{t[2]}, 5120, v{t[2]}
v_lshlrev_b32 v{t[0]}, 4, v{t[0]}
v_add3_u32 v{vZ + z}, v{t[0]}, v{t[1]}, v{t[2]}''')
    A(f'''s_and_b32 s{sT[0]}, s{sR64}, 1
s_lshl_b32 s{sT[0]}, s{sT[0]}, 2
s_add_u32 s{sT[0]}, s{sT[0]}, s{sW}
s_lshr_b32 s{sT[1]}, s{sT[0]}, 1
s_lshl_b32 s{sT[1]}, s{sT[1]}, 8
s_and_b32 s{sT[0]}, s{sT[0]}, 1
s_lshl_b32 s{sT[0]}, s{sT[0]}, 5
s_add_u32 s{sT[0]}, s{sT[0]}, s{sT[1]}
s_add_u32 s{sT[0]}, s{sT[0]}, {L_RS}
v_lshrrev_b32 v{t[1]}, 2, v{vI}
v_lshlrev_b32 v{t[1]}, 6, v{t[1]}
v_and_b32 v{t[2]}, 3, v{vI}
v_lshl_add_u32 v{t[1]}, v{t[2]}, 3, v{t[1]}
v_add_u32 v{vZ + 3}, s{sT[0]}, v{t[1]}
v_and_b32 v{t[2]}, 7, v{vI}
v_lshlrev_b32 v{t[2]}, 3, v{t[2]}
v_lshl_add_u32 v{t[2]}, v{vQ}, 6, v{t[2]}
s_lshl_b32 s{sT[0]}, s{sW}, 8
s_add_u32 s{sT[0]}, s{sT[0]}, {L_RS}
v_add_u32 v{vZ + 4}, s{sT[0]}, v{t[2]}
v_lshl_add_u32 v{vXT + 1}, v{vQ}, 3, s{sZ[2]}
v_mul_u32_u24 v{vXT}, 160, v{vI}
v_lshl_add_u32 v{vXT}, v{vQ}, 3, v{vXT}
v_add_u32 v{vXT}, s{sZ[2]}, v{vXT}''')


def z_loads(vm):
    it = []
    for z in range(3):
        it.append(atom(f's_add_u32 m0, s{sZ[2]}, {1024 * z}', 's_mov_b32 exec_hi, 0' if z == 2 else [],
                       lambda z=z: vm(f'buffer_load_dwordx4 v{vZ + z}, {s4(R_X)}, s{sZ[0]} offen lds', 'xt'),
                       's_mov_b32 exec_hi, -1' if z == 2 else []))
    it.append(atom(lambda: srd(R_T1, P_DSK, 1280), f's_add_u32 m0, s{sZ[2]}, 2560', f's_mul_i32 s{sT[0]}, s{sS8}, 160',
                   's_mov_b64 exec, 0x3ff',
                   lambda: vm(f'buffer_load_dwordx4 v{vL16}, {s4(R_T1)}, s{sT[0]} offen lds', 'xt'), 's_mov_b64 exec, -1'))
    return it


def z_work():
    b = [f'v_accvgpr_read_b32 v{ZU}, a{A_ZU}', f'v_accvgpr_read_b32 v{ZU + 1}, a{A_ZU + 1}', f'v_mul_f32 v{ZU}, v{ZU}, v{ZU + 1}']
    for m in range(5):
        for i in range(2):
            b += [f'v_accvgpr_read_b32 v{XT + i}, a{A_X + 2 * m + i}', f'v_accvgpr_read_b32 v{DP + i}, a{A_DSK + 2 * m + i}']
        b += unpack(ZR + 4 * m, XT, 2) + unpack(F2, DP, 2)
        for i in range(4):
            b.append(f'v_fma_f32 v{F1 + i}, v{ZR + 4 * m + i}, v{ZU + 1}, -v{ZU}')
        for i in range(4):
            b.append(f'v_fmac_f32 v{ZR + 4 * m + i}, v{F1 + i}, v{F2 + i}')
    return b


H_POLL = f'buffer_load_dwordx2 {v2(vU[0])}, v{vHA}, {W}, s{sZ[3]} offen sc1'


class G2:
    def __init__(self, layer, vm):
        self.layer, self.vm, self.nxt = layer, vm, 0

    def ld(self):
        f = self.nxt
        self.nxt += 1
        z, k = divmod(f, 10)
        if k and k % 4 == 0:
            A(f's_add_u32 s{sDS[z]}, s{sDS[z]}, 4096')
        self.vm(f'buffer_load_dwordx4 {v4(RING + 4 * (f % NR))}, v{vL16}, {W}, s{sDS[z]} offen '
                f'offset:{(k % 4) * 1024} sc1', ('h', f))

    def begin(self):
        if self.layer == 0:
            self.vm.wait('fh')
        check_tags([vU[0], vU[1]], H_POLL, inline=2 - self.layer)
        self.vm.done = self.vm.n if self.layer else self.vm.done
        stamp(f'h_ready_{self.layer}')
        for f in range(OPT['n0'] if self.layer else OPT['n00']):
            self.ld()


def gemm2(g2):
    layer, vm, ld = g2.layer, g2.vm, g2.ld
    side, lg = Side(), LG()
    n0 = g2.nxt
    last = 0
    for f in range(n0, 40):
        last = max(f - n0, f - NR + 1)
        side.add(last, ld)
    last += 1
    hooks = []
    ze = 0
    if layer == 0:
        e = side.spread(OPT['ys'], OPT['yper'], g2.ytail)
        side.add(e, 's_barrier')
        assert e < 11
        ze = side.spread(e, OPT['zper'], z_work())
        assert ze <= OPT['rb'] - 4 * OPT['r3'], ze
        side.add(OPT['yp'] + 1, f'''s_mul_i32 s{sX[6]}, s{sS8}, 327680
s_lshl_b32 s{sT[0]}, s{sR64}, 7
s_add_u32 s{sX[6]}, s{sX[6]}, s{sT[0]}
s_lshr_b32 s{sT[0]}, s{sW}, 1
s_mul_i32 s{sX[7]}, s{sT[0]}, 5120
s_add_u32 s{sX[7]}, s{sX[7]}, {L_Y}
s_lshl_b32 s{sT[0]}, s{sT[0]}, 6
s_add_u32 s{sX[6]}, s{sX[6]}, s{sT[0]}
s_add_u32 s{sX[6]}, s{sX[6]}, {WS_Y}
s_mov_b32 s{sX[5]}, s{sX[6]}''')
        side.add(OPT['yp'] + 2, f'''s_and_b32 s{sT[0]}, s{sW}, 1
s_mul_i32 s{sT[1]}, s{sT[0]}, {3 * 65536}
s_add_u32 s{sX[6]}, s{sX[6]}, s{sT[1]}
s_mul_i32 s{sT[1]}, s{sT[0]}, 3072
s_add_u32 s{sX[8]}, s{sX[7]}, s{sT[1]}
s_lshl_b32 s{sT[0]}, s{sT[0]}, 3
s_add_u32 s{sX[7]}, s{sX[7]}, s{sT[0]}
v_lshrrev_b32 v{vYD}, 2, v{vL}
v_lshlrev_b32 v{vYD}, 12, v{vYD}
v_and_b32 v{vT[1]}, 3, v{vL}
v_lshl_add_u32 v{vYD}, v{vT[1]}, 4, v{vYD}''')

        def ydma(m):
            A(f's_add_u32 m0, s{sX[8]}, {m * 1024}')
            if m == 2:
                A(f's_bitcmp1_b32 s{sW}, 0\ns_cselect_b32 s{sX[6]}, {OOB}, s{sX[6]}\ns_cselect_b32 m0, {LDS_SIZE}, m0')
            vm(f'buffer_load_dwordx4 v{vYD}, {W}, s{sX[6]} offen sc1 lds', 'yd')
            A(f's_add_u32 s{sX[6]}, s{sX[6]}, 65536')
        side.add(last, *[lambda m=m: ydma(m) for m in range(3)])
        side.add(last + 1, f'v_add_u32 v{vYR}, s{sX[7]}, v{vL16}')
    else:
        if OPT['wb'] & 2:
            side.add(OPT['wbs'] or last + 1, wbl2)
    rd = lambda p, a, off, nm: [lambda i=i: lg(f'ds_read_b128 {v4(p + 4 * i)}, v{a} offset:{off + 1024 * i}', nm) for i in range(5)]
    add = lambda d, s: [f'v_add_f32 v{d + i}, v{d + i}, v{s + i}' for i in range(20)]
    side.add(OPT['ra'] - 1, f's_mul_i32 s{sT[3]}, s{sW}, 10240\ns_add_u32 s{sT[3]}, s{sT[3]}, {L_RED}\n'
                            f'v_add_u32 v{vU[5]}, s{sT[3]}, v{vL16}')
    bar = lambda: (lg.wait('pw'), A('s_barrier'))
    wp = OPT['wper']
    for z in range(3):
        pa = ACC + 20 * (z & 1)
        for m in range(5):
            side.q.setdefault(10 * z + 11 + m // wp, []).insert(
                m % wp, lambda z=z, m=m, pa=pa: lg(f'ds_write_b128 v{vU[2 + z]}, {v4(pa + 4 * m)} offset:{1024 * m}', 'pw'))
    if OPT['r3']:
        e = side.spread(OPT['ra'], 5, [bar] + rd(P0, vU[5], 0, 'p0'))
        side.spread(max(e, ze), 5, [lambda: lg.wait('p0')] + add(ZR, P0))
        e = side.spread(OPT['rb'], OPT['rper'], [bar] + rd(P1, vU[5], 5120, 'p1') + [lambda: lg.wait('p1')] + add(ZR, P1))
    else:
        e = side.spread(OPT['rb'], OPT['rper'], [bar] + rd(P0, vU[5], 0, 'p0') + rd(P1, vU[5], 5120, 'p1') + [lambda: lg.wait('p0')]
                        + add(ZR, P0) + [lambda: lg.wait('p1')] + add(ZR, P1))
    assert e <= 30, e
    side.add(OPT['rc'] - 1, f's_mul_i32 s{sT[3]}, s{sW}, 5120\nv_add_u32 v{vU[5]}, s{sT[3]}, v{vL16}')
    side.spread(OPT['rc'], 6, [bar] + rd(P0, vU[5], 0, 'p2'))
    for z in range(4):
        if OPT['stamps'] != 3:
            stamp(f'.z{z}_{layer}', 2)
        acc = ACC + 20 * (z & 1)
        for k in range(10):
            f = 10 * z + k
            vm.wait(('h', f))
            for h in list(hooks):
                if vm.t[h[0]] <= vm.done:
                    hooks.remove(h)
                    h[1]()
            for m in range(5):
                d = acc + 4 * m
                c = v4(d) if k else ('0' if z < 3 else v4(ZR + 4 * m))
                A(f'v_mfma_f32_16x16x32_bf16 {v4(d)}, {a4(4 * (5 * k + m))}, {v4(RING + 4 * (f % NR))}, {c}')
                side.run(f, 5 - m)
    assert not side.left() and not hooks
    stamp(f'g2_{layer}')
    return lg


def allreduce_q(r, t):
    for op in ('v_permlane32_swap_b32', 'v_permlane16_swap_b32'):
        A(f'''v_mov_b32 v{t}, v{r}
v_mov_b32 v{t + 1}, v{r + 1}
{op} v{r}, v{t}
{op} v{r + 1}, v{t + 1}
v_add_f32 v{r}, v{r}, v{t}
v_add_f32 v{r + 1}, v{r + 1}, v{t + 1}''')


def epilogue(layer, vm, lg):
    a = ACC + 20
    S = 212
    G = 228
    inv = 0x3acccccd
    A(f'''s_lshl_b32 s{sT[0]}, s{sR64}, 15
s_lshl_b32 s{sT[1]}, s{sW}, 10
s_add_u32 s{sT[0]}, s{sT[0]}, s{sT[1]}
s_add_u32 s{sT[0]}, s{sT[0]}, {WS_ST + layer * 0x100000}
s_lshl_b32 s{sT[1]}, s{sS8}, 12
s_add_u32 s{sT[1]}, s{sT[1]}, s{sT[0]}''')
    lg.wait('p2')
    if layer == 0:
        vm.wait('yd')
        A('s_barrier')
        stamp('y_in')
        lg = LG()
        yrd = [f'ds_read_b64_tr_b16 {v2(YP + 2 * m)}, v{vYR} offset:{m * 1024}' for m in range(5)]
        for m in range(5):
            lg(yrd[m], ('y', m))
        A(unpark('bd', 244) + '\n' + unpark('bd2', 245))
    for i in range(10):
        A(f'v_pk_add_f32 {v2(a + 2 * i)}, {v2(a + 2 * i)}, {v2(P0 + 2 * i)}')
    A(f'v_pk_add_f32 {v2(S)}, {v2(a)}, {v2(a + 2)}\nv_pk_mul_f32 {v2(S + 2)}, {v2(a)}, {v2(a)}')
    for i in range(1, 10):
        if i >= 2:
            A(f'v_pk_add_f32 {v2(S)}, {v2(S)}, {v2(a + 2 * i)}')
        A(f'v_pk_fma_f32 {v2(S + 2)}, {v2(a + 2 * i)}, {v2(a + 2 * i)}, {v2(S + 2)}')
    if layer == 0:
        AY = 160
        lg.wait(('y', 4))
        x = vT[4]
        chk = [f'v_pk_max_u16 v{x}, v{YP}, v{YP + 1}'] + [f'v_pk_max_u16 v{x}, v{x}, v{YP + i}' for i in range(2, 10)]
        chk += [f'v_lshlrev_b32 v{vT[3]}, 16, v{x}', f'v_max_u32 v{x}, v{x}, v{vT[3]}', f'v_cmp_le_u32 vcc, 0xffff0000, v{x}']
        lab, done = A.label('again'), A.label('ok')
        A.cond[lab] = lambda c: False
        A('\n'.join(chk) + f'\ns_cbranch_vccnz {lab}\n{done}:')
        slow = [f'{lab}:', f's_sub_u32 s{sBud}, s{sBud}, 1', f's_cmp_gt_i32 s{sBud}, 0', f's_cbranch_scc0 {done}',
                f's_mul_i32 s{sX[8]}, s{sW}, 10240', f's_add_u32 s{sX[8]}, s{sX[8]}, {L_RED + 5120}',
                f's_and_b32 s{sX[6]}, s{sW}, 1', f's_lshl_b32 s{sX[6]}, s{sX[6]}, 3', f's_add_u32 s{sX[6]}, s{sX[6]}, s{sX[8]}',
                f'v_add_u32 v{vYR}, s{sX[6]}, v{vL16}']
        for m in range(5):
            slow += [f's_add_u32 m0, s{sX[8]}, {m * 1024}', f's_add_u32 s{sX[6]}, s{sX[5]}, {m * 65536}',
                     f'buffer_load_dwordx4 v{vYD}, {W}, s{sX[6]} offen sc1 lds']
        TAIL.append('\n'.join(slow + ['s_waitcnt vmcnt(0)'] + yrd + ['s_waitcnt lgkmcnt(0)'] + chk
                              + [f's_cbranch_vccnz {lab}', f's_branch {done}']))
        stamp('y_ok')
        for m in range(5):
            lg.wait(('y', m))
            A('\n'.join(unpack(YF + 4 * m, YP + 2 * m, 2)))
            if m in (0, 2, 4):
                b_dma(vm, 0, m, 244, 245)
            for i in (2 * m, 2 * m + 1):
                x, y, ay = v2(a + 2 * i), v2(YF + 2 * i), v2(AY + 2 * i)
                A(f'v_pk_mul_f32 {ay}, {x}, {y}')
                if i == 0:
                    A(f'v_pk_mul_f32 {v2(S + 14)}, {y}, {y}\nv_pk_mul_f32 {v2(S + 6)}, {ay}, {x}\n'
                      f'v_pk_mul_f32 {v2(S + 8)}, {ay}, {ay}\nv_pk_mul_f32 {v2(S + 10)}, {ay}, {y}')
                else:
                    p2 = v2(AY) if i == 1 else v2(S + 4)
                    p6 = v2(YF) if i == 1 else v2(S + 12)
                    A(f'v_pk_add_f32 {v2(S + 12)}, {p6}, {y}\nv_pk_fma_f32 {v2(S + 14)}, {y}, {y}, {v2(S + 14)}\n'
                      f'v_pk_add_f32 {v2(S + 4)}, {p2}, {ay}\nv_pk_fma_f32 {v2(S + 6)}, {ay}, {x}, {v2(S + 6)}\n'
                      f'v_pk_fma_f32 {v2(S + 8)}, {ay}, {ay}, {v2(S + 8)}\n'
                      f'v_pk_fma_f32 {v2(S + 10)}, {ay}, {y}, {v2(S + 10)}')
        for k in range(8):
            A(f'v_add_f32 v{S + 2 * k}, v{S + 2 * k}, v{S + 2 * k + 1}')
        for k in range(4):
            A(f'v_permlane16_swap_b32 v{S + 2 * k}, v{S + 2 * k + 8}')
        for k in range(4):
            A(f'v_add_f32 v{G + k}, v{S + 2 * k}, v{S + 2 * k + 8}')
        for k in range(4):
            A(f'v_mov_b32 v{S + k}, v{G + k}')
        for k in range(4):
            A(f'v_permlane32_swap_b32 v{G + k}, v{S + k}')
        A(f's_movk_i32 s{sT[2]}, 0xff')
        for k in range(4):
            A(f'v_add_f32 v{G + k}, v{G + k}, v{S + k}')
        for k in range(4):
            A(f's_lshr_b32 s{sT[3]}, s{sTag}, {8 * k}\nv_mov_b32 v{S + k}, s{sT[3]}\n'
              f'v_bfi_b32 v{G + k}, s{sT[2]}, v{S + k}, v{G + k}')
        A('s_mov_b32 exec_hi, 0')
        mode_stores([f'buffer_store_dwordx4 {v4(G)}, v{vL16}, {W}, s{sT[1]} offen'], through=OPT['thr'] & 16)
        A('s_mov_b32 exec_hi, -1')
        stamp('st_pub_0')
        if OPT['prefetch'] & 4:
            run(code_touch())
        for i in range(10):
            A(f'v_accvgpr_write_b32 a{A_Y + i}, v{YP + i}')
        A(f'''v_lshrrev_b32 v{vT[0]}, 2, v{vI}
v_mul_u32_u24 v{vT[0]}, 5120, v{vT[0]}
v_and_b32 v{vT[1]}, 3, v{vI}
v_lshl_add_u32 v{vT[0]}, v{vT[1]}, 4, v{vT[0]}
v_lshrrev_b32 v{vT[1]}, 1, v{vQ}
v_lshl_add_u32 v{vT[0]}, v{vT[1]}, 6, v{vT[0]}
v_and_b32 v{vT[1]}, 1, v{vQ}
v_lshl_add_u32 v{vU[5]}, v{vT[1]}, 3, v{vT[0]}
s_lshl_b32 s{sX[1]}, s{sR64}, 2
s_add_u32 s{sX[1]}, s{sX[1]}, s{sW}
s_mul_i32 s{sX[1]}, s{sX[1]}, 20480
s_mul_i32 s{sT[2]}, s{sS8}, 640
s_add_u32 s{sX[1]}, s{sX[1]}, s{sT[2]}
s_add_u32 s{sX[1]}, s{sX[1]}, {WS_U2}''')
        DPk, DF = 190, 108
        for i in range(10):
            A(f'v_accvgpr_read_b32 v{DPk + i}, a{A_DSK + i}')
        A('\n'.join(unpack(DF, DPk, 10)))
        A(f'''s_lshl_b32 s{sX[0]}, s{sR128}, 8
s_lshr_b32 s{sT[1]}, s{sW}, 1
s_lshl_b32 s{sT[1]}, s{sT[1]}, 7
s_add_u32 s{sX[0]}, s{sX[0]}, s{sT[1]}
s_and_b32 s{sT[1]}, s{sW}, 1
s_lshl_b32 s{sT[1]}, s{sT[1]}, 3
s_add_u32 s{sX[0]}, s{sX[0]}, s{sT[1]}
s_add_u32 s{sX[0]}, s{sX[0]}, {WS_FU}
v_and_b32 v{vU[4]}, 7, v{vL}
v_lshlrev_b32 v{vU[4]}, 4, v{vU[4]}
s_add_u32 s{sL[0]}, s{sXs}, {WS_U2}
s_add_u32 s{sL[1]}, s{sL[0]}, 20480
s_lshl_b32 s{sEpW}, s{sR64}, 5
s_lshl_b32 s{sT[1]}, s{sS8}, 2
s_add_u32 s{sEpW}, s{sEpW}, s{sT[1]}
s_add_u32 s{sEpW}, s{sEpW}, s{sW}''')
        A(f'''v_and_b32 v{vT[0]}, 31, v{vL}
v_lshlrev_b32 v{vT[0]}, 4, v{vT[0]}
v_lshrrev_b32 v{vT[1]}, 5, v{vL}
v_lshl_add_u32 v{vT[0]}, v{vT[1]}, 14, v{vT[0]}
s_mov_b32 s{sT[2]}, 0x0c0c0400
s_mov_b32 s{sT[3]}, 0x04000c0c
s_add_u32 s{sX[2]}, s{sT[0]}, 4096
s_add_u32 s{sX[3]}, s{sT[0]}, 8192
s_add_u32 s{sX[4]}, s{sT[0]}, 12288''')
        back = A.label('stpoll')
        A(f'{back}:')
        Q = 128
        for sl, so in enumerate((sT[0], sX[2], sX[3], sX[4])):
            A(f'buffer_load_dwordx4 {v4(Q + 4 * sl)}, v{vT[0]}, {W}, s{so} offen sc1')
        A('s_waitcnt vmcnt(0)')
        for sl in range(4):
            q = Q + 4 * sl
            A(f'v_perm_b32 v{S + 2 * sl}, v{q + 1}, v{q}, s{sT[2]}\nv_perm_b32 v{S + 2 * sl + 1}, v{q + 3}, v{q + 2}, s{sT[3]}')
        for sl in range(4):
            A(f'v_or_b32 v{S + 2 * sl}, v{S + 2 * sl}, v{S + 2 * sl + 1}')
        lo, hi = vT[2], vT[3]
        A(f'''v_min3_u32 v{lo}, v{S}, v{S + 2}, s{sTag}
v_max3_u32 v{hi}, v{S}, v{S + 2}, s{sTag}
v_min3_u32 v{lo}, v{lo}, v{S + 4}, v{S + 6}
v_max3_u32 v{hi}, v{hi}, v{S + 4}, v{S + 6}
v_cmp_ne_u32 vcc, v{lo}, v{hi}''')
        retry(back)
        stamp('st_in_0')
        for hf in (0, 2):
            A(f'v_pk_add_f32 {v2(Q + hf)}, {v2(Q + hf)}, {v2(Q + 4 + hf)}\n'
              f'v_pk_add_f32 {v2(Q + 8 + hf)}, {v2(Q + 8 + hf)}, {v2(Q + 12 + hf)}')
        for hf in (0, 2):
            A(f'v_pk_add_f32 {v2(Q + hf)}, {v2(Q + hf)}, {v2(Q + 8 + hf)}')
        s = lambda k: S + k
        for k in range(4):
            A(f'v_mov_b32 v{Q + 4 + k}, v{Q + k}')
        for k in range(4):
            A(f'v_permlane32_swap_b32 v{Q + k}, v{Q + 4 + k}')
        for k in range(4):
            A(f'v_add_f32 v{s(k)}, v{Q + k}, v{Q + 4 + k}')
        for k in range(4):
            A(f'v_mov_b32 v{s(4 + k)}, v{s(k)}')
        for k in range(4):
            A(f'v_permlane16_swap_b32 v{s(k)}, v{s(4 + k)}')
        m1, r1, k1, t0, t1, r2, k2 = 200, 202, 203, 204, 205, 206, 207
        A(f'''v_mul_f32 v{m1}, {inv:#x}, v{s(0)}
v_mul_f32 v{t0}, {inv:#x}, v{s(1)}
v_fma_f32 v{t0}, -v{m1}, v{m1}, v{t0}
v_max_f32 v{t0}, 0, v{t0}
v_add_f32 v{t0}, 0x3727c5ac, v{t0}
v_rsq_f32 v{r1}, v{t0}
v_mul_f32 v{k1}, v{m1}, v{r1}
v_fma_f32 v{t0}, v{r1}, v{s(2)}, v{s(0)}
v_fma_f32 v{t0}, -v{k1}, v{s(6)}, v{t0}
v_mul_f32 v{t1}, v{r1}, v{s(4)}
v_fma_f32 v{t1}, 2.0, v{s(3)}, v{t1}
v_fma_f32 v{t1}, v{r1}, v{t1}, v{s(1)}
v_fma_f32 v{s(2)}, v{r1}, v{s(5)}, v{s(2)}
v_mul_f32 v{s(7)}, v{k1}, v{s(7)}
v_fma_f32 v{s(2)}, -2.0, v{s(2)}, v{s(7)}
v_fma_f32 v{t1}, v{k1}, v{s(2)}, v{t1}
v_mul_f32 v{t0}, {inv:#x}, v{t0}
v_mul_f32 v{t1}, {inv:#x}, v{t1}
v_fma_f32 v{t1}, -v{t0}, v{t0}, v{t1}
v_max_f32 v{t1}, 0, v{t1}
v_add_f32 v{t1}, 0x3727c5ac, v{t1}
v_rsq_f32 v{r2}, v{t1}
v_mul_f32 v{k2}, v{t0}, v{r2}''')
        bc = 'op_sel:[0,0,1] op_sel_hi:[1,0,1] neg_lo:[0,0,1] neg_hi:[0,0,1]'
        U, UP = 160, 180
        for i in range(10):
            A(f'v_pk_fma_f32 {v2(U + 2 * i)}, {v2(a + 2 * i)}, {v2(r1)}, {v2(r1)} {bc}')
        for i in range(10):
            A(f'v_pk_fma_f32 {v2(a + 2 * i)}, {v2(U + 2 * i)}, {v2(YF + 2 * i)}, {v2(a + 2 * i)}')
        for i in range(10):
            A(f'v_pk_fma_f32 {v2(U + 2 * i)}, {v2(a + 2 * i)}, {v2(r2)}, {v2(r2)} {bc}')
        for i in range(10):
            A(f'v_cvt_pk_bf16_f32 v{UP + i}, v{U + 2 * i}, v{U + 2 * i + 1}')
        mode_stores([f'buffer_store_dwordx2 {v2(UP + 2 * m)}, v{vU[5]}, {W}, s{sX[1]} offen offset:{128 * m}'
                     for m in range(5)], through=OPT['thr'] & 8)
        stamp('u2_st')
        for i in range(10):
            A(f'v_pk_fma_f32 {v2(a + 2 * i)}, {v2(U + 2 * i)}, {v2(DF + 2 * i)}, {v2(a + 2 * i)}')
        for i in range(20):
            A(f'v_accvgpr_write_b32 a{A_Z + i}, v{a + i}')
        A(f's_add_u32 s{sT[1]}, s{sFW}, {WS_FU}\ns_waitcnt vmcnt(0)')
        flag_store(f's{sT[1]}', True)
        A(f's_cmp_lg_u32 s{sEpW}, {31 * 32}')
        with A.skip_if('s_cbranch_scc1', lambda c: True):
            flag_store('0', False)
        fl = f'buffer_load_dwordx2 {v2(vU[0])}, v{vU[4]}, {W}, s{sX[0]} offen sc1'
        check_tags([vU[0], vU[1]], fl, inline=1)
        stamp('u2_ready')
    else:
        A(f'v_add_f32 v{G}, v{S}, v{S + 1}\nv_add_f32 v{G + 1}, v{S + 2}, v{S + 3}\nv_mov_b32 v{G + 2}, s{sTag}\n'
          f'v_mov_b32 v{G + 3}, s{sTag}')
        allreduce_q(G, S)
        A('s_mov_b64 exec, 0xffff')
        mode_stores([f'buffer_store_dwordx4 {v4(G)}, v{vL16}, {W}, s{sT[1]} offen'], through=OPT['thr'] & 16)
        A('s_mov_b64 exec, -1')
        stamp('st_pub_1')
        if OPT['wb'] & 64:
            wbl2()
        lg = LG()
        X3, Y3 = 160, 180
        A(f'''s_mul_i32 s{sT[2]}, s{sW}, 10240
s_add_u32 s{sT[2]}, s{sT[2]}, {L_RED}
v_lshrrev_b32 v{vT[1]}, 1, v{vI}
v_xor_b32 v{vT[1]}, v{vT[1]}, v{vQ}
v_and_b32 v{vT[1]}, 3, v{vT[1]}
v_lshlrev_b32 v{vT[1]}, 4, v{vT[1]}
v_lshl_add_u32 v{vT[1]}, v{vI}, 6, v{vT[1]}
v_add_u32 v{vU[2]}, s{sT[2]}, v{vT[1]}''')
        for m in range(5):
            lg(f'ds_write_b128 v{vU[2]}, {v4(a + 4 * m)} offset:{1024 * m}')
            lg(f'ds_write_b128 v{vU[2]}, {v4(YF + 4 * m)} offset:{5120 + 1024 * m}')
        A(f'''v_lshrrev_b32 v{vT[1]}, 3, v{vL}
v_xor_b32 v{vT[1]}, v{vT[1]}, v{vL}
v_and_b32 v{vT[1]}, 3, v{vT[1]}
v_lshlrev_b32 v{vT[1]}, 4, v{vT[1]}
v_lshrrev_b32 v{vT[2]}, 2, v{vL}
v_lshl_add_u32 v{vT[1]}, v{vT[2]}, 6, v{vT[1]}
v_add_u32 v{vU[3]}, s{sT[2]}, v{vT[1]}''')
        for m in range(5):
            lg(f'ds_read_b128 {v4(X3 + 4 * m)}, v{vU[3]} offset:{1024 * m}')
            lg(f'ds_read_b128 {v4(Y3 + 4 * m)}, v{vU[3]} offset:{5120 + 1024 * m}')
        A(f'''v_and_b32 v{vT[3]}, 3, v{vL}
v_lshlrev_b32 v{vT[0]}, 13, v{vT[3]}
v_lshl_add_u32 v{vT[0]}, v{vT[2]}, 4, v{vT[0]}
s_add_u32 s{sT[1]}, s{sT[0]}, 4096
v_lshrrev_b32 v{vT[1]}, 2, v{vT[2]}
v_lshl_add_u32 v{vT[1]}, v{vT[1]}, 2, v{vT[2]}
v_mul_u32_u24 v{vT[1]}, 2560, v{vT[1]}
v_lshl_add_u32 v{vU[4]}, v{vT[3]}, 4, v{vT[1]}
s_lshl_b32 s{sT[3]}, s{sR64}, 6
s_lshr_b32 s{sX[1]}, s{sW}, 1
s_lshl_b32 s{sX[1]}, s{sX[1]}, 5
s_add_u32 s{sT[3]}, s{sT[3]}, s{sX[1]}
s_and_b32 s{sX[1]}, s{sW}, 1
s_lshl_b32 s{sX[1]}, s{sX[1]}, 2
s_add_u32 s{sT[3]}, s{sT[3]}, s{sX[1]}
s_mul_i32 s{sT[3]}, s{sT[3]}, 2560
s_mul_i32 s{sX[1]}, s{sS8}, 320
s_add_u32 s{sT[3]}, s{sT[3]}, s{sX[1]}''')
        srd(R_T0, P_OUT, 5242880)
        Q = 128
        ld = [f'buffer_load_dwordx3 {v3(Q)}, v{vT[0]}, {W}, s{sT[0]} offen sc1',
              f'buffer_load_dwordx3 {v3(Q + 4)}, v{vT[0]}, {W}, s{sT[1]} offen sc1']
        check_tags([Q + 2, Q + 6], ld, inline=1)
        A('s_waitcnt lgkmcnt(0)')
        stamp('st_in_1')
        if OPT['wb'] & 32:
            wbl2()
        A(f'v_pk_add_f32 {v2(Q)}, {v2(Q)}, {v2(Q + 4)}')
        for mod in ('quad_perm:[1,0,3,2]', 'quad_perm:[2,3,0,1]'):
            A(f'v_add_f32_dpp v{Q}, v{Q}, v{Q} {mod} {DPPM}\nv_add_f32_dpp v{Q + 1}, v{Q + 1}, v{Q + 1} {mod} {DPPM}')
        r1, t0 = 200, 202
        A(f'''v_mul_f32 v{Q}, {inv:#x}, v{Q}
v_mul_f32 v{t0}, {inv:#x}, v{Q + 1}
v_fma_f32 v{t0}, -v{Q}, v{Q}, v{t0}
v_max_f32 v{t0}, 0, v{t0}
v_add_f32 v{t0}, 0x3727c5ac, v{t0}
v_rsq_f32 v{r1}, v{t0}
v_mul_f32 v{r1 + 1}, v{Q}, v{r1}''')
        bc = 'op_sel:[0,0,1] op_sel_hi:[1,0,1] neg_lo:[0,0,1] neg_hi:[0,0,1]'
        U = 132
        for m in range(5):
            u = U + 4 * (m & 1)
            for hf in range(2):
                A(f'v_pk_fma_f32 {v2(u + 2 * hf)}, {v2(X3 + 4 * m + 2 * hf)}, {v2(r1)}, {v2(r1)} {bc}')
            for hf in range(2):
                i = 4 * m + 2 * hf
                A(f'v_pk_fma_f32 {v2(X3 + i)}, {v2(u + 2 * hf)}, {v2(Y3 + i)}, {v2(X3 + i)}')
            A(f'buffer_store_dwordx4 {v4(X3 + 4 * m)}, v{vU[4]}, {s4(R_T0)}, s{sT[3]} offen offset:{64 * m}'
              + ['', ' sc1', ' sc1 nt', ' nt', ' sc0 sc1'][OPT['om']])
        if OPT['wb'] & 16:
            wbl2()
        stamp('out_st')


def retry(back):
    lab, done = A.label('retry'), A.label('giveup')
    A.cond[lab] = lambda c: False
    if OPT['inl']:
        A.cond[back] = A.cond[done] = lambda c: False
        A(f's_sub_u32 s{sBud}, s{sBud}, 1\ns_cmp_gt_i32 s{sBud}, 0\ns_cbranch_scc0 {done}\ns_cbranch_vccnz {back}\n{done}:')
        return
    A(f's_cbranch_vccnz {lab}\n{done}:')
    TAIL.append(f'{lab}:\ns_sub_u32 s{sBud}, s{sBud}, 1\ns_cmp_gt_i32 s{sBud}, 0\n'
                f's_cbranch_scc1 {back}\ns_branch {done}')


def dump_stamps():
    if OPT['fixdur']:
        A(f'v_readfirstlane_b32 s3, v{vStamp}\ns_min_u32 s3, s3, 20000')
        if OPT['pick'] >= 0:
            A(f's_lshl_b32 s4, s{sJ}, 3\ns_add_u32 s4, s4, s{sG}\ns_cmp_eq_u32 s4, {OPT["pick"]}\ns_cselect_b32 s3, s3, 0')
        A(f'''s_add_u32 s{sSt}, s{sSt}, s3
L_fix:
s_memrealtime s[0:1]
s_waitcnt lgkmcnt(0)
s_sub_u32 s0, s0, s{sSt}
s_cmp_lt_i32 s0, {OPT['fixdur']}
s_cbranch_scc1 L_fix''')
    if not OPT['stamps']:
        return
    A(f'''s_waitcnt vmcnt(0) lgkmcnt(0)
v_writelane_b32 v{vStamp}, s{sSt}, {PREV[0]}
s_memrealtime {s2(sSt)}
s_waitcnt lgkmcnt(0)
v_writelane_b32 v{vStamp}, s{sSt}, 63
s_lshl_b32 s{sT[0]}, s{sR64}, 3
s_add_u32 s{sT[0]}, s{sT[0]}, s{sS8}
s_lshl_b32 s{sT[0]}, s{sT[0]}, 2
s_add_u32 s{sT[0]}, s{sT[0]}, s{sW}
s_lshl_b32 s{sT[0]}, s{sT[0]}, 8
s_add_u32 s{sT[0]}, s{sT[0]}, {WS_DBG}
v_lshlrev_b32 v{vT[0]}, 2, v{vL}
buffer_store_dword v{vStamp}, v{vT[0]}, {W}, s{sT[0]} offen''')


def body():
    prologue()
    g2 = conv(*front(startup()))
    vm = g2.vm
    lg = gemm2(g2)
    epilogue(0, vm, lg)
    g = G1(1, VM())
    n1 = OPT['n1']
    for f in range(n1):
        g.ld(f)
    for f in range(n1, 40):
        g.side.add((f - n1) // 2, lambda f=f: g.ld(f))
    for j in range(5):
        g.rd(0, j)
    if OPT['wb'] & 1:
        g.side.add(16, wbl2)
    for s in range(20):
        g.step(s)
    stamp('g1_1')
    scan_1(1)
    vm = VM()
    run(horner(1, vm, LG()))
    if OPT['prefetch'] & 8:
        run(code_touch())
    pre, ld = agg_ld(1)
    A(pre)
    for l in ld:
        vm(l, 'agg')
    scan_2(1, vm, ld)
    g2_setup(1)
    h_flag(1, vm)
    run([f'v_accvgpr_read_b32 v{ZR + i}, a{A_Z + i}' for i in range(20)]
        + [f'v_accvgpr_read_b32 v{YP + i}, a{A_Y + i}' for i in range(10)] + unpack(YF, YP, 10))
    if OPT['wb'] & 8:
        wbl2()
    g2 = G2(1, vm)
    g2.begin()
    lg = gemm2(g2)
    epilogue(1, vm, lg)
    dump_stamps()
    A('L_end:\ns_endpgm')
    for t in TAIL:
        A(t)
    A('s_endpgm\nL_codeend:')


def main():
    hdr = open(os.path.join(os.path.dirname(os.path.abspath(__file__)), NAME + '.s.ref')).read().split('; Override')[0]
    A2 = [hdr.rstrip(), f'; @launch grid=(256,1,1) block=(256,1,1) lds={LDS_SIZE}',
          '.amdgcn_target "amdgcn-amd-amdhsa--gfx950"\n.text',
          f'.globl {NAME}_kernel\n.p2align 8\n.type {NAME}_kernel,@function\n{NAME}_kernel:']
    body()
    n = A.fix_hazards()
    if OPT['align']:
        print('; align: promoted %d, padded %d' % A.align8(999, False), file=sys.stderr)
    cfgs = [dict(w=w, fast=f, ty=ty) for w in range(4) for f in (0, 1) for ty in (0, 1)]
    errs = A.check_waits(cfgs)
    for e in sorted(set(errs))[:40]:
        print('WAITCNT:', e, file=sys.stderr)
    print(f'; {n} hazard pads inserted; {len(A.L)} lines; stamps: {STAMPS}', file=sys.stderr)
    A2.append('; WS ' + '\n; WS '.join(f'{k}={v:#x}' for k, v in dict(RS=WS_RS, H=WS_H, KV=WS_KV, Y=WS_Y, CF=WS_CF,
                                                                   U2=WS_U2, H2=WS_H2, DBG=WS_DBG, CFOLD=1).items()))
    if STAMPS:
        A2.append('; STAMPS ' + ' '.join(STAMPS))
    A2.append(A.text())
    A2.append(f'''.section .rodata,"a"
.p2align 6
.amdhsa_kernel {NAME}_kernel
  .amdhsa_next_free_vgpr 512
  .amdhsa_next_free_sgpr 102
  .amdhsa_accum_offset 256
  .amdhsa_group_segment_fixed_size 0
  .amdhsa_kernarg_size 144
  .amdhsa_user_sgpr_count 2
  .amdhsa_user_sgpr_kernarg_segment_ptr 1
  .amdhsa_system_sgpr_workgroup_id_x 1
.end_amdhsa_kernel''')
    print('\n'.join(A2))


if __name__ == '__main__':
    main()
```

```python
import sys
import os
import copy
sys.path.insert(0, os.path.dirname(os.path.abspath(__file__)))
from asmlib import Asm

NAME = 'interleave_layers__ssm_conv_s5__ssm_conv_h3__prompt'
OPT = dict(stamps=0, rt=1, reuse=1, force_slow=0, budget=1 << 18, align=3, nt=0, prefetch=11,
           gw=1, rsc=18, late=13, lper=3, b1s=0, b2s=0, b3s=1, b4s=3, cfs=1, cfper=14, kls=14, kvf=5, cff=9, fsp=10, fsc=12, wv0=10, wv=16,
           aggl=21, clend=20, cs2=12, nu=3, defer=1, stp=3, cl2s=6, hfl=12, hp=7, yp0=3, clr=3, fbp=-13, fbc=-17, lag=1, cs1=7, cb=5, cl2=8, ys=0, yper=8, zper=8, csp=14, csc=17, cl0=8,
           order='S,A,M,T,O,G,B0,X0,X1,@setup,R,C,@roles', post='L1',
           n0=8, n00=8, n1=8, yp=26, ra=17, rb=24, rper=9, rc=35, wper=2, r3=0, om=1, wb=2, wbw=3, wbs=0, dbg=0, hout=1, lpre=2, tc2=1, thr=3, tch=12, inl=1, look=14, light=1, fixdur=0, probe='', pick=-1)
for a in sys.argv[1:]:
    k, v = a.split('=')
    assert k in OPT, k
    OPT[k] = v if k in ('probe', 'order', 'post') else int(v, 0)

WS_FU = 0x2000
WS_FH = 0x3000
WS_FS = 0x5000
WS_FY = 0x6000
WS_FK = 0x7000
WS_FB = 0x8000
WS_RS = 0x40000
WS_FX = 0x48000
WS_CS = 0x4A000
WS_AGG = 0x50000
AGG_L = 16 * 32 * 640
WS_ST = 0x140000
WS_U = 0x400000
WS_H = 0xA00000
WS_KV = WS_U if OPT['reuse'] else 0x1000000
WS_Y = 0x1300000
WS_CF = 0x1600000
WS_KB = 0x1900000
WS_U2 = WS_U
WS_H2 = WS_H if OPT['reuse'] else 0x1B00000
WS_DBG = 0x2400000
WS_SIZE = 0x2800000
OOB = 0x70000000

L_AR = 102400
L_SK = L_AR + 2 * 8192
VOFF = 12 * 1056
L_SS, L_SS2, L_V = L_SK + VOFF + 9 * 1056, L_SK + VOFF + 11 * 1056, L_SK + 25 * 1056
L_KV = 0
L_TR = 13824
L_K = 102400
L_PM = 102400
L_PS = L_K + 3 * 8320
L_P = L_PS + 16384
L_RED = 102400
L_Y = 143360
L_AS = 152320
L_G = 149504
L_RS = 158720
L_C = 159744
L_L = 160640
LDS_SIZE = 163840

P_X, P_LRE, P_LIM, P_BRE, P_BIM, P_CRE, P_CIM, P_LDT = 16, 18, 20, 22, 24, 26, 28, 30
P_DSK, P_Q, P_K, P_V, P_SK, P_SSK, P_SD, P_OUT, P_DBG, P_WS = 32, 34, 36, 38, 40, 42, 44, 46, 48, 50
R_WS, R_B, R_T0, R_T1, R_X = 52, 56, 60, 64, 68
sG, sJ, sOnes = 0, 1, 2
sR128, sMem, sR64, sS8, sW, sTag, sMode, sBud, sXcc = 3, 4, 5, 6, 7, 8, 9, 10, 11
sT = [12, 13, 14, 15]
sD = [72, 73]
sBs, sBm, sXs, sXm = 74, 75, 76, 77
sH = [78, 79, 80, 81, 82]
sAgg = 83
sFW, sFK = 84, 85
sC0, sCs = 86, 24
sKm, sKf, sKs = 40, 41, 36
sX = [87, 88, 89, 90, 91, 92, 93, 94, 95]
sPub = 96
sPC = 98
sSt = 100
sL = [34, 35]
sDS = [16, 17, 18, 19]
sZ = [20, 21, 48, 49]
sYO = [50, 51]
sDm = [30, 31, 25, 45]
sEpW = 44

vUA, vL, vL16, vI, vQ = 0, 1, 2, 3, 4
vBA = [5, 6, 7, 8]
vAS, vStamp = 9, 10
vT = [11, 12, 13, 14, 15]
LR, LS, VA = 16, 21, 26
mL8, mL128, mW = 36, 38, 40
vU = [42, 43, 44, 45, 46, 47]
ACC, BF, RING, NR = 48, 88, 128, 16
A_Y, A_Z, A_DSK = 200, 210, 230
PARK = dict(tw=240, tr=241, ts=242, bd=243, bd2=244, junk=250)
A_CV = 200
A_X, A_ZU = 216, 226

A = Asm()
NT = ' nt' if OPT['nt'] & 1 else ''
STAMPS = []
PREV = [61]
TAIL = []
DPPM = 'row_mask:0xf bank_mask:0xf'
SWP = f'quad_perm:[1,0,3,2] {DPPM}'
W = f's[{R_WS}:{R_WS + 3}]'
HO = OPT['reuse'] and OPT['hout']
WH = f's[{R_T0}:{R_T0 + 3}]' if HO else W
HB = [0, 0] if HO else [WS_H, WS_H2]


def s2(n): return f's[{n}:{n + 1}]'
def s4(n): return f's[{n}:{n + 3}]'
def v2(n): return f'v[{n}:{n + 1}]'
def v3(n): return f'v[{n}:{n + 2}]'
def v4(n): return f'v[{n}:{n + 3}]'
def a4(n): return f'a[{n}:{n + 3}]'


def srd(r, p, size):
    A(f's_mov_b32 s{r}, s{p}\ns_and_b32 s{r + 1}, s{p + 1}, 0xffff\ns_mov_b32 s{r + 2}, {size}\n'
      f's_mov_b32 s{r + 3}, 0x20000')


def stamp(name, level=1):
    if ':' in OPT['probe']:
        a, b, kind = OPT['probe'].split(':')
        op = 's_memtime' if kind == 'c' else 's_memrealtime'
        if name == a:
            A(f'{op} vcc\ns_waitcnt lgkmcnt(0)\nv_mov_b32 v{vStamp}, vcc_lo')
        if name == b:
            A(f'{op} vcc\ns_waitcnt lgkmcnt(0)\nv_sub_u32 v{vStamp}, vcc_lo, v{vStamp}\n'
              + (f'v_lshrrev_b32 v{vStamp}, 2, v{vStamp}' if kind == 'c' else f'v_lshlrev_b32 v{vStamp}, 2, v{vStamp}'))
    if OPT['probe'] == name:
        A(f's_memrealtime vcc\ns_waitcnt lgkmcnt(0)\ns_sub_u32 vcc_lo, vcc_lo, s{sSt}\ns_lshl_b32 vcc_lo, vcc_lo, 2\n'
          f'v_mov_b32 v{vStamp}, vcc_lo')
    if not OPT['stamps'] or (OPT['stamps'] < 0 and name != 'start') or level > abs(OPT['stamps']):
        return
    if name not in STAMPS:
        STAMPS.append(name)
    i = STAMPS.index(name)
    op = 's_memrealtime' if OPT['rt'] else 's_memtime'
    if name == 'start' or not OPT['light']:
        A(f'{op} {s2(sSt)}\ns_waitcnt lgkmcnt(0)\nv_writelane_b32 v{vStamp}, s{sSt}, {i}')
    else:
        A(f'v_writelane_b32 v{vStamp}, s{sSt}, {PREV[0]} ; nocheck\n{op} {s2(sSt)} ;@{i}')
        PREV[0] = i


class Cnt:
    def __init__(self, what, cap):
        self.n, self.t, self.what, self.cap, self.done = 0, {}, what, cap, 0

    def __call__(self, text, name=None):
        A(text)
        self.n += 1
        if name is not None:
            self.t[name] = self.n
        return self.n

    def wait(self, *names):
        tok = max(self.t[x] if not isinstance(x, int) else x for x in names)
        if tok <= self.done:
            return
        k = self.n - tok
        assert k >= 0
        if k <= self.cap:
            A(f's_waitcnt {self.what}({k})')
            self.done = tok
        else:
            A(f's_waitcnt {self.what}({self.cap})')
            self.done = self.n - self.cap

    def merge(self, o):
        n = max(self.n, o.n)
        t = {}
        for k in set(self.t) | set(o.t):
            t[k] = n - min(c.n - c.t[k] for c in (self, o) if k in c.t)
        self.done = n - max(self.n - self.done, o.n - o.done)
        self.n, self.t = n, t


def VM(): return Cnt('vmcnt', 63)
def LG(): return Cnt('lgkmcnt', 15)


def lines(x):
    if isinstance(x, str):
        return [l for l in x.split('\n') if l.strip()]
    if isinstance(x, (list, tuple)):
        return [l for it in x for l in lines(it)]
    return [x]


def atom(*items):
    return lambda: run(items)


def run(items):
    for it in lines(items):
        A(it) if isinstance(it, str) else it()


class Side:
    def __init__(self):
        self.q = {}

    def add(self, step, *items):
        self.q.setdefault(step, []).extend(lines(items))

    def spread(self, step0, per, items):
        flat = lines(items)
        for i, it in enumerate(flat):
            self.add(step0 + i // per, it)
        return step0 + (len(flat) + per - 1) // per

    def run(self, step, slots_left):
        q = self.q.get(step, [])
        n = -(-len(q) // slots_left)
        self.q[step] = q[n:]
        for it in q[:n]:
            A(it) if isinstance(it, str) else it()

    def left(self, lo=0, hi=999):
        return [k for k, v in self.q.items() if v and lo <= k < hi]


class Cap:
    def __enter__(self):
        self.save = A.L
        A.L = []
        return self

    def __exit__(self, *a):
        self.lines = [i.text for i in A.L]
        A.L = self.save


def check_tags(regs, reload, masked=False, x=None, y=None, inline=0):
    x, y = vT[4] if x is None else x, vT[3] if y is None else y
    if len(regs) <= 2:
        chk = [f'v_xor_b32 v{x}, s{sTag}, v{regs[0]}']
        for r in regs[1:]:
            chk += [f'v_xor_b32 v{y}, s{sTag}, v{r}', f'v_or_b32 v{x}, v{x}, v{y}']
        chk.append(f'v_cmp_lt_u32 vcc, 15, v{x}' if masked else f'v_cmp_ne_u32 vcc, 0, v{x}')
    else:
        assert not masked and len(regs) % 2 == 0
        chk = [f'v_min3_u32 v{x}, v{regs[0]}, v{regs[1]}, s{sTag}', f'v_max3_u32 v{y}, v{regs[0]}, v{regs[1]}, s{sTag}']
        for i in range(2, len(regs), 2):
            chk += [f'v_min3_u32 v{x}, v{x}, v{regs[i]}, v{regs[i + 1]}', f'v_max3_u32 v{y}, v{y}, v{regs[i]}, v{regs[i + 1]}']
        chk.append(f'v_cmp_ne_u32 vcc, v{x}, v{y}')
    lab, done = A.label('again'), A.label('ok')
    A.cond[lab] = lambda c: False
    if inline and OPT['inl']:
        if inline == 2:
            A.cond[done] = lambda c: True
            A('\n'.join(chk) + f'\ns_cbranch_vccz {done}')
        out = A.label('out')
        A.cond[out] = lambda c: False
        run([f'{lab}:'] + lines(reload) + [f's_sub_u32 s{sBud}, s{sBud}, 1', f's_cmp_gt_i32 s{sBud}, 0', 's_waitcnt vmcnt(0)']
            + chk + [f's_cbranch_scc0 {out}', f's_cbranch_vccnz {lab}', f'{out}:', f'{done}:'])
        return
    if inline == 1:
        run(lines(reload) + ['s_waitcnt vmcnt(0)'])
    A('\n'.join(chk) + f'\ns_cbranch_vccnz {lab}\n{done}:')
    TAIL.append('\n'.join([f'{lab}:', f's_sub_u32 s{sBud}, s{sBud}, 1', f's_cmp_gt_i32 s{sBud}, 0', f's_cbranch_scc0 {done}']
                          + lines(reload) + ['s_waitcnt vmcnt(0)'] + chk + [f's_cbranch_vccnz {lab}', f's_branch {done}']))


def mode_stores(ls, mode=sMode, through=False):
    if through:
        return run([(l + ' sc1') if l.startswith('buffer_store') else l for l in ls])
    slow, back = A.label('slow'), A.label('back')
    A.cond[slow] = lambda c: not c['fast'] or (mode != sMode and c['w'] == 2)
    A(f's_cmp_eq_u32 s{mode}, 0\ns_cbranch_scc1 {slow}')
    for l in ls:
        A(l)
    A(f'{back}:')
    TAIL.append(f'{slow}:\n' + '\n'.join((l + ' sc1') if l.startswith('buffer_store') else l for l in ls)
                + f'\ns_nop 1\ns_branch {back}')


def flag_store(soff, local, vm=None, mode=sMode):
    t = vT[4]
    A(f'v_mov_b32 v{t}, s{sTag}\ns_mov_b64 exec, 1')
    line = f'buffer_store_dword v{t}, off, {W}, {soff}'
    if local:
        mode_stores([line], mode)
    else:
        A(line + ' sc1')
    A('s_mov_b64 exec, -1')
    if vm is not None:
        vm.n += 1


def unpack(dst, src, n):
    out = []
    for i in range(n):
        out += [f'v_lshlrev_b32 v{dst + 2 * i}, 16, v{src + i}', f'v_and_b32 v{dst + 2 * i + 1}, 0xffff0000, v{src + i}']
    return out


def rnd_bf16(v):
    A(f'v_cvt_pk_bf16_f32 v{v}, v{v}, v{v}\nv_and_b32 v{v}, 0xffff0000, v{v}')


def cmul(dst, g, lam, add=None):
    if add is None:
        a = f'v_pk_mul_f32 {v2(dst)}, {v2(g)}, {v2(lam)} op_sel:[1,1] op_sel_hi:[0,1] neg_lo:[0,1]'
    else:
        a = f'v_pk_fma_f32 {v2(dst)}, {v2(g)}, {v2(lam)}, {v2(add)} op_sel:[1,1,0] op_sel_hi:[0,1,1] neg_lo:[0,1,0]'
    return [a, f'v_pk_fma_f32 {v2(dst)}, {v2(g)}, {v2(lam)}, {v2(dst)} op_sel:[0,0,0] op_sel_hi:[1,0,1]']


def park(name, v): A(f'v_accvgpr_write_b32 a{PARK[name]}, v{v}')
def unpark(name, v): return f'v_accvgpr_read_b32 v{v}, a{PARK[name]}'


def code_touch():
    return [f's_and_b32 vcc_lo, s{sJ}, 7', 's_lshl_b32 vcc_lo, vcc_lo, 2', f's_add_u32 vcc_lo, vcc_lo, s{sW}',
            's_lshl_b32 vcc_lo, vcc_lo, 11', f'v_lshl_add_u32 v{vT[4]}, v{vI}, 7, vcc_lo',
            f'v_min_u32 v{vT[4]}, L_codeend-L_pc-4, v{vT[4]}', 's_mov_b64 exec, 0xffff',
            f'global_load_dword a250, v{vT[4]}, {s2(sPC)}', 's_mov_b64 exec, -1']


def wbl2():
    A(f's_lshl_b32 vcc_lo, s{sJ}, 2\ns_add_u32 vcc_lo, vcc_lo, s{sW}\ns_cmp_lg_u32 vcc_lo, {OPT["wbw"]}')
    with A.skip_if('s_cbranch_scc1', lambda c: True):
        A('buffer_wbl2 sc1')


AF = 128
vAR, vAR2, vXd, vXd2, vBd, vBd2, vR, vSgn = 144, 145, 146, 147, 148, 149, 150, 151
CR, CI, CT, CTMP, vCd = 176, 180, 192 if OPT['cfs'] >= 0 else 128, 152, 174
vKV, vKS, vKR, vSR, vFX, vFXa = 169, 171, 172, 173, 184, 185
KK, VV, SKW, WW, AC, KT = 48, 70, 88, 96, 112, 216
OUT = [232, 236, 88, 92]
XP, XS = 48, 88
PAR = 229
KA, KB, vKO, vKP = 192, 204, 186, 163
vZ, vXT = 224, 242
RSL, vRS, CSL = 152, 160, 246
MM, RR = 88, 96
vFP, vFA = 188, 187


def x_dma(vm, p):
    s2i, m = p >> 1, p & 1
    A(f's_add_u32 m0, s{sXm}, {(p % 7) * 8192}\ns_add_u32 s{sT[3]}, s{sXs}, {4 * m * 1280 + s2i * 128}')
    vm(f'buffer_load_dwordx4 v{vXd}, {s4(R_X)}, s{sT[3]} offen lds')
    vm(f'buffer_load_dwordx4 v{vXd2}, {s4(R_X)}, s{sT[3]} offen offset:1024 lds', ('x', p))


def b_dma(vm, g, j, bd=vBd, bd2=vBd2):
    A(f's_add_u32 m0, s{sBm}, {g * 20480 + j * 2048}\ns_add_u32 s{sT[2]}, s{sBs}, {g * 256 + j * 10240}')
    vm(f'buffer_load_dwordx4 v{bd}, {s4(R_B)}, s{sT[2]} offen lds', ('b', g))
    if j < 4:
        vm(f'buffer_load_dwordx4 v{bd2}, {s4(R_B)}, s{sT[2]} offen offset:2048 lds', ('b', g))


def b_all(vm, g):
    t = vT
    srd(R_T1, P_BRE, 819200)
    A(f'v_xor_b32 v{t[0]}, 64, v{vBd}\nv_xor_b32 v{t[1]}, 64, v{vBd2}\ns_mul_i32 s{sT[3]}, s{sMem}, 51200')
    for hf in range(2):
        for j in (0, 2, 4):
            A(f's_add_u32 s{sT[2]}, s{sT[3]}, {g * 256 + hf * 128 + j * 10240}')
            for comp, (r, a, a2) in enumerate(((R_T1, t[0], t[1]), (R_B, vBd, vBd2))):
                A(f's_mov_b32 m0, {g * 20480 + hf * 10240 + j * 2048 + comp * 1024}')
                vm(f'buffer_load_dwordx4 v{a}, {s4(r)}, s{sT[2]} offen lds', ('b', g))
                if j < 4:
                    vm(f'buffer_load_dwordx4 v{a2}, {s4(r)}, s{sT[2]} offen offset:2048 lds', ('b', g))


def prologue():
    A('s_cmp_ge_u32 s2, 256\ns_cbranch_scc1 L_end')
    A.cond['L_end'] = lambda c: False
    if OPT['stamps'] or OPT['fixdur']:
        A(f's_memrealtime {s2(sSt)}\nv_mov_b32 v{vStamp}, 0')
    A('s_load_dwordx16 s[16:31], s[0:1], 0\ns_load_dwordx16 s[32:47], s[0:1], 64\n'
      's_load_dwordx4 s[48:51], s[0:1], 128')
    t = vT
    A(f'''v_and_b32 v{vL}, 63, v0
v_lshrrev_b32 v{t[0]}, 6, v0
v_lshlrev_b32 v{vL16}, 4, v{vL}
v_readfirstlane_b32 s{sW}, v{t[0]}
v_and_b32 v{vI}, 15, v{vL}
v_lshrrev_b32 v{vQ}, 4, v{vL}
s_and_b32 s{sT[0]}, s2, 7
s_lshr_b32 s{sT[1]}, s2, 3
s_getpc_b64 {s2(sPC)}
L_pc:
s_and_b32 s{sMem}, s{sT[1]}, 15
s_lshr_b32 s{sT[2]}, s{sT[1]}, 4
s_lshl_b32 s{sR128}, s{sT[0]}, 1
s_add_u32 s{sR128}, s{sR128}, s{sT[2]}
s_mov_b32 s{sG}, s{sT[0]}
s_mov_b32 s{sJ}, s{sT[1]}''')
    if OPT['prefetch'] & 1:
        A('\n'.join(code_touch()))
    A(f'''v_lshrrev_b32 v{t[0]}, 3, v{vL}
v_and_b32 v{t[2]}, 7, v{vL}
v_mul_u32_u24 v{vR}, 1280, v{t[0]}
v_lshl_add_u32 v{vR}, v{t[2]}, 4, v{vR}''')
    kv_src()
    A('s_waitcnt lgkmcnt(0)')
    if OPT['stamps']:
        A(f'v_writelane_b32 v{vStamp}, s{sSt}, 62')
        stamp('start')


def dma_addr():
    t = vT
    A(f'''v_lshrrev_b32 v{t[0]}, 3, v{vL}
v_and_b32 v{t[1]}, 6, v{t[0]}
v_and_b32 v{t[2]}, 7, v{vL}
s_movk_i32 s{sT[3]}, 0x78
v_bfe_u32 v{t[3]}, s{sT[3]}, v{t[1]}, 2
v_xor_b32 v{t[3]}, v{t[3]}, v{t[2]}
v_mul_u32_u24 v{vXd}, 1280, v{t[0]}
v_lshl_add_u32 v{vBd}, v{t[3]}, 4, v{vXd}
s_and_b32 s{sT[0]}, s{sW}, 1
s_lshl_b32 s{sT[1]}, s{sT[0]}, 6
v_xor_b32 v{vBd}, s{sT[1]}, v{vBd}
v_add_u32 v{vBd2}, {10240 - 2048}, v{vBd}
v_xor_b32 v{t[1]}, v{t[1]}, v{t[2]}
v_and_b32 v{t[0]}, 4, v{t[0]}
v_mul_u32_u24 v{t[0]}, 1280, v{t[0]}
v_lshl_add_u32 v{t[0]}, v{t[1]}, 4, v{t[0]}
v_add_u32 v{vXd}, v{t[0]}, v{vXd}
v_add_u32 v{vXd2}, {20480 - 1024}, v{vXd}
s_lshr_b32 s{sT[1]}, s{sW}, 1
s_mul_i32 s{sBm}, s{sT[1]}, 10240
s_lshl_b32 s{sT[0]}, s{sT[0]}, 10
s_add_u32 s{sBm}, s{sBm}, s{sT[0]}
s_mul_i32 s{sBs}, s{sMem}, 51200
s_lshl_b32 s{sT[1]}, s{sT[1]}, 7
s_add_u32 s{sBs}, s{sBs}, s{sT[1]}
s_lshl_b32 s{sXs}, s{sR128}, 2
s_add_u32 s{sXs}, s{sXs}, s{sW}
s_mul_i32 s{sXs}, s{sXs}, 40960
s_lshl_b32 s{sXm}, s{sW}, 11
s_add_u32 s{sXm}, s{sXm}, {L_AR}''')
    A(f'''s_bitcmp1_b32 s{sW}, 0
s_cselect_b32 s{R_B}, s{P_BIM}, s{P_BRE}
s_cselect_b32 s{R_B + 1}, s{P_BIM + 1}, s{P_BRE + 1}
s_and_b32 s{R_B + 1}, s{R_B + 1}, 0xffff
s_mov_b32 s{R_B + 2}, 819200
s_mov_b32 s{R_B + 3}, 0x20000
s_bitcmp1_b32 s{sR128}, 3
s_cselect_b32 s{R_T0}, s{P_BIM}, s{P_BRE}
s_cselect_b32 s{R_T0 + 1}, s{P_BIM + 1}, s{P_BRE + 1}
s_and_b32 s{R_T0 + 1}, s{R_T0 + 1}, 0xffff
s_mov_b32 s{R_T0 + 2}, 819200
s_mov_b32 s{R_T0 + 3}, 0x20000''')
    srd(R_X, P_X, 2621440)
    srd(R_WS, P_WS, WS_SIZE)


def kv_src():
    A(f'''s_mul_i32 s{sT[0]}, s{sJ}, 81920
s_lshl_b32 s{sT[1]}, s{sG}, 7
s_add_u32 s{sT[0]}, s{sT[0]}, s{sT[1]}
v_add_u32 v{vKV}, s{sT[0]}, v{vR}
s_lshl_b32 s{sX[8]}, s{sG}, 5
s_add_u32 s{sX[8]}, s{sX[8]}, s{sJ}
s_mul_i32 s{sT[0]}, s{sX[8]}, 10240
s_add_u32 s{sT[0]}, s{sT[0]}, 1024
v_add_u32 v{vKV + 1}, s{sT[0]}, v{vR}''')


def kv_addr():
    t = vT
    A(f'''v_lshrrev_b32 v{t[0]}, 3, v{vL}
v_and_b32 v{t[1]}, 7, v{vL}
v_mul_u32_u24 v{t[2]}, 1056, v{t[1]}
v_lshl_add_u32 v{t[2]}, v{t[0]}, 3, v{t[2]}
s_lshl_b32 s{sT[0]}, s{sW}, 6
s_add_u32 s{sT[0]}, s{sT[0]}, {L_SK}
v_add_u32 v{vKR}, s{sT[0]}, v{t[2]}
s_lshl_b32 s{sT[0]}, s{sW}, 8
s_add_u32 s{sT[0]}, s{sT[0]}, {L_SS}
v_lshl_add_u32 v{vSR}, v{t[0]}, 5, s{sT[0]}
v_sub_u32 v{t[2]}, 7, v{t[1]}
v_lshlrev_b32 v{t[2]}, 4, v{t[2]}
v_lshl_add_u32 v{vKS}, v{t[0]}, 14, v{t[2]}
s_mul_i32 s{sT[0]}, s{sG}, 80
s_lshl_b32 s{sT[1]}, s{sW}, 5
s_add_u32 s{sT[0]}, s{sT[0]}, s{sT[1]}
s_lshl_b32 s{sT[0]}, s{sT[0]}, 12
s_lshl_b32 s{sT[1]}, s{sJ}, 7
s_sub_u32 s{sT[0]}, s{sT[0]}, s{sT[1]}
s_add_u32 s{sX[0]}, s{sT[0]}, {WS_KV + 3968}
s_add_u32 s{sKf}, s{sFK}, {WS_FK}
s_movk_i32 s{sKs}, 4096
s_cmp_lg_u32 s{sW}, 2''')
    with A.skip_if('s_cbranch_scc1', lambda c: c['w'] != 2):
        A(f'''v_bfe_u32 v{t[2]}, v{vL}, 4, 1
v_mul_u32_u24 v{t[2]}, 2112, v{t[2]}
v_and_b32 v{t[3]}, 15, v{vL}
v_lshl_add_u32 v{t[2]}, v{t[3]}, 3, v{t[2]}
v_add_u32 v{vKR}, {L_SK + 9 * 1056}, v{t[2]}
v_and_b32 v{t[2]}, 31, v{vL}
v_lshlrev_b32 v{t[2]}, 5, v{t[2]}
v_add_u32 v{vSR}, {L_SS2}, v{t[2]}
v_cmp_gt_u32 vcc, 32, v{vL}
v_mov_b32 v{t[3]}, {OOB}
s_lshl_b32 s{sX[0]}, s{sX[8]}, 11
s_add_u32 s{sX[0]}, s{sX[0]}, {WS_KB}
v_cndmask_b32 v{vKS}, v{t[3]}, v{vL16}, vcc
s_lshl_b32 s{sKf}, s{sX[8]}, 2
s_add_u32 s{sKf}, s{sKf}, {WS_FB}
s_movk_i32 s{sKs}, 512''')


def kv_dma(vm, r, a, so, pos, halo=False):
    if halo:
        A(f'v_subrev_u32 v{vT[0]}, 10240, v{a}\ns_mov_b32 exec_lo, 0\ns_mov_b32 exec_hi, 0xffffff00')
    A(f's_mov_b32 m0, {L_SK + pos * 1056}')
    if so > 64:
        A(f's_mov_b32 s{sT[0]}, {so}')
    vm(f'buffer_load_dwordx4 v{vT[0] if halo else a}, {s4(r)}, {"s%d" % sT[0] if so > 64 else so} offen{NT} lds', 'kv')
    if halo:
        A('s_mov_b64 exec, -1')


def kv_loads0(vm):
    srd(R_T0, P_K, 2621440)
    for p in range(1, 8):
        kv_dma(vm, R_T0, vKV, (p - 1) * 10240, p)
    kv_dma(vm, R_T0, vKV, 0, 0, True)


def kv_loads1(vm):
    srd(R_T1, P_V, 2621440)
    for p in range(1, 9):
        kv_dma(vm, R_T1, vKV, (p - 1) * 10240, 12 + p)


def kv_loads2(vm):
    srd(R_T0, P_K, 2621440)
    srd(R_T1, P_V, 2621440)
    kv_dma(vm, R_T0, vKV, 7 * 10240, 8)
    for hf in range(2):
        kv_dma(vm, R_T0, vKV + 1, 128 * hf, 10 + 2 * hf)
        kv_dma(vm, R_T1, vKV + 1, 128 * hf, 22 + 2 * hf)
    for hf in range(2):
        kv_dma(vm, R_T0, vKV + 1, 128 * hf, 9 + 2 * hf, True)
    srd(R_T1, P_SK, 5120)
    A(f's_mov_b32 m0, {L_SS2}\ns_movk_i32 s{sT[0]}, 4096')
    vm(f'buffer_load_dwordx4 v{vL16}, {s4(R_T1)}, s{sT[0]} offen{NT} lds', 'kv')
    A(f's_mov_b32 m0, {L_SS}\ns_lshl_b32 s{sT[0]}, s{sG}, 9\ns_mov_b32 exec_hi, 0')
    vm(f'buffer_load_dwordx4 v{vL16}, {s4(R_T1)}, s{sT[0]} offen{NT} lds', 'kv')
    A('s_mov_b32 exec_hi, -1')


def c_loads(vm):
    t = vT
    A(f'''v_mul_u32_u24 v{t[0]}, 171, v{vL}
v_lshrrev_b32 v{t[0]}, 11, v{t[0]}
v_mul_u32_u24 v{t[1]}, 12, v{t[0]}
v_sub_u32 v{t[1]}, v{vL}, v{t[1]}
s_mul_i32 s{sT[0]}, s{sMem}, 5
v_min_u32 v{t[2]}, 4, v{t[0]}
v_add_u32 v{t[2]}, s{sT[0]}, v{t[2]}
s_mul_i32 s{sT[1]}, s{sW}, 12
v_add_u32 v{t[1]}, s{sT[1]}, v{t[1]}
v_cmp_gt_u32 vcc, 40, v{t[1]}
v_cmp_gt_u32 {s2(sT[2])}, 5, v{t[0]}
s_lshr_b32 s{sT[1]}, s{sJ}, 4
s_mul_i32 s{sT[1]}, s{sT[1]}, 40
v_min_u32 v{t[1]}, 39, v{t[1]}
s_and_b64 vcc, vcc, {s2(sT[2])}
v_add_u32 v{t[1]}, s{sT[1]}, v{t[1]}
s_mul_i32 s{sT[2]}, s{sG}, 102400
v_mul_u32_u24 v{t[3]}, 1280, v{t[1]}
v_lshl_add_u32 v{t[3]}, v{t[2]}, 4, v{t[3]}
v_add_u32 v{t[3]}, s{sT[2]}, v{t[3]}''')
    if OPT['dbg'] & 16:
        A(f'v_mov_b32 v{t[3]}, v{vL16}')
    vm(f'global_load_dwordx4 {v4(CR)}, v{t[3]}, {s2(P_CRE)}{NT}')
    vm(f'global_load_dwordx4 {v4(CI)}, v{t[3]}, {s2(P_CIM)}{NT}', 'craw')
    A(f'''v_lshrrev_b32 v{t[3]}, 2, v{t[2]}
v_mul_u32_u24 v{t[3]}, 10240, v{t[3]}
v_and_b32 v{t[2]}, 3, v{t[2]}
v_lshl_add_u32 v{t[3]}, v{t[2]}, 8, v{t[3]}
v_lshrrev_b32 v{t[2]}, 4, v{t[1]}
v_lshl_add_u32 v{t[3]}, v{t[2]}, 10, v{t[3]}
v_and_b32 v{t[1]}, 15, v{t[1]}
v_lshl_add_u32 v{t[3]}, v{t[1]}, 4, v{t[3]}
v_mov_b32 v{t[2]}, {OOB}
v_cndmask_b32 v{vCd}, v{t[2]}, v{t[3]}, vcc
v_min_u32 v{t[0]}, 4, v{t[0]}
v_lshlrev_b32 v{t[0]}, 6, v{t[0]}
v_add_u32 v{vCd + 1}, {L_C}, v{t[0]}''')


def cf_work(vm, lg):
    it = [lambda d=d: lg(f'ds_read_b128 {v4(CT + 4 * d)}, v{vCd + 1} offset:{16 * d}', 'ctab') for d in range(4)]
    it.append(lambda: (vm.wait('craw'), lg.wait('ctab')))
    r, i, o = CTMP, CTMP + 2, CTMP + 4
    for d in range(4):
        cr, ci = v2(CT + 4 * d), v2(CT + 4 * d + 2)
        it += unpack(r, CR + d, 1) + unpack(i, CI + d, 1)
        it += [f'v_pk_mul_f32 {v2(o)}, {v2(r)}, {cr}',
               f'v_pk_mul_f32 {v2(o + 2)}, {v2(r)}, {ci} neg_lo:[0,1] neg_hi:[0,1]',
               f'v_pk_fma_f32 {v2(o)}, {v2(i)}, {ci}, {v2(o)} neg_lo:[0,1,0] neg_hi:[0,1,0]',
               f'v_pk_fma_f32 {v2(o + 2)}, {v2(i)}, {cr}, {v2(o + 2)} neg_lo:[0,1,0] neg_hi:[0,1,0]',
               f'v_cvt_pk_bf16_f32 v{CR + d}, v{o}, v{o + 1}',
               f'v_cvt_pk_bf16_f32 v{CI + d}, v{o + 2}, v{o + 3}']
    it.append(atom(f's_mul_i32 s{sT[0]}, s{sG}, 204800', f's_add_u32 s{sT[0]}, s{sT[0]}, {WS_CF}',
                   f's_add_u32 s{sT[1]}, s{sT[0]}, 5120',
                   lambda: vm(f'buffer_store_dwordx4 {v4(CR)}, v{vCd}, {W}, s{sT[0]} offen sc1'),
                   lambda: vm(f'buffer_store_dwordx4 {v4(CI)}, v{vCd}, {W}, s{sT[1]} offen sc1', 'cfst')))
    return it


def consts():
    lre, lim, ldt = PAR, PAR + 1, PAR + 2
    t = 96
    zr, zi, e, rev, sn, cs = t, t + 1, t + 2, t + 3, t + 4, t + 5
    aL, aV, aC = t + 6, t + 7, t + 8
    P = t + 10
    V = ACC
    Wt = 84
    A(f'''v_lshlrev_b32 v{lre}, 16, v{lre}
v_lshlrev_b32 v{lim}, 16, v{lim}
v_lshlrev_b32 v{ldt}, 16, v{ldt}
v_mul_f32 v{ldt}, 0x3fb8aa3b, v{ldt}
v_exp_f32 v{ldt}, v{ldt}
v_min_u32 v{aC}, 39, v{vL}
v_mul_u32_u24 v{aL}, 80, v{aC}
v_mul_u32_u24 v{aV}, 176, v{aC}''')
    rnd_bf16(ldt)
    A(f'''v_mul_f32 v{zr}, v{ldt}, v{lre}
v_mul_f32 v{zi}, v{ldt}, v{lim}
v_mul_f32 v{zr}, 0x3fb8aa3b, v{zr}
v_mul_f32 v{zi}, 0x3e22f983, v{zi}''')
    for kf, dst in (('1.0', P), ('0x41000000', V + 2)):
        A(f'''v_mul_f32 v{e}, {kf}, v{zr}
v_mul_f32 v{rev}, {kf}, v{zi}
v_exp_f32 v{e}, v{e}
v_fract_f32 v{rev}, v{rev}
v_sin_f32 v{sn}, v{rev}
v_cos_f32 v{cs}, v{rev}
v_mul_f32 v{dst + 1}, v{e}, v{sn}
v_mul_f32 v{dst}, v{e}, v{cs}''')
    A(f'''v_mul_f32 v{e}, v{lre}, v{lre}
v_fmac_f32 v{e}, v{lim}, v{lim}
v_rcp_f32 v{e}, v{e}
v_add_f32 v{rev}, -1.0, v{P}
v_add_f32 v{e}, v{e}, v{e}
v_mul_f32 v{sn}, v{rev}, v{lre}
v_fmac_f32 v{sn}, v{P + 1}, v{lim}
v_mul_f32 v{cs}, v{P + 1}, v{lre}
v_fma_f32 v{cs}, -v{rev}, v{lim}, v{cs}
v_mul_f32 v{sn}, v{e}, v{sn}
v_mul_f32 v{cs}, v{e}, v{cs}
v_and_b32 v{e}, 1, v{aC}
v_lshrrev_b32 v{aC}, 1, v{aC}
v_lshlrev_b32 v{aC}, 4, v{aC}
v_lshl_add_u32 v{aC}, v{e}, 2, v{aC}
v_add_u32 v{aC}, {L_C}, v{aC}
v_add_u32 v{aL}, {L_L}, v{aL}
v_add_u32 v{aV}, {L_V}, v{aV}
ds_write2_b32 v{aC}, v{sn}, v{cs} offset0:0 offset1:2
s_waitcnt lgkmcnt(0)
v_mov_b32 v{V}, 1.0
v_mov_b32 v{V + 1}, 0
v_mov_b32 v{Wt}, 1.0
v_mov_b32 v{Wt + 1}, 0''')
    a = [cmul(P + 2 * k, P + 2 * k - 2, P) for k in range(1, 7)]
    b = [cmul(V + 2 * s, V + 2 * s - 2, V + 2) for s in range(2, 17)]
    for s, ops in enumerate(b):
        A(ops[0])
        if s < len(a):
            A(a[s][0])
        A(ops[1])
        if s < len(a):
            A(a[s][1])
        if 6 <= s < 13:
            k = s - 6
            A(f'ds_write2_b32 v{aL}, v{P + 2 * k}, v{P + 2 * k + 1} offset0:{k} offset1:{8 + k}')
        if s % 2 == 1:
            A(f'ds_write_b128 v{aV}, {v4(V + 2 * (s - 1))} offset:{8 * (s - 1)}')
    A(f'ds_write2_b32 v{aL}, v{V + 2}, v{V + 3} offset0:7 offset1:15')
    A(f'ds_write_b128 v{aV}, {v4(V + 28)} offset:112')
    A('\n'.join(cmul(e, V + 32, V + 32) + cmul(Wt + 2, e, e) + cmul(Wt + 4, Wt + 2, Wt + 2) + cmul(Wt + 6, Wt + 4, Wt + 2)))
    A(f'''ds_write_b64 v{aV}, {v2(V + 32)} offset:128
ds_write_b128 v{aV}, {v4(Wt)} offset:144
ds_write_b128 v{aV}, {v4(Wt + 4)} offset:160''')


def const_reads(lg):
    t = vT
    it = lines(f'''v_lshrrev_b32 v{t[0]}, 1, v{vI}
v_mul_u32_u24 v{t[1]}, 176, v{t[0]}
v_mul_u32_u24 v{t[0]}, 80, v{t[0]}
v_and_b32 v{t[2]}, 1, v{vI}
v_lshl_add_u32 v{t[1]}, v{t[2]}, 2, v{t[1]}
v_lshl_add_u32 v{t[1]}, v{vQ}, 3, v{t[1]}
s_lshl_b32 s{sT[0]}, s{sW}, 5
s_add_u32 s{sT[0]}, s{sT[0]}, {L_V}
v_add_u32 v{t[1]}, s{sT[0]}, v{t[1]}
v_add_u32 v{t[0]}, {L_L}, v{t[0]}
v_cvt_f32_u32 v{vSgn}, v{t[2]}
v_min_u32 v{t[2]}, 39, v{vL}
v_mul_u32_u24 v{t[2]}, 176, v{t[2]}
v_fma_f32 v{vSgn}, 2.0, v{vSgn}, -1.0
v_add_u32 v{t[2]}, {L_V}, v{t[2]}
s_lshl_b32 s{sT[0]}, s{sW}, 3''')
    for j in range(5):
        it.append(lambda j=j: lg(f'ds_read_b32 v{LR + j}, v{t[0]} offset:{j * 640}'))
        it.append(lambda j=j: lg(f'ds_read_b32 v{LS + j}, v{t[0]} offset:{j * 640 + 32}'))
        it.append(lambda j=j: lg(f'ds_read_b32 v{VA + 2 * j}, v{t[1]} offset:{j * 1408}'))
    it.append(lambda: lg(f'ds_read_b64 {v2(mL8)}, v{t[2]} offset:8'))
    it.append(lambda: lg(f'ds_read_b64 {v2(mL128)}, v{t[2]} offset:128'))
    it.append(f'v_add_u32 v{t[2]}, s{sT[0]}, v{t[2]}')
    it.append(lambda: lg(f'ds_read_b64 {v2(mW)}, v{t[2]} offset:144', 'cst'))
    fix = [lambda: lg.wait('cst')]
    for j in range(5):
        fix += [f'v_mul_f32 v{LS + j}, v{vSgn}, v{LS + j}',
                f'v_mul_f32_dpp v{VA + 2 * j + 1}, v{VA + 2 * j}, v{vSgn} {SWP}']
    return it, fix


def kv_work(vm, lg):
    rd = [lambda: lg(f'ds_read_b128 {v4(SKW)}, v{vSR}'), lambda: lg(f'ds_read_b128 {v4(SKW + 4)}, v{vSR} offset:16', 'skw')]
    for r in range(11):
        off = 1056 + (r - 3) * 128 if r >= 3 else (5 + r) * 128
        rd.append(lambda r=r, off=off: lg(f'ds_read_b64 {v2(KK + 2 * r)}, v{vKR} offset:{off}', 'kk'))
    for r in range(8):
        rd.append(lambda r=r: lg(f'ds_read_b64 {v2(VV + 2 * r)}, v{vKR} offset:{VOFF + 1056 + r * 128}', 'vv'))
    it = [lambda: lg.wait('skw')]
    for e in range(4):
        for i in range(4):
            src = SKW + 2 * e + (i >> 1)
            it.append(f'v_and_b32 v{WW + 4 * i + e}, 0xffff0000, v{src}' if i & 1 else
                      f'v_lshlrev_b32 v{WW + 4 * i + e}, 16, v{src}')
    it.append(lambda: lg.wait('kk'))
    for d in range(2):
        pend = []
        for r in range(11):
            tmp = KT + 2 * (r % 2)
            it += unpack(tmp, KK + 2 * r + d, 1) if r == 0 else []
            nxt = unpack(KT + 2 * ((r + 1) % 2), KK + 2 * (r + 1) + d, 1) if r < 10 else []
            ops = []
            for stage in range(4):
                ta = r - stage
                if 0 <= ta < 8:
                    w = v2(WW + 4 * (3 - stage) + 2 * d)
                    ac = v2(AC + 2 * ta)
                    ops.append(f'v_pk_mul_f32 {ac}, {v2(tmp)}, {w}' if stage == 0 else
                               f'v_pk_fma_f32 {ac}, {v2(tmp)}, {w}, {ac}')
            it += ops[:1] + nxt + ops[1:]
        it.append(lambda: lg.wait('vv'))
        for ta in range(8):
            tmp = KT + 4 + 2 * (ta % 2)
            it += unpack(tmp, VV + 2 * ta + d, 1) + pend
            pend = [f'v_pk_mul_f32 {v2(AC + 2 * ta)}, {v2(AC + 2 * ta)}, {v2(tmp)}']
        it += pend
        for eo in range(2):
            for dd in range(4):
                it.append(f'v_cvt_pk_bf16_f32 v{OUT[2 * d + eo] + dd}, v{AC + 2 * (7 - 2 * dd) + eo}, '
                          f'v{AC + 2 * (6 - 2 * dd) + eo}')

    def st():
        ls = []
        for e in range(4):
            if e:
                ls.append(f's_add_u32 s{sX[0]}, s{sX[0]}, s{sKs}')
            ls.append(f'buffer_store_dwordx4 {v4(OUT[e])}, v{vKS}, {W}, s{sX[0]} offen')
        mode_stores(ls, sKm, OPT['thr'] & 1)
        vm.n += 4
        vm.t['kvst'] = vm.n
    it.append(st)
    return rd, it


def stats_work(vm):
    S, Q, ad = XS, XS + 2, vT[0]
    it = [lambda: vm.wait('xp')]
    for i in range(40):
        it.append(f'v_dot2_f32_bf16 v{S}, v{XP + i}, s{sOnes}, ' + (f'v{S}' if i else '0'))
        it.append(f'v_dot2_f32_bf16 v{Q}, v{XP + i}, v{XP + i}, ' + (f'v{Q}' if i else '0'))
    with Cap() as c:
        for mod in ('quad_perm:[1,0,3,2]', 'quad_perm:[2,3,0,1]', 'row_half_mirror'):
            A(f'v_add_f32_dpp v{S}, v{S}, v{S} {mod} {DPPM}')
            A(f'v_add_f32_dpp v{Q}, v{Q}, v{Q} {mod} {DPPM}')
        inv = 0x3acccccd
        A(f'''v_mul_f32 v{S}, {inv:#x}, v{S}
v_mul_f32 v{Q}, {inv:#x}, v{Q}
v_fma_f32 v{Q}, -v{S}, v{S}, v{Q}
v_max_f32 v{Q}, 0, v{Q}''')
        rnd_bf16(S)
        rnd_bf16(Q)
        A(f'v_add_f32 v{Q}, 0x3727c5ac, v{Q}')
        rnd_bf16(Q)
        A(f'v_sqrt_f32 v{Q}, v{Q}')
        rnd_bf16(Q)
        A(f'''v_rcp_f32 v{S + 1}, v{Q}
v_mov_b32 v{Q}, s{sTag}
v_mov_b32 v{Q + 1}, s{sTag}''')

    def st():
        A(f'''v_lshlrev_b32 v{ad}, 1, v{vL}
s_lshl_b32 s{sT[0]}, s{sR128}, 4
s_add_u32 s{sT[0]}, s{sT[0]}, s{sMem}
s_lshl_b32 s{sT[0]}, s{sT[0]}, 7
s_add_u32 s{sT[0]}, s{sT[0]}, {WS_RS}
s_mov_b32 exec_lo, 0x01010101
s_mov_b32 exec_hi, 0x01010101''')
        vm(f'buffer_store_dwordx4 {v4(S)}, v{ad}, {W}, s{sT[0]} offen sc1')
        A('s_mov_b64 exec, -1')
    return it + c.lines + [st]


def colsum_work(vm):
    cs = XS
    it = [lambda: vm.wait('xp')]
    for i in range(40):
        it.append(f'v_dot2_f32_bf16 v{cs + (i & 1)}, v{XP + i}, s{sOnes}, ' + (f'v{cs + (i & 1)}' if i > 1 else '0'))
    it.append(f'v_add_f32 v{cs}, v{cs}, v{cs + 1}')
    for mod in ('quad_perm:[1,0,3,2]', 'quad_perm:[2,3,0,1]', 'row_half_mirror'):
        it.append(f'v_add_f32_dpp v{cs}, v{cs}, v{cs} {mod} {DPPM}')

    def st():
        A(f"""v_mov_b32 v{cs + 1}, s{sTag}
v_lshlrev_b32 v{vT[0]}, 1, v{vL}
s_lshl_b32 s{sT[0]}, s{sMem}, 3
s_and_b32 s{sT[1]}, s{sR128}, 7
s_add_u32 s{sT[0]}, s{sT[0]}, s{sT[1]}
s_mul_i32 s{sT[0]}, s{sT[0]}, 80
s_and_b32 s{sT[1]}, s{sR128}, 8
s_add_u32 s{sT[0]}, s{sT[0]}, s{sT[1]}
s_add_u32 s{sT[0]}, s{sT[0]}, {WS_CS}
s_mov_b32 exec_lo, 0x01010101
s_mov_b32 exec_hi, 1""")
        vm(f'buffer_store_dwordx2 {v2(cs)}, v{vT[0]}, {W}, s{sT[0]} offen sc1')
        A('s_mov_b64 exec, -1')
    return it + [st]


def fx_store(mods):
    A(f"""s_lshl_b32 s{sT[0]}, s{sG}, 8
s_lshl_b32 s{sT[1]}, s{sJ}, 2
s_add_u32 s{sT[0]}, s{sT[0]}, s{sT[1]}
s_add_u32 s{sT[0]}, s{sT[0]}, {WS_FX}
s_or_b32 s{sT[1]}, s{sTag}, s{sXcc}
v_mov_b32 v{vT[4]}, s{sT[1]}
s_mov_b64 exec, 1
buffer_store_dword v{vT[4]}, off, {W}, s{sT[0]}{mods}
s_mov_b64 exec, -1""")


def mode_check(vm):
    t, x, fa, so = vFX, vT[4], vFXa, sX[2]
    vm.wait('fx')
    lab, done = A.label('again'), A.label('ok')
    A.cond[lab] = lambda c: False
    A(f"""v_xor_b32 v{x}, s{sTag}, v{t}
v_cmp_lt_u32 vcc, 15, v{x}
s_cbranch_vccnz {lab}
{done}:""")
    TAIL.append(f"""{lab}:
s_sub_u32 s{sBud}, s{sBud}, 1
s_cmp_gt_i32 s{sBud}, 0
s_cbranch_scc0 {done}
buffer_load_dword v{t}, v{fa}, {W}, s{so} offen sc1
s_waitcnt vmcnt(0)
v_xor_b32 v{x}, s{sTag}, v{t}
v_cmp_lt_u32 vcc, 15, v{x}
s_cbranch_vccz {done}
s_and_b32 s{sT[1]}, s{sBud}, 3
s_cbranch_scc1 {lab}
buffer_load_dword v{t}, v{fa}, {W}, s{so} offen offset:128 sc1
s_waitcnt vmcnt(0)
v_xor_b32 v{x}, s{sTag}, v{t}
v_cmp_lt_u32 vcc, 15, v{x}
s_cbranch_vccnz {lab}
s_branch {done}""")
    A(f"""s_or_b32 s{sT[1]}, s{sTag}, s{sXcc}
v_cmp_ne_u32 vcc, s{sT[1]}, v{t}
s_cmp_eq_u64 vcc, 0
s_cselect_b32 s{sMode}, {0 if OPT['force_slow'] else 1}, 0
s_cmp_eq_u32 s{sW}, 2
s_cselect_b32 s{sKm}, 0, s{sMode}""")


def gemm_addr():
    t = vT
    A(f"""v_and_b32 v{t[0]}, 1, v{vI}
v_lshrrev_b32 v{t[1]}, 1, v{vI}
v_and_b32 v{t[2]}, 6, v{t[1]}
s_movk_i32 s{sT[3]}, 0x78
v_bfe_u32 v{t[2]}, s{sT[3]}, v{t[2]}, 2
v_xor_b32 v{t[2]}, v{t[2]}, v{vQ}
v_lshl_add_u32 v{t[2]}, v{t[0]}, 2, v{t[2]}
v_lshlrev_b32 v{t[2]}, 4, v{t[2]}
v_lshl_add_u32 v{t[2]}, v{t[1]}, 7, v{t[2]}
v_lshl_add_u32 v{vBA[0]}, v{t[0]}, 10, v{t[2]}
v_xor_b32 v{vBA[1]}, 64, v{vBA[0]}
v_add_u32 v{vBA[2]}, 51200, v{vBA[0]}
v_add_u32 v{vBA[3]}, 51200, v{vBA[1]}
v_mul_u32_u24 v{vAS}, 144, v{t[1]}
v_lshl_add_u32 v{vAS}, v{t[0]}, 2, v{vAS}
v_lshl_add_u32 v{vAS}, v{vQ}, 3, v{vAS}
s_lshl_b32 s{sT[0]}, s{sW}, 5
v_add_u32 v{vAS}, s{sT[0]}, v{vAS}
v_and_b32 v{t[0]}, 6, v{vI}
v_xor_b32 v{t[0]}, v{t[0]}, v{vQ}
v_lshlrev_b32 v{t[0]}, 4, v{t[0]}
v_lshl_add_u32 v{t[0]}, v{vI}, 7, v{t[0]}
v_add_u32 v{vAR}, s{sXm}, v{t[0]}
v_xor_b32 v{vAR2}, 64, v{vAR}""")


def misc_setup():
    t = vT
    A(f'''s_lshr_b32 s{sT[2]}, s{sMem}, 3
s_lshl_b32 s{sR64}, s{sR128}, 1
s_add_u32 s{sR64}, s{sR64}, s{sT[2]}
s_and_b32 s{sS8}, s{sMem}, 7
s_lshl_b32 s{sFW}, s{sR128}, 8
s_lshl_b32 s{sT[1]}, s{sMem}, 4
s_add_u32 s{sFW}, s{sFW}, s{sT[1]}
s_lshl_b32 s{sT[1]}, s{sW}, 2
s_add_u32 s{sFW}, s{sFW}, s{sT[1]}
s_lshl_b32 s{sFK}, s{sG}, 9
s_add_u32 s{sFK}, s{sFK}, s{sT[1]}
s_lshl_b32 s{sT[1]}, s{sJ}, 4
s_add_u32 s{sFK}, s{sFK}, s{sT[1]}
s_lshl_b32 s{sAgg}, s{sMem}, 5
s_add_u32 s{sAgg}, s{sAgg}, s{sR128}
s_mul_i32 s{sAgg}, s{sAgg}, 640
s_add_u32 s{sAgg}, s{sAgg}, {WS_AGG}
s_cmp_eq_u32 s{sW}, 0
s_cselect_b32 s{sPub}, -1, 0
s_cselect_b32 s{sPub + 1}, 0xff, 0''')
    A(f's_lshl_b32 s{sT[0]}, s{sXs}, 1\ns_mul_i32 s{sT[1]}, s{sMem}, 5')
    for j in range(5):
        A(f"""s_add_u32 s{sT[2]}, s{sT[1]}, {j}
s_lshr_b32 s{sT[3]}, s{sT[2]}, 2
s_lshl_b32 s{sT[3]}, s{sT[3]}, 11
s_and_b32 s{sT[2]}, s{sT[2]}, 3
s_lshl_b32 s{sT[2]}, s{sT[2]}, 8
s_add_u32 s{sT[2]}, s{sT[2]}, s{sT[3]}
s_add_u32 s{sH[j]}, s{sT[2]}, s{sT[0]}""")
    tw, tr, ts = vU[0], vU[1], vU[2]
    A(f'''s_mul_i32 s{sT[0]}, s{sW}, 1280
s_add_u32 s{sT[0]}, s{sT[0]}, {L_TR}
v_mul_u32_u24 v{t[0]}, 80, v{vI}
v_lshl_add_u32 v{t[0]}, v{vQ}, 4, v{t[0]}
v_add_u32 v{tw}, s{sT[0]}, v{t[0]}
v_bfe_u32 v{t[1]}, v{vL}, 2, 2
v_mul_u32_u24 v{t[1]}, 160, v{t[1]}
v_and_b32 v{t[2]}, 3, v{vL}
v_lshl_add_u32 v{t[1]}, v{t[2]}, 4, v{t[1]}
v_lshrrev_b32 v{t[2]}, 1, v{vQ}
v_mul_u32_u24 v{t[3]}, 80, v{t[2]}
v_lshlrev_b32 v{t[2]}, 10, v{t[2]}
v_add3_u32 v{t[1]}, v{t[1]}, v{t[3]}, s{sT[0]}
v_and_b32 v{t[3]}, 1, v{vQ}
v_lshl_add_u32 v{tr}, v{t[3]}, 3, v{t[1]}
v_mul_u32_u24 v{t[3]}, 40960, v{t[3]}
v_lshl_add_u32 v{t[2]}, v{vI}, 4, v{t[2]}
v_add_u32 v{ts}, v{t[2]}, v{t[3]}''')
    park('tw', tw), park('tr', tr), park('ts', ts), park('bd', vBd), park('bd2', vBd2)
    A(f'''v_lshrrev_b32 v{t[0]}, 2, v{vI}
v_mul_u32_u24 v{t[0]}, 5120, v{t[0]}
v_and_b32 v{t[1]}, 3, v{vI}
v_lshl_add_u32 v{t[0]}, v{t[1]}, 4, v{t[0]}
v_lshl_add_u32 v{vUA}, v{vQ}, 6, v{t[0]}''')


def weave(items, extra, first, every):
    extra = list(extra)
    for i, it in enumerate(lines(items)):
        run(it)
        if extra and i >= first and (i - first) % every == 0:
            run(extra.pop(0))
    run(extra)


class Roles:
    def __init__(self, n):
        self.c = [VM() for _ in range(n)]

    def __call__(self, text, name=None):
        A(text)
        for c in self.c:
            c.n += 1
            if name is not None:
                c.t[name] = c.n

    def wait(self, *names):
        k = min(c.n - max(c.t[x] for x in names) for c in self.c)
        A(f's_waitcnt vmcnt({min(k, 63)})')
        for c in self.c:
            c.done = max(c.done, c.n - min(k, 63))

    def each(self, fns):
        lj = A.label('join')
        todo = [w for w in range(4) if fns[w]]
        labs = {w: A.label(f'w{w}') for w in todo}
        for w in todo:
            A.cond[labs[w]] = lambda c, w=w: c['w'] == w
            if w != todo[0] or len(todo) < 4:
                A(f's_cmp_eq_u32 s{sW}, {w}\ns_cbranch_scc1 {labs[w]}')
        if len(todo) < 4:
            A(f's_branch {lj}')
        for w in todo:
            A(f'{labs[w]}:')
            fns[w](self.c[w])
            if w != todo[-1]:
                A(f's_branch {lj}')
        A(f'{lj}:')

    def merged(self):
        for c in self.c[1:]:
            self.c[0].merge(c)
        return self.c[0]


def startup():
    t = vT
    R = Roles(4)

    def bs(vm, g0, g1):
        return [lambda g=g, j=j: b_dma(vm, g, j) for g in range(g0, g1) for j in (0, 2, 4)]

    def head1(vm):
        A(f"""v_min_u32 v{t[0]}, 39, v{vL}
s_mul_i32 s{sT[0]}, s{sMem}, 80
v_lshl_add_u32 v{t[3]}, v{t[0]}, 1, s{sT[0]}""")
        vm(f'global_load_ushort v{PAR}, v{t[3]}, {s2(P_LRE)}{NT}')
        vm(f'global_load_ushort v{PAR + 1}, v{t[3]}, {s2(P_LIM)}{NT}')
        vm(f'global_load_ushort v{PAR + 2}, v{t[3]}, {s2(P_LDT)}{NT}', 'par')

    def head3(vm):
        srd(R_X, P_X, 2621440)
        A(f'''s_lshl_b32 s{sT[0]}, s{sR128}, 4
s_add_u32 s{sT[0]}, s{sT[0]}, s{sMem}
s_mul_i32 s{sT[0]}, s{sT[0]}, 10240''')
        vm.t['kv'] = 0
        for z in range(10):
            vm(f'buffer_load_dwordx4 {v4(XP + 4 * z)}, v{vR}, {s4(R_X)}, s{sT[0]} offen offset:{z * 128}', 'xp')
    A(f's_load_dword s{sTag}, {s2(P_WS)}, 0')
    R.each([kv_loads0, lambda vm: (head1(vm), kv_loads1(vm)), kv_loads2, head3])

    def scalars():
        A(f'''s_lshl_b32 s{sC0}, s{sX[8]}, 1
s_lshl_b32 s{sT[0]}, s{sC0}, 1
s_load_dword s{sD[0]}, {s2(P_SD)}, s{sT[0]}
s_and_b32 s{sT[0]}, s{sX[8]}, 0xfffffffc
s_add_u32 s{sT[0]}, s{sT[0]}, 1024
s_load_dword s{sD[1]}, {s2(P_SD)}, s{sT[0]}
s_getreg_b32 s{sXcc}, hwreg(HW_REG_XCC_ID, 0, 4)
s_mov_b32 s{sBud}, {OPT['budget']}
s_mov_b32 s{sOnes}, 0x3f803f80''')
    with Cap() as cc:
        consts()
    cc.lines.remove('s_waitcnt lgkmcnt(0)')

    def tag():
        A(f"""s_waitcnt lgkmcnt(0)
s_lshr_b32 s{sTag}, s{sTag}, 4
s_mul_i32 s{sTag}, s{sTag}, 0x19660d
s_add_u32 s{sTag}, s{sTag}, 0x3c6ef35f
s_lshl_b32 s{sTag}, s{sTag}, 4""")

    def more():
        with Cap() as c:
            A(f'''s_lshl_b32 s{sX[6]}, s{sR128}, 11
s_lshl_b32 s{sT[0]}, s{sW}, 9
s_add_u32 s{sX[6]}, s{sX[6]}, s{sT[0]}
s_add_u32 s{sX[6]}, s{sX[6]}, {WS_RS}
v_and_b32 v{vRS}, 7, v{vI}
v_lshlrev_b32 v{vRS}, 4, v{vRS}
v_lshl_add_u32 v{vRS}, v{vQ}, 7, v{vRS}
s_mul_i32 s{sX[7]}, s{sMem}, 640
s_add_u32 s{sX[7]}, s{sX[7]}, {WS_CS}
v_lshlrev_b32 v{vRS + 1}, 3, v{vL}
v_lshlrev_b32 v{vRS + 2}, 3, v{vI}
v_and_b32 v{vFA}, 31, v{vL}
v_lshlrev_b32 v{vFA}, 4, v{vFA}
s_lshl_b32 s{sX[1]}, s{sS8}, 9
s_add_u32 s{sX[1]}, s{sX[1]}, {WS_FS}
v_and_b32 v{vFXa}, 31, v{vL}
v_lshlrev_b32 v{vFXa}, 2, v{vFXa}
s_lshl_b32 s{sX[2]}, s{sG}, 8
s_add_u32 s{sX[2]}, s{sX[2]}, {WS_FX}''')
            run(conv_setup())
            g2_setup(0)
            run(y_setup())
            for i, r in enumerate(vCA + vCB + YREG + G2REG):
                A(f'v_accvgpr_write_b32 a{A_CV + i}, v{r}')
            z_addr()
        return c.lines

    def w0(vm):
        A(f"""v_lshrrev_b32 v{t[1]}, 1, v{vL}
v_and_b32 v{t[0]}, 1, v{vL}
v_lshlrev_b32 v{t[0]}, 7, v{t[0]}
v_lshl_add_u32 v{t[0]}, v{t[1]}, 12, v{t[0]}
s_lshl_b32 s{sT[0]}, s{sR128}, 8
s_add_u32 s{sT[0]}, s{sT[0]}, {WS_FU}
v_add_u32 v{t[0]}, s{sT[0]}, v{t[0]}
s_lshl_b32 s{sT[0]}, s{sG}, 9
s_add_u32 s{sT[0]}, s{sT[0]}, {WS_FK - 6 * 128}
v_lshl_add_u32 v{t[1]}, v{vL}, 7, s{sT[0]}
v_cmp_lt_u32 vcc, 5, v{vL}
s_lshl_b32 s{sT[0]}, s{sG}, 8
s_add_u32 s{sT[0]}, s{sT[0]}, {WS_FX}
v_cndmask_b32 v{t[0]}, v{t[0]}, v{t[1]}, vcc
v_mov_b32 v{t[1]}, s{sT[0]}
v_cmp_lt_u32 vcc, 9, v{vL}
v_mov_b32 v{XS}, 0
v_cndmask_b32 v{t[0]}, v{t[0]}, v{t[1]}, vcc""")
        vm(f'buffer_load_dword a250, v{t[0]}, {W}, 0 offen')
        fx_store('')
        fx_store(' offset:128 sc1')
        vm.n += 2
        A(f'''v_mov_b32 v{XS + 1}, 0
v_mov_b32 v{XS + 2}, s{sTag}
v_mov_b32 v{XS + 3}, s{sTag}
s_add_u32 s{sT[0]}, s{sAgg}, {AGG_L}
s_mov_b32 exec_hi, 0xff''')
        vm(f'buffer_store_dwordx4 {v4(XS)}, v{vL16}, {W}, s{sAgg} offen sc1')
        vm(f'buffer_store_dwordx4 {v4(XS)}, v{vL16}, {W}, s{sT[0]} offen sc1')
        A('s_mov_b32 exec_hi, -1')

    def wt(vm):
        A(f'''v_cmp_lt_u32 vcc, 4, v{vL}
s_add_u32 s{sT[0]}, s{sAgg}, {16 * 640}
s_add_u32 s{sT[1]}, s{sAgg}, {16 * 640 + AGG_L - 5 * 128}
v_mov_b32 v{t[0]}, s{sT[0]}
v_mov_b32 v{t[1]}, s{sT[1]}
v_cndmask_b32 v{t[0]}, v{t[0]}, v{t[1]}, vcc
v_cmp_lt_u32 vcc, 9, v{vL}
s_sub_u32 s{sT[0]}, s{sX[7]}, {10 * 128}
v_mov_b32 v{t[1]}, s{sT[0]}
v_cndmask_b32 v{t[0]}, v{t[0]}, v{t[1]}, vcc
v_cmp_lt_u32 vcc, 14, v{vL}
s_lshl_b32 s{sT[0]}, s{sG}, 9
s_add_u32 s{sT[0]}, s{sT[0]}, {WS_FS - 15 * 128}
v_mov_b32 v{t[1]}, s{sT[0]}
v_cndmask_b32 v{t[0]}, v{t[0]}, v{t[1]}, vcc
v_cmp_lt_u32 vcc, 18, v{vL}
s_lshl_b32 s{sT[0]}, s{sG}, 7
s_add_u32 s{sT[1]}, s{sT[0]}, {WS_FY - 19 * 128}
v_mov_b32 v{t[1]}, s{sT[1]}
v_cndmask_b32 v{t[0]}, v{t[0]}, v{t[1]}, vcc
v_cmp_lt_u32 vcc, 19, v{vL}
s_add_u32 s{sT[1]}, s{sT[0]}, {WS_FB - 20 * 128}
v_mov_b32 v{t[1]}, s{sT[1]}
v_cndmask_b32 v{t[0]}, v{t[0]}, v{t[1]}, vcc
v_lshl_add_u32 v{t[0]}, v{vL}, 7, v{t[0]}
s_mov_b64 exec, 0x1fffff''')
        vm(f'buffer_load_dword a250, v{t[0]}, {W}, 0 offen')
        A('s_mov_b64 exec, -1')

    def w1(vm):
        vm.wait('par')
        run(cc.lines)
    blocks = dict(A=dma_addr, S=scalars, M=misc_setup, C=lambda: c_loads(R), O=lambda: run(more()), T=tag,
                  G=lambda: (gemm_addr(), kv_addr(), k_addr()), K=lambda: run(k_loads(R)),
                  R=lambda: R.each([wt if OPT['tc2'] else None, w1, w0, lambda vm: run(stats_work(vm))]))
    for b in OPT['order'].split(','):
        if b[0] == 'B':
            run(bs(R, int(b[1]), int(b[1]) + 1))
        elif b[0] == 'X':
            x_dma(R, int(b[1]))
        elif b[0] == '@':
            stamp(b[1:])
        else:
            blocks[b]()
    R.wait('kv')
    A('s_waitcnt lgkmcnt(0)\ns_barrier')
    stamp('kv_land')
    R(f'buffer_load_dword v{vFX}, v{vFXa}, {W}, s{sX[2]} offen sc1', 'fx')
    lg = LG()
    crd, fix = const_reads(lg)
    run(crd)
    va, vb = R.c[0], R.c[3]
    va.merge(R.c[1]), va.merge(R.c[2])
    l3, lj = A.label('w3'), A.label('join')
    A.cond[l3] = lambda c: c['w'] == 3
    A(f's_cmp_eq_u32 s{sW}, 3\ns_cbranch_scc1 {l3}')
    def nxt(v):
        out = []
        for b in OPT['post'].split(','):
            if b[0] == 'L':
                if v is vb:
                    out += [lambda g=int(b[1]): b_all(v, g)]
                else:
                    v.t['b', int(b[1])] = 0
                continue
            if b[0] == 'C':
                out.append(lambda: c_loads(v))
                continue
            out += bs(v, int(b[1]), int(b[1]) + 1) if b[0] == 'B' else [lambda b=b: x_dma(v, int(b[1]))] if b[0] == 'X' else \
                [atom(k_loads(v)[:3]), atom(k_loads(v)[3:5]), atom(k_loads(v)[5:])]
        return out
    la = copy.deepcopy(lg)
    rd, it = kv_work(va, la)
    run(rd)
    weave(it[:-1], nxt(va), OPT['wv0'], OPT['wv'])
    mode_check(va)
    run(it[-1])
    A(f's_branch {lj}\n{l3}:')
    A(f'''s_lshl_b32 s{sT[0]}, s{sMem}, 3
s_and_b32 s{sT[1]}, s{sR128}, 7
s_add_u32 s{sT[0]}, s{sT[0]}, s{sT[1]}
s_mul_i32 s{sT[0]}, s{sT[0]}, 6400
s_mov_b32 exec_hi, 0xff''')
    for z in range(1 if OPT['dbg'] & 8 else 10):
        vb(f'buffer_load_dwordx4 {v4(XP + 4 * z)}, v{vR}, {s4(R_T0)}, s{sT[0]} offen offset:{z * 128}', 'xp')
    A('s_mov_b32 exec_hi, -1')
    run(nxt(vb))
    mode_check(vb)
    run(colsum_work(vb))
    A(f'{lj}:\ns_waitcnt lgkmcnt(0)')
    va.merge(vb)
    vm = va
    stamp('kv_st')
    run(fix[1:])
    if OPT['cfs'] < 0:
        run(cf_work(vm, LG()))
    stamp('cf_st')
    vm.wait(('x', 1), ('b', 0))
    stamp('land')
    return vm


class G1:
    def __init__(self, layer, vm):
        self.layer, self.vm, self.lg, self.side = layer, vm, LG(), Side()
        self.order = list(range(20)) if layer == 0 else list(range(4, 20)) + list(range(4))

    def rd(self, s, j):
        k = self.order[s]
        idx = (k >> 1) * 5 + j
        a, off = (vBA[k & 1], idx * 2048) if idx < 25 else (vBA[2 + (k & 1)], (idx - 25) * 2048)
        self.lg(f'ds_read_b128 {v4(BF + 20 * (s & 1) + 4 * j)}, v{a} offset:{off}', ('B', s, j))

    def rda(self, s, m):
        self.lg(f'ds_read_b128 {v4(AF + 8 * (s & 1) + 4 * m)}, v{vAR2 if s & 1 else vAR} '
                f'offset:{((2 * (s >> 1) + m) % 7) * 8192}', ('A', s, m))

    def ld(self, f):
        s, m = divmod(f, 2)
        s = self.order[s]
        if s == 16:
            A(f's_add_u32 s{sL[m]}, s{sL[m]}, 4096')
        if s == 0:
            A(f's_sub_u32 s{sL[m]}, s{sL[m]}, 4096')
        self.vm(f'buffer_load_dwordx4 {v4(RING + 4 * (f % NR))}, v{vUA}, {W}, s{sL[m]} offen '
                f'offset:{(s % 16) * 256} sc1', ('u', f))

    def step(self, s):
        vm, lg, layer = self.vm, self.lg, self.layer
        if (s in (0, 4, 8, 12, 16) and OPT['stamps'] != 3) or (OPT['stamps'] == 4 and layer == 0):
            stamp(f'.s{s}_{layer}', 2)
        if layer == 0:
            need = [('x', s + 2)] if s & 1 and s < 19 else []
            if (s + 1) % 4 == 0 and s < 19:
                vm.wait(('b', (s + 1) // 4), *need)
                A('s_barrier')
            elif need:
                vm.wait(*need)
        else:
            vm.wait(('u', 2 * s + 1))
            if s == 15:
                A('s_barrier')
        for j in range(5):
            if not OPT['gw'] or s == 0:
                lg.wait(('B', s, j))
            elif j in (0, 3):
                lg.wait(('B', s, 2 if j == 0 else 4))
            if layer == 0 and s == 19 and j == 0:
                A('s_barrier')
            for m in range(2):
                d = ACC + 8 * j + 4 * m
                c = '0' if s == 0 else v4(d)
                a = RING + 4 * ((2 * s + m) % NR) if layer else AF + 8 * (s & 1) + 4 * m
                A(f'v_mfma_f32_16x16x32_bf16 {v4(d)}, {v4(a)}, {v4(BF + 20 * (s & 1) + 4 * j)}, {c}')
                if m == 0 and s < 19:
                    if j == 0 and layer == 0:
                        self.rda(s + 1, 0)
                        self.rda(s + 1, 1)
                    self.rd(s + 1, j)
                if layer == 0 or m == 1:
                    k = 2 * j + m
                    self.side.run(s, 10 - k if layer == 0 else 5 - j)


c_issued = [0]


def c_load(vm):
    i = c_issued[0]
    c_issued[0] += 1
    if i and i % 4 == 0:
        A(f's_add_u32 s{sL[0]}, s{sL[0]}, 4096')
    vm(f'buffer_load_dwordx4 {a4(4 * i)}, v{vL16}, {W}, s{sL[0]} offen offset:{(i % 4) * 1024} sc1', 'cf')


def k_addr():
    A(f'''s_lshl_b32 s{sT[0]}, s{sC0}, 12
s_lshl_b32 s{sT[1]}, s{sW}, 10
s_add_u32 s{sX[3]}, s{sT[0]}, s{sT[1]}
s_add_u32 s{sX[4]}, s{sX[3]}, 4096
s_lshl_b32 s{sX[5]}, s{sCs}, 12
s_add_u32 s{sX[5]}, s{sX[5]}, s{sT[1]}
s_add_u32 s{sT[1]}, s{sT[1]}, {L_K + 32}
v_add_u32 v{vKO}, s{sT[1]}, v{vL16}
v_lshrrev_b32 v{vT[0]}, 1, v{vL}
v_mul_u32_u24 v{vT[0]}, 4160, v{vT[0]}
v_and_b32 v{vT[1]}, 1, v{vL}
v_lshl_add_u32 v{vT[0]}, v{vT[1]}, 4, v{vT[0]}
v_add_u32 v{vKP}, {L_K}, v{vT[0]}''')


def k_loads(vm):
    it = [lambda: srd(R_T1, P_SSK, 2621440)]
    for sl in range(3):
        if not OPT['dbg'] & 2:
            it.append(lambda sl=sl: vm(f'buffer_load_dwordx4 {v4(KA + 4 * sl)}, v{vL16}, {s4(R_T1)}, s{sX[3 + sl]} offen'))
        it.append(lambda sl=sl: vm(f'buffer_load_dwordx4 {v4(KB + 4 * sl)}, v{vL16}, {s4(R_T1)}, s{sX[3 + sl]} offen offset:4', 'K'))
    return it


def k_work(vm):
    it = [lambda: vm.wait('K')]
    for sl in range(3):
        it[-1] = atom(it[-1], f'ds_write_b128 v{vKO}, {v4(KA + 4 * sl)} offset:{sl * 8320}')
        it.append(atom([f'v_alignbit_b32 v{KB + 4 * sl + i}, v{KB + 4 * sl + i}, v{KA + 4 * sl + i}, 16' for i in range(4)],
                       f'ds_write_b128 v{vKO}, {v4(KB + 4 * sl)} offset:{sl * 8320 + 4160}'))

    def pads():
        A(f's_cmp_lg_u32 s{sW}, 0')
        with A.skip_if('s_cbranch_scc1', lambda c: c['w'] != 0):
            run([f'v_mov_b32 v{216 + i}, 0' for i in range(4)])
            A(f's_mov_b64 exec, 0xfff\nds_write_b128 v{vKP}, {v4(216)}\ns_mov_b64 exec, 1')
            for sl in range(3):
                A(f'ds_write_b16 v{vKP}, v{KA + 4 * sl} offset:{sl * 8320 + 4160 + 30}')
            A('s_mov_b64 exec, -1')
    return it + [pads]


def front(vm):
    g = G1(0, vm)
    lg, S = g.lg, g.side
    A('s_barrier')
    g.rda(0, 0), g.rda(0, 1)
    for j in range(5):
        g.rd(0, j)
    for p in (2, 3):
        if ('x', p) not in vm.t:
            x_dma(vm, p)
    if OPT['cfs'] >= 0:
        S.spread(OPT['cfs'], OPT['cfper'], cf_work(vm, lg))
    if 'K' not in vm.t:
        S.spread(OPT['kls'], 3, k_loads(vm))
    S.add(0, lambda: x_dma(vm, 4), lambda: x_dma(vm, 5))
    for p in range(6, 20):
        S.add(max(1, p - 6), lambda p=p: x_dma(vm, p))
    for gi in range(1, 5):
        if ('b', gi) in vm.t:
            continue
        for n, j in enumerate((0, 2, 4)):
            S.add(OPT[f'b{gi}s'] + n // 2, lambda gi=gi, j=j: b_dma(vm, gi, j))
    S.add(OPT['kvf'], atom(lambda: vm.wait('kvst'), lambda: flag_store(f's{sKf}', True, vm, sKm)))
    S.add(OPT['cff'], atom(lambda: vm.wait('cfst'), f's_add_u32 s{sT[0]}, s{sFK}, {WS_FS}',
                           lambda: flag_store(f's{sT[0]}', False, vm)))
    fk = f'buffer_load_dwordx2 {v2(vFP)}, v{vFA}, {W}, s{sX[0]} offen sc1'
    S.add(OPT['fsp'], atom(f's_and_b32 s{sX[0]}, s{sFK}, 0xe00', f's_add_u32 s{sX[0]}, s{sX[0]}, {WS_FK}', lambda: vm(fk, 'fk')))

    def fetch():
        vm.wait('fk')
        check_tags([vFP, vFP + 1], fk)
        for sl in range(2):
            A(f's_lshl_b32 s{sT[0]}, s{sG}, 16\ns_add_u32 s{sT[0]}, s{sT[0]}, s{sX[3 + sl]}\n'
              f's_add_u32 s{sT[0]}, s{sT[0]}, {WS_KV}\ns_lshl_b32 m0, s{sW}, 10')
            if sl:
                A(f's_add_u32 m0, m0, {L_KV + sl * 4608}')
            vm(f'buffer_load_dwordx4 v{vL16}, {W}, s{sT[0]} offen sc1 lds', 'kvT')
    assert OPT['fsc'] >= 7
    S.add(OPT['fsc'], fetch)
    S.add(8, f'''v_lshrrev_b32 v{vT[0]}, 5, v{vL}
v_mul_u32_u24 v{vT[0]}, {4608 - 512}, v{vT[0]}
v_add_u32 v{vT[0]}, v{vT[0]}, v{vL16}''', [f'v_mov_b32 v{216 + i}, 0' for i in range(4)],
          lambda: lg(f'ds_write_b128 v{vT[0]}, {v4(216)} offset:{L_KV + 4096}'),
          lambda: lg(f'ds_write_b128 v{vT[0]}, {v4(216)} offset:{L_KV + 4608 + 4096}'))
    rsl = [f'buffer_load_dwordx3 {v3(RSL)}, v{vRS}, {W}, s{sX[6]} offen sc1',
           f'buffer_load_dwordx2 {v2(RSL + 4)}, v{vRS + 1}, {W}, s{sX[7]} offen sc1',
           f'buffer_load_dwordx2 {v2(RSL + 6)}, v{vRS + 2}, {W}, s{sX[7]} offen offset:512 sc1']
    fc = f'buffer_load_dwordx4 {v4(vFP)}, v{vFA}, {W}, s{sX[1]} offen sc1'
    S.add(OPT['late'], [lambda t=t: vm(t, 'rs') for t in rsl])
    S.add(OPT['csp'], lambda: vm(fc, 'fc'))

    def ccheck():
        vm.wait('fc')
        check_tags([vFP + i for i in range(4)], fc)
        A(f'''s_mul_i32 s{sL[0]}, s{sS8}, 200
s_mul_i32 s{sT[0]}, s{sW}, 50
s_add_u32 s{sL[0]}, s{sL[0]}, s{sT[0]}
s_lshl_b32 s{sL[0]}, s{sL[0]}, 10
s_add_u32 s{sL[0]}, s{sL[0]}, {WS_CF}''')
    marks_gather(S, vm, -1)
    S.add(OPT['csc'], ccheck)
    for i in range(OPT['cl0']):
        S.add(OPT['csc'] + i * (20 - OPT['csc']) // OPT['cl0'], lambda: c_load(vm))

    def rscheck():
        vm.wait('rs')
        check_tags([RSL + 2, RSL + 2, RSL + 5, RSL + 7], rsl)
    S.q.setdefault(OPT['rsc'], []).insert(0, rscheck)
    c = lambda j: CSL + j
    S.add(19, f'''v_mov_b32 v{c(0)}, v{RSL + 4}
v_mov_b32 v{c(1)}, v{RSL + 4}
v_mov_b32 v{c(4)}, v{RSL + 6}
v_permlane16_swap_b32 v{c(0)}, v{c(1)}
v_mov_b32 v{c(2)}, v{c(0)}
v_mov_b32 v{c(3)}, v{c(1)}
v_permlane32_swap_b32 v{c(0)}, v{c(2)}
v_permlane32_swap_b32 v{c(1)}, v{c(3)}''')
    S.add(19, [f'v_mov_b32_dpp v{MM + t}, v{RSL} row_newbcast:{t} {DPPM}\n'
               f'v_mov_b32_dpp v{RR + t}, v{RSL + 1} row_newbcast:{t} {DPPM}' for t in range(8)])
    for s in range(20):
        g.step(s)
    assert not g.side.left()
    stamp('g1_0')
    kw = k_work(vm)
    kw += [f'ds_write_b64 v{vZ + 4}, {v2(RSL)}'] + [[]] * (6 - len(kw))
    scan_1(0, [[k] + [lambda: c_load(vm)] * (i < OPT['cs1']) for i, k in enumerate(kw)], lambda: vm.wait('kvT'))
    lg = LG()
    h1, h2 = horner(0, vm, lg)
    weave(h1, [lambda: c_load(vm)] * OPT['cb'], 10, 6)
    for i, r in enumerate(vCA + vCB):
        A(f'v_accvgpr_read_b32 v{r}, a{A_CV + i}')
    for k in range(2):
        for i in range(1, 4):
            A(f'v_add_u32 v{vCA[k] + i}, {1024 * i}, v{vCA[k]}')
    return vm, lg


MAS, PP, AGL, GR = 90, 244, 88, 88
LT = [128, 144, 160, 176, 104]
PK = [120, 124]
vTW, vTR, vTS = 254, 255, 47


def scan_1(layer, extra=[], last=None):
    b = lambda j, ta: ACC + 8 * j + ta
    if layer == 0:
        for j in range(5):
            sel = 'op_sel:[0,1,0] op_sel_hi:[1,1,1]' if j & 1 else 'op_sel_hi:[1,0,1]'
            for p in range(4):
                d = ACC + 8 * j + 2 * p
                A(f'v_pk_fma_f32 {v2(d)}, {v2(MM + 2 * p)}, {v2(CSL + (j & ~1))}, {v2(d)} {sel} '
                  f'neg_lo:[1,0,0] neg_hi:[1,0,0]')
        for j in range(5):
            for p in range(4):
                d = ACC + 8 * j + 2 * p
                A(f'v_pk_mul_f32 {v2(d)}, {v2(d)}, {v2(RR + 2 * p)}')
    extra = list(extra)
    for ta in range(1, 8):
        if extra:
            run(extra.pop(0))
        for j in range(5):
            A(f'v_fmac_f32 v{b(j, ta)}, v{LR + j}, v{b(j, ta - 1)}')
        for j in range(5):
            A(f'v_fmac_f32_dpp v{b(j, ta)}, v{b(j, ta - 1)}, v{LS + j} {SWP}')
    A(f'''v_add_u32 v{vT[0]}, {L_AS}, v{vAS}
v_min_u32 v{vT[1]}, 39, v{vL}
v_mul_u32_u24 v{vU[2]}, 48, v{vT[1]}
s_lshl_b32 s{sT[0]}, s{sW}, 3
s_add_u32 s{sT[0]}, s{sT[0]}, {L_G}
v_add_u32 v{vU[2]}, s{sT[0]}, v{vU[2]}''')
    for j in range(5):
        A(f'ds_write_b32 v{vT[0]}, v{b(j, 7)} offset:{j * 1152}')
    A(f'''v_mul_u32_u24 v{vU[4]}, 144, v{vT[1]}
v_add_u32 v{vU[4]}, {L_AS}, v{vU[4]}''')
    if last:
        last()
    A('s_waitcnt lgkmcnt(0)\ns_barrier')
    stamp(f'scan1_{layer}')


def horner(layer, vm, lg):
    it = [lambda i=i: lg(f'ds_read_b128 {v4(MAS + 4 * i)}, v{vU[4]} offset:{16 * i}', ('as', i)) for i in range(8)]
    for s in range(1, 16):
        if s == 1 or s % 2 == 0:
            it.append(lambda s=s: lg.wait(('as', s // 2)))
        it += cmul(MAS + 2 * s, MAS + 2 * s - 2, mL8, MAS + 2 * s)

    def pub():
        A(f'''v_mov_b32 v{MAS + 32}, s{sTag}
v_mov_b32 v{MAS + 33}, s{sTag}
s_add_u32 s{sT[0]}, s{sAgg}, {layer * AGG_L + 16 * 640}
s_mov_b64 exec, {s2(sPub)}''')
        A(f'buffer_store_dwordx4 {v4(MAS + 30)}, v{vL16}, {W}, s{sT[0]} offen sc1')
        A('s_mov_b64 exec, -1')
        stamp(f'agg_pub_{layer}')
    it.append(pub)
    first, it = it, []
    def own():
        A(f'v_subrev_u32 v{vU[4]}, {L_AS - L_P}, v{vU[4]}\nv_mov_b32 v{MAS - 2}, 0\nv_mov_b32 v{MAS - 1}, 0\ns_mov_b32 exec_hi, 0xff')
        Roles(4).each([lambda c, w=w: [A(f'ds_write_b128 v{vU[4]}, {v4(MAS - 2 + 8 * w + 4 * i)} offset:{32 * w + 16 * i}')
                                       for i in range(2)] for w in range(4)])
        A('s_mov_b32 exec_hi, -1')
        lg.n += 2
    it.append(own)
    it.append(f'v_add_u32 v{vU[4]}, {L_P}, v{vAS}')
    it += [lambda j=j: lg(f'ds_read_b32 v{PP + 2 * j}, v{vU[4]} offset:{j * 1152}', 'pp') for j in range(5)]
    it += [f'v_and_b32 v{vU[1]}, 1, v{vI}', f'v_cvt_f32_u32 v{vU[1]}, v{vU[1]}', f'v_fma_f32 v{vU[1]}, 2.0, v{vU[1]}, -1.0']
    it.append(lambda: lg.wait('pp'))
    it += [f'v_mul_f32_dpp v{PP + 2 * j + 1}, v{PP + 2 * j}, v{vU[1]} {SWP}' for j in range(5)]
    return first, it


def agg_ld(layer):
    pre = f'''s_lshl_b32 s{sX[3]}, s{sW}, 2
s_sub_u32 s{sX[3]}, 12, s{sX[3]}
s_mul_i32 s{sX[3]}, s{sX[3]}, 640
s_add_u32 s{sX[3]}, s{sX[3]}, s{sAgg}
s_add_u32 s{sX[3]}, s{sX[3]}, {layer * AGG_L}
v_min_u32 v{vU[0]}, 39, v{vL}
v_lshlrev_b32 v{vU[0]}, 4, v{vU[0]}'''
    return pre, [f'buffer_load_dwordx3 {v3(AGL + 4 * z)}, v{vU[0]}, {W}, s{sX[3]} offen offset:{z * 640} sc1' for z in range(4)]


def scan_2(layer, vm, ld, hook={}, defer=False, extra=[]):
    lg = LG()
    t = vT
    A(f'''v_lshrrev_b32 v{t[0]}, 1, v{vI}
v_mul_u32_u24 v{t[1]}, 80, v{t[0]}
v_add_u32 v{t[1]}, {L_L}, v{t[1]}
v_mul_u32_u24 v{t[0]}, 48, v{t[0]}
v_add_u32 v{t[0]}, {L_G}, v{t[0]}''')
    def lrd(j):
        for c in range(4):
            lg(f'ds_read_b128 {v4(LT[j] + 4 * c)}, v{t[1]} offset:{j * 640 + 16 * c}', ('L', j))
    early = 5 if layer else OPT['lpre']
    for j in range(early):
        lrd(j)
    A('\n'.join([unpark('tw', vTW), unpark('tr', vTR), unpark('ts', vTS)]))
    vm.wait('agg')
    check_tags([AGL + 2, AGL + 6, AGL + 10, AGL + 14], ld, x=t[3], y=t[4], inline=2)
    stamp(f'agg_in_{layer}')
    for z in range(1, 4):
        A('\n'.join(cmul(AGL + 4 * z, AGL + 4 * z - 4, mL128, AGL + 4 * z)))
    A('\n'.join(cmul(AGL, AGL + 12, mW)))
    if extra:
        extra.pop()()
    A(f'''s_mov_b32 exec_hi, 0xff
ds_write_b64 v{vU[2]}, {v2(AGL)}
s_mov_b32 exec_hi, -1''')
    stamp(f'.fold{layer}', 5 - 2 * (OPT['stamps'] == 3))
    A('s_waitcnt lgkmcnt(0)')
    stamp(f'.added{layer}', 5 - 2 * (OPT['stamps'] == 3))
    A('s_barrier')
    stamp(f'.gbar{layer}', 5 - 2 * (OPT['stamps'] == 3))
    lg = LG()
    GQ = [88, 96, 224, 88, 96]

    def grd(j):
        lg(f'ds_read_b128 {v4(GQ[j])}, v{t[0]} offset:{j * 384}')
        lg(f'ds_read_b128 {v4(GQ[j] + 4)}, v{t[0]} offset:{j * 384 + 16}', ('G', j))
    for j in range(3):
        grd(j)
    for j in range(early, min(early + 1, 5)):
        lrd(j)
    hb = HB[layer]

    def more():
        if extra:
            extra.pop()()
    more()

    def xy(j):
        lg.wait(('G', j))
        q = GQ[j]
        p, a, gq = v2(PP + 2 * j), v2(VA + 2 * j), v2(q)
        A(f'v_pk_add_f32 {gq}, {gq}, {v2(q + 2)}\nv_pk_add_f32 {v2(q + 4)}, {v2(q + 4)}, {v2(q + 6)}\n'
          f'v_pk_add_f32 {gq}, {gq}, {v2(q + 4)}')
        A(f'v_pk_fma_f32 {p}, {a}, {gq}, {p} op_sel:[0,0,0] op_sel_hi:[1,0,1]')
        A(f'v_pk_fma_f32 {p}, {a}, {gq}, {p} op_sel:[1,1,0] op_sel_hi:[0,1,1] neg_hi:[1,0,0]')
        if j < 2:
            grd(j + 3)

    def upd(j):
        p = v2(PP + 2 * j)
        if early + 1 + j < 5:
            lrd(early + 1 + j)
        if j >= early:
            lg.wait(('L', j))
        for k in range(4):
            d = v2(ACC + 8 * j + 2 * k)
            A(f'v_pk_fma_f32 {d}, {v2(LT[j] + 2 * k)}, {p}, {d} op_sel:[0,0,0] op_sel_hi:[1,0,1]')
        more()
        for k in range(4):
            d = v2(ACC + 8 * j + 2 * k)
            A(f'v_pk_fma_f32 {d}, {v2(LT[j] + 8 + 2 * k)}, {p}, {d} op_sel:[0,1,0] op_sel_hi:[1,1,1]')
        pk = PK[j & 1]
        for d in range(4):
            A(f'v_cvt_pk_bf16_f32 v{pk + d}, v{ACC + 8 * j + 2 * d}, v{ACC + 8 * j + 2 * d + 1}')
        lg(f'ds_write_b128 v{vTW}, {v4(pk)}')
        more()
        lg(f'ds_read_b64_tr_b16 {v2(ACC + 8 * j + 4)}, v{vTR}')
        lg(f'ds_read_b64_tr_b16 {v2(ACC + 8 * j + 6)}, v{vTR} offset:640', ('T', j))

    def st(j, vm=vm):
        A(f's_add_u32 s{sT[1]}, s{sH[j]}, {hb}')
        lg.wait(('T', j))
        mode_stores([f'buffer_store_dwordx4 {v4(ACC + 8 * j + 4)}, v{vTS}, {WH}, s{sT[1]} offen'], through=OPT['thr'] & (2 << layer))
        vm.n += 1
        vm.t['hst'] = vm.n
    xy(0), xy(1)
    lag = OPT['lag']
    for j in range(5 + lag):
        stamp(f'.j{j}_{layer}', 5 - 2 * (OPT['stamps'] == 3))
        if j < 5:
            upd(j)
        if j < 3:
            xy(j + 2)
        if j >= lag and j - lag < (defer or 5):
            st(j - lag)
        if j in hook:
            hook[j](lg)
    if defer:
        lg.wait(('T', 4))
        stamp(f'h_st_{layer}')
        return st
    stamp(f'h_st_{layer}')


def h_flag(layer, vm):
    vm.wait('hst')
    A(f's_add_u32 s{sT[2]}, s{sFW}, {WS_FH + layer * 4096}')
    flag_store(f's{sT[2]}', True, vm)
    stamp(f'h_flag_{layer}')


CA, CB, CX, CY = 128, 160, 192, 104
vCA, vCB = [232, 236], [240, 241]
JSET = [[1, 2, 4, 7], [0, 3, 5, 6]]


def conv_setup():
    t = vT
    return lines(f"""v_add_u32 v{t[0]}, 1, v{vI}
v_and_b32 v{t[1]}, 1, v{t[0]}
v_mul_u32_u24 v{t[1]}, 4160, v{t[1]}
v_lshrrev_b32 v{t[0]}, 1, v{t[0]}
v_lshl_add_u32 v{t[1]}, v{t[0]}, 2, v{t[1]}
v_lshl_add_u32 v{t[1]}, v{vQ}, 4, v{t[1]}
v_sub_u32 v{t[0]}, 15, v{vI}
v_lshlrev_b32 v{t[0]}, 5, v{t[0]}
v_lshl_add_u32 v{t[0]}, v{vQ}, 4, v{t[0]}
s_lshr_b32 s{sT[0]}, s{sW}, 1
s_and_b32 s{sT[1]}, s{sW}, 1
s_lshl_b32 s{sT[1]}, s{sT[1]}, 8
s_mul_i32 s{sX[4]}, s{sT[0]}, 8320
s_add_u32 s{sX[4]}, s{sX[4]}, s{sT[1]}
s_add_u32 s{sX[4]}, s{sX[4]}, {L_K}
v_add_u32 v{vCA[0]}, s{sX[4]}, v{t[1]}
s_mul_i32 s{sX[4]}, s{sT[0]}, 4608
s_add_u32 s{sX[4]}, s{sX[4]}, s{sT[1]}
v_add_u32 v{vCB[0]}, s{sX[4]}, v{t[0]}
s_lshl_b32 s{sT[1]}, s{sW}, 7
s_add_u32 s{sX[4]}, s{sT[1]}, {L_K + 2 * 8320}
v_add_u32 v{vCA[1]}, s{sX[4]}, v{t[1]}
s_add_u32 s{sX[4]}, s{sT[1]}, {L_KV + 2 * 4608}
v_add_u32 v{vCB[1]}, s{sX[4]}, v{t[0]}""")


class Conv:
    def __init__(self, units, lg, cont=False):
        self.lg, self.seq, self.todo, self.issued = lg, [], [], set()
        free, seen = {}, ({CX + 4 * j for j in range(8)} if cont else set())
        for k, u, js, acc in units:
            first, last = {}, {}
            for a in range(max(js), -1, -1):
                for j in js:
                    if j < a:
                        continue
                    for f in (('A', a), ('B', j - a)):
                        first.setdefault(f, len(self.seq))
                        last[f] = len(self.seq)
                    d = acc + 4 * js.index(j)
                    self.seq.append((k, u, a, j - a, d, d in seen))
                    seen.add(d)
            for f, need in first.items():
                self.todo.append((max(free.get(f, -1), need - OPT['look']), need, (k, u, f)))
            free.update(last)
        self.todo.sort(key=lambda x: x[:2])

    def rd(self, key):
        k, u, (kind, x) = key
        self.issued.add(key)
        if kind == 'A':
            o = 16 * u + 128 * (x & 1)
            self.lg(f'ds_read2_b32 {v2(CA + 4 * x)}, v{vCA[k] + (x >> 1)} offset0:{o} offset1:{o + 1}')
            self.lg(f'ds_read2_b32 {v2(CA + 4 * x + 2)}, v{vCA[k] + (x >> 1)} offset0:{o + 2} offset1:{o + 3}', key)
        else:
            self.lg(f'ds_read_b128 {v4(CB + 4 * x)}, v{vCB[k]} offset:{64 * u + 512 * (7 - x)}', key)

    def emit(self, n0, n1, side):
        todo = self.todo
        while n0 == 0 and todo[0][0] < 0 and todo[0][1] < 4:
            self.rd(todo.pop(0)[2])
        for gn in range(n0, n1):
            k, u, a, b, d, chain = self.seq[gn]
            self.lg.wait((k, u, ('A', a)), (k, u, ('B', b)))
            A(f'v_mfma_f32_16x16x32_bf16 {v4(d)}, {v4(CA + 4 * a)}, {v4(CB + 4 * b)}, {v4(d) if chain else 0}')
            did = 0
            while todo and todo[0][0] <= gn and (did < 1 or todo[0][1] <= gn + 3):
                self.rd(todo.pop(0)[2])
                did += 1
            if not did or gn % 4 == 3:
                side.run(gn // 4, 4 - gn % 4)

    def force(self, keys):
        for it in [x for x in self.todo if x[2] in keys]:
            self.todo.remove(it)
            self.rd(it[2])


vFY = 120
KVM, KVX = 88, 96
YREG = [246, 247, 248, 249, 250, 251, 252]
yS, yKm, yKx, yPw, yPr, ySr, ySw = YREG


def y_setup():
    t = vT
    return lines(f"""s_lshr_b32 s{sCs}, s{sX[8]}, 1
s_add_u32 s{sCs}, s{sCs}, 512
s_lshr_b32 s{sT[1]}, s{sW}, 1
s_add_u32 s{sT[0]}, s{sC0}, s{sT[1]}
s_bitcmp1_b32 s{sT[0]}, 0
s_cselect_b32 s{sX[5]}, 16, 0
s_lshr_b32 s{sD[0]}, s{sD[0]}, s{sX[5]}
s_and_b32 s{sDm[0]}, s{sD[0]}, 0xffff
s_lshl_b32 s{sDm[1]}, s{sD[0]}, 16
s_bitcmp1_b32 s{sCs}, 0
s_cselect_b32 s{sX[5]}, 16, 0
s_lshr_b32 s{sD[1]}, s{sD[1]}, s{sX[5]}
s_and_b32 s{sDm[2]}, s{sD[1]}, 0xffff
s_lshl_b32 s{sDm[3]}, s{sD[1]}, 16
s_lshl_b32 s{sYO[0]}, s{sT[0]}, 12
s_and_b32 s{sT[0]}, s{sW}, 1
s_lshl_b32 s{sT[0]}, s{sT[0]}, 11
s_add_u32 s{sYO[0]}, s{sYO[0]}, s{sT[0]}
s_add_u32 s{sYO[0]}, s{sYO[0]}, {WS_Y}
s_mul_i32 s{sT[1]}, s{sT[1]}, 4608
s_sub_u32 s{sT[1]}, s{sT[1]}, s{sT[0]}
s_add_u32 s{sT[1]}, s{sT[1]}, {L_KV + 4088 - 3 * 512}
v_lshlrev_b32 v{yS}, 5, v{vI}
v_lshl_add_u32 v{yS}, v{vQ}, 3, v{yS}
v_sub_u32 v{yKm}, s{sT[1]}, v{yS}
s_bitcmp1_b32 s{sJ}, 0
s_movk_i32 s{sT[0]}, 0x7421
s_cselect_b32 s{sT[0]}, 0x6530, s{sT[0]}
s_lshl_b32 s{sT[1]}, s{sW}, 2
s_lshr_b32 s{sT[0]}, s{sT[0]}, s{sT[1]}
s_and_b32 s{sT[0]}, s{sT[0]}, 7
s_lshl_b32 s{sT[0]}, s{sT[0]}, 9
s_lshl_b32 s{sYO[1]}, s{sCs}, 12
s_add_u32 s{sYO[1]}, s{sYO[1]}, s{sT[0]}
s_add_u32 s{sYO[1]}, s{sYO[1]}, {WS_Y}
s_sub_u32 s{sT[0]}, {L_KV + 2 * 4608 + 4088}, s{sT[0]}
v_sub_u32 v{yKx}, s{sT[0]}, v{yS}
s_lshl_b32 s{sT[0]}, s{sW}, 12
s_add_u32 s{sT[1]}, s{sT[0]}, {L_PM}
v_add_u32 v{ySw}, s{sT[1]}, v{vL16}
s_add_u32 s{sT[1]}, s{sT[0]}, {L_PS}
v_add_u32 v{yPw}, s{sT[1]}, v{vL16}
s_xor_b32 s{sT[1]}, s{sT[0]}, 4096
s_add_u32 s{sT[1]}, s{sT[1]}, {L_PS}
v_add_u32 v{yPr}, s{sT[1]}, v{vL16}
s_lshl_b32 s{sT[1]}, s{sW}, 10
s_add_u32 s{sT[1]}, s{sT[1]}, {L_PM}
v_add_u32 v{ySr}, s{sT[1]}, v{vL16}""")


def y_dterm(acc, kv, dlo, dhi):
    sel = [(1, dhi), (1, dlo), (0, dhi), (0, dlo)]
    return [f'v_dot2_f32_bf16 v{acc + r}, v{kv + sel[r][0]}, s{sel[r][1]}, v{acc + r}' for r in range(4)]


def marks_gather(S, vm, sg):
    if OPT['clr'] * sg > 0:
        marks(S, vm, abs(OPT['clr']), 228 if sg > 0 else 216)
    if OPT['fbp'] * sg > 0:
        gather(S, vm, abs(OPT['fbp']), abs(OPT['fbc']), 124 if sg > 0 else 220)


def marks(S, vm, at, r):
    S.add(at, [f'v_mov_b32 v{r + i}, -1' for i in range(4)], f'v_lshlrev_b32 v{vT[0]}, 3, v{vL}',
          lambda: vm(f'buffer_store_dwordx2 {v2(r)}, v{vT[0]}, {W}, s{sYO[1]} offen sc1'))
    for i in range(2):
        S.add(at + 1 + i, lambda i=i: vm(f'buffer_store_dwordx4 {v4(r)}, v{vL16}, {W}, s{sYO[0]} offen offset:{1024 * i} sc1'))


def gather(S, vm, at, at2, r):
    fb = f'buffer_load_dwordx4 {v4(r)}, v{vL16}, {W}, s{sKs} offen sc1'
    S.add(at, atom(f's_mov_b32 s{sKs}, {WS_FB}', lambda: vm(fb, 'fb')))

    def go():
        vm.wait('fb')
        check_tags([r + i for i in range(4)], fb)
        A(f'''s_lshl_b32 s{sT[1]}, s{sW}, 6
s_sub_u32 s{sT[0]}, 255, s{sT[1]}
v_sub_u32 v{vT[0]}, s{sT[0]}, v{vL}
v_lshlrev_b32 v{vT[0]}, 11, v{vT[0]}
s_and_b32 s{sT[0]}, s{sCs}, 3
s_lshl_b32 s{sT[0]}, s{sT[0]}, 9
s_bfe_u32 s{sT[2]}, s{sCs}, 0x50002
s_lshl_b32 s{sT[2]}, s{sT[2]}, 4
s_add_u32 s{sT[0]}, s{sT[0]}, s{sT[2]}
s_add_u32 s{sT[0]}, s{sT[0]}, {WS_KB}
s_lshl_b32 s{sT[1]}, s{sT[1]}, 4
s_add_u32 m0, s{sT[1]}, {L_KV + 2 * 4608}''')
        vm(f'buffer_load_dwordx4 v{vT[0]}, {W}, s{sT[0]} offen sc1 lds')
    S.add(at2, go)


def conv(vm, lg):
    S = Side()
    e = S.spread(0, 3, horner(0, vm, lg)[1])
    left = 50 - c_issued[0] - OPT['cl2'] - OPT['cs2']
    for i in range(left):
        S.add(i * OPT['clend'] // left, lambda: c_load(vm))
    S.spread(0, 1, z_loads(vm))
    S.add(0, lambda: lg(f'ds_read_b64 a[{A_ZU}:{A_ZU + 1}], v{vZ + 3}'))
    S.spread(14, 2, [lambda: vm.wait('xt')]
             + [lambda m=m: lg(f'ds_read_b64 a[{A_X + 2 * m}:{A_X + 2 * m + 1}], v{vXT} offset:{32 * m}') for m in range(5)]
             + [lambda m=m: lg(f'ds_read_b64 a[{A_DSK + 2 * m}:{A_DSK + 2 * m + 1}], v{vXT + 1} offset:{2560 + 32 * m}')
                for m in range(5)])
    marks_gather(S, vm, 1)
    S.add(1, lambda: srd(R_T0, P_OUT, 5242880))
    if OPT['tch']:
        t = vT
        S.add(OPT['tch'], atom(f'''s_lshl_b32 s{sT[0]}, s{sJ}, 2
s_add_u32 s{sT[0]}, s{sT[0]}, s{sW}
s_lshl_b32 s{sT[0]}, s{sT[0]}, 9
s_mul_i32 s{sT[1]}, s{sG}, 327680
s_add_u32 s{sT[0]}, s{sT[0]}, s{sT[1]}
s_add_u32 s{sT[0]}, s{sT[0]}, {WS_U + 262144}
s_lshl_b32 s{sT[1]}, s{sR64}, 3
s_add_u32 s{sT[1]}, s{sT[1]}, s{sS8}
s_lshl_b32 s{sT[1]}, s{sT[1]}, 2
s_add_u32 s{sT[1]}, s{sT[1]}, s{sW}
s_lshl_b32 s{sT[1]}, s{sT[1]}, 10
s_add_u32 s{sT[1]}, s{sT[1]}, {WS_ST}
v_lshrrev_b32 v{t[0]}, 3, v{vL}
v_lshlrev_b32 v{t[0]}, 20, v{t[0]}
v_add_u32 v{t[0]}, s{sT[1]}, v{t[0]}
v_mov_b32 v{t[1]}, s{sT[0]}
v_cmp_gt_u32 vcc, 4, v{vL}
v_cndmask_b32 v{t[0]}, v{t[0]}, v{t[1]}, vcc
v_and_b32 v{t[1]}, 3, v{vL}
v_lshl_add_u32 v{t[0]}, v{t[1]}, 7, v{t[0]}
s_mov_b64 exec, 0x3ff''', lambda: vm(f'buffer_load_dword a250, v{t[0]}, {W}, 0 offen'), 's_mov_b64 exec, -1'))
    if OPT['prefetch'] & 2:
        S.add(10, atom(code_touch()))
    pre, ld = agg_ld(0)
    S.spread(OPT['aggl'] - 2, 4, pre)
    for z in range(4):
        S.add(OPT['aggl'] + z // 2, lambda z=z: vm(ld[z], 'agg'))
    nu = OPT['nu']
    cv = Conv([(0, u, list(range(8)), CX) for u in range(nu)], lg)
    cv.emit(0, 36 * nu, S)
    assert not cv.todo and not S.left(), S.left()
    stamp('conv')
    def glue1(lg):
        for i, r in enumerate(YREG + G2REG):
            A(f'v_accvgpr_read_b32 v{r}, a{A_CV + 4 + i}')
        for j in range(4):
            lg(f'ds_read_b64 {v2(KVM + 2 * j)}, v{yKm} offset:{512 * (3 - j)}')
        lg(f'ds_read_b64 {v2(KVX)}, v{yKx}', 'kvm')

    def glue2():
        A(f's_bitcmp0_b32 s{sW}, 0')
        with A.skip_if('s_cbranch_scc1', lambda c: not c['w'] & 1):
            for i in range(16):
                A(f'v_swap_b32 v{CX + i}, v{CX + 16 + i}')

    def yflag(lg):
        A(f'''s_lshr_b32 s{sT[0]}, s{sFK}, 2
s_add_u32 s{sT[0]}, s{sT[0]}, {WS_FY}
v_mov_b32 v{vT[4]}, s{sTag}
s_and_b32 exec_lo, s{sPub}, 1
s_mov_b32 exec_hi, 0
buffer_store_dword v{vT[4]}, off, {W}, s{sT[0]} sc1
s_mov_b64 exec, -1''')
    fy = f'buffer_load_dwordx4 {v4(vFY)}, v{vL16}, {W}, s{sX[5]} offen sc1'
    extra = [lambda: c_load(vm)] * OPT['cs2']
    st = scan_2(0, vm, ld, {0: yflag, 4: glue1}, OPT['defer'], extra)
    assert not extra
    lt, lj = A.label('type'), A.label('join')
    A.cond[lt] = lambda c: c['ty']
    A(f's_bitcmp1_b32 s{sJ}, 0\ns_cbranch_scc1 {lt}')
    p0 = PREV[0]
    for ty in range(2):
        v, lg, S = copy.deepcopy(vm), LG(), Side()
        PREV[0], c_issued[0] = p0, 50 - OPT['cl2']
        o = 9 * (4 - nu)
        for j in range(OPT['defer'], 5):
            S.add((j - OPT['defer']) * OPT['stp'] // 2, lambda j=j: st(j, v))
        for i in range(OPT['cl2']):
            S.add(OPT['cl2s'] + i * (o + 8 - OPT['cl2s']) // OPT['cl2'], lambda: c_load(v))
        S.add(OPT['hfl'], lambda: h_flag(0, v))
        S.add(o + 1, glue2)
        for j in range(4):
            S.add(o + 2 + j, lambda j=j: lg(f'ds_write_b128 v{yPw}, {v4(CX + 16 + 4 * j)} offset:{1024 * j}'))
        S.add(o + 4, 's_barrier')
        S.add(o + OPT['yp0'], atom(f's_mov_b32 s{sX[5]}, {WS_FY}', lambda: v(fy, 'fy')))
        S.add(o + OPT['hp'], lambda: v(H_POLL, 'fh'))
        cv = Conv([(0, u, list(range(8)), CX) for u in range(nu, 4)] + [(1, u, JSET[ty], CY) for u in range(2)], lg, True)
        cv.emit(0, len(cv.seq), S)
        assert not S.left()
        if ty == 0:
            A(f's_branch {lj}\n{lt}:')
    A(f'{lj}:')
    stamp('conv2')
    PM, PS = 208, 224
    for x in range(4):
        A(f'ds_write_b128 v{ySw}, {v4(CY + 4 * x)} offset:{1024 * x}')
    for j in range(4):
        run(y_dterm(CX + 4 * j, KVM + 2 * j, sDm[0], sDm[1]))
    v.wait('fy')
    check_tags([vFY + i for i in range(4)], fy)
    g2 = G2(0, v)
    g2.begin()
    A('s_waitcnt lgkmcnt(0)\ns_barrier')
    for j in range(4):
        A(f'ds_read_b128 {v4(PM + 4 * j)}, v{yPr} offset:{1024 * j}')
    for x in range(4):
        A(f'ds_read_b128 {v4(PS + 4 * x)}, v{ySr} offset:{4096 * x}')
    it = ['s_waitcnt lgkmcnt(0)']
    for j in range(4):
        p = PM + 4 * j
        it += [f'v_add_f32 v{p + i}, v{CX + 4 * j + i}, v{p + i}' for i in range(4)]
        it += [f'v_cvt_pk_bf16_f32 v{p}, v{p}, v{p + 1}', f'v_cvt_pk_bf16_f32 v{p + 1}, v{p + 2}, v{p + 3}',
               lambda j=j, p=p: v(f'buffer_store_dwordx2 {v2(p)}, v{yS}, {W}, s{sYO[0]} offen offset:{512 * j} sc1')]
    it += y_dterm(PS, KVX, sDm[2], sDm[3])
    it += [f'v_add_f32 v{PS + 4 + i}, v{PS + 4 + i}, v{PS + 8 + i}' for i in range(4)]
    it += [f'v_add_f32 v{PS + i}, v{PS + i}, v{PS + 12 + i}' for i in range(4)]
    it += [f'v_add_f32 v{PS + i}, v{PS + i}, v{PS + 4 + i}' for i in range(4)]
    it += [f'v_cvt_pk_bf16_f32 v{PS}, v{PS}, v{PS + 1}', f'v_cvt_pk_bf16_f32 v{PS + 1}, v{PS + 2}, v{PS + 3}',
           lambda: v(f'buffer_store_dwordx2 {v2(PS)}, v{yS}, {W}, s{sYO[1]} offen sc1')]
    g2.ytail = it
    stamp('y_rd')
    return g2


YF, ZR = BF, BF + 20
P0, P1 = 192, 212
XT, DP, ZU, F1, F2 = 98, 100, 102, 88, 92
vHA, vYD, vYR = 244, 252, 253
G2REG = vU[2:5] + [vHA]
YP = 232


def g2_setup(layer):
    hb = HB[layer]
    A(f's_mul_i32 s{sT[1]}, s{sR64}, 163840\ns_mul_i32 s{sT[2]}, s{sW}, 10240\n'
      f's_add_u32 s{sT[1]}, s{sT[1]}, s{sT[2]}\ns_add_u32 s{sT[1]}, s{sT[1]}, {hb}')
    for z in range(4):
        A(f's_add_u32 s{sT[2]}, s{sW}, {z + 1}\ns_and_b32 s{sT[2]}, s{sT[2]}, 3\n'
          f's_mul_i32 s{sT[3]}, s{sT[2]}, 40960\ns_add_u32 s{sDS[z]}, s{sT[3]}, s{sT[1]}')
        if z < 2:
            A(f's_mul_i32 s{sT[3]}, s{sT[2]}, 10240\ns_add_u32 s{sT[3]}, s{sT[3]}, {L_RED + z * 5120}\n'
              f'v_add_u32 v{vU[2 + z]}, s{sT[3]}, v{vL16}')
        if z == 2:
            A(f's_mul_i32 s{sT[3]}, s{sT[2]}, 5120\nv_add_u32 v{vU[2 + z]}, s{sT[3]}, v{vL16}')
    A(f'''s_lshl_b32 s{sZ[3]}, s{sR128}, 8
s_lshl_b32 s{sT[1]}, s{sW}, 6
s_add_u32 s{sZ[3]}, s{sZ[3]}, s{sT[1]}
s_and_b32 s{sT[1]}, s{sR64}, 1
s_lshl_b32 s{sT[1]}, s{sT[1]}, 3
s_add_u32 s{sZ[3]}, s{sZ[3]}, s{sT[1]}
s_add_u32 s{sZ[3]}, s{sZ[3]}, {WS_FH + layer * 4096}
v_and_b32 v{vHA}, 3, v{vL}
v_lshlrev_b32 v{vHA}, 4, v{vHA}''')


def z_addr():
    t = vT
    A(f'''s_lshl_b32 s{sT[0]}, s{sR64}, 6
s_lshr_b32 s{sT[1]}, s{sW}, 1
s_lshl_b32 s{sT[1]}, s{sT[1]}, 5
s_add_u32 s{sT[0]}, s{sT[0]}, s{sT[1]}
s_and_b32 s{sT[1]}, s{sW}, 1
s_lshl_b32 s{sT[1]}, s{sT[1]}, 2
s_add_u32 s{sT[0]}, s{sT[0]}, s{sT[1]}
s_mul_i32 s{sZ[0]}, s{sT[0]}, 1280
s_mul_i32 s{sT[1]}, s{sS8}, 160
s_add_u32 s{sZ[0]}, s{sZ[0]}, s{sT[1]}
s_lshl_b32 s{sZ[2]}, s{sW}, 12
s_add_u32 s{sZ[2]}, s{sZ[2]}, {L_PS}''')
    for z in range(3):
        A(f'''v_add_u32 v{t[0]}, {64 * z}, v{vL}
v_mul_u32_u24 v{t[1]}, 205, v{t[0]}
v_lshrrev_b32 v{t[1]}, 11, v{t[1]}
v_lshrrev_b32 v{t[2]}, 2, v{t[1]}
v_mul_u32_u24 v{t[1]}, 1120, v{t[1]}
v_mul_u32_u24 v{t[2]}, 5120, v{t[2]}
v_lshlrev_b32 v{t[0]}, 4, v{t[0]}
v_add3_u32 v{vZ + z}, v{t[0]}, v{t[1]}, v{t[2]}''')
    A(f'''s_and_b32 s{sT[0]}, s{sR64}, 1
s_lshl_b32 s{sT[0]}, s{sT[0]}, 2
s_add_u32 s{sT[0]}, s{sT[0]}, s{sW}
s_lshr_b32 s{sT[1]}, s{sT[0]}, 1
s_lshl_b32 s{sT[1]}, s{sT[1]}, 8
s_and_b32 s{sT[0]}, s{sT[0]}, 1
s_lshl_b32 s{sT[0]}, s{sT[0]}, 5
s_add_u32 s{sT[0]}, s{sT[0]}, s{sT[1]}
s_add_u32 s{sT[0]}, s{sT[0]}, {L_RS}
v_lshrrev_b32 v{t[1]}, 2, v{vI}
v_lshlrev_b32 v{t[1]}, 6, v{t[1]}
v_and_b32 v{t[2]}, 3, v{vI}
v_lshl_add_u32 v{t[1]}, v{t[2]}, 3, v{t[1]}
v_add_u32 v{vZ + 3}, s{sT[0]}, v{t[1]}
v_and_b32 v{t[2]}, 7, v{vI}
v_lshlrev_b32 v{t[2]}, 3, v{t[2]}
v_lshl_add_u32 v{t[2]}, v{vQ}, 6, v{t[2]}
s_lshl_b32 s{sT[0]}, s{sW}, 8
s_add_u32 s{sT[0]}, s{sT[0]}, {L_RS}
v_add_u32 v{vZ + 4}, s{sT[0]}, v{t[2]}
v_lshl_add_u32 v{vXT + 1}, v{vQ}, 3, s{sZ[2]}
v_mul_u32_u24 v{vXT}, 160, v{vI}
v_lshl_add_u32 v{vXT}, v{vQ}, 3, v{vXT}
v_add_u32 v{vXT}, s{sZ[2]}, v{vXT}''')


def z_loads(vm):
    it = []
    for z in range(3):
        it.append(atom(f's_add_u32 m0, s{sZ[2]}, {1024 * z}', 's_mov_b32 exec_hi, 0' if z == 2 else [],
                       lambda z=z: vm(f'buffer_load_dwordx4 v{vZ + z}, {s4(R_X)}, s{sZ[0]} offen lds', 'xt'),
                       's_mov_b32 exec_hi, -1' if z == 2 else []))
    it.append(atom(lambda: srd(R_T1, P_DSK, 1280), f's_add_u32 m0, s{sZ[2]}, 2560', f's_mul_i32 s{sT[0]}, s{sS8}, 160',
                   's_mov_b64 exec, 0x3ff',
                   lambda: vm(f'buffer_load_dwordx4 v{vL16}, {s4(R_T1)}, s{sT[0]} offen lds', 'xt'), 's_mov_b64 exec, -1'))
    return it


def z_work():
    b = [f'v_accvgpr_read_b32 v{ZU}, a{A_ZU}', f'v_accvgpr_read_b32 v{ZU + 1}, a{A_ZU + 1}', f'v_mul_f32 v{ZU}, v{ZU}, v{ZU + 1}']
    for m in range(5):
        for i in range(2):
            b += [f'v_accvgpr_read_b32 v{XT + i}, a{A_X + 2 * m + i}', f'v_accvgpr_read_b32 v{DP + i}, a{A_DSK + 2 * m + i}']
        b += unpack(ZR + 4 * m, XT, 2) + unpack(F2, DP, 2)
        for i in range(4):
            b.append(f'v_fma_f32 v{F1 + i}, v{ZR + 4 * m + i}, v{ZU + 1}, -v{ZU}')
        for i in range(4):
            b.append(f'v_fmac_f32 v{ZR + 4 * m + i}, v{F1 + i}, v{F2 + i}')
    return b


H_POLL = f'buffer_load_dwordx2 {v2(vU[0])}, v{vHA}, {W}, s{sZ[3]} offen sc1'


class G2:
    def __init__(self, layer, vm):
        self.layer, self.vm, self.nxt = layer, vm, 0

    def ld(self):
        f = self.nxt
        self.nxt += 1
        z, k = divmod(f, 10)
        if k and k % 4 == 0:
            A(f's_add_u32 s{sDS[z]}, s{sDS[z]}, 4096')
        self.vm(f'buffer_load_dwordx4 {v4(RING + 4 * (f % NR))}, v{vL16}, {WH}, s{sDS[z]} offen '
                f'offset:{(k % 4) * 1024} sc1', ('h', f))

    def begin(self):
        if self.layer == 0:
            self.vm.wait('fh')
        check_tags([vU[0], vU[1]], H_POLL, inline=2 - self.layer)
        self.vm.done = self.vm.n if self.layer else self.vm.done
        stamp(f'h_ready_{self.layer}')
        for f in range(OPT['n0'] if self.layer else OPT['n00']):
            self.ld()


def gemm2(g2):
    layer, vm, ld = g2.layer, g2.vm, g2.ld
    side, lg = Side(), LG()
    n0 = g2.nxt
    last = 0
    for f in range(n0, 40):
        last = max(f - n0, f - NR + 1)
        side.add(last, ld)
    last += 1
    hooks = []
    ze = 0
    if layer == 0:
        e = side.spread(OPT['ys'], OPT['yper'], g2.ytail)
        side.add(e, 's_barrier')
        assert e < 11
        ze = side.spread(e, OPT['zper'], z_work())
        assert ze <= OPT['rb'] - 4 * OPT['r3'], ze
        side.add(OPT['yp'] + 1, f'''s_mul_i32 s{sX[6]}, s{sS8}, 327680
s_lshl_b32 s{sT[0]}, s{sR64}, 7
s_add_u32 s{sX[6]}, s{sX[6]}, s{sT[0]}
s_lshr_b32 s{sT[0]}, s{sW}, 1
s_mul_i32 s{sX[7]}, s{sT[0]}, 5120
s_add_u32 s{sX[7]}, s{sX[7]}, {L_Y}
s_lshl_b32 s{sT[0]}, s{sT[0]}, 6
s_add_u32 s{sX[6]}, s{sX[6]}, s{sT[0]}
s_add_u32 s{sX[6]}, s{sX[6]}, {WS_Y}
s_mov_b32 s{sX[5]}, s{sX[6]}''')
        side.add(OPT['yp'] + 2, f'''s_and_b32 s{sT[0]}, s{sW}, 1
s_mul_i32 s{sT[1]}, s{sT[0]}, {3 * 65536}
s_add_u32 s{sX[6]}, s{sX[6]}, s{sT[1]}
s_mul_i32 s{sT[1]}, s{sT[0]}, 3072
s_add_u32 s{sX[8]}, s{sX[7]}, s{sT[1]}
s_lshl_b32 s{sT[0]}, s{sT[0]}, 3
s_add_u32 s{sX[7]}, s{sX[7]}, s{sT[0]}
v_lshrrev_b32 v{vYD}, 2, v{vL}
v_lshlrev_b32 v{vYD}, 12, v{vYD}
v_and_b32 v{vT[1]}, 3, v{vL}
v_lshl_add_u32 v{vYD}, v{vT[1]}, 4, v{vYD}''')

        def ydma(m):
            A(f's_add_u32 m0, s{sX[8]}, {m * 1024}')
            if m == 2:
                A(f's_bitcmp1_b32 s{sW}, 0\ns_cselect_b32 s{sX[6]}, {OOB}, s{sX[6]}\ns_cselect_b32 m0, {LDS_SIZE}, m0')
            vm(f'buffer_load_dwordx4 v{vYD}, {W}, s{sX[6]} offen sc1 lds', 'yd')
            A(f's_add_u32 s{sX[6]}, s{sX[6]}, 65536')
        side.add(last, *[lambda m=m: ydma(m) for m in range(3)])
        side.add(last + 1, f'v_add_u32 v{vYR}, s{sX[7]}, v{vL16}')
    else:
        if OPT['wb'] & 2:
            side.add(OPT['wbs'] or last + 1, wbl2)
    rd = lambda p, a, off, nm: [lambda i=i: lg(f'ds_read_b128 {v4(p + 4 * i)}, v{a} offset:{off + 1024 * i}', nm) for i in range(5)]
    add = lambda d, s: [f'v_add_f32 v{d + i}, v{d + i}, v{s + i}' for i in range(20)]
    side.add(OPT['ra'] - 1, f's_mul_i32 s{sT[3]}, s{sW}, 10240\ns_add_u32 s{sT[3]}, s{sT[3]}, {L_RED}\n'
                            f'v_add_u32 v{vU[5]}, s{sT[3]}, v{vL16}')
    bar = lambda: (lg.wait('pw'), A('s_barrier'))
    wp = OPT['wper']
    for z in range(3):
        pa = ACC + 20 * (z & 1)
        for m in range(5):
            side.q.setdefault(10 * z + 11 + m // wp, []).insert(
                m % wp, lambda z=z, m=m, pa=pa: lg(f'ds_write_b128 v{vU[2 + z]}, {v4(pa + 4 * m)} offset:{1024 * m}', 'pw'))
    if OPT['r3']:
        e = side.spread(OPT['ra'], 5, [bar] + rd(P0, vU[5], 0, 'p0'))
        side.spread(max(e, ze), 5, [lambda: lg.wait('p0')] + add(ZR, P0))
        e = side.spread(OPT['rb'], OPT['rper'], [bar] + rd(P1, vU[5], 5120, 'p1') + [lambda: lg.wait('p1')] + add(ZR, P1))
    else:
        e = side.spread(OPT['rb'], OPT['rper'], [bar] + rd(P0, vU[5], 0, 'p0') + rd(P1, vU[5], 5120, 'p1') + [lambda: lg.wait('p0')]
                        + add(ZR, P0) + [lambda: lg.wait('p1')] + add(ZR, P1))
    assert e <= 30, e
    side.add(OPT['rc'] - 1, f's_mul_i32 s{sT[3]}, s{sW}, 5120\nv_add_u32 v{vU[5]}, s{sT[3]}, v{vL16}')
    side.spread(OPT['rc'], 6, [bar] + rd(P0, vU[5], 0, 'p2'))
    for z in range(4):
        if OPT['stamps'] < 3:
            stamp(f'.z{z}_{layer}', 2)
        acc = ACC + 20 * (z & 1)
        for k in range(10):
            f = 10 * z + k
            vm.wait(('h', f))
            for h in list(hooks):
                if vm.t[h[0]] <= vm.done:
                    hooks.remove(h)
                    h[1]()
            for m in range(5):
                d = acc + 4 * m
                c = v4(d) if k else ('0' if z < 3 else v4(ZR + 4 * m))
                A(f'v_mfma_f32_16x16x32_bf16 {v4(d)}, {a4(4 * (5 * k + m))}, {v4(RING + 4 * (f % NR))}, {c}')
                side.run(f, 5 - m)
    assert not side.left() and not hooks
    stamp(f'g2_{layer}')
    return lg


def allreduce_q(r, t):
    for op in ('v_permlane32_swap_b32', 'v_permlane16_swap_b32'):
        A(f'''v_mov_b32 v{t}, v{r}
v_mov_b32 v{t + 1}, v{r + 1}
{op} v{r}, v{t}
{op} v{r + 1}, v{t + 1}
v_add_f32 v{r}, v{r}, v{t}
v_add_f32 v{r + 1}, v{r + 1}, v{t + 1}''')


def epilogue(layer, vm, lg):
    a = ACC + 20
    S = 212
    G = 228
    inv = 0x3acccccd
    A(f'''s_lshl_b32 s{sT[0]}, s{sR64}, 15
s_lshl_b32 s{sT[1]}, s{sW}, 10
s_add_u32 s{sT[0]}, s{sT[0]}, s{sT[1]}
s_add_u32 s{sT[0]}, s{sT[0]}, {WS_ST + layer * 0x100000}
s_lshl_b32 s{sT[1]}, s{sS8}, 12
s_add_u32 s{sT[1]}, s{sT[1]}, s{sT[0]}''')
    lg.wait('p2')
    if layer == 0:
        vm.wait('yd')
        A('s_barrier')
        stamp('y_in')
        lg = LG()
        yrd = [f'ds_read_b64_tr_b16 {v2(YP + 2 * m)}, v{vYR} offset:{m * 1024}' for m in range(5)]
        for m in range(5):
            lg(yrd[m], ('y', m))
        A(unpark('bd', 244) + '\n' + unpark('bd2', 245))
    for i in range(10):
        A(f'v_pk_add_f32 {v2(a + 2 * i)}, {v2(a + 2 * i)}, {v2(P0 + 2 * i)}')
    A(f'v_pk_add_f32 {v2(S)}, {v2(a)}, {v2(a + 2)}\nv_pk_mul_f32 {v2(S + 2)}, {v2(a)}, {v2(a)}')
    for i in range(1, 10):
        if i >= 2:
            A(f'v_pk_add_f32 {v2(S)}, {v2(S)}, {v2(a + 2 * i)}')
        A(f'v_pk_fma_f32 {v2(S + 2)}, {v2(a + 2 * i)}, {v2(a + 2 * i)}, {v2(S + 2)}')
    if layer == 0:
        AY = 160
        lg.wait(('y', 4))
        x = vT[4]
        chk = [f'v_pk_max_u16 v{x}, v{YP}, v{YP + 1}'] + [f'v_pk_max_u16 v{x}, v{x}, v{YP + i}' for i in range(2, 10)]
        chk += [f'v_lshlrev_b32 v{vT[3]}, 16, v{x}', f'v_max_u32 v{x}, v{x}, v{vT[3]}', f'v_cmp_le_u32 vcc, 0xffff0000, v{x}']
        lab, done = A.label('again'), A.label('ok')
        A.cond[lab] = lambda c: False
        A('\n'.join(chk) + f'\ns_cbranch_vccnz {lab}\n{done}:')
        slow = [f'{lab}:', f's_sub_u32 s{sBud}, s{sBud}, 1', f's_cmp_gt_i32 s{sBud}, 0', f's_cbranch_scc0 {done}',
                f's_mul_i32 s{sX[8]}, s{sW}, 10240', f's_add_u32 s{sX[8]}, s{sX[8]}, {L_RED + 5120}',
                f's_and_b32 s{sX[6]}, s{sW}, 1', f's_lshl_b32 s{sX[6]}, s{sX[6]}, 3', f's_add_u32 s{sX[6]}, s{sX[6]}, s{sX[8]}',
                f'v_add_u32 v{vYR}, s{sX[6]}, v{vL16}']
        for m in range(5):
            slow += [f's_add_u32 m0, s{sX[8]}, {m * 1024}', f's_add_u32 s{sX[6]}, s{sX[5]}, {m * 65536}',
                     f'buffer_load_dwordx4 v{vYD}, {W}, s{sX[6]} offen sc1 lds']
        TAIL.append('\n'.join(slow + ['s_waitcnt vmcnt(0)'] + yrd + ['s_waitcnt lgkmcnt(0)'] + chk
                              + [f's_cbranch_vccnz {lab}', f's_branch {done}']))
        stamp('y_ok')
        for m in range(5):
            lg.wait(('y', m))
            A('\n'.join(unpack(YF + 4 * m, YP + 2 * m, 2)))
            if m in (0, 2, 4):
                b_dma(vm, 0, m, 244, 245)
            for i in (2 * m, 2 * m + 1):
                x, y, ay = v2(a + 2 * i), v2(YF + 2 * i), v2(AY + 2 * i)
                A(f'v_pk_mul_f32 {ay}, {x}, {y}')
                if i == 0:
                    A(f'v_pk_mul_f32 {v2(S + 14)}, {y}, {y}\nv_pk_mul_f32 {v2(S + 6)}, {ay}, {x}\n'
                      f'v_pk_mul_f32 {v2(S + 8)}, {ay}, {ay}\nv_pk_mul_f32 {v2(S + 10)}, {ay}, {y}')
                else:
                    p2 = v2(AY) if i == 1 else v2(S + 4)
                    p6 = v2(YF) if i == 1 else v2(S + 12)
                    A(f'v_pk_add_f32 {v2(S + 12)}, {p6}, {y}\nv_pk_fma_f32 {v2(S + 14)}, {y}, {y}, {v2(S + 14)}\n'
                      f'v_pk_add_f32 {v2(S + 4)}, {p2}, {ay}\nv_pk_fma_f32 {v2(S + 6)}, {ay}, {x}, {v2(S + 6)}\n'
                      f'v_pk_fma_f32 {v2(S + 8)}, {ay}, {ay}, {v2(S + 8)}\n'
                      f'v_pk_fma_f32 {v2(S + 10)}, {ay}, {y}, {v2(S + 10)}')
        for k in range(8):
            A(f'v_add_f32 v{S + 2 * k}, v{S + 2 * k}, v{S + 2 * k + 1}')
        for k in range(4):
            A(f'v_permlane16_swap_b32 v{S + 2 * k}, v{S + 2 * k + 8}')
        for k in range(4):
            A(f'v_add_f32 v{G + k}, v{S + 2 * k}, v{S + 2 * k + 8}')
        for k in range(4):
            A(f'v_mov_b32 v{S + k}, v{G + k}')
        for k in range(4):
            A(f'v_permlane32_swap_b32 v{G + k}, v{S + k}')
        A(f's_movk_i32 s{sT[2]}, 0xff')
        for k in range(4):
            A(f'v_add_f32 v{G + k}, v{G + k}, v{S + k}')
        for k in range(4):
            A(f's_lshr_b32 s{sT[3]}, s{sTag}, {8 * k}\nv_mov_b32 v{S + k}, s{sT[3]}\n'
              f'v_bfi_b32 v{G + k}, s{sT[2]}, v{S + k}, v{G + k}')
        A('s_mov_b32 exec_hi, 0')
        mode_stores([f'buffer_store_dwordx4 {v4(G)}, v{vL16}, {W}, s{sT[1]} offen'], through=OPT['thr'] & 16)
        A('s_mov_b32 exec_hi, -1')
        stamp('st_pub_0')
        if OPT['prefetch'] & 4:
            run(code_touch())
        for i in range(10):
            A(f'v_accvgpr_write_b32 a{A_Y + i}, v{YP + i}')
        A(f'''v_lshrrev_b32 v{vT[0]}, 2, v{vI}
v_mul_u32_u24 v{vT[0]}, 5120, v{vT[0]}
v_and_b32 v{vT[1]}, 3, v{vI}
v_lshl_add_u32 v{vT[0]}, v{vT[1]}, 4, v{vT[0]}
v_lshrrev_b32 v{vT[1]}, 1, v{vQ}
v_lshl_add_u32 v{vT[0]}, v{vT[1]}, 6, v{vT[0]}
v_and_b32 v{vT[1]}, 1, v{vQ}
v_lshl_add_u32 v{vU[5]}, v{vT[1]}, 3, v{vT[0]}
s_lshl_b32 s{sX[1]}, s{sR64}, 2
s_add_u32 s{sX[1]}, s{sX[1]}, s{sW}
s_mul_i32 s{sX[1]}, s{sX[1]}, 20480
s_mul_i32 s{sT[2]}, s{sS8}, 640
s_add_u32 s{sX[1]}, s{sX[1]}, s{sT[2]}
s_add_u32 s{sX[1]}, s{sX[1]}, {WS_U2}''')
        DPk, DF = 190, 108
        for i in range(10):
            A(f'v_accvgpr_read_b32 v{DPk + i}, a{A_DSK + i}')
        A('\n'.join(unpack(DF, DPk, 10)))
        A(f'''s_lshl_b32 s{sX[0]}, s{sR128}, 8
s_lshr_b32 s{sT[1]}, s{sW}, 1
s_lshl_b32 s{sT[1]}, s{sT[1]}, 7
s_add_u32 s{sX[0]}, s{sX[0]}, s{sT[1]}
s_and_b32 s{sT[1]}, s{sW}, 1
s_lshl_b32 s{sT[1]}, s{sT[1]}, 3
s_add_u32 s{sX[0]}, s{sX[0]}, s{sT[1]}
s_add_u32 s{sX[0]}, s{sX[0]}, {WS_FU}
v_and_b32 v{vU[4]}, 7, v{vL}
v_lshlrev_b32 v{vU[4]}, 4, v{vU[4]}
s_add_u32 s{sL[0]}, s{sXs}, {WS_U2}
s_add_u32 s{sL[1]}, s{sL[0]}, 20480
s_lshl_b32 s{sEpW}, s{sR64}, 5
s_lshl_b32 s{sT[1]}, s{sS8}, 2
s_add_u32 s{sEpW}, s{sEpW}, s{sT[1]}
s_add_u32 s{sEpW}, s{sEpW}, s{sW}''')
        A(f'''v_and_b32 v{vT[0]}, 31, v{vL}
v_lshlrev_b32 v{vT[0]}, 4, v{vT[0]}
v_lshrrev_b32 v{vT[1]}, 5, v{vL}
v_lshl_add_u32 v{vT[0]}, v{vT[1]}, 14, v{vT[0]}
s_mov_b32 s{sT[2]}, 0x0c0c0400
s_mov_b32 s{sT[3]}, 0x04000c0c
s_add_u32 s{sX[2]}, s{sT[0]}, 4096
s_add_u32 s{sX[3]}, s{sT[0]}, 8192
s_add_u32 s{sX[4]}, s{sT[0]}, 12288''')
        back = A.label('stpoll')
        A(f'{back}:')
        Q = 128
        for sl, so in enumerate((sT[0], sX[2], sX[3], sX[4])):
            A(f'buffer_load_dwordx4 {v4(Q + 4 * sl)}, v{vT[0]}, {W}, s{so} offen sc1')
        A('s_waitcnt vmcnt(0)')
        for sl in range(4):
            q = Q + 4 * sl
            A(f'v_perm_b32 v{S + 2 * sl}, v{q + 1}, v{q}, s{sT[2]}\nv_perm_b32 v{S + 2 * sl + 1}, v{q + 3}, v{q + 2}, s{sT[3]}')
        for sl in range(4):
            A(f'v_or_b32 v{S + 2 * sl}, v{S + 2 * sl}, v{S + 2 * sl + 1}')
        lo, hi = vT[2], vT[3]
        A(f'''v_min3_u32 v{lo}, v{S}, v{S + 2}, s{sTag}
v_max3_u32 v{hi}, v{S}, v{S + 2}, s{sTag}
v_min3_u32 v{lo}, v{lo}, v{S + 4}, v{S + 6}
v_max3_u32 v{hi}, v{hi}, v{S + 4}, v{S + 6}
v_cmp_ne_u32 vcc, v{lo}, v{hi}''')
        retry(back)
        stamp('st_in_0')
        for hf in (0, 2):
            A(f'v_pk_add_f32 {v2(Q + hf)}, {v2(Q + hf)}, {v2(Q + 4 + hf)}\n'
              f'v_pk_add_f32 {v2(Q + 8 + hf)}, {v2(Q + 8 + hf)}, {v2(Q + 12 + hf)}')
        for hf in (0, 2):
            A(f'v_pk_add_f32 {v2(Q + hf)}, {v2(Q + hf)}, {v2(Q + 8 + hf)}')
        s = lambda k: S + k
        for k in range(4):
            A(f'v_mov_b32 v{Q + 4 + k}, v{Q + k}')
        for k in range(4):
            A(f'v_permlane32_swap_b32 v{Q + k}, v{Q + 4 + k}')
        for k in range(4):
            A(f'v_add_f32 v{s(k)}, v{Q + k}, v{Q + 4 + k}')
        for k in range(4):
            A(f'v_mov_b32 v{s(4 + k)}, v{s(k)}')
        for k in range(4):
            A(f'v_permlane16_swap_b32 v{s(k)}, v{s(4 + k)}')
        m1, r1, k1, t0, t1, r2, k2 = 200, 202, 203, 204, 205, 206, 207
        A(f'''v_mul_f32 v{m1}, {inv:#x}, v{s(0)}
v_mul_f32 v{t0}, {inv:#x}, v{s(1)}
v_fma_f32 v{t0}, -v{m1}, v{m1}, v{t0}
v_max_f32 v{t0}, 0, v{t0}
v_add_f32 v{t0}, 0x3727c5ac, v{t0}
v_rsq_f32 v{r1}, v{t0}
v_mul_f32 v{k1}, v{m1}, v{r1}
v_fma_f32 v{t0}, v{r1}, v{s(2)}, v{s(0)}
v_fma_f32 v{t0}, -v{k1}, v{s(6)}, v{t0}
v_mul_f32 v{t1}, v{r1}, v{s(4)}
v_fma_f32 v{t1}, 2.0, v{s(3)}, v{t1}
v_fma_f32 v{t1}, v{r1}, v{t1}, v{s(1)}
v_fma_f32 v{s(2)}, v{r1}, v{s(5)}, v{s(2)}
v_mul_f32 v{s(7)}, v{k1}, v{s(7)}
v_fma_f32 v{s(2)}, -2.0, v{s(2)}, v{s(7)}
v_fma_f32 v{t1}, v{k1}, v{s(2)}, v{t1}
v_mul_f32 v{t0}, {inv:#x}, v{t0}
v_mul_f32 v{t1}, {inv:#x}, v{t1}
v_fma_f32 v{t1}, -v{t0}, v{t0}, v{t1}
v_max_f32 v{t1}, 0, v{t1}
v_add_f32 v{t1}, 0x3727c5ac, v{t1}
v_rsq_f32 v{r2}, v{t1}
v_mul_f32 v{k2}, v{t0}, v{r2}''')
        bc = 'op_sel:[0,0,1] op_sel_hi:[1,0,1] neg_lo:[0,0,1] neg_hi:[0,0,1]'
        U, UP = 160, 180
        for i in range(10):
            A(f'v_pk_fma_f32 {v2(U + 2 * i)}, {v2(a + 2 * i)}, {v2(r1)}, {v2(r1)} {bc}')
        for i in range(10):
            A(f'v_pk_fma_f32 {v2(a + 2 * i)}, {v2(U + 2 * i)}, {v2(YF + 2 * i)}, {v2(a + 2 * i)}')
        for i in range(10):
            A(f'v_pk_fma_f32 {v2(U + 2 * i)}, {v2(a + 2 * i)}, {v2(r2)}, {v2(r2)} {bc}')
        for i in range(10):
            A(f'v_cvt_pk_bf16_f32 v{UP + i}, v{U + 2 * i}, v{U + 2 * i + 1}')
        mode_stores([f'buffer_store_dwordx2 {v2(UP + 2 * m)}, v{vU[5]}, {W}, s{sX[1]} offen offset:{128 * m}'
                     for m in range(5)], through=OPT['thr'] & 8)
        stamp('u2_st')
        for i in range(10):
            A(f'v_pk_fma_f32 {v2(a + 2 * i)}, {v2(U + 2 * i)}, {v2(DF + 2 * i)}, {v2(a + 2 * i)}')
        for i in range(20):
            A(f'v_accvgpr_write_b32 a{A_Z + i}, v{a + i}')
        A(f's_add_u32 s{sT[1]}, s{sFW}, {WS_FU}\ns_waitcnt vmcnt(0)')
        flag_store(f's{sT[1]}', True)
        A(f's_cmp_lg_u32 s{sEpW}, {31 * 32}')
        with A.skip_if('s_cbranch_scc1', lambda c: True):
            flag_store('0', False)
        fl = f'buffer_load_dwordx2 {v2(vU[0])}, v{vU[4]}, {W}, s{sX[0]} offen sc1'
        check_tags([vU[0], vU[1]], fl, inline=1)
        stamp('u2_ready')
    else:
        A(f'v_add_f32 v{G}, v{S}, v{S + 1}\nv_add_f32 v{G + 1}, v{S + 2}, v{S + 3}\nv_mov_b32 v{G + 2}, s{sTag}\n'
          f'v_mov_b32 v{G + 3}, s{sTag}')
        allreduce_q(G, S)
        A('s_mov_b64 exec, 0xffff')
        mode_stores([f'buffer_store_dwordx4 {v4(G)}, v{vL16}, {W}, s{sT[1]} offen'], through=OPT['thr'] & 16)
        A('s_mov_b64 exec, -1')
        stamp('st_pub_1')
        if OPT['wb'] & 64:
            wbl2()
        lg = LG()
        X3, Y3 = 160, 180
        A(f'''s_mul_i32 s{sT[2]}, s{sW}, 10240
s_add_u32 s{sT[2]}, s{sT[2]}, {L_RED}
v_lshrrev_b32 v{vT[1]}, 1, v{vI}
v_xor_b32 v{vT[1]}, v{vT[1]}, v{vQ}
v_and_b32 v{vT[1]}, 3, v{vT[1]}
v_lshlrev_b32 v{vT[1]}, 4, v{vT[1]}
v_lshl_add_u32 v{vT[1]}, v{vI}, 6, v{vT[1]}
v_add_u32 v{vU[2]}, s{sT[2]}, v{vT[1]}''')
        for m in range(5):
            lg(f'ds_write_b128 v{vU[2]}, {v4(a + 4 * m)} offset:{1024 * m}')
            lg(f'ds_write_b128 v{vU[2]}, {v4(YF + 4 * m)} offset:{5120 + 1024 * m}')
        A(f'''v_lshrrev_b32 v{vT[1]}, 3, v{vL}
v_xor_b32 v{vT[1]}, v{vT[1]}, v{vL}
v_and_b32 v{vT[1]}, 3, v{vT[1]}
v_lshlrev_b32 v{vT[1]}, 4, v{vT[1]}
v_lshrrev_b32 v{vT[2]}, 2, v{vL}
v_lshl_add_u32 v{vT[1]}, v{vT[2]}, 6, v{vT[1]}
v_add_u32 v{vU[3]}, s{sT[2]}, v{vT[1]}''')
        for m in range(5):
            lg(f'ds_read_b128 {v4(X3 + 4 * m)}, v{vU[3]} offset:{1024 * m}')
            lg(f'ds_read_b128 {v4(Y3 + 4 * m)}, v{vU[3]} offset:{5120 + 1024 * m}')
        A(f'''v_and_b32 v{vT[3]}, 3, v{vL}
v_lshlrev_b32 v{vT[0]}, 13, v{vT[3]}
v_lshl_add_u32 v{vT[0]}, v{vT[2]}, 4, v{vT[0]}
s_add_u32 s{sT[1]}, s{sT[0]}, 4096
v_lshrrev_b32 v{vT[1]}, 2, v{vT[2]}
v_lshl_add_u32 v{vT[1]}, v{vT[1]}, 2, v{vT[2]}
v_mul_u32_u24 v{vT[1]}, 2560, v{vT[1]}
v_lshl_add_u32 v{vU[4]}, v{vT[3]}, 4, v{vT[1]}
s_lshl_b32 s{sT[3]}, s{sR64}, 6
s_lshr_b32 s{sX[1]}, s{sW}, 1
s_lshl_b32 s{sX[1]}, s{sX[1]}, 5
s_add_u32 s{sT[3]}, s{sT[3]}, s{sX[1]}
s_and_b32 s{sX[1]}, s{sW}, 1
s_lshl_b32 s{sX[1]}, s{sX[1]}, 2
s_add_u32 s{sT[3]}, s{sT[3]}, s{sX[1]}
s_mul_i32 s{sT[3]}, s{sT[3]}, 2560
s_mul_i32 s{sX[1]}, s{sS8}, 320
s_add_u32 s{sT[3]}, s{sT[3]}, s{sX[1]}''')
        Q = 128
        ld = [f'buffer_load_dwordx3 {v3(Q)}, v{vT[0]}, {W}, s{sT[0]} offen sc1',
              f'buffer_load_dwordx3 {v3(Q + 4)}, v{vT[0]}, {W}, s{sT[1]} offen sc1']
        check_tags([Q + 2, Q + 6], ld, inline=1)
        A('s_waitcnt lgkmcnt(0)')
        stamp('st_in_1')
        if OPT['wb'] & 32:
            wbl2()
        A(f'v_pk_add_f32 {v2(Q)}, {v2(Q)}, {v2(Q + 4)}')
        for mod in ('quad_perm:[1,0,3,2]', 'quad_perm:[2,3,0,1]'):
            A(f'v_add_f32_dpp v{Q}, v{Q}, v{Q} {mod} {DPPM}\nv_add_f32_dpp v{Q + 1}, v{Q + 1}, v{Q + 1} {mod} {DPPM}')
        r1, t0 = 200, 202
        A(f'''v_mul_f32 v{Q}, {inv:#x}, v{Q}
v_mul_f32 v{t0}, {inv:#x}, v{Q + 1}
v_fma_f32 v{t0}, -v{Q}, v{Q}, v{t0}
v_max_f32 v{t0}, 0, v{t0}
v_add_f32 v{t0}, 0x3727c5ac, v{t0}
v_rsq_f32 v{r1}, v{t0}
v_mul_f32 v{r1 + 1}, v{Q}, v{r1}''')
        bc = 'op_sel:[0,0,1] op_sel_hi:[1,0,1] neg_lo:[0,0,1] neg_hi:[0,0,1]'
        U = 132
        for m in range(5):
            u = U + 4 * (m & 1)
            for hf in range(2):
                A(f'v_pk_fma_f32 {v2(u + 2 * hf)}, {v2(X3 + 4 * m + 2 * hf)}, {v2(r1)}, {v2(r1)} {bc}')
            for hf in range(2):
                i = 4 * m + 2 * hf
                A(f'v_pk_fma_f32 {v2(X3 + i)}, {v2(u + 2 * hf)}, {v2(Y3 + i)}, {v2(X3 + i)}')
            line = f'buffer_store_dwordx4 {v4(X3 + 4 * m)}, v{vU[4]}, {s4(R_T0)}, s{sT[3]} offen offset:{64 * m}'
            if HO and OPT['om'] in (0, 3):
                mode_stores([line + ['', ' nt'][OPT['om'] == 3]])
            else:
                A(line + ['', ' sc1', ' sc1 nt', ' nt', ' sc0 sc1'][OPT['om']])
        if OPT['wb'] & 16:
            wbl2()
        stamp('out_st')


def retry(back):
    lab, done = A.label('retry'), A.label('giveup')
    A.cond[lab] = lambda c: False
    if OPT['inl']:
        A.cond[back] = A.cond[done] = lambda c: False
        A(f's_sub_u32 s{sBud}, s{sBud}, 1\ns_cmp_gt_i32 s{sBud}, 0\ns_cbranch_scc0 {done}\ns_cbranch_vccnz {back}\n{done}:')
        return
    A(f's_cbranch_vccnz {lab}\n{done}:')
    TAIL.append(f'{lab}:\ns_sub_u32 s{sBud}, s{sBud}, 1\ns_cmp_gt_i32 s{sBud}, 0\n'
                f's_cbranch_scc1 {back}\ns_branch {done}')


def dump_stamps():
    if OPT['fixdur']:
        A(f'v_readfirstlane_b32 s3, v{vStamp}\ns_min_u32 s3, s3, 20000')
        if OPT['pick'] >= 0:
            A(f's_lshl_b32 s4, s{sJ}, 3\ns_add_u32 s4, s4, s{sG}\ns_cmp_eq_u32 s4, {OPT["pick"]}\ns_cselect_b32 s3, s3, 0')
        A(f'''s_add_u32 s{sSt}, s{sSt}, s3
L_fix:
s_memrealtime s[0:1]
s_waitcnt lgkmcnt(0)
s_sub_u32 s0, s0, s{sSt}
s_cmp_lt_i32 s0, {OPT['fixdur']}
s_cbranch_scc1 L_fix''')
    if not OPT['stamps']:
        return
    A(f'''s_waitcnt vmcnt(0) lgkmcnt(0)
v_writelane_b32 v{vStamp}, s{sSt}, {PREV[0]}
s_memrealtime {s2(sSt)}
s_waitcnt lgkmcnt(0)
v_writelane_b32 v{vStamp}, s{sSt}, 63
s_lshl_b32 s{sT[0]}, s{sR64}, 3
s_add_u32 s{sT[0]}, s{sT[0]}, s{sS8}
s_lshl_b32 s{sT[0]}, s{sT[0]}, 2
s_add_u32 s{sT[0]}, s{sT[0]}, s{sW}
s_lshl_b32 s{sT[0]}, s{sT[0]}, 8
s_add_u32 s{sT[0]}, s{sT[0]}, {WS_DBG}
v_lshlrev_b32 v{vT[0]}, 2, v{vL}
buffer_store_dword v{vStamp}, v{vT[0]}, {W}, s{sT[0]} offen''')


def body():
    prologue()
    g2 = conv(*front(startup()))
    vm = g2.vm
    lg = gemm2(g2)
    epilogue(0, vm, lg)
    g = G1(1, VM())
    n1 = OPT['n1']
    for f in range(n1):
        g.ld(f)
    for f in range(n1, 40):
        g.side.add((f - n1) // 2, lambda f=f: g.ld(f))
    for j in range(5):
        g.rd(0, j)
    if OPT['wb'] & 1:
        g.side.add(16, wbl2)
    for s in range(20):
        g.step(s)
    stamp('g1_1')
    scan_1(1)
    vm = VM()
    run(horner(1, vm, LG()))
    if OPT['prefetch'] & 8:
        run(code_touch())
    pre, ld = agg_ld(1)
    A(pre)
    for l in ld:
        vm(l, 'agg')
    scan_2(1, vm, ld)
    g2_setup(1)
    h_flag(1, vm)
    run([f'v_accvgpr_read_b32 v{ZR + i}, a{A_Z + i}' for i in range(20)]
        + [f'v_accvgpr_read_b32 v{YP + i}, a{A_Y + i}' for i in range(10)] + unpack(YF, YP, 10))
    if OPT['wb'] & 8:
        wbl2()
    g2 = G2(1, vm)
    g2.begin()
    lg = gemm2(g2)
    epilogue(1, vm, lg)
    dump_stamps()
    A('L_end:\ns_endpgm')
    for t in TAIL:
        A(t)
    A('s_endpgm\nL_codeend:')


def main():
    hdr = open(os.path.join(os.path.dirname(os.path.abspath(__file__)), NAME + '.s.ref')).read().split('; Override')[0]
    A2 = [hdr.rstrip(), f'; @launch grid=(256,1,1) block=(256,1,1) lds={LDS_SIZE}',
          '.amdgcn_target "amdgcn-amd-amdhsa--gfx950"\n.text',
          f'.globl {NAME}_kernel\n.p2align 8\n.type {NAME}_kernel,@function\n{NAME}_kernel:']
    body()
    n = A.fix_hazards()
    if OPT['align']:
        print('; align: promoted %d, padded %d' % A.align8(999, False), file=sys.stderr)
    cfgs = [dict(w=w, fast=f, ty=ty) for w in range(4) for f in (0, 1) for ty in (0, 1)]
    errs = A.check_waits(cfgs)
    for e in sorted(set(errs))[:40]:
        print('WAITCNT:', e, file=sys.stderr)
    print(f'; {n} hazard pads inserted; {len(A.L)} lines; stamps: {STAMPS}', file=sys.stderr)
    A2.append('; WS ' + '\n; WS '.join(f'{k}={v:#x}' for k, v in dict(RS=WS_RS, H=WS_H, KV=WS_KV, Y=WS_Y, CF=WS_CF,
                                                                   U2=WS_U2, H2=WS_H2, DBG=WS_DBG, CFOLD=1).items()))
    if STAMPS:
        A2.append('; STAMPS ' + ' '.join(STAMPS))
    A2.append(A.text())
    A2.append(f'''.section .rodata,"a"
.p2align 6
.amdhsa_kernel {NAME}_kernel
  .amdhsa_next_free_vgpr 512
  .amdhsa_next_free_sgpr 102
  .amdhsa_accum_offset 256
  .amdhsa_group_segment_fixed_size 0
  .amdhsa_kernarg_size 144
  .amdhsa_user_sgpr_count 2
  .amdhsa_user_sgpr_kernarg_segment_ptr 1
  .amdhsa_system_sgpr_workgroup_id_x 1
.end_amdhsa_kernel''')
    print('\n'.join(A2))


if __name__ == '__main__':
    main()
```

```python
import sys
import os
import copy
sys.path.insert(0, os.path.dirname(os.path.abspath(__file__)))
from asmlib import Asm

NAME = 'interleave_layers__ssm_conv_s5__ssm_conv_h3__prompt'
OPT = dict(stamps=0, rt=1, reuse=1, force_slow=0, budget=1 << 18, align=3, nt=0, prefetch=11,
           gw=1, rsc=18, late=13, lper=3, b1s=0, b2s=0, b3s=1, b4s=3, cfs=1, cfper=14, kls=14, kvf=5, cff=9, fsp=10, fsc=12, wv0=10, wv=16,
           aggl=21, clend=20, cs2=12, nu=3, defer=1, stp=3, cl2s=6, hfl=12, hp=7, yp0=3, clr=3, fbp=-13, fbc=-17, lag=1, cs1=7, cb=5, cl2=8, ys=0, yper=8, zper=8, csp=14, csc=17, cl0=8,
           order='S,A,M,G,T,@setup,R,@roles,O,B0,X0,X1,C', post='L1',
           n0=8, n00=8, n1=8, yp=26, ra=17, rb=24, rper=9, rc=35, wper=2, r3=0, om=0, wb=0, wbw=3, wbs=0, dbg=0, hout=1, lpre=2, tc2=17, thr=11, tch=12, inl=1, look=14, light=1, fixdur=0, probe='', pick=-1)
for a in sys.argv[1:]:
    k, v = a.split('=')
    assert k in OPT, k
    OPT[k] = v if k in ('probe', 'order', 'post') else int(v, 0)

WS_FU = 0x1000
WS_FH = WS_FU + 256
WS_FY = 0x6000
WS_FB = 0x8000
WS_FK = 0x10000
WS_FS = WS_FK + 512
WS_FX = WS_FK + 1024
WS_RS = 0x40000
WS_CS = 0x4A000
WS_AGG = 0x50000
AGG_L = 16 * 32 * 640
WS_ST = 0x140000
WS_U = 0x400000
WS_H = 0xA00000
WS_KV = WS_U if OPT['reuse'] else 0x1000000
WS_Y = 0x1300000
WS_CF = 0x1600000
WS_KB = 0x1900000
WS_U2 = WS_U
WS_H2 = WS_H if OPT['reuse'] else 0x1B00000
WS_DBG = 0x2400000
WS_SIZE = 0x2800000
OOB = 0x70000000

L_AR = 102400
L_SK = L_AR + 2 * 8192
VOFF = 12 * 1056
L_SS, L_SS2, L_V = L_SK + VOFF + 9 * 1056, L_SK + VOFF + 11 * 1056, L_SK + 25 * 1056
L_KV = 0
L_TR = 13824
L_K = 102400
L_PM = 102400
L_PS = L_K + 3 * 8320
L_P = L_PS + 16384
L_RED = 102400
L_Y = 143360
L_AS = 152320
L_G = 149504
L_RS = 158720
L_C = 159744
L_L = 160640
LDS_SIZE = 163840

P_X, P_LRE, P_LIM, P_BRE, P_BIM, P_CRE, P_CIM, P_LDT = 16, 18, 20, 22, 24, 26, 28, 30
P_DSK, P_Q, P_K, P_V, P_SK, P_SSK, P_SD, P_OUT, P_DBG, P_WS = 32, 34, 36, 38, 40, 42, 44, 46, 48, 50
R_WS, R_B, R_T0, R_T1, R_X = 52, 56, 60, 64, 68
sG, sJ, sOnes = 0, 1, 2
sR128, sMem, sR64, sS8, sW, sTag, sMode, sBud, sXcc = 3, 4, 5, 6, 7, 8, 9, 10, 11
sT = [12, 13, 14, 15]
sD = [72, 73]
sBs, sBm, sXs, sXm = 74, 75, 76, 77
sH = [78, 79, 80, 81, 82]
sAgg = 83
sFW, sFK = 84, 85
sC0, sCs = 86, 24
sKm, sKf, sKs = 40, 41, 36
sX = [87, 88, 89, 90, 91, 92, 93, 94, 95]
sPub = 96
sPC = 98
sSt = 100
sL = [34, 35]
sDS = [16, 17, 18, 19]
sZ = [20, 21, 48, 49]
sYO = [50, 51]
sDm = [30, 31, 25, 45]
sEpW = 44

vUA, vL, vL16, vI, vQ = 0, 1, 2, 3, 4
vBA = [5, 6, 7, 8]
vAS, vStamp = 9, 10
vT = [11, 12, 13, 14, 15]
LR, LS, VA = 16, 21, 26
mL8, mL128, mW = 36, 38, 40
vU = [42, 43, 44, 45, 46, 47]
ACC, BF, RING, NR = 48, 88, 128, 16
A_Y, A_Z, A_DSK = 200, 210, 230
PARK = dict(tw=240, tr=241, ts=242, bd=243, bd2=244, rt=245, junk=250)
A_CV = 200
A_X, A_ZU = 216, 226

A = Asm()
NT = ' nt' if OPT['nt'] & 1 else ''
STAMPS = []
PREV = [61]
TAIL = []
DPPM = 'row_mask:0xf bank_mask:0xf'
SWP = f'quad_perm:[1,0,3,2] {DPPM}'
W = f's[{R_WS}:{R_WS + 3}]'
HO = OPT['reuse'] and OPT['hout']
WH = f's[{R_T0}:{R_T0 + 3}]' if HO else W
HB = [0, 0] if HO else [WS_H, WS_H2]


def s2(n): return f's[{n}:{n + 1}]'
def s4(n): return f's[{n}:{n + 3}]'
def v2(n): return f'v[{n}:{n + 1}]'
def v3(n): return f'v[{n}:{n + 2}]'
def v4(n): return f'v[{n}:{n + 3}]'
def a4(n): return f'a[{n}:{n + 3}]'


def srd(r, p, size):
    A(f's_mov_b32 s{r}, s{p}\ns_and_b32 s{r + 1}, s{p + 1}, 0xffff\ns_mov_b32 s{r + 2}, {size}\n'
      f's_mov_b32 s{r + 3}, 0x20000')


def stamp(name, level=1):
    if ':' in OPT['probe']:
        a, b, kind = OPT['probe'].split(':')
        op = 's_memtime' if kind == 'c' else 's_memrealtime'
        if name == a:
            A(f'{op} vcc\ns_waitcnt lgkmcnt(0)\nv_mov_b32 v{vStamp}, vcc_lo')
        if name == b:
            A(f'{op} vcc\ns_waitcnt lgkmcnt(0)\nv_sub_u32 v{vStamp}, vcc_lo, v{vStamp}\n'
              + (f'v_lshrrev_b32 v{vStamp}, 2, v{vStamp}' if kind == 'c' else f'v_lshlrev_b32 v{vStamp}, 2, v{vStamp}'))
    if OPT['probe'] == name:
        A(f's_memrealtime vcc\ns_waitcnt lgkmcnt(0)\ns_sub_u32 vcc_lo, vcc_lo, s{sSt}\ns_lshl_b32 vcc_lo, vcc_lo, 2\n'
          f'v_mov_b32 v{vStamp}, vcc_lo')
    if not OPT['stamps'] or (OPT['stamps'] < 0 and name != 'start') or level > abs(OPT['stamps']):
        return
    if name not in STAMPS:
        STAMPS.append(name)
    i = STAMPS.index(name)
    op = 's_memrealtime' if OPT['rt'] else 's_memtime'
    if name == 'start' or not OPT['light']:
        A(f'{op} {s2(sSt)}\ns_waitcnt lgkmcnt(0)\nv_writelane_b32 v{vStamp}, s{sSt}, {i}')
    else:
        A(f'v_writelane_b32 v{vStamp}, s{sSt}, {PREV[0]} ; nocheck\n{op} {s2(sSt)} ;@{i}')
        PREV[0] = i


class Cnt:
    def __init__(self, what, cap):
        self.n, self.t, self.what, self.cap, self.done = 0, {}, what, cap, 0

    def __call__(self, text, name=None):
        A(text)
        self.n += 1
        if name is not None:
            self.t[name] = self.n
        return self.n

    def wait(self, *names):
        tok = max(self.t[x] if not isinstance(x, int) else x for x in names)
        if tok <= self.done:
            return
        k = self.n - tok
        assert k >= 0
        if k <= self.cap:
            A(f's_waitcnt {self.what}({k})')
            self.done = tok
        else:
            A(f's_waitcnt {self.what}({self.cap})')
            self.done = self.n - self.cap

    def merge(self, o):
        n = max(self.n, o.n)
        t = {}
        for k in set(self.t) | set(o.t):
            t[k] = n - min(c.n - c.t[k] for c in (self, o) if k in c.t)
        self.done = n - max(self.n - self.done, o.n - o.done)
        self.n, self.t = n, t


def VM(): return Cnt('vmcnt', 63)
def LG(): return Cnt('lgkmcnt', 15)


def lines(x):
    if isinstance(x, str):
        return [l for l in x.split('\n') if l.strip()]
    if isinstance(x, (list, tuple)):
        return [l for it in x for l in lines(it)]
    return [x]


def atom(*items):
    return lambda: run(items)


def run(items):
    for it in lines(items):
        A(it) if isinstance(it, str) else it()


class Side:
    def __init__(self):
        self.q = {}

    def add(self, step, *items):
        self.q.setdefault(step, []).extend(lines(items))

    def spread(self, step0, per, items):
        flat = lines(items)
        for i, it in enumerate(flat):
            self.add(step0 + i // per, it)
        return step0 + (len(flat) + per - 1) // per

    def run(self, step, slots_left):
        q = self.q.get(step, [])
        n = -(-len(q) // slots_left)
        self.q[step] = q[n:]
        for it in q[:n]:
            A(it) if isinstance(it, str) else it()

    def left(self, lo=0, hi=999):
        return [k for k, v in self.q.items() if v and lo <= k < hi]


class Cap:
    def __enter__(self):
        self.save = A.L
        A.L = []
        return self

    def __exit__(self, *a):
        self.lines = [i.text for i in A.L]
        A.L = self.save


def check_tags(regs, reload, masked=False, x=None, y=None, inline=0):
    x, y = vT[4] if x is None else x, vT[3] if y is None else y
    if len(regs) <= 2:
        chk = [f'v_xor_b32 v{x}, s{sTag}, v{regs[0]}']
        for r in regs[1:]:
            chk += [f'v_xor_b32 v{y}, s{sTag}, v{r}', f'v_or_b32 v{x}, v{x}, v{y}']
        chk.append(f'v_cmp_lt_u32 vcc, 15, v{x}' if masked else f'v_cmp_ne_u32 vcc, 0, v{x}')
    else:
        assert not masked and len(regs) % 2 == 0
        chk = [f'v_min3_u32 v{x}, v{regs[0]}, v{regs[1]}, s{sTag}', f'v_max3_u32 v{y}, v{regs[0]}, v{regs[1]}, s{sTag}']
        for i in range(2, len(regs), 2):
            chk += [f'v_min3_u32 v{x}, v{x}, v{regs[i]}, v{regs[i + 1]}', f'v_max3_u32 v{y}, v{y}, v{regs[i]}, v{regs[i + 1]}']
        chk.append(f'v_cmp_ne_u32 vcc, v{x}, v{y}')
    lab, done = A.label('again'), A.label('ok')
    A.cond[lab] = lambda c: False
    if inline and OPT['inl']:
        if inline == 2:
            A.cond[done] = lambda c: True
            A('\n'.join(chk) + f'\ns_cbranch_vccz {done}')
        out = A.label('out')
        A.cond[out] = lambda c: False
        run([f'{lab}:'] + lines(reload) + [f's_sub_u32 s{sBud}, s{sBud}, 1', f's_cmp_gt_i32 s{sBud}, 0', 's_waitcnt vmcnt(0)']
            + chk + [f's_cbranch_scc0 {out}', f's_cbranch_vccnz {lab}', f'{out}:', f'{done}:'])
        return
    if inline == 1:
        run(lines(reload) + ['s_waitcnt vmcnt(0)'])
    A('\n'.join(chk) + f'\ns_cbranch_vccnz {lab}\n{done}:')
    TAIL.append('\n'.join([f'{lab}:', f's_sub_u32 s{sBud}, s{sBud}, 1', f's_cmp_gt_i32 s{sBud}, 0', f's_cbranch_scc0 {done}']
                          + lines(reload) + ['s_waitcnt vmcnt(0)'] + chk + [f's_cbranch_vccnz {lab}', f's_branch {done}']))


def mode_stores(ls, mode=sMode, through=False):
    if through:
        return run([(l + ' sc1') if l.startswith('buffer_store') else l for l in ls])
    slow, back = A.label('slow'), A.label('back')
    A.cond[slow] = lambda c: not c['fast'] or (mode != sMode and c['w'] == 2)
    A(f's_cmp_eq_u32 s{mode}, 0\ns_cbranch_scc1 {slow}')
    for l in ls:
        A(l)
    A(f'{back}:')
    TAIL.append(f'{slow}:\n' + '\n'.join((l + ' sc1') if l.startswith('buffer_store') else l for l in ls)
                + f'\ns_nop 1\ns_branch {back}')


def flag_store(soff, local, vm=None, mode=sMode):
    t = vT[4]
    A(f'v_mov_b32 v{t}, s{sTag}\ns_mov_b64 exec, 1')
    line = f'buffer_store_dword v{t}, off, {W}, {soff}'
    if local:
        mode_stores([line], mode)
    else:
        A(line + ' sc1')
    A('s_mov_b64 exec, -1')
    if vm is not None:
        vm.n += 1


def unpack(dst, src, n):
    out = []
    for i in range(n):
        out += [f'v_lshlrev_b32 v{dst + 2 * i}, 16, v{src + i}', f'v_and_b32 v{dst + 2 * i + 1}, 0xffff0000, v{src + i}']
    return out


def rnd_bf16(v):
    A(f'v_cvt_pk_bf16_f32 v{v}, v{v}, v{v}\nv_and_b32 v{v}, 0xffff0000, v{v}')


def cmul(dst, g, lam, add=None):
    if add is None:
        a = f'v_pk_mul_f32 {v2(dst)}, {v2(g)}, {v2(lam)} op_sel:[1,1] op_sel_hi:[0,1] neg_lo:[0,1]'
    else:
        a = f'v_pk_fma_f32 {v2(dst)}, {v2(g)}, {v2(lam)}, {v2(add)} op_sel:[1,1,0] op_sel_hi:[0,1,1] neg_lo:[0,1,0]'
    return [a, f'v_pk_fma_f32 {v2(dst)}, {v2(g)}, {v2(lam)}, {v2(dst)} op_sel:[0,0,0] op_sel_hi:[1,0,1]']


def park(name, v): A(f'v_accvgpr_write_b32 a{PARK[name]}, v{v}')
def unpark(name, v): return f'v_accvgpr_read_b32 v{v}, a{PARK[name]}'


def code_touch():
    return [f's_and_b32 vcc_lo, s{sJ}, 7', 's_lshl_b32 vcc_lo, vcc_lo, 2', f's_add_u32 vcc_lo, vcc_lo, s{sW}',
            's_lshl_b32 vcc_lo, vcc_lo, 11', f'v_lshl_add_u32 v{vT[4]}, v{vI}, 7, vcc_lo',
            f'v_min_u32 v{vT[4]}, L_codeend-L_pc-4, v{vT[4]}', 's_mov_b64 exec, 0xffff',
            f'global_load_dword a250, v{vT[4]}, {s2(sPC)}', 's_mov_b64 exec, -1']


def touch_addr(dst, segs):
    n = 0
    for cnt, code in segs:
        A(code.replace('$', f's{sT[0]}'))
        A(f's_sub_u32 s{sT[0]}, s{sT[0]}, {128 * n}')
        if n:
            A(f'v_cmp_lt_u32 vcc, {n - 1}, v{vL}\nv_mov_b32 v{vT[4]}, s{sT[0]}\nv_cndmask_b32 v{dst}, v{dst}, v{vT[4]}, vcc')
        else:
            A(f'v_mov_b32 v{dst}, s{sT[0]}')
        n += cnt
    A(f'v_lshl_add_u32 v{dst}, v{vL}, 7, v{dst}')
    return n


SEG_ST = (24, f's_lshl_b32 $, s{sR128}, 4\ns_add_u32 $, $, s{sMem}\ns_lshl_b32 $, $, 12\ns_add_u32 $, $, {WS_ST}')
SEG_F = (6, f's_lshl_b32 $, s{sR128}, 10\ns_add_u32 $, $, {WS_FU}')


def retouch():
    return atom(unpark('rt', vT[0]), f's_and_b32 exec_lo, s{sPub}, 0x3fffffff', 's_mov_b32 exec_hi, 0',
                f'buffer_load_dword a250, v{vT[0]}, {W}, 0 offen', 's_mov_b64 exec, -1')


def wbl2():
    A(f's_lshl_b32 vcc_lo, s{sJ}, 2\ns_add_u32 vcc_lo, vcc_lo, s{sW}\ns_cmp_lg_u32 vcc_lo, {OPT["wbw"]}')
    with A.skip_if('s_cbranch_scc1', lambda c: True):
        A('buffer_wbl2 sc1')


AF = 128
vAR, vAR2, vXd, vXd2, vBd, vBd2, vR, vSgn = 144, 145, 146, 147, 148, 149, 150, 151
CR, CI, CT, CTMP, vCd = 176, 180, 192 if OPT['cfs'] >= 0 else 128, 152, 174
vKV, vKS, vKR, vSR, vFX, vFXa = 169, 171, 172, 173, 184, 185
KK, VV, SKW, WW, AC, KT = 48, 70, 88, 96, 112, 216
OUT = [232, 236, 88, 92]
XP, XS = 48, 88
PAR = 229
KA, KB, vKO, vKP = 192, 204, 186, 163
vZ, vXT = 224, 242
RSL, vRS, CSL = 152, 160, 246
MM, RR = 88, 96
vFP, vFA = 188, 187


def x_dma(vm, p):
    s2i, m = p >> 1, p & 1
    A(f's_add_u32 m0, s{sXm}, {(p % 7) * 8192}\ns_add_u32 s{sT[3]}, s{sXs}, {4 * m * 1280 + s2i * 128}')
    vm(f'buffer_load_dwordx4 v{vXd}, {s4(R_X)}, s{sT[3]} offen lds')
    vm(f'buffer_load_dwordx4 v{vXd2}, {s4(R_X)}, s{sT[3]} offen offset:1024 lds', ('x', p))


def b_dma(vm, g, j, bd=vBd, bd2=vBd2):
    A(f's_add_u32 m0, s{sBm}, {g * 20480 + j * 2048}\ns_add_u32 s{sT[2]}, s{sBs}, {g * 256 + j * 10240}')
    vm(f'buffer_load_dwordx4 v{bd}, {s4(R_B)}, s{sT[2]} offen lds', ('b', g))
    if j < 4:
        vm(f'buffer_load_dwordx4 v{bd2}, {s4(R_B)}, s{sT[2]} offen offset:2048 lds', ('b', g))


def b_all(vm, g):
    t = vT
    srd(R_T1, P_BRE, 819200)
    A(f'v_xor_b32 v{t[0]}, 64, v{vBd}\nv_xor_b32 v{t[1]}, 64, v{vBd2}\ns_mul_i32 s{sT[3]}, s{sMem}, 51200')
    for hf in range(2):
        for j in (0, 2, 4):
            A(f's_add_u32 s{sT[2]}, s{sT[3]}, {g * 256 + hf * 128 + j * 10240}')
            for comp, (r, a, a2) in enumerate(((R_T1, t[0], t[1]), (R_B, vBd, vBd2))):
                A(f's_mov_b32 m0, {g * 20480 + hf * 10240 + j * 2048 + comp * 1024}')
                vm(f'buffer_load_dwordx4 v{a}, {s4(r)}, s{sT[2]} offen lds', ('b', g))
                if j < 4:
                    vm(f'buffer_load_dwordx4 v{a2}, {s4(r)}, s{sT[2]} offen offset:2048 lds', ('b', g))


def prologue():
    A('s_cmp_ge_u32 s2, 256\ns_cbranch_scc1 L_end')
    A.cond['L_end'] = lambda c: False
    if OPT['stamps'] or OPT['fixdur']:
        A(f's_memrealtime {s2(sSt)}\nv_mov_b32 v{vStamp}, 0')
    A('s_load_dwordx16 s[16:31], s[0:1], 0\ns_load_dwordx16 s[32:47], s[0:1], 64\n'
      's_load_dwordx4 s[48:51], s[0:1], 128')
    t = vT
    A(f'''v_and_b32 v{vL}, 63, v0
v_lshrrev_b32 v{t[0]}, 6, v0
v_lshlrev_b32 v{vL16}, 4, v{vL}
v_readfirstlane_b32 s{sW}, v{t[0]}
v_and_b32 v{vI}, 15, v{vL}
v_lshrrev_b32 v{vQ}, 4, v{vL}
s_and_b32 s{sT[0]}, s2, 7
s_lshr_b32 s{sT[1]}, s2, 3
s_getpc_b64 {s2(sPC)}
L_pc:
s_and_b32 s{sMem}, s{sT[1]}, 15
s_lshr_b32 s{sT[2]}, s{sT[1]}, 4
s_lshl_b32 s{sR128}, s{sT[0]}, 1
s_add_u32 s{sR128}, s{sR128}, s{sT[2]}
s_mov_b32 s{sG}, s{sT[0]}
s_mov_b32 s{sJ}, s{sT[1]}''')
    if OPT['prefetch'] & 1:
        A('\n'.join(code_touch()))
    A(f'''v_lshrrev_b32 v{t[0]}, 3, v{vL}
v_and_b32 v{t[2]}, 7, v{vL}
v_mul_u32_u24 v{vR}, 1280, v{t[0]}
v_lshl_add_u32 v{vR}, v{t[2]}, 4, v{vR}''')
    kv_src()
    A('s_waitcnt lgkmcnt(0)')
    if OPT['stamps']:
        A(f'v_writelane_b32 v{vStamp}, s{sSt}, 62')
        stamp('start')


def dma_addr():
    t = vT
    A(f'''v_lshrrev_b32 v{t[0]}, 3, v{vL}
v_and_b32 v{t[1]}, 6, v{t[0]}
v_and_b32 v{t[2]}, 7, v{vL}
s_movk_i32 s{sT[3]}, 0x78
v_bfe_u32 v{t[3]}, s{sT[3]}, v{t[1]}, 2
v_xor_b32 v{t[3]}, v{t[3]}, v{t[2]}
v_mul_u32_u24 v{vXd}, 1280, v{t[0]}
v_lshl_add_u32 v{vBd}, v{t[3]}, 4, v{vXd}
s_and_b32 s{sT[0]}, s{sW}, 1
s_lshl_b32 s{sT[1]}, s{sT[0]}, 6
v_xor_b32 v{vBd}, s{sT[1]}, v{vBd}
v_add_u32 v{vBd2}, {10240 - 2048}, v{vBd}
v_xor_b32 v{t[1]}, v{t[1]}, v{t[2]}
v_and_b32 v{t[0]}, 4, v{t[0]}
v_mul_u32_u24 v{t[0]}, 1280, v{t[0]}
v_lshl_add_u32 v{t[0]}, v{t[1]}, 4, v{t[0]}
v_add_u32 v{vXd}, v{t[0]}, v{vXd}
v_add_u32 v{vXd2}, {20480 - 1024}, v{vXd}
s_lshr_b32 s{sT[1]}, s{sW}, 1
s_mul_i32 s{sBm}, s{sT[1]}, 10240
s_lshl_b32 s{sT[0]}, s{sT[0]}, 10
s_add_u32 s{sBm}, s{sBm}, s{sT[0]}
s_mul_i32 s{sBs}, s{sMem}, 51200
s_lshl_b32 s{sT[1]}, s{sT[1]}, 7
s_add_u32 s{sBs}, s{sBs}, s{sT[1]}
s_lshl_b32 s{sXs}, s{sR128}, 2
s_add_u32 s{sXs}, s{sXs}, s{sW}
s_mul_i32 s{sXs}, s{sXs}, 40960
s_lshl_b32 s{sXm}, s{sW}, 11
s_add_u32 s{sXm}, s{sXm}, {L_AR}''')
    A(f'''s_bitcmp1_b32 s{sW}, 0
s_cselect_b32 s{R_B}, s{P_BIM}, s{P_BRE}
s_cselect_b32 s{R_B + 1}, s{P_BIM + 1}, s{P_BRE + 1}
s_and_b32 s{R_B + 1}, s{R_B + 1}, 0xffff
s_mov_b32 s{R_B + 2}, 819200
s_mov_b32 s{R_B + 3}, 0x20000
s_bitcmp1_b32 s{sR128}, 3
s_cselect_b32 s{R_T0}, s{P_BIM}, s{P_BRE}
s_cselect_b32 s{R_T0 + 1}, s{P_BIM + 1}, s{P_BRE + 1}
s_and_b32 s{R_T0 + 1}, s{R_T0 + 1}, 0xffff
s_mov_b32 s{R_T0 + 2}, 819200
s_mov_b32 s{R_T0 + 3}, 0x20000''')
    srd(R_X, P_X, 2621440)
    srd(R_WS, P_WS, WS_SIZE)


def kv_src():
    A(f'''s_mul_i32 s{sT[0]}, s{sJ}, 81920
s_lshl_b32 s{sT[1]}, s{sG}, 7
s_add_u32 s{sT[0]}, s{sT[0]}, s{sT[1]}
v_add_u32 v{vKV}, s{sT[0]}, v{vR}
s_lshl_b32 s{sX[8]}, s{sG}, 5
s_add_u32 s{sX[8]}, s{sX[8]}, s{sJ}
s_mul_i32 s{sT[0]}, s{sX[8]}, 10240
s_add_u32 s{sT[0]}, s{sT[0]}, 1024
v_add_u32 v{vKV + 1}, s{sT[0]}, v{vR}''')


def kv_addr():
    t = vT
    A(f'''v_lshrrev_b32 v{t[0]}, 3, v{vL}
v_and_b32 v{t[1]}, 7, v{vL}
v_mul_u32_u24 v{t[2]}, 1056, v{t[1]}
v_lshl_add_u32 v{t[2]}, v{t[0]}, 3, v{t[2]}
s_lshl_b32 s{sT[0]}, s{sW}, 6
s_add_u32 s{sT[0]}, s{sT[0]}, {L_SK}
v_add_u32 v{vKR}, s{sT[0]}, v{t[2]}
s_lshl_b32 s{sT[0]}, s{sW}, 8
s_add_u32 s{sT[0]}, s{sT[0]}, {L_SS}
v_lshl_add_u32 v{vSR}, v{t[0]}, 5, s{sT[0]}
v_sub_u32 v{t[2]}, 7, v{t[1]}
v_lshlrev_b32 v{t[2]}, 4, v{t[2]}
v_lshl_add_u32 v{vKS}, v{t[0]}, 14, v{t[2]}
s_mul_i32 s{sT[0]}, s{sG}, 80
s_lshl_b32 s{sT[1]}, s{sW}, 5
s_add_u32 s{sT[0]}, s{sT[0]}, s{sT[1]}
s_lshl_b32 s{sT[0]}, s{sT[0]}, 12
s_lshl_b32 s{sT[1]}, s{sJ}, 7
s_sub_u32 s{sT[0]}, s{sT[0]}, s{sT[1]}
s_add_u32 s{sX[0]}, s{sT[0]}, {WS_KV + 3968}
s_add_u32 s{sKf}, s{sFK}, {WS_FK}
s_movk_i32 s{sKs}, 4096
s_cmp_lg_u32 s{sW}, 2''')
    with A.skip_if('s_cbranch_scc1', lambda c: c['w'] != 2):
        A(f'''v_bfe_u32 v{t[2]}, v{vL}, 4, 1
v_mul_u32_u24 v{t[2]}, 2112, v{t[2]}
v_and_b32 v{t[3]}, 15, v{vL}
v_lshl_add_u32 v{t[2]}, v{t[3]}, 3, v{t[2]}
v_add_u32 v{vKR}, {L_SK + 9 * 1056}, v{t[2]}
v_and_b32 v{t[2]}, 31, v{vL}
v_lshlrev_b32 v{t[2]}, 5, v{t[2]}
v_add_u32 v{vSR}, {L_SS2}, v{t[2]}
v_cmp_gt_u32 vcc, 32, v{vL}
v_mov_b32 v{t[3]}, {OOB}
s_lshl_b32 s{sX[0]}, s{sX[8]}, 11
s_add_u32 s{sX[0]}, s{sX[0]}, {WS_KB}
v_cndmask_b32 v{vKS}, v{t[3]}, v{vL16}, vcc
s_lshl_b32 s{sKf}, s{sX[8]}, 2
s_add_u32 s{sKf}, s{sKf}, {WS_FB}
s_movk_i32 s{sKs}, 512''')


def kv_dma(vm, r, a, so, pos, halo=False):
    if halo:
        A(f'v_subrev_u32 v{vT[0]}, 10240, v{a}\ns_mov_b32 exec_lo, 0\ns_mov_b32 exec_hi, 0xffffff00')
    A(f's_mov_b32 m0, {L_SK + pos * 1056}')
    if so > 64:
        A(f's_mov_b32 s{sT[0]}, {so}')
    vm(f'buffer_load_dwordx4 v{vT[0] if halo else a}, {s4(r)}, {"s%d" % sT[0] if so > 64 else so} offen{NT} lds', 'kv')
    if halo:
        A('s_mov_b64 exec, -1')


def kv_loads0(vm):
    srd(R_T0, P_K, 2621440)
    for p in range(1, 8):
        kv_dma(vm, R_T0, vKV, (p - 1) * 10240, p)
    kv_dma(vm, R_T0, vKV, 0, 0, True)


def kv_loads1(vm):
    srd(R_T1, P_V, 2621440)
    for p in range(1, 9):
        kv_dma(vm, R_T1, vKV, (p - 1) * 10240, 12 + p)


def kv_loads2(vm):
    srd(R_T0, P_K, 2621440)
    srd(R_T1, P_V, 2621440)
    kv_dma(vm, R_T0, vKV, 7 * 10240, 8)
    for hf in range(2):
        kv_dma(vm, R_T0, vKV + 1, 128 * hf, 10 + 2 * hf)
        kv_dma(vm, R_T1, vKV + 1, 128 * hf, 22 + 2 * hf)
    for hf in range(2):
        kv_dma(vm, R_T0, vKV + 1, 128 * hf, 9 + 2 * hf, True)
    srd(R_T1, P_SK, 5120)
    A(f's_mov_b32 m0, {L_SS2}\ns_movk_i32 s{sT[0]}, 4096')
    vm(f'buffer_load_dwordx4 v{vL16}, {s4(R_T1)}, s{sT[0]} offen{NT} lds', 'kv')
    A(f's_mov_b32 m0, {L_SS}\ns_lshl_b32 s{sT[0]}, s{sG}, 9\ns_mov_b32 exec_hi, 0')
    vm(f'buffer_load_dwordx4 v{vL16}, {s4(R_T1)}, s{sT[0]} offen{NT} lds', 'kv')
    A('s_mov_b32 exec_hi, -1')


def c_loads(vm):
    t = vT
    A(f'''v_mul_u32_u24 v{t[0]}, 171, v{vL}
v_lshrrev_b32 v{t[0]}, 11, v{t[0]}
v_mul_u32_u24 v{t[1]}, 12, v{t[0]}
v_sub_u32 v{t[1]}, v{vL}, v{t[1]}
s_mul_i32 s{sT[0]}, s{sMem}, 5
v_min_u32 v{t[2]}, 4, v{t[0]}
v_add_u32 v{t[2]}, s{sT[0]}, v{t[2]}
s_mul_i32 s{sT[1]}, s{sW}, 12
v_add_u32 v{t[1]}, s{sT[1]}, v{t[1]}
v_cmp_gt_u32 vcc, 40, v{t[1]}
v_cmp_gt_u32 {s2(sT[2])}, 5, v{t[0]}
s_lshr_b32 s{sT[1]}, s{sJ}, 4
s_mul_i32 s{sT[1]}, s{sT[1]}, 40
v_min_u32 v{t[1]}, 39, v{t[1]}
s_and_b64 vcc, vcc, {s2(sT[2])}
v_add_u32 v{t[1]}, s{sT[1]}, v{t[1]}
s_mul_i32 s{sT[2]}, s{sG}, 102400
v_mul_u32_u24 v{t[3]}, 1280, v{t[1]}
v_lshl_add_u32 v{t[3]}, v{t[2]}, 4, v{t[3]}
v_add_u32 v{t[3]}, s{sT[2]}, v{t[3]}''')
    if OPT['dbg'] & 16:
        A(f'v_mov_b32 v{t[3]}, v{vL16}')
    vm(f'global_load_dwordx4 {v4(CR)}, v{t[3]}, {s2(P_CRE)}{NT}')
    vm(f'global_load_dwordx4 {v4(CI)}, v{t[3]}, {s2(P_CIM)}{NT}', 'craw')
    A(f'''v_lshrrev_b32 v{t[3]}, 2, v{t[2]}
v_mul_u32_u24 v{t[3]}, 10240, v{t[3]}
v_and_b32 v{t[2]}, 3, v{t[2]}
v_lshl_add_u32 v{t[3]}, v{t[2]}, 8, v{t[3]}
v_lshrrev_b32 v{t[2]}, 4, v{t[1]}
v_lshl_add_u32 v{t[3]}, v{t[2]}, 10, v{t[3]}
v_and_b32 v{t[1]}, 15, v{t[1]}
v_lshl_add_u32 v{t[3]}, v{t[1]}, 4, v{t[3]}
v_mov_b32 v{t[2]}, {OOB}
v_cndmask_b32 v{vCd}, v{t[2]}, v{t[3]}, vcc
v_min_u32 v{t[0]}, 4, v{t[0]}
v_lshlrev_b32 v{t[0]}, 6, v{t[0]}
v_add_u32 v{vCd + 1}, {L_C}, v{t[0]}''')


def cf_work(vm, lg):
    it = [lambda d=d: lg(f'ds_read_b128 {v4(CT + 4 * d)}, v{vCd + 1} offset:{16 * d}', 'ctab') for d in range(4)]
    it.append(lambda: (vm.wait('craw'), lg.wait('ctab')))
    r, i, o = CTMP, CTMP + 2, CTMP + 4
    for d in range(4):
        cr, ci = v2(CT + 4 * d), v2(CT + 4 * d + 2)
        it += unpack(r, CR + d, 1) + unpack(i, CI + d, 1)
        it += [f'v_pk_mul_f32 {v2(o)}, {v2(r)}, {cr}',
               f'v_pk_mul_f32 {v2(o + 2)}, {v2(r)}, {ci} neg_lo:[0,1] neg_hi:[0,1]',
               f'v_pk_fma_f32 {v2(o)}, {v2(i)}, {ci}, {v2(o)} neg_lo:[0,1,0] neg_hi:[0,1,0]',
               f'v_pk_fma_f32 {v2(o + 2)}, {v2(i)}, {cr}, {v2(o + 2)} neg_lo:[0,1,0] neg_hi:[0,1,0]',
               f'v_cvt_pk_bf16_f32 v{CR + d}, v{o}, v{o + 1}',
               f'v_cvt_pk_bf16_f32 v{CI + d}, v{o + 2}, v{o + 3}']
    it.append(atom(f's_mul_i32 s{sT[0]}, s{sG}, 204800', f's_add_u32 s{sT[0]}, s{sT[0]}, {WS_CF}',
                   f's_add_u32 s{sT[1]}, s{sT[0]}, 5120',
                   lambda: vm(f'buffer_store_dwordx4 {v4(CR)}, v{vCd}, {W}, s{sT[0]} offen sc1'),
                   lambda: vm(f'buffer_store_dwordx4 {v4(CI)}, v{vCd}, {W}, s{sT[1]} offen sc1', 'cfst')))
    return it


def consts():
    lre, lim, ldt = PAR, PAR + 1, PAR + 2
    t = 96
    zr, zi, e, rev, sn, cs = t, t + 1, t + 2, t + 3, t + 4, t + 5
    aL, aV, aC = t + 6, t + 7, t + 8
    P = t + 10
    V = ACC
    Wt = 84
    A(f'''v_lshlrev_b32 v{lre}, 16, v{lre}
v_lshlrev_b32 v{lim}, 16, v{lim}
v_lshlrev_b32 v{ldt}, 16, v{ldt}
v_mul_f32 v{ldt}, 0x3fb8aa3b, v{ldt}
v_exp_f32 v{ldt}, v{ldt}
v_min_u32 v{aC}, 39, v{vL}
v_mul_u32_u24 v{aL}, 80, v{aC}
v_mul_u32_u24 v{aV}, 176, v{aC}''')
    rnd_bf16(ldt)
    A(f'''v_mul_f32 v{zr}, v{ldt}, v{lre}
v_mul_f32 v{zi}, v{ldt}, v{lim}
v_mul_f32 v{zr}, 0x3fb8aa3b, v{zr}
v_mul_f32 v{zi}, 0x3e22f983, v{zi}''')
    for kf, dst in (('1.0', P), ('0x41000000', V + 2)):
        A(f'''v_mul_f32 v{e}, {kf}, v{zr}
v_mul_f32 v{rev}, {kf}, v{zi}
v_exp_f32 v{e}, v{e}
v_fract_f32 v{rev}, v{rev}
v_sin_f32 v{sn}, v{rev}
v_cos_f32 v{cs}, v{rev}
v_mul_f32 v{dst + 1}, v{e}, v{sn}
v_mul_f32 v{dst}, v{e}, v{cs}''')
    A(f'''v_mul_f32 v{e}, v{lre}, v{lre}
v_fmac_f32 v{e}, v{lim}, v{lim}
v_rcp_f32 v{e}, v{e}
v_add_f32 v{rev}, -1.0, v{P}
v_add_f32 v{e}, v{e}, v{e}
v_mul_f32 v{sn}, v{rev}, v{lre}
v_fmac_f32 v{sn}, v{P + 1}, v{lim}
v_mul_f32 v{cs}, v{P + 1}, v{lre}
v_fma_f32 v{cs}, -v{rev}, v{lim}, v{cs}
v_mul_f32 v{sn}, v{e}, v{sn}
v_mul_f32 v{cs}, v{e}, v{cs}
v_and_b32 v{e}, 1, v{aC}
v_lshrrev_b32 v{aC}, 1, v{aC}
v_lshlrev_b32 v{aC}, 4, v{aC}
v_lshl_add_u32 v{aC}, v{e}, 2, v{aC}
v_add_u32 v{aC}, {L_C}, v{aC}
v_add_u32 v{aL}, {L_L}, v{aL}
v_add_u32 v{aV}, {L_V}, v{aV}
ds_write2_b32 v{aC}, v{sn}, v{cs} offset0:0 offset1:2
s_waitcnt lgkmcnt(0)
v_mov_b32 v{V}, 1.0
v_mov_b32 v{V + 1}, 0
v_mov_b32 v{Wt}, 1.0
v_mov_b32 v{Wt + 1}, 0''')
    a = [cmul(P + 2 * k, P + 2 * k - 2, P) for k in range(1, 7)]
    b = [cmul(V + 2 * s, V + 2 * s - 2, V + 2) for s in range(2, 17)]
    for s, ops in enumerate(b):
        A(ops[0])
        if s < len(a):
            A(a[s][0])
        A(ops[1])
        if s < len(a):
            A(a[s][1])
        if 6 <= s < 13:
            k = s - 6
            A(f'ds_write2_b32 v{aL}, v{P + 2 * k}, v{P + 2 * k + 1} offset0:{k} offset1:{8 + k}')
        if s % 2 == 1:
            A(f'ds_write_b128 v{aV}, {v4(V + 2 * (s - 1))} offset:{8 * (s - 1)}')
    A(f'ds_write2_b32 v{aL}, v{V + 2}, v{V + 3} offset0:7 offset1:15')
    A(f'ds_write_b128 v{aV}, {v4(V + 28)} offset:112')
    A('\n'.join(cmul(e, V + 32, V + 32) + cmul(Wt + 2, e, e) + cmul(Wt + 4, Wt + 2, Wt + 2) + cmul(Wt + 6, Wt + 4, Wt + 2)))
    A(f'''ds_write_b64 v{aV}, {v2(V + 32)} offset:128
ds_write_b128 v{aV}, {v4(Wt)} offset:144
ds_write_b128 v{aV}, {v4(Wt + 4)} offset:160''')


def const_reads(lg):
    t = vT
    it = lines(f'''v_lshrrev_b32 v{t[0]}, 1, v{vI}
v_mul_u32_u24 v{t[1]}, 176, v{t[0]}
v_mul_u32_u24 v{t[0]}, 80, v{t[0]}
v_and_b32 v{t[2]}, 1, v{vI}
v_lshl_add_u32 v{t[1]}, v{t[2]}, 2, v{t[1]}
v_lshl_add_u32 v{t[1]}, v{vQ}, 3, v{t[1]}
s_lshl_b32 s{sT[0]}, s{sW}, 5
s_add_u32 s{sT[0]}, s{sT[0]}, {L_V}
v_add_u32 v{t[1]}, s{sT[0]}, v{t[1]}
v_add_u32 v{t[0]}, {L_L}, v{t[0]}
v_cvt_f32_u32 v{vSgn}, v{t[2]}
v_min_u32 v{t[2]}, 39, v{vL}
v_mul_u32_u24 v{t[2]}, 176, v{t[2]}
v_fma_f32 v{vSgn}, 2.0, v{vSgn}, -1.0
v_add_u32 v{t[2]}, {L_V}, v{t[2]}
s_lshl_b32 s{sT[0]}, s{sW}, 3''')
    for j in range(5):
        it.append(lambda j=j: lg(f'ds_read_b32 v{LR + j}, v{t[0]} offset:{j * 640}'))
        it.append(lambda j=j: lg(f'ds_read_b32 v{LS + j}, v{t[0]} offset:{j * 640 + 32}'))
        it.append(lambda j=j: lg(f'ds_read_b32 v{VA + 2 * j}, v{t[1]} offset:{j * 1408}'))
    it.append(lambda: lg(f'ds_read_b64 {v2(mL8)}, v{t[2]} offset:8'))
    it.append(lambda: lg(f'ds_read_b64 {v2(mL128)}, v{t[2]} offset:128'))
    it.append(f'v_add_u32 v{t[2]}, s{sT[0]}, v{t[2]}')
    it.append(lambda: lg(f'ds_read_b64 {v2(mW)}, v{t[2]} offset:144', 'cst'))
    fix = [lambda: lg.wait('cst')]
    for j in range(5):
        fix += [f'v_mul_f32 v{LS + j}, v{vSgn}, v{LS + j}',
                f'v_mul_f32_dpp v{VA + 2 * j + 1}, v{VA + 2 * j}, v{vSgn} {SWP}']
    return it, fix


def kv_work(vm, lg):
    rd = [lambda: lg(f'ds_read_b128 {v4(SKW)}, v{vSR}'), lambda: lg(f'ds_read_b128 {v4(SKW + 4)}, v{vSR} offset:16', 'skw')]
    for r in range(11):
        off = 1056 + (r - 3) * 128 if r >= 3 else (5 + r) * 128
        rd.append(lambda r=r, off=off: lg(f'ds_read_b64 {v2(KK + 2 * r)}, v{vKR} offset:{off}', 'kk'))
    for r in range(8):
        rd.append(lambda r=r: lg(f'ds_read_b64 {v2(VV + 2 * r)}, v{vKR} offset:{VOFF + 1056 + r * 128}', 'vv'))
    it = [lambda: lg.wait('skw')]
    for e in range(4):
        for i in range(4):
            src = SKW + 2 * e + (i >> 1)
            it.append(f'v_and_b32 v{WW + 4 * i + e}, 0xffff0000, v{src}' if i & 1 else
                      f'v_lshlrev_b32 v{WW + 4 * i + e}, 16, v{src}')
    it.append(lambda: lg.wait('kk'))
    for d in range(2):
        pend = []
        for r in range(11):
            tmp = KT + 2 * (r % 2)
            it += unpack(tmp, KK + 2 * r + d, 1) if r == 0 else []
            nxt = unpack(KT + 2 * ((r + 1) % 2), KK + 2 * (r + 1) + d, 1) if r < 10 else []
            ops = []
            for stage in range(4):
                ta = r - stage
                if 0 <= ta < 8:
                    w = v2(WW + 4 * (3 - stage) + 2 * d)
                    ac = v2(AC + 2 * ta)
                    ops.append(f'v_pk_mul_f32 {ac}, {v2(tmp)}, {w}' if stage == 0 else
                               f'v_pk_fma_f32 {ac}, {v2(tmp)}, {w}, {ac}')
            it += ops[:1] + nxt + ops[1:]
        it.append(lambda: lg.wait('vv'))
        for ta in range(8):
            tmp = KT + 4 + 2 * (ta % 2)
            it += unpack(tmp, VV + 2 * ta + d, 1) + pend
            pend = [f'v_pk_mul_f32 {v2(AC + 2 * ta)}, {v2(AC + 2 * ta)}, {v2(tmp)}']
        it += pend
        for eo in range(2):
            for dd in range(4):
                it.append(f'v_cvt_pk_bf16_f32 v{OUT[2 * d + eo] + dd}, v{AC + 2 * (7 - 2 * dd) + eo}, '
                          f'v{AC + 2 * (6 - 2 * dd) + eo}')

    def st():
        ls = []
        for e in range(4):
            if e:
                ls.append(f's_add_u32 s{sX[0]}, s{sX[0]}, s{sKs}')
            ls.append(f'buffer_store_dwordx4 {v4(OUT[e])}, v{vKS}, {W}, s{sX[0]} offen')
        mode_stores(ls, sKm, OPT['thr'] & 1)
        vm.n += 4
        vm.t['kvst'] = vm.n
    it.append(st)
    return rd, it


def stats_work(vm):
    S, Q, ad = XS, XS + 2, vT[0]
    it = [lambda: vm.wait('xp')]
    for i in range(40):
        it.append(f'v_dot2_f32_bf16 v{S}, v{XP + i}, s{sOnes}, ' + (f'v{S}' if i else '0'))
        it.append(f'v_dot2_f32_bf16 v{Q}, v{XP + i}, v{XP + i}, ' + (f'v{Q}' if i else '0'))
    with Cap() as c:
        for mod in ('quad_perm:[1,0,3,2]', 'quad_perm:[2,3,0,1]', 'row_half_mirror'):
            A(f'v_add_f32_dpp v{S}, v{S}, v{S} {mod} {DPPM}')
            A(f'v_add_f32_dpp v{Q}, v{Q}, v{Q} {mod} {DPPM}')
        inv = 0x3acccccd
        A(f'''v_mul_f32 v{S}, {inv:#x}, v{S}
v_mul_f32 v{Q}, {inv:#x}, v{Q}
v_fma_f32 v{Q}, -v{S}, v{S}, v{Q}
v_max_f32 v{Q}, 0, v{Q}''')
        rnd_bf16(S)
        rnd_bf16(Q)
        A(f'v_add_f32 v{Q}, 0x3727c5ac, v{Q}')
        rnd_bf16(Q)
        A(f'v_sqrt_f32 v{Q}, v{Q}')
        rnd_bf16(Q)
        A(f'''v_rcp_f32 v{S + 1}, v{Q}
v_mov_b32 v{Q}, s{sTag}
v_mov_b32 v{Q + 1}, s{sTag}''')

    def st():
        A(f'''v_lshlrev_b32 v{ad}, 1, v{vL}
s_lshl_b32 s{sT[0]}, s{sR128}, 4
s_add_u32 s{sT[0]}, s{sT[0]}, s{sMem}
s_lshl_b32 s{sT[0]}, s{sT[0]}, 7
s_add_u32 s{sT[0]}, s{sT[0]}, {WS_RS}
s_mov_b32 exec_lo, 0x01010101
s_mov_b32 exec_hi, 0x01010101''')
        vm(f'buffer_store_dwordx4 {v4(S)}, v{ad}, {W}, s{sT[0]} offen sc1')
        A('s_mov_b64 exec, -1')
    return it + c.lines + [st]


def colsum_work(vm):
    cs = XS
    it = [lambda: vm.wait('xp')]
    for i in range(40):
        it.append(f'v_dot2_f32_bf16 v{cs + (i & 1)}, v{XP + i}, s{sOnes}, ' + (f'v{cs + (i & 1)}' if i > 1 else '0'))
    it.append(f'v_add_f32 v{cs}, v{cs}, v{cs + 1}')
    for mod in ('quad_perm:[1,0,3,2]', 'quad_perm:[2,3,0,1]', 'row_half_mirror'):
        it.append(f'v_add_f32_dpp v{cs}, v{cs}, v{cs} {mod} {DPPM}')

    def st():
        A(f"""v_mov_b32 v{cs + 1}, s{sTag}
v_lshlrev_b32 v{vT[0]}, 1, v{vL}
s_lshl_b32 s{sT[0]}, s{sMem}, 3
s_and_b32 s{sT[1]}, s{sR128}, 7
s_add_u32 s{sT[0]}, s{sT[0]}, s{sT[1]}
s_mul_i32 s{sT[0]}, s{sT[0]}, 80
s_and_b32 s{sT[1]}, s{sR128}, 8
s_add_u32 s{sT[0]}, s{sT[0]}, s{sT[1]}
s_add_u32 s{sT[0]}, s{sT[0]}, {WS_CS}
s_mov_b32 exec_lo, 0x01010101
s_mov_b32 exec_hi, 1""")
        vm(f'buffer_store_dwordx2 {v2(cs)}, v{vT[0]}, {W}, s{sT[0]} offen sc1')
        A('s_mov_b64 exec, -1')
    return it + [st]


def fx_store(mods):
    A(f"""s_lshl_b32 s{sT[0]}, s{sG}, 11
s_lshl_b32 s{sT[1]}, s{sJ}, 2
s_add_u32 s{sT[0]}, s{sT[0]}, s{sT[1]}
s_add_u32 s{sT[0]}, s{sT[0]}, {WS_FX}
s_or_b32 s{sT[1]}, s{sTag}, s{sXcc}
v_mov_b32 v{vT[4]}, s{sT[1]}
s_mov_b64 exec, 1
buffer_store_dword v{vT[4]}, off, {W}, s{sT[0]}{mods}
s_mov_b64 exec, -1""")


def mode_check(vm):
    t, x, fa, so = vFX, vT[4], vFXa, sX[2]
    vm.wait('fx')
    lab, done = A.label('again'), A.label('ok')
    A.cond[lab] = lambda c: False
    A(f"""v_xor_b32 v{x}, s{sTag}, v{t}
v_cmp_lt_u32 vcc, 15, v{x}
s_cbranch_vccnz {lab}
{done}:""")
    TAIL.append(f"""{lab}:
s_sub_u32 s{sBud}, s{sBud}, 1
s_cmp_gt_i32 s{sBud}, 0
s_cbranch_scc0 {done}
buffer_load_dword v{t}, v{fa}, {W}, s{so} offen sc1
s_waitcnt vmcnt(0)
v_xor_b32 v{x}, s{sTag}, v{t}
v_cmp_lt_u32 vcc, 15, v{x}
s_cbranch_vccz {done}
s_and_b32 s{sT[1]}, s{sBud}, 3
s_cbranch_scc1 {lab}
buffer_load_dword v{t}, v{fa}, {W}, s{so} offen offset:128 sc1
s_waitcnt vmcnt(0)
v_xor_b32 v{x}, s{sTag}, v{t}
v_cmp_lt_u32 vcc, 15, v{x}
s_cbranch_vccnz {lab}
s_branch {done}""")
    A(f"""s_or_b32 s{sT[1]}, s{sTag}, s{sXcc}
v_cmp_ne_u32 vcc, s{sT[1]}, v{t}
s_cmp_eq_u64 vcc, 0
s_cselect_b32 s{sMode}, {0 if OPT['force_slow'] else 1}, 0
s_cmp_eq_u32 s{sW}, 2
s_cselect_b32 s{sKm}, 0, s{sMode}""")


def gemm_addr():
    t = vT
    A(f"""v_and_b32 v{t[0]}, 1, v{vI}
v_lshrrev_b32 v{t[1]}, 1, v{vI}
v_and_b32 v{t[2]}, 6, v{t[1]}
s_movk_i32 s{sT[3]}, 0x78
v_bfe_u32 v{t[2]}, s{sT[3]}, v{t[2]}, 2
v_xor_b32 v{t[2]}, v{t[2]}, v{vQ}
v_lshl_add_u32 v{t[2]}, v{t[0]}, 2, v{t[2]}
v_lshlrev_b32 v{t[2]}, 4, v{t[2]}
v_lshl_add_u32 v{t[2]}, v{t[1]}, 7, v{t[2]}
v_lshl_add_u32 v{vBA[0]}, v{t[0]}, 10, v{t[2]}
v_xor_b32 v{vBA[1]}, 64, v{vBA[0]}
v_add_u32 v{vBA[2]}, 51200, v{vBA[0]}
v_add_u32 v{vBA[3]}, 51200, v{vBA[1]}
v_mul_u32_u24 v{vAS}, 144, v{t[1]}
v_lshl_add_u32 v{vAS}, v{t[0]}, 2, v{vAS}
v_lshl_add_u32 v{vAS}, v{vQ}, 3, v{vAS}
s_lshl_b32 s{sT[0]}, s{sW}, 5
v_add_u32 v{vAS}, s{sT[0]}, v{vAS}
v_and_b32 v{t[0]}, 6, v{vI}
v_xor_b32 v{t[0]}, v{t[0]}, v{vQ}
v_lshlrev_b32 v{t[0]}, 4, v{t[0]}
v_lshl_add_u32 v{t[0]}, v{vI}, 7, v{t[0]}
v_add_u32 v{vAR}, s{sXm}, v{t[0]}
v_xor_b32 v{vAR2}, 64, v{vAR}""")


def misc_setup():
    t = vT
    A(f'''s_lshr_b32 s{sCs}, s{sX[8]}, 1
s_add_u32 s{sCs}, s{sCs}, 512
s_lshr_b32 s{sT[2]}, s{sMem}, 3
s_lshl_b32 s{sR64}, s{sR128}, 1
s_add_u32 s{sR64}, s{sR64}, s{sT[2]}
s_and_b32 s{sS8}, s{sMem}, 7
s_lshl_b32 s{sFW}, s{sR128}, 10
s_lshl_b32 s{sT[1]}, s{sMem}, 4
s_add_u32 s{sFW}, s{sFW}, s{sT[1]}
s_lshl_b32 s{sT[1]}, s{sW}, 2
s_add_u32 s{sFW}, s{sFW}, s{sT[1]}
s_lshl_b32 s{sFK}, s{sG}, 11
s_add_u32 s{sFK}, s{sFK}, s{sT[1]}
s_lshl_b32 s{sT[1]}, s{sJ}, 4
s_add_u32 s{sFK}, s{sFK}, s{sT[1]}
s_lshl_b32 s{sAgg}, s{sMem}, 5
s_add_u32 s{sAgg}, s{sAgg}, s{sR128}
s_mul_i32 s{sAgg}, s{sAgg}, 640
s_add_u32 s{sAgg}, s{sAgg}, {WS_AGG}
s_cmp_eq_u32 s{sW}, 0
s_cselect_b32 s{sPub}, -1, 0
s_cselect_b32 s{sPub + 1}, 0xff, 0''')
    A(f's_lshl_b32 s{sT[0]}, s{sXs}, 1\ns_mul_i32 s{sT[1]}, s{sMem}, 5')
    for j in range(5):
        A(f"""s_add_u32 s{sT[2]}, s{sT[1]}, {j}
s_lshr_b32 s{sT[3]}, s{sT[2]}, 2
s_lshl_b32 s{sT[3]}, s{sT[3]}, 11
s_and_b32 s{sT[2]}, s{sT[2]}, 3
s_lshl_b32 s{sT[2]}, s{sT[2]}, 8
s_add_u32 s{sT[2]}, s{sT[2]}, s{sT[3]}
s_add_u32 s{sH[j]}, s{sT[2]}, s{sT[0]}""")
    tw, tr, ts = vU[0], vU[1], vU[2]
    A(f'''s_mul_i32 s{sT[0]}, s{sW}, 1280
s_add_u32 s{sT[0]}, s{sT[0]}, {L_TR}
v_mul_u32_u24 v{t[0]}, 80, v{vI}
v_lshl_add_u32 v{t[0]}, v{vQ}, 4, v{t[0]}
v_add_u32 v{tw}, s{sT[0]}, v{t[0]}
v_bfe_u32 v{t[1]}, v{vL}, 2, 2
v_mul_u32_u24 v{t[1]}, 160, v{t[1]}
v_and_b32 v{t[2]}, 3, v{vL}
v_lshl_add_u32 v{t[1]}, v{t[2]}, 4, v{t[1]}
v_lshrrev_b32 v{t[2]}, 1, v{vQ}
v_mul_u32_u24 v{t[3]}, 80, v{t[2]}
v_lshlrev_b32 v{t[2]}, 10, v{t[2]}
v_add3_u32 v{t[1]}, v{t[1]}, v{t[3]}, s{sT[0]}
v_and_b32 v{t[3]}, 1, v{vQ}
v_lshl_add_u32 v{tr}, v{t[3]}, 3, v{t[1]}
v_mul_u32_u24 v{t[3]}, 40960, v{t[3]}
v_lshl_add_u32 v{t[2]}, v{vI}, 4, v{t[2]}
v_add_u32 v{ts}, v{t[2]}, v{t[3]}''')
    park('tw', tw), park('tr', tr), park('ts', ts), park('bd', vBd), park('bd2', vBd2)
    A(f'''v_lshrrev_b32 v{t[0]}, 2, v{vI}
v_mul_u32_u24 v{t[0]}, 5120, v{t[0]}
v_and_b32 v{t[1]}, 3, v{vI}
v_lshl_add_u32 v{t[0]}, v{t[1]}, 4, v{t[0]}
v_lshl_add_u32 v{vUA}, v{vQ}, 6, v{t[0]}''')


def weave(items, extra, first, every):
    extra = list(extra)
    for i, it in enumerate(lines(items)):
        run(it)
        if extra and i >= first and (i - first) % every == 0:
            run(extra.pop(0))
    run(extra)


class Roles:
    def __init__(self, n):
        self.c = [VM() for _ in range(n)]

    def __call__(self, text, name=None):
        A(text)
        for c in self.c:
            c.n += 1
            if name is not None:
                c.t[name] = c.n

    def wait(self, *names):
        k = min(c.n - max(c.t[x] for x in names) for c in self.c)
        A(f's_waitcnt vmcnt({min(k, 63)})')
        for c in self.c:
            c.done = max(c.done, c.n - min(k, 63))

    def each(self, fns):
        lj = A.label('join')
        todo = [w for w in range(4) if fns[w]]
        labs = {w: A.label(f'w{w}') for w in todo}
        for w in todo:
            A.cond[labs[w]] = lambda c, w=w: c['w'] == w
            if w != todo[0] or len(todo) < 4:
                A(f's_cmp_eq_u32 s{sW}, {w}\ns_cbranch_scc1 {labs[w]}')
        if len(todo) < 4:
            A(f's_branch {lj}')
        for w in todo:
            A(f'{labs[w]}:')
            fns[w](self.c[w])
            if w != todo[-1]:
                A(f's_branch {lj}')
        A(f'{lj}:')

    def merged(self):
        for c in self.c[1:]:
            self.c[0].merge(c)
        return self.c[0]


def startup():
    t = vT
    R = Roles(4)

    def bs(vm, g0, g1):
        return [lambda g=g, j=j: b_dma(vm, g, j) for g in range(g0, g1) for j in (0, 2, 4)]

    def head1(vm):
        A(f"""v_min_u32 v{t[0]}, 39, v{vL}
s_mul_i32 s{sT[0]}, s{sMem}, 80
v_lshl_add_u32 v{t[3]}, v{t[0]}, 1, s{sT[0]}""")
        vm(f'global_load_ushort v{PAR}, v{t[3]}, {s2(P_LRE)}{NT}')
        vm(f'global_load_ushort v{PAR + 1}, v{t[3]}, {s2(P_LIM)}{NT}')
        vm(f'global_load_ushort v{PAR + 2}, v{t[3]}, {s2(P_LDT)}{NT}', 'par')

    def head0(vm):
        kv_loads0(vm)
        srd(R_WS, P_WS, WS_SIZE)
        agg = f's_lshl_b32 $, s{sMem}, 5\ns_add_u32 $, $, s{sR128}\ns_mul_i32 $, $, 640\ns_add_u32 $, $, '
        n = touch_addr(t[0], [SEG_ST, SEG_F, (9, f's_lshl_b32 $, s{sG}, 11\ns_add_u32 $, $, {WS_FK}'),
                              (5, agg + str(WS_AGG + 16 * 640)), (5, agg + str(WS_AGG + 16 * 640 + AGG_L)),
                              (5, f's_mul_i32 $, s{sMem}, 640\ns_add_u32 $, $, {WS_CS}'),
                              (1, f's_lshl_b32 $, s{sG}, 7\ns_add_u32 $, $, {WS_FY}'),
                              (1, f's_lshl_b32 $, s{sG}, 7\ns_add_u32 $, $, {WS_FB}')])
        A(f's_mov_b32 exec_hi, {(1 << n - 32) - 1}')
        vm(f'buffer_load_dword a250, v{t[0]}, {W}, 0 offen')
        A('s_mov_b32 exec_hi, -1')

    def head3(vm):
        srd(R_X, P_X, 2621440)
        A(f'''s_lshl_b32 s{sT[0]}, s{sR128}, 4
s_add_u32 s{sT[0]}, s{sT[0]}, s{sMem}
s_mul_i32 s{sT[0]}, s{sT[0]}, 10240''')
        vm.t['kv'] = 0
        for z in range(10):
            vm(f'buffer_load_dwordx4 {v4(XP + 4 * z)}, v{vR}, {s4(R_X)}, s{sT[0]} offen offset:{z * 128}', 'xp')
    A(f's_load_dword s{sTag}, {s2(P_WS)}, 0')
    R.each([head0, lambda vm: (head1(vm), kv_loads1(vm)), kv_loads2, head3])

    def scalars():
        A(f'''s_lshl_b32 s{sC0}, s{sX[8]}, 1
s_lshl_b32 s{sT[0]}, s{sC0}, 1
s_load_dword s{sD[0]}, {s2(P_SD)}, s{sT[0]}
s_and_b32 s{sT[0]}, s{sX[8]}, 0xfffffffc
s_add_u32 s{sT[0]}, s{sT[0]}, 1024
s_load_dword s{sD[1]}, {s2(P_SD)}, s{sT[0]}
s_getreg_b32 s{sXcc}, hwreg(HW_REG_XCC_ID, 0, 4)
s_mov_b32 s{sBud}, {OPT['budget']}
s_mov_b32 s{sOnes}, 0x3f803f80''')
    with Cap() as cc:
        consts()
    cc.lines.remove('s_waitcnt lgkmcnt(0)')

    def tag():
        A(f"""s_waitcnt lgkmcnt(0)
s_lshr_b32 s{sTag}, s{sTag}, 4
s_mul_i32 s{sTag}, s{sTag}, 0x19660d
s_add_u32 s{sTag}, s{sTag}, 0x3c6ef35f
s_lshl_b32 s{sTag}, s{sTag}, 4""")

    def more():
        with Cap() as c:
            A(f'''s_lshl_b32 s{sX[6]}, s{sR128}, 11
s_lshl_b32 s{sT[0]}, s{sW}, 9
s_add_u32 s{sX[6]}, s{sX[6]}, s{sT[0]}
s_add_u32 s{sX[6]}, s{sX[6]}, {WS_RS}
v_and_b32 v{vRS}, 7, v{vI}
v_lshlrev_b32 v{vRS}, 4, v{vRS}
v_lshl_add_u32 v{vRS}, v{vQ}, 7, v{vRS}
s_mul_i32 s{sX[7]}, s{sMem}, 640
s_add_u32 s{sX[7]}, s{sX[7]}, {WS_CS}
v_lshlrev_b32 v{vRS + 1}, 3, v{vL}
v_lshlrev_b32 v{vRS + 2}, 3, v{vI}
v_and_b32 v{vFA}, 31, v{vL}
v_lshlrev_b32 v{vFA}, 4, v{vFA}
s_lshl_b32 s{sX[1]}, s{sS8}, 11
s_add_u32 s{sX[1]}, s{sX[1]}, {WS_FS}
v_and_b32 v{vFXa}, 31, v{vL}
v_lshlrev_b32 v{vFXa}, 2, v{vFXa}
s_lshl_b32 s{sX[2]}, s{sG}, 11
s_add_u32 s{sX[2]}, s{sX[2]}, {WS_FX}''')
            run(conv_setup())
            g2_setup(0)
            run(y_setup())
            for i, r in enumerate(vCA + vCB + YREG + G2REG):
                A(f'v_accvgpr_write_b32 a{A_CV + i}, v{r}')
            z_addr()
            touch_addr(vT[0], [SEG_ST, SEG_F])
            park('rt', vT[0])
        return c.lines

    def w0(vm):
        A(f'v_mov_b32 v{XS}, 0')
        fx_store('')
        fx_store(' offset:128 sc1')
        vm.n += 2
        A(f'''v_mov_b32 v{XS + 1}, 0
v_mov_b32 v{XS + 2}, s{sTag}
v_mov_b32 v{XS + 3}, s{sTag}
s_add_u32 s{sT[0]}, s{sAgg}, {AGG_L}
s_mov_b32 exec_hi, 0xff''')
        vm(f'buffer_store_dwordx4 {v4(XS)}, v{vL16}, {W}, s{sAgg} offen sc1')
        vm(f'buffer_store_dwordx4 {v4(XS)}, v{vL16}, {W}, s{sT[0]} offen sc1')
        A('s_mov_b32 exec_hi, -1')

    def w1(vm):
        vm.wait('par')
        run(cc.lines)
    blocks = dict(A=dma_addr, S=scalars, M=misc_setup, C=lambda: c_loads(R), O=lambda: run(more()), T=tag,
                  G=lambda: (gemm_addr(), kv_addr(), k_addr()), K=lambda: run(k_loads(R)),
                  R=lambda: R.each([None, w1, w0, lambda vm: run(stats_work(vm))]))
    for b in OPT['order'].split(','):
        if b[0] == 'B':
            run(bs(R, int(b[1]), int(b[1]) + 1))
        elif b[0] == 'X':
            x_dma(R, int(b[1]))
        elif b[0] == '@':
            stamp(b[1:])
        else:
            blocks[b]()
    R.wait('kv')
    A('s_waitcnt lgkmcnt(0)\ns_barrier')
    stamp('kv_land')
    R(f'buffer_load_dword v{vFX}, v{vFXa}, {W}, s{sX[2]} offen sc1', 'fx')
    lg = LG()
    crd, fix = const_reads(lg)
    run(crd)
    va, vb = R.c[0], R.c[3]
    va.merge(R.c[1]), va.merge(R.c[2])
    l3, lj = A.label('w3'), A.label('join')
    A.cond[l3] = lambda c: c['w'] == 3
    A(f's_cmp_eq_u32 s{sW}, 3\ns_cbranch_scc1 {l3}')
    def nxt(v):
        out = []
        for b in OPT['post'].split(','):
            if b[0] == 'L':
                if v is vb:
                    out += [lambda g=int(b[1]): b_all(v, g)]
                else:
                    v.t['b', int(b[1])] = 0
                continue
            if b[0] == 'C':
                out.append(lambda: c_loads(v))
                continue
            out += bs(v, int(b[1]), int(b[1]) + 1) if b[0] == 'B' else [lambda b=b: x_dma(v, int(b[1]))] if b[0] == 'X' else \
                [atom(k_loads(v)[:3]), atom(k_loads(v)[3:5]), atom(k_loads(v)[5:])]
        return out
    la = copy.deepcopy(lg)
    rd, it = kv_work(va, la)
    run(rd)
    weave(it[:-1], nxt(va), OPT['wv0'], OPT['wv'])
    mode_check(va)
    run(it[-1])
    A(f's_branch {lj}\n{l3}:')
    A(f'''s_lshl_b32 s{sT[0]}, s{sMem}, 3
s_and_b32 s{sT[1]}, s{sR128}, 7
s_add_u32 s{sT[0]}, s{sT[0]}, s{sT[1]}
s_mul_i32 s{sT[0]}, s{sT[0]}, 6400
s_mov_b32 exec_hi, 0xff''')
    for z in range(1 if OPT['dbg'] & 8 else 10):
        vb(f'buffer_load_dwordx4 {v4(XP + 4 * z)}, v{vR}, {s4(R_T0)}, s{sT[0]} offen offset:{z * 128}', 'xp')
    A('s_mov_b32 exec_hi, -1')
    run(nxt(vb))
    mode_check(vb)
    run(colsum_work(vb))
    A(f'{lj}:\ns_waitcnt lgkmcnt(0)')
    va.merge(vb)
    vm = va
    stamp('kv_st')
    run(fix[1:])
    if OPT['cfs'] < 0:
        run(cf_work(vm, LG()))
    stamp('cf_st')
    vm.wait(('x', 1), ('b', 0))
    stamp('land')
    return vm


class G1:
    def __init__(self, layer, vm):
        self.layer, self.vm, self.lg, self.side = layer, vm, LG(), Side()
        self.order = list(range(20)) if layer == 0 else list(range(4, 20)) + list(range(4))

    def rd(self, s, j):
        k = self.order[s]
        idx = (k >> 1) * 5 + j
        a, off = (vBA[k & 1], idx * 2048) if idx < 25 else (vBA[2 + (k & 1)], (idx - 25) * 2048)
        self.lg(f'ds_read_b128 {v4(BF + 20 * (s & 1) + 4 * j)}, v{a} offset:{off}', ('B', s, j))

    def rda(self, s, m):
        self.lg(f'ds_read_b128 {v4(AF + 8 * (s & 1) + 4 * m)}, v{vAR2 if s & 1 else vAR} '
                f'offset:{((2 * (s >> 1) + m) % 7) * 8192}', ('A', s, m))

    def ld(self, f):
        s, m = divmod(f, 2)
        s = self.order[s]
        if s == 16:
            A(f's_add_u32 s{sL[m]}, s{sL[m]}, 4096')
        if s == 0:
            A(f's_sub_u32 s{sL[m]}, s{sL[m]}, 4096')
        self.vm(f'buffer_load_dwordx4 {v4(RING + 4 * (f % NR))}, v{vUA}, {W}, s{sL[m]} offen '
                f'offset:{(s % 16) * 256} sc1', ('u', f))

    def step(self, s):
        vm, lg, layer = self.vm, self.lg, self.layer
        if (s in (0, 4, 8, 12, 16) and OPT['stamps'] != 3) or (OPT['stamps'] == 4 and layer == 0):
            stamp(f'.s{s}_{layer}', 2)
        if layer == 0:
            need = [('x', s + 2)] if s & 1 and s < 19 else []
            if (s + 1) % 4 == 0 and s < 19:
                vm.wait(('b', (s + 1) // 4), *need)
                A('s_barrier')
            elif need:
                vm.wait(*need)
        else:
            vm.wait(('u', 2 * s + 1))
            if s == 15:
                A('s_barrier')
        for j in range(5):
            if not OPT['gw'] or s == 0:
                lg.wait(('B', s, j))
            elif j in (0, 3):
                lg.wait(('B', s, 2 if j == 0 else 4))
            if layer == 0 and s == 19 and j == 0:
                A('s_barrier')
            for m in range(2):
                d = ACC + 8 * j + 4 * m
                c = '0' if s == 0 else v4(d)
                a = RING + 4 * ((2 * s + m) % NR) if layer else AF + 8 * (s & 1) + 4 * m
                A(f'v_mfma_f32_16x16x32_bf16 {v4(d)}, {v4(a)}, {v4(BF + 20 * (s & 1) + 4 * j)}, {c}')
                if m == 0 and s < 19:
                    if j == 0 and layer == 0:
                        self.rda(s + 1, 0)
                        self.rda(s + 1, 1)
                    self.rd(s + 1, j)
                if layer == 0 or m == 1:
                    k = 2 * j + m
                    self.side.run(s, 10 - k if layer == 0 else 5 - j)


c_issued = [0]


def c_load(vm):
    i = c_issued[0]
    c_issued[0] += 1
    if i and i % 4 == 0:
        A(f's_add_u32 s{sL[0]}, s{sL[0]}, 4096')
    vm(f'buffer_load_dwordx4 {a4(4 * i)}, v{vL16}, {W}, s{sL[0]} offen offset:{(i % 4) * 1024} sc1', 'cf')


def k_addr():
    A(f'''s_lshl_b32 s{sT[0]}, s{sC0}, 12
s_lshl_b32 s{sT[1]}, s{sW}, 10
s_add_u32 s{sX[3]}, s{sT[0]}, s{sT[1]}
s_add_u32 s{sX[4]}, s{sX[3]}, 4096
s_lshl_b32 s{sX[5]}, s{sCs}, 12
s_add_u32 s{sX[5]}, s{sX[5]}, s{sT[1]}
s_add_u32 s{sT[1]}, s{sT[1]}, {L_K + 32}
v_add_u32 v{vKO}, s{sT[1]}, v{vL16}
v_lshrrev_b32 v{vT[0]}, 1, v{vL}
v_mul_u32_u24 v{vT[0]}, 4160, v{vT[0]}
v_and_b32 v{vT[1]}, 1, v{vL}
v_lshl_add_u32 v{vT[0]}, v{vT[1]}, 4, v{vT[0]}
v_add_u32 v{vKP}, {L_K}, v{vT[0]}''')


def k_loads(vm):
    it = [lambda: srd(R_T1, P_SSK, 2621440)]
    for sl in range(3):
        if not OPT['dbg'] & 2:
            it.append(lambda sl=sl: vm(f'buffer_load_dwordx4 {v4(KA + 4 * sl)}, v{vL16}, {s4(R_T1)}, s{sX[3 + sl]} offen'))
        it.append(lambda sl=sl: vm(f'buffer_load_dwordx4 {v4(KB + 4 * sl)}, v{vL16}, {s4(R_T1)}, s{sX[3 + sl]} offen offset:4', 'K'))
    return it


def k_work(vm):
    it = [lambda: vm.wait('K')]
    for sl in range(3):
        it[-1] = atom(it[-1], f'ds_write_b128 v{vKO}, {v4(KA + 4 * sl)} offset:{sl * 8320}')
        it.append(atom([f'v_alignbit_b32 v{KB + 4 * sl + i}, v{KB + 4 * sl + i}, v{KA + 4 * sl + i}, 16' for i in range(4)],
                       f'ds_write_b128 v{vKO}, {v4(KB + 4 * sl)} offset:{sl * 8320 + 4160}'))

    def pads():
        A(f's_cmp_lg_u32 s{sW}, 0')
        with A.skip_if('s_cbranch_scc1', lambda c: c['w'] != 0):
            run([f'v_mov_b32 v{216 + i}, 0' for i in range(4)])
            A(f's_mov_b64 exec, 0xfff\nds_write_b128 v{vKP}, {v4(216)}\ns_mov_b64 exec, 1')
            for sl in range(3):
                A(f'ds_write_b16 v{vKP}, v{KA + 4 * sl} offset:{sl * 8320 + 4160 + 30}')
            A('s_mov_b64 exec, -1')
    return it + [pads]


def front(vm):
    g = G1(0, vm)
    lg, S = g.lg, g.side
    A('s_barrier')
    g.rda(0, 0), g.rda(0, 1)
    for j in range(5):
        g.rd(0, j)
    for p in (2, 3):
        if ('x', p) not in vm.t:
            x_dma(vm, p)
    if OPT['cfs'] >= 0:
        S.spread(OPT['cfs'], OPT['cfper'], cf_work(vm, lg))
    if 'K' not in vm.t:
        S.spread(OPT['kls'], 3, k_loads(vm))
    S.add(0, lambda: x_dma(vm, 4), lambda: x_dma(vm, 5))
    for p in range(6, 20):
        S.add(max(1, p - 6), lambda p=p: x_dma(vm, p))
    for gi in range(1, 5):
        if ('b', gi) in vm.t:
            continue
        for n, j in enumerate((0, 2, 4)):
            S.add(OPT[f'b{gi}s'] + n // 2, lambda gi=gi, j=j: b_dma(vm, gi, j))
    S.add(OPT['kvf'], atom(lambda: vm.wait('kvst'), lambda: flag_store(f's{sKf}', True, vm, sKm)))
    S.add(OPT['cff'], atom(lambda: vm.wait('cfst'), f's_add_u32 s{sT[0]}, s{sFK}, {WS_FS}',
                           lambda: flag_store(f's{sT[0]}', False, vm)))
    fk = f'buffer_load_dwordx2 {v2(vFP)}, v{vFA}, {W}, s{sX[0]} offen sc1'
    S.add(OPT['fsp'], atom(f's_and_b32 s{sX[0]}, s{sFK}, 0x3800', f's_add_u32 s{sX[0]}, s{sX[0]}, {WS_FK}', lambda: vm(fk, 'fk')))

    def fetch():
        vm.wait('fk')
        check_tags([vFP, vFP + 1], fk)
        for sl in range(2):
            A(f's_lshl_b32 s{sT[0]}, s{sG}, 16\ns_add_u32 s{sT[0]}, s{sT[0]}, s{sX[3 + sl]}\n'
              f's_add_u32 s{sT[0]}, s{sT[0]}, {WS_KV}\ns_lshl_b32 m0, s{sW}, 10')
            if sl:
                A(f's_add_u32 m0, m0, {L_KV + sl * 4608}')
            vm(f'buffer_load_dwordx4 v{vL16}, {W}, s{sT[0]} offen sc1 lds', 'kvT')
    assert OPT['fsc'] >= 7
    S.add(OPT['fsc'], fetch)
    S.add(8, f'''v_lshrrev_b32 v{vT[0]}, 5, v{vL}
v_mul_u32_u24 v{vT[0]}, {4608 - 512}, v{vT[0]}
v_add_u32 v{vT[0]}, v{vT[0]}, v{vL16}''', [f'v_mov_b32 v{216 + i}, 0' for i in range(4)],
          lambda: lg(f'ds_write_b128 v{vT[0]}, {v4(216)} offset:{L_KV + 4096}'),
          lambda: lg(f'ds_write_b128 v{vT[0]}, {v4(216)} offset:{L_KV + 4608 + 4096}'))
    rsl = [f'buffer_load_dwordx3 {v3(RSL)}, v{vRS}, {W}, s{sX[6]} offen sc1',
           f'buffer_load_dwordx2 {v2(RSL + 4)}, v{vRS + 1}, {W}, s{sX[7]} offen sc1',
           f'buffer_load_dwordx2 {v2(RSL + 6)}, v{vRS + 2}, {W}, s{sX[7]} offen offset:512 sc1']
    fc = f'buffer_load_dwordx4 {v4(vFP)}, v{vFA}, {W}, s{sX[1]} offen sc1'
    S.add(OPT['late'], [lambda t=t: vm(t, 'rs') for t in rsl])
    S.add(OPT['csp'], lambda: vm(fc, 'fc'))

    def ccheck():
        vm.wait('fc')
        check_tags([vFP + i for i in range(4)], fc)
        A(f'''s_mul_i32 s{sL[0]}, s{sS8}, 200
s_mul_i32 s{sT[0]}, s{sW}, 50
s_add_u32 s{sL[0]}, s{sL[0]}, s{sT[0]}
s_lshl_b32 s{sL[0]}, s{sL[0]}, 10
s_add_u32 s{sL[0]}, s{sL[0]}, {WS_CF}''')
    marks_gather(S, vm, -1)
    S.add(OPT['csc'], ccheck)
    for i in range(OPT['cl0']):
        S.add(OPT['csc'] + i * (20 - OPT['csc']) // OPT['cl0'], lambda: c_load(vm))

    def rscheck():
        vm.wait('rs')
        check_tags([RSL + 2, RSL + 2, RSL + 5, RSL + 7], rsl)
    S.q.setdefault(OPT['rsc'], []).insert(0, rscheck)
    c = lambda j: CSL + j
    S.add(19, f'''v_mov_b32 v{c(0)}, v{RSL + 4}
v_mov_b32 v{c(1)}, v{RSL + 4}
v_mov_b32 v{c(4)}, v{RSL + 6}
v_permlane16_swap_b32 v{c(0)}, v{c(1)}
v_mov_b32 v{c(2)}, v{c(0)}
v_mov_b32 v{c(3)}, v{c(1)}
v_permlane32_swap_b32 v{c(0)}, v{c(2)}
v_permlane32_swap_b32 v{c(1)}, v{c(3)}''')
    S.add(19, [f'v_mov_b32_dpp v{MM + t}, v{RSL} row_newbcast:{t} {DPPM}\n'
               f'v_mov_b32_dpp v{RR + t}, v{RSL + 1} row_newbcast:{t} {DPPM}' for t in range(8)])
    for s in range(20):
        g.step(s)
    assert not g.side.left()
    stamp('g1_0')
    kw = k_work(vm)
    kw += [f'ds_write_b64 v{vZ + 4}, {v2(RSL)}'] + [[]] * (6 - len(kw))
    scan_1(0, [[k] + [lambda: c_load(vm)] * (i < OPT['cs1']) for i, k in enumerate(kw)], lambda: vm.wait('kvT'))
    lg = LG()
    h1, h2 = horner(0, vm, lg)
    weave(h1, [lambda: c_load(vm)] * OPT['cb'], 10, 6)
    for i, r in enumerate(vCA + vCB):
        A(f'v_accvgpr_read_b32 v{r}, a{A_CV + i}')
    for k in range(2):
        for i in range(1, 4):
            A(f'v_add_u32 v{vCA[k] + i}, {1024 * i}, v{vCA[k]}')
    return vm, lg


MAS, PP, AGL, GR = 90, 244, 88, 88
LT = [128, 144, 160, 176, 104]
PK = [120, 124]
vTW, vTR, vTS = 254, 255, 47


def scan_1(layer, extra=[], last=None):
    b = lambda j, ta: ACC + 8 * j + ta
    if layer == 0:
        for j in range(5):
            sel = 'op_sel:[0,1,0] op_sel_hi:[1,1,1]' if j & 1 else 'op_sel_hi:[1,0,1]'
            for p in range(4):
                d = ACC + 8 * j + 2 * p
                A(f'v_pk_fma_f32 {v2(d)}, {v2(MM + 2 * p)}, {v2(CSL + (j & ~1))}, {v2(d)} {sel} '
                  f'neg_lo:[1,0,0] neg_hi:[1,0,0]')
        for j in range(5):
            for p in range(4):
                d = ACC + 8 * j + 2 * p
                A(f'v_pk_mul_f32 {v2(d)}, {v2(d)}, {v2(RR + 2 * p)}')
    extra = list(extra)
    for ta in range(1, 8):
        if extra:
            run(extra.pop(0))
        for j in range(5):
            A(f'v_fmac_f32 v{b(j, ta)}, v{LR + j}, v{b(j, ta - 1)}')
        for j in range(5):
            A(f'v_fmac_f32_dpp v{b(j, ta)}, v{b(j, ta - 1)}, v{LS + j} {SWP}')
    A(f'''v_add_u32 v{vT[0]}, {L_AS}, v{vAS}
v_min_u32 v{vT[1]}, 39, v{vL}
v_mul_u32_u24 v{vU[2]}, 48, v{vT[1]}
s_lshl_b32 s{sT[0]}, s{sW}, 3
s_add_u32 s{sT[0]}, s{sT[0]}, {L_G}
v_add_u32 v{vU[2]}, s{sT[0]}, v{vU[2]}''')
    for j in range(5):
        A(f'ds_write_b32 v{vT[0]}, v{b(j, 7)} offset:{j * 1152}')
    A(f'''v_mul_u32_u24 v{vU[4]}, 144, v{vT[1]}
v_add_u32 v{vU[4]}, {L_AS}, v{vU[4]}''')
    if last:
        last()
    A('s_waitcnt lgkmcnt(0)\ns_barrier')
    stamp(f'scan1_{layer}')


def horner(layer, vm, lg):
    it = [lambda i=i: lg(f'ds_read_b128 {v4(MAS + 4 * i)}, v{vU[4]} offset:{16 * i}', ('as', i)) for i in range(8)]
    for s in range(1, 16):
        if s == 1 or s % 2 == 0:
            it.append(lambda s=s: lg.wait(('as', s // 2)))
        it += cmul(MAS + 2 * s, MAS + 2 * s - 2, mL8, MAS + 2 * s)

    def pub():
        A(f'''v_mov_b32 v{MAS + 32}, s{sTag}
v_mov_b32 v{MAS + 33}, s{sTag}
s_add_u32 s{sT[0]}, s{sAgg}, {layer * AGG_L + 16 * 640}
s_mov_b64 exec, {s2(sPub)}''')
        A(f'buffer_store_dwordx4 {v4(MAS + 30)}, v{vL16}, {W}, s{sT[0]} offen sc1')
        A('s_mov_b64 exec, -1')
        stamp(f'agg_pub_{layer}')
    it.append(pub)
    first, it = it, []
    def own():
        A(f'v_subrev_u32 v{vU[4]}, {L_AS - L_P}, v{vU[4]}\nv_mov_b32 v{MAS - 2}, 0\nv_mov_b32 v{MAS - 1}, 0\ns_mov_b32 exec_hi, 0xff')
        Roles(4).each([lambda c, w=w: [A(f'ds_write_b128 v{vU[4]}, {v4(MAS - 2 + 8 * w + 4 * i)} offset:{32 * w + 16 * i}')
                                       for i in range(2)] for w in range(4)])
        A('s_mov_b32 exec_hi, -1')
        lg.n += 2
    it.append(own)
    it.append(f'v_add_u32 v{vU[4]}, {L_P}, v{vAS}')
    it += [lambda j=j: lg(f'ds_read_b32 v{PP + 2 * j}, v{vU[4]} offset:{j * 1152}', 'pp') for j in range(5)]
    it += [f'v_and_b32 v{vU[1]}, 1, v{vI}', f'v_cvt_f32_u32 v{vU[1]}, v{vU[1]}', f'v_fma_f32 v{vU[1]}, 2.0, v{vU[1]}, -1.0']
    it.append(lambda: lg.wait('pp'))
    it += [f'v_mul_f32_dpp v{PP + 2 * j + 1}, v{PP + 2 * j}, v{vU[1]} {SWP}' for j in range(5)]
    return first, it


def agg_ld(layer):
    pre = f'''s_lshl_b32 s{sX[3]}, s{sW}, 2
s_sub_u32 s{sX[3]}, 12, s{sX[3]}
s_mul_i32 s{sX[3]}, s{sX[3]}, 640
s_add_u32 s{sX[3]}, s{sX[3]}, s{sAgg}
s_add_u32 s{sX[3]}, s{sX[3]}, {layer * AGG_L}
v_min_u32 v{vU[0]}, 39, v{vL}
v_lshlrev_b32 v{vU[0]}, 4, v{vU[0]}'''
    return pre, [f'buffer_load_dwordx3 {v3(AGL + 4 * z)}, v{vU[0]}, {W}, s{sX[3]} offen offset:{z * 640} sc1' for z in range(4)]


def scan_2(layer, vm, ld, hook={}, defer=False, extra=[]):
    lg = LG()
    t = vT
    A(f'''v_lshrrev_b32 v{t[0]}, 1, v{vI}
v_mul_u32_u24 v{t[1]}, 80, v{t[0]}
v_add_u32 v{t[1]}, {L_L}, v{t[1]}
v_mul_u32_u24 v{t[0]}, 48, v{t[0]}
v_add_u32 v{t[0]}, {L_G}, v{t[0]}''')
    def lrd(j):
        for c in range(4):
            lg(f'ds_read_b128 {v4(LT[j] + 4 * c)}, v{t[1]} offset:{j * 640 + 16 * c}', ('L', j))
    early = 5 if layer else OPT['lpre']
    for j in range(early):
        lrd(j)
    A('\n'.join([unpark('tw', vTW), unpark('tr', vTR), unpark('ts', vTS)]))
    vm.wait('agg')
    check_tags([AGL + 2, AGL + 6, AGL + 10, AGL + 14], ld, x=t[3], y=t[4], inline=2)
    stamp(f'agg_in_{layer}')
    for z in range(1, 4):
        A('\n'.join(cmul(AGL + 4 * z, AGL + 4 * z - 4, mL128, AGL + 4 * z)))
    A('\n'.join(cmul(AGL, AGL + 12, mW)))
    if extra:
        extra.pop()()
    A(f'''s_mov_b32 exec_hi, 0xff
ds_write_b64 v{vU[2]}, {v2(AGL)}
s_mov_b32 exec_hi, -1''')
    stamp(f'.fold{layer}', 5 - 2 * (OPT['stamps'] == 3))
    A('s_waitcnt lgkmcnt(0)')
    stamp(f'.added{layer}', 5 - 2 * (OPT['stamps'] == 3))
    A('s_barrier')
    stamp(f'.gbar{layer}', 5 - 2 * (OPT['stamps'] == 3))
    lg = LG()
    GQ = [88, 96, 224, 88, 96]

    def grd(j):
        lg(f'ds_read_b128 {v4(GQ[j])}, v{t[0]} offset:{j * 384}')
        lg(f'ds_read_b128 {v4(GQ[j] + 4)}, v{t[0]} offset:{j * 384 + 16}', ('G', j))
    for j in range(3):
        grd(j)
    for j in range(early, min(early + 1, 5)):
        lrd(j)
    hb = HB[layer]

    def more():
        if extra:
            extra.pop()()
    more()

    def xy(j):
        lg.wait(('G', j))
        q = GQ[j]
        p, a, gq = v2(PP + 2 * j), v2(VA + 2 * j), v2(q)
        A(f'v_pk_add_f32 {gq}, {gq}, {v2(q + 2)}\nv_pk_add_f32 {v2(q + 4)}, {v2(q + 4)}, {v2(q + 6)}\n'
          f'v_pk_add_f32 {gq}, {gq}, {v2(q + 4)}')
        A(f'v_pk_fma_f32 {p}, {a}, {gq}, {p} op_sel:[0,0,0] op_sel_hi:[1,0,1]')
        A(f'v_pk_fma_f32 {p}, {a}, {gq}, {p} op_sel:[1,1,0] op_sel_hi:[0,1,1] neg_hi:[1,0,0]')
        if j < 2:
            grd(j + 3)

    def upd(j):
        p = v2(PP + 2 * j)
        if early + 1 + j < 5:
            lrd(early + 1 + j)
        if j >= early:
            lg.wait(('L', j))
        for k in range(4):
            d = v2(ACC + 8 * j + 2 * k)
            A(f'v_pk_fma_f32 {d}, {v2(LT[j] + 2 * k)}, {p}, {d} op_sel:[0,0,0] op_sel_hi:[1,0,1]')
        more()
        for k in range(4):
            d = v2(ACC + 8 * j + 2 * k)
            A(f'v_pk_fma_f32 {d}, {v2(LT[j] + 8 + 2 * k)}, {p}, {d} op_sel:[0,1,0] op_sel_hi:[1,1,1]')
        pk = PK[j & 1]
        for d in range(4):
            A(f'v_cvt_pk_bf16_f32 v{pk + d}, v{ACC + 8 * j + 2 * d}, v{ACC + 8 * j + 2 * d + 1}')
        lg(f'ds_write_b128 v{vTW}, {v4(pk)}')
        more()
        lg(f'ds_read_b64_tr_b16 {v2(ACC + 8 * j + 4)}, v{vTR}')
        lg(f'ds_read_b64_tr_b16 {v2(ACC + 8 * j + 6)}, v{vTR} offset:640', ('T', j))

    def st(j, vm=vm):
        A(f's_add_u32 s{sT[1]}, s{sH[j]}, {hb}')
        lg.wait(('T', j))
        mode_stores([f'buffer_store_dwordx4 {v4(ACC + 8 * j + 4)}, v{vTS}, {WH}, s{sT[1]} offen'], through=OPT['thr'] & (2 << layer))
        vm.n += 1
        vm.t['hst'] = vm.n
    xy(0), xy(1)
    lag = OPT['lag']
    for j in range(5 + lag):
        stamp(f'.j{j}_{layer}', 5 - 2 * (OPT['stamps'] == 3))
        if j < 5:
            upd(j)
        if j < 3:
            xy(j + 2)
        if j >= lag and j - lag < (defer or 5):
            st(j - lag)
        if j in hook:
            hook[j](lg)
    if defer:
        lg.wait(('T', 4))
        stamp(f'h_st_{layer}')
        return st
    stamp(f'h_st_{layer}')


def h_flag(layer, vm):
    vm.wait('hst')
    A(f's_add_u32 s{sT[2]}, s{sFW}, {WS_FH + layer * 256}')
    flag_store(f's{sT[2]}', True, vm)
    stamp(f'h_flag_{layer}')


CA, CB, CX, CY = 128, 160, 192, 104
vCA, vCB = [232, 236], [240, 241]
JSET = [[1, 2, 4, 7], [0, 3, 5, 6]]


def conv_setup():
    t = vT
    return lines(f"""v_add_u32 v{t[0]}, 1, v{vI}
v_and_b32 v{t[1]}, 1, v{t[0]}
v_mul_u32_u24 v{t[1]}, 4160, v{t[1]}
v_lshrrev_b32 v{t[0]}, 1, v{t[0]}
v_lshl_add_u32 v{t[1]}, v{t[0]}, 2, v{t[1]}
v_lshl_add_u32 v{t[1]}, v{vQ}, 4, v{t[1]}
v_sub_u32 v{t[0]}, 15, v{vI}
v_lshlrev_b32 v{t[0]}, 5, v{t[0]}
v_lshl_add_u32 v{t[0]}, v{vQ}, 4, v{t[0]}
s_lshr_b32 s{sT[0]}, s{sW}, 1
s_and_b32 s{sT[1]}, s{sW}, 1
s_lshl_b32 s{sT[1]}, s{sT[1]}, 8
s_mul_i32 s{sT[2]}, s{sT[0]}, 8320
s_add_u32 s{sT[2]}, s{sT[2]}, s{sT[1]}
s_add_u32 s{sT[2]}, s{sT[2]}, {L_K}
v_add_u32 v{vCA[0]}, s{sT[2]}, v{t[1]}
s_mul_i32 s{sT[2]}, s{sT[0]}, 4608
s_add_u32 s{sT[2]}, s{sT[2]}, s{sT[1]}
v_add_u32 v{vCB[0]}, s{sT[2]}, v{t[0]}
s_lshl_b32 s{sT[1]}, s{sW}, 7
s_add_u32 s{sT[2]}, s{sT[1]}, {L_K + 2 * 8320}
v_add_u32 v{vCA[1]}, s{sT[2]}, v{t[1]}
s_add_u32 s{sT[2]}, s{sT[1]}, {L_KV + 2 * 4608}
v_add_u32 v{vCB[1]}, s{sT[2]}, v{t[0]}""")


class Conv:
    def __init__(self, units, lg, cont=False):
        self.lg, self.seq, self.todo, self.issued = lg, [], [], set()
        free, seen = {}, ({CX + 4 * j for j in range(8)} if cont else set())
        for k, u, js, acc in units:
            first, last = {}, {}
            for a in range(max(js), -1, -1):
                for j in js:
                    if j < a:
                        continue
                    for f in (('A', a), ('B', j - a)):
                        first.setdefault(f, len(self.seq))
                        last[f] = len(self.seq)
                    d = acc + 4 * js.index(j)
                    self.seq.append((k, u, a, j - a, d, d in seen))
                    seen.add(d)
            for f, need in first.items():
                self.todo.append((max(free.get(f, -1), need - OPT['look']), need, (k, u, f)))
            free.update(last)
        self.todo.sort(key=lambda x: x[:2])

    def rd(self, key):
        k, u, (kind, x) = key
        self.issued.add(key)
        if kind == 'A':
            o = 16 * u + 128 * (x & 1)
            self.lg(f'ds_read2_b32 {v2(CA + 4 * x)}, v{vCA[k] + (x >> 1)} offset0:{o} offset1:{o + 1}')
            self.lg(f'ds_read2_b32 {v2(CA + 4 * x + 2)}, v{vCA[k] + (x >> 1)} offset0:{o + 2} offset1:{o + 3}', key)
        else:
            self.lg(f'ds_read_b128 {v4(CB + 4 * x)}, v{vCB[k]} offset:{64 * u + 512 * (7 - x)}', key)

    def emit(self, n0, n1, side):
        todo = self.todo
        while n0 == 0 and todo[0][0] < 0 and todo[0][1] < 4:
            self.rd(todo.pop(0)[2])
        for gn in range(n0, n1):
            k, u, a, b, d, chain = self.seq[gn]
            self.lg.wait((k, u, ('A', a)), (k, u, ('B', b)))
            A(f'v_mfma_f32_16x16x32_bf16 {v4(d)}, {v4(CA + 4 * a)}, {v4(CB + 4 * b)}, {v4(d) if chain else 0}')
            did = 0
            while todo and todo[0][0] <= gn and (did < 1 or todo[0][1] <= gn + 3):
                self.rd(todo.pop(0)[2])
                did += 1
            if not did or gn % 4 == 3:
                side.run(gn // 4, 4 - gn % 4)

    def force(self, keys):
        for it in [x for x in self.todo if x[2] in keys]:
            self.todo.remove(it)
            self.rd(it[2])


vFY = 120
KVM, KVX = 88, 96
YREG = [246, 247, 248, 249, 250, 251, 252]
yS, yKm, yKx, yPw, yPr, ySr, ySw = YREG


def y_setup():
    t = vT
    return lines(f"""s_lshr_b32 s{sT[1]}, s{sW}, 1
s_add_u32 s{sT[0]}, s{sC0}, s{sT[1]}
s_bitcmp1_b32 s{sT[0]}, 0
s_cselect_b32 s{sT[2]}, 16, 0
s_lshr_b32 s{sD[0]}, s{sD[0]}, s{sT[2]}
s_and_b32 s{sDm[0]}, s{sD[0]}, 0xffff
s_lshl_b32 s{sDm[1]}, s{sD[0]}, 16
s_bitcmp1_b32 s{sCs}, 0
s_cselect_b32 s{sT[2]}, 16, 0
s_lshr_b32 s{sD[1]}, s{sD[1]}, s{sT[2]}
s_and_b32 s{sDm[2]}, s{sD[1]}, 0xffff
s_lshl_b32 s{sDm[3]}, s{sD[1]}, 16
s_lshl_b32 s{sYO[0]}, s{sT[0]}, 12
s_and_b32 s{sT[0]}, s{sW}, 1
s_lshl_b32 s{sT[0]}, s{sT[0]}, 11
s_add_u32 s{sYO[0]}, s{sYO[0]}, s{sT[0]}
s_add_u32 s{sYO[0]}, s{sYO[0]}, {WS_Y}
s_mul_i32 s{sT[1]}, s{sT[1]}, 4608
s_sub_u32 s{sT[1]}, s{sT[1]}, s{sT[0]}
s_add_u32 s{sT[1]}, s{sT[1]}, {L_KV + 4088 - 3 * 512}
v_lshlrev_b32 v{yS}, 5, v{vI}
v_lshl_add_u32 v{yS}, v{vQ}, 3, v{yS}
v_sub_u32 v{yKm}, s{sT[1]}, v{yS}
s_bitcmp1_b32 s{sJ}, 0
s_movk_i32 s{sT[0]}, 0x7421
s_cselect_b32 s{sT[0]}, 0x6530, s{sT[0]}
s_lshl_b32 s{sT[1]}, s{sW}, 2
s_lshr_b32 s{sT[0]}, s{sT[0]}, s{sT[1]}
s_and_b32 s{sT[0]}, s{sT[0]}, 7
s_lshl_b32 s{sT[0]}, s{sT[0]}, 9
s_lshl_b32 s{sYO[1]}, s{sCs}, 12
s_add_u32 s{sYO[1]}, s{sYO[1]}, s{sT[0]}
s_add_u32 s{sYO[1]}, s{sYO[1]}, {WS_Y}
s_sub_u32 s{sT[0]}, {L_KV + 2 * 4608 + 4088}, s{sT[0]}
v_sub_u32 v{yKx}, s{sT[0]}, v{yS}
s_lshl_b32 s{sT[0]}, s{sW}, 12
s_add_u32 s{sT[1]}, s{sT[0]}, {L_PM}
v_add_u32 v{ySw}, s{sT[1]}, v{vL16}
s_add_u32 s{sT[1]}, s{sT[0]}, {L_PS}
v_add_u32 v{yPw}, s{sT[1]}, v{vL16}
s_xor_b32 s{sT[1]}, s{sT[0]}, 4096
s_add_u32 s{sT[1]}, s{sT[1]}, {L_PS}
v_add_u32 v{yPr}, s{sT[1]}, v{vL16}
s_lshl_b32 s{sT[1]}, s{sW}, 10
s_add_u32 s{sT[1]}, s{sT[1]}, {L_PM}
v_add_u32 v{ySr}, s{sT[1]}, v{vL16}""")


def y_dterm(acc, kv, dlo, dhi):
    sel = [(1, dhi), (1, dlo), (0, dhi), (0, dlo)]
    return [f'v_dot2_f32_bf16 v{acc + r}, v{kv + sel[r][0]}, s{sel[r][1]}, v{acc + r}' for r in range(4)]


def marks_gather(S, vm, sg):
    if OPT['clr'] * sg > 0:
        marks(S, vm, abs(OPT['clr']), 228 if sg > 0 else 216)
    if OPT['fbp'] * sg > 0:
        gather(S, vm, abs(OPT['fbp']), abs(OPT['fbc']), 124 if sg > 0 else 220)


def marks(S, vm, at, r):
    S.add(at, [f'v_mov_b32 v{r + i}, -1' for i in range(4)], f'v_lshlrev_b32 v{vT[0]}, 3, v{vL}',
          lambda: vm(f'buffer_store_dwordx2 {v2(r)}, v{vT[0]}, {W}, s{sYO[1]} offen sc1'))
    for i in range(2):
        S.add(at + 1 + i, lambda i=i: vm(f'buffer_store_dwordx4 {v4(r)}, v{vL16}, {W}, s{sYO[0]} offen offset:{1024 * i} sc1'))


def gather(S, vm, at, at2, r):
    fb = f'buffer_load_dwordx4 {v4(r)}, v{vL16}, {W}, s{sKs} offen sc1'
    S.add(at, atom(f's_mov_b32 s{sKs}, {WS_FB}', lambda: vm(fb, 'fb')))

    def go():
        vm.wait('fb')
        check_tags([r + i for i in range(4)], fb)
        A(f'''s_lshl_b32 s{sT[1]}, s{sW}, 6
s_sub_u32 s{sT[0]}, 255, s{sT[1]}
v_sub_u32 v{vT[0]}, s{sT[0]}, v{vL}
v_lshlrev_b32 v{vT[0]}, 11, v{vT[0]}
s_and_b32 s{sT[0]}, s{sCs}, 3
s_lshl_b32 s{sT[0]}, s{sT[0]}, 9
s_bfe_u32 s{sT[2]}, s{sCs}, 0x50002
s_lshl_b32 s{sT[2]}, s{sT[2]}, 4
s_add_u32 s{sT[0]}, s{sT[0]}, s{sT[2]}
s_add_u32 s{sT[0]}, s{sT[0]}, {WS_KB}
s_lshl_b32 s{sT[1]}, s{sT[1]}, 4
s_add_u32 m0, s{sT[1]}, {L_KV + 2 * 4608}''')
        vm(f'buffer_load_dwordx4 v{vT[0]}, {W}, s{sT[0]} offen sc1 lds')
    S.add(at2, go)


def conv(vm, lg):
    S = Side()
    e = S.spread(0, 3, horner(0, vm, lg)[1])
    left = 50 - c_issued[0] - OPT['cl2'] - OPT['cs2']
    for i in range(left):
        S.add(i * OPT['clend'] // left, lambda: c_load(vm))
    S.spread(0, 1, z_loads(vm))
    S.add(0, lambda: lg(f'ds_read_b64 a[{A_ZU}:{A_ZU + 1}], v{vZ + 3}'))
    S.spread(14, 2, [lambda: vm.wait('xt')]
             + [lambda m=m: lg(f'ds_read_b64 a[{A_X + 2 * m}:{A_X + 2 * m + 1}], v{vXT} offset:{32 * m}') for m in range(5)]
             + [lambda m=m: lg(f'ds_read_b64 a[{A_DSK + 2 * m}:{A_DSK + 2 * m + 1}], v{vXT + 1} offset:{2560 + 32 * m}')
                for m in range(5)])
    marks_gather(S, vm, 1)
    S.add(1, lambda: srd(R_T0, P_OUT, 5242880))
    if OPT['tch']:
        S.add(OPT['tch'], retouch())
    if OPT['prefetch'] & 2:
        S.add(10, atom(code_touch()))
    pre, ld = agg_ld(0)
    S.spread(OPT['aggl'] - 2, 4, pre)
    for z in range(4):
        S.add(OPT['aggl'] + z // 2, lambda z=z: vm(ld[z], 'agg'))
    nu = OPT['nu']
    cv = Conv([(0, u, list(range(8)), CX) for u in range(nu)], lg)
    cv.emit(0, 36 * nu, S)
    assert not cv.todo and not S.left(), S.left()
    stamp('conv')
    def glue1(lg):
        for i, r in enumerate(YREG + G2REG):
            A(f'v_accvgpr_read_b32 v{r}, a{A_CV + 4 + i}')
        for j in range(4):
            lg(f'ds_read_b64 {v2(KVM + 2 * j)}, v{yKm} offset:{512 * (3 - j)}')
        lg(f'ds_read_b64 {v2(KVX)}, v{yKx}', 'kvm')

    def glue2():
        A(f's_bitcmp0_b32 s{sW}, 0')
        with A.skip_if('s_cbranch_scc1', lambda c: not c['w'] & 1):
            for i in range(16):
                A(f'v_swap_b32 v{CX + i}, v{CX + 16 + i}')

    def yflag(lg):
        A(f'''s_lshl_b32 s{sT[0]}, s{sC0}, 1
s_add_u32 s{sT[0]}, s{sT[0]}, {WS_FY}
v_mov_b32 v{vT[4]}, s{sTag}
s_and_b32 exec_lo, s{sPub}, 1
s_mov_b32 exec_hi, 0
buffer_store_dword v{vT[4]}, off, {W}, s{sT[0]} sc1
s_mov_b64 exec, -1''')
    fy = f'buffer_load_dwordx4 {v4(vFY)}, v{vL16}, {W}, s{sX[5]} offen sc1'
    extra = [lambda: c_load(vm)] * OPT['cs2']
    st = scan_2(0, vm, ld, {0: yflag, 4: glue1}, OPT['defer'], extra)
    assert not extra
    lt, lj = A.label('type'), A.label('join')
    A.cond[lt] = lambda c: c['ty']
    A(f's_bitcmp1_b32 s{sJ}, 0\ns_cbranch_scc1 {lt}')
    p0 = PREV[0]
    for ty in range(2):
        v, lg, S = copy.deepcopy(vm), LG(), Side()
        PREV[0], c_issued[0] = p0, 50 - OPT['cl2']
        o = 9 * (4 - nu)
        for j in range(OPT['defer'], 5):
            S.add((j - OPT['defer']) * OPT['stp'] // 2, lambda j=j: st(j, v))
        for i in range(OPT['cl2']):
            S.add(OPT['cl2s'] + i * (o + 8 - OPT['cl2s']) // OPT['cl2'], lambda: c_load(v))
        S.add(OPT['hfl'], lambda: h_flag(0, v))
        S.add(o + 1, glue2)
        for j in range(4):
            S.add(o + 2 + j, lambda j=j: lg(f'ds_write_b128 v{yPw}, {v4(CX + 16 + 4 * j)} offset:{1024 * j}'))
        S.add(o + 4, 's_barrier')
        S.add(o + OPT['yp0'], atom(f's_mov_b32 s{sX[5]}, {WS_FY}', lambda: v(fy, 'fy')))
        S.add(o + OPT['hp'], lambda: v(H_POLL, 'fh'))
        cv = Conv([(0, u, list(range(8)), CX) for u in range(nu, 4)] + [(1, u, JSET[ty], CY) for u in range(2)], lg, True)
        cv.emit(0, len(cv.seq), S)
        assert not S.left()
        if ty == 0:
            A(f's_branch {lj}\n{lt}:')
    A(f'{lj}:')
    stamp('conv2')
    PM, PS = 208, 224
    for x in range(4):
        A(f'ds_write_b128 v{ySw}, {v4(CY + 4 * x)} offset:{1024 * x}')
    for j in range(4):
        run(y_dterm(CX + 4 * j, KVM + 2 * j, sDm[0], sDm[1]))
    v.wait('fy')
    check_tags([vFY + i for i in range(4)], fy)
    g2 = G2(0, v)
    g2.begin()
    A('s_waitcnt lgkmcnt(0)\ns_barrier')
    for j in range(4):
        A(f'ds_read_b128 {v4(PM + 4 * j)}, v{yPr} offset:{1024 * j}')
    for x in range(4):
        A(f'ds_read_b128 {v4(PS + 4 * x)}, v{ySr} offset:{4096 * x}')
    it = ['s_waitcnt lgkmcnt(0)']
    for j in range(4):
        p = PM + 4 * j
        it += [f'v_add_f32 v{p + i}, v{CX + 4 * j + i}, v{p + i}' for i in range(4)]
        it += [f'v_cvt_pk_bf16_f32 v{p}, v{p}, v{p + 1}', f'v_cvt_pk_bf16_f32 v{p + 1}, v{p + 2}, v{p + 3}',
               lambda j=j, p=p: v(f'buffer_store_dwordx2 {v2(p)}, v{yS}, {W}, s{sYO[0]} offen offset:{512 * j} sc1')]
    it += y_dterm(PS, KVX, sDm[2], sDm[3])
    it += [f'v_add_f32 v{PS + 4 + i}, v{PS + 4 + i}, v{PS + 8 + i}' for i in range(4)]
    it += [f'v_add_f32 v{PS + i}, v{PS + i}, v{PS + 12 + i}' for i in range(4)]
    it += [f'v_add_f32 v{PS + i}, v{PS + i}, v{PS + 4 + i}' for i in range(4)]
    it += [f'v_cvt_pk_bf16_f32 v{PS}, v{PS}, v{PS + 1}', f'v_cvt_pk_bf16_f32 v{PS + 1}, v{PS + 2}, v{PS + 3}',
           lambda: v(f'buffer_store_dwordx2 {v2(PS)}, v{yS}, {W}, s{sYO[1]} offen sc1')]
    g2.ytail = it
    stamp('y_rd')
    return g2


YF, ZR = BF, BF + 20
P0, P1 = 192, 212
XT, DP, ZU, F1, F2 = 98, 100, 102, 88, 92
vHA, vYD, vYR = 244, 252, 253
G2REG = vU[2:5] + [vHA]
YP = 232


def g2_setup(layer):
    hb = HB[layer]
    A(f's_mul_i32 s{sT[1]}, s{sR64}, 163840\ns_mul_i32 s{sT[2]}, s{sW}, 10240\n'
      f's_add_u32 s{sT[1]}, s{sT[1]}, s{sT[2]}\ns_add_u32 s{sT[1]}, s{sT[1]}, {hb}')
    for z in range(4):
        A(f's_add_u32 s{sT[2]}, s{sW}, {z + 1}\ns_and_b32 s{sT[2]}, s{sT[2]}, 3\n'
          f's_mul_i32 s{sT[3]}, s{sT[2]}, 40960\ns_add_u32 s{sDS[z]}, s{sT[3]}, s{sT[1]}')
        if z < 2:
            A(f's_mul_i32 s{sT[3]}, s{sT[2]}, 10240\ns_add_u32 s{sT[3]}, s{sT[3]}, {L_RED + z * 5120}\n'
              f'v_add_u32 v{vU[2 + z]}, s{sT[3]}, v{vL16}')
        if z == 2:
            A(f's_mul_i32 s{sT[3]}, s{sT[2]}, 5120\nv_add_u32 v{vU[2 + z]}, s{sT[3]}, v{vL16}')
    A(f'''s_lshl_b32 s{sZ[3]}, s{sR128}, 10
s_lshl_b32 s{sT[1]}, s{sW}, 6
s_add_u32 s{sZ[3]}, s{sZ[3]}, s{sT[1]}
s_and_b32 s{sT[1]}, s{sR64}, 1
s_lshl_b32 s{sT[1]}, s{sT[1]}, 3
s_add_u32 s{sZ[3]}, s{sZ[3]}, s{sT[1]}
s_add_u32 s{sZ[3]}, s{sZ[3]}, {WS_FH + layer * 256}
v_and_b32 v{vHA}, 3, v{vL}
v_lshlrev_b32 v{vHA}, 4, v{vHA}''')


def z_addr():
    t = vT
    A(f'''s_lshl_b32 s{sT[0]}, s{sR64}, 6
s_lshr_b32 s{sT[1]}, s{sW}, 1
s_lshl_b32 s{sT[1]}, s{sT[1]}, 5
s_add_u32 s{sT[0]}, s{sT[0]}, s{sT[1]}
s_and_b32 s{sT[1]}, s{sW}, 1
s_lshl_b32 s{sT[1]}, s{sT[1]}, 2
s_add_u32 s{sT[0]}, s{sT[0]}, s{sT[1]}
s_mul_i32 s{sZ[0]}, s{sT[0]}, 1280
s_mul_i32 s{sT[1]}, s{sS8}, 160
s_add_u32 s{sZ[0]}, s{sZ[0]}, s{sT[1]}
s_lshl_b32 s{sZ[2]}, s{sW}, 12
s_add_u32 s{sZ[2]}, s{sZ[2]}, {L_PS}''')
    for z in range(3):
        A(f'''v_add_u32 v{t[0]}, {64 * z}, v{vL}
v_mul_u32_u24 v{t[1]}, 205, v{t[0]}
v_lshrrev_b32 v{t[1]}, 11, v{t[1]}
v_lshrrev_b32 v{t[2]}, 2, v{t[1]}
v_mul_u32_u24 v{t[1]}, 1120, v{t[1]}
v_mul_u32_u24 v{t[2]}, 5120, v{t[2]}
v_lshlrev_b32 v{t[0]}, 4, v{t[0]}
v_add3_u32 v{vZ + z}, v{t[0]}, v{t[1]}, v{t[2]}''')
    A(f'''s_and_b32 s{sT[0]}, s{sR64}, 1
s_lshl_b32 s{sT[0]}, s{sT[0]}, 2
s_add_u32 s{sT[0]}, s{sT[0]}, s{sW}
s_lshr_b32 s{sT[1]}, s{sT[0]}, 1
s_lshl_b32 s{sT[1]}, s{sT[1]}, 8
s_and_b32 s{sT[0]}, s{sT[0]}, 1
s_lshl_b32 s{sT[0]}, s{sT[0]}, 5
s_add_u32 s{sT[0]}, s{sT[0]}, s{sT[1]}
s_add_u32 s{sT[0]}, s{sT[0]}, {L_RS}
v_lshrrev_b32 v{t[1]}, 2, v{vI}
v_lshlrev_b32 v{t[1]}, 6, v{t[1]}
v_and_b32 v{t[2]}, 3, v{vI}
v_lshl_add_u32 v{t[1]}, v{t[2]}, 3, v{t[1]}
v_add_u32 v{vZ + 3}, s{sT[0]}, v{t[1]}
v_and_b32 v{t[2]}, 7, v{vI}
v_lshlrev_b32 v{t[2]}, 3, v{t[2]}
v_lshl_add_u32 v{t[2]}, v{vQ}, 6, v{t[2]}
s_lshl_b32 s{sT[0]}, s{sW}, 8
s_add_u32 s{sT[0]}, s{sT[0]}, {L_RS}
v_add_u32 v{vZ + 4}, s{sT[0]}, v{t[2]}
v_lshl_add_u32 v{vXT + 1}, v{vQ}, 3, s{sZ[2]}
v_mul_u32_u24 v{vXT}, 160, v{vI}
v_lshl_add_u32 v{vXT}, v{vQ}, 3, v{vXT}
v_add_u32 v{vXT}, s{sZ[2]}, v{vXT}''')


def z_loads(vm):
    it = []
    for z in range(3):
        it.append(atom(f's_add_u32 m0, s{sZ[2]}, {1024 * z}', 's_mov_b32 exec_hi, 0' if z == 2 else [],
                       lambda z=z: vm(f'buffer_load_dwordx4 v{vZ + z}, {s4(R_X)}, s{sZ[0]} offen lds', 'xt'),
                       's_mov_b32 exec_hi, -1' if z == 2 else []))
    it.append(atom(lambda: srd(R_T1, P_DSK, 1280), f's_add_u32 m0, s{sZ[2]}, 2560', f's_mul_i32 s{sT[0]}, s{sS8}, 160',
                   's_mov_b64 exec, 0x3ff',
                   lambda: vm(f'buffer_load_dwordx4 v{vL16}, {s4(R_T1)}, s{sT[0]} offen lds', 'xt'), 's_mov_b64 exec, -1'))
    return it


def z_work():
    b = [f'v_accvgpr_read_b32 v{ZU}, a{A_ZU}', f'v_accvgpr_read_b32 v{ZU + 1}, a{A_ZU + 1}', f'v_mul_f32 v{ZU}, v{ZU}, v{ZU + 1}']
    for m in range(5):
        for i in range(2):
            b += [f'v_accvgpr_read_b32 v{XT + i}, a{A_X + 2 * m + i}', f'v_accvgpr_read_b32 v{DP + i}, a{A_DSK + 2 * m + i}']
        b += unpack(ZR + 4 * m, XT, 2) + unpack(F2, DP, 2)
        for i in range(4):
            b.append(f'v_fma_f32 v{F1 + i}, v{ZR + 4 * m + i}, v{ZU + 1}, -v{ZU}')
        for i in range(4):
            b.append(f'v_fmac_f32 v{ZR + 4 * m + i}, v{F1 + i}, v{F2 + i}')
    return b


H_POLL = f'buffer_load_dwordx2 {v2(vU[0])}, v{vHA}, {W}, s{sZ[3]} offen sc1'


class G2:
    def __init__(self, layer, vm):
        self.layer, self.vm, self.nxt = layer, vm, 0

    def ld(self):
        f = self.nxt
        self.nxt += 1
        z, k = divmod(f, 10)
        if k and k % 4 == 0:
            A(f's_add_u32 s{sDS[z]}, s{sDS[z]}, 4096')
        self.vm(f'buffer_load_dwordx4 {v4(RING + 4 * (f % NR))}, v{vL16}, {WH}, s{sDS[z]} offen '
                f'offset:{(k % 4) * 1024} sc1', ('h', f))

    def begin(self):
        if self.layer == 0:
            self.vm.wait('fh')
        check_tags([vU[0], vU[1]], H_POLL, inline=2 - self.layer)
        self.vm.done = self.vm.n if self.layer else self.vm.done
        stamp(f'h_ready_{self.layer}')
        for f in range(OPT['n0'] if self.layer else OPT['n00']):
            self.ld()


def gemm2(g2):
    layer, vm, ld = g2.layer, g2.vm, g2.ld
    side, lg = Side(), LG()
    n0 = g2.nxt
    last = 0
    for f in range(n0, 40):
        last = max(f - n0, f - NR + 1)
        side.add(last, ld)
    last += 1
    hooks = []
    ze = 0
    if layer == 0:
        e = side.spread(OPT['ys'], OPT['yper'], g2.ytail)
        side.add(e, 's_barrier')
        assert e < 11
        ze = side.spread(e, OPT['zper'], z_work())
        assert ze <= OPT['rb'] - 4 * OPT['r3'], ze
        side.add(OPT['yp'] + 1, f'''s_mul_i32 s{sX[6]}, s{sS8}, 327680
s_lshl_b32 s{sT[0]}, s{sR64}, 7
s_add_u32 s{sX[6]}, s{sX[6]}, s{sT[0]}
s_lshr_b32 s{sT[0]}, s{sW}, 1
s_mul_i32 s{sX[7]}, s{sT[0]}, 5120
s_add_u32 s{sX[7]}, s{sX[7]}, {L_Y}
s_lshl_b32 s{sT[0]}, s{sT[0]}, 6
s_add_u32 s{sX[6]}, s{sX[6]}, s{sT[0]}
s_add_u32 s{sX[6]}, s{sX[6]}, {WS_Y}
s_mov_b32 s{sX[5]}, s{sX[6]}''')
        side.add(OPT['yp'] + 2, f'''s_and_b32 s{sT[0]}, s{sW}, 1
s_mul_i32 s{sT[1]}, s{sT[0]}, {3 * 65536}
s_add_u32 s{sX[6]}, s{sX[6]}, s{sT[1]}
s_mul_i32 s{sT[1]}, s{sT[0]}, 3072
s_add_u32 s{sX[8]}, s{sX[7]}, s{sT[1]}
s_lshl_b32 s{sT[0]}, s{sT[0]}, 3
s_add_u32 s{sX[7]}, s{sX[7]}, s{sT[0]}
v_lshrrev_b32 v{vYD}, 2, v{vL}
v_lshlrev_b32 v{vYD}, 12, v{vYD}
v_and_b32 v{vT[1]}, 3, v{vL}
v_lshl_add_u32 v{vYD}, v{vT[1]}, 4, v{vYD}''')

        def ydma(m):
            A(f's_add_u32 m0, s{sX[8]}, {m * 1024}')
            if m == 2:
                A(f's_bitcmp1_b32 s{sW}, 0\ns_cselect_b32 s{sX[6]}, {OOB}, s{sX[6]}\ns_cselect_b32 m0, {LDS_SIZE}, m0')
            vm(f'buffer_load_dwordx4 v{vYD}, {W}, s{sX[6]} offen sc1 lds', 'yd')
            A(f's_add_u32 s{sX[6]}, s{sX[6]}, 65536')
        side.add(last, *[lambda m=m: ydma(m) for m in range(3)])
        side.add(last + 1, f'v_add_u32 v{vYR}, s{sX[7]}, v{vL16}')
    else:
        if OPT['wb'] & 2:
            side.add(OPT['wbs'] or last + 1, wbl2)
    rd = lambda p, a, off, nm: [lambda i=i: lg(f'ds_read_b128 {v4(p + 4 * i)}, v{a} offset:{off + 1024 * i}', nm) for i in range(5)]
    add = lambda d, s: [f'v_add_f32 v{d + i}, v{d + i}, v{s + i}' for i in range(20)]
    side.add(OPT['ra'] - 1, f's_mul_i32 s{sT[3]}, s{sW}, 10240\ns_add_u32 s{sT[3]}, s{sT[3]}, {L_RED}\n'
                            f'v_add_u32 v{vU[5]}, s{sT[3]}, v{vL16}')
    bar = lambda: (lg.wait('pw'), A('s_barrier'))
    wp = OPT['wper']
    for z in range(3):
        pa = ACC + 20 * (z & 1)
        for m in range(5):
            side.q.setdefault(10 * z + 11 + m // wp, []).insert(
                m % wp, lambda z=z, m=m, pa=pa: lg(f'ds_write_b128 v{vU[2 + z]}, {v4(pa + 4 * m)} offset:{1024 * m}', 'pw'))
    if OPT['r3']:
        e = side.spread(OPT['ra'], 5, [bar] + rd(P0, vU[5], 0, 'p0'))
        side.spread(max(e, ze), 5, [lambda: lg.wait('p0')] + add(ZR, P0))
        e = side.spread(OPT['rb'], OPT['rper'], [bar] + rd(P1, vU[5], 5120, 'p1') + [lambda: lg.wait('p1')] + add(ZR, P1))
    else:
        e = side.spread(OPT['rb'], OPT['rper'], [bar] + rd(P0, vU[5], 0, 'p0') + rd(P1, vU[5], 5120, 'p1') + [lambda: lg.wait('p0')]
                        + add(ZR, P0) + [lambda: lg.wait('p1')] + add(ZR, P1))
    assert e <= 30, e
    side.add(OPT['rc'] - 1, f's_mul_i32 s{sT[3]}, s{sW}, 5120\nv_add_u32 v{vU[5]}, s{sT[3]}, v{vL16}')
    side.spread(OPT['rc'], 6, [bar] + rd(P0, vU[5], 0, 'p2'))
    for z in range(4):
        if OPT['stamps'] < 3:
            stamp(f'.z{z}_{layer}', 2)
        acc = ACC + 20 * (z & 1)
        for k in range(10):
            f = 10 * z + k
            vm.wait(('h', f))
            for h in list(hooks):
                if vm.t[h[0]] <= vm.done:
                    hooks.remove(h)
                    h[1]()
            for m in range(5):
                d = acc + 4 * m
                c = v4(d) if k else ('0' if z < 3 else v4(ZR + 4 * m))
                A(f'v_mfma_f32_16x16x32_bf16 {v4(d)}, {a4(4 * (5 * k + m))}, {v4(RING + 4 * (f % NR))}, {c}')
                side.run(f, 5 - m)
    assert not side.left() and not hooks
    stamp(f'g2_{layer}')
    return lg


def allreduce_q(r, t):
    for op in ('v_permlane32_swap_b32', 'v_permlane16_swap_b32'):
        A(f'''v_mov_b32 v{t}, v{r}
v_mov_b32 v{t + 1}, v{r + 1}
{op} v{r}, v{t}
{op} v{r + 1}, v{t + 1}
v_add_f32 v{r}, v{r}, v{t}
v_add_f32 v{r + 1}, v{r + 1}, v{t + 1}''')


def epilogue(layer, vm, lg):
    a = ACC + 20
    S = 212
    G = 228
    inv = 0x3acccccd
    A(f'''s_lshl_b32 s{sT[0]}, s{sR64}, 15
s_lshl_b32 s{sT[1]}, s{sW}, {9 - layer}
s_add_u32 s{sT[0]}, s{sT[0]}, s{sT[1]}
s_add_u32 s{sT[0]}, s{sT[0]}, {WS_ST + layer * 2048}
s_lshl_b32 s{sT[1]}, s{sS8}, 12
s_add_u32 s{sT[1]}, s{sT[1]}, s{sT[0]}''')
    lg.wait('p2')
    if layer == 0:
        vm.wait('yd')
        A('s_barrier')
        stamp('y_in')
        lg = LG()
        yrd = [f'ds_read_b64_tr_b16 {v2(YP + 2 * m)}, v{vYR} offset:{m * 1024}' for m in range(5)]
        for m in range(5):
            lg(yrd[m], ('y', m))
        A(unpark('bd', 244) + '\n' + unpark('bd2', 245))
    for i in range(10):
        A(f'v_pk_add_f32 {v2(a + 2 * i)}, {v2(a + 2 * i)}, {v2(P0 + 2 * i)}')
    A(f'v_pk_add_f32 {v2(S)}, {v2(a)}, {v2(a + 2)}\nv_pk_mul_f32 {v2(S + 2)}, {v2(a)}, {v2(a)}')
    for i in range(1, 10):
        if i >= 2:
            A(f'v_pk_add_f32 {v2(S)}, {v2(S)}, {v2(a + 2 * i)}')
        A(f'v_pk_fma_f32 {v2(S + 2)}, {v2(a + 2 * i)}, {v2(a + 2 * i)}, {v2(S + 2)}')
    if layer == 0:
        AY = 160
        lg.wait(('y', 4))
        x = vT[4]
        chk = [f'v_pk_max_u16 v{x}, v{YP}, v{YP + 1}'] + [f'v_pk_max_u16 v{x}, v{x}, v{YP + i}' for i in range(2, 10)]
        chk += [f'v_lshlrev_b32 v{vT[3]}, 16, v{x}', f'v_max_u32 v{x}, v{x}, v{vT[3]}', f'v_cmp_le_u32 vcc, 0xffff0000, v{x}']
        lab, done = A.label('again'), A.label('ok')
        A.cond[lab] = lambda c: False
        A('\n'.join(chk) + f'\ns_cbranch_vccnz {lab}\n{done}:')
        slow = [f'{lab}:', f's_sub_u32 s{sBud}, s{sBud}, 1', f's_cmp_gt_i32 s{sBud}, 0', f's_cbranch_scc0 {done}',
                f's_mul_i32 s{sX[8]}, s{sW}, 10240', f's_add_u32 s{sX[8]}, s{sX[8]}, {L_RED + 5120}',
                f's_and_b32 s{sX[6]}, s{sW}, 1', f's_lshl_b32 s{sX[6]}, s{sX[6]}, 3', f's_add_u32 s{sX[6]}, s{sX[6]}, s{sX[8]}',
                f'v_add_u32 v{vYR}, s{sX[6]}, v{vL16}']
        for m in range(5):
            slow += [f's_add_u32 m0, s{sX[8]}, {m * 1024}', f's_add_u32 s{sX[6]}, s{sX[5]}, {m * 65536}',
                     f'buffer_load_dwordx4 v{vYD}, {W}, s{sX[6]} offen sc1 lds']
        TAIL.append('\n'.join(slow + ['s_waitcnt vmcnt(0)'] + yrd + ['s_waitcnt lgkmcnt(0)'] + chk
                              + [f's_cbranch_vccnz {lab}', f's_branch {done}']))
        stamp('y_ok')
        for m in range(5):
            lg.wait(('y', m))
            A('\n'.join(unpack(YF + 4 * m, YP + 2 * m, 2)))
            if m in (0, 2, 4):
                b_dma(vm, 0, m, 244, 245)
            for i in (2 * m, 2 * m + 1):
                x, y, ay = v2(a + 2 * i), v2(YF + 2 * i), v2(AY + 2 * i)
                A(f'v_pk_mul_f32 {ay}, {x}, {y}')
                if i == 0:
                    A(f'v_pk_mul_f32 {v2(S + 14)}, {y}, {y}\nv_pk_mul_f32 {v2(S + 6)}, {ay}, {x}\n'
                      f'v_pk_mul_f32 {v2(S + 8)}, {ay}, {ay}\nv_pk_mul_f32 {v2(S + 10)}, {ay}, {y}')
                else:
                    p2 = v2(AY) if i == 1 else v2(S + 4)
                    p6 = v2(YF) if i == 1 else v2(S + 12)
                    A(f'v_pk_add_f32 {v2(S + 12)}, {p6}, {y}\nv_pk_fma_f32 {v2(S + 14)}, {y}, {y}, {v2(S + 14)}\n'
                      f'v_pk_add_f32 {v2(S + 4)}, {p2}, {ay}\nv_pk_fma_f32 {v2(S + 6)}, {ay}, {x}, {v2(S + 6)}\n'
                      f'v_pk_fma_f32 {v2(S + 8)}, {ay}, {ay}, {v2(S + 8)}\n'
                      f'v_pk_fma_f32 {v2(S + 10)}, {ay}, {y}, {v2(S + 10)}')
        for k in range(8):
            A(f'v_add_f32 v{S + 2 * k}, v{S + 2 * k}, v{S + 2 * k + 1}')
        for k in range(4):
            A(f'v_permlane16_swap_b32 v{S + 2 * k}, v{S + 2 * k + 8}')
        for k in range(4):
            A(f'v_add_f32 v{G + k}, v{S + 2 * k}, v{S + 2 * k + 8}')
        for k in range(4):
            A(f'v_mov_b32 v{S + k}, v{G + k}')
        for k in range(4):
            A(f'v_permlane32_swap_b32 v{G + k}, v{S + k}')
        A(f's_movk_i32 s{sT[2]}, 0xff')
        for k in range(4):
            A(f'v_add_f32 v{G + k}, v{G + k}, v{S + k}')
        for k in range(4):
            A(f's_lshr_b32 s{sT[3]}, s{sTag}, {8 * k}\nv_mov_b32 v{S + k}, s{sT[3]}\n'
              f'v_bfi_b32 v{G + k}, s{sT[2]}, v{S + k}, v{G + k}')
        A('s_mov_b32 exec_hi, 0')
        mode_stores([f'buffer_store_dwordx4 {v4(G)}, v{vL16}, {W}, s{sT[1]} offen'], through=OPT['thr'] & 16)
        A('s_mov_b32 exec_hi, -1')
        stamp('st_pub_0')
        if OPT['prefetch'] & 4:
            run(code_touch())
        for i in range(10):
            A(f'v_accvgpr_write_b32 a{A_Y + i}, v{YP + i}')
        A(f'''v_lshrrev_b32 v{vT[0]}, 2, v{vI}
v_mul_u32_u24 v{vT[0]}, 5120, v{vT[0]}
v_and_b32 v{vT[1]}, 3, v{vI}
v_lshl_add_u32 v{vT[0]}, v{vT[1]}, 4, v{vT[0]}
v_lshrrev_b32 v{vT[1]}, 1, v{vQ}
v_lshl_add_u32 v{vT[0]}, v{vT[1]}, 6, v{vT[0]}
v_and_b32 v{vT[1]}, 1, v{vQ}
v_lshl_add_u32 v{vU[5]}, v{vT[1]}, 3, v{vT[0]}
s_lshl_b32 s{sX[1]}, s{sR64}, 2
s_add_u32 s{sX[1]}, s{sX[1]}, s{sW}
s_mul_i32 s{sX[1]}, s{sX[1]}, 20480
s_mul_i32 s{sT[2]}, s{sS8}, 640
s_add_u32 s{sX[1]}, s{sX[1]}, s{sT[2]}
s_add_u32 s{sX[1]}, s{sX[1]}, {WS_U2}''')
        DPk, DF = 190, 108
        for i in range(10):
            A(f'v_accvgpr_read_b32 v{DPk + i}, a{A_DSK + i}')
        A('\n'.join(unpack(DF, DPk, 10)))
        A(f'''s_lshl_b32 s{sX[0]}, s{sR128}, 10
s_lshr_b32 s{sT[1]}, s{sW}, 1
s_lshl_b32 s{sT[1]}, s{sT[1]}, 7
s_add_u32 s{sX[0]}, s{sX[0]}, s{sT[1]}
s_and_b32 s{sT[1]}, s{sW}, 1
s_lshl_b32 s{sT[1]}, s{sT[1]}, 3
s_add_u32 s{sX[0]}, s{sX[0]}, s{sT[1]}
s_add_u32 s{sX[0]}, s{sX[0]}, {WS_FU}
v_and_b32 v{vU[4]}, 7, v{vL}
v_lshlrev_b32 v{vU[4]}, 4, v{vU[4]}
s_add_u32 s{sL[0]}, s{sXs}, {WS_U2}
s_add_u32 s{sL[1]}, s{sL[0]}, 20480
s_lshl_b32 s{sEpW}, s{sR64}, 5
s_lshl_b32 s{sT[1]}, s{sS8}, 2
s_add_u32 s{sEpW}, s{sEpW}, s{sT[1]}
s_add_u32 s{sEpW}, s{sEpW}, s{sW}''')
        A(f'''v_and_b32 v{vT[0]}, 31, v{vL}
v_lshlrev_b32 v{vT[0]}, 4, v{vT[0]}
v_lshrrev_b32 v{vT[1]}, 5, v{vL}
v_lshl_add_u32 v{vT[0]}, v{vT[1]}, 14, v{vT[0]}
s_mov_b32 s{sT[2]}, 0x0c0c0400
s_mov_b32 s{sT[3]}, 0x04000c0c
s_add_u32 s{sX[2]}, s{sT[0]}, 4096
s_add_u32 s{sX[3]}, s{sT[0]}, 8192
s_add_u32 s{sX[4]}, s{sT[0]}, 12288''')
        back = A.label('stpoll')
        A(f'{back}:')
        Q = 128
        for sl, so in enumerate((sT[0], sX[2], sX[3], sX[4])):
            A(f'buffer_load_dwordx4 {v4(Q + 4 * sl)}, v{vT[0]}, {W}, s{so} offen sc1')
        A('s_waitcnt vmcnt(0)')
        for sl in range(4):
            q = Q + 4 * sl
            A(f'v_perm_b32 v{S + 2 * sl}, v{q + 1}, v{q}, s{sT[2]}\nv_perm_b32 v{S + 2 * sl + 1}, v{q + 3}, v{q + 2}, s{sT[3]}')
        for sl in range(4):
            A(f'v_or_b32 v{S + 2 * sl}, v{S + 2 * sl}, v{S + 2 * sl + 1}')
        lo, hi = vT[2], vT[3]
        A(f'''v_min3_u32 v{lo}, v{S}, v{S + 2}, s{sTag}
v_max3_u32 v{hi}, v{S}, v{S + 2}, s{sTag}
v_min3_u32 v{lo}, v{lo}, v{S + 4}, v{S + 6}
v_max3_u32 v{hi}, v{hi}, v{S + 4}, v{S + 6}
v_cmp_ne_u32 vcc, v{lo}, v{hi}''')
        retry(back)
        stamp('st_in_0')
        for hf in (0, 2):
            A(f'v_pk_add_f32 {v2(Q + hf)}, {v2(Q + hf)}, {v2(Q + 4 + hf)}\n'
              f'v_pk_add_f32 {v2(Q + 8 + hf)}, {v2(Q + 8 + hf)}, {v2(Q + 12 + hf)}')
        for hf in (0, 2):
            A(f'v_pk_add_f32 {v2(Q + hf)}, {v2(Q + hf)}, {v2(Q + 8 + hf)}')
        s = lambda k: S + k
        for k in range(4):
            A(f'v_mov_b32 v{Q + 4 + k}, v{Q + k}')
        for k in range(4):
            A(f'v_permlane32_swap_b32 v{Q + k}, v{Q + 4 + k}')
        for k in range(4):
            A(f'v_add_f32 v{s(k)}, v{Q + k}, v{Q + 4 + k}')
        for k in range(4):
            A(f'v_mov_b32 v{s(4 + k)}, v{s(k)}')
        for k in range(4):
            A(f'v_permlane16_swap_b32 v{s(k)}, v{s(4 + k)}')
        m1, r1, k1, t0, t1, r2, k2 = 200, 202, 203, 204, 205, 206, 207
        A(f'''v_mul_f32 v{m1}, {inv:#x}, v{s(0)}
v_mul_f32 v{t0}, {inv:#x}, v{s(1)}
v_fma_f32 v{t0}, -v{m1}, v{m1}, v{t0}
v_max_f32 v{t0}, 0, v{t0}
v_add_f32 v{t0}, 0x3727c5ac, v{t0}
v_rsq_f32 v{r1}, v{t0}
v_mul_f32 v{k1}, v{m1}, v{r1}
v_fma_f32 v{t0}, v{r1}, v{s(2)}, v{s(0)}
v_fma_f32 v{t0}, -v{k1}, v{s(6)}, v{t0}
v_mul_f32 v{t1}, v{r1}, v{s(4)}
v_fma_f32 v{t1}, 2.0, v{s(3)}, v{t1}
v_fma_f32 v{t1}, v{r1}, v{t1}, v{s(1)}
v_fma_f32 v{s(2)}, v{r1}, v{s(5)}, v{s(2)}
v_mul_f32 v{s(7)}, v{k1}, v{s(7)}
v_fma_f32 v{s(2)}, -2.0, v{s(2)}, v{s(7)}
v_fma_f32 v{t1}, v{k1}, v{s(2)}, v{t1}
v_mul_f32 v{t0}, {inv:#x}, v{t0}
v_mul_f32 v{t1}, {inv:#x}, v{t1}
v_fma_f32 v{t1}, -v{t0}, v{t0}, v{t1}
v_max_f32 v{t1}, 0, v{t1}
v_add_f32 v{t1}, 0x3727c5ac, v{t1}
v_rsq_f32 v{r2}, v{t1}
v_mul_f32 v{k2}, v{t0}, v{r2}''')
        bc = 'op_sel:[0,0,1] op_sel_hi:[1,0,1] neg_lo:[0,0,1] neg_hi:[0,0,1]'
        U, UP = 160, 180
        for i in range(10):
            A(f'v_pk_fma_f32 {v2(U + 2 * i)}, {v2(a + 2 * i)}, {v2(r1)}, {v2(r1)} {bc}')
        for i in range(10):
            A(f'v_pk_fma_f32 {v2(a + 2 * i)}, {v2(U + 2 * i)}, {v2(YF + 2 * i)}, {v2(a + 2 * i)}')
        for i in range(10):
            A(f'v_pk_fma_f32 {v2(U + 2 * i)}, {v2(a + 2 * i)}, {v2(r2)}, {v2(r2)} {bc}')
        for i in range(10):
            A(f'v_cvt_pk_bf16_f32 v{UP + i}, v{U + 2 * i}, v{U + 2 * i + 1}')
        mode_stores([f'buffer_store_dwordx2 {v2(UP + 2 * m)}, v{vU[5]}, {W}, s{sX[1]} offen offset:{128 * m}'
                     for m in range(5)], through=OPT['thr'] & 8)
        stamp('u2_st')
        for i in range(10):
            A(f'v_pk_fma_f32 {v2(a + 2 * i)}, {v2(U + 2 * i)}, {v2(DF + 2 * i)}, {v2(a + 2 * i)}')
        for i in range(20):
            A(f'v_accvgpr_write_b32 a{A_Z + i}, v{a + i}')
        A(f's_add_u32 s{sT[1]}, s{sFW}, {WS_FU}\ns_waitcnt vmcnt(0)')
        flag_store(f's{sT[1]}', True)
        A(f's_cmp_lg_u32 s{sEpW}, {31 * 32}')
        with A.skip_if('s_cbranch_scc1', lambda c: True):
            flag_store('0', False)
        fl = f'buffer_load_dwordx2 {v2(vU[0])}, v{vU[4]}, {W}, s{sX[0]} offen sc1'
        check_tags([vU[0], vU[1]], fl, inline=1)
        stamp('u2_ready')
    else:
        A(f'v_add_f32 v{G}, v{S}, v{S + 1}\nv_add_f32 v{G + 1}, v{S + 2}, v{S + 3}\nv_mov_b32 v{G + 2}, s{sTag}\n'
          f'v_mov_b32 v{G + 3}, s{sTag}')
        allreduce_q(G, S)
        A('s_mov_b64 exec, 0xffff')
        mode_stores([f'buffer_store_dwordx4 {v4(G)}, v{vL16}, {W}, s{sT[1]} offen'], through=OPT['thr'] & 16)
        A('s_mov_b64 exec, -1')
        stamp('st_pub_1')
        if OPT['wb'] & 64:
            wbl2()
        lg = LG()
        X3, Y3 = 160, YF
        A(f'''s_mul_i32 s{sT[2]}, s{sW}, 10240
s_add_u32 s{sT[2]}, s{sT[2]}, {L_RED}
v_lshrrev_b32 v{vT[1]}, 1, v{vI}
v_xor_b32 v{vT[1]}, v{vT[1]}, v{vQ}
v_and_b32 v{vT[1]}, 3, v{vT[1]}
v_lshlrev_b32 v{vT[1]}, 4, v{vT[1]}
v_lshl_add_u32 v{vT[1]}, v{vI}, 6, v{vT[1]}
v_add_u32 v{vU[2]}, s{sT[2]}, v{vT[1]}''')
        for m in range(5):
            lg(f'ds_write_b128 v{vU[2]}, {v4(a + 4 * m)} offset:{1024 * m}')
        A(f'''v_lshrrev_b32 v{vT[1]}, 3, v{vL}
v_xor_b32 v{vT[1]}, v{vT[1]}, v{vL}
v_and_b32 v{vT[1]}, 3, v{vT[1]}
v_lshlrev_b32 v{vT[1]}, 4, v{vT[1]}
v_lshrrev_b32 v{vT[2]}, 2, v{vL}
v_lshl_add_u32 v{vT[1]}, v{vT[2]}, 6, v{vT[1]}
v_add_u32 v{vU[3]}, s{sT[2]}, v{vT[1]}''')
        for m in range(5):
            lg(f'ds_read_b128 {v4(X3 + 4 * m)}, v{vU[3]} offset:{1024 * m}')
        A(f'''v_and_b32 v{vT[3]}, 3, v{vL}
v_lshlrev_b32 v{vT[0]}, 13, v{vT[3]}
v_lshl_add_u32 v{vT[0]}, v{vT[2]}, 4, v{vT[0]}
s_add_u32 s{sT[1]}, s{sT[0]}, 4096
v_lshrrev_b32 v{vT[1]}, 2, v{vT[2]}
v_lshl_add_u32 v{vT[1]}, v{vT[1]}, 2, v{vT[2]}
v_mul_u32_u24 v{vT[1]}, 2560, v{vT[1]}
v_lshl_add_u32 v{vU[4]}, v{vT[3]}, 4, v{vT[1]}
s_lshl_b32 s{sT[3]}, s{sR64}, 6
s_lshr_b32 s{sX[1]}, s{sW}, 1
s_lshl_b32 s{sX[1]}, s{sX[1]}, 5
s_add_u32 s{sT[3]}, s{sT[3]}, s{sX[1]}
s_and_b32 s{sX[1]}, s{sW}, 1
s_lshl_b32 s{sX[1]}, s{sX[1]}, 2
s_add_u32 s{sT[3]}, s{sT[3]}, s{sX[1]}
s_mul_i32 s{sT[3]}, s{sT[3]}, 2560
s_mul_i32 s{sX[1]}, s{sS8}, 320
s_add_u32 s{sT[3]}, s{sT[3]}, s{sX[1]}''')
        Q = 128
        ld = [f'buffer_load_dwordx3 {v3(Q)}, v{vT[0]}, {W}, s{sT[0]} offen sc1',
              f'buffer_load_dwordx3 {v3(Q + 4)}, v{vT[0]}, {W}, s{sT[1]} offen sc1']
        check_tags([Q + 2, Q + 6], ld, inline=1)
        A('s_waitcnt lgkmcnt(0)')
        stamp('st_in_1')
        if OPT['wb'] & 32:
            wbl2()
        A(f'v_pk_add_f32 {v2(Q)}, {v2(Q)}, {v2(Q + 4)}')
        for mod in ('quad_perm:[1,0,3,2]', 'quad_perm:[2,3,0,1]'):
            A(f'v_add_f32_dpp v{Q}, v{Q}, v{Q} {mod} {DPPM}\nv_add_f32_dpp v{Q + 1}, v{Q + 1}, v{Q + 1} {mod} {DPPM}')
        r1, t0 = 200, 202
        A(f'''v_mul_f32 v{Q}, {inv:#x}, v{Q}
v_mul_f32 v{t0}, {inv:#x}, v{Q + 1}
v_fma_f32 v{t0}, -v{Q}, v{Q}, v{t0}
v_max_f32 v{t0}, 0, v{t0}
v_add_f32 v{t0}, 0x3727c5ac, v{t0}
v_rsq_f32 v{r1}, v{t0}
v_mul_f32 v{r1 + 1}, v{Q}, v{r1}''')
        bc = 'op_sel:[0,0,1] op_sel_hi:[1,0,1] neg_lo:[0,0,1] neg_hi:[0,0,1]'
        U = 132
        for m in range(5):
            u = U + 4 * (m & 1)
            for hf in range(2):
                A(f'v_pk_fma_f32 {v2(u + 2 * hf)}, {v2(X3 + 4 * m + 2 * hf)}, {v2(r1)}, {v2(r1)} {bc}')
            for hf in range(2):
                i = 4 * m + 2 * hf
                A(f'v_pk_fma_f32 {v2(X3 + i)}, {v2(u + 2 * hf)}, {v2(Y3 + i)}, {v2(X3 + i)}')
            line = f'buffer_store_dwordx4 {v4(X3 + 4 * m)}, v{vU[4]}, {s4(R_T0)}, s{sT[3]} offen offset:{64 * m}'
            if HO and OPT['om'] in (0, 3):
                mode_stores([line + ['', ' nt'][OPT['om'] == 3]])
            else:
                A(line + ['', ' sc1', ' sc1 nt', ' nt', ' sc0 sc1'][OPT['om']])
        if OPT['wb'] & 16:
            wbl2()
        stamp('out_st')


def retry(back):
    lab, done = A.label('retry'), A.label('giveup')
    A.cond[lab] = lambda c: False
    if OPT['inl']:
        A.cond[back] = A.cond[done] = lambda c: False
        A(f's_sub_u32 s{sBud}, s{sBud}, 1\ns_cmp_gt_i32 s{sBud}, 0\ns_cbranch_scc0 {done}\ns_cbranch_vccnz {back}\n{done}:')
        return
    A(f's_cbranch_vccnz {lab}\n{done}:')
    TAIL.append(f'{lab}:\ns_sub_u32 s{sBud}, s{sBud}, 1\ns_cmp_gt_i32 s{sBud}, 0\n'
                f's_cbranch_scc1 {back}\ns_branch {done}')


def dump_stamps():
    if OPT['fixdur']:
        A(f'v_readfirstlane_b32 s3, v{vStamp}\ns_min_u32 s3, s3, 20000')
        if OPT['pick'] >= 0:
            A(f's_lshl_b32 s4, s{sJ}, 3\ns_add_u32 s4, s4, s{sG}\ns_cmp_eq_u32 s4, {OPT["pick"]}\ns_cselect_b32 s3, s3, 0')
        A(f'''s_add_u32 s{sSt}, s{sSt}, s3
L_fix:
s_memrealtime s[0:1]
s_waitcnt lgkmcnt(0)
s_sub_u32 s0, s0, s{sSt}
s_cmp_lt_i32 s0, {OPT['fixdur']}
s_cbranch_scc1 L_fix''')
    if not OPT['stamps']:
        return
    A(f'''s_waitcnt vmcnt(0) lgkmcnt(0)
v_writelane_b32 v{vStamp}, s{sSt}, {PREV[0]}
s_memrealtime {s2(sSt)}
s_waitcnt lgkmcnt(0)
v_writelane_b32 v{vStamp}, s{sSt}, 63
s_lshl_b32 s{sT[0]}, s{sR64}, 3
s_add_u32 s{sT[0]}, s{sT[0]}, s{sS8}
s_lshl_b32 s{sT[0]}, s{sT[0]}, 2
s_add_u32 s{sT[0]}, s{sT[0]}, s{sW}
s_lshl_b32 s{sT[0]}, s{sT[0]}, 8
s_add_u32 s{sT[0]}, s{sT[0]}, {WS_DBG}
v_lshlrev_b32 v{vT[0]}, 2, v{vL}
buffer_store_dword v{vStamp}, v{vT[0]}, {W}, s{sT[0]} offen''')


def body():
    prologue()
    g2 = conv(*front(startup()))
    vm = g2.vm
    lg = gemm2(g2)
    epilogue(0, vm, lg)
    g = G1(1, VM())
    n1 = OPT['n1']
    for f in range(n1):
        g.ld(f)
    for f in range(n1, 40):
        g.side.add((f - n1) // 2, lambda f=f: g.ld(f))
    for j in range(5):
        g.rd(0, j)
    if OPT['wb'] & 1:
        g.side.add(16, wbl2)
    if OPT['tc2']:
        g.side.add(OPT['tc2'], retouch())
    for s in range(20):
        g.step(s)
    stamp('g1_1')
    scan_1(1)
    vm = VM()
    run(horner(1, vm, LG()))
    if OPT['prefetch'] & 8:
        run(code_touch())
    pre, ld = agg_ld(1)
    A(pre)
    for l in ld:
        vm(l, 'agg')
    scan_2(1, vm, ld)
    g2_setup(1)
    h_flag(1, vm)
    A(f'''s_mul_i32 s{sT[0]}, s{sW}, 2560
s_add_u32 s{sT[0]}, s{sT[0]}, {L_Y}
v_lshlrev_b32 v{vT[0]}, 5, v{vI}
v_lshl_add_u32 v{vT[0]}, v{vQ}, 3, v{vT[0]}
v_add_u32 v{vT[0]}, s{sT[0]}, v{vT[0]}
v_lshl_add_u32 v{vT[1]}, v{vL}, 3, s{sT[0]}''')
    run([f'ds_write_b64 v{vT[0]}, a[{A_Y + 2 * m}:{A_Y + 2 * m + 1}] offset:{512 * m}' for m in range(5)]
        + [f'ds_read_b64 {v2(YP + 2 * m)}, v{vT[1]} offset:{512 * m}' for m in range(5)]
        + [f'v_accvgpr_read_b32 v{ZR + i}, a{A_Z + i}' for i in range(20)] + ['s_waitcnt lgkmcnt(0)'] + unpack(YF, YP, 10))
    if OPT['wb'] & 8:
        wbl2()
    g2 = G2(1, vm)
    g2.begin()
    lg = gemm2(g2)
    epilogue(1, vm, lg)
    dump_stamps()
    A('L_end:\ns_endpgm')
    for t in TAIL:
        A(t)
    A('s_endpgm\nL_codeend:')


def main():
    hdr = open(os.path.join(os.path.dirname(os.path.abspath(__file__)), NAME + '.s.ref')).read().split('; Override')[0]
    A2 = [hdr.rstrip(), f'; @launch grid=(256,1,1) block=(256,1,1) lds={LDS_SIZE}',
          '.amdgcn_target "amdgcn-amd-amdhsa--gfx950"\n.text',
          f'.globl {NAME}_kernel\n.p2align 8\n.type {NAME}_kernel,@function\n{NAME}_kernel:']
    body()
    n = A.fix_hazards()
    if OPT['align']:
        print('; align: promoted %d, padded %d' % A.align8(999, False), file=sys.stderr)
    cfgs = [dict(w=w, fast=f, ty=ty) for w in range(4) for f in (0, 1) for ty in (0, 1)]
    errs = A.check_waits(cfgs)
    for e in sorted(set(errs))[:40]:
        print('WAITCNT:', e, file=sys.stderr)
    print(f'; {n} hazard pads inserted; {len(A.L)} lines; stamps: {STAMPS}', file=sys.stderr)
    A2.append('; WS ' + '\n; WS '.join(f'{k}={v:#x}' for k, v in dict(RS=WS_RS, H=WS_H, KV=WS_KV, Y=WS_Y, CF=WS_CF,
                                                                   U2=WS_U2, H2=WS_H2, DBG=WS_DBG, CFOLD=1).items()))
    if STAMPS:
        A2.append('; STAMPS ' + ' '.join(STAMPS))
    A2.append(A.text())
    A2.append(f'''.section .rodata,"a"
.p2align 6
.amdhsa_kernel {NAME}_kernel
  .amdhsa_next_free_vgpr 512
  .amdhsa_next_free_sgpr 102
  .amdhsa_accum_offset 256
  .amdhsa_group_segment_fixed_size 0
  .amdhsa_kernarg_size 144
  .amdhsa_user_sgpr_count 2
  .amdhsa_user_sgpr_kernarg_segment_ptr 1
  .amdhsa_system_sgpr_workgroup_id_x 1
.end_amdhsa_kernel''')
    print('\n'.join(A2))


if __name__ == '__main__':
    main()
```

```python
import sys
import os
import copy
sys.path.insert(0, os.path.dirname(os.path.abspath(__file__)))
from asmlib import Asm

NAME = 'interleave_layers__ssm_conv_s5__ssm_conv_h3__prompt'
OPT = dict(stamps=0, rt=1, reuse=1, force_slow=0, budget=1 << 18, align=3, nt=0, prefetch=11,
           gw=1, rsc=17, late=13, lper=3, b1s=0, b2s=0, b3s=1, b4s=3, cfs=0, cfper=14, kls=14, kvf=5, cff=7, fsp=10, fsc=12, wv0=10, wv=16,
           aggl=21, clend=20, cs2=8, nu=3, defer=3, stp=3, cl2s=3, hfl=8, hp=6, yp0=3, clr=3, fbp=-13, fbc=-17, lag=1, cs1=7, cb=5, cl2=12, ys=0, yper=8, zper=8, csp=14, csc=17, cl0=8,
           order='S,A,M,G,T,@setup,R,@roles,O,B0,X0,X1,C', post='L1',
           n0=8, n00=8, n1=8, yp=26, ra=17, rb=24, rper=9, rc=35, wper=2, r3=0, om=0, wb=0, wbw=3, wbs=0, dbg=0, zlate=0, hout=1, lpre=2, tc2=17, thr=11, tch=12, inl=1, look=14, light=1, fixdur=0, probe='', pick=-1)
for a in sys.argv[1:]:
    k, v = a.split('=')
    assert k in OPT, k
    OPT[k] = v if k in ('probe', 'order', 'post') else int(v, 0)

WS_FU = 0x1000
WS_FH = WS_FU + 256
WS_FY = 0x6000
WS_FB = 0x8000
WS_FK = 0x10000
WS_FS = WS_FK + 512
WS_FX = WS_FK + 1024
WS_RS = 0x40000
WS_CS = 0x4A000
WS_AGG = 0x50000
AGG_L = 16 * 32 * 640
WS_ST = 0x140000
WS_U = 0x400000
WS_H = 0xA00000
WS_KV = WS_U if OPT['reuse'] else 0x1000000
WS_Y = 0x1300000
WS_CF = 0x1600000
WS_KB = 0x1900000
WS_U2 = WS_U
WS_H2 = WS_H if OPT['reuse'] else 0x1B00000
WS_DBG = 0x2400000
WS_SIZE = 0x2800000
OOB = 0x70000000

L_AR = 102400
L_SK = L_AR + 2 * 8192
VOFF = 12 * 1056
L_SS, L_SS2, L_V = L_SK + VOFF + 9 * 1056, L_SK + VOFF + 11 * 1056, L_SK + 25 * 1056
L_KV = 0
L_TR = 13824
L_K = 102400
L_PM = 102400
L_PS = L_K + 3 * 8320
L_P = L_PS + 16384
L_RED = 102400
L_Y = 143360
L_AS = 152320
L_G = 149504
L_RS = 158720
L_C = 159744
L_L = 160640
LDS_SIZE = 163840

P_X, P_LRE, P_LIM, P_BRE, P_BIM, P_CRE, P_CIM, P_LDT = 16, 18, 20, 22, 24, 26, 28, 30
P_DSK, P_Q, P_K, P_V, P_SK, P_SSK, P_SD, P_OUT, P_DBG, P_WS = 32, 34, 36, 38, 40, 42, 44, 46, 48, 50
R_WS, R_B, R_T0, R_T1, R_X = 52, 56, 60, 64, 68
sG, sJ, sOnes = 0, 1, 2
sR128, sMem, sR64, sS8, sW, sTag, sMode, sBud, sXcc = 3, 4, 5, 6, 7, 8, 9, 10, 11
sT = [12, 13, 14, 15]
sD = [72, 73]
sBs, sBm, sXs, sXm = 74, 75, 76, 77
sH = [78, 79, 80, 81, 82]
sAgg = 83
sFW, sFK = 84, 85
sC0, sCs = 86, 24
sKm, sKf, sKs = 40, 41, 36
sX = [87, 88, 89, 90, 91, 92, 93, 94, 95]
sPub = 96
sPC = 98
sSt = 100
sL = [34, 35]
sDS = [16, 17, 18, 19]
sZ = [20, 21, 48, 49]
sYO = [50, 51]
sDm = [30, 31, 25, 45]
sEpW = 44

vUA, vL, vL16, vI, vQ = 0, 1, 2, 3, 4
vBA = [5, 6, 7, 8]
vAS, vStamp = 9, 10
vT = [11, 12, 13, 14, 15]
LR, LS, VA = 16, 21, 26
mL8, mL128, mW = 36, 38, 40
vU = [42, 43, 44, 45, 46, 47]
ACC, BF, RING, NR = 48, 88, 128, 16
A_Y, A_Z, A_DSK = 200, 210, 230
PARK = dict(tw=240, tr=241, ts=242, bd=243, bd2=244, rt=245, junk=250)
A_CV = 200
A_X, A_ZU = 216, 226

A = Asm()
NT = ' nt' if OPT['nt'] & 1 else ''
STAMPS = []
PREV = [61]
TAIL = []
DPPM = 'row_mask:0xf bank_mask:0xf'
SWP = f'quad_perm:[1,0,3,2] {DPPM}'
W = f's[{R_WS}:{R_WS + 3}]'
HO = OPT['reuse'] and OPT['hout']
WH = f's[{R_T0}:{R_T0 + 3}]' if HO else W
HB = [0, 0] if HO else [WS_H, WS_H2]


def s2(n): return f's[{n}:{n + 1}]'
def s4(n): return f's[{n}:{n + 3}]'
def v2(n): return f'v[{n}:{n + 1}]'
def v3(n): return f'v[{n}:{n + 2}]'
def v4(n): return f'v[{n}:{n + 3}]'
def a4(n): return f'a[{n}:{n + 3}]'


def srd(r, p, size):
    A(f's_mov_b32 s{r}, s{p}\ns_and_b32 s{r + 1}, s{p + 1}, 0xffff\ns_mov_b32 s{r + 2}, {size}\n'
      f's_mov_b32 s{r + 3}, 0x20000')


def stamp(name, level=1):
    if ':' in OPT['probe']:
        a, b, kind = OPT['probe'].split(':')
        op = 's_memtime' if kind == 'c' else 's_memrealtime'
        if name == a:
            A(f'{op} vcc\ns_waitcnt lgkmcnt(0)\nv_mov_b32 v{vStamp}, vcc_lo')
        if name == b:
            A(f'{op} vcc\ns_waitcnt lgkmcnt(0)\nv_sub_u32 v{vStamp}, vcc_lo, v{vStamp}\n'
              + (f'v_lshrrev_b32 v{vStamp}, 2, v{vStamp}' if kind == 'c' else f'v_lshlrev_b32 v{vStamp}, 2, v{vStamp}'))
    if OPT['probe'] == name:
        A(f's_memrealtime vcc\ns_waitcnt lgkmcnt(0)\ns_sub_u32 vcc_lo, vcc_lo, s{sSt}\ns_lshl_b32 vcc_lo, vcc_lo, 2\n'
          f'v_mov_b32 v{vStamp}, vcc_lo')
    if not OPT['stamps'] or (OPT['stamps'] < 0 and name != 'start') or level > abs(OPT['stamps']):
        return
    if name not in STAMPS:
        STAMPS.append(name)
    i = STAMPS.index(name)
    op = 's_memrealtime' if OPT['rt'] else 's_memtime'
    if name == 'start' or not OPT['light']:
        A(f'{op} {s2(sSt)}\ns_waitcnt lgkmcnt(0)\nv_writelane_b32 v{vStamp}, s{sSt}, {i}')
    else:
        A(f'v_writelane_b32 v{vStamp}, s{sSt}, {PREV[0]} ; nocheck\n{op} {s2(sSt)} ;@{i}')
        PREV[0] = i


class Cnt:
    def __init__(self, what, cap):
        self.n, self.t, self.what, self.cap, self.done = 0, {}, what, cap, 0

    def __call__(self, text, name=None):
        A(text)
        self.n += 1
        if name is not None:
            self.t[name] = self.n
        return self.n

    def wait(self, *names):
        tok = max(self.t[x] if not isinstance(x, int) else x for x in names)
        if tok <= self.done:
            return
        k = self.n - tok
        assert k >= 0
        if k <= self.cap:
            A(f's_waitcnt {self.what}({k})')
            self.done = tok
        else:
            A(f's_waitcnt {self.what}({self.cap})')
            self.done = self.n - self.cap

    def merge(self, o):
        n = max(self.n, o.n)
        t = {}
        for k in set(self.t) | set(o.t):
            t[k] = n - min(c.n - c.t[k] for c in (self, o) if k in c.t)
        self.done = n - max(self.n - self.done, o.n - o.done)
        self.n, self.t = n, t


def VM(): return Cnt('vmcnt', 63)
def LG(): return Cnt('lgkmcnt', 15)


def lines(x):
    if isinstance(x, str):
        return [l for l in x.split('\n') if l.strip()]
    if isinstance(x, (list, tuple)):
        return [l for it in x for l in lines(it)]
    return [x]


def atom(*items):
    return lambda: run(items)


def run(items):
    for it in lines(items):
        A(it) if isinstance(it, str) else it()


class Side:
    def __init__(self):
        self.q = {}

    def add(self, step, *items):
        self.q.setdefault(step, []).extend(lines(items))

    def spread(self, step0, per, items):
        flat = lines(items)
        for i, it in enumerate(flat):
            self.add(step0 + i // per, it)
        return step0 + (len(flat) + per - 1) // per

    def run(self, step, slots_left):
        q = self.q.get(step, [])
        n = -(-len(q) // slots_left)
        self.q[step] = q[n:]
        for it in q[:n]:
            A(it) if isinstance(it, str) else it()

    def left(self, lo=0, hi=999):
        return [k for k, v in self.q.items() if v and lo <= k < hi]


class Cap:
    def __enter__(self):
        self.save = A.L
        A.L = []
        return self

    def __exit__(self, *a):
        self.lines = [i.text for i in A.L]
        A.L = self.save


def check_tags(regs, reload, masked=False, x=None, y=None, inline=0):
    x, y = vT[4] if x is None else x, vT[3] if y is None else y
    if len(regs) <= 2:
        chk = [f'v_xor_b32 v{x}, s{sTag}, v{regs[0]}']
        for r in regs[1:]:
            chk += [f'v_xor_b32 v{y}, s{sTag}, v{r}', f'v_or_b32 v{x}, v{x}, v{y}']
        chk.append(f'v_cmp_lt_u32 vcc, 15, v{x}' if masked else f'v_cmp_ne_u32 vcc, 0, v{x}')
    else:
        assert not masked and len(regs) % 2 == 0
        chk = [f'v_min3_u32 v{x}, v{regs[0]}, v{regs[1]}, s{sTag}', f'v_max3_u32 v{y}, v{regs[0]}, v{regs[1]}, s{sTag}']
        for i in range(2, len(regs), 2):
            chk += [f'v_min3_u32 v{x}, v{x}, v{regs[i]}, v{regs[i + 1]}', f'v_max3_u32 v{y}, v{y}, v{regs[i]}, v{regs[i + 1]}']
        chk.append(f'v_cmp_ne_u32 vcc, v{x}, v{y}')
    lab, done = A.label('again'), A.label('ok')
    A.cond[lab] = lambda c: False
    if inline and OPT['inl']:
        if inline == 2:
            A.cond[done] = lambda c: True
            A('\n'.join(chk) + f'\ns_cbranch_vccz {done}')
        out = A.label('out')
        A.cond[out] = lambda c: False
        run([f'{lab}:'] + lines(reload) + [f's_sub_u32 s{sBud}, s{sBud}, 1', f's_cmp_gt_i32 s{sBud}, 0', 's_waitcnt vmcnt(0)']
            + chk + [f's_cbranch_scc0 {out}', f's_cbranch_vccnz {lab}', f'{out}:', f'{done}:'])
        return
    if inline == 1:
        run(lines(reload) + ['s_waitcnt vmcnt(0)'])
    A('\n'.join(chk) + f'\ns_cbranch_vccnz {lab}\n{done}:')
    TAIL.append('\n'.join([f'{lab}:', f's_sub_u32 s{sBud}, s{sBud}, 1', f's_cmp_gt_i32 s{sBud}, 0', f's_cbranch_scc0 {done}']
                          + lines(reload) + ['s_waitcnt vmcnt(0)'] + chk + [f's_cbranch_vccnz {lab}', f's_branch {done}']))


def mode_stores(ls, mode=sMode, through=False):
    if through:
        return run([(l + ' sc1') if l.startswith('buffer_store') else l for l in ls])
    slow, back = A.label('slow'), A.label('back')
    A.cond[slow] = lambda c: not c['fast'] or (mode != sMode and c['w'] == 2)
    A(f's_cmp_eq_u32 s{mode}, 0\ns_cbranch_scc1 {slow}')
    for l in ls:
        A(l)
    A(f'{back}:')
    TAIL.append(f'{slow}:\n' + '\n'.join((l + ' sc1') if l.startswith('buffer_store') else l for l in ls)
                + f'\ns_nop 1\ns_branch {back}')


def flag_store(soff, local, vm=None, mode=sMode):
    t = vT[4]
    A(f'v_mov_b32 v{t}, s{sTag}\ns_mov_b64 exec, 1')
    line = f'buffer_store_dword v{t}, off, {W}, {soff}'
    if local:
        mode_stores([line], mode)
    else:
        A(line + ' sc1')
    A('s_mov_b64 exec, -1')
    if vm is not None:
        vm.n += 1


def unpack(dst, src, n):
    out = []
    for i in range(n):
        out += [f'v_lshlrev_b32 v{dst + 2 * i}, 16, v{src + i}', f'v_and_b32 v{dst + 2 * i + 1}, 0xffff0000, v{src + i}']
    return out


def rnd_bf16(v):
    A(f'v_cvt_pk_bf16_f32 v{v}, v{v}, v{v}\nv_and_b32 v{v}, 0xffff0000, v{v}')


def cmul(dst, g, lam, add=None):
    if add is None:
        a = f'v_pk_mul_f32 {v2(dst)}, {v2(g)}, {v2(lam)} op_sel:[1,1] op_sel_hi:[0,1] neg_lo:[0,1]'
    else:
        a = f'v_pk_fma_f32 {v2(dst)}, {v2(g)}, {v2(lam)}, {v2(add)} op_sel:[1,1,0] op_sel_hi:[0,1,1] neg_lo:[0,1,0]'
    return [a, f'v_pk_fma_f32 {v2(dst)}, {v2(g)}, {v2(lam)}, {v2(dst)} op_sel:[0,0,0] op_sel_hi:[1,0,1]']


def park(name, v): A(f'v_accvgpr_write_b32 a{PARK[name]}, v{v}')
def unpark(name, v): return f'v_accvgpr_read_b32 v{v}, a{PARK[name]}'


def code_touch():
    return [f's_and_b32 vcc_lo, s{sJ}, 7', 's_lshl_b32 vcc_lo, vcc_lo, 2', f's_add_u32 vcc_lo, vcc_lo, s{sW}',
            's_lshl_b32 vcc_lo, vcc_lo, 11', f'v_lshl_add_u32 v{vT[4]}, v{vI}, 7, vcc_lo',
            f'v_min_u32 v{vT[4]}, L_codeend-L_pc-4, v{vT[4]}', 's_mov_b64 exec, 0xffff',
            f'global_load_dword a250, v{vT[4]}, {s2(sPC)}', 's_mov_b64 exec, -1']


def touch_addr(dst, segs):
    n = 0
    for cnt, code in segs:
        A(code.replace('$', f's{sT[0]}'))
        A(f's_sub_u32 s{sT[0]}, s{sT[0]}, {128 * n}')
        if n:
            A(f'v_cmp_lt_u32 vcc, {n - 1}, v{vL}\nv_mov_b32 v{vT[4]}, s{sT[0]}\nv_cndmask_b32 v{dst}, v{dst}, v{vT[4]}, vcc')
        else:
            A(f'v_mov_b32 v{dst}, s{sT[0]}')
        n += cnt
    A(f'v_lshl_add_u32 v{dst}, v{vL}, 7, v{dst}')
    return n


SEG_ST = (24, f's_lshl_b32 $, s{sR128}, 4\ns_add_u32 $, $, s{sMem}\ns_lshl_b32 $, $, 12\ns_add_u32 $, $, {WS_ST}')
SEG_F = (6, f's_lshl_b32 $, s{sR128}, 10\ns_add_u32 $, $, {WS_FU}')


def retouch():
    return atom(unpark('rt', vT[0]), f's_and_b32 exec_lo, s{sPub}, 0x3fffffff', 's_mov_b32 exec_hi, 0',
                f'buffer_load_dword a250, v{vT[0]}, {W}, 0 offen', 's_mov_b64 exec, -1')


def wbl2():
    A(f's_lshl_b32 vcc_lo, s{sJ}, 2\ns_add_u32 vcc_lo, vcc_lo, s{sW}\ns_cmp_lg_u32 vcc_lo, {OPT["wbw"]}')
    with A.skip_if('s_cbranch_scc1', lambda c: True):
        A('buffer_wbl2 sc1')


AF = 128
vAR, vAR2, vXd, vXd2, vBd, vBd2, vR, vSgn = 144, 145, 146, 147, 148, 149, 150, 151
CR, CI, CT, CTMP, vCd = 176, 180, 192 if OPT['cfs'] >= 0 else 128, 152, 174
vKV, vKS, vKR, vSR, vFX, vFXa = 169, 171, 172, 173, 184, 185
KK, VV, SKW, WW, AC, KT = 48, 70, 88, 96, 112, 216
OUT = [232, 236, 88, 92]
XP, XS = 48, 88
PAR = 229
KA, KB, vKO, vKP = 192, 204, 186, 163
vZ, vXT = 224, 242
RSL, vRS, CSL = 152, 160, 246
MM, RR = 88, 96
vFP, vFA = 188, 187


def x_dma(vm, p):
    s2i, m = p >> 1, p & 1
    A(f's_add_u32 m0, s{sXm}, {(p % 7) * 8192}\ns_add_u32 s{sT[3]}, s{sXs}, {4 * m * 1280 + s2i * 128}')
    vm(f'buffer_load_dwordx4 v{vXd}, {s4(R_X)}, s{sT[3]} offen lds')
    vm(f'buffer_load_dwordx4 v{vXd2}, {s4(R_X)}, s{sT[3]} offen offset:1024 lds', ('x', p))


def b_dma(vm, g, j, bd=vBd, bd2=vBd2):
    A(f's_add_u32 m0, s{sBm}, {g * 20480 + j * 2048}\ns_add_u32 s{sT[2]}, s{sBs}, {g * 256 + j * 10240}')
    vm(f'buffer_load_dwordx4 v{bd}, {s4(R_B)}, s{sT[2]} offen lds', ('b', g))
    if j < 4:
        vm(f'buffer_load_dwordx4 v{bd2}, {s4(R_B)}, s{sT[2]} offen offset:2048 lds', ('b', g))


def b_all(vm, g):
    t = vT
    srd(R_T1, P_BRE, 819200)
    A(f'v_xor_b32 v{t[0]}, 64, v{vBd}\nv_xor_b32 v{t[1]}, 64, v{vBd2}\ns_mul_i32 s{sT[3]}, s{sMem}, 51200')
    for hf in range(2):
        for j in (0, 2, 4):
            A(f's_add_u32 s{sT[2]}, s{sT[3]}, {g * 256 + hf * 128 + j * 10240}')
            for comp, (r, a, a2) in enumerate(((R_T1, t[0], t[1]), (R_B, vBd, vBd2))):
                A(f's_mov_b32 m0, {g * 20480 + hf * 10240 + j * 2048 + comp * 1024}')
                vm(f'buffer_load_dwordx4 v{a}, {s4(r)}, s{sT[2]} offen lds', ('b', g))
                if j < 4:
                    vm(f'buffer_load_dwordx4 v{a2}, {s4(r)}, s{sT[2]} offen offset:2048 lds', ('b', g))


def prologue():
    A('s_cmp_ge_u32 s2, 256\ns_cbranch_scc1 L_end')
    A.cond['L_end'] = lambda c: False
    if OPT['stamps'] or OPT['fixdur']:
        A(f's_memrealtime {s2(sSt)}\nv_mov_b32 v{vStamp}, 0')
    A('s_load_dwordx16 s[16:31], s[0:1], 0\ns_load_dwordx16 s[32:47], s[0:1], 64\n'
      's_load_dwordx4 s[48:51], s[0:1], 128')
    t = vT
    A(f'''v_and_b32 v{vL}, 63, v0
v_lshrrev_b32 v{t[0]}, 6, v0
v_lshlrev_b32 v{vL16}, 4, v{vL}
v_readfirstlane_b32 s{sW}, v{t[0]}
v_and_b32 v{vI}, 15, v{vL}
v_lshrrev_b32 v{vQ}, 4, v{vL}
s_and_b32 s{sT[0]}, s2, 7
s_lshr_b32 s{sT[1]}, s2, 3
s_getpc_b64 {s2(sPC)}
L_pc:
s_and_b32 s{sMem}, s{sT[1]}, 15
s_lshr_b32 s{sT[2]}, s{sT[1]}, 4
s_lshl_b32 s{sR128}, s{sT[0]}, 1
s_add_u32 s{sR128}, s{sR128}, s{sT[2]}
s_mov_b32 s{sG}, s{sT[0]}
s_mov_b32 s{sJ}, s{sT[1]}''')
    if OPT['prefetch'] & 1:
        A('\n'.join(code_touch()))
    A(f'''v_lshrrev_b32 v{t[0]}, 3, v{vL}
v_and_b32 v{t[2]}, 7, v{vL}
v_mul_u32_u24 v{vR}, 1280, v{t[0]}
v_lshl_add_u32 v{vR}, v{t[2]}, 4, v{vR}''')
    kv_src()


def dma_addr():
    t = vT
    A(f'''v_lshrrev_b32 v{t[0]}, 3, v{vL}
v_and_b32 v{t[1]}, 6, v{t[0]}
v_and_b32 v{t[2]}, 7, v{vL}
s_movk_i32 s{sT[3]}, 0x78
v_bfe_u32 v{t[3]}, s{sT[3]}, v{t[1]}, 2
v_xor_b32 v{t[3]}, v{t[3]}, v{t[2]}
v_mul_u32_u24 v{vXd}, 1280, v{t[0]}
v_lshl_add_u32 v{vBd}, v{t[3]}, 4, v{vXd}
s_and_b32 s{sT[0]}, s{sW}, 1
s_lshl_b32 s{sT[1]}, s{sT[0]}, 6
v_xor_b32 v{vBd}, s{sT[1]}, v{vBd}
v_add_u32 v{vBd2}, {10240 - 2048}, v{vBd}
v_xor_b32 v{t[1]}, v{t[1]}, v{t[2]}
v_and_b32 v{t[0]}, 4, v{t[0]}
v_mul_u32_u24 v{t[0]}, 1280, v{t[0]}
v_lshl_add_u32 v{t[0]}, v{t[1]}, 4, v{t[0]}
v_add_u32 v{vXd}, v{t[0]}, v{vXd}
v_add_u32 v{vXd2}, {20480 - 1024}, v{vXd}
s_lshr_b32 s{sT[1]}, s{sW}, 1
s_mul_i32 s{sBm}, s{sT[1]}, 10240
s_lshl_b32 s{sT[0]}, s{sT[0]}, 10
s_add_u32 s{sBm}, s{sBm}, s{sT[0]}
s_mul_i32 s{sBs}, s{sMem}, 51200
s_lshl_b32 s{sT[1]}, s{sT[1]}, 7
s_add_u32 s{sBs}, s{sBs}, s{sT[1]}
s_lshl_b32 s{sXs}, s{sR128}, 2
s_add_u32 s{sXs}, s{sXs}, s{sW}
s_mul_i32 s{sXs}, s{sXs}, 40960
s_lshl_b32 s{sXm}, s{sW}, 11
s_add_u32 s{sXm}, s{sXm}, {L_AR}''')
    A(f'''s_bitcmp1_b32 s{sW}, 0
s_cselect_b32 s{R_B}, s{P_BIM}, s{P_BRE}
s_cselect_b32 s{R_B + 1}, s{P_BIM + 1}, s{P_BRE + 1}
s_and_b32 s{R_B + 1}, s{R_B + 1}, 0xffff
s_mov_b32 s{R_B + 2}, 819200
s_mov_b32 s{R_B + 3}, 0x20000
s_bitcmp1_b32 s{sR128}, 3
s_cselect_b32 s{R_T0}, s{P_BIM}, s{P_BRE}
s_cselect_b32 s{R_T0 + 1}, s{P_BIM + 1}, s{P_BRE + 1}
s_and_b32 s{R_T0 + 1}, s{R_T0 + 1}, 0xffff
s_mov_b32 s{R_T0 + 2}, 819200
s_mov_b32 s{R_T0 + 3}, 0x20000''')
    srd(R_X, P_X, 2621440)
    srd(R_WS, P_WS, WS_SIZE)


def kv_src():
    A(f'''s_mul_i32 s{sT[0]}, s{sJ}, 81920
s_lshl_b32 s{sT[1]}, s{sG}, 7
s_add_u32 s{sT[0]}, s{sT[0]}, s{sT[1]}
v_add_u32 v{vKV}, s{sT[0]}, v{vR}
s_lshl_b32 s{sX[8]}, s{sG}, 5
s_add_u32 s{sX[8]}, s{sX[8]}, s{sJ}
s_mul_i32 s{sT[0]}, s{sX[8]}, 10240
s_add_u32 s{sT[0]}, s{sT[0]}, 1024
v_add_u32 v{vKV + 1}, s{sT[0]}, v{vR}''')


def kv_addr():
    t = vT
    A(f'''v_lshrrev_b32 v{t[0]}, 3, v{vL}
v_and_b32 v{t[1]}, 7, v{vL}
v_mul_u32_u24 v{t[2]}, 1056, v{t[1]}
v_lshl_add_u32 v{t[2]}, v{t[0]}, 3, v{t[2]}
s_lshl_b32 s{sT[0]}, s{sW}, 6
s_add_u32 s{sT[0]}, s{sT[0]}, {L_SK}
v_add_u32 v{vKR}, s{sT[0]}, v{t[2]}
s_lshl_b32 s{sT[0]}, s{sW}, 8
s_add_u32 s{sT[0]}, s{sT[0]}, {L_SS}
v_lshl_add_u32 v{vSR}, v{t[0]}, 5, s{sT[0]}
v_sub_u32 v{t[2]}, 7, v{t[1]}
v_lshlrev_b32 v{t[2]}, 4, v{t[2]}
v_lshl_add_u32 v{vKS}, v{t[0]}, 14, v{t[2]}
s_mul_i32 s{sT[0]}, s{sG}, 80
s_lshl_b32 s{sT[1]}, s{sW}, 5
s_add_u32 s{sT[0]}, s{sT[0]}, s{sT[1]}
s_lshl_b32 s{sT[0]}, s{sT[0]}, 12
s_lshl_b32 s{sT[1]}, s{sJ}, 7
s_sub_u32 s{sT[0]}, s{sT[0]}, s{sT[1]}
s_add_u32 s{sX[0]}, s{sT[0]}, {WS_KV + 3968}
s_add_u32 s{sKf}, s{sFK}, {WS_FK}
s_movk_i32 s{sKs}, 4096
s_cmp_lg_u32 s{sW}, 2''')
    with A.skip_if('s_cbranch_scc1', lambda c: c['w'] != 2):
        A(f'''v_bfe_u32 v{t[2]}, v{vL}, 4, 1
v_mul_u32_u24 v{t[2]}, 2112, v{t[2]}
v_and_b32 v{t[3]}, 15, v{vL}
v_lshl_add_u32 v{t[2]}, v{t[3]}, 3, v{t[2]}
v_add_u32 v{vKR}, {L_SK + 9 * 1056}, v{t[2]}
v_and_b32 v{t[2]}, 31, v{vL}
v_lshlrev_b32 v{t[2]}, 5, v{t[2]}
v_add_u32 v{vSR}, {L_SS2}, v{t[2]}
v_cmp_gt_u32 vcc, 32, v{vL}
v_mov_b32 v{t[3]}, {OOB}
s_lshl_b32 s{sX[0]}, s{sX[8]}, 11
s_add_u32 s{sX[0]}, s{sX[0]}, {WS_KB}
v_cndmask_b32 v{vKS}, v{t[3]}, v{vL16}, vcc
s_lshl_b32 s{sKf}, s{sX[8]}, 2
s_add_u32 s{sKf}, s{sKf}, {WS_FB}
s_movk_i32 s{sKs}, 512''')


def kv_dma(vm, r, a, so, pos, halo=False):
    if halo:
        A(f'v_subrev_u32 v{vT[0]}, 10240, v{a}\ns_mov_b32 exec_lo, 0\ns_mov_b32 exec_hi, 0xffffff00')
    A(f's_mov_b32 m0, {L_SK + pos * 1056}')
    if so > 64:
        A(f's_mov_b32 s{sT[0]}, {so}')
    vm(f'buffer_load_dwordx4 v{vT[0] if halo else a}, {s4(r)}, {"s%d" % sT[0] if so > 64 else so} offen{NT} lds', 'kv')
    if halo:
        A('s_mov_b64 exec, -1')


def kv_loads0(vm):
    srd(R_T0, P_K, 2621440)
    for p in range(1, 8):
        kv_dma(vm, R_T0, vKV, (p - 1) * 10240, p)
    kv_dma(vm, R_T0, vKV, 0, 0, True)


def kv_loads1(vm):
    srd(R_T1, P_V, 2621440)
    for p in range(1, 9):
        kv_dma(vm, R_T1, vKV, (p - 1) * 10240, 12 + p)


def kv_loads2(vm):
    srd(R_T0, P_K, 2621440)
    srd(R_T1, P_V, 2621440)
    kv_dma(vm, R_T0, vKV, 7 * 10240, 8)
    for hf in range(2):
        kv_dma(vm, R_T0, vKV + 1, 128 * hf, 10 + 2 * hf)
        kv_dma(vm, R_T1, vKV + 1, 128 * hf, 22 + 2 * hf)
    for hf in range(2):
        kv_dma(vm, R_T0, vKV + 1, 128 * hf, 9 + 2 * hf, True)
    srd(R_T1, P_SK, 5120)
    A(f's_mov_b32 m0, {L_SS2}\ns_movk_i32 s{sT[0]}, 4096')
    vm(f'buffer_load_dwordx4 v{vL16}, {s4(R_T1)}, s{sT[0]} offen{NT} lds', 'kv')
    A(f's_mov_b32 m0, {L_SS}\ns_lshl_b32 s{sT[0]}, s{sG}, 9\ns_mov_b32 exec_hi, 0')
    vm(f'buffer_load_dwordx4 v{vL16}, {s4(R_T1)}, s{sT[0]} offen{NT} lds', 'kv')
    A('s_mov_b32 exec_hi, -1')


def c_loads(vm):
    t = vT
    A(f'''v_mul_u32_u24 v{t[0]}, 171, v{vL}
v_lshrrev_b32 v{t[0]}, 11, v{t[0]}
v_mul_u32_u24 v{t[1]}, 12, v{t[0]}
v_sub_u32 v{t[1]}, v{vL}, v{t[1]}
s_mul_i32 s{sT[0]}, s{sMem}, 5
v_min_u32 v{t[2]}, 4, v{t[0]}
v_add_u32 v{t[2]}, s{sT[0]}, v{t[2]}
s_mul_i32 s{sT[1]}, s{sW}, 12
v_add_u32 v{t[1]}, s{sT[1]}, v{t[1]}
v_cmp_gt_u32 vcc, 40, v{t[1]}
v_cmp_gt_u32 {s2(sT[2])}, 5, v{t[0]}
s_lshr_b32 s{sT[1]}, s{sJ}, 4
s_mul_i32 s{sT[1]}, s{sT[1]}, 40
v_min_u32 v{t[1]}, 39, v{t[1]}
s_and_b64 vcc, vcc, {s2(sT[2])}
v_add_u32 v{t[1]}, s{sT[1]}, v{t[1]}
s_mul_i32 s{sT[2]}, s{sG}, 102400
v_mul_u32_u24 v{t[3]}, 1280, v{t[1]}
v_lshl_add_u32 v{t[3]}, v{t[2]}, 4, v{t[3]}
v_add_u32 v{t[3]}, s{sT[2]}, v{t[3]}''')
    if OPT['dbg'] & 16:
        A(f'v_mov_b32 v{t[3]}, v{vL16}')
    vm(f'global_load_dwordx4 {v4(CR)}, v{t[3]}, {s2(P_CRE)}{NT}')
    vm(f'global_load_dwordx4 {v4(CI)}, v{t[3]}, {s2(P_CIM)}{NT}', 'craw')
    A(f'''v_lshrrev_b32 v{t[3]}, 2, v{t[2]}
v_mul_u32_u24 v{t[3]}, 10240, v{t[3]}
v_and_b32 v{t[2]}, 3, v{t[2]}
v_lshl_add_u32 v{t[3]}, v{t[2]}, 8, v{t[3]}
v_lshrrev_b32 v{t[2]}, 4, v{t[1]}
v_lshl_add_u32 v{t[3]}, v{t[2]}, 10, v{t[3]}
v_and_b32 v{t[1]}, 15, v{t[1]}
v_lshl_add_u32 v{t[3]}, v{t[1]}, 4, v{t[3]}
v_mov_b32 v{t[2]}, {OOB}
v_cndmask_b32 v{vCd}, v{t[2]}, v{t[3]}, vcc
v_min_u32 v{t[0]}, 4, v{t[0]}
v_lshlrev_b32 v{t[0]}, 6, v{t[0]}
v_add_u32 v{vCd + 1}, {L_C}, v{t[0]}''')


def cf_work(vm, lg):
    it = [lambda d=d: lg(f'ds_read_b128 {v4(CT + 4 * d)}, v{vCd + 1} offset:{16 * d}', 'ctab') for d in range(4)]
    it.append(lambda: (vm.wait('craw'), lg.wait('ctab')))
    r, i, o = CTMP, CTMP + 2, CTMP + 4
    for d in range(4):
        cr, ci = v2(CT + 4 * d), v2(CT + 4 * d + 2)
        it += unpack(r, CR + d, 1) + unpack(i, CI + d, 1)
        it += [f'v_pk_mul_f32 {v2(o)}, {v2(r)}, {cr}',
               f'v_pk_mul_f32 {v2(o + 2)}, {v2(r)}, {ci} neg_lo:[0,1] neg_hi:[0,1]',
               f'v_pk_fma_f32 {v2(o)}, {v2(i)}, {ci}, {v2(o)} neg_lo:[0,1,0] neg_hi:[0,1,0]',
               f'v_pk_fma_f32 {v2(o + 2)}, {v2(i)}, {cr}, {v2(o + 2)} neg_lo:[0,1,0] neg_hi:[0,1,0]',
               f'v_cvt_pk_bf16_f32 v{CR + d}, v{o}, v{o + 1}',
               f'v_cvt_pk_bf16_f32 v{CI + d}, v{o + 2}, v{o + 3}']
    it.append(atom(f's_mul_i32 s{sT[0]}, s{sG}, 204800', f's_add_u32 s{sT[0]}, s{sT[0]}, {WS_CF}',
                   f's_add_u32 s{sT[1]}, s{sT[0]}, 5120',
                   lambda: vm(f'buffer_store_dwordx4 {v4(CR)}, v{vCd}, {W}, s{sT[0]} offen sc1'),
                   lambda: vm(f'buffer_store_dwordx4 {v4(CI)}, v{vCd}, {W}, s{sT[1]} offen sc1', 'cfst')))
    return it


def consts():
    lre, lim, ldt = PAR, PAR + 1, PAR + 2
    t = 96
    zr, zi, e, rev, sn, cs = t, t + 1, t + 2, t + 3, t + 4, t + 5
    aL, aV, aC = t + 6, t + 7, t + 8
    P = t + 10
    V = ACC
    Wt = 84
    A(f'''v_lshlrev_b32 v{lre}, 16, v{lre}
v_lshlrev_b32 v{lim}, 16, v{lim}
v_lshlrev_b32 v{ldt}, 16, v{ldt}
v_mul_f32 v{ldt}, 0x3fb8aa3b, v{ldt}
v_exp_f32 v{ldt}, v{ldt}
v_min_u32 v{aC}, 39, v{vL}
v_mul_u32_u24 v{aL}, 80, v{aC}
v_mul_u32_u24 v{aV}, 176, v{aC}''')
    rnd_bf16(ldt)
    A(f'''v_mul_f32 v{zr}, v{ldt}, v{lre}
v_mul_f32 v{zi}, v{ldt}, v{lim}
v_mul_f32 v{zr}, 0x3fb8aa3b, v{zr}
v_mul_f32 v{zi}, 0x3e22f983, v{zi}''')
    for kf, dst in (('1.0', P), ('0x41000000', V + 2)):
        A(f'''v_mul_f32 v{e}, {kf}, v{zr}
v_mul_f32 v{rev}, {kf}, v{zi}
v_exp_f32 v{e}, v{e}
v_fract_f32 v{rev}, v{rev}
v_sin_f32 v{sn}, v{rev}
v_cos_f32 v{cs}, v{rev}
v_mul_f32 v{dst + 1}, v{e}, v{sn}
v_mul_f32 v{dst}, v{e}, v{cs}''')
    A(f'''v_mul_f32 v{e}, v{lre}, v{lre}
v_fmac_f32 v{e}, v{lim}, v{lim}
v_rcp_f32 v{e}, v{e}
v_add_f32 v{rev}, -1.0, v{P}
v_add_f32 v{e}, v{e}, v{e}
v_mul_f32 v{sn}, v{rev}, v{lre}
v_fmac_f32 v{sn}, v{P + 1}, v{lim}
v_mul_f32 v{cs}, v{P + 1}, v{lre}
v_fma_f32 v{cs}, -v{rev}, v{lim}, v{cs}
v_mul_f32 v{sn}, v{e}, v{sn}
v_mul_f32 v{cs}, v{e}, v{cs}
v_and_b32 v{e}, 1, v{aC}
v_lshrrev_b32 v{aC}, 1, v{aC}
v_lshlrev_b32 v{aC}, 4, v{aC}
v_lshl_add_u32 v{aC}, v{e}, 2, v{aC}
v_add_u32 v{aC}, {L_C}, v{aC}
v_add_u32 v{aL}, {L_L}, v{aL}
v_add_u32 v{aV}, {L_V}, v{aV}
ds_write2_b32 v{aC}, v{sn}, v{cs} offset0:0 offset1:2
s_waitcnt lgkmcnt(0)
v_mov_b32 v{V}, 1.0
v_mov_b32 v{V + 1}, 0
v_mov_b32 v{Wt}, 1.0
v_mov_b32 v{Wt + 1}, 0''')
    a = [cmul(P + 2 * k, P + 2 * k - 2, P) for k in range(1, 7)]
    b = [cmul(V + 2 * s, V + 2 * s - 2, V + 2) for s in range(2, 17)]
    for s, ops in enumerate(b):
        A(ops[0])
        if s < len(a):
            A(a[s][0])
        A(ops[1])
        if s < len(a):
            A(a[s][1])
        if 6 <= s < 13:
            k = s - 6
            A(f'ds_write2_b32 v{aL}, v{P + 2 * k}, v{P + 2 * k + 1} offset0:{k} offset1:{8 + k}')
        if s % 2 == 1:
            A(f'ds_write_b128 v{aV}, {v4(V + 2 * (s - 1))} offset:{8 * (s - 1)}')
    A(f'ds_write2_b32 v{aL}, v{V + 2}, v{V + 3} offset0:7 offset1:15')
    A(f'ds_write_b128 v{aV}, {v4(V + 28)} offset:112')
    A('\n'.join(cmul(e, V + 32, V + 32) + cmul(Wt + 2, e, e) + cmul(Wt + 4, Wt + 2, Wt + 2) + cmul(Wt + 6, Wt + 4, Wt + 2)))
    A(f'''ds_write_b64 v{aV}, {v2(V + 32)} offset:128
ds_write_b128 v{aV}, {v4(Wt)} offset:144
ds_write_b128 v{aV}, {v4(Wt + 4)} offset:160''')


def const_reads(lg):
    t = vT
    it = lines(f'''v_lshrrev_b32 v{t[0]}, 1, v{vI}
v_mul_u32_u24 v{t[1]}, 176, v{t[0]}
v_mul_u32_u24 v{t[0]}, 80, v{t[0]}
v_and_b32 v{t[2]}, 1, v{vI}
v_lshl_add_u32 v{t[1]}, v{t[2]}, 2, v{t[1]}
v_lshl_add_u32 v{t[1]}, v{vQ}, 3, v{t[1]}
s_lshl_b32 s{sT[0]}, s{sW}, 5
s_add_u32 s{sT[0]}, s{sT[0]}, {L_V}
v_add_u32 v{t[1]}, s{sT[0]}, v{t[1]}
v_add_u32 v{t[0]}, {L_L}, v{t[0]}
v_cvt_f32_u32 v{vSgn}, v{t[2]}
v_min_u32 v{t[2]}, 39, v{vL}
v_mul_u32_u24 v{t[2]}, 176, v{t[2]}
v_fma_f32 v{vSgn}, 2.0, v{vSgn}, -1.0
v_add_u32 v{t[2]}, {L_V}, v{t[2]}
s_lshl_b32 s{sT[0]}, s{sW}, 3''')
    for j in range(5):
        it.append(lambda j=j: lg(f'ds_read_b32 v{LR + j}, v{t[0]} offset:{j * 640}'))
        it.append(lambda j=j: lg(f'ds_read_b32 v{LS + j}, v{t[0]} offset:{j * 640 + 32}'))
        it.append(lambda j=j: lg(f'ds_read_b32 v{VA + 2 * j}, v{t[1]} offset:{j * 1408}'))
    it.append(lambda: lg(f'ds_read_b64 {v2(mL8)}, v{t[2]} offset:8'))
    it.append(lambda: lg(f'ds_read_b64 {v2(mL128)}, v{t[2]} offset:128'))
    it.append(f'v_add_u32 v{t[2]}, s{sT[0]}, v{t[2]}')
    it.append(lambda: lg(f'ds_read_b64 {v2(mW)}, v{t[2]} offset:144', 'cst'))
    fix = [lambda: lg.wait('cst')]
    for j in range(5):
        fix += [f'v_mul_f32 v{LS + j}, v{vSgn}, v{LS + j}',
                f'v_mul_f32_dpp v{VA + 2 * j + 1}, v{VA + 2 * j}, v{vSgn} {SWP}']
    return it, fix


def kv_work(vm, lg):
    rd = [lambda: lg(f'ds_read_b128 {v4(SKW)}, v{vSR}'), lambda: lg(f'ds_read_b128 {v4(SKW + 4)}, v{vSR} offset:16', 'skw')]
    for r in range(11):
        off = 1056 + (r - 3) * 128 if r >= 3 else (5 + r) * 128
        rd.append(lambda r=r, off=off: lg(f'ds_read_b64 {v2(KK + 2 * r)}, v{vKR} offset:{off}', 'kk'))
    for r in range(8):
        rd.append(lambda r=r: lg(f'ds_read_b64 {v2(VV + 2 * r)}, v{vKR} offset:{VOFF + 1056 + r * 128}', 'vv'))
    it = [lambda: lg.wait('skw')]
    for e in range(4):
        for i in range(4):
            src = SKW + 2 * e + (i >> 1)
            it.append(f'v_and_b32 v{WW + 4 * i + e}, 0xffff0000, v{src}' if i & 1 else
                      f'v_lshlrev_b32 v{WW + 4 * i + e}, 16, v{src}')
    it.append(lambda: lg.wait('kk'))
    for d in range(2):
        pend = []
        for r in range(11):
            tmp = KT + 2 * (r % 2)
            it += unpack(tmp, KK + 2 * r + d, 1) if r == 0 else []
            nxt = unpack(KT + 2 * ((r + 1) % 2), KK + 2 * (r + 1) + d, 1) if r < 10 else []
            ops = []
            for stage in range(4):
                ta = r - stage
                if 0 <= ta < 8:
                    w = v2(WW + 4 * (3 - stage) + 2 * d)
                    ac = v2(AC + 2 * ta)
                    ops.append(f'v_pk_mul_f32 {ac}, {v2(tmp)}, {w}' if stage == 0 else
                               f'v_pk_fma_f32 {ac}, {v2(tmp)}, {w}, {ac}')
            it += ops[:1] + nxt + ops[1:]
        it.append(lambda: lg.wait('vv'))
        for ta in range(8):
            tmp = KT + 4 + 2 * (ta % 2)
            it += unpack(tmp, VV + 2 * ta + d, 1) + pend
            pend = [f'v_pk_mul_f32 {v2(AC + 2 * ta)}, {v2(AC + 2 * ta)}, {v2(tmp)}']
        it += pend
        for eo in range(2):
            for dd in range(4):
                it.append(f'v_cvt_pk_bf16_f32 v{OUT[2 * d + eo] + dd}, v{AC + 2 * (7 - 2 * dd) + eo}, '
                          f'v{AC + 2 * (6 - 2 * dd) + eo}')

    def st():
        ls = []
        for e in range(4):
            if e:
                ls.append(f's_add_u32 s{sX[0]}, s{sX[0]}, s{sKs}')
            ls.append(f'buffer_store_dwordx4 {v4(OUT[e])}, v{vKS}, {W}, s{sX[0]} offen')
        mode_stores(ls, sKm, OPT['thr'] & 1)
        vm.n += 4
        vm.t['kvst'] = vm.n
    it.append(st)
    return rd, it


def stats_work(vm):
    S, Q, ad = XS, XS + 2, vT[0]
    it = [lambda: vm.wait('xp')]
    for i in range(40):
        it.append(f'v_dot2_f32_bf16 v{S}, v{XP + i}, s{sOnes}, ' + (f'v{S}' if i else '0'))
        it.append(f'v_dot2_f32_bf16 v{Q}, v{XP + i}, v{XP + i}, ' + (f'v{Q}' if i else '0'))
    with Cap() as c:
        for mod in ('quad_perm:[1,0,3,2]', 'quad_perm:[2,3,0,1]', 'row_half_mirror'):
            A(f'v_add_f32_dpp v{S}, v{S}, v{S} {mod} {DPPM}')
            A(f'v_add_f32_dpp v{Q}, v{Q}, v{Q} {mod} {DPPM}')
        inv = 0x3acccccd
        A(f'''v_mul_f32 v{S}, {inv:#x}, v{S}
v_mul_f32 v{Q}, {inv:#x}, v{Q}
v_fma_f32 v{Q}, -v{S}, v{S}, v{Q}
v_max_f32 v{Q}, 0, v{Q}''')
        rnd_bf16(S)
        rnd_bf16(Q)
        A(f'v_add_f32 v{Q}, 0x3727c5ac, v{Q}')
        rnd_bf16(Q)
        A(f'v_sqrt_f32 v{Q}, v{Q}')
        rnd_bf16(Q)
        A(f'''v_rcp_f32 v{S + 1}, v{Q}
v_mov_b32 v{Q}, s{sTag}
v_mov_b32 v{Q + 1}, s{sTag}''')

    def st():
        A(f'''v_lshlrev_b32 v{ad}, 1, v{vL}
s_lshl_b32 s{sT[0]}, s{sR128}, 4
s_add_u32 s{sT[0]}, s{sT[0]}, s{sMem}
s_lshl_b32 s{sT[0]}, s{sT[0]}, 7
s_add_u32 s{sT[0]}, s{sT[0]}, {WS_RS}
s_mov_b32 exec_lo, 0x01010101
s_mov_b32 exec_hi, 0x01010101''')
        vm(f'buffer_store_dwordx4 {v4(S)}, v{ad}, {W}, s{sT[0]} offen sc1')
        A('s_mov_b64 exec, -1')
    return it + c.lines + [st]


def colsum_work(vm):
    cs = XS
    it = [lambda: vm.wait('xp')]
    for i in range(40):
        it.append(f'v_dot2_f32_bf16 v{cs + (i & 1)}, v{XP + i}, s{sOnes}, ' + (f'v{cs + (i & 1)}' if i > 1 else '0'))
    it.append(f'v_add_f32 v{cs}, v{cs}, v{cs + 1}')
    for mod in ('quad_perm:[1,0,3,2]', 'quad_perm:[2,3,0,1]', 'row_half_mirror'):
        it.append(f'v_add_f32_dpp v{cs}, v{cs}, v{cs} {mod} {DPPM}')

    def st():
        A(f"""v_mov_b32 v{cs + 1}, s{sTag}
v_lshlrev_b32 v{vT[0]}, 1, v{vL}
s_lshl_b32 s{sT[0]}, s{sMem}, 3
s_and_b32 s{sT[1]}, s{sR128}, 7
s_add_u32 s{sT[0]}, s{sT[0]}, s{sT[1]}
s_mul_i32 s{sT[0]}, s{sT[0]}, 80
s_and_b32 s{sT[1]}, s{sR128}, 8
s_add_u32 s{sT[0]}, s{sT[0]}, s{sT[1]}
s_add_u32 s{sT[0]}, s{sT[0]}, {WS_CS}
s_mov_b32 exec_lo, 0x01010101
s_mov_b32 exec_hi, 1""")
        vm(f'buffer_store_dwordx2 {v2(cs)}, v{vT[0]}, {W}, s{sT[0]} offen sc1')
        A('s_mov_b64 exec, -1')
    return it + [st]


def fx_store(mods):
    A(f"""s_lshl_b32 s{sT[0]}, s{sG}, 11
s_lshl_b32 s{sT[1]}, s{sJ}, 2
s_add_u32 s{sT[0]}, s{sT[0]}, s{sT[1]}
s_add_u32 s{sT[0]}, s{sT[0]}, {WS_FX}
s_or_b32 s{sT[1]}, s{sTag}, s{sXcc}
v_mov_b32 v{vT[4]}, s{sT[1]}
s_mov_b64 exec, 1
buffer_store_dword v{vT[4]}, off, {W}, s{sT[0]}{mods}
s_mov_b64 exec, -1""")


def mode_check(vm):
    t, x, fa, so = vFX, vT[4], vFXa, sX[2]
    vm.wait('fx')
    lab, done = A.label('again'), A.label('ok')
    A.cond[lab] = lambda c: False
    A(f"""v_xor_b32 v{x}, s{sTag}, v{t}
v_cmp_lt_u32 vcc, 15, v{x}
s_cbranch_vccnz {lab}
{done}:""")
    TAIL.append(f"""{lab}:
s_sub_u32 s{sBud}, s{sBud}, 1
s_cmp_gt_i32 s{sBud}, 0
s_cbranch_scc0 {done}
buffer_load_dword v{t}, v{fa}, {W}, s{so} offen sc1
s_waitcnt vmcnt(0)
v_xor_b32 v{x}, s{sTag}, v{t}
v_cmp_lt_u32 vcc, 15, v{x}
s_cbranch_vccz {done}
s_and_b32 s{sT[1]}, s{sBud}, 3
s_cbranch_scc1 {lab}
buffer_load_dword v{t}, v{fa}, {W}, s{so} offen offset:128 sc1
s_waitcnt vmcnt(0)
v_xor_b32 v{x}, s{sTag}, v{t}
v_cmp_lt_u32 vcc, 15, v{x}
s_cbranch_vccnz {lab}
s_branch {done}""")
    A(f"""s_or_b32 s{sT[1]}, s{sTag}, s{sXcc}
v_cmp_ne_u32 vcc, s{sT[1]}, v{t}
s_cmp_eq_u64 vcc, 0
s_cselect_b32 s{sMode}, {0 if OPT['force_slow'] else 1}, 0
s_cmp_eq_u32 s{sW}, 2
s_cselect_b32 s{sKm}, 0, s{sMode}""")


def gemm_addr():
    t = vT
    A(f"""v_and_b32 v{t[0]}, 1, v{vI}
v_lshrrev_b32 v{t[1]}, 1, v{vI}
v_and_b32 v{t[2]}, 6, v{t[1]}
s_movk_i32 s{sT[3]}, 0x78
v_bfe_u32 v{t[2]}, s{sT[3]}, v{t[2]}, 2
v_xor_b32 v{t[2]}, v{t[2]}, v{vQ}
v_lshl_add_u32 v{t[2]}, v{t[0]}, 2, v{t[2]}
v_lshlrev_b32 v{t[2]}, 4, v{t[2]}
v_lshl_add_u32 v{t[2]}, v{t[1]}, 7, v{t[2]}
v_lshl_add_u32 v{vBA[0]}, v{t[0]}, 10, v{t[2]}
v_xor_b32 v{vBA[1]}, 64, v{vBA[0]}
v_add_u32 v{vBA[2]}, 51200, v{vBA[0]}
v_add_u32 v{vBA[3]}, 51200, v{vBA[1]}
v_mul_u32_u24 v{vAS}, 144, v{t[1]}
v_lshl_add_u32 v{vAS}, v{t[0]}, 2, v{vAS}
v_lshl_add_u32 v{vAS}, v{vQ}, 3, v{vAS}
s_lshl_b32 s{sT[0]}, s{sW}, 5
v_add_u32 v{vAS}, s{sT[0]}, v{vAS}
v_and_b32 v{t[0]}, 6, v{vI}
v_xor_b32 v{t[0]}, v{t[0]}, v{vQ}
v_lshlrev_b32 v{t[0]}, 4, v{t[0]}
v_lshl_add_u32 v{t[0]}, v{vI}, 7, v{t[0]}
v_add_u32 v{vAR}, s{sXm}, v{t[0]}
v_xor_b32 v{vAR2}, 64, v{vAR}""")


def misc_setup():
    t = vT
    A(f'''s_lshr_b32 s{sCs}, s{sX[8]}, 1
s_add_u32 s{sCs}, s{sCs}, 512
s_lshr_b32 s{sT[2]}, s{sMem}, 3
s_lshl_b32 s{sR64}, s{sR128}, 1
s_add_u32 s{sR64}, s{sR64}, s{sT[2]}
s_and_b32 s{sS8}, s{sMem}, 7
s_lshl_b32 s{sFW}, s{sR128}, 10
s_lshl_b32 s{sT[1]}, s{sMem}, 4
s_add_u32 s{sFW}, s{sFW}, s{sT[1]}
s_lshl_b32 s{sT[1]}, s{sW}, 2
s_add_u32 s{sFW}, s{sFW}, s{sT[1]}
s_lshl_b32 s{sFK}, s{sG}, 11
s_add_u32 s{sFK}, s{sFK}, s{sT[1]}
s_lshl_b32 s{sT[1]}, s{sJ}, 4
s_add_u32 s{sFK}, s{sFK}, s{sT[1]}
s_lshl_b32 s{sAgg}, s{sMem}, 5
s_add_u32 s{sAgg}, s{sAgg}, s{sR128}
s_mul_i32 s{sAgg}, s{sAgg}, 640
s_add_u32 s{sAgg}, s{sAgg}, {WS_AGG}
s_cmp_eq_u32 s{sW}, 0
s_cselect_b32 s{sPub}, -1, 0
s_cselect_b32 s{sPub + 1}, 0xff, 0''')
    A(f's_lshl_b32 s{sT[0]}, s{sXs}, 1\ns_mul_i32 s{sT[1]}, s{sMem}, 5')
    for j in range(5):
        A(f"""s_add_u32 s{sT[2]}, s{sT[1]}, {j}
s_lshr_b32 s{sT[3]}, s{sT[2]}, 2
s_lshl_b32 s{sT[3]}, s{sT[3]}, 11
s_and_b32 s{sT[2]}, s{sT[2]}, 3
s_lshl_b32 s{sT[2]}, s{sT[2]}, 8
s_add_u32 s{sT[2]}, s{sT[2]}, s{sT[3]}
s_add_u32 s{sH[j]}, s{sT[2]}, s{sT[0]}""")
    tw, tr, ts = vU[0], vU[1], vU[2]
    A(f'''s_mul_i32 s{sT[0]}, s{sW}, 1280
s_add_u32 s{sT[0]}, s{sT[0]}, {L_TR}
v_mul_u32_u24 v{t[0]}, 80, v{vI}
v_lshl_add_u32 v{t[0]}, v{vQ}, 4, v{t[0]}
v_add_u32 v{tw}, s{sT[0]}, v{t[0]}
v_bfe_u32 v{t[1]}, v{vL}, 2, 2
v_mul_u32_u24 v{t[1]}, 160, v{t[1]}
v_and_b32 v{t[2]}, 3, v{vL}
v_lshl_add_u32 v{t[1]}, v{t[2]}, 4, v{t[1]}
v_lshrrev_b32 v{t[2]}, 1, v{vQ}
v_mul_u32_u24 v{t[3]}, 80, v{t[2]}
v_lshlrev_b32 v{t[2]}, 10, v{t[2]}
v_add3_u32 v{t[1]}, v{t[1]}, v{t[3]}, s{sT[0]}
v_and_b32 v{t[3]}, 1, v{vQ}
v_lshl_add_u32 v{tr}, v{t[3]}, 3, v{t[1]}
v_mul_u32_u24 v{t[3]}, 40960, v{t[3]}
v_lshl_add_u32 v{t[2]}, v{vI}, 4, v{t[2]}
v_add_u32 v{ts}, v{t[2]}, v{t[3]}''')
    park('tw', tw), park('tr', tr), park('ts', ts), park('bd', vBd), park('bd2', vBd2)
    A(f'''v_lshrrev_b32 v{t[0]}, 2, v{vI}
v_mul_u32_u24 v{t[0]}, 5120, v{t[0]}
v_and_b32 v{t[1]}, 3, v{vI}
v_lshl_add_u32 v{t[0]}, v{t[1]}, 4, v{t[0]}
v_lshl_add_u32 v{vUA}, v{vQ}, 6, v{t[0]}''')


def weave(items, extra, first, every):
    extra = list(extra)
    for i, it in enumerate(lines(items)):
        run(it)
        if extra and i >= first and (i - first) % every == 0:
            run(extra.pop(0))
    run(extra)


class Roles:
    def __init__(self, n):
        self.c = [VM() for _ in range(n)]

    def __call__(self, text, name=None):
        A(text)
        for c in self.c:
            c.n += 1
            if name is not None:
                c.t[name] = c.n

    def wait(self, *names):
        k = min(c.n - max(c.t[x] for x in names) for c in self.c)
        A(f's_waitcnt vmcnt({min(k, 63)})')
        for c in self.c:
            c.done = max(c.done, c.n - min(k, 63))

    def each(self, fns):
        lj = A.label('join')
        todo = [w for w in range(4) if fns[w]]
        labs = {w: A.label(f'w{w}') for w in todo}
        for w in todo:
            A.cond[labs[w]] = lambda c, w=w: c['w'] == w
            if w != todo[0] or len(todo) < 4:
                A(f's_cmp_eq_u32 s{sW}, {w}\ns_cbranch_scc1 {labs[w]}')
        if len(todo) < 4:
            A(f's_branch {lj}')
        for w in todo:
            A(f'{labs[w]}:')
            fns[w](self.c[w])
            if w != todo[-1]:
                A(f's_branch {lj}')
        A(f'{lj}:')

    def merged(self):
        for c in self.c[1:]:
            self.c[0].merge(c)
        return self.c[0]


def startup():
    t = vT
    R = Roles(4)

    def bs(vm, g0, g1):
        return [lambda g=g, j=j: b_dma(vm, g, j) for g in range(g0, g1) for j in (0, 2, 4)]

    def head1(vm):
        A(f"""v_min_u32 v{t[0]}, 39, v{vL}
s_mul_i32 s{sT[0]}, s{sMem}, 80
v_lshl_add_u32 v{t[3]}, v{t[0]}, 1, s{sT[0]}""")
        vm(f'global_load_ushort v{PAR}, v{t[3]}, {s2(P_LRE)}{NT}')
        vm(f'global_load_ushort v{PAR + 1}, v{t[3]}, {s2(P_LIM)}{NT}')
        vm(f'global_load_ushort v{PAR + 2}, v{t[3]}, {s2(P_LDT)}{NT}', 'par')

    def head0(vm):
        kv_loads0(vm)
        srd(R_WS, P_WS, WS_SIZE)
        agg = f's_lshl_b32 $, s{sMem}, 5\ns_add_u32 $, $, s{sR128}\ns_mul_i32 $, $, 640\ns_add_u32 $, $, '
        n = touch_addr(t[0], [SEG_ST, SEG_F, (9, f's_lshl_b32 $, s{sG}, 11\ns_add_u32 $, $, {WS_FK}'),
                              (5, agg + str(WS_AGG + 16 * 640)), (5, agg + str(WS_AGG + 16 * 640 + AGG_L)),
                              (5, f's_mul_i32 $, s{sMem}, 640\ns_add_u32 $, $, {WS_CS}'),
                              (1, f's_lshl_b32 $, s{sG}, 7\ns_add_u32 $, $, {WS_FY}'),
                              (1, f's_lshl_b32 $, s{sG}, 7\ns_add_u32 $, $, {WS_FB}')])
        A(f's_mov_b32 exec_hi, {(1 << n - 32) - 1}')
        vm(f'buffer_load_dword a250, v{t[0]}, {W}, 0 offen')
        A('s_mov_b32 exec_hi, -1')

    def head3(vm):
        srd(R_X, P_X, 2621440)
        A(f'''s_lshl_b32 s{sT[0]}, s{sR128}, 4
s_add_u32 s{sT[0]}, s{sT[0]}, s{sMem}
s_mul_i32 s{sT[0]}, s{sT[0]}, 10240''')
        vm.t['kv'] = 0
        for z in range(10):
            vm(f'buffer_load_dwordx4 {v4(XP + 4 * z)}, v{vR}, {s4(R_X)}, s{sT[0]} offen offset:{z * 128}', 'xp')
    def args():
        A('s_waitcnt lgkmcnt(0)')
        if OPT['stamps']:
            A(f'v_writelane_b32 v{vStamp}, s{sSt}, 62')
            stamp('start')
    R.each([lambda vm, f=f: (args(), f(vm)) for f in (head0, lambda vm: (head1(vm), kv_loads1(vm)), kv_loads2, head3)])
    A(f's_load_dword s{sTag}, {s2(P_WS)}, 0')

    def scalars():
        A(f'''s_lshl_b32 s{sC0}, s{sX[8]}, 1
s_lshl_b32 s{sT[0]}, s{sC0}, 1
s_load_dword s{sD[0]}, {s2(P_SD)}, s{sT[0]}
s_and_b32 s{sT[0]}, s{sX[8]}, 0xfffffffc
s_add_u32 s{sT[0]}, s{sT[0]}, 1024
s_load_dword s{sD[1]}, {s2(P_SD)}, s{sT[0]}
s_getreg_b32 s{sXcc}, hwreg(HW_REG_XCC_ID, 0, 4)
s_mov_b32 s{sBud}, {OPT['budget']}
s_mov_b32 s{sOnes}, 0x3f803f80''')
    with Cap() as cc:
        consts()
    cc.lines.remove('s_waitcnt lgkmcnt(0)')

    def tag():
        A(f"""s_waitcnt lgkmcnt(0)
s_lshr_b32 s{sTag}, s{sTag}, 4
s_mul_i32 s{sTag}, s{sTag}, 0x19660d
s_add_u32 s{sTag}, s{sTag}, 0x3c6ef35f
s_lshl_b32 s{sTag}, s{sTag}, 4""")

    def more():
        with Cap() as c:
            A(f'''s_lshl_b32 s{sX[6]}, s{sR128}, 11
s_lshl_b32 s{sT[0]}, s{sW}, 9
s_add_u32 s{sX[6]}, s{sX[6]}, s{sT[0]}
s_add_u32 s{sX[6]}, s{sX[6]}, {WS_RS}
v_and_b32 v{vRS}, 7, v{vI}
v_lshlrev_b32 v{vRS}, 4, v{vRS}
v_lshl_add_u32 v{vRS}, v{vQ}, 7, v{vRS}
s_mul_i32 s{sX[7]}, s{sMem}, 640
s_add_u32 s{sX[7]}, s{sX[7]}, {WS_CS}
v_lshlrev_b32 v{vRS + 1}, 3, v{vL}
v_lshlrev_b32 v{vRS + 2}, 3, v{vI}
v_and_b32 v{vFA}, 31, v{vL}
v_lshlrev_b32 v{vFA}, 4, v{vFA}
s_lshl_b32 s{sX[1]}, s{sS8}, 11
s_add_u32 s{sX[1]}, s{sX[1]}, {WS_FS}
v_and_b32 v{vFXa}, 31, v{vL}
v_lshlrev_b32 v{vFXa}, 2, v{vFXa}
s_lshl_b32 s{sX[2]}, s{sG}, 11
s_add_u32 s{sX[2]}, s{sX[2]}, {WS_FX}''')
            run(conv_setup())
            g2_setup(0)
            run(y_setup())
            for i, r in enumerate(vCA + vCB + YREG + G2REG):
                A(f'v_accvgpr_write_b32 a{A_CV + i}, v{r}')
            z_addr()
            touch_addr(vT[0], [SEG_ST, SEG_F])
            park('rt', vT[0])
        return c.lines

    def w0(vm):
        A(f'v_mov_b32 v{XS}, 0')
        fx_store('')
        fx_store(' offset:128 sc1')
        vm.n += 2
        A(f'''v_mov_b32 v{XS + 1}, 0
v_mov_b32 v{XS + 2}, s{sTag}
v_mov_b32 v{XS + 3}, s{sTag}
s_add_u32 s{sT[0]}, s{sAgg}, {AGG_L}
s_mov_b32 exec_hi, 0xff''')
        vm(f'buffer_store_dwordx4 {v4(XS)}, v{vL16}, {W}, s{sAgg} offen sc1')
        vm(f'buffer_store_dwordx4 {v4(XS)}, v{vL16}, {W}, s{sT[0]} offen sc1')
        A('s_mov_b32 exec_hi, -1')

    def w1(vm):
        vm.wait('par')
        run(cc.lines)
    blocks = dict(A=dma_addr, S=scalars, M=misc_setup, C=lambda: c_loads(R), O=lambda: run(more()), T=tag,
                  G=lambda: (gemm_addr(), kv_addr(), k_addr()), K=lambda: run(k_loads(R)),
                  R=lambda: R.each([None, w1, w0, lambda vm: run(stats_work(vm))]))
    for b in OPT['order'].split(','):
        if b[0] == 'B':
            run(bs(R, int(b[1]), int(b[1]) + 1))
        elif b[0] == 'X':
            x_dma(R, int(b[1]))
        elif b[0] == '@':
            stamp(b[1:])
        else:
            blocks[b]()
    R.wait('kv')
    A('s_waitcnt lgkmcnt(0)\ns_barrier')
    stamp('kv_land')
    R(f'buffer_load_dword v{vFX}, v{vFXa}, {W}, s{sX[2]} offen sc1', 'fx')
    lg = LG()
    crd, fix = const_reads(lg)
    run(crd)
    va, vb = R.c[0], R.c[3]
    va.merge(R.c[1]), va.merge(R.c[2])
    l3, lj = A.label('w3'), A.label('join')
    A.cond[l3] = lambda c: c['w'] == 3
    A(f's_cmp_eq_u32 s{sW}, 3\ns_cbranch_scc1 {l3}')
    def nxt(v):
        out = []
        for b in OPT['post'].split(','):
            if b[0] == 'L':
                if v is vb:
                    out += [lambda g=int(b[1]): b_all(v, g)]
                else:
                    v.t['b', int(b[1])] = 0
                continue
            if b[0] == 'C':
                out.append(lambda: c_loads(v))
                continue
            out += bs(v, int(b[1]), int(b[1]) + 1) if b[0] == 'B' else [lambda b=b: x_dma(v, int(b[1]))] if b[0] == 'X' else \
                [atom(k_loads(v)[:3]), atom(k_loads(v)[3:5]), atom(k_loads(v)[5:])]
        return out
    la = copy.deepcopy(lg)
    rd, it = kv_work(va, la)
    run(rd)
    weave(it[:-1], nxt(va), OPT['wv0'], OPT['wv'])
    mode_check(va)
    run(it[-1])
    A(f's_branch {lj}\n{l3}:')
    A(f'''s_lshl_b32 s{sT[0]}, s{sMem}, 3
s_and_b32 s{sT[1]}, s{sR128}, 7
s_add_u32 s{sT[0]}, s{sT[0]}, s{sT[1]}
s_mul_i32 s{sT[0]}, s{sT[0]}, 6400
s_mov_b32 exec_hi, 0xff''')
    for z in range(1 if OPT['dbg'] & 8 else 10):
        vb(f'buffer_load_dwordx4 {v4(XP + 4 * z)}, v{vR}, {s4(R_T0)}, s{sT[0]} offen offset:{z * 128}', 'xp')
    A('s_mov_b32 exec_hi, -1')
    run(nxt(vb))
    mode_check(vb)
    run(colsum_work(vb))
    A(f'{lj}:\ns_waitcnt lgkmcnt(0)')
    va.merge(vb)
    vm = va
    stamp('kv_st')
    run(fix[1:])
    if OPT['cfs'] < 0:
        run(cf_work(vm, LG()))
    stamp('cf_st')
    vm.wait(('x', 1), ('b', 0))
    stamp('land')
    return vm


class G1:
    def __init__(self, layer, vm):
        self.layer, self.vm, self.lg, self.side = layer, vm, LG(), Side()
        self.order = list(range(20)) if layer == 0 else list(range(4, 20)) + list(range(4))

    def rd(self, s, j):
        k = self.order[s]
        idx = (k >> 1) * 5 + j
        a, off = (vBA[k & 1], idx * 2048) if idx < 25 else (vBA[2 + (k & 1)], (idx - 25) * 2048)
        self.lg(f'ds_read_b128 {v4(BF + 20 * (s & 1) + 4 * j)}, v{a} offset:{off}', ('B', s, j))

    def rda(self, s, m):
        self.lg(f'ds_read_b128 {v4(AF + 8 * (s & 1) + 4 * m)}, v{vAR2 if s & 1 else vAR} '
                f'offset:{((2 * (s >> 1) + m) % 7) * 8192}', ('A', s, m))

    def ld(self, f):
        s, m = divmod(f, 2)
        s = self.order[s]
        if s == 16:
            A(f's_add_u32 s{sL[m]}, s{sL[m]}, 4096')
        if s == 0:
            A(f's_sub_u32 s{sL[m]}, s{sL[m]}, 4096')
        self.vm(f'buffer_load_dwordx4 {v4(RING + 4 * (f % NR))}, v{vUA}, {W}, s{sL[m]} offen '
                f'offset:{(s % 16) * 256} sc1', ('u', f))

    def step(self, s):
        vm, lg, layer = self.vm, self.lg, self.layer
        if (s in (0, 4, 8, 12, 16) and OPT['stamps'] != 3) or (OPT['stamps'] == 4 and layer == 0):
            stamp(f'.s{s}_{layer}', 2)
        if layer == 0:
            need = [('x', s + 2)] if s & 1 and s < 19 else []
            if (s + 1) % 4 == 0 and s < 19:
                vm.wait(('b', (s + 1) // 4), *need)
                A('s_barrier')
            elif need:
                vm.wait(*need)
        else:
            vm.wait(('u', 2 * s + 1))
            if s == 15:
                A('s_barrier')
        for j in range(5):
            if not OPT['gw'] or s == 0:
                lg.wait(('B', s, j))
            elif j in (0, 3):
                lg.wait(('B', s, 2 if j == 0 else 4))
            if layer == 0 and s == 19 and j == 0:
                A('s_barrier')
            for m in range(2):
                d = ACC + 8 * j + 4 * m
                c = '0' if s == 0 else v4(d)
                a = RING + 4 * ((2 * s + m) % NR) if layer else AF + 8 * (s & 1) + 4 * m
                A(f'v_mfma_f32_16x16x32_bf16 {v4(d)}, {v4(a)}, {v4(BF + 20 * (s & 1) + 4 * j)}, {c}')
                if m == 0 and s < 19:
                    if j == 0 and layer == 0:
                        self.rda(s + 1, 0)
                        self.rda(s + 1, 1)
                    self.rd(s + 1, j)
                if layer == 0 or m == 1:
                    k = 2 * j + m
                    self.side.run(s, 10 - k if layer == 0 else 5 - j)


c_issued = [0]


def c_load(vm):
    i = c_issued[0]
    c_issued[0] += 1
    if i and i % 4 == 0:
        A(f's_add_u32 s{sL[0]}, s{sL[0]}, 4096')
    vm(f'buffer_load_dwordx4 {a4(4 * i)}, v{vL16}, {W}, s{sL[0]} offen offset:{(i % 4) * 1024} sc1', 'cf')


def k_addr():
    A(f'''s_lshl_b32 s{sT[0]}, s{sC0}, 12
s_lshl_b32 s{sT[1]}, s{sW}, 10
s_add_u32 s{sX[3]}, s{sT[0]}, s{sT[1]}
s_add_u32 s{sX[4]}, s{sX[3]}, 4096
s_lshl_b32 s{sX[5]}, s{sCs}, 12
s_add_u32 s{sX[5]}, s{sX[5]}, s{sT[1]}
s_add_u32 s{sT[1]}, s{sT[1]}, {L_K + 32}
v_add_u32 v{vKO}, s{sT[1]}, v{vL16}
v_lshrrev_b32 v{vT[0]}, 1, v{vL}
v_mul_u32_u24 v{vT[0]}, 4160, v{vT[0]}
v_and_b32 v{vT[1]}, 1, v{vL}
v_lshl_add_u32 v{vT[0]}, v{vT[1]}, 4, v{vT[0]}
v_add_u32 v{vKP}, {L_K}, v{vT[0]}''')


def k_loads(vm):
    it = [lambda: srd(R_T1, P_SSK, 2621440)]
    for sl in range(3):
        if not OPT['dbg'] & 2:
            it.append(lambda sl=sl: vm(f'buffer_load_dwordx4 {v4(KA + 4 * sl)}, v{vL16}, {s4(R_T1)}, s{sX[3 + sl]} offen'))
        it.append(lambda sl=sl: vm(f'buffer_load_dwordx4 {v4(KB + 4 * sl)}, v{vL16}, {s4(R_T1)}, s{sX[3 + sl]} offen offset:4', 'K'))
    return it


def k_work(vm):
    it = [lambda: vm.wait('K')]
    for sl in range(3):
        it[-1] = atom(it[-1], f'ds_write_b128 v{vKO}, {v4(KA + 4 * sl)} offset:{sl * 8320}')
        it.append(atom([f'v_alignbit_b32 v{KB + 4 * sl + i}, v{KB + 4 * sl + i}, v{KA + 4 * sl + i}, 16' for i in range(4)],
                       f'ds_write_b128 v{vKO}, {v4(KB + 4 * sl)} offset:{sl * 8320 + 4160}'))

    def pads():
        A(f's_cmp_lg_u32 s{sW}, 0')
        with A.skip_if('s_cbranch_scc1', lambda c: c['w'] != 0):
            run([f'v_mov_b32 v{216 + i}, 0' for i in range(4)])
            A(f's_mov_b64 exec, 0xfff\nds_write_b128 v{vKP}, {v4(216)}\ns_mov_b64 exec, 1')
            for sl in range(3):
                A(f'ds_write_b16 v{vKP}, v{KA + 4 * sl} offset:{sl * 8320 + 4160 + 30}')
            A('s_mov_b64 exec, -1')
    return it + [pads]


def front(vm):
    g = G1(0, vm)
    lg, S = g.lg, g.side
    A('s_barrier')
    g.rda(0, 0), g.rda(0, 1)
    for j in range(5):
        g.rd(0, j)
    for p in (2, 3):
        if ('x', p) not in vm.t:
            x_dma(vm, p)
    if OPT['cfs'] >= 0:
        S.spread(OPT['cfs'], OPT['cfper'], cf_work(vm, lg))
    if 'K' not in vm.t:
        S.spread(OPT['kls'], 3, k_loads(vm))
    S.add(0, lambda: x_dma(vm, 4), lambda: x_dma(vm, 5))
    for p in range(6, 20):
        S.add(max(1, p - 6), lambda p=p: x_dma(vm, p))
    for gi in range(1, 5):
        if ('b', gi) in vm.t:
            continue
        for n, j in enumerate((0, 2, 4)):
            S.add(OPT[f'b{gi}s'] + n // 2, lambda gi=gi, j=j: b_dma(vm, gi, j))
    S.add(OPT['kvf'], atom(lambda: vm.wait('kvst'), lambda: flag_store(f's{sKf}', True, vm, sKm)))
    S.add(OPT['cff'], atom(lambda: vm.wait('cfst'), f's_add_u32 s{sT[0]}, s{sFK}, {WS_FS}',
                           lambda: flag_store(f's{sT[0]}', False, vm)))
    fk = f'buffer_load_dwordx2 {v2(vFP)}, v{vFA}, {W}, s{sX[0]} offen sc1'
    S.add(OPT['fsp'], atom(f's_and_b32 s{sX[0]}, s{sFK}, 0x3800', f's_add_u32 s{sX[0]}, s{sX[0]}, {WS_FK}', lambda: vm(fk, 'fk')))

    def fetch():
        vm.wait('fk')
        check_tags([vFP, vFP + 1], fk)
        for sl in range(2):
            A(f's_lshl_b32 s{sT[0]}, s{sG}, 16\ns_add_u32 s{sT[0]}, s{sT[0]}, s{sX[3 + sl]}\n'
              f's_add_u32 s{sT[0]}, s{sT[0]}, {WS_KV}\ns_lshl_b32 m0, s{sW}, 10')
            if sl:
                A(f's_add_u32 m0, m0, {L_KV + sl * 4608}')
            vm(f'buffer_load_dwordx4 v{vL16}, {W}, s{sT[0]} offen sc1 lds', 'kvT')
    assert OPT['fsc'] >= 7
    S.add(OPT['fsc'], fetch)
    S.add(8, f'''v_lshrrev_b32 v{vT[0]}, 5, v{vL}
v_mul_u32_u24 v{vT[0]}, {4608 - 512}, v{vT[0]}
v_add_u32 v{vT[0]}, v{vT[0]}, v{vL16}''', [f'v_mov_b32 v{216 + i}, 0' for i in range(4)],
          lambda: lg(f'ds_write_b128 v{vT[0]}, {v4(216)} offset:{L_KV + 4096}'),
          lambda: lg(f'ds_write_b128 v{vT[0]}, {v4(216)} offset:{L_KV + 4608 + 4096}'))
    rsl = [f'buffer_load_dwordx3 {v3(RSL)}, v{vRS}, {W}, s{sX[6]} offen sc1',
           f'buffer_load_dwordx2 {v2(RSL + 4)}, v{vRS + 1}, {W}, s{sX[7]} offen sc1',
           f'buffer_load_dwordx2 {v2(RSL + 6)}, v{vRS + 2}, {W}, s{sX[7]} offen offset:512 sc1']
    fc = f'buffer_load_dwordx4 {v4(vFP)}, v{vFA}, {W}, s{sX[1]} offen sc1'
    S.add(OPT['late'], [lambda t=t: vm(t, 'rs') for t in rsl])
    S.add(OPT['csp'], lambda: vm(fc, 'fc'))

    def ccheck():
        vm.wait('fc')
        check_tags([vFP + i for i in range(4)], fc)
        A(f'''s_mul_i32 s{sL[0]}, s{sS8}, 200
s_mul_i32 s{sT[0]}, s{sW}, 50
s_add_u32 s{sL[0]}, s{sL[0]}, s{sT[0]}
s_lshl_b32 s{sL[0]}, s{sL[0]}, 10
s_add_u32 s{sL[0]}, s{sL[0]}, {WS_CF}''')
    marks_gather(S, vm, -1)
    S.add(OPT['csc'], ccheck)
    for i in range(OPT['cl0']):
        S.add(OPT['csc'] + i * (20 - OPT['csc']) // OPT['cl0'], lambda: c_load(vm))

    def rscheck():
        vm.wait('rs')
        check_tags([RSL + 2, RSL + 2, RSL + 5, RSL + 7], rsl)
    S.q.setdefault(OPT['rsc'], []).insert(0, rscheck)
    c = lambda j: CSL + j
    S.add(19, f'''v_mov_b32 v{c(0)}, v{RSL + 4}
v_mov_b32 v{c(1)}, v{RSL + 4}
v_mov_b32 v{c(4)}, v{RSL + 6}
v_permlane16_swap_b32 v{c(0)}, v{c(1)}
v_mov_b32 v{c(2)}, v{c(0)}
v_mov_b32 v{c(3)}, v{c(1)}
v_permlane32_swap_b32 v{c(0)}, v{c(2)}
v_permlane32_swap_b32 v{c(1)}, v{c(3)}''')
    S.add(19, [f'v_mov_b32_dpp v{MM + t}, v{RSL} row_newbcast:{t} {DPPM}\n'
               f'v_mov_b32_dpp v{RR + t}, v{RSL + 1} row_newbcast:{t} {DPPM}' for t in range(8)])
    for s in range(20):
        g.step(s)
    assert not g.side.left()
    stamp('g1_0')
    kw = k_work(vm)
    kw += [f'ds_write_b64 v{vZ + 4}, {v2(RSL)}'] + [[]] * (6 - len(kw))
    scan_1(0, [[k] + [lambda: c_load(vm)] * (i < OPT['cs1']) for i, k in enumerate(kw)], lambda: vm.wait('kvT'))
    lg = LG()
    h1, h2 = horner(0, vm, lg)
    weave(h1, [lambda: c_load(vm)] * OPT['cb'], 10, 6)
    for i, r in enumerate(vCA + vCB):
        A(f'v_accvgpr_read_b32 v{r}, a{A_CV + i}')
    for k in range(2):
        for i in range(1, 4):
            A(f'v_add_u32 v{vCA[k] + i}, {1024 * i}, v{vCA[k]}')
    return vm, lg


MAS, PP, AGL, GR = 90, 244, 88, 88
LT = [128, 144, 160, 176, 104]
PK = [120, 124]
vTW, vTR, vTS = 254, 255, 47


def scan_1(layer, extra=[], last=None):
    b = lambda j, ta: ACC + 8 * j + ta
    if layer == 0:
        for j in range(5):
            sel = 'op_sel:[0,1,0] op_sel_hi:[1,1,1]' if j & 1 else 'op_sel_hi:[1,0,1]'
            for p in range(4):
                d = ACC + 8 * j + 2 * p
                A(f'v_pk_fma_f32 {v2(d)}, {v2(MM + 2 * p)}, {v2(CSL + (j & ~1))}, {v2(d)} {sel} '
                  f'neg_lo:[1,0,0] neg_hi:[1,0,0]')
        for j in range(5):
            for p in range(4):
                d = ACC + 8 * j + 2 * p
                A(f'v_pk_mul_f32 {v2(d)}, {v2(d)}, {v2(RR + 2 * p)}')
    extra = list(extra)
    for ta in range(1, 8):
        if extra:
            run(extra.pop(0))
        for j in range(5):
            A(f'v_fmac_f32 v{b(j, ta)}, v{LR + j}, v{b(j, ta - 1)}')
        for j in range(5):
            A(f'v_fmac_f32_dpp v{b(j, ta)}, v{b(j, ta - 1)}, v{LS + j} {SWP}')
    A(f'''v_add_u32 v{vT[0]}, {L_AS}, v{vAS}
v_min_u32 v{vT[1]}, 39, v{vL}
v_mul_u32_u24 v{vU[2]}, 48, v{vT[1]}
s_lshl_b32 s{sT[0]}, s{sW}, 3
s_add_u32 s{sT[0]}, s{sT[0]}, {L_G}
v_add_u32 v{vU[2]}, s{sT[0]}, v{vU[2]}''')
    for j in range(5):
        A(f'ds_write_b32 v{vT[0]}, v{b(j, 7)} offset:{j * 1152}')
    A(f'''v_mul_u32_u24 v{vU[4]}, 144, v{vT[1]}
v_add_u32 v{vU[4]}, {L_AS}, v{vU[4]}''')
    if last:
        last()
    A('s_waitcnt lgkmcnt(0)\ns_barrier')
    stamp(f'scan1_{layer}')


def horner(layer, vm, lg):
    it = [lambda i=i: lg(f'ds_read_b128 {v4(MAS + 4 * i)}, v{vU[4]} offset:{16 * i}', ('as', i)) for i in range(8)]
    for s in range(1, 16):
        if s == 1 or s % 2 == 0:
            it.append(lambda s=s: lg.wait(('as', s // 2)))
        it += cmul(MAS + 2 * s, MAS + 2 * s - 2, mL8, MAS + 2 * s)

    def pub():
        A(f'''v_mov_b32 v{MAS + 32}, s{sTag}
v_mov_b32 v{MAS + 33}, s{sTag}
s_add_u32 s{sT[0]}, s{sAgg}, {layer * AGG_L + 16 * 640}
s_mov_b64 exec, {s2(sPub)}''')
        A(f'buffer_store_dwordx4 {v4(MAS + 30)}, v{vL16}, {W}, s{sT[0]} offen sc1')
        A('s_mov_b64 exec, -1')
        stamp(f'agg_pub_{layer}')
    it.append(pub)
    first, it = it, []
    def own():
        A(f'v_subrev_u32 v{vU[4]}, {L_AS - L_P}, v{vU[4]}\nv_mov_b32 v{MAS - 2}, 0\nv_mov_b32 v{MAS - 1}, 0\ns_mov_b32 exec_hi, 0xff')
        Roles(4).each([lambda c, w=w: [A(f'ds_write_b128 v{vU[4]}, {v4(MAS - 2 + 8 * w + 4 * i)} offset:{32 * w + 16 * i}')
                                       for i in range(2)] for w in range(4)])
        A('s_mov_b32 exec_hi, -1')
        lg.n += 2
    it.append(own)
    it.append(f'v_add_u32 v{vU[4]}, {L_P}, v{vAS}')
    it += [lambda j=j: lg(f'ds_read_b32 v{PP + 2 * j}, v{vU[4]} offset:{j * 1152}', 'pp') for j in range(5)]
    it += [f'v_and_b32 v{vU[1]}, 1, v{vI}', f'v_cvt_f32_u32 v{vU[1]}, v{vU[1]}', f'v_fma_f32 v{vU[1]}, 2.0, v{vU[1]}, -1.0']
    it.append(lambda: lg.wait('pp'))
    it += [f'v_mul_f32_dpp v{PP + 2 * j + 1}, v{PP + 2 * j}, v{vU[1]} {SWP}' for j in range(5)]
    return first, it


def agg_ld(layer):
    pre = f'''s_lshl_b32 s{sX[3]}, s{sW}, 2
s_sub_u32 s{sX[3]}, 12, s{sX[3]}
s_mul_i32 s{sX[3]}, s{sX[3]}, 640
s_add_u32 s{sX[3]}, s{sX[3]}, s{sAgg}
s_add_u32 s{sX[3]}, s{sX[3]}, {layer * AGG_L}
v_min_u32 v{vU[0]}, 39, v{vL}
v_lshlrev_b32 v{vU[0]}, 4, v{vU[0]}'''
    return pre, [f'buffer_load_dwordx3 {v3(AGL + 4 * z)}, v{vU[0]}, {W}, s{sX[3]} offen offset:{z * 640} sc1' for z in range(4)]


def scan_2(layer, vm, ld, hook={}, defer=False, extra=[]):
    lg = LG()
    t = vT
    A(f'''v_lshrrev_b32 v{t[0]}, 1, v{vI}
v_mul_u32_u24 v{t[1]}, 80, v{t[0]}
v_add_u32 v{t[1]}, {L_L}, v{t[1]}
v_mul_u32_u24 v{t[0]}, 48, v{t[0]}
v_add_u32 v{t[0]}, {L_G}, v{t[0]}''')
    def lrd(j):
        for c in range(4):
            lg(f'ds_read_b128 {v4(LT[j] + 4 * c)}, v{t[1]} offset:{j * 640 + 16 * c}', ('L', j))
    early = 5 if layer else OPT['lpre']
    for j in range(early):
        lrd(j)
    A('\n'.join([unpark('tw', vTW), unpark('tr', vTR), unpark('ts', vTS)]))
    vm.wait('agg')
    check_tags([AGL + 2, AGL + 6, AGL + 10, AGL + 14], ld, x=t[3], y=t[4], inline=2)
    stamp(f'agg_in_{layer}')
    for z in range(1, 4):
        A('\n'.join(cmul(AGL + 4 * z, AGL + 4 * z - 4, mL128, AGL + 4 * z)))
    A('\n'.join(cmul(AGL, AGL + 12, mW)))
    if extra:
        extra.pop()()
    A(f'''s_mov_b32 exec_hi, 0xff
ds_write_b64 v{vU[2]}, {v2(AGL)}
s_mov_b32 exec_hi, -1''')
    stamp(f'.fold{layer}', 5 - 2 * (OPT['stamps'] == 3))
    A('s_waitcnt lgkmcnt(0)')
    stamp(f'.added{layer}', 5 - 2 * (OPT['stamps'] == 3))
    A('s_barrier')
    stamp(f'.gbar{layer}', 5 - 2 * (OPT['stamps'] == 3))
    lg = LG()
    GQ = [88, 96, 224, 88, 96]

    def grd(j):
        lg(f'ds_read_b128 {v4(GQ[j])}, v{t[0]} offset:{j * 384}')
        lg(f'ds_read_b128 {v4(GQ[j] + 4)}, v{t[0]} offset:{j * 384 + 16}', ('G', j))
    for j in range(3):
        grd(j)
    for j in range(early, min(early + 1, 5)):
        lrd(j)
    hb = HB[layer]

    def more():
        if extra:
            extra.pop()()
    more()

    def xy(j):
        lg.wait(('G', j))
        q = GQ[j]
        p, a, gq = v2(PP + 2 * j), v2(VA + 2 * j), v2(q)
        A(f'v_pk_add_f32 {gq}, {gq}, {v2(q + 2)}\nv_pk_add_f32 {v2(q + 4)}, {v2(q + 4)}, {v2(q + 6)}\n'
          f'v_pk_add_f32 {gq}, {gq}, {v2(q + 4)}')
        A(f'v_pk_fma_f32 {p}, {a}, {gq}, {p} op_sel:[0,0,0] op_sel_hi:[1,0,1]')
        A(f'v_pk_fma_f32 {p}, {a}, {gq}, {p} op_sel:[1,1,0] op_sel_hi:[0,1,1] neg_hi:[1,0,0]')
        if j < 2:
            grd(j + 3)

    def upd(j):
        p = v2(PP + 2 * j)
        if early + 1 + j < 5:
            lrd(early + 1 + j)
        if j >= early:
            lg.wait(('L', j))
        for k in range(4):
            d = v2(ACC + 8 * j + 2 * k)
            A(f'v_pk_fma_f32 {d}, {v2(LT[j] + 2 * k)}, {p}, {d} op_sel:[0,0,0] op_sel_hi:[1,0,1]')
        more()
        for k in range(4):
            d = v2(ACC + 8 * j + 2 * k)
            A(f'v_pk_fma_f32 {d}, {v2(LT[j] + 8 + 2 * k)}, {p}, {d} op_sel:[0,1,0] op_sel_hi:[1,1,1]')
        pk = PK[j & 1]
        for d in range(4):
            A(f'v_cvt_pk_bf16_f32 v{pk + d}, v{ACC + 8 * j + 2 * d}, v{ACC + 8 * j + 2 * d + 1}')
        lg(f'ds_write_b128 v{vTW}, {v4(pk)}')
        more()
        lg(f'ds_read_b64_tr_b16 {v2(ACC + 8 * j + 4)}, v{vTR}')
        lg(f'ds_read_b64_tr_b16 {v2(ACC + 8 * j + 6)}, v{vTR} offset:640', ('T', j))

    def st(j, vm=vm):
        A(f's_add_u32 s{sT[1]}, s{sH[j]}, {hb}')
        lg.wait(('T', j))
        mode_stores([f'buffer_store_dwordx4 {v4(ACC + 8 * j + 4)}, v{vTS}, {WH}, s{sT[1]} offen'], through=OPT['thr'] & (2 << layer))
        vm.n += 1
        vm.t['hst'] = vm.n
    xy(0), xy(1)
    lag = OPT['lag']
    for j in range(5 + lag):
        stamp(f'.j{j}_{layer}', 5 - 2 * (OPT['stamps'] == 3))
        if j < 5:
            upd(j)
        if j < 3:
            xy(j + 2)
        if j >= lag and j - lag < (defer or 5):
            st(j - lag)
        if j in hook:
            hook[j](lg)
    if defer:
        lg.wait(('T', 4))
        stamp(f'h_st_{layer}')
        return st
    stamp(f'h_st_{layer}')


def h_flag(layer, vm):
    vm.wait('hst')
    A(f's_add_u32 s{sT[2]}, s{sFW}, {WS_FH + layer * 256}')
    flag_store(f's{sT[2]}', True, vm)
    stamp(f'h_flag_{layer}')


CA, CB, CX, CY = 128, 160, 192, 104
vCA, vCB = [232, 236], [240, 241]
JSET = [[1, 2, 4, 7], [0, 3, 5, 6]]


def conv_setup():
    t = vT
    return lines(f"""v_add_u32 v{t[0]}, 1, v{vI}
v_and_b32 v{t[1]}, 1, v{t[0]}
v_mul_u32_u24 v{t[1]}, 4160, v{t[1]}
v_lshrrev_b32 v{t[0]}, 1, v{t[0]}
v_lshl_add_u32 v{t[1]}, v{t[0]}, 2, v{t[1]}
v_lshl_add_u32 v{t[1]}, v{vQ}, 4, v{t[1]}
v_sub_u32 v{t[0]}, 15, v{vI}
v_lshlrev_b32 v{t[0]}, 5, v{t[0]}
v_lshl_add_u32 v{t[0]}, v{vQ}, 4, v{t[0]}
s_lshr_b32 s{sT[0]}, s{sW}, 1
s_and_b32 s{sT[1]}, s{sW}, 1
s_lshl_b32 s{sT[1]}, s{sT[1]}, 8
s_mul_i32 s{sT[2]}, s{sT[0]}, 8320
s_add_u32 s{sT[2]}, s{sT[2]}, s{sT[1]}
s_add_u32 s{sT[2]}, s{sT[2]}, {L_K}
v_add_u32 v{vCA[0]}, s{sT[2]}, v{t[1]}
s_mul_i32 s{sT[2]}, s{sT[0]}, 4608
s_add_u32 s{sT[2]}, s{sT[2]}, s{sT[1]}
v_add_u32 v{vCB[0]}, s{sT[2]}, v{t[0]}
s_lshl_b32 s{sT[1]}, s{sW}, 7
s_add_u32 s{sT[2]}, s{sT[1]}, {L_K + 2 * 8320}
v_add_u32 v{vCA[1]}, s{sT[2]}, v{t[1]}
s_add_u32 s{sT[2]}, s{sT[1]}, {L_KV + 2 * 4608}
v_add_u32 v{vCB[1]}, s{sT[2]}, v{t[0]}""")


class Conv:
    def __init__(self, units, lg, cont=False):
        self.lg, self.seq, self.todo, self.issued = lg, [], [], set()
        free, seen = {}, ({CX + 4 * j for j in range(8)} if cont else set())
        for k, u, js, acc in units:
            first, last = {}, {}
            for a in range(max(js), -1, -1):
                for j in js:
                    if j < a:
                        continue
                    for f in (('A', a), ('B', j - a)):
                        first.setdefault(f, len(self.seq))
                        last[f] = len(self.seq)
                    d = acc + 4 * js.index(j)
                    self.seq.append((k, u, a, j - a, d, d in seen))
                    seen.add(d)
            for f, need in first.items():
                self.todo.append((max(free.get(f, -1), need - OPT['look']), need, (k, u, f)))
            free.update(last)
        self.todo.sort(key=lambda x: x[:2])

    def rd(self, key):
        k, u, (kind, x) = key
        self.issued.add(key)
        if kind == 'A':
            o = 16 * u + 128 * (x & 1)
            self.lg(f'ds_read2_b32 {v2(CA + 4 * x)}, v{vCA[k] + (x >> 1)} offset0:{o} offset1:{o + 1}')
            self.lg(f'ds_read2_b32 {v2(CA + 4 * x + 2)}, v{vCA[k] + (x >> 1)} offset0:{o + 2} offset1:{o + 3}', key)
        else:
            self.lg(f'ds_read_b128 {v4(CB + 4 * x)}, v{vCB[k]} offset:{64 * u + 512 * (7 - x)}', key)

    def emit(self, n0, n1, side):
        todo = self.todo
        while n0 == 0 and todo[0][0] < 0 and todo[0][1] < 4:
            self.rd(todo.pop(0)[2])
        for gn in range(n0, n1):
            k, u, a, b, d, chain = self.seq[gn]
            self.lg.wait((k, u, ('A', a)), (k, u, ('B', b)))
            A(f'v_mfma_f32_16x16x32_bf16 {v4(d)}, {v4(CA + 4 * a)}, {v4(CB + 4 * b)}, {v4(d) if chain else 0}')
            did = 0
            while todo and todo[0][0] <= gn and (did < 1 or todo[0][1] <= gn + 3):
                self.rd(todo.pop(0)[2])
                did += 1
            if not did or gn % 4 == 3:
                side.run(gn // 4, 4 - gn % 4)

    def force(self, keys):
        for it in [x for x in self.todo if x[2] in keys]:
            self.todo.remove(it)
            self.rd(it[2])


vFY = 120
KVM, KVX = 88, 96
YREG = [246, 247, 248, 249, 250, 251, 252]
yS, yKm, yKx, yPw, yPr, ySr, ySw = YREG


def y_setup():
    t = vT
    return lines(f"""s_lshr_b32 s{sT[1]}, s{sW}, 1
s_add_u32 s{sT[0]}, s{sC0}, s{sT[1]}
s_bitcmp1_b32 s{sT[0]}, 0
s_cselect_b32 s{sT[2]}, 16, 0
s_lshr_b32 s{sD[0]}, s{sD[0]}, s{sT[2]}
s_and_b32 s{sDm[0]}, s{sD[0]}, 0xffff
s_lshl_b32 s{sDm[1]}, s{sD[0]}, 16
s_bitcmp1_b32 s{sCs}, 0
s_cselect_b32 s{sT[2]}, 16, 0
s_lshr_b32 s{sD[1]}, s{sD[1]}, s{sT[2]}
s_and_b32 s{sDm[2]}, s{sD[1]}, 0xffff
s_lshl_b32 s{sDm[3]}, s{sD[1]}, 16
s_lshl_b32 s{sYO[0]}, s{sT[0]}, 12
s_and_b32 s{sT[0]}, s{sW}, 1
s_lshl_b32 s{sT[0]}, s{sT[0]}, 11
s_add_u32 s{sYO[0]}, s{sYO[0]}, s{sT[0]}
s_add_u32 s{sYO[0]}, s{sYO[0]}, {WS_Y}
s_mul_i32 s{sT[1]}, s{sT[1]}, 4608
s_sub_u32 s{sT[1]}, s{sT[1]}, s{sT[0]}
s_add_u32 s{sT[1]}, s{sT[1]}, {L_KV + 4088 - 3 * 512}
v_lshlrev_b32 v{yS}, 5, v{vI}
v_lshl_add_u32 v{yS}, v{vQ}, 3, v{yS}
v_sub_u32 v{yKm}, s{sT[1]}, v{yS}
s_bitcmp1_b32 s{sJ}, 0
s_movk_i32 s{sT[0]}, 0x7421
s_cselect_b32 s{sT[0]}, 0x6530, s{sT[0]}
s_lshl_b32 s{sT[1]}, s{sW}, 2
s_lshr_b32 s{sT[0]}, s{sT[0]}, s{sT[1]}
s_and_b32 s{sT[0]}, s{sT[0]}, 7
s_lshl_b32 s{sT[0]}, s{sT[0]}, 9
s_lshl_b32 s{sYO[1]}, s{sCs}, 12
s_add_u32 s{sYO[1]}, s{sYO[1]}, s{sT[0]}
s_add_u32 s{sYO[1]}, s{sYO[1]}, {WS_Y}
s_sub_u32 s{sT[0]}, {L_KV + 2 * 4608 + 4088}, s{sT[0]}
v_sub_u32 v{yKx}, s{sT[0]}, v{yS}
s_lshl_b32 s{sT[0]}, s{sW}, 12
s_add_u32 s{sT[1]}, s{sT[0]}, {L_PM}
v_add_u32 v{ySw}, s{sT[1]}, v{vL16}
s_add_u32 s{sT[1]}, s{sT[0]}, {L_PS}
v_add_u32 v{yPw}, s{sT[1]}, v{vL16}
s_xor_b32 s{sT[1]}, s{sT[0]}, 4096
s_add_u32 s{sT[1]}, s{sT[1]}, {L_PS}
v_add_u32 v{yPr}, s{sT[1]}, v{vL16}
s_lshl_b32 s{sT[1]}, s{sW}, 10
s_add_u32 s{sT[1]}, s{sT[1]}, {L_PM}
v_add_u32 v{ySr}, s{sT[1]}, v{vL16}""")


def y_dterm(acc, kv, dlo, dhi):
    sel = [(1, dhi), (1, dlo), (0, dhi), (0, dlo)]
    return [f'v_dot2_f32_bf16 v{acc + r}, v{kv + sel[r][0]}, s{sel[r][1]}, v{acc + r}' for r in range(4)]


def marks_gather(S, vm, sg):
    if OPT['clr'] * sg > 0:
        marks(S, vm, abs(OPT['clr']), 228 if sg > 0 else 216)
    if OPT['fbp'] * sg > 0:
        gather(S, vm, abs(OPT['fbp']), abs(OPT['fbc']), 124 if sg > 0 else 220)


def marks(S, vm, at, r):
    S.add(at, [f'v_mov_b32 v{r + i}, -1' for i in range(4)], f'v_lshlrev_b32 v{vT[0]}, 3, v{vL}',
          lambda: vm(f'buffer_store_dwordx2 {v2(r)}, v{vT[0]}, {W}, s{sYO[1]} offen sc1'))
    for i in range(2):
        S.add(at + 1 + i, lambda i=i: vm(f'buffer_store_dwordx4 {v4(r)}, v{vL16}, {W}, s{sYO[0]} offen offset:{1024 * i} sc1'))


def gather(S, vm, at, at2, r):
    fb = f'buffer_load_dwordx4 {v4(r)}, v{vL16}, {W}, s{sKs} offen sc1'
    S.add(at, atom(f's_mov_b32 s{sKs}, {WS_FB}', lambda: vm(fb, 'fb')))

    def go():
        vm.wait('fb')
        check_tags([r + i for i in range(4)], fb)
        A(f'''s_lshl_b32 s{sT[1]}, s{sW}, 6
s_sub_u32 s{sT[0]}, 255, s{sT[1]}
v_sub_u32 v{vT[0]}, s{sT[0]}, v{vL}
v_lshlrev_b32 v{vT[0]}, 11, v{vT[0]}
s_and_b32 s{sT[0]}, s{sCs}, 3
s_lshl_b32 s{sT[0]}, s{sT[0]}, 9
s_bfe_u32 s{sT[2]}, s{sCs}, 0x50002
s_lshl_b32 s{sT[2]}, s{sT[2]}, 4
s_add_u32 s{sT[0]}, s{sT[0]}, s{sT[2]}
s_add_u32 s{sT[0]}, s{sT[0]}, {WS_KB}
s_lshl_b32 s{sT[1]}, s{sT[1]}, 4
s_add_u32 m0, s{sT[1]}, {L_KV + 2 * 4608}''')
        vm(f'buffer_load_dwordx4 v{vT[0]}, {W}, s{sT[0]} offen sc1 lds')
    S.add(at2, go)


def conv(vm, lg):
    S = Side()
    e = S.spread(0, 3, horner(0, vm, lg)[1])
    left = 50 - c_issued[0] - OPT['cl2'] - OPT['cs2']
    for i in range(left):
        S.add(i * OPT['clend'] // left, lambda: c_load(vm))
    S.spread(0, 1, z_loads(vm))
    S.add(0, lambda: lg(f'ds_read_b64 a[{A_ZU}:{A_ZU + 1}], v{vZ + 3}'))
    S.spread(14, 2, [lambda: vm.wait('xt')]
             + [lambda m=m: lg(f'ds_read_b64 a[{A_X + 2 * m}:{A_X + 2 * m + 1}], v{vXT} offset:{32 * m}') for m in range(5)]
             + [lambda m=m: lg(f'ds_read_b64 a[{A_DSK + 2 * m}:{A_DSK + 2 * m + 1}], v{vXT + 1} offset:{2560 + 32 * m}')
                for m in range(5)])
    marks_gather(S, vm, 1)
    S.add(1, lambda: srd(R_T0, P_OUT, 5242880))
    if OPT['tch']:
        S.add(OPT['tch'], retouch())
    if OPT['prefetch'] & 2:
        S.add(10, atom(code_touch()))
    pre, ld = agg_ld(0)
    S.spread(OPT['aggl'] - 2, 4, pre)
    for z in range(4):
        S.add(OPT['aggl'] + z // 2, lambda z=z: vm(ld[z], 'agg'))
    nu = OPT['nu']
    cv = Conv([(0, u, list(range(8)), CX) for u in range(nu)], lg)
    cv.emit(0, 36 * nu, S)
    assert not cv.todo and not S.left(), S.left()
    stamp('conv')
    def glue1(lg):
        for i, r in enumerate(YREG + G2REG):
            A(f'v_accvgpr_read_b32 v{r}, a{A_CV + 4 + i}')
        for j in range(4):
            lg(f'ds_read_b64 {v2(KVM + 2 * j)}, v{yKm} offset:{512 * (3 - j)}')
        lg(f'ds_read_b64 {v2(KVX)}, v{yKx}', 'kvm')

    def glue2():
        A(f's_bitcmp0_b32 s{sW}, 0')
        with A.skip_if('s_cbranch_scc1', lambda c: not c['w'] & 1):
            for i in range(16):
                A(f'v_swap_b32 v{CX + i}, v{CX + 16 + i}')

    def yflag(lg):
        A(f'''s_lshl_b32 s{sT[0]}, s{sC0}, 1
s_add_u32 s{sT[0]}, s{sT[0]}, {WS_FY}
v_mov_b32 v{vT[4]}, s{sTag}
s_and_b32 exec_lo, s{sPub}, 1
s_mov_b32 exec_hi, 0
buffer_store_dword v{vT[4]}, off, {W}, s{sT[0]} sc1
s_mov_b64 exec, -1''')
    fy = f'buffer_load_dwordx4 {v4(vFY)}, v{vL16}, {W}, s{sX[5]} offen sc1'
    extra = [lambda: c_load(vm)] * OPT['cs2']
    st = scan_2(0, vm, ld, {0: yflag, 4: glue1}, OPT['defer'], extra)
    assert not extra
    lt, lj = A.label('type'), A.label('join')
    A.cond[lt] = lambda c: c['ty']
    A(f's_bitcmp1_b32 s{sJ}, 0\ns_cbranch_scc1 {lt}')
    p0 = PREV[0]
    for ty in range(2):
        v, lg, S = copy.deepcopy(vm), LG(), Side()
        PREV[0], c_issued[0] = p0, 50 - OPT['cl2']
        o = 9 * (4 - nu)
        for j in range(OPT['defer'], 5):
            S.add((j - OPT['defer']) * OPT['stp'] // 2, lambda j=j: st(j, v))
        for i in range(OPT['cl2']):
            S.add(OPT['cl2s'] + i * (o + 8 - OPT['cl2s']) // OPT['cl2'], lambda: c_load(v))
        S.add(OPT['hfl'], lambda: h_flag(0, v))
        S.add(o + 1, glue2)
        for j in range(4):
            S.add(o + 2 + j, lambda j=j: lg(f'ds_write_b128 v{yPw}, {v4(CX + 16 + 4 * j)} offset:{1024 * j}'))
        S.add(o + 4, 's_barrier')
        S.add(o + OPT['yp0'], atom(f's_mov_b32 s{sX[5]}, {WS_FY}', lambda: v(fy, 'fy')))
        S.add(o + OPT['hp'], lambda: v(H_POLL, 'fh'))
        cv = Conv([(0, u, list(range(8)), CX) for u in range(nu, 4)] + [(1, u, JSET[ty], CY) for u in range(2)], lg, True)
        cv.emit(0, len(cv.seq), S)
        assert not S.left()
        if ty == 0:
            A(f's_branch {lj}\n{lt}:')
    A(f'{lj}:')
    stamp('conv2')
    PM, PS = 208, 224
    for x in range(4):
        A(f'ds_write_b128 v{ySw}, {v4(CY + 4 * x)} offset:{1024 * x}')
    for j in range(4):
        run(y_dterm(CX + 4 * j, KVM + 2 * j, sDm[0], sDm[1]))
    v.wait('fy')
    check_tags([vFY + i for i in range(4)], fy)
    g2 = G2(0, v)
    g2.begin()
    A('s_waitcnt lgkmcnt(0)\ns_barrier')
    for j in range(4):
        A(f'ds_read_b128 {v4(PM + 4 * j)}, v{yPr} offset:{1024 * j}')
    for x in range(4):
        A(f'ds_read_b128 {v4(PS + 4 * x)}, v{ySr} offset:{4096 * x}')
    it = ['s_waitcnt lgkmcnt(0)']
    for j in range(4):
        p = PM + 4 * j
        it += [f'v_add_f32 v{p + i}, v{CX + 4 * j + i}, v{p + i}' for i in range(4)]
        it += [f'v_cvt_pk_bf16_f32 v{p}, v{p}, v{p + 1}', f'v_cvt_pk_bf16_f32 v{p + 1}, v{p + 2}, v{p + 3}',
               lambda j=j, p=p: v(f'buffer_store_dwordx2 {v2(p)}, v{yS}, {W}, s{sYO[0]} offen offset:{512 * j} sc1')]
    it += y_dterm(PS, KVX, sDm[2], sDm[3])
    it += [f'v_add_f32 v{PS + 4 + i}, v{PS + 4 + i}, v{PS + 8 + i}' for i in range(4)]
    it += [f'v_add_f32 v{PS + i}, v{PS + i}, v{PS + 12 + i}' for i in range(4)]
    it += [f'v_add_f32 v{PS + i}, v{PS + i}, v{PS + 4 + i}' for i in range(4)]
    it += [f'v_cvt_pk_bf16_f32 v{PS}, v{PS}, v{PS + 1}', f'v_cvt_pk_bf16_f32 v{PS + 1}, v{PS + 2}, v{PS + 3}',
           lambda: v(f'buffer_store_dwordx2 {v2(PS)}, v{yS}, {W}, s{sYO[1]} offen sc1')]
    g2.ytail = it
    stamp('y_rd')
    return g2


YF, ZR = BF, BF + 20
P0, P1 = 192, 212
XT, DP, ZU, F1, F2 = 98, 100, 102, 88, 92
vHA, vYD, vYR = 244, 252, 253
G2REG = vU[2:5] + [vHA]
YP = 232


def g2_setup(layer):
    hb = HB[layer]
    A(f's_mul_i32 s{sT[1]}, s{sR64}, 163840\ns_mul_i32 s{sT[2]}, s{sW}, 10240\n'
      f's_add_u32 s{sT[1]}, s{sT[1]}, s{sT[2]}\ns_add_u32 s{sT[1]}, s{sT[1]}, {hb}')
    for z in range(4):
        A(f's_add_u32 s{sT[2]}, s{sW}, {z + 1}\ns_and_b32 s{sT[2]}, s{sT[2]}, 3\n'
          f's_mul_i32 s{sT[3]}, s{sT[2]}, 40960\ns_add_u32 s{sDS[z]}, s{sT[3]}, s{sT[1]}')
        if z < 2:
            A(f's_mul_i32 s{sT[3]}, s{sT[2]}, 10240\ns_add_u32 s{sT[3]}, s{sT[3]}, {L_RED + z * 5120}\n'
              f'v_add_u32 v{vU[2 + z]}, s{sT[3]}, v{vL16}')
        if z == 2:
            A(f's_mul_i32 s{sT[3]}, s{sT[2]}, 5120\nv_add_u32 v{vU[2 + z]}, s{sT[3]}, v{vL16}')
    A(f'''s_lshl_b32 s{sZ[3]}, s{sR128}, 10
s_lshl_b32 s{sT[1]}, s{sW}, 6
s_add_u32 s{sZ[3]}, s{sZ[3]}, s{sT[1]}
s_and_b32 s{sT[1]}, s{sR64}, 1
s_lshl_b32 s{sT[1]}, s{sT[1]}, 3
s_add_u32 s{sZ[3]}, s{sZ[3]}, s{sT[1]}
s_add_u32 s{sZ[3]}, s{sZ[3]}, {WS_FH + layer * 256}
v_and_b32 v{vHA}, 3, v{vL}
v_lshlrev_b32 v{vHA}, 4, v{vHA}''')


def z_addr():
    t = vT
    A(f'''s_lshl_b32 s{sT[0]}, s{sR64}, 6
s_lshr_b32 s{sT[1]}, s{sW}, 1
s_lshl_b32 s{sT[1]}, s{sT[1]}, 5
s_add_u32 s{sT[0]}, s{sT[0]}, s{sT[1]}
s_and_b32 s{sT[1]}, s{sW}, 1
s_lshl_b32 s{sT[1]}, s{sT[1]}, 2
s_add_u32 s{sT[0]}, s{sT[0]}, s{sT[1]}
s_mul_i32 s{sZ[0]}, s{sT[0]}, 1280
s_mul_i32 s{sT[1]}, s{sS8}, 160
s_add_u32 s{sZ[0]}, s{sZ[0]}, s{sT[1]}
s_lshl_b32 s{sZ[2]}, s{sW}, 12
s_add_u32 s{sZ[2]}, s{sZ[2]}, {L_PS}''')
    for z in range(3):
        A(f'''v_add_u32 v{t[0]}, {64 * z}, v{vL}
v_mul_u32_u24 v{t[1]}, 205, v{t[0]}
v_lshrrev_b32 v{t[1]}, 11, v{t[1]}
v_lshrrev_b32 v{t[2]}, 2, v{t[1]}
v_mul_u32_u24 v{t[1]}, 1120, v{t[1]}
v_mul_u32_u24 v{t[2]}, 5120, v{t[2]}
v_lshlrev_b32 v{t[0]}, 4, v{t[0]}
v_add3_u32 v{vZ + z}, v{t[0]}, v{t[1]}, v{t[2]}''')
    A(f'''s_and_b32 s{sT[0]}, s{sR64}, 1
s_lshl_b32 s{sT[0]}, s{sT[0]}, 2
s_add_u32 s{sT[0]}, s{sT[0]}, s{sW}
s_lshr_b32 s{sT[1]}, s{sT[0]}, 1
s_lshl_b32 s{sT[1]}, s{sT[1]}, 8
s_and_b32 s{sT[0]}, s{sT[0]}, 1
s_lshl_b32 s{sT[0]}, s{sT[0]}, 5
s_add_u32 s{sT[0]}, s{sT[0]}, s{sT[1]}
s_add_u32 s{sT[0]}, s{sT[0]}, {L_RS}
v_lshrrev_b32 v{t[1]}, 2, v{vI}
v_lshlrev_b32 v{t[1]}, 6, v{t[1]}
v_and_b32 v{t[2]}, 3, v{vI}
v_lshl_add_u32 v{t[1]}, v{t[2]}, 3, v{t[1]}
v_add_u32 v{vZ + 3}, s{sT[0]}, v{t[1]}
v_and_b32 v{t[2]}, 7, v{vI}
v_lshlrev_b32 v{t[2]}, 3, v{t[2]}
v_lshl_add_u32 v{t[2]}, v{vQ}, 6, v{t[2]}
s_lshl_b32 s{sT[0]}, s{sW}, 8
s_add_u32 s{sT[0]}, s{sT[0]}, {L_RS}
v_add_u32 v{vZ + 4}, s{sT[0]}, v{t[2]}
v_lshl_add_u32 v{vXT + 1}, v{vQ}, 3, s{sZ[2]}
v_mul_u32_u24 v{vXT}, 160, v{vI}
v_lshl_add_u32 v{vXT}, v{vQ}, 3, v{vXT}
v_add_u32 v{vXT}, s{sZ[2]}, v{vXT}''')


def z_loads(vm):
    it = []
    for z in range(3):
        it.append(atom(f's_add_u32 m0, s{sZ[2]}, {1024 * z}', 's_mov_b32 exec_hi, 0' if z == 2 else [],
                       lambda z=z: vm(f'buffer_load_dwordx4 v{vZ + z}, {s4(R_X)}, s{sZ[0]} offen lds', 'xt'),
                       's_mov_b32 exec_hi, -1' if z == 2 else []))
    it.append(atom(lambda: srd(R_T1, P_DSK, 1280), f's_add_u32 m0, s{sZ[2]}, 2560', f's_mul_i32 s{sT[0]}, s{sS8}, 160',
                   's_mov_b64 exec, 0x3ff',
                   lambda: vm(f'buffer_load_dwordx4 v{vL16}, {s4(R_T1)}, s{sT[0]} offen lds', 'xt'), 's_mov_b64 exec, -1'))
    return it


def z_work():
    b = [f'v_accvgpr_read_b32 v{ZU}, a{A_ZU}', f'v_accvgpr_read_b32 v{ZU + 1}, a{A_ZU + 1}', f'v_mul_f32 v{ZU}, v{ZU}, v{ZU + 1}']
    for m in range(5):
        for i in range(2):
            b += [f'v_accvgpr_read_b32 v{XT + i}, a{A_X + 2 * m + i}', f'v_accvgpr_read_b32 v{DP + i}, a{A_DSK + 2 * m + i}']
        b += unpack(ZR + 4 * m, XT, 2) + unpack(F2, DP, 2)
        for i in range(4):
            b.append(f'v_fma_f32 v{F1 + i}, v{ZR + 4 * m + i}, v{ZU + 1}, -v{ZU}')
        for i in range(4):
            b.append(f'v_fmac_f32 v{ZR + 4 * m + i}, v{F1 + i}, v{F2 + i}')
    return b


H_POLL = f'buffer_load_dwordx2 {v2(vU[0])}, v{vHA}, {W}, s{sZ[3]} offen sc1'


class G2:
    def __init__(self, layer, vm):
        self.layer, self.vm, self.nxt = layer, vm, 0

    def ld(self):
        f = self.nxt
        self.nxt += 1
        z, k = divmod(f, 10)
        if k and k % 4 == 0:
            A(f's_add_u32 s{sDS[z]}, s{sDS[z]}, 4096')
        self.vm(f'buffer_load_dwordx4 {v4(RING + 4 * (f % NR))}, v{vL16}, {WH}, s{sDS[z]} offen '
                f'offset:{(k % 4) * 1024} sc1', ('h', f))

    def begin(self):
        if self.layer == 0:
            self.vm.wait('fh')
        check_tags([vU[0], vU[1]], H_POLL, inline=2 - self.layer)
        self.vm.done = self.vm.n if self.layer else self.vm.done
        stamp(f'h_ready_{self.layer}')
        for f in range(OPT['n0'] if self.layer else OPT['n00']):
            self.ld()


def gemm2(g2):
    layer, vm, ld = g2.layer, g2.vm, g2.ld
    side, lg = Side(), LG()
    n0 = g2.nxt
    last = 0
    for f in range(n0, 40):
        last = max(f - n0, f - NR + 1)
        side.add(last, ld)
    last += 1
    hooks = []
    ze = late = 0
    if layer == 0:
        e = side.spread(OPT['ys'], OPT['yper'], g2.ytail)
        side.add(e, 's_barrier')
        assert e < 11
        late = OPT['zlate']
        zw = z_work()
        if late:
            n = (OPT['rb'] - e) * OPT['zper']
            side.spread(e, OPT['zper'], zw[:n])
            assert side.spread(30, OPT['zper'] + 1, zw[n:]) <= 40
        else:
            ze = side.spread(e, OPT['zper'], zw)
            assert ze <= OPT['rb'] - 4 * OPT['r3'], ze
        side.add(OPT['yp'] + 1, f'''s_mul_i32 s{sX[6]}, s{sS8}, 327680
s_lshl_b32 s{sT[0]}, s{sR64}, 7
s_add_u32 s{sX[6]}, s{sX[6]}, s{sT[0]}
s_lshr_b32 s{sT[0]}, s{sW}, 1
s_mul_i32 s{sX[7]}, s{sT[0]}, 5120
s_add_u32 s{sX[7]}, s{sX[7]}, {L_Y}
s_lshl_b32 s{sT[0]}, s{sT[0]}, 6
s_add_u32 s{sX[6]}, s{sX[6]}, s{sT[0]}
s_add_u32 s{sX[6]}, s{sX[6]}, {WS_Y}
s_mov_b32 s{sX[5]}, s{sX[6]}''')
        side.add(OPT['yp'] + 2, f'''s_and_b32 s{sT[0]}, s{sW}, 1
s_mul_i32 s{sT[1]}, s{sT[0]}, {3 * 65536}
s_add_u32 s{sX[6]}, s{sX[6]}, s{sT[1]}
s_mul_i32 s{sT[1]}, s{sT[0]}, 3072
s_add_u32 s{sX[8]}, s{sX[7]}, s{sT[1]}
s_lshl_b32 s{sT[0]}, s{sT[0]}, 3
s_add_u32 s{sX[7]}, s{sX[7]}, s{sT[0]}
v_lshrrev_b32 v{vYD}, 2, v{vL}
v_lshlrev_b32 v{vYD}, 12, v{vYD}
v_and_b32 v{vT[1]}, 3, v{vL}
v_lshl_add_u32 v{vYD}, v{vT[1]}, 4, v{vYD}''')

        def ydma(m):
            A(f's_add_u32 m0, s{sX[8]}, {m * 1024}')
            if m == 2:
                A(f's_bitcmp1_b32 s{sW}, 0\ns_cselect_b32 s{sX[6]}, {OOB}, s{sX[6]}\ns_cselect_b32 m0, {LDS_SIZE}, m0')
            vm(f'buffer_load_dwordx4 v{vYD}, {W}, s{sX[6]} offen sc1 lds', 'yd')
            A(f's_add_u32 s{sX[6]}, s{sX[6]}, 65536')
        side.add(last, *[lambda m=m: ydma(m) for m in range(3)])
        side.add(last + 1, f'v_add_u32 v{vYR}, s{sX[7]}, v{vL16}')
    else:
        side.spread(1, 3, [f'v_accvgpr_read_b32 v{ZR + i}, a{A_Z + i}' for i in range(20)] + unpack(YF, YP, 10))
        if OPT['wb'] & 2:
            side.add(OPT['wbs'] or last + 1, wbl2)
    rd = lambda p, a, off, nm: [lambda i=i: lg(f'ds_read_b128 {v4(p + 4 * i)}, v{a} offset:{off + 1024 * i}', nm) for i in range(5)]
    add = lambda d, s: [f'v_add_f32 v{d + i}, v{d + i}, v{s + i}' for i in range(20)]
    side.add(OPT['ra'] - 1, f's_mul_i32 s{sT[3]}, s{sW}, 10240\ns_add_u32 s{sT[3]}, s{sT[3]}, {L_RED}\n'
                            f'v_add_u32 v{vU[5]}, s{sT[3]}, v{vL16}')
    bar = lambda: (lg.wait('pw'), A('s_barrier'))
    wp = OPT['wper']
    for z in range(3):
        pa = ACC + 20 * (z & 1)
        for m in range(5):
            side.q.setdefault(10 * z + 11 + m // wp, []).insert(
                m % wp, lambda z=z, m=m, pa=pa: lg(f'ds_write_b128 v{vU[2 + z]}, {v4(pa + 4 * m)} offset:{1024 * m}', 'pw'))
    if OPT['r3']:
        e = side.spread(OPT['ra'], 5, [bar] + rd(P0, vU[5], 0, 'p0'))
        side.spread(max(e, ze), 5, [lambda: lg.wait('p0')] + add(ZR, P0))
        e = side.spread(OPT['rb'], OPT['rper'], [bar] + rd(P1, vU[5], 5120, 'p1') + [lambda: lg.wait('p1')] + add(ZR, P1))
    else:
        e = side.spread(OPT['rb'], OPT['rper'], [bar] + rd(P0, vU[5], 0, 'p0') + rd(P1, vU[5], 5120, 'p1') + [lambda: lg.wait('p0')]
                        + (add(ZR, P0) + [lambda: lg.wait('p1')] + add(ZR, P1) if not late else
                           [lambda: lg.wait('p1')] + add(P1, P0)))
    assert e <= 30, e
    side.add(OPT['rc'] - 1, f's_mul_i32 s{sT[3]}, s{sW}, 5120\nv_add_u32 v{vU[5]}, s{sT[3]}, v{vL16}')
    side.spread(OPT['rc'], 6, [atom(lambda: vm.wait(('h', 39)), bar) if layer else bar] + rd(P0, vU[5], 0, 'p2'))
    for z in range(4):
        if OPT['stamps'] < 3:
            stamp(f'.z{z}_{layer}', 2)
        acc = ACC + 20 * (z & 1)
        for k in range(10):
            f = 10 * z + k
            vm.wait(('h', f))
            for h in list(hooks):
                if vm.t[h[0]] <= vm.done:
                    hooks.remove(h)
                    h[1]()
            for m in range(5):
                d = acc + 4 * m
                c = v4(d) if k else ('0' if z < 3 else v4((P1 if late else ZR) + 4 * m))
                A(f'v_mfma_f32_16x16x32_bf16 {v4(d)}, {a4(4 * (5 * k + m))}, {v4(RING + 4 * (f % NR))}, {c}')
                side.run(f, 5 - m)
    assert not side.left() and not hooks
    stamp(f'g2_{layer}')
    return lg


def allreduce_q(r, t):
    for op in ('v_permlane32_swap_b32', 'v_permlane16_swap_b32'):
        A(f'''v_mov_b32 v{t}, v{r}
v_mov_b32 v{t + 1}, v{r + 1}
{op} v{r}, v{t}
{op} v{r + 1}, v{t + 1}
v_add_f32 v{r}, v{r}, v{t}
v_add_f32 v{r + 1}, v{r + 1}, v{t + 1}''')


def epilogue(layer, vm, lg):
    a = ACC + 20
    S = 212
    G = 228
    inv = 0x3acccccd
    A(f'''s_lshl_b32 s{sT[0]}, s{sR64}, 15
s_lshl_b32 s{sT[1]}, s{sW}, {9 - layer}
s_add_u32 s{sT[0]}, s{sT[0]}, s{sT[1]}
s_add_u32 s{sT[0]}, s{sT[0]}, {WS_ST + layer * 2048}
s_lshl_b32 s{sT[1]}, s{sS8}, 12
s_add_u32 s{sT[1]}, s{sT[1]}, s{sT[0]}''')
    lg.wait('p2')
    if layer == 0:
        vm.wait('yd')
        A('s_barrier')
        stamp('y_in')
        lg = LG()
        yrd = [f'ds_read_b64_tr_b16 {v2(YP + 2 * m)}, v{vYR} offset:{m * 1024}' for m in range(5)]
        for m in range(5):
            lg(yrd[m], ('y', m))
        A(unpark('bd', 244) + '\n' + unpark('bd2', 245))
    for i in range(10 * (layer == 0 and OPT['zlate'])):
        A(f'v_pk_add_f32 {v2(P0 + 2 * i)}, {v2(P0 + 2 * i)}, {v2(ZR + 2 * i)}')
    for i in range(10):
        A(f'v_pk_add_f32 {v2(a + 2 * i)}, {v2(a + 2 * i)}, {v2(P0 + 2 * i)}')
    A(f'v_pk_add_f32 {v2(S)}, {v2(a)}, {v2(a + 2)}\nv_pk_mul_f32 {v2(S + 2)}, {v2(a)}, {v2(a)}')
    for i in range(1, 10):
        if i >= 2:
            A(f'v_pk_add_f32 {v2(S)}, {v2(S)}, {v2(a + 2 * i)}')
        A(f'v_pk_fma_f32 {v2(S + 2)}, {v2(a + 2 * i)}, {v2(a + 2 * i)}, {v2(S + 2)}')
    if layer == 0:
        AY = 160
        lg.wait(('y', 4))
        x = vT[4]
        chk = [f'v_pk_max_u16 v{x}, v{YP}, v{YP + 1}'] + [f'v_pk_max_u16 v{x}, v{x}, v{YP + i}' for i in range(2, 10)]
        chk += [f'v_lshlrev_b32 v{vT[3]}, 16, v{x}', f'v_max_u32 v{x}, v{x}, v{vT[3]}', f'v_cmp_le_u32 vcc, 0xffff0000, v{x}']
        lab, done = A.label('again'), A.label('ok')
        A.cond[lab] = lambda c: False
        A('\n'.join(chk) + f'\ns_cbranch_vccnz {lab}\n{done}:')
        slow = [f'{lab}:', f's_sub_u32 s{sBud}, s{sBud}, 1', f's_cmp_gt_i32 s{sBud}, 0', f's_cbranch_scc0 {done}',
                f's_mul_i32 s{sX[8]}, s{sW}, 10240', f's_add_u32 s{sX[8]}, s{sX[8]}, {L_RED + 5120}',
                f's_and_b32 s{sX[6]}, s{sW}, 1', f's_lshl_b32 s{sX[6]}, s{sX[6]}, 3', f's_add_u32 s{sX[6]}, s{sX[6]}, s{sX[8]}',
                f'v_add_u32 v{vYR}, s{sX[6]}, v{vL16}']
        for m in range(5):
            slow += [f's_add_u32 m0, s{sX[8]}, {m * 1024}', f's_add_u32 s{sX[6]}, s{sX[5]}, {m * 65536}',
                     f'buffer_load_dwordx4 v{vYD}, {W}, s{sX[6]} offen sc1 lds']
        TAIL.append('\n'.join(slow + ['s_waitcnt vmcnt(0)'] + yrd + ['s_waitcnt lgkmcnt(0)'] + chk
                              + [f's_cbranch_vccnz {lab}', f's_branch {done}']))
        stamp('y_ok')
        for m in range(5):
            lg.wait(('y', m))
            A('\n'.join(unpack(YF + 4 * m, YP + 2 * m, 2)))
            if m in (0, 2, 4):
                b_dma(vm, 0, m, 244, 245)
            for i in (2 * m, 2 * m + 1):
                x, y, ay = v2(a + 2 * i), v2(YF + 2 * i), v2(AY + 2 * i)
                A(f'v_pk_mul_f32 {ay}, {x}, {y}')
                if i == 0:
                    A(f'v_pk_mul_f32 {v2(S + 14)}, {y}, {y}\nv_pk_mul_f32 {v2(S + 6)}, {ay}, {x}\n'
                      f'v_pk_mul_f32 {v2(S + 8)}, {ay}, {ay}\nv_pk_mul_f32 {v2(S + 10)}, {ay}, {y}')
                else:
                    p2 = v2(AY) if i == 1 else v2(S + 4)
                    p6 = v2(YF) if i == 1 else v2(S + 12)
                    A(f'v_pk_add_f32 {v2(S + 12)}, {p6}, {y}\nv_pk_fma_f32 {v2(S + 14)}, {y}, {y}, {v2(S + 14)}\n'
                      f'v_pk_add_f32 {v2(S + 4)}, {p2}, {ay}\nv_pk_fma_f32 {v2(S + 6)}, {ay}, {x}, {v2(S + 6)}\n'
                      f'v_pk_fma_f32 {v2(S + 8)}, {ay}, {ay}, {v2(S + 8)}\n'
                      f'v_pk_fma_f32 {v2(S + 10)}, {ay}, {y}, {v2(S + 10)}')
        for k in range(8):
            A(f'v_add_f32 v{S + 2 * k}, v{S + 2 * k}, v{S + 2 * k + 1}')
        for k in range(4):
            A(f'v_permlane16_swap_b32 v{S + 2 * k}, v{S + 2 * k + 8}')
        for k in range(4):
            A(f'v_add_f32 v{G + k}, v{S + 2 * k}, v{S + 2 * k + 8}')
        for k in range(4):
            A(f'v_mov_b32 v{S + k}, v{G + k}')
        for k in range(4):
            A(f'v_permlane32_swap_b32 v{G + k}, v{S + k}')
        A(f's_movk_i32 s{sT[2]}, 0xff')
        for k in range(4):
            A(f'v_add_f32 v{G + k}, v{G + k}, v{S + k}')
        for k in range(4):
            A(f's_lshr_b32 s{sT[3]}, s{sTag}, {8 * k}\nv_mov_b32 v{S + k}, s{sT[3]}\n'
              f'v_bfi_b32 v{G + k}, s{sT[2]}, v{S + k}, v{G + k}')
        A('s_mov_b32 exec_hi, 0')
        mode_stores([f'buffer_store_dwordx4 {v4(G)}, v{vL16}, {W}, s{sT[1]} offen'], through=OPT['thr'] & 16)
        A('s_mov_b32 exec_hi, -1')
        stamp('st_pub_0')
        if OPT['prefetch'] & 4:
            run(code_touch())
        for i in range(10):
            A(f'v_accvgpr_write_b32 a{A_Y + i}, v{YP + i}')
        A(f'''v_lshrrev_b32 v{vT[0]}, 2, v{vI}
v_mul_u32_u24 v{vT[0]}, 5120, v{vT[0]}
v_and_b32 v{vT[1]}, 3, v{vI}
v_lshl_add_u32 v{vT[0]}, v{vT[1]}, 4, v{vT[0]}
v_lshrrev_b32 v{vT[1]}, 1, v{vQ}
v_lshl_add_u32 v{vT[0]}, v{vT[1]}, 6, v{vT[0]}
v_and_b32 v{vT[1]}, 1, v{vQ}
v_lshl_add_u32 v{vU[5]}, v{vT[1]}, 3, v{vT[0]}
s_lshl_b32 s{sX[1]}, s{sR64}, 2
s_add_u32 s{sX[1]}, s{sX[1]}, s{sW}
s_mul_i32 s{sX[1]}, s{sX[1]}, 20480
s_mul_i32 s{sT[2]}, s{sS8}, 640
s_add_u32 s{sX[1]}, s{sX[1]}, s{sT[2]}
s_add_u32 s{sX[1]}, s{sX[1]}, {WS_U2}''')
        DPk, DF = 190, 108
        for i in range(10):
            A(f'v_accvgpr_read_b32 v{DPk + i}, a{A_DSK + i}')
        A('\n'.join(unpack(DF, DPk, 10)))
        A(f'''s_lshl_b32 s{sX[0]}, s{sR128}, 10
s_lshr_b32 s{sT[1]}, s{sW}, 1
s_lshl_b32 s{sT[1]}, s{sT[1]}, 7
s_add_u32 s{sX[0]}, s{sX[0]}, s{sT[1]}
s_and_b32 s{sT[1]}, s{sW}, 1
s_lshl_b32 s{sT[1]}, s{sT[1]}, 3
s_add_u32 s{sX[0]}, s{sX[0]}, s{sT[1]}
s_add_u32 s{sX[0]}, s{sX[0]}, {WS_FU}
v_and_b32 v{vU[4]}, 7, v{vL}
v_lshlrev_b32 v{vU[4]}, 4, v{vU[4]}
s_add_u32 s{sL[0]}, s{sXs}, {WS_U2}
s_add_u32 s{sL[1]}, s{sL[0]}, 20480
s_lshl_b32 s{sEpW}, s{sR64}, 5
s_lshl_b32 s{sT[1]}, s{sS8}, 2
s_add_u32 s{sEpW}, s{sEpW}, s{sT[1]}
s_add_u32 s{sEpW}, s{sEpW}, s{sW}''')
        A(f'''v_and_b32 v{vT[0]}, 31, v{vL}
v_lshlrev_b32 v{vT[0]}, 4, v{vT[0]}
v_lshrrev_b32 v{vT[1]}, 5, v{vL}
v_lshl_add_u32 v{vT[0]}, v{vT[1]}, 14, v{vT[0]}
s_mov_b32 s{sT[2]}, 0x0c0c0400
s_mov_b32 s{sT[3]}, 0x04000c0c
s_add_u32 s{sX[2]}, s{sT[0]}, 4096
s_add_u32 s{sX[3]}, s{sT[0]}, 8192
s_add_u32 s{sX[4]}, s{sT[0]}, 12288''')
        back = A.label('stpoll')
        A(f'{back}:')
        Q = 128
        for sl, so in enumerate((sT[0], sX[2], sX[3], sX[4])):
            A(f'buffer_load_dwordx4 {v4(Q + 4 * sl)}, v{vT[0]}, {W}, s{so} offen sc1')
        A('s_waitcnt vmcnt(0)')
        for sl in range(4):
            q = Q + 4 * sl
            A(f'v_perm_b32 v{S + 2 * sl}, v{q + 1}, v{q}, s{sT[2]}\nv_perm_b32 v{S + 2 * sl + 1}, v{q + 3}, v{q + 2}, s{sT[3]}')
        for sl in range(4):
            A(f'v_or_b32 v{S + 2 * sl}, v{S + 2 * sl}, v{S + 2 * sl + 1}')
        lo, hi = vT[2], vT[3]
        A(f'''v_min3_u32 v{lo}, v{S}, v{S + 2}, s{sTag}
v_max3_u32 v{hi}, v{S}, v{S + 2}, s{sTag}
v_min3_u32 v{lo}, v{lo}, v{S + 4}, v{S + 6}
v_max3_u32 v{hi}, v{hi}, v{S + 4}, v{S + 6}
v_cmp_ne_u32 vcc, v{lo}, v{hi}''')
        retry(back)
        stamp('st_in_0')
        for hf in (0, 2):
            A(f'v_pk_add_f32 {v2(Q + hf)}, {v2(Q + hf)}, {v2(Q + 4 + hf)}\n'
              f'v_pk_add_f32 {v2(Q + 8 + hf)}, {v2(Q + 8 + hf)}, {v2(Q + 12 + hf)}')
        for hf in (0, 2):
            A(f'v_pk_add_f32 {v2(Q + hf)}, {v2(Q + hf)}, {v2(Q + 8 + hf)}')
        s = lambda k: S + k
        for k in range(4):
            A(f'v_mov_b32 v{Q + 4 + k}, v{Q + k}')
        for k in range(4):
            A(f'v_permlane32_swap_b32 v{Q + k}, v{Q + 4 + k}')
        for k in range(4):
            A(f'v_add_f32 v{s(k)}, v{Q + k}, v{Q + 4 + k}')
        for k in range(4):
            A(f'v_mov_b32 v{s(4 + k)}, v{s(k)}')
        for k in range(4):
            A(f'v_permlane16_swap_b32 v{s(k)}, v{s(4 + k)}')
        m1, r1, k1, t0, t1, r2, k2 = 200, 202, 203, 204, 205, 206, 207
        A(f'''v_mul_f32 v{m1}, {inv:#x}, v{s(0)}
v_mul_f32 v{t0}, {inv:#x}, v{s(1)}
v_fma_f32 v{t0}, -v{m1}, v{m1}, v{t0}
v_max_f32 v{t0}, 0, v{t0}
v_add_f32 v{t0}, 0x3727c5ac, v{t0}
v_rsq_f32 v{r1}, v{t0}
v_mul_f32 v{k1}, v{m1}, v{r1}
v_fma_f32 v{t0}, v{r1}, v{s(2)}, v{s(0)}
v_fma_f32 v{t0}, -v{k1}, v{s(6)}, v{t0}
v_mul_f32 v{t1}, v{r1}, v{s(4)}
v_fma_f32 v{t1}, 2.0, v{s(3)}, v{t1}
v_fma_f32 v{t1}, v{r1}, v{t1}, v{s(1)}
v_fma_f32 v{s(2)}, v{r1}, v{s(5)}, v{s(2)}
v_mul_f32 v{s(7)}, v{k1}, v{s(7)}
v_fma_f32 v{s(2)}, -2.0, v{s(2)}, v{s(7)}
v_fma_f32 v{t1}, v{k1}, v{s(2)}, v{t1}
v_mul_f32 v{t0}, {inv:#x}, v{t0}
v_mul_f32 v{t1}, {inv:#x}, v{t1}
v_fma_f32 v{t1}, -v{t0}, v{t0}, v{t1}
v_max_f32 v{t1}, 0, v{t1}
v_add_f32 v{t1}, 0x3727c5ac, v{t1}
v_rsq_f32 v{r2}, v{t1}
v_mul_f32 v{k2}, v{t0}, v{r2}''')
        bc = 'op_sel:[0,0,1] op_sel_hi:[1,0,1] neg_lo:[0,0,1] neg_hi:[0,0,1]'
        U, UP = 160, 180
        for i in range(10):
            A(f'v_pk_fma_f32 {v2(U + 2 * i)}, {v2(a + 2 * i)}, {v2(r1)}, {v2(r1)} {bc}')
        for i in range(10):
            A(f'v_pk_fma_f32 {v2(a + 2 * i)}, {v2(U + 2 * i)}, {v2(YF + 2 * i)}, {v2(a + 2 * i)}')
        for i in range(10):
            A(f'v_pk_fma_f32 {v2(U + 2 * i)}, {v2(a + 2 * i)}, {v2(r2)}, {v2(r2)} {bc}')
        for i in range(10):
            A(f'v_cvt_pk_bf16_f32 v{UP + i}, v{U + 2 * i}, v{U + 2 * i + 1}')
        mode_stores([f'buffer_store_dwordx2 {v2(UP + 2 * m)}, v{vU[5]}, {W}, s{sX[1]} offen offset:{128 * m}'
                     for m in range(5)], through=OPT['thr'] & 8)
        stamp('u2_st')
        for i in range(10):
            A(f'v_pk_fma_f32 {v2(a + 2 * i)}, {v2(U + 2 * i)}, {v2(DF + 2 * i)}, {v2(a + 2 * i)}')
        for i in range(20):
            A(f'v_accvgpr_write_b32 a{A_Z + i}, v{a + i}')
        A(f's_add_u32 s{sT[1]}, s{sFW}, {WS_FU}\ns_waitcnt vmcnt(0)')
        flag_store(f's{sT[1]}', True)
        A(f's_cmp_lg_u32 s{sEpW}, {31 * 32}')
        with A.skip_if('s_cbranch_scc1', lambda c: True):
            flag_store('0', False)
        fl = f'buffer_load_dwordx2 {v2(vU[0])}, v{vU[4]}, {W}, s{sX[0]} offen sc1'
        check_tags([vU[0], vU[1]], fl, inline=1)
        stamp('u2_ready')
    else:
        A(f'v_add_f32 v{G}, v{S}, v{S + 1}\nv_add_f32 v{G + 1}, v{S + 2}, v{S + 3}\nv_mov_b32 v{G + 2}, s{sTag}\n'
          f'v_mov_b32 v{G + 3}, s{sTag}')
        allreduce_q(G, S)
        A('s_mov_b64 exec, 0xffff')
        mode_stores([f'buffer_store_dwordx4 {v4(G)}, v{vL16}, {W}, s{sT[1]} offen'], through=OPT['thr'] & 16)
        A('s_mov_b64 exec, -1')
        stamp('st_pub_1')
        if OPT['wb'] & 64:
            wbl2()
        lg = LG()
        X3, Y3 = 160, YF
        A(f'''s_mul_i32 s{sT[2]}, s{sW}, 10240
s_add_u32 s{sT[2]}, s{sT[2]}, {L_RED}
v_lshrrev_b32 v{vT[1]}, 1, v{vI}
v_xor_b32 v{vT[1]}, v{vT[1]}, v{vQ}
v_and_b32 v{vT[1]}, 3, v{vT[1]}
v_lshlrev_b32 v{vT[1]}, 4, v{vT[1]}
v_lshl_add_u32 v{vT[1]}, v{vI}, 6, v{vT[1]}
v_add_u32 v{vU[2]}, s{sT[2]}, v{vT[1]}''')
        for m in range(5):
            lg(f'ds_write_b128 v{vU[2]}, {v4(a + 4 * m)} offset:{1024 * m}')
        A(f'''v_lshrrev_b32 v{vT[1]}, 3, v{vL}
v_xor_b32 v{vT[1]}, v{vT[1]}, v{vL}
v_and_b32 v{vT[1]}, 3, v{vT[1]}
v_lshlrev_b32 v{vT[1]}, 4, v{vT[1]}
v_lshrrev_b32 v{vT[2]}, 2, v{vL}
v_lshl_add_u32 v{vT[1]}, v{vT[2]}, 6, v{vT[1]}
v_add_u32 v{vU[3]}, s{sT[2]}, v{vT[1]}''')
        for m in range(5):
            lg(f'ds_read_b128 {v4(X3 + 4 * m)}, v{vU[3]} offset:{1024 * m}')
        A(f'''v_and_b32 v{vT[3]}, 3, v{vL}
v_lshlrev_b32 v{vT[0]}, 13, v{vT[3]}
v_lshl_add_u32 v{vT[0]}, v{vT[2]}, 4, v{vT[0]}
s_add_u32 s{sT[1]}, s{sT[0]}, 4096
v_lshrrev_b32 v{vT[1]}, 2, v{vT[2]}
v_lshl_add_u32 v{vT[1]}, v{vT[1]}, 2, v{vT[2]}
v_mul_u32_u24 v{vT[1]}, 2560, v{vT[1]}
v_lshl_add_u32 v{vU[4]}, v{vT[3]}, 4, v{vT[1]}
s_lshl_b32 s{sT[3]}, s{sR64}, 6
s_lshr_b32 s{sX[1]}, s{sW}, 1
s_lshl_b32 s{sX[1]}, s{sX[1]}, 5
s_add_u32 s{sT[3]}, s{sT[3]}, s{sX[1]}
s_and_b32 s{sX[1]}, s{sW}, 1
s_lshl_b32 s{sX[1]}, s{sX[1]}, 2
s_add_u32 s{sT[3]}, s{sT[3]}, s{sX[1]}
s_mul_i32 s{sT[3]}, s{sT[3]}, 2560
s_mul_i32 s{sX[1]}, s{sS8}, 320
s_add_u32 s{sT[3]}, s{sT[3]}, s{sX[1]}''')
        Q = 128
        ld = [f'buffer_load_dwordx3 {v3(Q)}, v{vT[0]}, {W}, s{sT[0]} offen sc1',
              f'buffer_load_dwordx3 {v3(Q + 4)}, v{vT[0]}, {W}, s{sT[1]} offen sc1']
        check_tags([Q + 2, Q + 6], ld, inline=1)
        A('s_waitcnt lgkmcnt(0)')
        stamp('st_in_1')
        if OPT['wb'] & 32:
            wbl2()
        A(f'v_pk_add_f32 {v2(Q)}, {v2(Q)}, {v2(Q + 4)}')
        for mod in ('quad_perm:[1,0,3,2]', 'quad_perm:[2,3,0,1]'):
            A(f'v_add_f32_dpp v{Q}, v{Q}, v{Q} {mod} {DPPM}\nv_add_f32_dpp v{Q + 1}, v{Q + 1}, v{Q + 1} {mod} {DPPM}')
        r1, t0 = 200, 202
        A(f'''v_mul_f32 v{Q}, {inv:#x}, v{Q}
v_mul_f32 v{t0}, {inv:#x}, v{Q + 1}
v_fma_f32 v{t0}, -v{Q}, v{Q}, v{t0}
v_max_f32 v{t0}, 0, v{t0}
v_add_f32 v{t0}, 0x3727c5ac, v{t0}
v_rsq_f32 v{r1}, v{t0}
v_mul_f32 v{r1 + 1}, v{Q}, v{r1}''')
        bc = 'op_sel:[0,0,1] op_sel_hi:[1,0,1] neg_lo:[0,0,1] neg_hi:[0,0,1]'
        U = 132
        for m in range(5):
            u = U + 4 * (m & 1)
            for hf in range(2):
                A(f'v_pk_fma_f32 {v2(u + 2 * hf)}, {v2(X3 + 4 * m + 2 * hf)}, {v2(r1)}, {v2(r1)} {bc}')
            for hf in range(2):
                i = 4 * m + 2 * hf
                A(f'v_pk_fma_f32 {v2(X3 + i)}, {v2(u + 2 * hf)}, {v2(Y3 + i)}, {v2(X3 + i)}')
            line = f'buffer_store_dwordx4 {v4(X3 + 4 * m)}, v{vU[4]}, {s4(R_T0)}, s{sT[3]} offen offset:{64 * m}'
            if HO and OPT['om'] in (0, 3):
                mode_stores([line + ['', ' nt'][OPT['om'] == 3]])
            else:
                A(line + ['', ' sc1', ' sc1 nt', ' nt', ' sc0 sc1'][OPT['om']])
        if OPT['wb'] & 16:
            wbl2()
        stamp('out_st')


def retry(back):
    lab, done = A.label('retry'), A.label('giveup')
    A.cond[lab] = lambda c: False
    if OPT['inl']:
        A.cond[back] = A.cond[done] = lambda c: False
        A(f's_sub_u32 s{sBud}, s{sBud}, 1\ns_cmp_gt_i32 s{sBud}, 0\ns_cbranch_scc0 {done}\ns_cbranch_vccnz {back}\n{done}:')
        return
    A(f's_cbranch_vccnz {lab}\n{done}:')
    TAIL.append(f'{lab}:\ns_sub_u32 s{sBud}, s{sBud}, 1\ns_cmp_gt_i32 s{sBud}, 0\n'
                f's_cbranch_scc1 {back}\ns_branch {done}')


def dump_stamps():
    if OPT['fixdur']:
        A(f'v_readfirstlane_b32 s3, v{vStamp}\ns_min_u32 s3, s3, 20000')
        if OPT['pick'] >= 0:
            A(f's_lshl_b32 s4, s{sJ}, 3\ns_add_u32 s4, s4, s{sG}\ns_cmp_eq_u32 s4, {OPT["pick"]}\ns_cselect_b32 s3, s3, 0')
        A(f'''s_add_u32 s{sSt}, s{sSt}, s3
L_fix:
s_memrealtime s[0:1]
s_waitcnt lgkmcnt(0)
s_sub_u32 s0, s0, s{sSt}
s_cmp_lt_i32 s0, {OPT['fixdur']}
s_cbranch_scc1 L_fix''')
    if not OPT['stamps']:
        return
    A(f'''s_waitcnt vmcnt(0) lgkmcnt(0)
v_writelane_b32 v{vStamp}, s{sSt}, {PREV[0]}
s_memrealtime {s2(sSt)}
s_waitcnt lgkmcnt(0)
v_writelane_b32 v{vStamp}, s{sSt}, 63
s_lshl_b32 s{sT[0]}, s{sR64}, 3
s_add_u32 s{sT[0]}, s{sT[0]}, s{sS8}
s_lshl_b32 s{sT[0]}, s{sT[0]}, 2
s_add_u32 s{sT[0]}, s{sT[0]}, s{sW}
s_lshl_b32 s{sT[0]}, s{sT[0]}, 8
s_add_u32 s{sT[0]}, s{sT[0]}, {WS_DBG}
v_lshlrev_b32 v{vT[0]}, 2, v{vL}
buffer_store_dword v{vStamp}, v{vT[0]}, {W}, s{sT[0]} offen''')


def body():
    prologue()
    g2 = conv(*front(startup()))
    vm = g2.vm
    lg = gemm2(g2)
    epilogue(0, vm, lg)
    g = G1(1, VM())
    n1 = OPT['n1']
    for f in range(n1):
        g.ld(f)
    for f in range(n1, 40):
        g.side.add((f - n1) // 2, lambda f=f: g.ld(f))
    for j in range(5):
        g.rd(0, j)
    if OPT['wb'] & 1:
        g.side.add(16, wbl2)
    if OPT['tc2']:
        g.side.add(OPT['tc2'], retouch())
    for s in range(20):
        g.step(s)
    stamp('g1_1')
    scan_1(1)
    vm = VM()
    run(horner(1, vm, LG()))
    if OPT['prefetch'] & 8:
        run(code_touch())
    pre, ld = agg_ld(1)
    A(pre)
    for l in ld:
        vm(l, 'agg')
    A(f'''s_mul_i32 s{sT[0]}, s{sW}, 2560
s_add_u32 s{sT[0]}, s{sT[0]}, 24576
v_lshlrev_b32 v{vT[0]}, 5, v{vI}
v_lshl_add_u32 v{vT[0]}, v{vQ}, 3, v{vT[0]}
v_add_u32 v{vT[0]}, s{sT[0]}, v{vT[0]}
v_lshl_add_u32 v{vT[1]}, v{vL}, 3, s{sT[0]}''')
    run([f'ds_write_b64 v{vT[0]}, a[{A_Y + 2 * m}:{A_Y + 2 * m + 1}] offset:{512 * m}' for m in range(5)]
        + [f'ds_read_b64 {v2(YP + 2 * m)}, v{vT[1]} offset:{512 * m}' for m in range(5)])
    scan_2(1, vm, ld)
    g2_setup(1)
    h_flag(1, vm)
    if OPT['wb'] & 8:
        wbl2()
    g2 = G2(1, vm)
    g2.begin()
    lg = gemm2(g2)
    epilogue(1, vm, lg)
    dump_stamps()
    A('L_end:\ns_endpgm')
    for t in TAIL:
        A(t)
    A('s_endpgm\nL_codeend:')


def main():
    hdr = open(os.path.join(os.path.dirname(os.path.abspath(__file__)), NAME + '.s.ref')).read().split('; Override')[0]
    A2 = [hdr.rstrip(), f'; @launch grid=(256,1,1) block=(256,1,1) lds={LDS_SIZE}',
          '.amdgcn_target "amdgcn-amd-amdhsa--gfx950"\n.text',
          f'.globl {NAME}_kernel\n.p2align 8\n.type {NAME}_kernel,@function\n{NAME}_kernel:']
    body()
    n = A.fix_hazards()
    if OPT['align']:
        print('; align: promoted %d, padded %d' % A.align8(999, False), file=sys.stderr)
    cfgs = [dict(w=w, fast=f, ty=ty) for w in range(4) for f in (0, 1) for ty in (0, 1)]
    errs = A.check_waits(cfgs)
    for e in sorted(set(errs))[:40]:
        print('WAITCNT:', e, file=sys.stderr)
    print(f'; {n} hazard pads inserted; {len(A.L)} lines; stamps: {STAMPS}', file=sys.stderr)
    A2.append('; WS ' + '\n; WS '.join(f'{k}={v:#x}' for k, v in dict(RS=WS_RS, H=WS_H, KV=WS_KV, Y=WS_Y, CF=WS_CF,
                                                                   U2=WS_U2, H2=WS_H2, DBG=WS_DBG, CFOLD=1).items()))
    if STAMPS:
        A2.append('; STAMPS ' + ' '.join(STAMPS))
    A2.append(A.text())
    A2.append(f'''.section .rodata,"a"
.p2align 6
.amdhsa_kernel {NAME}_kernel
  .amdhsa_next_free_vgpr 512
  .amdhsa_next_free_sgpr 102
  .amdhsa_accum_offset 256
  .amdhsa_group_segment_fixed_size 0
  .amdhsa_kernarg_size 144
  .amdhsa_user_sgpr_count 2
  .amdhsa_user_sgpr_kernarg_segment_ptr 1
  .amdhsa_system_sgpr_workgroup_id_x 1
.end_amdhsa_kernel''')
    print('\n'.join(A2))


if __name__ == '__main__':
    main()
```

```python
import sys
import os
import copy
sys.path.insert(0, os.path.dirname(os.path.abspath(__file__)))
from asmlib import Asm

NAME = 'interleave_layers__ssm_conv_s5__ssm_conv_h3__prompt'
OPT = dict(stamps=0, rt=1, reuse=1, force_slow=0, budget=1 << 18, align=3, nt=0, prefetch=11,
           gw=1, rsc=17, late=13, lper=3, b1s=0, b2s=0, b3s=1, b4s=3, cfs=0, cfper=14, kls=14, kvf=5, cff=7, fsp=10, fsc=12, wv0=10, wv=16,
           aggl=21, clend=20, cs2=8, nu=3, defer=3, stp=3, cl2s=3, hfl=8, hp=6, yp0=3, clr=3, fbp=-13, fbc=-17, lag=1, cs1=7, cb=5, cl2=12, ys=0, yper=8, zper=8, csp=14, csc=17, cl0=8,
           order='S,A,M,G,T,@setup,R,@roles,O,B0,X0,X1,C', post='L1',
           n0=8, n00=8, n1=8, yp=26, ra=17, rb=24, rper=9, rc=35, wper=2, r3=0, om=0, wb=0, wbw=3, wbs=0, dbg=0, zlate=0, hout=1, lpre=2, tc2=17, thr=11, tch=12, inl=1, look=14, light=1, fixdur=0, probe='', pick=-1)
for a in sys.argv[1:]:
    k, v = a.split('=')
    assert k in OPT, k
    OPT[k] = v if k in ('probe', 'order', 'post') else int(v, 0)

WS_FU = 0x1000
WS_FH = WS_FU + 256
WS_FY = 0x6000
WS_FB = 0x8000
WS_FK = 0x10000
WS_FS = WS_FK + 512
WS_FX = WS_FK + 1024
WS_RS = 0x40000
WS_CS = 0x4A000
WS_AGG = 0x50000
AGG_L = 16 * 32 * 640
WS_ST = 0x140000
WS_U = 0x400000
WS_H = 0xA00000
WS_KV = WS_U if OPT['reuse'] else 0x1000000
WS_Y = 0x1300000
WS_CF = 0x1600000
WS_KB = 0x1900000
WS_U2 = WS_U
WS_H2 = WS_H if OPT['reuse'] else 0x1B00000
WS_DBG = 0x2400000
WS_SIZE = 0x2800000
OOB = 0x70000000

L_AR = 102400
L_SK = L_AR + 2 * 8192
VOFF = 12 * 1056
L_SS, L_SS2, L_V = L_SK + VOFF + 9 * 1056, L_SK + VOFF + 11 * 1056, L_SK + 25 * 1056
L_KV = 0
L_TR = 13824
L_K = 102400
L_PM = 102400
L_PS = L_K + 3 * 8320
L_P = L_PS + 16384
L_RED = 102400
L_Y = 143360
L_AS = 152320
L_G = 149504
L_RS = 158720
L_C = 159744
L_L = 160640
LDS_SIZE = 163840

P_X, P_LRE, P_LIM, P_BRE, P_BIM, P_CRE, P_CIM, P_LDT = 16, 18, 20, 22, 24, 26, 28, 30
P_DSK, P_Q, P_K, P_V, P_SK, P_SSK, P_SD, P_OUT, P_DBG, P_WS = 32, 34, 36, 38, 40, 42, 44, 46, 48, 50
R_WS, R_B, R_T0, R_T1, R_X = 52, 56, 60, 64, 68
sG, sJ, sOnes = 0, 1, 2
sR128, sMem, sR64, sS8, sW, sTag, sMode, sBud, sXcc = 3, 4, 5, 6, 7, 8, 9, 10, 11
sT = [12, 13, 14, 15]
sD = [72, 73]
sBs, sBm, sXs, sXm = 74, 75, 76, 77
sH = [78, 79, 80, 81, 82]
sAgg = 83
sFW, sFK = 84, 85
sC0, sCs = 86, 24
sKm, sKf, sKs = 40, 41, 36
sX = [87, 88, 89, 90, 91, 92, 93, 94, 95]
sPub = 96
sPC = 98
sSt = 100
sL = [34, 35]
sDS = [16, 17, 18, 19]
sZ = [20, 21, 48, 49]
sYO = [50, 51]
sDm = [30, 31, 25, 45]
sEpW = 44

vUA, vL, vL16, vI, vQ = 0, 1, 2, 3, 4
vBA = [5, 6, 7, 8]
vAS, vStamp = 9, 10
vT = [11, 12, 13, 14, 15]
LR, LS, VA = 16, 21, 26
mL8, mL128, mW = 36, 38, 40
vU = [42, 43, 44, 45, 46, 47]
ACC, BF, RING, NR = 48, 88, 128, 16
A_Y, A_Z, A_DSK = 200, 210, 230
PARK = dict(tw=240, tr=241, ts=242, bd=243, bd2=244, rt=245, junk=250)
A_CV = 200
A_X, A_ZU = 216, 226

A = Asm()
NT, NTC, NTK, NTP, NTX, NTT = [' nt' if OPT['nt'] >> i & 1 else '' for i in range(6)]
STAMPS = []
PREV = [61]
TAIL = []
DPPM = 'row_mask:0xf bank_mask:0xf'
SWP = f'quad_perm:[1,0,3,2] {DPPM}'
W = f's[{R_WS}:{R_WS + 3}]'
HO = OPT['reuse'] and OPT['hout']
WH = f's[{R_T0}:{R_T0 + 3}]' if HO else W
HB = [0, 0] if HO else [WS_H, WS_H2]


def s2(n): return f's[{n}:{n + 1}]'
def s4(n): return f's[{n}:{n + 3}]'
def v2(n): return f'v[{n}:{n + 1}]'
def v3(n): return f'v[{n}:{n + 2}]'
def v4(n): return f'v[{n}:{n + 3}]'
def a4(n): return f'a[{n}:{n + 3}]'


def srd(r, p, size):
    A(f's_mov_b32 s{r}, s{p}\ns_and_b32 s{r + 1}, s{p + 1}, 0xffff\ns_mov_b32 s{r + 2}, {size}\n'
      f's_mov_b32 s{r + 3}, 0x20000')


def stamp(name, level=1):
    if ':' in OPT['probe']:
        a, b, kind = OPT['probe'].split(':')
        op = 's_memtime' if kind == 'c' else 's_memrealtime'
        if name == a:
            A(f'{op} vcc\ns_waitcnt lgkmcnt(0)\nv_mov_b32 v{vStamp}, vcc_lo')
        if name == b:
            A(f'{op} vcc\ns_waitcnt lgkmcnt(0)\nv_sub_u32 v{vStamp}, vcc_lo, v{vStamp}\n'
              + (f'v_lshrrev_b32 v{vStamp}, 2, v{vStamp}' if kind == 'c' else f'v_lshlrev_b32 v{vStamp}, 2, v{vStamp}'))
    if OPT['probe'] == name:
        A(f's_memrealtime vcc\ns_waitcnt lgkmcnt(0)\ns_sub_u32 vcc_lo, vcc_lo, s{sSt}\ns_lshl_b32 vcc_lo, vcc_lo, 2\n'
          f'v_mov_b32 v{vStamp}, vcc_lo')
    if not OPT['stamps'] or (OPT['stamps'] < 0 and name != 'start') or level > abs(OPT['stamps']):
        return
    if name not in STAMPS:
        STAMPS.append(name)
    i = STAMPS.index(name)
    op = 's_memrealtime' if OPT['rt'] else 's_memtime'
    if name == 'start' or not OPT['light']:
        A(f'{op} {s2(sSt)}\ns_waitcnt lgkmcnt(0)\nv_writelane_b32 v{vStamp}, s{sSt}, {i}')
    else:
        A(f'v_writelane_b32 v{vStamp}, s{sSt}, {PREV[0]} ; nocheck\n{op} {s2(sSt)} ;@{i}')
        PREV[0] = i


class Cnt:
    def __init__(self, what, cap):
        self.n, self.t, self.what, self.cap, self.done = 0, {}, what, cap, 0

    def __call__(self, text, name=None):
        A(text)
        self.n += 1
        if name is not None:
            self.t[name] = self.n
        return self.n

    def wait(self, *names):
        tok = max(self.t[x] if not isinstance(x, int) else x for x in names)
        if tok <= self.done:
            return
        k = self.n - tok
        assert k >= 0
        if k <= self.cap:
            A(f's_waitcnt {self.what}({k})')
            self.done = tok
        else:
            A(f's_waitcnt {self.what}({self.cap})')
            self.done = self.n - self.cap

    def merge(self, o):
        n = max(self.n, o.n)
        t = {}
        for k in set(self.t) | set(o.t):
            t[k] = n - min(c.n - c.t[k] for c in (self, o) if k in c.t)
        self.done = n - max(self.n - self.done, o.n - o.done)
        self.n, self.t = n, t


def VM(): return Cnt('vmcnt', 63)
def LG(): return Cnt('lgkmcnt', 15)


def lines(x):
    if isinstance(x, str):
        return [l for l in x.split('\n') if l.strip()]
    if isinstance(x, (list, tuple)):
        return [l for it in x for l in lines(it)]
    return [x]


def atom(*items):
    return lambda: run(items)


def run(items):
    for it in lines(items):
        A(it) if isinstance(it, str) else it()


class Side:
    def __init__(self):
        self.q = {}

    def add(self, step, *items):
        self.q.setdefault(step, []).extend(lines(items))

    def spread(self, step0, per, items):
        flat = lines(items)
        for i, it in enumerate(flat):
            self.add(step0 + i // per, it)
        return step0 + (len(flat) + per - 1) // per

    def run(self, step, slots_left):
        q = self.q.get(step, [])
        n = -(-len(q) // slots_left)
        self.q[step] = q[n:]
        for it in q[:n]:
            A(it) if isinstance(it, str) else it()

    def left(self, lo=0, hi=999):
        return [k for k, v in self.q.items() if v and lo <= k < hi]


class Cap:
    def __enter__(self):
        self.save = A.L
        A.L = []
        return self

    def __exit__(self, *a):
        self.lines = [i.text for i in A.L]
        A.L = self.save


def check_tags(regs, reload, masked=False, x=None, y=None, inline=0):
    x, y = vT[4] if x is None else x, vT[3] if y is None else y
    if len(regs) <= 2:
        chk = [f'v_xor_b32 v{x}, s{sTag}, v{regs[0]}']
        for r in regs[1:]:
            chk += [f'v_xor_b32 v{y}, s{sTag}, v{r}', f'v_or_b32 v{x}, v{x}, v{y}']
        chk.append(f'v_cmp_lt_u32 vcc, 15, v{x}' if masked else f'v_cmp_ne_u32 vcc, 0, v{x}')
    else:
        assert not masked and len(regs) % 2 == 0
        chk = [f'v_min3_u32 v{x}, v{regs[0]}, v{regs[1]}, s{sTag}', f'v_max3_u32 v{y}, v{regs[0]}, v{regs[1]}, s{sTag}']
        for i in range(2, len(regs), 2):
            chk += [f'v_min3_u32 v{x}, v{x}, v{regs[i]}, v{regs[i + 1]}', f'v_max3_u32 v{y}, v{y}, v{regs[i]}, v{regs[i + 1]}']
        chk.append(f'v_cmp_ne_u32 vcc, v{x}, v{y}')
    lab, done = A.label('again'), A.label('ok')
    A.cond[lab] = lambda c: False
    if inline and OPT['inl']:
        if inline == 2:
            A.cond[done] = lambda c: True
            A('\n'.join(chk) + f'\ns_cbranch_vccz {done}')
        out = A.label('out')
        A.cond[out] = lambda c: False
        run([f'{lab}:'] + lines(reload) + [f's_sub_u32 s{sBud}, s{sBud}, 1', f's_cmp_gt_i32 s{sBud}, 0', 's_waitcnt vmcnt(0)']
            + chk + [f's_cbranch_scc0 {out}', f's_cbranch_vccnz {lab}', f'{out}:', f'{done}:'])
        return
    if inline == 1:
        run(lines(reload) + ['s_waitcnt vmcnt(0)'])
    A('\n'.join(chk) + f'\ns_cbranch_vccnz {lab}\n{done}:')
    TAIL.append('\n'.join([f'{lab}:', f's_sub_u32 s{sBud}, s{sBud}, 1', f's_cmp_gt_i32 s{sBud}, 0', f's_cbranch_scc0 {done}']
                          + lines(reload) + ['s_waitcnt vmcnt(0)'] + chk + [f's_cbranch_vccnz {lab}', f's_branch {done}']))


def mode_stores(ls, mode=sMode, through=False):
    if through:
        return run([(l + ' sc1') if l.startswith('buffer_store') else l for l in ls])
    slow, back = A.label('slow'), A.label('back')
    A.cond[slow] = lambda c: not c['fast'] or (mode != sMode and c['w'] == 2)
    A(f's_cmp_eq_u32 s{mode}, 0\ns_cbranch_scc1 {slow}')
    for l in ls:
        A(l)
    A(f'{back}:')
    TAIL.append(f'{slow}:\n' + '\n'.join((l + ' sc1') if l.startswith('buffer_store') else l for l in ls)
                + f'\ns_nop 1\ns_branch {back}')


def flag_store(soff, local, vm=None, mode=sMode):
    t = vT[4]
    A(f'v_mov_b32 v{t}, s{sTag}\ns_mov_b64 exec, 1')
    line = f'buffer_store_dword v{t}, off, {W}, {soff}'
    if local:
        mode_stores([line], mode)
    else:
        A(line + ' sc1')
    A('s_mov_b64 exec, -1')
    if vm is not None:
        vm.n += 1


def unpack(dst, src, n):
    out = []
    for i in range(n):
        out += [f'v_lshlrev_b32 v{dst + 2 * i}, 16, v{src + i}', f'v_and_b32 v{dst + 2 * i + 1}, 0xffff0000, v{src + i}']
    return out


def rnd_bf16(v):
    A(f'v_cvt_pk_bf16_f32 v{v}, v{v}, v{v}\nv_and_b32 v{v}, 0xffff0000, v{v}')


def cmul(dst, g, lam, add=None):
    if add is None:
        a = f'v_pk_mul_f32 {v2(dst)}, {v2(g)}, {v2(lam)} op_sel:[1,1] op_sel_hi:[0,1] neg_lo:[0,1]'
    else:
        a = f'v_pk_fma_f32 {v2(dst)}, {v2(g)}, {v2(lam)}, {v2(add)} op_sel:[1,1,0] op_sel_hi:[0,1,1] neg_lo:[0,1,0]'
    return [a, f'v_pk_fma_f32 {v2(dst)}, {v2(g)}, {v2(lam)}, {v2(dst)} op_sel:[0,0,0] op_sel_hi:[1,0,1]']


def park(name, v): A(f'v_accvgpr_write_b32 a{PARK[name]}, v{v}')
def unpark(name, v): return f'v_accvgpr_read_b32 v{v}, a{PARK[name]}'


def code_touch():
    return [f's_and_b32 vcc_lo, s{sJ}, 7', 's_lshl_b32 vcc_lo, vcc_lo, 2', f's_add_u32 vcc_lo, vcc_lo, s{sW}',
            's_lshl_b32 vcc_lo, vcc_lo, 11', f'v_lshl_add_u32 v{vT[4]}, v{vI}, 7, vcc_lo',
            f'v_min_u32 v{vT[4]}, L_codeend-L_pc-4, v{vT[4]}', 's_mov_b64 exec, 0xffff',
            f'global_load_dword a250, v{vT[4]}, {s2(sPC)}', 's_mov_b64 exec, -1']


def touch_addr(dst, segs):
    n = 0
    for cnt, code in segs:
        A(code.replace('$', f's{sT[0]}'))
        A(f's_sub_u32 s{sT[0]}, s{sT[0]}, {128 * n}')
        if n:
            A(f'v_cmp_lt_u32 vcc, {n - 1}, v{vL}\nv_mov_b32 v{vT[4]}, s{sT[0]}\nv_cndmask_b32 v{dst}, v{dst}, v{vT[4]}, vcc')
        else:
            A(f'v_mov_b32 v{dst}, s{sT[0]}')
        n += cnt
    A(f'v_lshl_add_u32 v{dst}, v{vL}, 7, v{dst}')
    return n


SEG_ST = (24, f's_lshl_b32 $, s{sR128}, 4\ns_add_u32 $, $, s{sMem}\ns_lshl_b32 $, $, 12\ns_add_u32 $, $, {WS_ST}')
SEG_F = (6, f's_lshl_b32 $, s{sR128}, 10\ns_add_u32 $, $, {WS_FU}')


def retouch():
    return atom(unpark('rt', vT[0]), f's_and_b32 exec_lo, s{sPub}, 0x3fffffff', 's_mov_b32 exec_hi, 0',
                f'buffer_load_dword a250, v{vT[0]}, {W}, 0 offen', 's_mov_b64 exec, -1')


def wbl2():
    A(f's_lshl_b32 vcc_lo, s{sJ}, 2\ns_add_u32 vcc_lo, vcc_lo, s{sW}\ns_cmp_lg_u32 vcc_lo, {OPT["wbw"]}')
    with A.skip_if('s_cbranch_scc1', lambda c: True):
        A('buffer_wbl2 sc1')


AF = 128
vAR, vAR2, vXd, vXd2, vBd, vBd2, vR, vSgn = 144, 145, 146, 147, 148, 149, 150, 151
CR, CI, CT, CTMP, vCd = 176, 180, 192 if OPT['cfs'] >= 0 else 128, 152, 174
vKV, vKS, vKR, vSR, vFX, vFXa = 169, 171, 172, 173, 184, 185
KK, VV, SKW, WW, AC, KT = 48, 70, 88, 96, 112, 216
OUT = [232, 236, 88, 92]
XP, XS = 48, 88
PAR = 229
KA, KB, vKO, vKP = 192, 204, 186, 163
vZ, vXT = 224, 242
RSL, vRS, CSL = 152, 160, 246
MM, RR = 88, 96
vFP, vFA = 188, 187


def x_dma(vm, p):
    s2i, m = p >> 1, p & 1
    A(f's_add_u32 m0, s{sXm}, {(p % 7) * 8192}\ns_add_u32 s{sT[3]}, s{sXs}, {4 * m * 1280 + s2i * 128}')
    vm(f'buffer_load_dwordx4 v{vXd}, {s4(R_X)}, s{sT[3]} offen lds')
    vm(f'buffer_load_dwordx4 v{vXd2}, {s4(R_X)}, s{sT[3]} offen offset:1024 lds', ('x', p))


def b_dma(vm, g, j, bd=vBd, bd2=vBd2):
    A(f's_add_u32 m0, s{sBm}, {g * 20480 + j * 2048}\ns_add_u32 s{sT[2]}, s{sBs}, {g * 256 + j * 10240}')
    vm(f'buffer_load_dwordx4 v{bd}, {s4(R_B)}, s{sT[2]} offen lds', ('b', g))
    if j < 4:
        vm(f'buffer_load_dwordx4 v{bd2}, {s4(R_B)}, s{sT[2]} offen offset:2048 lds', ('b', g))


def b_all(vm, g):
    t = vT
    srd(R_T1, P_BRE, 819200)
    A(f'v_xor_b32 v{t[0]}, 64, v{vBd}\nv_xor_b32 v{t[1]}, 64, v{vBd2}\ns_mul_i32 s{sT[3]}, s{sMem}, 51200')
    for hf in range(2):
        for j in (0, 2, 4):
            A(f's_add_u32 s{sT[2]}, s{sT[3]}, {g * 256 + hf * 128 + j * 10240}')
            for comp, (r, a, a2) in enumerate(((R_T1, t[0], t[1]), (R_B, vBd, vBd2))):
                A(f's_mov_b32 m0, {g * 20480 + hf * 10240 + j * 2048 + comp * 1024}')
                vm(f'buffer_load_dwordx4 v{a}, {s4(r)}, s{sT[2]} offen lds', ('b', g))
                if j < 4:
                    vm(f'buffer_load_dwordx4 v{a2}, {s4(r)}, s{sT[2]} offen offset:2048 lds', ('b', g))


def prologue():
    A('s_cmp_ge_u32 s2, 256\ns_cbranch_scc1 L_end')
    A.cond['L_end'] = lambda c: False
    if OPT['stamps'] or OPT['fixdur']:
        A(f's_memrealtime {s2(sSt)}\nv_mov_b32 v{vStamp}, 0')
    A('s_load_dwordx16 s[16:31], s[0:1], 0\ns_load_dwordx16 s[32:47], s[0:1], 64\n'
      's_load_dwordx4 s[48:51], s[0:1], 128')
    t = vT
    A(f'''v_and_b32 v{vL}, 63, v0
v_lshrrev_b32 v{t[0]}, 6, v0
v_lshlrev_b32 v{vL16}, 4, v{vL}
v_readfirstlane_b32 s{sW}, v{t[0]}
v_and_b32 v{vI}, 15, v{vL}
v_lshrrev_b32 v{vQ}, 4, v{vL}
s_and_b32 s{sT[0]}, s2, 7
s_lshr_b32 s{sT[1]}, s2, 3
s_getpc_b64 {s2(sPC)}
L_pc:
s_and_b32 s{sMem}, s{sT[1]}, 15
s_lshr_b32 s{sT[2]}, s{sT[1]}, 4
s_lshl_b32 s{sR128}, s{sT[0]}, 1
s_add_u32 s{sR128}, s{sR128}, s{sT[2]}
s_mov_b32 s{sG}, s{sT[0]}
s_mov_b32 s{sJ}, s{sT[1]}''')
    if OPT['prefetch'] & 1:
        A('\n'.join(code_touch()))
    A(f'''v_lshrrev_b32 v{t[0]}, 3, v{vL}
v_and_b32 v{t[2]}, 7, v{vL}
v_mul_u32_u24 v{vR}, 1280, v{t[0]}
v_lshl_add_u32 v{vR}, v{t[2]}, 4, v{vR}''')
    kv_src()


def dma_addr():
    t = vT
    A(f'''v_lshrrev_b32 v{t[0]}, 3, v{vL}
v_and_b32 v{t[1]}, 6, v{t[0]}
v_and_b32 v{t[2]}, 7, v{vL}
s_movk_i32 s{sT[3]}, 0x78
v_bfe_u32 v{t[3]}, s{sT[3]}, v{t[1]}, 2
v_xor_b32 v{t[3]}, v{t[3]}, v{t[2]}
v_mul_u32_u24 v{vXd}, 1280, v{t[0]}
v_lshl_add_u32 v{vBd}, v{t[3]}, 4, v{vXd}
s_and_b32 s{sT[0]}, s{sW}, 1
s_lshl_b32 s{sT[1]}, s{sT[0]}, 6
v_xor_b32 v{vBd}, s{sT[1]}, v{vBd}
v_add_u32 v{vBd2}, {10240 - 2048}, v{vBd}
v_xor_b32 v{t[1]}, v{t[1]}, v{t[2]}
v_and_b32 v{t[0]}, 4, v{t[0]}
v_mul_u32_u24 v{t[0]}, 1280, v{t[0]}
v_lshl_add_u32 v{t[0]}, v{t[1]}, 4, v{t[0]}
v_add_u32 v{vXd}, v{t[0]}, v{vXd}
v_add_u32 v{vXd2}, {20480 - 1024}, v{vXd}
s_lshr_b32 s{sT[1]}, s{sW}, 1
s_mul_i32 s{sBm}, s{sT[1]}, 10240
s_lshl_b32 s{sT[0]}, s{sT[0]}, 10
s_add_u32 s{sBm}, s{sBm}, s{sT[0]}
s_mul_i32 s{sBs}, s{sMem}, 51200
s_lshl_b32 s{sT[1]}, s{sT[1]}, 7
s_add_u32 s{sBs}, s{sBs}, s{sT[1]}
s_lshl_b32 s{sXs}, s{sR128}, 2
s_add_u32 s{sXs}, s{sXs}, s{sW}
s_mul_i32 s{sXs}, s{sXs}, 40960
s_lshl_b32 s{sXm}, s{sW}, 11
s_add_u32 s{sXm}, s{sXm}, {L_AR}''')
    A(f'''s_bitcmp1_b32 s{sW}, 0
s_cselect_b32 s{R_B}, s{P_BIM}, s{P_BRE}
s_cselect_b32 s{R_B + 1}, s{P_BIM + 1}, s{P_BRE + 1}
s_and_b32 s{R_B + 1}, s{R_B + 1}, 0xffff
s_mov_b32 s{R_B + 2}, 819200
s_mov_b32 s{R_B + 3}, 0x20000
s_bitcmp1_b32 s{sR128}, 3
s_cselect_b32 s{R_T0}, s{P_BIM}, s{P_BRE}
s_cselect_b32 s{R_T0 + 1}, s{P_BIM + 1}, s{P_BRE + 1}
s_and_b32 s{R_T0 + 1}, s{R_T0 + 1}, 0xffff
s_mov_b32 s{R_T0 + 2}, 819200
s_mov_b32 s{R_T0 + 3}, 0x20000''')
    srd(R_X, P_X, 2621440)
    srd(R_WS, P_WS, WS_SIZE)


def kv_src():
    A(f'''s_mul_i32 s{sT[0]}, s{sJ}, 81920
s_lshl_b32 s{sT[1]}, s{sG}, 7
s_add_u32 s{sT[0]}, s{sT[0]}, s{sT[1]}
v_add_u32 v{vKV}, s{sT[0]}, v{vR}
s_lshl_b32 s{sX[8]}, s{sG}, 5
s_add_u32 s{sX[8]}, s{sX[8]}, s{sJ}
s_mul_i32 s{sT[0]}, s{sX[8]}, 10240
s_add_u32 s{sT[0]}, s{sT[0]}, 1024
v_add_u32 v{vKV + 1}, s{sT[0]}, v{vR}''')


def kv_addr():
    t = vT
    A(f'''v_lshrrev_b32 v{t[0]}, 3, v{vL}
v_and_b32 v{t[1]}, 7, v{vL}
v_mul_u32_u24 v{t[2]}, 1056, v{t[1]}
v_lshl_add_u32 v{t[2]}, v{t[0]}, 3, v{t[2]}
s_lshl_b32 s{sT[0]}, s{sW}, 6
s_add_u32 s{sT[0]}, s{sT[0]}, {L_SK}
v_add_u32 v{vKR}, s{sT[0]}, v{t[2]}
s_lshl_b32 s{sT[0]}, s{sW}, 8
s_add_u32 s{sT[0]}, s{sT[0]}, {L_SS}
v_lshl_add_u32 v{vSR}, v{t[0]}, 5, s{sT[0]}
v_sub_u32 v{t[2]}, 7, v{t[1]}
v_lshlrev_b32 v{t[2]}, 4, v{t[2]}
v_lshl_add_u32 v{vKS}, v{t[0]}, 14, v{t[2]}
s_mul_i32 s{sT[0]}, s{sG}, 80
s_lshl_b32 s{sT[1]}, s{sW}, 5
s_add_u32 s{sT[0]}, s{sT[0]}, s{sT[1]}
s_lshl_b32 s{sT[0]}, s{sT[0]}, 12
s_lshl_b32 s{sT[1]}, s{sJ}, 7
s_sub_u32 s{sT[0]}, s{sT[0]}, s{sT[1]}
s_add_u32 s{sX[0]}, s{sT[0]}, {WS_KV + 3968}
s_add_u32 s{sKf}, s{sFK}, {WS_FK}
s_movk_i32 s{sKs}, 4096
s_cmp_lg_u32 s{sW}, 2''')
    with A.skip_if('s_cbranch_scc1', lambda c: c['w'] != 2):
        A(f'''v_bfe_u32 v{t[2]}, v{vL}, 4, 1
v_mul_u32_u24 v{t[2]}, 2112, v{t[2]}
v_and_b32 v{t[3]}, 15, v{vL}
v_lshl_add_u32 v{t[2]}, v{t[3]}, 3, v{t[2]}
v_add_u32 v{vKR}, {L_SK + 9 * 1056}, v{t[2]}
v_and_b32 v{t[2]}, 31, v{vL}
v_lshlrev_b32 v{t[2]}, 5, v{t[2]}
v_add_u32 v{vSR}, {L_SS2}, v{t[2]}
v_cmp_gt_u32 vcc, 32, v{vL}
v_mov_b32 v{t[3]}, {OOB}
s_lshl_b32 s{sX[0]}, s{sX[8]}, 11
s_add_u32 s{sX[0]}, s{sX[0]}, {WS_KB}
v_cndmask_b32 v{vKS}, v{t[3]}, v{vL16}, vcc
s_lshl_b32 s{sKf}, s{sX[8]}, 2
s_add_u32 s{sKf}, s{sKf}, {WS_FB}
s_movk_i32 s{sKs}, 512''')


def kv_dma(vm, r, a, so, pos, halo=False):
    if halo:
        A(f'v_subrev_u32 v{vT[0]}, 10240, v{a}\ns_mov_b32 exec_lo, 0\ns_mov_b32 exec_hi, 0xffffff00')
    A(f's_mov_b32 m0, {L_SK + pos * 1056}')
    if so > 64:
        A(f's_mov_b32 s{sT[0]}, {so}')
    vm(f'buffer_load_dwordx4 v{vT[0] if halo else a}, {s4(r)}, {"s%d" % sT[0] if so > 64 else so} offen{NT} lds', 'kv')
    if halo:
        A('s_mov_b64 exec, -1')


def kv_loads0(vm):
    srd(R_T0, P_K, 2621440)
    for p in range(1, 8):
        kv_dma(vm, R_T0, vKV, (p - 1) * 10240, p)
    kv_dma(vm, R_T0, vKV, 0, 0, True)


def kv_loads1(vm):
    srd(R_T1, P_V, 2621440)
    for p in range(1, 9):
        kv_dma(vm, R_T1, vKV, (p - 1) * 10240, 12 + p)


def kv_loads2(vm):
    srd(R_T0, P_K, 2621440)
    srd(R_T1, P_V, 2621440)
    kv_dma(vm, R_T0, vKV, 7 * 10240, 8)
    for hf in range(2):
        kv_dma(vm, R_T0, vKV + 1, 128 * hf, 10 + 2 * hf)
        kv_dma(vm, R_T1, vKV + 1, 128 * hf, 22 + 2 * hf)
    for hf in range(2):
        kv_dma(vm, R_T0, vKV + 1, 128 * hf, 9 + 2 * hf, True)
    srd(R_T1, P_SK, 5120)
    A(f's_mov_b32 m0, {L_SS2}\ns_movk_i32 s{sT[0]}, 4096')
    vm(f'buffer_load_dwordx4 v{vL16}, {s4(R_T1)}, s{sT[0]} offen{NTP} lds', 'kv')
    A(f's_mov_b32 m0, {L_SS}\ns_lshl_b32 s{sT[0]}, s{sG}, 9\ns_mov_b32 exec_hi, 0')
    vm(f'buffer_load_dwordx4 v{vL16}, {s4(R_T1)}, s{sT[0]} offen{NTP} lds', 'kv')
    A('s_mov_b32 exec_hi, -1')


def c_loads(vm):
    t = vT
    A(f'''v_mul_u32_u24 v{t[0]}, 171, v{vL}
v_lshrrev_b32 v{t[0]}, 11, v{t[0]}
v_mul_u32_u24 v{t[1]}, 12, v{t[0]}
v_sub_u32 v{t[1]}, v{vL}, v{t[1]}
s_mul_i32 s{sT[0]}, s{sMem}, 5
v_min_u32 v{t[2]}, 4, v{t[0]}
v_add_u32 v{t[2]}, s{sT[0]}, v{t[2]}
s_mul_i32 s{sT[1]}, s{sW}, 12
v_add_u32 v{t[1]}, s{sT[1]}, v{t[1]}
v_cmp_gt_u32 vcc, 40, v{t[1]}
v_cmp_gt_u32 {s2(sT[2])}, 5, v{t[0]}
s_lshr_b32 s{sT[1]}, s{sJ}, 4
s_mul_i32 s{sT[1]}, s{sT[1]}, 40
v_min_u32 v{t[1]}, 39, v{t[1]}
s_and_b64 vcc, vcc, {s2(sT[2])}
v_add_u32 v{t[1]}, s{sT[1]}, v{t[1]}
s_mul_i32 s{sT[2]}, s{sG}, 102400
v_mul_u32_u24 v{t[3]}, 1280, v{t[1]}
v_lshl_add_u32 v{t[3]}, v{t[2]}, 4, v{t[3]}
v_add_u32 v{t[3]}, s{sT[2]}, v{t[3]}''')
    if OPT['dbg'] & 16:
        A(f'v_mov_b32 v{t[3]}, v{vL16}')
    vm(f'global_load_dwordx4 {v4(CR)}, v{t[3]}, {s2(P_CRE)}{NTC}')
    vm(f'global_load_dwordx4 {v4(CI)}, v{t[3]}, {s2(P_CIM)}{NTC}', 'craw')
    A(f'''v_lshrrev_b32 v{t[3]}, 2, v{t[2]}
v_mul_u32_u24 v{t[3]}, 10240, v{t[3]}
v_and_b32 v{t[2]}, 3, v{t[2]}
v_lshl_add_u32 v{t[3]}, v{t[2]}, 8, v{t[3]}
v_lshrrev_b32 v{t[2]}, 4, v{t[1]}
v_lshl_add_u32 v{t[3]}, v{t[2]}, 10, v{t[3]}
v_and_b32 v{t[1]}, 15, v{t[1]}
v_lshl_add_u32 v{t[3]}, v{t[1]}, 4, v{t[3]}
v_mov_b32 v{t[2]}, {OOB}
v_cndmask_b32 v{vCd}, v{t[2]}, v{t[3]}, vcc
v_min_u32 v{t[0]}, 4, v{t[0]}
v_lshlrev_b32 v{t[0]}, 6, v{t[0]}
v_add_u32 v{vCd + 1}, {L_C}, v{t[0]}''')


def cf_work(vm, lg):
    it = [lambda d=d: lg(f'ds_read_b128 {v4(CT + 4 * d)}, v{vCd + 1} offset:{16 * d}', 'ctab') for d in range(4)]
    it.append(lambda: (vm.wait('craw'), lg.wait('ctab')))
    r, i, o = CTMP, CTMP + 2, CTMP + 4
    for d in range(4):
        cr, ci = v2(CT + 4 * d), v2(CT + 4 * d + 2)
        it += unpack(r, CR + d, 1) + unpack(i, CI + d, 1)
        it += [f'v_pk_mul_f32 {v2(o)}, {v2(r)}, {cr}',
               f'v_pk_mul_f32 {v2(o + 2)}, {v2(r)}, {ci} neg_lo:[0,1] neg_hi:[0,1]',
               f'v_pk_fma_f32 {v2(o)}, {v2(i)}, {ci}, {v2(o)} neg_lo:[0,1,0] neg_hi:[0,1,0]',
               f'v_pk_fma_f32 {v2(o + 2)}, {v2(i)}, {cr}, {v2(o + 2)} neg_lo:[0,1,0] neg_hi:[0,1,0]',
               f'v_cvt_pk_bf16_f32 v{CR + d}, v{o}, v{o + 1}',
               f'v_cvt_pk_bf16_f32 v{CI + d}, v{o + 2}, v{o + 3}']
    it.append(atom(f's_mul_i32 s{sT[0]}, s{sG}, 204800', f's_add_u32 s{sT[0]}, s{sT[0]}, {WS_CF}',
                   f's_add_u32 s{sT[1]}, s{sT[0]}, 5120',
                   lambda: vm(f'buffer_store_dwordx4 {v4(CR)}, v{vCd}, {W}, s{sT[0]} offen sc1'),
                   lambda: vm(f'buffer_store_dwordx4 {v4(CI)}, v{vCd}, {W}, s{sT[1]} offen sc1', 'cfst')))
    return it


def consts():
    lre, lim, ldt = PAR, PAR + 1, PAR + 2
    t = 96
    zr, zi, e, rev, sn, cs = t, t + 1, t + 2, t + 3, t + 4, t + 5
    aL, aV, aC = t + 6, t + 7, t + 8
    P = t + 10
    V = ACC
    Wt = 84
    A(f'''v_lshlrev_b32 v{lre}, 16, v{lre}
v_lshlrev_b32 v{lim}, 16, v{lim}
v_lshlrev_b32 v{ldt}, 16, v{ldt}
v_mul_f32 v{ldt}, 0x3fb8aa3b, v{ldt}
v_exp_f32 v{ldt}, v{ldt}
v_min_u32 v{aC}, 39, v{vL}
v_mul_u32_u24 v{aL}, 80, v{aC}
v_mul_u32_u24 v{aV}, 176, v{aC}''')
    rnd_bf16(ldt)
    A(f'''v_mul_f32 v{zr}, v{ldt}, v{lre}
v_mul_f32 v{zi}, v{ldt}, v{lim}
v_mul_f32 v{zr}, 0x3fb8aa3b, v{zr}
v_mul_f32 v{zi}, 0x3e22f983, v{zi}''')
    for kf, dst in (('1.0', P), ('0x41000000', V + 2)):
        A(f'''v_mul_f32 v{e}, {kf}, v{zr}
v_mul_f32 v{rev}, {kf}, v{zi}
v_exp_f32 v{e}, v{e}
v_fract_f32 v{rev}, v{rev}
v_sin_f32 v{sn}, v{rev}
v_cos_f32 v{cs}, v{rev}
v_mul_f32 v{dst + 1}, v{e}, v{sn}
v_mul_f32 v{dst}, v{e}, v{cs}''')
    A(f'''v_mul_f32 v{e}, v{lre}, v{lre}
v_fmac_f32 v{e}, v{lim}, v{lim}
v_rcp_f32 v{e}, v{e}
v_add_f32 v{rev}, -1.0, v{P}
v_add_f32 v{e}, v{e}, v{e}
v_mul_f32 v{sn}, v{rev}, v{lre}
v_fmac_f32 v{sn}, v{P + 1}, v{lim}
v_mul_f32 v{cs}, v{P + 1}, v{lre}
v_fma_f32 v{cs}, -v{rev}, v{lim}, v{cs}
v_mul_f32 v{sn}, v{e}, v{sn}
v_mul_f32 v{cs}, v{e}, v{cs}
v_and_b32 v{e}, 1, v{aC}
v_lshrrev_b32 v{aC}, 1, v{aC}
v_lshlrev_b32 v{aC}, 4, v{aC}
v_lshl_add_u32 v{aC}, v{e}, 2, v{aC}
v_add_u32 v{aC}, {L_C}, v{aC}
v_add_u32 v{aL}, {L_L}, v{aL}
v_add_u32 v{aV}, {L_V}, v{aV}
ds_write2_b32 v{aC}, v{sn}, v{cs} offset0:0 offset1:2
s_waitcnt lgkmcnt(0)
v_mov_b32 v{V}, 1.0
v_mov_b32 v{V + 1}, 0
v_mov_b32 v{Wt}, 1.0
v_mov_b32 v{Wt + 1}, 0''')
    a = [cmul(P + 2 * k, P + 2 * k - 2, P) for k in range(1, 7)]
    b = [cmul(V + 2 * s, V + 2 * s - 2, V + 2) for s in range(2, 17)]
    for s, ops in enumerate(b):
        A(ops[0])
        if s < len(a):
            A(a[s][0])
        A(ops[1])
        if s < len(a):
            A(a[s][1])
        if 6 <= s < 13:
            k = s - 6
            A(f'ds_write2_b32 v{aL}, v{P + 2 * k}, v{P + 2 * k + 1} offset0:{k} offset1:{8 + k}')
        if s % 2 == 1:
            A(f'ds_write_b128 v{aV}, {v4(V + 2 * (s - 1))} offset:{8 * (s - 1)}')
    A(f'ds_write2_b32 v{aL}, v{V + 2}, v{V + 3} offset0:7 offset1:15')
    A(f'ds_write_b128 v{aV}, {v4(V + 28)} offset:112')
    A('\n'.join(cmul(e, V + 32, V + 32) + cmul(Wt + 2, e, e) + cmul(Wt + 4, Wt + 2, Wt + 2) + cmul(Wt + 6, Wt + 4, Wt + 2)))
    A(f'''ds_write_b64 v{aV}, {v2(V + 32)} offset:128
ds_write_b128 v{aV}, {v4(Wt)} offset:144
ds_write_b128 v{aV}, {v4(Wt + 4)} offset:160''')


def const_reads(lg):
    t = vT
    it = lines(f'''v_lshrrev_b32 v{t[0]}, 1, v{vI}
v_mul_u32_u24 v{t[1]}, 176, v{t[0]}
v_mul_u32_u24 v{t[0]}, 80, v{t[0]}
v_and_b32 v{t[2]}, 1, v{vI}
v_lshl_add_u32 v{t[1]}, v{t[2]}, 2, v{t[1]}
v_lshl_add_u32 v{t[1]}, v{vQ}, 3, v{t[1]}
s_lshl_b32 s{sT[0]}, s{sW}, 5
s_add_u32 s{sT[0]}, s{sT[0]}, {L_V}
v_add_u32 v{t[1]}, s{sT[0]}, v{t[1]}
v_add_u32 v{t[0]}, {L_L}, v{t[0]}
v_cvt_f32_u32 v{vSgn}, v{t[2]}
v_min_u32 v{t[2]}, 39, v{vL}
v_mul_u32_u24 v{t[2]}, 176, v{t[2]}
v_fma_f32 v{vSgn}, 2.0, v{vSgn}, -1.0
v_add_u32 v{t[2]}, {L_V}, v{t[2]}
s_lshl_b32 s{sT[0]}, s{sW}, 3''')
    for j in range(5):
        it.append(lambda j=j: lg(f'ds_read_b32 v{LR + j}, v{t[0]} offset:{j * 640}'))
        it.append(lambda j=j: lg(f'ds_read_b32 v{LS + j}, v{t[0]} offset:{j * 640 + 32}'))
        it.append(lambda j=j: lg(f'ds_read_b32 v{VA + 2 * j}, v{t[1]} offset:{j * 1408}'))
    it.append(lambda: lg(f'ds_read_b64 {v2(mL8)}, v{t[2]} offset:8'))
    it.append(lambda: lg(f'ds_read_b64 {v2(mL128)}, v{t[2]} offset:128'))
    it.append(f'v_add_u32 v{t[2]}, s{sT[0]}, v{t[2]}')
    it.append(lambda: lg(f'ds_read_b64 {v2(mW)}, v{t[2]} offset:144', 'cst'))
    fix = [lambda: lg.wait('cst')]
    for j in range(5):
        fix += [f'v_mul_f32 v{LS + j}, v{vSgn}, v{LS + j}',
                f'v_mul_f32_dpp v{VA + 2 * j + 1}, v{VA + 2 * j}, v{vSgn} {SWP}']
    return it, fix


def kv_work(vm, lg):
    rd = [lambda: lg(f'ds_read_b128 {v4(SKW)}, v{vSR}'), lambda: lg(f'ds_read_b128 {v4(SKW + 4)}, v{vSR} offset:16', 'skw')]
    for r in range(11):
        off = 1056 + (r - 3) * 128 if r >= 3 else (5 + r) * 128
        rd.append(lambda r=r, off=off: lg(f'ds_read_b64 {v2(KK + 2 * r)}, v{vKR} offset:{off}', 'kk'))
    for r in range(8):
        rd.append(lambda r=r: lg(f'ds_read_b64 {v2(VV + 2 * r)}, v{vKR} offset:{VOFF + 1056 + r * 128}', 'vv'))
    it = [lambda: lg.wait('skw')]
    for e in range(4):
        for i in range(4):
            src = SKW + 2 * e + (i >> 1)
            it.append(f'v_and_b32 v{WW + 4 * i + e}, 0xffff0000, v{src}' if i & 1 else
                      f'v_lshlrev_b32 v{WW + 4 * i + e}, 16, v{src}')
    it.append(lambda: lg.wait('kk'))
    for d in range(2):
        pend = []
        for r in range(11):
            tmp = KT + 2 * (r % 2)
            it += unpack(tmp, KK + 2 * r + d, 1) if r == 0 else []
            nxt = unpack(KT + 2 * ((r + 1) % 2), KK + 2 * (r + 1) + d, 1) if r < 10 else []
            ops = []
            for stage in range(4):
                ta = r - stage
                if 0 <= ta < 8:
                    w = v2(WW + 4 * (3 - stage) + 2 * d)
                    ac = v2(AC + 2 * ta)
                    ops.append(f'v_pk_mul_f32 {ac}, {v2(tmp)}, {w}' if stage == 0 else
                               f'v_pk_fma_f32 {ac}, {v2(tmp)}, {w}, {ac}')
            it += ops[:1] + nxt + ops[1:]
        it.append(lambda: lg.wait('vv'))
        for ta in range(8):
            tmp = KT + 4 + 2 * (ta % 2)
            it += unpack(tmp, VV + 2 * ta + d, 1) + pend
            pend = [f'v_pk_mul_f32 {v2(AC + 2 * ta)}, {v2(AC + 2 * ta)}, {v2(tmp)}']
        it += pend
        for eo in range(2):
            for dd in range(4):
                it.append(f'v_cvt_pk_bf16_f32 v{OUT[2 * d + eo] + dd}, v{AC + 2 * (7 - 2 * dd) + eo}, '
                          f'v{AC + 2 * (6 - 2 * dd) + eo}')

    def st():
        ls = []
        for e in range(4):
            if e:
                ls.append(f's_add_u32 s{sX[0]}, s{sX[0]}, s{sKs}')
            ls.append(f'buffer_store_dwordx4 {v4(OUT[e])}, v{vKS}, {W}, s{sX[0]} offen')
        mode_stores(ls, sKm, OPT['thr'] & 1)
        vm.n += 4
        vm.t['kvst'] = vm.n
    it.append(st)
    return rd, it


def stats_work(vm):
    S, Q, ad = XS, XS + 2, vT[0]
    it = [lambda: vm.wait('xp')]
    for i in range(40):
        it.append(f'v_dot2_f32_bf16 v{S}, v{XP + i}, s{sOnes}, ' + (f'v{S}' if i else '0'))
        it.append(f'v_dot2_f32_bf16 v{Q}, v{XP + i}, v{XP + i}, ' + (f'v{Q}' if i else '0'))
    with Cap() as c:
        for mod in ('quad_perm:[1,0,3,2]', 'quad_perm:[2,3,0,1]', 'row_half_mirror'):
            A(f'v_add_f32_dpp v{S}, v{S}, v{S} {mod} {DPPM}')
            A(f'v_add_f32_dpp v{Q}, v{Q}, v{Q} {mod} {DPPM}')
        inv = 0x3acccccd
        A(f'''v_mul_f32 v{S}, {inv:#x}, v{S}
v_mul_f32 v{Q}, {inv:#x}, v{Q}
v_fma_f32 v{Q}, -v{S}, v{S}, v{Q}
v_max_f32 v{Q}, 0, v{Q}''')
        rnd_bf16(S)
        rnd_bf16(Q)
        A(f'v_add_f32 v{Q}, 0x3727c5ac, v{Q}')
        rnd_bf16(Q)
        A(f'v_sqrt_f32 v{Q}, v{Q}')
        rnd_bf16(Q)
        A(f'''v_rcp_f32 v{S + 1}, v{Q}
v_mov_b32 v{Q}, s{sTag}
v_mov_b32 v{Q + 1}, s{sTag}''')

    def st():
        A(f'''v_lshlrev_b32 v{ad}, 1, v{vL}
s_lshl_b32 s{sT[0]}, s{sR128}, 4
s_add_u32 s{sT[0]}, s{sT[0]}, s{sMem}
s_lshl_b32 s{sT[0]}, s{sT[0]}, 7
s_add_u32 s{sT[0]}, s{sT[0]}, {WS_RS}
s_mov_b32 exec_lo, 0x01010101
s_mov_b32 exec_hi, 0x01010101''')
        vm(f'buffer_store_dwordx4 {v4(S)}, v{ad}, {W}, s{sT[0]} offen sc1')
        A('s_mov_b64 exec, -1')
    return it + c.lines + [st]


def colsum_work(vm):
    cs = XS
    it = [lambda: vm.wait('xp')]
    for i in range(40):
        it.append(f'v_dot2_f32_bf16 v{cs + (i & 1)}, v{XP + i}, s{sOnes}, ' + (f'v{cs + (i & 1)}' if i > 1 else '0'))
    it.append(f'v_add_f32 v{cs}, v{cs}, v{cs + 1}')
    for mod in ('quad_perm:[1,0,3,2]', 'quad_perm:[2,3,0,1]', 'row_half_mirror'):
        it.append(f'v_add_f32_dpp v{cs}, v{cs}, v{cs} {mod} {DPPM}')

    def st():
        A(f"""v_mov_b32 v{cs + 1}, s{sTag}
v_lshlrev_b32 v{vT[0]}, 1, v{vL}
s_lshl_b32 s{sT[0]}, s{sMem}, 3
s_and_b32 s{sT[1]}, s{sR128}, 7
s_add_u32 s{sT[0]}, s{sT[0]}, s{sT[1]}
s_mul_i32 s{sT[0]}, s{sT[0]}, 80
s_and_b32 s{sT[1]}, s{sR128}, 8
s_add_u32 s{sT[0]}, s{sT[0]}, s{sT[1]}
s_add_u32 s{sT[0]}, s{sT[0]}, {WS_CS}
s_mov_b32 exec_lo, 0x01010101
s_mov_b32 exec_hi, 1""")
        vm(f'buffer_store_dwordx2 {v2(cs)}, v{vT[0]}, {W}, s{sT[0]} offen sc1')
        A('s_mov_b64 exec, -1')
    return it + [st]


def fx_store(mods):
    A(f"""s_lshl_b32 s{sT[0]}, s{sG}, 11
s_lshl_b32 s{sT[1]}, s{sJ}, 2
s_add_u32 s{sT[0]}, s{sT[0]}, s{sT[1]}
s_add_u32 s{sT[0]}, s{sT[0]}, {WS_FX}
s_or_b32 s{sT[1]}, s{sTag}, s{sXcc}
v_mov_b32 v{vT[4]}, s{sT[1]}
s_mov_b64 exec, 1
buffer_store_dword v{vT[4]}, off, {W}, s{sT[0]}{mods}
s_mov_b64 exec, -1""")


def mode_check(vm):
    t, x, fa, so = vFX, vT[4], vFXa, sX[2]
    vm.wait('fx')
    lab, done = A.label('again'), A.label('ok')
    A.cond[lab] = lambda c: False
    A(f"""v_xor_b32 v{x}, s{sTag}, v{t}
v_cmp_lt_u32 vcc, 15, v{x}
s_cbranch_vccnz {lab}
{done}:""")
    TAIL.append(f"""{lab}:
s_sub_u32 s{sBud}, s{sBud}, 1
s_cmp_gt_i32 s{sBud}, 0
s_cbranch_scc0 {done}
buffer_load_dword v{t}, v{fa}, {W}, s{so} offen sc1
s_waitcnt vmcnt(0)
v_xor_b32 v{x}, s{sTag}, v{t}
v_cmp_lt_u32 vcc, 15, v{x}
s_cbranch_vccz {done}
s_and_b32 s{sT[1]}, s{sBud}, 3
s_cbranch_scc1 {lab}
buffer_load_dword v{t}, v{fa}, {W}, s{so} offen offset:128 sc1
s_waitcnt vmcnt(0)
v_xor_b32 v{x}, s{sTag}, v{t}
v_cmp_lt_u32 vcc, 15, v{x}
s_cbranch_vccnz {lab}
s_branch {done}""")
    A(f"""s_or_b32 s{sT[1]}, s{sTag}, s{sXcc}
v_cmp_ne_u32 vcc, s{sT[1]}, v{t}
s_cmp_eq_u64 vcc, 0
s_cselect_b32 s{sMode}, {0 if OPT['force_slow'] else 1}, 0
s_cmp_eq_u32 s{sW}, 2
s_cselect_b32 s{sKm}, 0, s{sMode}""")


def gemm_addr():
    t = vT
    A(f"""v_and_b32 v{t[0]}, 1, v{vI}
v_lshrrev_b32 v{t[1]}, 1, v{vI}
v_and_b32 v{t[2]}, 6, v{t[1]}
s_movk_i32 s{sT[3]}, 0x78
v_bfe_u32 v{t[2]}, s{sT[3]}, v{t[2]}, 2
v_xor_b32 v{t[2]}, v{t[2]}, v{vQ}
v_lshl_add_u32 v{t[2]}, v{t[0]}, 2, v{t[2]}
v_lshlrev_b32 v{t[2]}, 4, v{t[2]}
v_lshl_add_u32 v{t[2]}, v{t[1]}, 7, v{t[2]}
v_lshl_add_u32 v{vBA[0]}, v{t[0]}, 10, v{t[2]}
v_xor_b32 v{vBA[1]}, 64, v{vBA[0]}
v_add_u32 v{vBA[2]}, 51200, v{vBA[0]}
v_add_u32 v{vBA[3]}, 51200, v{vBA[1]}
v_mul_u32_u24 v{vAS}, 144, v{t[1]}
v_lshl_add_u32 v{vAS}, v{t[0]}, 2, v{vAS}
v_lshl_add_u32 v{vAS}, v{vQ}, 3, v{vAS}
s_lshl_b32 s{sT[0]}, s{sW}, 5
v_add_u32 v{vAS}, s{sT[0]}, v{vAS}
v_and_b32 v{t[0]}, 6, v{vI}
v_xor_b32 v{t[0]}, v{t[0]}, v{vQ}
v_lshlrev_b32 v{t[0]}, 4, v{t[0]}
v_lshl_add_u32 v{t[0]}, v{vI}, 7, v{t[0]}
v_add_u32 v{vAR}, s{sXm}, v{t[0]}
v_xor_b32 v{vAR2}, 64, v{vAR}""")


def misc_setup():
    t = vT
    A(f'''s_lshr_b32 s{sCs}, s{sX[8]}, 1
s_add_u32 s{sCs}, s{sCs}, 512
s_lshr_b32 s{sT[2]}, s{sMem}, 3
s_lshl_b32 s{sR64}, s{sR128}, 1
s_add_u32 s{sR64}, s{sR64}, s{sT[2]}
s_and_b32 s{sS8}, s{sMem}, 7
s_lshl_b32 s{sFW}, s{sR128}, 10
s_lshl_b32 s{sT[1]}, s{sMem}, 4
s_add_u32 s{sFW}, s{sFW}, s{sT[1]}
s_lshl_b32 s{sT[1]}, s{sW}, 2
s_add_u32 s{sFW}, s{sFW}, s{sT[1]}
s_lshl_b32 s{sFK}, s{sG}, 11
s_add_u32 s{sFK}, s{sFK}, s{sT[1]}
s_lshl_b32 s{sT[1]}, s{sJ}, 4
s_add_u32 s{sFK}, s{sFK}, s{sT[1]}
s_lshl_b32 s{sAgg}, s{sMem}, 5
s_add_u32 s{sAgg}, s{sAgg}, s{sR128}
s_mul_i32 s{sAgg}, s{sAgg}, 640
s_add_u32 s{sAgg}, s{sAgg}, {WS_AGG}
s_cmp_eq_u32 s{sW}, 0
s_cselect_b32 s{sPub}, -1, 0
s_cselect_b32 s{sPub + 1}, 0xff, 0''')
    A(f's_lshl_b32 s{sT[0]}, s{sXs}, 1\ns_mul_i32 s{sT[1]}, s{sMem}, 5')
    for j in range(5):
        A(f"""s_add_u32 s{sT[2]}, s{sT[1]}, {j}
s_lshr_b32 s{sT[3]}, s{sT[2]}, 2
s_lshl_b32 s{sT[3]}, s{sT[3]}, 11
s_and_b32 s{sT[2]}, s{sT[2]}, 3
s_lshl_b32 s{sT[2]}, s{sT[2]}, 8
s_add_u32 s{sT[2]}, s{sT[2]}, s{sT[3]}
s_add_u32 s{sH[j]}, s{sT[2]}, s{sT[0]}""")
    tw, tr, ts = vU[0], vU[1], vU[2]
    A(f'''s_mul_i32 s{sT[0]}, s{sW}, 1280
s_add_u32 s{sT[0]}, s{sT[0]}, {L_TR}
v_mul_u32_u24 v{t[0]}, 80, v{vI}
v_lshl_add_u32 v{t[0]}, v{vQ}, 4, v{t[0]}
v_add_u32 v{tw}, s{sT[0]}, v{t[0]}
v_bfe_u32 v{t[1]}, v{vL}, 2, 2
v_mul_u32_u24 v{t[1]}, 160, v{t[1]}
v_and_b32 v{t[2]}, 3, v{vL}
v_lshl_add_u32 v{t[1]}, v{t[2]}, 4, v{t[1]}
v_lshrrev_b32 v{t[2]}, 1, v{vQ}
v_mul_u32_u24 v{t[3]}, 80, v{t[2]}
v_lshlrev_b32 v{t[2]}, 10, v{t[2]}
v_add3_u32 v{t[1]}, v{t[1]}, v{t[3]}, s{sT[0]}
v_and_b32 v{t[3]}, 1, v{vQ}
v_lshl_add_u32 v{tr}, v{t[3]}, 3, v{t[1]}
v_mul_u32_u24 v{t[3]}, 40960, v{t[3]}
v_lshl_add_u32 v{t[2]}, v{vI}, 4, v{t[2]}
v_add_u32 v{ts}, v{t[2]}, v{t[3]}''')
    park('tw', tw), park('tr', tr), park('ts', ts), park('bd', vBd), park('bd2', vBd2)
    A(f'''v_lshrrev_b32 v{t[0]}, 2, v{vI}
v_mul_u32_u24 v{t[0]}, 5120, v{t[0]}
v_and_b32 v{t[1]}, 3, v{vI}
v_lshl_add_u32 v{t[0]}, v{t[1]}, 4, v{t[0]}
v_lshl_add_u32 v{vUA}, v{vQ}, 6, v{t[0]}''')


def weave(items, extra, first, every):
    extra = list(extra)
    for i, it in enumerate(lines(items)):
        run(it)
        if extra and i >= first and (i - first) % every == 0:
            run(extra.pop(0))
    run(extra)


class Roles:
    def __init__(self, n):
        self.c = [VM() for _ in range(n)]

    def __call__(self, text, name=None):
        A(text)
        for c in self.c:
            c.n += 1
            if name is not None:
                c.t[name] = c.n

    def wait(self, *names):
        k = min(c.n - max(c.t[x] for x in names) for c in self.c)
        A(f's_waitcnt vmcnt({min(k, 63)})')
        for c in self.c:
            c.done = max(c.done, c.n - min(k, 63))

    def each(self, fns):
        lj = A.label('join')
        todo = [w for w in range(4) if fns[w]]
        labs = {w: A.label(f'w{w}') for w in todo}
        for w in todo:
            A.cond[labs[w]] = lambda c, w=w: c['w'] == w
            if w != todo[0] or len(todo) < 4:
                A(f's_cmp_eq_u32 s{sW}, {w}\ns_cbranch_scc1 {labs[w]}')
        if len(todo) < 4:
            A(f's_branch {lj}')
        for w in todo:
            A(f'{labs[w]}:')
            fns[w](self.c[w])
            if w != todo[-1]:
                A(f's_branch {lj}')
        A(f'{lj}:')

    def merged(self):
        for c in self.c[1:]:
            self.c[0].merge(c)
        return self.c[0]


def startup():
    t = vT
    R = Roles(4)

    def bs(vm, g0, g1):
        return [lambda g=g, j=j: b_dma(vm, g, j) for g in range(g0, g1) for j in (0, 2, 4)]

    def head1(vm):
        A(f"""v_min_u32 v{t[0]}, 39, v{vL}
s_mul_i32 s{sT[0]}, s{sMem}, 80
v_lshl_add_u32 v{t[3]}, v{t[0]}, 1, s{sT[0]}""")
        vm(f'global_load_ushort v{PAR}, v{t[3]}, {s2(P_LRE)}{NTP}')
        vm(f'global_load_ushort v{PAR + 1}, v{t[3]}, {s2(P_LIM)}{NTP}')
        vm(f'global_load_ushort v{PAR + 2}, v{t[3]}, {s2(P_LDT)}{NTP}', 'par')

    def head0(vm):
        kv_loads0(vm)
        srd(R_WS, P_WS, WS_SIZE)
        agg = f's_lshl_b32 $, s{sMem}, 5\ns_add_u32 $, $, s{sR128}\ns_mul_i32 $, $, 640\ns_add_u32 $, $, '
        n = touch_addr(t[0], [SEG_ST, SEG_F, (9, f's_lshl_b32 $, s{sG}, 11\ns_add_u32 $, $, {WS_FK}'),
                              (5, agg + str(WS_AGG + 16 * 640)), (5, agg + str(WS_AGG + 16 * 640 + AGG_L)),
                              (5, f's_mul_i32 $, s{sMem}, 640\ns_add_u32 $, $, {WS_CS}'),
                              (1, f's_lshl_b32 $, s{sG}, 7\ns_add_u32 $, $, {WS_FY}'),
                              (1, f's_lshl_b32 $, s{sG}, 7\ns_add_u32 $, $, {WS_FB}')])
        A(f's_mov_b32 exec_hi, {(1 << n - 32) - 1}')
        vm(f'buffer_load_dword a250, v{t[0]}, {W}, 0 offen{NTT}')
        A('s_mov_b32 exec_hi, -1')

    def head3(vm):
        srd(R_X, P_X, 2621440)
        A(f'''s_lshl_b32 s{sT[0]}, s{sR128}, 4
s_add_u32 s{sT[0]}, s{sT[0]}, s{sMem}
s_mul_i32 s{sT[0]}, s{sT[0]}, 10240''')
        vm.t['kv'] = 0
        for z in range(10):
            vm(f'buffer_load_dwordx4 {v4(XP + 4 * z)}, v{vR}, {s4(R_X)}, s{sT[0]} offen offset:{z * 128}{NTX}', 'xp')
    def args():
        A('s_waitcnt lgkmcnt(0)')
        if OPT['stamps']:
            A(f'v_writelane_b32 v{vStamp}, s{sSt}, 62')
            stamp('start')
    R.each([lambda vm, f=f: (args(), f(vm)) for f in (head0, lambda vm: (head1(vm), kv_loads1(vm)), kv_loads2, head3)])
    A(f's_load_dword s{sTag}, {s2(P_WS)}, 0')

    def scalars():
        A(f'''s_lshl_b32 s{sC0}, s{sX[8]}, 1
s_lshl_b32 s{sT[0]}, s{sC0}, 1
s_load_dword s{sD[0]}, {s2(P_SD)}, s{sT[0]}
s_and_b32 s{sT[0]}, s{sX[8]}, 0xfffffffc
s_add_u32 s{sT[0]}, s{sT[0]}, 1024
s_load_dword s{sD[1]}, {s2(P_SD)}, s{sT[0]}
s_getreg_b32 s{sXcc}, hwreg(HW_REG_XCC_ID, 0, 4)
s_mov_b32 s{sBud}, {OPT['budget']}
s_mov_b32 s{sOnes}, 0x3f803f80''')
    with Cap() as cc:
        consts()
    cc.lines.remove('s_waitcnt lgkmcnt(0)')

    def tag():
        A(f"""s_waitcnt lgkmcnt(0)
s_lshr_b32 s{sTag}, s{sTag}, 4
s_mul_i32 s{sTag}, s{sTag}, 0x19660d
s_add_u32 s{sTag}, s{sTag}, 0x3c6ef35f
s_lshl_b32 s{sTag}, s{sTag}, 4""")

    def more():
        with Cap() as c:
            A(f'''s_lshl_b32 s{sX[6]}, s{sR128}, 11
s_lshl_b32 s{sT[0]}, s{sW}, 9
s_add_u32 s{sX[6]}, s{sX[6]}, s{sT[0]}
s_add_u32 s{sX[6]}, s{sX[6]}, {WS_RS}
v_and_b32 v{vRS}, 7, v{vI}
v_lshlrev_b32 v{vRS}, 4, v{vRS}
v_lshl_add_u32 v{vRS}, v{vQ}, 7, v{vRS}
s_mul_i32 s{sX[7]}, s{sMem}, 640
s_add_u32 s{sX[7]}, s{sX[7]}, {WS_CS}
v_lshlrev_b32 v{vRS + 1}, 3, v{vL}
v_lshlrev_b32 v{vRS + 2}, 3, v{vI}
v_and_b32 v{vFA}, 31, v{vL}
v_lshlrev_b32 v{vFA}, 4, v{vFA}
s_lshl_b32 s{sX[1]}, s{sS8}, 11
s_add_u32 s{sX[1]}, s{sX[1]}, {WS_FS}
v_and_b32 v{vFXa}, 31, v{vL}
v_lshlrev_b32 v{vFXa}, 2, v{vFXa}
s_lshl_b32 s{sX[2]}, s{sG}, 11
s_add_u32 s{sX[2]}, s{sX[2]}, {WS_FX}''')
            run(conv_setup())
            g2_setup(0)
            run(y_setup())
            for i, r in enumerate(vCA + vCB + YREG + G2REG):
                A(f'v_accvgpr_write_b32 a{A_CV + i}, v{r}')
            z_addr()
            touch_addr(vT[0], [SEG_ST, SEG_F])
            park('rt', vT[0])
        return c.lines

    def w0(vm):
        A(f'v_mov_b32 v{XS}, 0')
        fx_store('')
        fx_store(' offset:128 sc1')
        vm.n += 2
        A(f'''v_mov_b32 v{XS + 1}, 0
v_mov_b32 v{XS + 2}, s{sTag}
v_mov_b32 v{XS + 3}, s{sTag}
s_add_u32 s{sT[0]}, s{sAgg}, {AGG_L}
s_mov_b32 exec_hi, 0xff''')
        vm(f'buffer_store_dwordx4 {v4(XS)}, v{vL16}, {W}, s{sAgg} offen sc1')
        vm(f'buffer_store_dwordx4 {v4(XS)}, v{vL16}, {W}, s{sT[0]} offen sc1')
        A('s_mov_b32 exec_hi, -1')

    def w1(vm):
        vm.wait('par')
        run(cc.lines)
    blocks = dict(A=dma_addr, S=scalars, M=misc_setup, C=lambda: c_loads(R), O=lambda: run(more()), T=tag,
                  G=lambda: (gemm_addr(), kv_addr(), k_addr()), K=lambda: run(k_loads(R)),
                  R=lambda: R.each([None, w1, w0, lambda vm: run(stats_work(vm))]))
    for b in OPT['order'].split(','):
        if b[0] == 'B':
            run(bs(R, int(b[1]), int(b[1]) + 1))
        elif b[0] == 'X':
            x_dma(R, int(b[1]))
        elif b[0] == '@':
            stamp(b[1:])
        else:
            blocks[b]()
    R.wait('kv')
    A('s_waitcnt lgkmcnt(0)\ns_barrier')
    stamp('kv_land')
    R(f'buffer_load_dword v{vFX}, v{vFXa}, {W}, s{sX[2]} offen sc1', 'fx')
    lg = LG()
    crd, fix = const_reads(lg)
    run(crd)
    va, vb = R.c[0], R.c[3]
    va.merge(R.c[1]), va.merge(R.c[2])
    l3, lj = A.label('w3'), A.label('join')
    A.cond[l3] = lambda c: c['w'] == 3
    A(f's_cmp_eq_u32 s{sW}, 3\ns_cbranch_scc1 {l3}')
    def nxt(v):
        out = []
        for b in OPT['post'].split(','):
            if b[0] == 'L':
                if v is vb:
                    out += [lambda g=int(b[1]): b_all(v, g)]
                else:
                    v.t['b', int(b[1])] = 0
                continue
            if b[0] == 'C':
                out.append(lambda: c_loads(v))
                continue
            out += bs(v, int(b[1]), int(b[1]) + 1) if b[0] == 'B' else [lambda b=b: x_dma(v, int(b[1]))] if b[0] == 'X' else \
                [atom(k_loads(v)[:3]), atom(k_loads(v)[3:5]), atom(k_loads(v)[5:])]
        return out
    la = copy.deepcopy(lg)
    rd, it = kv_work(va, la)
    run(rd)
    weave(it[:-1], nxt(va), OPT['wv0'], OPT['wv'])
    mode_check(va)
    run(it[-1])
    A(f's_branch {lj}\n{l3}:')
    A(f'''s_lshl_b32 s{sT[0]}, s{sMem}, 3
s_and_b32 s{sT[1]}, s{sR128}, 7
s_add_u32 s{sT[0]}, s{sT[0]}, s{sT[1]}
s_mul_i32 s{sT[0]}, s{sT[0]}, 6400
s_mov_b32 exec_hi, 0xff''')
    for z in range(1 if OPT['dbg'] & 8 else 10):
        vb(f'buffer_load_dwordx4 {v4(XP + 4 * z)}, v{vR}, {s4(R_T0)}, s{sT[0]} offen offset:{z * 128}', 'xp')
    A('s_mov_b32 exec_hi, -1')
    run(nxt(vb))
    mode_check(vb)
    run(colsum_work(vb))
    A(f'{lj}:\ns_waitcnt lgkmcnt(0)')
    va.merge(vb)
    vm = va
    stamp('kv_st')
    run(fix[1:])
    if OPT['cfs'] < 0:
        run(cf_work(vm, LG()))
    stamp('cf_st')
    vm.wait(('x', 1), ('b', 0))
    stamp('land')
    return vm


class G1:
    def __init__(self, layer, vm):
        self.layer, self.vm, self.lg, self.side = layer, vm, LG(), Side()
        self.order = list(range(20)) if layer == 0 else list(range(4, 20)) + list(range(4))

    def rd(self, s, j):
        k = self.order[s]
        idx = (k >> 1) * 5 + j
        a, off = (vBA[k & 1], idx * 2048) if idx < 25 else (vBA[2 + (k & 1)], (idx - 25) * 2048)
        self.lg(f'ds_read_b128 {v4(BF + 20 * (s & 1) + 4 * j)}, v{a} offset:{off}', ('B', s, j))

    def rda(self, s, m):
        self.lg(f'ds_read_b128 {v4(AF + 8 * (s & 1) + 4 * m)}, v{vAR2 if s & 1 else vAR} '
                f'offset:{((2 * (s >> 1) + m) % 7) * 8192}', ('A', s, m))

    def ld(self, f):
        s, m = divmod(f, 2)
        s = self.order[s]
        if s == 16:
            A(f's_add_u32 s{sL[m]}, s{sL[m]}, 4096')
        if s == 0:
            A(f's_sub_u32 s{sL[m]}, s{sL[m]}, 4096')
        self.vm(f'buffer_load_dwordx4 {v4(RING + 4 * (f % NR))}, v{vUA}, {W}, s{sL[m]} offen '
                f'offset:{(s % 16) * 256} sc1', ('u', f))

    def step(self, s):
        vm, lg, layer = self.vm, self.lg, self.layer
        if (s in (0, 4, 8, 12, 16) and OPT['stamps'] != 3) or (OPT['stamps'] == 4 and layer == 0):
            stamp(f'.s{s}_{layer}', 2)
        if layer == 0:
            need = [('x', s + 2)] if s & 1 and s < 19 else []
            if (s + 1) % 4 == 0 and s < 19:
                vm.wait(('b', (s + 1) // 4), *need)
                A('s_barrier')
            elif need:
                vm.wait(*need)
        else:
            vm.wait(('u', 2 * s + 1))
            if s == 15:
                A('s_barrier')
        for j in range(5):
            if not OPT['gw'] or s == 0:
                lg.wait(('B', s, j))
            elif j in (0, 3):
                lg.wait(('B', s, 2 if j == 0 else 4))
            if layer == 0 and s == 19 and j == 0:
                A('s_barrier')
            for m in range(2):
                d = ACC + 8 * j + 4 * m
                c = '0' if s == 0 else v4(d)
                a = RING + 4 * ((2 * s + m) % NR) if layer else AF + 8 * (s & 1) + 4 * m
                A(f'v_mfma_f32_16x16x32_bf16 {v4(d)}, {v4(a)}, {v4(BF + 20 * (s & 1) + 4 * j)}, {c}')
                if m == 0 and s < 19:
                    if j == 0 and layer == 0:
                        self.rda(s + 1, 0)
                        self.rda(s + 1, 1)
                    self.rd(s + 1, j)
                if layer == 0 or m == 1:
                    k = 2 * j + m
                    self.side.run(s, 10 - k if layer == 0 else 5 - j)


c_issued = [0]


def c_load(vm):
    i = c_issued[0]
    c_issued[0] += 1
    if i and i % 4 == 0:
        A(f's_add_u32 s{sL[0]}, s{sL[0]}, 4096')
    vm(f'buffer_load_dwordx4 {a4(4 * i)}, v{vL16}, {W}, s{sL[0]} offen offset:{(i % 4) * 1024} sc1', 'cf')


def k_addr():
    A(f'''s_lshl_b32 s{sT[0]}, s{sC0}, 12
s_lshl_b32 s{sT[1]}, s{sW}, 10
s_add_u32 s{sX[3]}, s{sT[0]}, s{sT[1]}
s_add_u32 s{sX[4]}, s{sX[3]}, 4096
s_lshl_b32 s{sX[5]}, s{sCs}, 12
s_add_u32 s{sX[5]}, s{sX[5]}, s{sT[1]}
s_add_u32 s{sT[1]}, s{sT[1]}, {L_K + 32}
v_add_u32 v{vKO}, s{sT[1]}, v{vL16}
v_lshrrev_b32 v{vT[0]}, 1, v{vL}
v_mul_u32_u24 v{vT[0]}, 4160, v{vT[0]}
v_and_b32 v{vT[1]}, 1, v{vL}
v_lshl_add_u32 v{vT[0]}, v{vT[1]}, 4, v{vT[0]}
v_add_u32 v{vKP}, {L_K}, v{vT[0]}''')


def k_loads(vm):
    it = [lambda: srd(R_T1, P_SSK, 2621440)]
    for sl in range(3):
        if not OPT['dbg'] & 2:
            it.append(lambda sl=sl: vm(f'buffer_load_dwordx4 {v4(KA + 4 * sl)}, v{vL16}, {s4(R_T1)}, s{sX[3 + sl]} offen{NTK}'))
        it.append(lambda sl=sl: vm(f'buffer_load_dwordx4 {v4(KB + 4 * sl)}, v{vL16}, {s4(R_T1)}, s{sX[3 + sl]} offen offset:4{NTK}', 'K'))
    return it


def k_work(vm):
    it = [lambda: vm.wait('K')]
    for sl in range(3):
        it[-1] = atom(it[-1], f'ds_write_b128 v{vKO}, {v4(KA + 4 * sl)} offset:{sl * 8320}')
        it.append(atom([f'v_alignbit_b32 v{KB + 4 * sl + i}, v{KB + 4 * sl + i}, v{KA + 4 * sl + i}, 16' for i in range(4)],
                       f'ds_write_b128 v{vKO}, {v4(KB + 4 * sl)} offset:{sl * 8320 + 4160}'))

    def pads():
        A(f's_cmp_lg_u32 s{sW}, 0')
        with A.skip_if('s_cbranch_scc1', lambda c: c['w'] != 0):
            run([f'v_mov_b32 v{216 + i}, 0' for i in range(4)])
            A(f's_mov_b64 exec, 0xfff\nds_write_b128 v{vKP}, {v4(216)}\ns_mov_b64 exec, 1')
            for sl in range(3):
                A(f'ds_write_b16 v{vKP}, v{KA + 4 * sl} offset:{sl * 8320 + 4160 + 30}')
            A('s_mov_b64 exec, -1')
    return it + [pads]


def front(vm):
    g = G1(0, vm)
    lg, S = g.lg, g.side
    A('s_barrier')
    g.rda(0, 0), g.rda(0, 1)
    for j in range(5):
        g.rd(0, j)
    for p in (2, 3):
        if ('x', p) not in vm.t:
            x_dma(vm, p)
    if OPT['cfs'] >= 0:
        S.spread(OPT['cfs'], OPT['cfper'], cf_work(vm, lg))
    if 'K' not in vm.t:
        S.spread(OPT['kls'], 3, k_loads(vm))
    S.add(0, lambda: x_dma(vm, 4), lambda: x_dma(vm, 5))
    for p in range(6, 20):
        S.add(max(1, p - 6), lambda p=p: x_dma(vm, p))
    for gi in range(1, 5):
        if ('b', gi) in vm.t:
            continue
        for n, j in enumerate((0, 2, 4)):
            S.add(OPT[f'b{gi}s'] + n // 2, lambda gi=gi, j=j: b_dma(vm, gi, j))
    S.add(OPT['kvf'], atom(lambda: vm.wait('kvst'), lambda: flag_store(f's{sKf}', True, vm, sKm)))
    S.add(OPT['cff'], atom(lambda: vm.wait('cfst'), f's_add_u32 s{sT[0]}, s{sFK}, {WS_FS}',
                           lambda: flag_store(f's{sT[0]}', False, vm)))
    fk = f'buffer_load_dwordx2 {v2(vFP)}, v{vFA}, {W}, s{sX[0]} offen sc1'
    S.add(OPT['fsp'], atom(f's_and_b32 s{sX[0]}, s{sFK}, 0x3800', f's_add_u32 s{sX[0]}, s{sX[0]}, {WS_FK}', lambda: vm(fk, 'fk')))

    def fetch():
        vm.wait('fk')
        check_tags([vFP, vFP + 1], fk)
        for sl in range(2):
            A(f's_lshl_b32 s{sT[0]}, s{sG}, 16\ns_add_u32 s{sT[0]}, s{sT[0]}, s{sX[3 + sl]}\n'
              f's_add_u32 s{sT[0]}, s{sT[0]}, {WS_KV}\ns_lshl_b32 m0, s{sW}, 10')
            if sl:
                A(f's_add_u32 m0, m0, {L_KV + sl * 4608}')
            vm(f'buffer_load_dwordx4 v{vL16}, {W}, s{sT[0]} offen sc1 lds', 'kvT')
    assert OPT['fsc'] >= 7
    S.add(OPT['fsc'], fetch)
    S.add(8, f'''v_lshrrev_b32 v{vT[0]}, 5, v{vL}
v_mul_u32_u24 v{vT[0]}, {4608 - 512}, v{vT[0]}
v_add_u32 v{vT[0]}, v{vT[0]}, v{vL16}''', [f'v_mov_b32 v{216 + i}, 0' for i in range(4)],
          lambda: lg(f'ds_write_b128 v{vT[0]}, {v4(216)} offset:{L_KV + 4096}'),
          lambda: lg(f'ds_write_b128 v{vT[0]}, {v4(216)} offset:{L_KV + 4608 + 4096}'))
    rsl = [f'buffer_load_dwordx3 {v3(RSL)}, v{vRS}, {W}, s{sX[6]} offen sc1',
           f'buffer_load_dwordx2 {v2(RSL + 4)}, v{vRS + 1}, {W}, s{sX[7]} offen sc1',
           f'buffer_load_dwordx2 {v2(RSL + 6)}, v{vRS + 2}, {W}, s{sX[7]} offen offset:512 sc1']
    fc = f'buffer_load_dwordx4 {v4(vFP)}, v{vFA}, {W}, s{sX[1]} offen sc1'
    S.add(OPT['late'], [lambda t=t: vm(t, 'rs') for t in rsl])
    S.add(OPT['csp'], lambda: vm(fc, 'fc'))

    def ccheck():
        vm.wait('fc')
        check_tags([vFP + i for i in range(4)], fc)
        A(f'''s_mul_i32 s{sL[0]}, s{sS8}, 200
s_mul_i32 s{sT[0]}, s{sW}, 50
s_add_u32 s{sL[0]}, s{sL[0]}, s{sT[0]}
s_lshl_b32 s{sL[0]}, s{sL[0]}, 10
s_add_u32 s{sL[0]}, s{sL[0]}, {WS_CF}''')
    marks_gather(S, vm, -1)
    S.add(OPT['csc'], ccheck)
    for i in range(OPT['cl0']):
        S.add(OPT['csc'] + i * (20 - OPT['csc']) // OPT['cl0'], lambda: c_load(vm))

    def rscheck():
        vm.wait('rs')
        check_tags([RSL + 2, RSL + 2, RSL + 5, RSL + 7], rsl)
    S.q.setdefault(OPT['rsc'], []).insert(0, rscheck)
    c = lambda j: CSL + j
    S.add(19, f'''v_mov_b32 v{c(0)}, v{RSL + 4}
v_mov_b32 v{c(1)}, v{RSL + 4}
v_mov_b32 v{c(4)}, v{RSL + 6}
v_permlane16_swap_b32 v{c(0)}, v{c(1)}
v_mov_b32 v{c(2)}, v{c(0)}
v_mov_b32 v{c(3)}, v{c(1)}
v_permlane32_swap_b32 v{c(0)}, v{c(2)}
v_permlane32_swap_b32 v{c(1)}, v{c(3)}''')
    S.add(19, [f'v_mov_b32_dpp v{MM + t}, v{RSL} row_newbcast:{t} {DPPM}\n'
               f'v_mov_b32_dpp v{RR + t}, v{RSL + 1} row_newbcast:{t} {DPPM}' for t in range(8)])
    for s in range(20):
        g.step(s)
    assert not g.side.left()
    stamp('g1_0')
    kw = k_work(vm)
    kw += [f'ds_write_b64 v{vZ + 4}, {v2(RSL)}'] + [[]] * (6 - len(kw))
    scan_1(0, [[k] + [lambda: c_load(vm)] * (i < OPT['cs1']) for i, k in enumerate(kw)], lambda: vm.wait('kvT'))
    lg = LG()
    h1, h2 = horner(0, vm, lg)
    weave(h1, [lambda: c_load(vm)] * OPT['cb'], 10, 6)
    for i, r in enumerate(vCA + vCB):
        A(f'v_accvgpr_read_b32 v{r}, a{A_CV + i}')
    for k in range(2):
        for i in range(1, 4):
            A(f'v_add_u32 v{vCA[k] + i}, {1024 * i}, v{vCA[k]}')
    return vm, lg


MAS, PP, AGL, GR = 90, 244, 88, 88
LT = [128, 144, 160, 176, 104]
PK = [120, 124]
vTW, vTR, vTS = 254, 255, 47


def scan_1(layer, extra=[], last=None):
    b = lambda j, ta: ACC + 8 * j + ta
    if layer == 0:
        for j in range(5):
            sel = 'op_sel:[0,1,0] op_sel_hi:[1,1,1]' if j & 1 else 'op_sel_hi:[1,0,1]'
            for p in range(4):
                d = ACC + 8 * j + 2 * p
                A(f'v_pk_fma_f32 {v2(d)}, {v2(MM + 2 * p)}, {v2(CSL + (j & ~1))}, {v2(d)} {sel} '
                  f'neg_lo:[1,0,0] neg_hi:[1,0,0]')
        for j in range(5):
            for p in range(4):
                d = ACC + 8 * j + 2 * p
                A(f'v_pk_mul_f32 {v2(d)}, {v2(d)}, {v2(RR + 2 * p)}')
    extra = list(extra)
    for ta in range(1, 8):
        if extra:
            run(extra.pop(0))
        for j in range(5):
            A(f'v_fmac_f32 v{b(j, ta)}, v{LR + j}, v{b(j, ta - 1)}')
        for j in range(5):
            A(f'v_fmac_f32_dpp v{b(j, ta)}, v{b(j, ta - 1)}, v{LS + j} {SWP}')
    A(f'''v_add_u32 v{vT[0]}, {L_AS}, v{vAS}
v_min_u32 v{vT[1]}, 39, v{vL}
v_mul_u32_u24 v{vU[2]}, 48, v{vT[1]}
s_lshl_b32 s{sT[0]}, s{sW}, 3
s_add_u32 s{sT[0]}, s{sT[0]}, {L_G}
v_add_u32 v{vU[2]}, s{sT[0]}, v{vU[2]}''')
    for j in range(5):
        A(f'ds_write_b32 v{vT[0]}, v{b(j, 7)} offset:{j * 1152}')
    A(f'''v_mul_u32_u24 v{vU[4]}, 144, v{vT[1]}
v_add_u32 v{vU[4]}, {L_AS}, v{vU[4]}''')
    if last:
        last()
    A('s_waitcnt lgkmcnt(0)\ns_barrier')
    stamp(f'scan1_{layer}')


def horner(layer, vm, lg):
    it = [lambda i=i: lg(f'ds_read_b128 {v4(MAS + 4 * i)}, v{vU[4]} offset:{16 * i}', ('as', i)) for i in range(8)]
    for s in range(1, 16):
        if s == 1 or s % 2 == 0:
            it.append(lambda s=s: lg.wait(('as', s // 2)))
        it += cmul(MAS + 2 * s, MAS + 2 * s - 2, mL8, MAS + 2 * s)

    def pub():
        A(f'''v_mov_b32 v{MAS + 32}, s{sTag}
v_mov_b32 v{MAS + 33}, s{sTag}
s_add_u32 s{sT[0]}, s{sAgg}, {layer * AGG_L + 16 * 640}
s_mov_b64 exec, {s2(sPub)}''')
        A(f'buffer_store_dwordx4 {v4(MAS + 30)}, v{vL16}, {W}, s{sT[0]} offen sc1')
        A('s_mov_b64 exec, -1')
        stamp(f'agg_pub_{layer}')
    it.append(pub)
    first, it = it, []
    def own():
        A(f'v_subrev_u32 v{vU[4]}, {L_AS - L_P}, v{vU[4]}\nv_mov_b32 v{MAS - 2}, 0\nv_mov_b32 v{MAS - 1}, 0\ns_mov_b32 exec_hi, 0xff')
        Roles(4).each([lambda c, w=w: [A(f'ds_write_b128 v{vU[4]}, {v4(MAS - 2 + 8 * w + 4 * i)} offset:{32 * w + 16 * i}')
                                       for i in range(2)] for w in range(4)])
        A('s_mov_b32 exec_hi, -1')
        lg.n += 2
    it.append(own)
    it.append(f'v_add_u32 v{vU[4]}, {L_P}, v{vAS}')
    it += [lambda j=j: lg(f'ds_read_b32 v{PP + 2 * j}, v{vU[4]} offset:{j * 1152}', 'pp') for j in range(5)]
    it += [f'v_and_b32 v{vU[1]}, 1, v{vI}', f'v_cvt_f32_u32 v{vU[1]}, v{vU[1]}', f'v_fma_f32 v{vU[1]}, 2.0, v{vU[1]}, -1.0']
    it.append(lambda: lg.wait('pp'))
    it += [f'v_mul_f32_dpp v{PP + 2 * j + 1}, v{PP + 2 * j}, v{vU[1]} {SWP}' for j in range(5)]
    return first, it


def agg_ld(layer):
    pre = f'''s_lshl_b32 s{sX[3]}, s{sW}, 2
s_sub_u32 s{sX[3]}, 12, s{sX[3]}
s_mul_i32 s{sX[3]}, s{sX[3]}, 640
s_add_u32 s{sX[3]}, s{sX[3]}, s{sAgg}
s_add_u32 s{sX[3]}, s{sX[3]}, {layer * AGG_L}
v_min_u32 v{vU[0]}, 39, v{vL}
v_lshlrev_b32 v{vU[0]}, 4, v{vU[0]}'''
    return pre, [f'buffer_load_dwordx3 {v3(AGL + 4 * z)}, v{vU[0]}, {W}, s{sX[3]} offen offset:{z * 640} sc1' for z in range(4)]


def scan_2(layer, vm, ld, hook={}, defer=False, extra=[]):
    lg = LG()
    t = vT
    A(f'''v_lshrrev_b32 v{t[0]}, 1, v{vI}
v_mul_u32_u24 v{t[1]}, 80, v{t[0]}
v_add_u32 v{t[1]}, {L_L}, v{t[1]}
v_mul_u32_u24 v{t[0]}, 48, v{t[0]}
v_add_u32 v{t[0]}, {L_G}, v{t[0]}''')
    def lrd(j):
        for c in range(4):
            lg(f'ds_read_b128 {v4(LT[j] + 4 * c)}, v{t[1]} offset:{j * 640 + 16 * c}', ('L', j))
    early = 5 if layer else OPT['lpre']
    for j in range(early):
        lrd(j)
    A('\n'.join([unpark('tw', vTW), unpark('tr', vTR), unpark('ts', vTS)]))
    vm.wait('agg')
    check_tags([AGL + 2, AGL + 6, AGL + 10, AGL + 14], ld, x=t[3], y=t[4], inline=2)
    stamp(f'agg_in_{layer}')
    for z in range(1, 4):
        A('\n'.join(cmul(AGL + 4 * z, AGL + 4 * z - 4, mL128, AGL + 4 * z)))
    A('\n'.join(cmul(AGL, AGL + 12, mW)))
    if extra:
        extra.pop()()
    A(f'''s_mov_b32 exec_hi, 0xff
ds_write_b64 v{vU[2]}, {v2(AGL)}
s_mov_b32 exec_hi, -1''')
    stamp(f'.fold{layer}', 5 - 2 * (OPT['stamps'] == 3))
    A('s_waitcnt lgkmcnt(0)')
    stamp(f'.added{layer}', 5 - 2 * (OPT['stamps'] == 3))
    A('s_barrier')
    stamp(f'.gbar{layer}', 5 - 2 * (OPT['stamps'] == 3))
    lg = LG()
    GQ = [88, 96, 224, 88, 96]

    def grd(j):
        lg(f'ds_read_b128 {v4(GQ[j])}, v{t[0]} offset:{j * 384}')
        lg(f'ds_read_b128 {v4(GQ[j] + 4)}, v{t[0]} offset:{j * 384 + 16}', ('G', j))
    for j in range(3):
        grd(j)
    for j in range(early, min(early + 1, 5)):
        lrd(j)
    hb = HB[layer]

    def more():
        if extra:
            extra.pop()()
    more()

    def xy(j):
        lg.wait(('G', j))
        q = GQ[j]
        p, a, gq = v2(PP + 2 * j), v2(VA + 2 * j), v2(q)
        A(f'v_pk_add_f32 {gq}, {gq}, {v2(q + 2)}\nv_pk_add_f32 {v2(q + 4)}, {v2(q + 4)}, {v2(q + 6)}\n'
          f'v_pk_add_f32 {gq}, {gq}, {v2(q + 4)}')
        A(f'v_pk_fma_f32 {p}, {a}, {gq}, {p} op_sel:[0,0,0] op_sel_hi:[1,0,1]')
        A(f'v_pk_fma_f32 {p}, {a}, {gq}, {p} op_sel:[1,1,0] op_sel_hi:[0,1,1] neg_hi:[1,0,0]')
        if j < 2:
            grd(j + 3)

    def upd(j):
        p = v2(PP + 2 * j)
        if early + 1 + j < 5:
            lrd(early + 1 + j)
        if j >= early:
            lg.wait(('L', j))
        for k in range(4):
            d = v2(ACC + 8 * j + 2 * k)
            A(f'v_pk_fma_f32 {d}, {v2(LT[j] + 2 * k)}, {p}, {d} op_sel:[0,0,0] op_sel_hi:[1,0,1]')
        more()
        for k in range(4):
            d = v2(ACC + 8 * j + 2 * k)
            A(f'v_pk_fma_f32 {d}, {v2(LT[j] + 8 + 2 * k)}, {p}, {d} op_sel:[0,1,0] op_sel_hi:[1,1,1]')
        pk = PK[j & 1]
        for d in range(4):
            A(f'v_cvt_pk_bf16_f32 v{pk + d}, v{ACC + 8 * j + 2 * d}, v{ACC + 8 * j + 2 * d + 1}')
        lg(f'ds_write_b128 v{vTW}, {v4(pk)}')
        more()
        lg(f'ds_read_b64_tr_b16 {v2(ACC + 8 * j + 4)}, v{vTR}')
        lg(f'ds_read_b64_tr_b16 {v2(ACC + 8 * j + 6)}, v{vTR} offset:640', ('T', j))

    def st(j, vm=vm):
        A(f's_add_u32 s{sT[1]}, s{sH[j]}, {hb}')
        lg.wait(('T', j))
        mode_stores([f'buffer_store_dwordx4 {v4(ACC + 8 * j + 4)}, v{vTS}, {WH}, s{sT[1]} offen'], through=OPT['thr'] & (2 << layer))
        vm.n += 1
        vm.t['hst'] = vm.n
    xy(0), xy(1)
    lag = OPT['lag']
    for j in range(5 + lag):
        stamp(f'.j{j}_{layer}', 5 - 2 * (OPT['stamps'] == 3))
        if j < 5:
            upd(j)
        if j < 3:
            xy(j + 2)
        if j >= lag and j - lag < (defer or 5):
            st(j - lag)
        if j in hook:
            hook[j](lg)
    if defer:
        lg.wait(('T', 4))
        stamp(f'h_st_{layer}')
        return st
    stamp(f'h_st_{layer}')


def h_flag(layer, vm):
    vm.wait('hst')
    A(f's_add_u32 s{sT[2]}, s{sFW}, {WS_FH + layer * 256}')
    flag_store(f's{sT[2]}', True, vm)
    stamp(f'h_flag_{layer}')


CA, CB, CX, CY = 128, 160, 192, 104
vCA, vCB = [232, 236], [240, 241]
JSET = [[1, 2, 4, 7], [0, 3, 5, 6]]


def conv_setup():
    t = vT
    return lines(f"""v_add_u32 v{t[0]}, 1, v{vI}
v_and_b32 v{t[1]}, 1, v{t[0]}
v_mul_u32_u24 v{t[1]}, 4160, v{t[1]}
v_lshrrev_b32 v{t[0]}, 1, v{t[0]}
v_lshl_add_u32 v{t[1]}, v{t[0]}, 2, v{t[1]}
v_lshl_add_u32 v{t[1]}, v{vQ}, 4, v{t[1]}
v_sub_u32 v{t[0]}, 15, v{vI}
v_lshlrev_b32 v{t[0]}, 5, v{t[0]}
v_lshl_add_u32 v{t[0]}, v{vQ}, 4, v{t[0]}
s_lshr_b32 s{sT[0]}, s{sW}, 1
s_and_b32 s{sT[1]}, s{sW}, 1
s_lshl_b32 s{sT[1]}, s{sT[1]}, 8
s_mul_i32 s{sT[2]}, s{sT[0]}, 8320
s_add_u32 s{sT[2]}, s{sT[2]}, s{sT[1]}
s_add_u32 s{sT[2]}, s{sT[2]}, {L_K}
v_add_u32 v{vCA[0]}, s{sT[2]}, v{t[1]}
s_mul_i32 s{sT[2]}, s{sT[0]}, 4608
s_add_u32 s{sT[2]}, s{sT[2]}, s{sT[1]}
v_add_u32 v{vCB[0]}, s{sT[2]}, v{t[0]}
s_lshl_b32 s{sT[1]}, s{sW}, 7
s_add_u32 s{sT[2]}, s{sT[1]}, {L_K + 2 * 8320}
v_add_u32 v{vCA[1]}, s{sT[2]}, v{t[1]}
s_add_u32 s{sT[2]}, s{sT[1]}, {L_KV + 2 * 4608}
v_add_u32 v{vCB[1]}, s{sT[2]}, v{t[0]}""")


class Conv:
    def __init__(self, units, lg, cont=False):
        self.lg, self.seq, self.todo, self.issued = lg, [], [], set()
        free, seen = {}, ({CX + 4 * j for j in range(8)} if cont else set())
        for k, u, js, acc in units:
            first, last = {}, {}
            for a in range(max(js), -1, -1):
                for j in js:
                    if j < a:
                        continue
                    for f in (('A', a), ('B', j - a)):
                        first.setdefault(f, len(self.seq))
                        last[f] = len(self.seq)
                    d = acc + 4 * js.index(j)
                    self.seq.append((k, u, a, j - a, d, d in seen))
                    seen.add(d)
            for f, need in first.items():
                self.todo.append((max(free.get(f, -1), need - OPT['look']), need, (k, u, f)))
            free.update(last)
        self.todo.sort(key=lambda x: x[:2])

    def rd(self, key):
        k, u, (kind, x) = key
        self.issued.add(key)
        if kind == 'A':
            o = 16 * u + 128 * (x & 1)
            self.lg(f'ds_read2_b32 {v2(CA + 4 * x)}, v{vCA[k] + (x >> 1)} offset0:{o} offset1:{o + 1}')
            self.lg(f'ds_read2_b32 {v2(CA + 4 * x + 2)}, v{vCA[k] + (x >> 1)} offset0:{o + 2} offset1:{o + 3}', key)
        else:
            self.lg(f'ds_read_b128 {v4(CB + 4 * x)}, v{vCB[k]} offset:{64 * u + 512 * (7 - x)}', key)

    def emit(self, n0, n1, side):
        todo = self.todo
        while n0 == 0 and todo[0][0] < 0 and todo[0][1] < 4:
            self.rd(todo.pop(0)[2])
        for gn in range(n0, n1):
            k, u, a, b, d, chain = self.seq[gn]
            self.lg.wait((k, u, ('A', a)), (k, u, ('B', b)))
            A(f'v_mfma_f32_16x16x32_bf16 {v4(d)}, {v4(CA + 4 * a)}, {v4(CB + 4 * b)}, {v4(d) if chain else 0}')
            did = 0
            while todo and todo[0][0] <= gn and (did < 1 or todo[0][1] <= gn + 3):
                self.rd(todo.pop(0)[2])
                did += 1
            if not did or gn % 4 == 3:
                side.run(gn // 4, 4 - gn % 4)

    def force(self, keys):
        for it in [x for x in self.todo if x[2] in keys]:
            self.todo.remove(it)
            self.rd(it[2])


vFY = 120
KVM, KVX = 88, 96
YREG = [246, 247, 248, 249, 250, 251, 252]
yS, yKm, yKx, yPw, yPr, ySr, ySw = YREG


def y_setup():
    t = vT
    return lines(f"""s_lshr_b32 s{sT[1]}, s{sW}, 1
s_add_u32 s{sT[0]}, s{sC0}, s{sT[1]}
s_bitcmp1_b32 s{sT[0]}, 0
s_cselect_b32 s{sT[2]}, 16, 0
s_lshr_b32 s{sD[0]}, s{sD[0]}, s{sT[2]}
s_and_b32 s{sDm[0]}, s{sD[0]}, 0xffff
s_lshl_b32 s{sDm[1]}, s{sD[0]}, 16
s_bitcmp1_b32 s{sCs}, 0
s_cselect_b32 s{sT[2]}, 16, 0
s_lshr_b32 s{sD[1]}, s{sD[1]}, s{sT[2]}
s_and_b32 s{sDm[2]}, s{sD[1]}, 0xffff
s_lshl_b32 s{sDm[3]}, s{sD[1]}, 16
s_lshl_b32 s{sYO[0]}, s{sT[0]}, 12
s_and_b32 s{sT[0]}, s{sW}, 1
s_lshl_b32 s{sT[0]}, s{sT[0]}, 11
s_add_u32 s{sYO[0]}, s{sYO[0]}, s{sT[0]}
s_add_u32 s{sYO[0]}, s{sYO[0]}, {WS_Y}
s_mul_i32 s{sT[1]}, s{sT[1]}, 4608
s_sub_u32 s{sT[1]}, s{sT[1]}, s{sT[0]}
s_add_u32 s{sT[1]}, s{sT[1]}, {L_KV + 4088 - 3 * 512}
v_lshlrev_b32 v{yS}, 5, v{vI}
v_lshl_add_u32 v{yS}, v{vQ}, 3, v{yS}
v_sub_u32 v{yKm}, s{sT[1]}, v{yS}
s_bitcmp1_b32 s{sJ}, 0
s_movk_i32 s{sT[0]}, 0x7421
s_cselect_b32 s{sT[0]}, 0x6530, s{sT[0]}
s_lshl_b32 s{sT[1]}, s{sW}, 2
s_lshr_b32 s{sT[0]}, s{sT[0]}, s{sT[1]}
s_and_b32 s{sT[0]}, s{sT[0]}, 7
s_lshl_b32 s{sT[0]}, s{sT[0]}, 9
s_lshl_b32 s{sYO[1]}, s{sCs}, 12
s_add_u32 s{sYO[1]}, s{sYO[1]}, s{sT[0]}
s_add_u32 s{sYO[1]}, s{sYO[1]}, {WS_Y}
s_sub_u32 s{sT[0]}, {L_KV + 2 * 4608 + 4088}, s{sT[0]}
v_sub_u32 v{yKx}, s{sT[0]}, v{yS}
s_lshl_b32 s{sT[0]}, s{sW}, 12
s_add_u32 s{sT[1]}, s{sT[0]}, {L_PM}
v_add_u32 v{ySw}, s{sT[1]}, v{vL16}
s_add_u32 s{sT[1]}, s{sT[0]}, {L_PS}
v_add_u32 v{yPw}, s{sT[1]}, v{vL16}
s_xor_b32 s{sT[1]}, s{sT[0]}, 4096
s_add_u32 s{sT[1]}, s{sT[1]}, {L_PS}
v_add_u32 v{yPr}, s{sT[1]}, v{vL16}
s_lshl_b32 s{sT[1]}, s{sW}, 10
s_add_u32 s{sT[1]}, s{sT[1]}, {L_PM}
v_add_u32 v{ySr}, s{sT[1]}, v{vL16}""")


def y_dterm(acc, kv, dlo, dhi):
    sel = [(1, dhi), (1, dlo), (0, dhi), (0, dlo)]
    return [f'v_dot2_f32_bf16 v{acc + r}, v{kv + sel[r][0]}, s{sel[r][1]}, v{acc + r}' for r in range(4)]


def marks_gather(S, vm, sg):
    if OPT['clr'] * sg > 0:
        marks(S, vm, abs(OPT['clr']), 228 if sg > 0 else 216)
    if OPT['fbp'] * sg > 0:
        gather(S, vm, abs(OPT['fbp']), abs(OPT['fbc']), 124 if sg > 0 else 220)


def marks(S, vm, at, r):
    S.add(at, [f'v_mov_b32 v{r + i}, -1' for i in range(4)], f'v_lshlrev_b32 v{vT[0]}, 3, v{vL}',
          lambda: vm(f'buffer_store_dwordx2 {v2(r)}, v{vT[0]}, {W}, s{sYO[1]} offen sc1'))
    for i in range(2):
        S.add(at + 1 + i, lambda i=i: vm(f'buffer_store_dwordx4 {v4(r)}, v{vL16}, {W}, s{sYO[0]} offen offset:{1024 * i} sc1'))


def gather(S, vm, at, at2, r):
    fb = f'buffer_load_dwordx4 {v4(r)}, v{vL16}, {W}, s{sKs} offen sc1'
    S.add(at, atom(f's_mov_b32 s{sKs}, {WS_FB}', lambda: vm(fb, 'fb')))

    def go():
        vm.wait('fb')
        check_tags([r + i for i in range(4)], fb)
        A(f'''s_lshl_b32 s{sT[1]}, s{sW}, 6
s_sub_u32 s{sT[0]}, 255, s{sT[1]}
v_sub_u32 v{vT[0]}, s{sT[0]}, v{vL}
v_lshlrev_b32 v{vT[0]}, 11, v{vT[0]}
s_and_b32 s{sT[0]}, s{sCs}, 3
s_lshl_b32 s{sT[0]}, s{sT[0]}, 9
s_bfe_u32 s{sT[2]}, s{sCs}, 0x50002
s_lshl_b32 s{sT[2]}, s{sT[2]}, 4
s_add_u32 s{sT[0]}, s{sT[0]}, s{sT[2]}
s_add_u32 s{sT[0]}, s{sT[0]}, {WS_KB}
s_lshl_b32 s{sT[1]}, s{sT[1]}, 4
s_add_u32 m0, s{sT[1]}, {L_KV + 2 * 4608}''')
        vm(f'buffer_load_dwordx4 v{vT[0]}, {W}, s{sT[0]} offen sc1 lds')
    S.add(at2, go)


def conv(vm, lg):
    S = Side()
    e = S.spread(0, 3, horner(0, vm, lg)[1])
    left = 50 - c_issued[0] - OPT['cl2'] - OPT['cs2']
    for i in range(left):
        S.add(i * OPT['clend'] // left, lambda: c_load(vm))
    S.spread(0, 1, z_loads(vm))
    S.add(0, lambda: lg(f'ds_read_b64 a[{A_ZU}:{A_ZU + 1}], v{vZ + 3}'))
    S.spread(14, 2, [lambda: vm.wait('xt')]
             + [lambda m=m: lg(f'ds_read_b64 a[{A_X + 2 * m}:{A_X + 2 * m + 1}], v{vXT} offset:{32 * m}') for m in range(5)]
             + [lambda m=m: lg(f'ds_read_b64 a[{A_DSK + 2 * m}:{A_DSK + 2 * m + 1}], v{vXT + 1} offset:{2560 + 32 * m}')
                for m in range(5)])
    marks_gather(S, vm, 1)
    S.add(1, lambda: srd(R_T0, P_OUT, 5242880))
    if OPT['tch']:
        S.add(OPT['tch'], retouch())
    if OPT['prefetch'] & 2:
        S.add(10, atom(code_touch()))
    pre, ld = agg_ld(0)
    S.spread(OPT['aggl'] - 2, 4, pre)
    for z in range(4):
        S.add(OPT['aggl'] + z // 2, lambda z=z: vm(ld[z], 'agg'))
    nu = OPT['nu']
    cv = Conv([(0, u, list(range(8)), CX) for u in range(nu)], lg)
    cv.emit(0, 36 * nu, S)
    assert not cv.todo and not S.left(), S.left()
    stamp('conv')
    def glue1(lg):
        for i, r in enumerate(YREG + G2REG):
            A(f'v_accvgpr_read_b32 v{r}, a{A_CV + 4 + i}')
        for j in range(4):
            lg(f'ds_read_b64 {v2(KVM + 2 * j)}, v{yKm} offset:{512 * (3 - j)}')
        lg(f'ds_read_b64 {v2(KVX)}, v{yKx}', 'kvm')

    def glue2():
        A(f's_bitcmp0_b32 s{sW}, 0')
        with A.skip_if('s_cbranch_scc1', lambda c: not c['w'] & 1):
            for i in range(16):
                A(f'v_swap_b32 v{CX + i}, v{CX + 16 + i}')

    def yflag(lg):
        A(f'''s_lshl_b32 s{sT[0]}, s{sC0}, 1
s_add_u32 s{sT[0]}, s{sT[0]}, {WS_FY}
v_mov_b32 v{vT[4]}, s{sTag}
s_and_b32 exec_lo, s{sPub}, 1
s_mov_b32 exec_hi, 0
buffer_store_dword v{vT[4]}, off, {W}, s{sT[0]} sc1
s_mov_b64 exec, -1''')
    fy = f'buffer_load_dwordx4 {v4(vFY)}, v{vL16}, {W}, s{sX[5]} offen sc1'
    extra = [lambda: c_load(vm)] * OPT['cs2']
    st = scan_2(0, vm, ld, {0: yflag, 4: glue1}, OPT['defer'], extra)
    assert not extra
    lt, lj = A.label('type'), A.label('join')
    A.cond[lt] = lambda c: c['ty']
    A(f's_bitcmp1_b32 s{sJ}, 0\ns_cbranch_scc1 {lt}')
    p0 = PREV[0]
    for ty in range(2):
        v, lg, S = copy.deepcopy(vm), LG(), Side()
        PREV[0], c_issued[0] = p0, 50 - OPT['cl2']
        o = 9 * (4 - nu)
        for j in range(OPT['defer'], 5):
            S.add((j - OPT['defer']) * OPT['stp'] // 2, lambda j=j: st(j, v))
        for i in range(OPT['cl2']):
            S.add(OPT['cl2s'] + i * (o + 8 - OPT['cl2s']) // OPT['cl2'], lambda: c_load(v))
        S.add(OPT['hfl'], lambda: h_flag(0, v))
        S.add(o + 1, glue2)
        for j in range(4):
            S.add(o + 2 + j, lambda j=j: lg(f'ds_write_b128 v{yPw}, {v4(CX + 16 + 4 * j)} offset:{1024 * j}'))
        S.add(o + 4, 's_barrier')
        S.add(o + OPT['yp0'], atom(f's_mov_b32 s{sX[5]}, {WS_FY}', lambda: v(fy, 'fy')))
        S.add(o + OPT['hp'], lambda: v(H_POLL, 'fh'))
        cv = Conv([(0, u, list(range(8)), CX) for u in range(nu, 4)] + [(1, u, JSET[ty], CY) for u in range(2)], lg, True)
        cv.emit(0, len(cv.seq), S)
        assert not S.left()
        if ty == 0:
            A(f's_branch {lj}\n{lt}:')
    A(f'{lj}:')
    stamp('conv2')
    PM, PS = 208, 224
    for x in range(4):
        A(f'ds_write_b128 v{ySw}, {v4(CY + 4 * x)} offset:{1024 * x}')
    for j in range(4):
        run(y_dterm(CX + 4 * j, KVM + 2 * j, sDm[0], sDm[1]))
    v.wait('fy')
    check_tags([vFY + i for i in range(4)], fy)
    g2 = G2(0, v)
    g2.begin()
    A('s_waitcnt lgkmcnt(0)\ns_barrier')
    for j in range(4):
        A(f'ds_read_b128 {v4(PM + 4 * j)}, v{yPr} offset:{1024 * j}')
    for x in range(4):
        A(f'ds_read_b128 {v4(PS + 4 * x)}, v{ySr} offset:{4096 * x}')
    it = ['s_waitcnt lgkmcnt(0)']
    for j in range(4):
        p = PM + 4 * j
        it += [f'v_add_f32 v{p + i}, v{CX + 4 * j + i}, v{p + i}' for i in range(4)]
        it += [f'v_cvt_pk_bf16_f32 v{p}, v{p}, v{p + 1}', f'v_cvt_pk_bf16_f32 v{p + 1}, v{p + 2}, v{p + 3}',
               lambda j=j, p=p: v(f'buffer_store_dwordx2 {v2(p)}, v{yS}, {W}, s{sYO[0]} offen offset:{512 * j} sc1')]
    it += y_dterm(PS, KVX, sDm[2], sDm[3])
    it += [f'v_add_f32 v{PS + 4 + i}, v{PS + 4 + i}, v{PS + 8 + i}' for i in range(4)]
    it += [f'v_add_f32 v{PS + i}, v{PS + i}, v{PS + 12 + i}' for i in range(4)]
    it += [f'v_add_f32 v{PS + i}, v{PS + i}, v{PS + 4 + i}' for i in range(4)]
    it += [f'v_cvt_pk_bf16_f32 v{PS}, v{PS}, v{PS + 1}', f'v_cvt_pk_bf16_f32 v{PS + 1}, v{PS + 2}, v{PS + 3}',
           lambda: v(f'buffer_store_dwordx2 {v2(PS)}, v{yS}, {W}, s{sYO[1]} offen sc1')]
    g2.ytail = it
    stamp('y_rd')
    return g2


YF, ZR = BF, BF + 20
P0, P1 = 192, 212
XT, DP, ZU, F1, F2 = 98, 100, 102, 88, 92
vHA, vYD, vYR = 244, 252, 253
G2REG = vU[2:5] + [vHA]
YP = 232


def g2_setup(layer):
    hb = HB[layer]
    A(f's_mul_i32 s{sT[1]}, s{sR64}, 163840\ns_mul_i32 s{sT[2]}, s{sW}, 10240\n'
      f's_add_u32 s{sT[1]}, s{sT[1]}, s{sT[2]}\ns_add_u32 s{sT[1]}, s{sT[1]}, {hb}')
    for z in range(4):
        A(f's_add_u32 s{sT[2]}, s{sW}, {z + 1}\ns_and_b32 s{sT[2]}, s{sT[2]}, 3\n'
          f's_mul_i32 s{sT[3]}, s{sT[2]}, 40960\ns_add_u32 s{sDS[z]}, s{sT[3]}, s{sT[1]}')
        if z < 2:
            A(f's_mul_i32 s{sT[3]}, s{sT[2]}, 10240\ns_add_u32 s{sT[3]}, s{sT[3]}, {L_RED + z * 5120}\n'
              f'v_add_u32 v{vU[2 + z]}, s{sT[3]}, v{vL16}')
        if z == 2:
            A(f's_mul_i32 s{sT[3]}, s{sT[2]}, 5120\nv_add_u32 v{vU[2 + z]}, s{sT[3]}, v{vL16}')
    A(f'''s_lshl_b32 s{sZ[3]}, s{sR128}, 10
s_lshl_b32 s{sT[1]}, s{sW}, 6
s_add_u32 s{sZ[3]}, s{sZ[3]}, s{sT[1]}
s_and_b32 s{sT[1]}, s{sR64}, 1
s_lshl_b32 s{sT[1]}, s{sT[1]}, 3
s_add_u32 s{sZ[3]}, s{sZ[3]}, s{sT[1]}
s_add_u32 s{sZ[3]}, s{sZ[3]}, {WS_FH + layer * 256}
v_and_b32 v{vHA}, 3, v{vL}
v_lshlrev_b32 v{vHA}, 4, v{vHA}''')


def z_addr():
    t = vT
    A(f'''s_lshl_b32 s{sT[0]}, s{sR64}, 6
s_lshr_b32 s{sT[1]}, s{sW}, 1
s_lshl_b32 s{sT[1]}, s{sT[1]}, 5
s_add_u32 s{sT[0]}, s{sT[0]}, s{sT[1]}
s_and_b32 s{sT[1]}, s{sW}, 1
s_lshl_b32 s{sT[1]}, s{sT[1]}, 2
s_add_u32 s{sT[0]}, s{sT[0]}, s{sT[1]}
s_mul_i32 s{sZ[0]}, s{sT[0]}, 1280
s_mul_i32 s{sT[1]}, s{sS8}, 160
s_add_u32 s{sZ[0]}, s{sZ[0]}, s{sT[1]}
s_lshl_b32 s{sZ[2]}, s{sW}, 12
s_add_u32 s{sZ[2]}, s{sZ[2]}, {L_PS}''')
    for z in range(3):
        A(f'''v_add_u32 v{t[0]}, {64 * z}, v{vL}
v_mul_u32_u24 v{t[1]}, 205, v{t[0]}
v_lshrrev_b32 v{t[1]}, 11, v{t[1]}
v_lshrrev_b32 v{t[2]}, 2, v{t[1]}
v_mul_u32_u24 v{t[1]}, 1120, v{t[1]}
v_mul_u32_u24 v{t[2]}, 5120, v{t[2]}
v_lshlrev_b32 v{t[0]}, 4, v{t[0]}
v_add3_u32 v{vZ + z}, v{t[0]}, v{t[1]}, v{t[2]}''')
    A(f'''s_and_b32 s{sT[0]}, s{sR64}, 1
s_lshl_b32 s{sT[0]}, s{sT[0]}, 2
s_add_u32 s{sT[0]}, s{sT[0]}, s{sW}
s_lshr_b32 s{sT[1]}, s{sT[0]}, 1
s_lshl_b32 s{sT[1]}, s{sT[1]}, 8
s_and_b32 s{sT[0]}, s{sT[0]}, 1
s_lshl_b32 s{sT[0]}, s{sT[0]}, 5
s_add_u32 s{sT[0]}, s{sT[0]}, s{sT[1]}
s_add_u32 s{sT[0]}, s{sT[0]}, {L_RS}
v_lshrrev_b32 v{t[1]}, 2, v{vI}
v_lshlrev_b32 v{t[1]}, 6, v{t[1]}
v_and_b32 v{t[2]}, 3, v{vI}
v_lshl_add_u32 v{t[1]}, v{t[2]}, 3, v{t[1]}
v_add_u32 v{vZ + 3}, s{sT[0]}, v{t[1]}
v_and_b32 v{t[2]}, 7, v{vI}
v_lshlrev_b32 v{t[2]}, 3, v{t[2]}
v_lshl_add_u32 v{t[2]}, v{vQ}, 6, v{t[2]}
s_lshl_b32 s{sT[0]}, s{sW}, 8
s_add_u32 s{sT[0]}, s{sT[0]}, {L_RS}
v_add_u32 v{vZ + 4}, s{sT[0]}, v{t[2]}
v_lshl_add_u32 v{vXT + 1}, v{vQ}, 3, s{sZ[2]}
v_mul_u32_u24 v{vXT}, 160, v{vI}
v_lshl_add_u32 v{vXT}, v{vQ}, 3, v{vXT}
v_add_u32 v{vXT}, s{sZ[2]}, v{vXT}''')


def z_loads(vm):
    it = []
    for z in range(3):
        it.append(atom(f's_add_u32 m0, s{sZ[2]}, {1024 * z}', 's_mov_b32 exec_hi, 0' if z == 2 else [],
                       lambda z=z: vm(f'buffer_load_dwordx4 v{vZ + z}, {s4(R_X)}, s{sZ[0]} offen lds', 'xt'),
                       's_mov_b32 exec_hi, -1' if z == 2 else []))
    it.append(atom(lambda: srd(R_T1, P_DSK, 1280), f's_add_u32 m0, s{sZ[2]}, 2560', f's_mul_i32 s{sT[0]}, s{sS8}, 160',
                   's_mov_b64 exec, 0x3ff',
                   lambda: vm(f'buffer_load_dwordx4 v{vL16}, {s4(R_T1)}, s{sT[0]} offen lds', 'xt'), 's_mov_b64 exec, -1'))
    return it


def z_work():
    b = [f'v_accvgpr_read_b32 v{ZU}, a{A_ZU}', f'v_accvgpr_read_b32 v{ZU + 1}, a{A_ZU + 1}', f'v_mul_f32 v{ZU}, v{ZU}, v{ZU + 1}']
    for m in range(5):
        for i in range(2):
            b += [f'v_accvgpr_read_b32 v{XT + i}, a{A_X + 2 * m + i}', f'v_accvgpr_read_b32 v{DP + i}, a{A_DSK + 2 * m + i}']
        b += unpack(ZR + 4 * m, XT, 2) + unpack(F2, DP, 2)
        for i in range(4):
            b.append(f'v_fma_f32 v{F1 + i}, v{ZR + 4 * m + i}, v{ZU + 1}, -v{ZU}')
        for i in range(4):
            b.append(f'v_fmac_f32 v{ZR + 4 * m + i}, v{F1 + i}, v{F2 + i}')
    return b


H_POLL = f'buffer_load_dwordx2 {v2(vU[0])}, v{vHA}, {W}, s{sZ[3]} offen sc1'


class G2:
    def __init__(self, layer, vm):
        self.layer, self.vm, self.nxt = layer, vm, 0

    def ld(self):
        f = self.nxt
        self.nxt += 1
        z, k = divmod(f, 10)
        if k and k % 4 == 0:
            A(f's_add_u32 s{sDS[z]}, s{sDS[z]}, 4096')
        self.vm(f'buffer_load_dwordx4 {v4(RING + 4 * (f % NR))}, v{vL16}, {WH}, s{sDS[z]} offen '
                f'offset:{(k % 4) * 1024} sc1', ('h', f))

    def begin(self):
        if self.layer == 0:
            self.vm.wait('fh')
        check_tags([vU[0], vU[1]], H_POLL, inline=2 - self.layer)
        self.vm.done = self.vm.n if self.layer else self.vm.done
        stamp(f'h_ready_{self.layer}')
        for f in range(OPT['n0'] if self.layer else OPT['n00']):
            self.ld()


def gemm2(g2):
    layer, vm, ld = g2.layer, g2.vm, g2.ld
    side, lg = Side(), LG()
    n0 = g2.nxt
    last = 0
    for f in range(n0, 40):
        last = max(f - n0, f - NR + 1)
        side.add(last, ld)
    last += 1
    hooks = []
    ze = late = 0
    if layer == 0:
        e = side.spread(OPT['ys'], OPT['yper'], g2.ytail)
        side.add(e, 's_barrier')
        assert e < 11
        late = OPT['zlate']
        zw = z_work()
        if late:
            n = (OPT['rb'] - e) * OPT['zper']
            side.spread(e, OPT['zper'], zw[:n])
            assert side.spread(30, OPT['zper'] + 1, zw[n:]) <= 40
        else:
            ze = side.spread(e, OPT['zper'], zw)
            assert ze <= OPT['rb'] - 4 * OPT['r3'], ze
        side.add(OPT['yp'] + 1, f'''s_mul_i32 s{sX[6]}, s{sS8}, 327680
s_lshl_b32 s{sT[0]}, s{sR64}, 7
s_add_u32 s{sX[6]}, s{sX[6]}, s{sT[0]}
s_lshr_b32 s{sT[0]}, s{sW}, 1
s_mul_i32 s{sX[7]}, s{sT[0]}, 5120
s_add_u32 s{sX[7]}, s{sX[7]}, {L_Y}
s_lshl_b32 s{sT[0]}, s{sT[0]}, 6
s_add_u32 s{sX[6]}, s{sX[6]}, s{sT[0]}
s_add_u32 s{sX[6]}, s{sX[6]}, {WS_Y}
s_mov_b32 s{sX[5]}, s{sX[6]}''')
        side.add(OPT['yp'] + 2, f'''s_and_b32 s{sT[0]}, s{sW}, 1
s_mul_i32 s{sT[1]}, s{sT[0]}, {3 * 65536}
s_add_u32 s{sX[6]}, s{sX[6]}, s{sT[1]}
s_mul_i32 s{sT[1]}, s{sT[0]}, 3072
s_add_u32 s{sX[8]}, s{sX[7]}, s{sT[1]}
s_lshl_b32 s{sT[0]}, s{sT[0]}, 3
s_add_u32 s{sX[7]}, s{sX[7]}, s{sT[0]}
v_lshrrev_b32 v{vYD}, 2, v{vL}
v_lshlrev_b32 v{vYD}, 12, v{vYD}
v_and_b32 v{vT[1]}, 3, v{vL}
v_lshl_add_u32 v{vYD}, v{vT[1]}, 4, v{vYD}''')

        def ydma(m):
            A(f's_add_u32 m0, s{sX[8]}, {m * 1024}')
            if m == 2:
                A(f's_bitcmp1_b32 s{sW}, 0\ns_cselect_b32 s{sX[6]}, {OOB}, s{sX[6]}\ns_cselect_b32 m0, {LDS_SIZE}, m0')
            vm(f'buffer_load_dwordx4 v{vYD}, {W}, s{sX[6]} offen sc1 lds', 'yd')
            A(f's_add_u32 s{sX[6]}, s{sX[6]}, 65536')
        side.add(last, *[lambda m=m: ydma(m) for m in range(3)])
        side.add(last + 1, f'v_add_u32 v{vYR}, s{sX[7]}, v{vL16}')
    else:
        side.spread(1, 3, [f'v_accvgpr_read_b32 v{ZR + i}, a{A_Z + i}' for i in range(20)] + unpack(YF, YP, 10))
        if OPT['wb'] & 2:
            side.add(OPT['wbs'] or last + 1, wbl2)
    rd = lambda p, a, off, nm: [lambda i=i: lg(f'ds_read_b128 {v4(p + 4 * i)}, v{a} offset:{off + 1024 * i}', nm) for i in range(5)]
    add = lambda d, s: [f'v_add_f32 v{d + i}, v{d + i}, v{s + i}' for i in range(20)]
    side.add(OPT['ra'] - 1, f's_mul_i32 s{sT[3]}, s{sW}, 10240\ns_add_u32 s{sT[3]}, s{sT[3]}, {L_RED}\n'
                            f'v_add_u32 v{vU[5]}, s{sT[3]}, v{vL16}')
    bar = lambda: (lg.wait('pw'), A('s_barrier'))
    wp = OPT['wper']
    for z in range(3):
        pa = ACC + 20 * (z & 1)
        for m in range(5):
            side.q.setdefault(10 * z + 11 + m // wp, []).insert(
                m % wp, lambda z=z, m=m, pa=pa: lg(f'ds_write_b128 v{vU[2 + z]}, {v4(pa + 4 * m)} offset:{1024 * m}', 'pw'))
    if OPT['r3']:
        e = side.spread(OPT['ra'], 5, [bar] + rd(P0, vU[5], 0, 'p0'))
        side.spread(max(e, ze), 5, [lambda: lg.wait('p0')] + add(ZR, P0))
        e = side.spread(OPT['rb'], OPT['rper'], [bar] + rd(P1, vU[5], 5120, 'p1') + [lambda: lg.wait('p1')] + add(ZR, P1))
    else:
        e = side.spread(OPT['rb'], OPT['rper'], [bar] + rd(P0, vU[5], 0, 'p0') + rd(P1, vU[5], 5120, 'p1') + [lambda: lg.wait('p0')]
                        + (add(ZR, P0) + [lambda: lg.wait('p1')] + add(ZR, P1) if not late else
                           [lambda: lg.wait('p1')] + add(P1, P0)))
    assert e <= 30, e
    side.add(OPT['rc'] - 1, f's_mul_i32 s{sT[3]}, s{sW}, 5120\nv_add_u32 v{vU[5]}, s{sT[3]}, v{vL16}')
    side.spread(OPT['rc'], 6, [atom(lambda: vm.wait(('h', 39)), bar) if layer else bar] + rd(P0, vU[5], 0, 'p2'))
    for z in range(4):
        if OPT['stamps'] < 3:
            stamp(f'.z{z}_{layer}', 2)
        acc = ACC + 20 * (z & 1)
        for k in range(10):
            f = 10 * z + k
            vm.wait(('h', f))
            for h in list(hooks):
                if vm.t[h[0]] <= vm.done:
                    hooks.remove(h)
                    h[1]()
            for m in range(5):
                d = acc + 4 * m
                c = v4(d) if k else ('0' if z < 3 else v4((P1 if late else ZR) + 4 * m))
                A(f'v_mfma_f32_16x16x32_bf16 {v4(d)}, {a4(4 * (5 * k + m))}, {v4(RING + 4 * (f % NR))}, {c}')
                side.run(f, 5 - m)
    assert not side.left() and not hooks
    stamp(f'g2_{layer}')
    return lg


def allreduce_q(r, t):
    for op in ('v_permlane32_swap_b32', 'v_permlane16_swap_b32'):
        A(f'''v_mov_b32 v{t}, v{r}
v_mov_b32 v{t + 1}, v{r + 1}
{op} v{r}, v{t}
{op} v{r + 1}, v{t + 1}
v_add_f32 v{r}, v{r}, v{t}
v_add_f32 v{r + 1}, v{r + 1}, v{t + 1}''')


def epilogue(layer, vm, lg):
    a = ACC + 20
    S = 212
    G = 228
    inv = 0x3acccccd
    A(f'''s_lshl_b32 s{sT[0]}, s{sR64}, 15
s_lshl_b32 s{sT[1]}, s{sW}, {9 - layer}
s_add_u32 s{sT[0]}, s{sT[0]}, s{sT[1]}
s_add_u32 s{sT[0]}, s{sT[0]}, {WS_ST + layer * 2048}
s_lshl_b32 s{sT[1]}, s{sS8}, 12
s_add_u32 s{sT[1]}, s{sT[1]}, s{sT[0]}''')
    lg.wait('p2')
    if layer == 0:
        vm.wait('yd')
        A('s_barrier')
        stamp('y_in')
        lg = LG()
        yrd = [f'ds_read_b64_tr_b16 {v2(YP + 2 * m)}, v{vYR} offset:{m * 1024}' for m in range(5)]
        for m in range(5):
            lg(yrd[m], ('y', m))
        A(unpark('bd', 244) + '\n' + unpark('bd2', 245))
    for i in range(10 * (layer == 0 and OPT['zlate'])):
        A(f'v_pk_add_f32 {v2(P0 + 2 * i)}, {v2(P0 + 2 * i)}, {v2(ZR + 2 * i)}')
    for i in range(10):
        A(f'v_pk_add_f32 {v2(a + 2 * i)}, {v2(a + 2 * i)}, {v2(P0 + 2 * i)}')
    A(f'v_pk_add_f32 {v2(S)}, {v2(a)}, {v2(a + 2)}\nv_pk_mul_f32 {v2(S + 2)}, {v2(a)}, {v2(a)}')
    for i in range(1, 10):
        if i >= 2:
            A(f'v_pk_add_f32 {v2(S)}, {v2(S)}, {v2(a + 2 * i)}')
        A(f'v_pk_fma_f32 {v2(S + 2)}, {v2(a + 2 * i)}, {v2(a + 2 * i)}, {v2(S + 2)}')
    if layer == 0:
        AY = 160
        lg.wait(('y', 4))
        x = vT[4]
        chk = [f'v_pk_max_u16 v{x}, v{YP}, v{YP + 1}'] + [f'v_pk_max_u16 v{x}, v{x}, v{YP + i}' for i in range(2, 10)]
        chk += [f'v_lshlrev_b32 v{vT[3]}, 16, v{x}', f'v_max_u32 v{x}, v{x}, v{vT[3]}', f'v_cmp_le_u32 vcc, 0xffff0000, v{x}']
        lab, done = A.label('again'), A.label('ok')
        A.cond[lab] = lambda c: False
        A('\n'.join(chk) + f'\ns_cbranch_vccnz {lab}\n{done}:')
        slow = [f'{lab}:', f's_sub_u32 s{sBud}, s{sBud}, 1', f's_cmp_gt_i32 s{sBud}, 0', f's_cbranch_scc0 {done}',
                f's_mul_i32 s{sX[8]}, s{sW}, 10240', f's_add_u32 s{sX[8]}, s{sX[8]}, {L_RED + 5120}',
                f's_and_b32 s{sX[6]}, s{sW}, 1', f's_lshl_b32 s{sX[6]}, s{sX[6]}, 3', f's_add_u32 s{sX[6]}, s{sX[6]}, s{sX[8]}',
                f'v_add_u32 v{vYR}, s{sX[6]}, v{vL16}']
        for m in range(5):
            slow += [f's_add_u32 m0, s{sX[8]}, {m * 1024}', f's_add_u32 s{sX[6]}, s{sX[5]}, {m * 65536}',
                     f'buffer_load_dwordx4 v{vYD}, {W}, s{sX[6]} offen sc1 lds']
        TAIL.append('\n'.join(slow + ['s_waitcnt vmcnt(0)'] + yrd + ['s_waitcnt lgkmcnt(0)'] + chk
                              + [f's_cbranch_vccnz {lab}', f's_branch {done}']))
        stamp('y_ok')
        for m in range(5):
            lg.wait(('y', m))
            A('\n'.join(unpack(YF + 4 * m, YP + 2 * m, 2)))
            if m in (0, 2, 4):
                b_dma(vm, 0, m, 244, 245)
            for i in (2 * m, 2 * m + 1):
                x, y, ay = v2(a + 2 * i), v2(YF + 2 * i), v2(AY + 2 * i)
                A(f'v_pk_mul_f32 {ay}, {x}, {y}')
                if i == 0:
                    A(f'v_pk_mul_f32 {v2(S + 14)}, {y}, {y}\nv_pk_mul_f32 {v2(S + 6)}, {ay}, {x}\n'
                      f'v_pk_mul_f32 {v2(S + 8)}, {ay}, {ay}\nv_pk_mul_f32 {v2(S + 10)}, {ay}, {y}')
                else:
                    p2 = v2(AY) if i == 1 else v2(S + 4)
                    p6 = v2(YF) if i == 1 else v2(S + 12)
                    A(f'v_pk_add_f32 {v2(S + 12)}, {p6}, {y}\nv_pk_fma_f32 {v2(S + 14)}, {y}, {y}, {v2(S + 14)}\n'
                      f'v_pk_add_f32 {v2(S + 4)}, {p2}, {ay}\nv_pk_fma_f32 {v2(S + 6)}, {ay}, {x}, {v2(S + 6)}\n'
                      f'v_pk_fma_f32 {v2(S + 8)}, {ay}, {ay}, {v2(S + 8)}\n'
                      f'v_pk_fma_f32 {v2(S + 10)}, {ay}, {y}, {v2(S + 10)}')
        for k in range(8):
            A(f'v_add_f32 v{S + 2 * k}, v{S + 2 * k}, v{S + 2 * k + 1}')
        for k in range(4):
            A(f'v_permlane16_swap_b32 v{S + 2 * k}, v{S + 2 * k + 8}')
        for k in range(4):
            A(f'v_add_f32 v{G + k}, v{S + 2 * k}, v{S + 2 * k + 8}')
        for k in range(4):
            A(f'v_mov_b32 v{S + k}, v{G + k}')
        for k in range(4):
            A(f'v_permlane32_swap_b32 v{G + k}, v{S + k}')
        A(f's_movk_i32 s{sT[2]}, 0xff')
        for k in range(4):
            A(f'v_add_f32 v{G + k}, v{G + k}, v{S + k}')
        for k in range(4):
            A(f's_lshr_b32 s{sT[3]}, s{sTag}, {8 * k}\nv_mov_b32 v{S + k}, s{sT[3]}\n'
              f'v_bfi_b32 v{G + k}, s{sT[2]}, v{S + k}, v{G + k}')
        A('s_mov_b32 exec_hi, 0')
        mode_stores([f'buffer_store_dwordx4 {v4(G)}, v{vL16}, {W}, s{sT[1]} offen'], through=OPT['thr'] & 16)
        A('s_mov_b32 exec_hi, -1')
        stamp('st_pub_0')
        if OPT['prefetch'] & 4:
            run(code_touch())
        for i in range(10):
            A(f'v_accvgpr_write_b32 a{A_Y + i}, v{YP + i}')
        A(f'''v_lshrrev_b32 v{vT[0]}, 2, v{vI}
v_mul_u32_u24 v{vT[0]}, 5120, v{vT[0]}
v_and_b32 v{vT[1]}, 3, v{vI}
v_lshl_add_u32 v{vT[0]}, v{vT[1]}, 4, v{vT[0]}
v_lshrrev_b32 v{vT[1]}, 1, v{vQ}
v_lshl_add_u32 v{vT[0]}, v{vT[1]}, 6, v{vT[0]}
v_and_b32 v{vT[1]}, 1, v{vQ}
v_lshl_add_u32 v{vU[5]}, v{vT[1]}, 3, v{vT[0]}
s_lshl_b32 s{sX[1]}, s{sR64}, 2
s_add_u32 s{sX[1]}, s{sX[1]}, s{sW}
s_mul_i32 s{sX[1]}, s{sX[1]}, 20480
s_mul_i32 s{sT[2]}, s{sS8}, 640
s_add_u32 s{sX[1]}, s{sX[1]}, s{sT[2]}
s_add_u32 s{sX[1]}, s{sX[1]}, {WS_U2}''')
        DPk, DF = 190, 108
        for i in range(10):
            A(f'v_accvgpr_read_b32 v{DPk + i}, a{A_DSK + i}')
        A('\n'.join(unpack(DF, DPk, 10)))
        A(f'''s_lshl_b32 s{sX[0]}, s{sR128}, 10
s_lshr_b32 s{sT[1]}, s{sW}, 1
s_lshl_b32 s{sT[1]}, s{sT[1]}, 7
s_add_u32 s{sX[0]}, s{sX[0]}, s{sT[1]}
s_and_b32 s{sT[1]}, s{sW}, 1
s_lshl_b32 s{sT[1]}, s{sT[1]}, 3
s_add_u32 s{sX[0]}, s{sX[0]}, s{sT[1]}
s_add_u32 s{sX[0]}, s{sX[0]}, {WS_FU}
v_and_b32 v{vU[4]}, 7, v{vL}
v_lshlrev_b32 v{vU[4]}, 4, v{vU[4]}
s_add_u32 s{sL[0]}, s{sXs}, {WS_U2}
s_add_u32 s{sL[1]}, s{sL[0]}, 20480
s_lshl_b32 s{sEpW}, s{sR64}, 5
s_lshl_b32 s{sT[1]}, s{sS8}, 2
s_add_u32 s{sEpW}, s{sEpW}, s{sT[1]}
s_add_u32 s{sEpW}, s{sEpW}, s{sW}''')
        A(f'''v_and_b32 v{vT[0]}, 31, v{vL}
v_lshlrev_b32 v{vT[0]}, 4, v{vT[0]}
v_lshrrev_b32 v{vT[1]}, 5, v{vL}
v_lshl_add_u32 v{vT[0]}, v{vT[1]}, 14, v{vT[0]}
s_mov_b32 s{sT[2]}, 0x0c0c0400
s_mov_b32 s{sT[3]}, 0x04000c0c
s_add_u32 s{sX[2]}, s{sT[0]}, 4096
s_add_u32 s{sX[3]}, s{sT[0]}, 8192
s_add_u32 s{sX[4]}, s{sT[0]}, 12288''')
        back = A.label('stpoll')
        A(f'{back}:')
        Q = 128
        for sl, so in enumerate((sT[0], sX[2], sX[3], sX[4])):
            A(f'buffer_load_dwordx4 {v4(Q + 4 * sl)}, v{vT[0]}, {W}, s{so} offen sc1')
        A('s_waitcnt vmcnt(0)')
        for sl in range(4):
            q = Q + 4 * sl
            A(f'v_perm_b32 v{S + 2 * sl}, v{q + 1}, v{q}, s{sT[2]}\nv_perm_b32 v{S + 2 * sl + 1}, v{q + 3}, v{q + 2}, s{sT[3]}')
        for sl in range(4):
            A(f'v_or_b32 v{S + 2 * sl}, v{S + 2 * sl}, v{S + 2 * sl + 1}')
        lo, hi = vT[2], vT[3]
        A(f'''v_min3_u32 v{lo}, v{S}, v{S + 2}, s{sTag}
v_max3_u32 v{hi}, v{S}, v{S + 2}, s{sTag}
v_min3_u32 v{lo}, v{lo}, v{S + 4}, v{S + 6}
v_max3_u32 v{hi}, v{hi}, v{S + 4}, v{S + 6}
v_cmp_ne_u32 vcc, v{lo}, v{hi}''')
        retry(back)
        stamp('st_in_0')
        for hf in (0, 2):
            A(f'v_pk_add_f32 {v2(Q + hf)}, {v2(Q + hf)}, {v2(Q + 4 + hf)}\n'
              f'v_pk_add_f32 {v2(Q + 8 + hf)}, {v2(Q + 8 + hf)}, {v2(Q + 12 + hf)}')
        for hf in (0, 2):
            A(f'v_pk_add_f32 {v2(Q + hf)}, {v2(Q + hf)}, {v2(Q + 8 + hf)}')
        s = lambda k: S + k
        for k in range(4):
            A(f'v_mov_b32 v{Q + 4 + k}, v{Q + k}')
        for k in range(4):
            A(f'v_permlane32_swap_b32 v{Q + k}, v{Q + 4 + k}')
        for k in range(4):
            A(f'v_add_f32 v{s(k)}, v{Q + k}, v{Q + 4 + k}')
        for k in range(4):
            A(f'v_mov_b32 v{s(4 + k)}, v{s(k)}')
        for k in range(4):
            A(f'v_permlane16_swap_b32 v{s(k)}, v{s(4 + k)}')
        m1, r1, k1, t0, t1, r2, k2 = 200, 202, 203, 204, 205, 206, 207
        A(f'''v_mul_f32 v{m1}, {inv:#x}, v{s(0)}
v_mul_f32 v{t0}, {inv:#x}, v{s(1)}
v_fma_f32 v{t0}, -v{m1}, v{m1}, v{t0}
v_max_f32 v{t0}, 0, v{t0}
v_add_f32 v{t0}, 0x3727c5ac, v{t0}
v_rsq_f32 v{r1}, v{t0}
v_mul_f32 v{k1}, v{m1}, v{r1}
v_fma_f32 v{t0}, v{r1}, v{s(2)}, v{s(0)}
v_fma_f32 v{t0}, -v{k1}, v{s(6)}, v{t0}
v_mul_f32 v{t1}, v{r1}, v{s(4)}
v_fma_f32 v{t1}, 2.0, v{s(3)}, v{t1}
v_fma_f32 v{t1}, v{r1}, v{t1}, v{s(1)}
v_fma_f32 v{s(2)}, v{r1}, v{s(5)}, v{s(2)}
v_mul_f32 v{s(7)}, v{k1}, v{s(7)}
v_fma_f32 v{s(2)}, -2.0, v{s(2)}, v{s(7)}
v_fma_f32 v{t1}, v{k1}, v{s(2)}, v{t1}
v_mul_f32 v{t0}, {inv:#x}, v{t0}
v_mul_f32 v{t1}, {inv:#x}, v{t1}
v_fma_f32 v{t1}, -v{t0}, v{t0}, v{t1}
v_max_f32 v{t1}, 0, v{t1}
v_add_f32 v{t1}, 0x3727c5ac, v{t1}
v_rsq_f32 v{r2}, v{t1}
v_mul_f32 v{k2}, v{t0}, v{r2}''')
        bc = 'op_sel:[0,0,1] op_sel_hi:[1,0,1] neg_lo:[0,0,1] neg_hi:[0,0,1]'
        U, UP = 160, 180
        for i in range(10):
            A(f'v_pk_fma_f32 {v2(U + 2 * i)}, {v2(a + 2 * i)}, {v2(r1)}, {v2(r1)} {bc}')
        for i in range(10):
            A(f'v_pk_fma_f32 {v2(a + 2 * i)}, {v2(U + 2 * i)}, {v2(YF + 2 * i)}, {v2(a + 2 * i)}')
        for i in range(10):
            A(f'v_pk_fma_f32 {v2(U + 2 * i)}, {v2(a + 2 * i)}, {v2(r2)}, {v2(r2)} {bc}')
        for i in range(10):
            A(f'v_cvt_pk_bf16_f32 v{UP + i}, v{U + 2 * i}, v{U + 2 * i + 1}')
        mode_stores([f'buffer_store_dwordx2 {v2(UP + 2 * m)}, v{vU[5]}, {W}, s{sX[1]} offen offset:{128 * m}'
                     for m in range(5)], through=OPT['thr'] & 8)
        stamp('u2_st')
        for i in range(10):
            A(f'v_pk_fma_f32 {v2(a + 2 * i)}, {v2(U + 2 * i)}, {v2(DF + 2 * i)}, {v2(a + 2 * i)}')
        for i in range(20):
            A(f'v_accvgpr_write_b32 a{A_Z + i}, v{a + i}')
        A(f's_add_u32 s{sT[1]}, s{sFW}, {WS_FU}\ns_waitcnt vmcnt(0)')
        flag_store(f's{sT[1]}', True)
        A(f's_cmp_lg_u32 s{sEpW}, {31 * 32}')
        with A.skip_if('s_cbranch_scc1', lambda c: True):
            flag_store('0', False)
        fl = f'buffer_load_dwordx2 {v2(vU[0])}, v{vU[4]}, {W}, s{sX[0]} offen sc1'
        check_tags([vU[0], vU[1]], fl, inline=1)
        stamp('u2_ready')
    else:
        A(f'v_add_f32 v{G}, v{S}, v{S + 1}\nv_add_f32 v{G + 1}, v{S + 2}, v{S + 3}\nv_mov_b32 v{G + 2}, s{sTag}\n'
          f'v_mov_b32 v{G + 3}, s{sTag}')
        allreduce_q(G, S)
        A('s_mov_b64 exec, 0xffff')
        mode_stores([f'buffer_store_dwordx4 {v4(G)}, v{vL16}, {W}, s{sT[1]} offen'], through=OPT['thr'] & 16)
        A('s_mov_b64 exec, -1')
        stamp('st_pub_1')
        if OPT['wb'] & 64:
            wbl2()
        lg = LG()
        X3, Y3 = 160, YF
        A(f'''s_mul_i32 s{sT[2]}, s{sW}, 10240
s_add_u32 s{sT[2]}, s{sT[2]}, {L_RED}
v_lshrrev_b32 v{vT[1]}, 1, v{vI}
v_xor_b32 v{vT[1]}, v{vT[1]}, v{vQ}
v_and_b32 v{vT[1]}, 3, v{vT[1]}
v_lshlrev_b32 v{vT[1]}, 4, v{vT[1]}
v_lshl_add_u32 v{vT[1]}, v{vI}, 6, v{vT[1]}
v_add_u32 v{vU[2]}, s{sT[2]}, v{vT[1]}''')
        for m in range(5):
            lg(f'ds_write_b128 v{vU[2]}, {v4(a + 4 * m)} offset:{1024 * m}')
        A(f'''v_lshrrev_b32 v{vT[1]}, 3, v{vL}
v_xor_b32 v{vT[1]}, v{vT[1]}, v{vL}
v_and_b32 v{vT[1]}, 3, v{vT[1]}
v_lshlrev_b32 v{vT[1]}, 4, v{vT[1]}
v_lshrrev_b32 v{vT[2]}, 2, v{vL}
v_lshl_add_u32 v{vT[1]}, v{vT[2]}, 6, v{vT[1]}
v_add_u32 v{vU[3]}, s{sT[2]}, v{vT[1]}''')
        for m in range(5):
            lg(f'ds_read_b128 {v4(X3 + 4 * m)}, v{vU[3]} offset:{1024 * m}')
        A(f'''v_and_b32 v{vT[3]}, 3, v{vL}
v_lshlrev_b32 v{vT[0]}, 13, v{vT[3]}
v_lshl_add_u32 v{vT[0]}, v{vT[2]}, 4, v{vT[0]}
s_add_u32 s{sT[1]}, s{sT[0]}, 4096
v_lshrrev_b32 v{vT[1]}, 2, v{vT[2]}
v_lshl_add_u32 v{vT[1]}, v{vT[1]}, 2, v{vT[2]}
v_mul_u32_u24 v{vT[1]}, 2560, v{vT[1]}
v_lshl_add_u32 v{vU[4]}, v{vT[3]}, 4, v{vT[1]}
s_lshl_b32 s{sT[3]}, s{sR64}, 6
s_lshr_b32 s{sX[1]}, s{sW}, 1
s_lshl_b32 s{sX[1]}, s{sX[1]}, 5
s_add_u32 s{sT[3]}, s{sT[3]}, s{sX[1]}
s_and_b32 s{sX[1]}, s{sW}, 1
s_lshl_b32 s{sX[1]}, s{sX[1]}, 2
s_add_u32 s{sT[3]}, s{sT[3]}, s{sX[1]}
s_mul_i32 s{sT[3]}, s{sT[3]}, 2560
s_mul_i32 s{sX[1]}, s{sS8}, 320
s_add_u32 s{sT[3]}, s{sT[3]}, s{sX[1]}''')
        Q = 128
        ld = [f'buffer_load_dwordx3 {v3(Q)}, v{vT[0]}, {W}, s{sT[0]} offen sc1',
              f'buffer_load_dwordx3 {v3(Q + 4)}, v{vT[0]}, {W}, s{sT[1]} offen sc1']
        check_tags([Q + 2, Q + 6], ld, inline=1)
        A('s_waitcnt lgkmcnt(0)')
        stamp('st_in_1')
        if OPT['wb'] & 32:
            wbl2()
        A(f'v_pk_add_f32 {v2(Q)}, {v2(Q)}, {v2(Q + 4)}')
        for mod in ('quad_perm:[1,0,3,2]', 'quad_perm:[2,3,0,1]'):
            A(f'v_add_f32_dpp v{Q}, v{Q}, v{Q} {mod} {DPPM}\nv_add_f32_dpp v{Q + 1}, v{Q + 1}, v{Q + 1} {mod} {DPPM}')
        r1, t0 = 200, 202
        A(f'''v_mul_f32 v{Q}, {inv:#x}, v{Q}
v_mul_f32 v{t0}, {inv:#x}, v{Q + 1}
v_fma_f32 v{t0}, -v{Q}, v{Q}, v{t0}
v_max_f32 v{t0}, 0, v{t0}
v_add_f32 v{t0}, 0x3727c5ac, v{t0}
v_rsq_f32 v{r1}, v{t0}
v_mul_f32 v{r1 + 1}, v{Q}, v{r1}''')
        bc = 'op_sel:[0,0,1] op_sel_hi:[1,0,1] neg_lo:[0,0,1] neg_hi:[0,0,1]'
        U = 132
        for m in range(5):
            u = U + 4 * (m & 1)
            for hf in range(2):
                A(f'v_pk_fma_f32 {v2(u + 2 * hf)}, {v2(X3 + 4 * m + 2 * hf)}, {v2(r1)}, {v2(r1)} {bc}')
            for hf in range(2):
                i = 4 * m + 2 * hf
                A(f'v_pk_fma_f32 {v2(X3 + i)}, {v2(u + 2 * hf)}, {v2(Y3 + i)}, {v2(X3 + i)}')
            line = f'buffer_store_dwordx4 {v4(X3 + 4 * m)}, v{vU[4]}, {s4(R_T0)}, s{sT[3]} offen offset:{64 * m}'
            if HO and OPT['om'] in (0, 3):
                mode_stores([line + ['', ' nt'][OPT['om'] == 3]])
            else:
                A(line + ['', ' sc1', ' sc1 nt', ' nt', ' sc0 sc1'][OPT['om']])
        if OPT['wb'] & 16:
            wbl2()
        stamp('out_st')


def retry(back):
    lab, done = A.label('retry'), A.label('giveup')
    A.cond[lab] = lambda c: False
    if OPT['inl']:
        A.cond[back] = A.cond[done] = lambda c: False
        A(f's_sub_u32 s{sBud}, s{sBud}, 1\ns_cmp_gt_i32 s{sBud}, 0\ns_cbranch_scc0 {done}\ns_cbranch_vccnz {back}\n{done}:')
        return
    A(f's_cbranch_vccnz {lab}\n{done}:')
    TAIL.append(f'{lab}:\ns_sub_u32 s{sBud}, s{sBud}, 1\ns_cmp_gt_i32 s{sBud}, 0\n'
                f's_cbranch_scc1 {back}\ns_branch {done}')


def dump_stamps():
    if OPT['fixdur']:
        A(f'v_readfirstlane_b32 s3, v{vStamp}\ns_min_u32 s3, s3, 20000')
        if OPT['pick'] >= 0:
            A(f's_lshl_b32 s4, s{sJ}, 3\ns_add_u32 s4, s4, s{sG}\ns_cmp_eq_u32 s4, {OPT["pick"]}\ns_cselect_b32 s3, s3, 0')
        A(f'''s_add_u32 s{sSt}, s{sSt}, s3
L_fix:
s_memrealtime s[0:1]
s_waitcnt lgkmcnt(0)
s_sub_u32 s0, s0, s{sSt}
s_cmp_lt_i32 s0, {OPT['fixdur']}
s_cbranch_scc1 L_fix''')
    if not OPT['stamps']:
        return
    A(f'''s_waitcnt vmcnt(0) lgkmcnt(0)
v_writelane_b32 v{vStamp}, s{sSt}, {PREV[0]}
s_memrealtime {s2(sSt)}
s_waitcnt lgkmcnt(0)
v_writelane_b32 v{vStamp}, s{sSt}, 63
s_lshl_b32 s{sT[0]}, s{sR64}, 3
s_add_u32 s{sT[0]}, s{sT[0]}, s{sS8}
s_lshl_b32 s{sT[0]}, s{sT[0]}, 2
s_add_u32 s{sT[0]}, s{sT[0]}, s{sW}
s_lshl_b32 s{sT[0]}, s{sT[0]}, 8
s_add_u32 s{sT[0]}, s{sT[0]}, {WS_DBG}
v_lshlrev_b32 v{vT[0]}, 2, v{vL}
buffer_store_dword v{vStamp}, v{vT[0]}, {W}, s{sT[0]} offen''')


def body():
    prologue()
    g2 = conv(*front(startup()))
    vm = g2.vm
    lg = gemm2(g2)
    epilogue(0, vm, lg)
    g = G1(1, VM())
    n1 = OPT['n1']
    for f in range(n1):
        g.ld(f)
    for f in range(n1, 40):
        g.side.add((f - n1) // 2, lambda f=f: g.ld(f))
    for j in range(5):
        g.rd(0, j)
    if OPT['wb'] & 1:
        g.side.add(16, wbl2)
    if OPT['tc2']:
        g.side.add(OPT['tc2'], retouch())
    for s in range(20):
        g.step(s)
    stamp('g1_1')
    scan_1(1)
    vm = VM()
    run(horner(1, vm, LG()))
    if OPT['prefetch'] & 8:
        run(code_touch())
    pre, ld = agg_ld(1)
    A(pre)
    for l in ld:
        vm(l, 'agg')
    A(f'''s_mul_i32 s{sT[0]}, s{sW}, 2560
s_add_u32 s{sT[0]}, s{sT[0]}, 24576
v_lshlrev_b32 v{vT[0]}, 5, v{vI}
v_lshl_add_u32 v{vT[0]}, v{vQ}, 3, v{vT[0]}
v_add_u32 v{vT[0]}, s{sT[0]}, v{vT[0]}
v_lshl_add_u32 v{vT[1]}, v{vL}, 3, s{sT[0]}''')
    run([f'ds_write_b64 v{vT[0]}, a[{A_Y + 2 * m}:{A_Y + 2 * m + 1}] offset:{512 * m}' for m in range(5)]
        + [f'ds_read_b64 {v2(YP + 2 * m)}, v{vT[1]} offset:{512 * m}' for m in range(5)])
    scan_2(1, vm, ld)
    g2_setup(1)
    h_flag(1, vm)
    if OPT['wb'] & 8:
        wbl2()
    g2 = G2(1, vm)
    g2.begin()
    lg = gemm2(g2)
    epilogue(1, vm, lg)
    dump_stamps()
    A('L_end:\ns_endpgm')
    for t in TAIL:
        A(t)
    A('s_endpgm\nL_codeend:')


def main():
    hdr = open(os.path.join(os.path.dirname(os.path.abspath(__file__)), NAME + '.s.ref')).read().split('; Override')[0]
    A2 = [hdr.rstrip(), f'; @launch grid=(256,1,1) block=(256,1,1) lds={LDS_SIZE}',
          '.amdgcn_target "amdgcn-amd-amdhsa--gfx950"\n.text',
          f'.globl {NAME}_kernel\n.p2align 8\n.type {NAME}_kernel,@function\n{NAME}_kernel:']
    body()
    n = A.fix_hazards()
    if OPT['align']:
        print('; align: promoted %d, padded %d' % A.align8(999, False), file=sys.stderr)
    cfgs = [dict(w=w, fast=f, ty=ty) for w in range(4) for f in (0, 1) for ty in (0, 1)]
    errs = A.check_waits(cfgs)
    for e in sorted(set(errs))[:40]:
        print('WAITCNT:', e, file=sys.stderr)
    print(f'; {n} hazard pads inserted; {len(A.L)} lines; stamps: {STAMPS}', file=sys.stderr)
    A2.append('; WS ' + '\n; WS '.join(f'{k}={v:#x}' for k, v in dict(RS=WS_RS, H=WS_H, KV=WS_KV, Y=WS_Y, CF=WS_CF,
                                                                   U2=WS_U2, H2=WS_H2, DBG=WS_DBG, CFOLD=1).items()))
    if STAMPS:
        A2.append('; STAMPS ' + ' '.join(STAMPS))
    A2.append(A.text())
    A2.append(f'''.section .rodata,"a"
.p2align 6
.amdhsa_kernel {NAME}_kernel
  .amdhsa_next_free_vgpr 512
  .amdhsa_next_free_sgpr 102
  .amdhsa_accum_offset 256
  .amdhsa_group_segment_fixed_size 0
  .amdhsa_kernarg_size 144
  .amdhsa_user_sgpr_count 2
  .amdhsa_user_sgpr_kernarg_segment_ptr 1
  .amdhsa_system_sgpr_workgroup_id_x 1
.end_amdhsa_kernel''')
    print('\n'.join(A2))


if __name__ == '__main__':
    main()
```

```python
import sys
import os
import copy
sys.path.insert(0, os.path.dirname(os.path.abspath(__file__)))
from asmlib import Asm

NAME = 'interleave_layers__ssm_conv_s5__ssm_conv_h3__prompt'
OPT = dict(stamps=0, rt=1, reuse=1, force_slow=0, budget=1 << 18, align=3, nt=5, prefetch=11,
           gw=1, rsc=17, late=13, lper=3, b1s=0, b2s=0, b3s=0, b4s=2, cfs=0, cfper=14, kls=14, kvf=5, cff=7, fsp=10, fsc=12, wv0=10, wv=16,
           aggl=21, clend=20, cs2=8, nu=3, defer=3, stp=3, cl2s=3, hfl=8, hp=6, yp0=3, clr=3, fbp=-13, fbc=-17, lag=1, cs1=7, cb=5, cl2=12, ys=0, yper=8, zper=8, csp=14, csc=17, cl0=8,
           order='S,A,M,G,T,@setup,R,@roles,O,B0,X0,X1,C', post='L1,L2',
           n0=8, n00=8, n1=8, yp=26, ra=17, rb=24, rper=9, rc=35, wper=2, r3=0, om=0, wb=0, wbw=3, wbs=0, dbg=0, mlate=0, t0=1, zlate=0, hout=1, lpre=2, tc2=17, thr=11, tch=12, inl=1, look=14, light=1, fixdur=0, probe='', pick=-1)
for a in sys.argv[1:]:
    k, v = a.split('=')
    assert k in OPT, k
    OPT[k] = v if k in ('probe', 'order', 'post') else int(v, 0)

WS_FU = 0x1000
WS_FH = WS_FU + 256
WS_FY = 0x6000
WS_FB = 0x8000
WS_FK = 0x10000
WS_FS = WS_FK + 512
WS_FX = WS_FK + 1024
WS_RS = 0x40000
WS_CS = 0x4A000
WS_AGG = 0x50000
AGG_L = 16 * 32 * 640
WS_ST = 0x140000
WS_U = 0x400000
WS_H = 0xA00000
WS_KV = WS_U if OPT['reuse'] else 0x1000000
WS_Y = 0x1300000
WS_CF = 0x1600000
WS_KB = 0x1900000
WS_U2 = WS_U
WS_H2 = WS_H if OPT['reuse'] else 0x1B00000
WS_DBG = 0x2400000
WS_SIZE = 0x2800000
OOB = 0x70000000

L_AR = 102400
L_SK = L_AR + 2 * 8192
VOFF = 12 * 1056
L_SS, L_SS2, L_V = L_SK + VOFF + 9 * 1056, L_SK + VOFF + 11 * 1056, L_SK + 25 * 1056
L_KV = 0
L_TR = 13824
L_K = 102400
L_PM = 102400
L_PS = L_K + 3 * 8320
L_P = L_PS + 16384
L_RED = 102400
L_Y = 143360
L_AS = 152320
L_G = 149504
L_RS = 158720
L_C = 159744
L_L = 160640
LDS_SIZE = 163840

P_X, P_LRE, P_LIM, P_BRE, P_BIM, P_CRE, P_CIM, P_LDT = 16, 18, 20, 22, 24, 26, 28, 30
P_DSK, P_Q, P_K, P_V, P_SK, P_SSK, P_SD, P_OUT, P_DBG, P_WS = 32, 34, 36, 38, 40, 42, 44, 46, 48, 50
R_WS, R_B, R_T0, R_T1, R_X = 52, 56, 60, 64, 68
sG, sJ, sOnes = 0, 1, 2
sR128, sMem, sR64, sS8, sW, sTag, sMode, sBud, sXcc = 3, 4, 5, 6, 7, 8, 9, 10, 11
sT = [12, 13, 14, 15]
sD = [72, 73]
sBs, sBm, sXs, sXm = 74, 75, 76, 77
sH = [78, 79, 80, 81, 82]
sAgg = 83
sFW, sFK = 84, 85
sC0, sCs = 86, 24
sKm, sKf, sKs = 40, 41, 36
sX = [87, 88, 89, 90, 91, 92, 93, 94, 95]
sPub = 96
sPC = 98
sSt = 100
sL = [34, 35]
sDS = [16, 17, 18, 19]
sZ = [20, 21, 48, 49]
sYO = [50, 51]
sDm = [30, 31, 25, 45]
sEpW = 44

vUA, vL, vL16, vI, vQ = 0, 1, 2, 3, 4
vBA = [5, 6, 7, 8]
vAS, vStamp = 9, 10
vT = [11, 12, 13, 14, 15]
LR, LS, VA = 16, 21, 26
mL8, mL128, mW = 36, 38, 40
vU = [42, 43, 44, 45, 46, 47]
ACC, BF, RING, NR = 48, 88, 128, 16
A_Y, A_Z, A_DSK = 200, 210, 230
PARK = dict(tw=240, tr=241, ts=242, bd=243, bd2=244, rt=245, junk=250)
A_CV = 200
A_X, A_ZU = 216, 226

A = Asm()
NT, NTC, NTK, NTP, NTX, NTT = [' nt' if OPT['nt'] >> i & 1 else '' for i in range(6)]
STAMPS = []
PREV = [61]
TAIL = []
DPPM = 'row_mask:0xf bank_mask:0xf'
SWP = f'quad_perm:[1,0,3,2] {DPPM}'
W = f's[{R_WS}:{R_WS + 3}]'
HO = OPT['reuse'] and OPT['hout']
WH = f's[{R_T0}:{R_T0 + 3}]' if HO else W
HB = [0, 0] if HO else [WS_H, WS_H2]


def s2(n): return f's[{n}:{n + 1}]'
def s4(n): return f's[{n}:{n + 3}]'
def v2(n): return f'v[{n}:{n + 1}]'
def v3(n): return f'v[{n}:{n + 2}]'
def v4(n): return f'v[{n}:{n + 3}]'
def a4(n): return f'a[{n}:{n + 3}]'


def srd(r, p, size):
    A(f's_mov_b32 s{r}, s{p}\ns_and_b32 s{r + 1}, s{p + 1}, 0xffff\ns_mov_b32 s{r + 2}, {size}\n'
      f's_mov_b32 s{r + 3}, 0x20000')


def stamp(name, level=1):
    if ':' in OPT['probe']:
        a, b, kind = OPT['probe'].split(':')
        op = 's_memtime' if kind == 'c' else 's_memrealtime'
        if name == a:
            A(f'{op} vcc\ns_waitcnt lgkmcnt(0)\nv_mov_b32 v{vStamp}, vcc_lo')
        if name == b:
            A(f'{op} vcc\ns_waitcnt lgkmcnt(0)\nv_sub_u32 v{vStamp}, vcc_lo, v{vStamp}\n'
              + (f'v_lshrrev_b32 v{vStamp}, 2, v{vStamp}' if kind == 'c' else f'v_lshlrev_b32 v{vStamp}, 2, v{vStamp}'))
    if OPT['probe'] == name:
        A(f's_memrealtime vcc\ns_waitcnt lgkmcnt(0)\ns_sub_u32 vcc_lo, vcc_lo, s{sSt}\ns_lshl_b32 vcc_lo, vcc_lo, 2\n'
          f'v_mov_b32 v{vStamp}, vcc_lo')
    if not OPT['stamps'] or (OPT['stamps'] < 0 and name != 'start') or level > abs(OPT['stamps']):
        return
    if name not in STAMPS:
        STAMPS.append(name)
    i = STAMPS.index(name)
    op = 's_memrealtime' if OPT['rt'] else 's_memtime'
    if name == 'start' or not OPT['light']:
        A(f'{op} {s2(sSt)}\ns_waitcnt lgkmcnt(0)\nv_writelane_b32 v{vStamp}, s{sSt}, {i}')
    else:
        A(f'v_writelane_b32 v{vStamp}, s{sSt}, {PREV[0]} ; nocheck\n{op} {s2(sSt)} ;@{i}')
        PREV[0] = i


class Cnt:
    def __init__(self, what, cap):
        self.n, self.t, self.what, self.cap, self.done = 0, {}, what, cap, 0

    def __call__(self, text, name=None):
        A(text)
        self.n += 1
        if name is not None:
            self.t[name] = self.n
        return self.n

    def wait(self, *names):
        tok = max(self.t[x] if not isinstance(x, int) else x for x in names)
        if tok <= self.done:
            return
        k = self.n - tok
        assert k >= 0
        if k <= self.cap:
            A(f's_waitcnt {self.what}({k})')
            self.done = tok
        else:
            A(f's_waitcnt {self.what}({self.cap})')
            self.done = self.n - self.cap

    def merge(self, o):
        n = max(self.n, o.n)
        t = {}
        for k in set(self.t) | set(o.t):
            t[k] = n - min(c.n - c.t[k] for c in (self, o) if k in c.t)
        self.done = n - max(self.n - self.done, o.n - o.done)
        self.n, self.t = n, t


def VM(): return Cnt('vmcnt', 63)
def LG(): return Cnt('lgkmcnt', 15)


def lines(x):
    if isinstance(x, str):
        return [l for l in x.split('\n') if l.strip()]
    if isinstance(x, (list, tuple)):
        return [l for it in x for l in lines(it)]
    return [x]


def atom(*items):
    return lambda: run(items)


def run(items):
    for it in lines(items):
        A(it) if isinstance(it, str) else it()


class Side:
    def __init__(self):
        self.q = {}

    def add(self, step, *items):
        self.q.setdefault(step, []).extend(lines(items))

    def spread(self, step0, per, items):
        flat = lines(items)
        for i, it in enumerate(flat):
            self.add(step0 + i // per, it)
        return step0 + (len(flat) + per - 1) // per

    def run(self, step, slots_left):
        q = self.q.get(step, [])
        n = -(-len(q) // slots_left)
        self.q[step] = q[n:]
        for it in q[:n]:
            A(it) if isinstance(it, str) else it()

    def left(self, lo=0, hi=999):
        return [k for k, v in self.q.items() if v and lo <= k < hi]


class Cap:
    def __enter__(self):
        self.save = A.L
        A.L = []
        return self

    def __exit__(self, *a):
        self.lines = [i.text for i in A.L]
        A.L = self.save


def check_tags(regs, reload, masked=False, x=None, y=None, inline=0):
    x, y = vT[4] if x is None else x, vT[3] if y is None else y
    if len(regs) <= 2:
        chk = [f'v_xor_b32 v{x}, s{sTag}, v{regs[0]}']
        for r in regs[1:]:
            chk += [f'v_xor_b32 v{y}, s{sTag}, v{r}', f'v_or_b32 v{x}, v{x}, v{y}']
        chk.append(f'v_cmp_lt_u32 vcc, 15, v{x}' if masked else f'v_cmp_ne_u32 vcc, 0, v{x}')
    else:
        assert not masked and len(regs) % 2 == 0
        chk = [f'v_min3_u32 v{x}, v{regs[0]}, v{regs[1]}, s{sTag}', f'v_max3_u32 v{y}, v{regs[0]}, v{regs[1]}, s{sTag}']
        for i in range(2, len(regs), 2):
            chk += [f'v_min3_u32 v{x}, v{x}, v{regs[i]}, v{regs[i + 1]}', f'v_max3_u32 v{y}, v{y}, v{regs[i]}, v{regs[i + 1]}']
        chk.append(f'v_cmp_ne_u32 vcc, v{x}, v{y}')
    lab, done = A.label('again'), A.label('ok')
    A.cond[lab] = lambda c: False
    if inline and OPT['inl']:
        if inline == 2:
            A.cond[done] = lambda c: True
            A('\n'.join(chk) + f'\ns_cbranch_vccz {done}')
        out = A.label('out')
        A.cond[out] = lambda c: False
        run([f'{lab}:'] + lines(reload) + [f's_sub_u32 s{sBud}, s{sBud}, 1', f's_cmp_gt_i32 s{sBud}, 0', 's_waitcnt vmcnt(0)']
            + chk + [f's_cbranch_scc0 {out}', f's_cbranch_vccnz {lab}', f'{out}:', f'{done}:'])
        return
    if inline == 1:
        run(lines(reload) + ['s_waitcnt vmcnt(0)'])
    A('\n'.join(chk) + f'\ns_cbranch_vccnz {lab}\n{done}:')
    TAIL.append('\n'.join([f'{lab}:', f's_sub_u32 s{sBud}, s{sBud}, 1', f's_cmp_gt_i32 s{sBud}, 0', f's_cbranch_scc0 {done}']
                          + lines(reload) + ['s_waitcnt vmcnt(0)'] + chk + [f's_cbranch_vccnz {lab}', f's_branch {done}']))


def mode_stores(ls, mode=sMode, through=False):
    if through:
        return run([(l + ' sc1') if l.startswith('buffer_store') else l for l in ls])
    slow, back = A.label('slow'), A.label('back')
    A.cond[slow] = lambda c: not c['fast'] or (mode != sMode and c['w'] == 2)
    A(f's_cmp_eq_u32 s{mode}, 0\ns_cbranch_scc1 {slow}')
    for l in ls:
        A(l)
    A(f'{back}:')
    TAIL.append(f'{slow}:\n' + '\n'.join((l + ' sc1') if l.startswith('buffer_store') else l for l in ls)
                + f'\ns_nop 1\ns_branch {back}')


def flag_store(soff, local, vm=None, mode=sMode):
    t = vT[4]
    A(f'v_mov_b32 v{t}, s{sTag}\ns_mov_b64 exec, 1')
    line = f'buffer_store_dword v{t}, off, {W}, {soff}'
    if local:
        mode_stores([line], mode)
    else:
        A(line + ' sc1')
    A('s_mov_b64 exec, -1')
    if vm is not None:
        vm.n += 1


def unpack(dst, src, n):
    out = []
    for i in range(n):
        out += [f'v_lshlrev_b32 v{dst + 2 * i}, 16, v{src + i}', f'v_and_b32 v{dst + 2 * i + 1}, 0xffff0000, v{src + i}']
    return out


def rnd_bf16(v):
    A(f'v_cvt_pk_bf16_f32 v{v}, v{v}, v{v}\nv_and_b32 v{v}, 0xffff0000, v{v}')


def cmul(dst, g, lam, add=None):
    if add is None:
        a = f'v_pk_mul_f32 {v2(dst)}, {v2(g)}, {v2(lam)} op_sel:[1,1] op_sel_hi:[0,1] neg_lo:[0,1]'
    else:
        a = f'v_pk_fma_f32 {v2(dst)}, {v2(g)}, {v2(lam)}, {v2(add)} op_sel:[1,1,0] op_sel_hi:[0,1,1] neg_lo:[0,1,0]'
    return [a, f'v_pk_fma_f32 {v2(dst)}, {v2(g)}, {v2(lam)}, {v2(dst)} op_sel:[0,0,0] op_sel_hi:[1,0,1]']


def park(name, v): A(f'v_accvgpr_write_b32 a{PARK[name]}, v{v}')
def unpark(name, v): return f'v_accvgpr_read_b32 v{v}, a{PARK[name]}'


def code_touch():
    return [f's_and_b32 vcc_lo, s{sJ}, 7', 's_lshl_b32 vcc_lo, vcc_lo, 2', f's_add_u32 vcc_lo, vcc_lo, s{sW}',
            's_lshl_b32 vcc_lo, vcc_lo, 11', f'v_lshl_add_u32 v{vT[4]}, v{vI}, 7, vcc_lo',
            f'v_min_u32 v{vT[4]}, L_codeend-L_pc-4, v{vT[4]}', 's_mov_b64 exec, 0xffff',
            f'global_load_dword a250, v{vT[4]}, {s2(sPC)}', 's_mov_b64 exec, -1']


def touch_addr(dst, segs):
    n = 0
    for cnt, code in segs:
        A(code.replace('$', f's{sT[0]}'))
        A(f's_sub_u32 s{sT[0]}, s{sT[0]}, {128 * n}')
        if n:
            A(f'v_cmp_lt_u32 vcc, {n - 1}, v{vL}\nv_mov_b32 v{vT[4]}, s{sT[0]}\nv_cndmask_b32 v{dst}, v{dst}, v{vT[4]}, vcc')
        else:
            A(f'v_mov_b32 v{dst}, s{sT[0]}')
        n += cnt
    A(f'v_lshl_add_u32 v{dst}, v{vL}, 7, v{dst}')
    return n


SEG_ST = (24, f's_lshl_b32 $, s{sR128}, 4\ns_add_u32 $, $, s{sMem}\ns_lshl_b32 $, $, 12\ns_add_u32 $, $, {WS_ST}')
SEG_F = (6, f's_lshl_b32 $, s{sR128}, 10\ns_add_u32 $, $, {WS_FU}')


def retouch():
    return atom(unpark('rt', vT[0]), f's_and_b32 exec_lo, s{sPub}, 0x3fffffff', 's_mov_b32 exec_hi, 0',
                f'buffer_load_dword a250, v{vT[0]}, {W}, 0 offen', 's_mov_b64 exec, -1')


def wbl2():
    A(f's_lshl_b32 vcc_lo, s{sJ}, 2\ns_add_u32 vcc_lo, vcc_lo, s{sW}\ns_cmp_lg_u32 vcc_lo, {OPT["wbw"]}')
    with A.skip_if('s_cbranch_scc1', lambda c: True):
        A('buffer_wbl2 sc1')


AF = 128
vAR, vAR2, vXd, vXd2, vBd, vBd2, vR, vSgn = 144, 145, 146, 147, 148, 149, 150, 151
CR, CI, CT, CTMP, vCd = 176, 180, 192 if OPT['cfs'] >= 0 else 128, 152, 174
vKV, vKS, vKR, vSR, vFX, vFXa = 169, 171, 172, 173, 184, 185
KK, VV, SKW, WW, AC, KT = 48, 70, 88, 96, 112, 216
OUT = [232, 236, 88, 92]
XP, XS = 48, 88
PAR = 229
KA, KB, vKO, vKP = 192, 204, 186, 163
vZ, vXT = 224, 242
RSL, vRS, CSL = 152, 160, 246
MM, RR = 88, 96
vFP, vFA = 188, 187


def x_dma(vm, p):
    s2i, m = p >> 1, p & 1
    A(f's_add_u32 m0, s{sXm}, {(p % 7) * 8192}\ns_add_u32 s{sT[3]}, s{sXs}, {4 * m * 1280 + s2i * 128}')
    vm(f'buffer_load_dwordx4 v{vXd}, {s4(R_X)}, s{sT[3]} offen lds')
    vm(f'buffer_load_dwordx4 v{vXd2}, {s4(R_X)}, s{sT[3]} offen offset:1024 lds', ('x', p))


def b_dma(vm, g, j, bd=vBd, bd2=vBd2):
    A(f's_add_u32 m0, s{sBm}, {g * 20480 + j * 2048}\ns_add_u32 s{sT[2]}, s{sBs}, {g * 256 + j * 10240}')
    vm(f'buffer_load_dwordx4 v{bd}, {s4(R_B)}, s{sT[2]} offen lds', ('b', g))
    if j < 4:
        vm(f'buffer_load_dwordx4 v{bd2}, {s4(R_B)}, s{sT[2]} offen offset:2048 lds', ('b', g))


def b_all(vm, g):
    t = vT
    srd(R_T1, P_BRE, 819200)
    A(f'v_xor_b32 v{t[0]}, 64, v{vBd}\nv_xor_b32 v{t[1]}, 64, v{vBd2}\ns_mul_i32 s{sT[3]}, s{sMem}, 51200')
    for hf in range(2):
        for j in (0, 2, 4):
            A(f's_add_u32 s{sT[2]}, s{sT[3]}, {g * 256 + hf * 128 + j * 10240}')
            for comp, (r, a, a2) in enumerate(((R_T1, t[0], t[1]), (R_B, vBd, vBd2))):
                A(f's_mov_b32 m0, {g * 20480 + hf * 10240 + j * 2048 + comp * 1024}')
                vm(f'buffer_load_dwordx4 v{a}, {s4(r)}, s{sT[2]} offen lds', ('b', g))
                if j < 4:
                    vm(f'buffer_load_dwordx4 v{a2}, {s4(r)}, s{sT[2]} offen offset:2048 lds', ('b', g))


def prologue():
    A('s_cmp_ge_u32 s2, 256\ns_cbranch_scc1 L_end')
    A.cond['L_end'] = lambda c: False
    if OPT['stamps'] or OPT['fixdur']:
        A(f's_memrealtime {s2(sSt)}\nv_mov_b32 v{vStamp}, 0')
    A('s_load_dwordx16 s[16:31], s[0:1], 0\ns_load_dwordx16 s[32:47], s[0:1], 64\n'
      's_load_dwordx4 s[48:51], s[0:1], 128')
    t = vT
    A(f'''v_and_b32 v{vL}, 63, v0
v_lshrrev_b32 v{t[0]}, 6, v0
v_lshlrev_b32 v{vL16}, 4, v{vL}
v_readfirstlane_b32 s{sW}, v{t[0]}
v_and_b32 v{vI}, 15, v{vL}
v_lshrrev_b32 v{vQ}, 4, v{vL}
s_and_b32 s{sT[0]}, s2, 7
s_lshr_b32 s{sT[1]}, s2, 3
s_getpc_b64 {s2(sPC)}
L_pc:
s_and_b32 s{sMem}, s{sT[1]}, 15
s_lshr_b32 s{sT[2]}, s{sT[1]}, 4
s_lshl_b32 s{sR128}, s{sT[0]}, 1
s_add_u32 s{sR128}, s{sR128}, s{sT[2]}
s_mov_b32 s{sG}, s{sT[0]}
s_mov_b32 s{sJ}, s{sT[1]}''')
    if OPT['prefetch'] & 1:
        A('\n'.join(code_touch()))
    A(f'''v_lshrrev_b32 v{t[0]}, 3, v{vL}
v_and_b32 v{t[2]}, 7, v{vL}
v_mul_u32_u24 v{vR}, 1280, v{t[0]}
v_lshl_add_u32 v{vR}, v{t[2]}, 4, v{vR}''')
    kv_src()


def dma_addr():
    t = vT
    A(f'''v_lshrrev_b32 v{t[0]}, 3, v{vL}
v_and_b32 v{t[1]}, 6, v{t[0]}
v_and_b32 v{t[2]}, 7, v{vL}
s_movk_i32 s{sT[3]}, 0x78
v_bfe_u32 v{t[3]}, s{sT[3]}, v{t[1]}, 2
v_xor_b32 v{t[3]}, v{t[3]}, v{t[2]}
v_mul_u32_u24 v{vXd}, 1280, v{t[0]}
v_lshl_add_u32 v{vBd}, v{t[3]}, 4, v{vXd}
s_and_b32 s{sT[0]}, s{sW}, 1
s_lshl_b32 s{sT[1]}, s{sT[0]}, 6
v_xor_b32 v{vBd}, s{sT[1]}, v{vBd}
v_add_u32 v{vBd2}, {10240 - 2048}, v{vBd}
v_xor_b32 v{t[1]}, v{t[1]}, v{t[2]}
v_and_b32 v{t[0]}, 4, v{t[0]}
v_mul_u32_u24 v{t[0]}, 1280, v{t[0]}
v_lshl_add_u32 v{t[0]}, v{t[1]}, 4, v{t[0]}
v_add_u32 v{vXd}, v{t[0]}, v{vXd}
v_add_u32 v{vXd2}, {20480 - 1024}, v{vXd}
s_lshr_b32 s{sT[1]}, s{sW}, 1
s_mul_i32 s{sBm}, s{sT[1]}, 10240
s_lshl_b32 s{sT[0]}, s{sT[0]}, 10
s_add_u32 s{sBm}, s{sBm}, s{sT[0]}
s_mul_i32 s{sBs}, s{sMem}, 51200
s_lshl_b32 s{sT[1]}, s{sT[1]}, 7
s_add_u32 s{sBs}, s{sBs}, s{sT[1]}
s_lshl_b32 s{sXs}, s{sR128}, 2
s_add_u32 s{sXs}, s{sXs}, s{sW}
s_mul_i32 s{sXs}, s{sXs}, 40960
s_lshl_b32 s{sXm}, s{sW}, 11
s_add_u32 s{sXm}, s{sXm}, {L_AR}''')
    A(f'''s_bitcmp1_b32 s{sW}, 0
s_cselect_b32 s{R_B}, s{P_BIM}, s{P_BRE}
s_cselect_b32 s{R_B + 1}, s{P_BIM + 1}, s{P_BRE + 1}
s_and_b32 s{R_B + 1}, s{R_B + 1}, 0xffff
s_mov_b32 s{R_B + 2}, 819200
s_mov_b32 s{R_B + 3}, 0x20000
s_bitcmp1_b32 s{sR128}, 3
s_cselect_b32 s{R_T0}, s{P_BIM}, s{P_BRE}
s_cselect_b32 s{R_T0 + 1}, s{P_BIM + 1}, s{P_BRE + 1}
s_and_b32 s{R_T0 + 1}, s{R_T0 + 1}, 0xffff
s_mov_b32 s{R_T0 + 2}, 819200
s_mov_b32 s{R_T0 + 3}, 0x20000''')
    srd(R_X, P_X, 2621440)
    srd(R_WS, P_WS, WS_SIZE)


def kv_src():
    A(f'''s_mul_i32 s{sT[0]}, s{sJ}, 81920
s_lshl_b32 s{sT[1]}, s{sG}, 7
s_add_u32 s{sT[0]}, s{sT[0]}, s{sT[1]}
v_add_u32 v{vKV}, s{sT[0]}, v{vR}
s_lshl_b32 s{sX[8]}, s{sG}, 5
s_add_u32 s{sX[8]}, s{sX[8]}, s{sJ}
s_mul_i32 s{sT[0]}, s{sX[8]}, 10240
s_add_u32 s{sT[0]}, s{sT[0]}, 1024
v_add_u32 v{vKV + 1}, s{sT[0]}, v{vR}''')


def kv_addr():
    t = vT
    A(f'''v_lshrrev_b32 v{t[0]}, 3, v{vL}
v_and_b32 v{t[1]}, 7, v{vL}
v_mul_u32_u24 v{t[2]}, 1056, v{t[1]}
v_lshl_add_u32 v{t[2]}, v{t[0]}, 3, v{t[2]}
s_lshl_b32 s{sT[0]}, s{sW}, 6
s_add_u32 s{sT[0]}, s{sT[0]}, {L_SK}
v_add_u32 v{vKR}, s{sT[0]}, v{t[2]}
s_lshl_b32 s{sT[0]}, s{sW}, 8
s_add_u32 s{sT[0]}, s{sT[0]}, {L_SS}
v_lshl_add_u32 v{vSR}, v{t[0]}, 5, s{sT[0]}
v_sub_u32 v{t[2]}, 7, v{t[1]}
v_lshlrev_b32 v{t[2]}, 4, v{t[2]}
v_lshl_add_u32 v{vKS}, v{t[0]}, 14, v{t[2]}
s_mul_i32 s{sT[0]}, s{sG}, 80
s_lshl_b32 s{sT[1]}, s{sW}, 5
s_add_u32 s{sT[0]}, s{sT[0]}, s{sT[1]}
s_lshl_b32 s{sT[0]}, s{sT[0]}, 12
s_lshl_b32 s{sT[1]}, s{sJ}, 7
s_sub_u32 s{sT[0]}, s{sT[0]}, s{sT[1]}
s_add_u32 s{sX[0]}, s{sT[0]}, {WS_KV + 3968}
s_add_u32 s{sKf}, s{sFK}, {WS_FK}
s_movk_i32 s{sKs}, 4096
s_cmp_lg_u32 s{sW}, 2''')
    with A.skip_if('s_cbranch_scc1', lambda c: c['w'] != 2):
        A(f'''v_bfe_u32 v{t[2]}, v{vL}, 4, 1
v_mul_u32_u24 v{t[2]}, 2112, v{t[2]}
v_and_b32 v{t[3]}, 15, v{vL}
v_lshl_add_u32 v{t[2]}, v{t[3]}, 3, v{t[2]}
v_add_u32 v{vKR}, {L_SK + 9 * 1056}, v{t[2]}
v_and_b32 v{t[2]}, 31, v{vL}
v_lshlrev_b32 v{t[2]}, 5, v{t[2]}
v_add_u32 v{vSR}, {L_SS2}, v{t[2]}
v_cmp_gt_u32 vcc, 32, v{vL}
v_mov_b32 v{t[3]}, {OOB}
s_lshl_b32 s{sX[0]}, s{sX[8]}, 11
s_add_u32 s{sX[0]}, s{sX[0]}, {WS_KB}
v_cndmask_b32 v{vKS}, v{t[3]}, v{vL16}, vcc
s_lshl_b32 s{sKf}, s{sX[8]}, 2
s_add_u32 s{sKf}, s{sKf}, {WS_FB}
s_movk_i32 s{sKs}, 512''')


def kv_dma(vm, r, a, so, pos, halo=False):
    if halo:
        A(f'v_subrev_u32 v{vT[0]}, 10240, v{a}\ns_mov_b32 exec_lo, 0\ns_mov_b32 exec_hi, 0xffffff00')
    A(f's_mov_b32 m0, {L_SK + pos * 1056}')
    if so > 64:
        A(f's_mov_b32 s{sT[0]}, {so}')
    vm(f'buffer_load_dwordx4 v{vT[0] if halo else a}, {s4(r)}, {"s%d" % sT[0] if so > 64 else so} offen{NT} lds', 'kv')
    if halo:
        A('s_mov_b64 exec, -1')


def kv_loads0(vm):
    srd(R_T0, P_K, 2621440)
    for p in range(1, 8):
        kv_dma(vm, R_T0, vKV, (p - 1) * 10240, p)
    kv_dma(vm, R_T0, vKV, 0, 0, True)


def kv_loads1(vm):
    srd(R_T1, P_V, 2621440)
    for p in range(1, 9):
        kv_dma(vm, R_T1, vKV, (p - 1) * 10240, 12 + p)


def kv_loads2(vm):
    srd(R_T0, P_K, 2621440)
    srd(R_T1, P_V, 2621440)
    kv_dma(vm, R_T0, vKV, 7 * 10240, 8)
    for hf in range(2):
        kv_dma(vm, R_T0, vKV + 1, 128 * hf, 10 + 2 * hf)
        kv_dma(vm, R_T1, vKV + 1, 128 * hf, 22 + 2 * hf)
    for hf in range(2):
        kv_dma(vm, R_T0, vKV + 1, 128 * hf, 9 + 2 * hf, True)
    srd(R_T1, P_SK, 5120)
    A(f's_mov_b32 m0, {L_SS2}\ns_movk_i32 s{sT[0]}, 4096')
    vm(f'buffer_load_dwordx4 v{vL16}, {s4(R_T1)}, s{sT[0]} offen{NTP} lds', 'kv')
    A(f's_mov_b32 m0, {L_SS}\ns_lshl_b32 s{sT[0]}, s{sG}, 9\ns_mov_b32 exec_hi, 0')
    vm(f'buffer_load_dwordx4 v{vL16}, {s4(R_T1)}, s{sT[0]} offen{NTP} lds', 'kv')
    A('s_mov_b32 exec_hi, -1')


def c_loads(vm):
    t = vT
    A(f'''v_mul_u32_u24 v{t[0]}, 171, v{vL}
v_lshrrev_b32 v{t[0]}, 11, v{t[0]}
v_mul_u32_u24 v{t[1]}, 12, v{t[0]}
v_sub_u32 v{t[1]}, v{vL}, v{t[1]}
s_mul_i32 s{sT[0]}, s{sMem}, 5
v_min_u32 v{t[2]}, 4, v{t[0]}
v_add_u32 v{t[2]}, s{sT[0]}, v{t[2]}
s_mul_i32 s{sT[1]}, s{sW}, 12
v_add_u32 v{t[1]}, s{sT[1]}, v{t[1]}
v_cmp_gt_u32 vcc, 40, v{t[1]}
v_cmp_gt_u32 {s2(sT[2])}, 5, v{t[0]}
s_lshr_b32 s{sT[1]}, s{sJ}, 4
s_mul_i32 s{sT[1]}, s{sT[1]}, 40
v_min_u32 v{t[1]}, 39, v{t[1]}
s_and_b64 vcc, vcc, {s2(sT[2])}
v_add_u32 v{t[1]}, s{sT[1]}, v{t[1]}
s_mul_i32 s{sT[2]}, s{sG}, 102400
v_mul_u32_u24 v{t[3]}, 1280, v{t[1]}
v_lshl_add_u32 v{t[3]}, v{t[2]}, 4, v{t[3]}
v_add_u32 v{t[3]}, s{sT[2]}, v{t[3]}''')
    if OPT['dbg'] & 16:
        A(f'v_mov_b32 v{t[3]}, v{vL16}')
    vm(f'global_load_dwordx4 {v4(CR)}, v{t[3]}, {s2(P_CRE)}{NTC}')
    vm(f'global_load_dwordx4 {v4(CI)}, v{t[3]}, {s2(P_CIM)}{NTC}', 'craw')
    A(f'''v_lshrrev_b32 v{t[3]}, 2, v{t[2]}
v_mul_u32_u24 v{t[3]}, 10240, v{t[3]}
v_and_b32 v{t[2]}, 3, v{t[2]}
v_lshl_add_u32 v{t[3]}, v{t[2]}, 8, v{t[3]}
v_lshrrev_b32 v{t[2]}, 4, v{t[1]}
v_lshl_add_u32 v{t[3]}, v{t[2]}, 10, v{t[3]}
v_and_b32 v{t[1]}, 15, v{t[1]}
v_lshl_add_u32 v{t[3]}, v{t[1]}, 4, v{t[3]}
v_mov_b32 v{t[2]}, {OOB}
v_cndmask_b32 v{vCd}, v{t[2]}, v{t[3]}, vcc
v_min_u32 v{t[0]}, 4, v{t[0]}
v_lshlrev_b32 v{t[0]}, 6, v{t[0]}
v_add_u32 v{vCd + 1}, {L_C}, v{t[0]}''')


def cf_work(vm, lg):
    it = [lambda d=d: lg(f'ds_read_b128 {v4(CT + 4 * d)}, v{vCd + 1} offset:{16 * d}', 'ctab') for d in range(4)]
    it.append(lambda: (vm.wait('craw'), lg.wait('ctab')))
    r, i, o = CTMP, CTMP + 2, CTMP + 4
    for d in range(4):
        cr, ci = v2(CT + 4 * d), v2(CT + 4 * d + 2)
        it += unpack(r, CR + d, 1) + unpack(i, CI + d, 1)
        it += [f'v_pk_mul_f32 {v2(o)}, {v2(r)}, {cr}',
               f'v_pk_mul_f32 {v2(o + 2)}, {v2(r)}, {ci} neg_lo:[0,1] neg_hi:[0,1]',
               f'v_pk_fma_f32 {v2(o)}, {v2(i)}, {ci}, {v2(o)} neg_lo:[0,1,0] neg_hi:[0,1,0]',
               f'v_pk_fma_f32 {v2(o + 2)}, {v2(i)}, {cr}, {v2(o + 2)} neg_lo:[0,1,0] neg_hi:[0,1,0]',
               f'v_cvt_pk_bf16_f32 v{CR + d}, v{o}, v{o + 1}',
               f'v_cvt_pk_bf16_f32 v{CI + d}, v{o + 2}, v{o + 3}']
    it.append(atom(f's_mul_i32 s{sT[0]}, s{sG}, 204800', f's_add_u32 s{sT[0]}, s{sT[0]}, {WS_CF}',
                   f's_add_u32 s{sT[1]}, s{sT[0]}, 5120',
                   lambda: vm(f'buffer_store_dwordx4 {v4(CR)}, v{vCd}, {W}, s{sT[0]} offen sc1'),
                   lambda: vm(f'buffer_store_dwordx4 {v4(CI)}, v{vCd}, {W}, s{sT[1]} offen sc1', 'cfst')))
    return it


def consts():
    lre, lim, ldt = PAR, PAR + 1, PAR + 2
    t = 96
    zr, zi, e, rev, sn, cs = t, t + 1, t + 2, t + 3, t + 4, t + 5
    aL, aV, aC = t + 6, t + 7, t + 8
    P = t + 10
    V = ACC
    Wt = 84
    A(f'''v_lshlrev_b32 v{lre}, 16, v{lre}
v_lshlrev_b32 v{lim}, 16, v{lim}
v_lshlrev_b32 v{ldt}, 16, v{ldt}
v_mul_f32 v{ldt}, 0x3fb8aa3b, v{ldt}
v_exp_f32 v{ldt}, v{ldt}
v_min_u32 v{aC}, 39, v{vL}
v_mul_u32_u24 v{aL}, 80, v{aC}
v_mul_u32_u24 v{aV}, 176, v{aC}''')
    rnd_bf16(ldt)
    A(f'''v_mul_f32 v{zr}, v{ldt}, v{lre}
v_mul_f32 v{zi}, v{ldt}, v{lim}
v_mul_f32 v{zr}, 0x3fb8aa3b, v{zr}
v_mul_f32 v{zi}, 0x3e22f983, v{zi}''')
    for kf, dst in (('1.0', P), ('0x41000000', V + 2)):
        A(f'''v_mul_f32 v{e}, {kf}, v{zr}
v_mul_f32 v{rev}, {kf}, v{zi}
v_exp_f32 v{e}, v{e}
v_fract_f32 v{rev}, v{rev}
v_sin_f32 v{sn}, v{rev}
v_cos_f32 v{cs}, v{rev}
v_mul_f32 v{dst + 1}, v{e}, v{sn}
v_mul_f32 v{dst}, v{e}, v{cs}''')
    A(f'''v_mul_f32 v{e}, v{lre}, v{lre}
v_fmac_f32 v{e}, v{lim}, v{lim}
v_rcp_f32 v{e}, v{e}
v_add_f32 v{rev}, -1.0, v{P}
v_add_f32 v{e}, v{e}, v{e}
v_mul_f32 v{sn}, v{rev}, v{lre}
v_fmac_f32 v{sn}, v{P + 1}, v{lim}
v_mul_f32 v{cs}, v{P + 1}, v{lre}
v_fma_f32 v{cs}, -v{rev}, v{lim}, v{cs}
v_mul_f32 v{sn}, v{e}, v{sn}
v_mul_f32 v{cs}, v{e}, v{cs}
v_and_b32 v{e}, 1, v{aC}
v_lshrrev_b32 v{aC}, 1, v{aC}
v_lshlrev_b32 v{aC}, 4, v{aC}
v_lshl_add_u32 v{aC}, v{e}, 2, v{aC}
v_add_u32 v{aC}, {L_C}, v{aC}
v_add_u32 v{aL}, {L_L}, v{aL}
v_add_u32 v{aV}, {L_V}, v{aV}
ds_write2_b32 v{aC}, v{sn}, v{cs} offset0:0 offset1:2
s_waitcnt lgkmcnt(0)
v_mov_b32 v{V}, 1.0
v_mov_b32 v{V + 1}, 0
v_mov_b32 v{Wt}, 1.0
v_mov_b32 v{Wt + 1}, 0''')
    a = [cmul(P + 2 * k, P + 2 * k - 2, P) for k in range(1, 7)]
    b = [cmul(V + 2 * s, V + 2 * s - 2, V + 2) for s in range(2, 17)]
    for s, ops in enumerate(b):
        A(ops[0])
        if s < len(a):
            A(a[s][0])
        A(ops[1])
        if s < len(a):
            A(a[s][1])
        if 6 <= s < 13:
            k = s - 6
            A(f'ds_write2_b32 v{aL}, v{P + 2 * k}, v{P + 2 * k + 1} offset0:{k} offset1:{8 + k}')
        if s % 2 == 1:
            A(f'ds_write_b128 v{aV}, {v4(V + 2 * (s - 1))} offset:{8 * (s - 1)}')
    A(f'ds_write2_b32 v{aL}, v{V + 2}, v{V + 3} offset0:7 offset1:15')
    A(f'ds_write_b128 v{aV}, {v4(V + 28)} offset:112')
    A('\n'.join(cmul(e, V + 32, V + 32) + cmul(Wt + 2, e, e) + cmul(Wt + 4, Wt + 2, Wt + 2) + cmul(Wt + 6, Wt + 4, Wt + 2)))
    A(f'''ds_write_b64 v{aV}, {v2(V + 32)} offset:128
ds_write_b128 v{aV}, {v4(Wt)} offset:144
ds_write_b128 v{aV}, {v4(Wt + 4)} offset:160''')


def const_reads(lg):
    t = vT
    it = lines(f'''v_lshrrev_b32 v{t[0]}, 1, v{vI}
v_mul_u32_u24 v{t[1]}, 176, v{t[0]}
v_mul_u32_u24 v{t[0]}, 80, v{t[0]}
v_and_b32 v{t[2]}, 1, v{vI}
v_lshl_add_u32 v{t[1]}, v{t[2]}, 2, v{t[1]}
v_lshl_add_u32 v{t[1]}, v{vQ}, 3, v{t[1]}
s_lshl_b32 s{sT[0]}, s{sW}, 5
s_add_u32 s{sT[0]}, s{sT[0]}, {L_V}
v_add_u32 v{t[1]}, s{sT[0]}, v{t[1]}
v_add_u32 v{t[0]}, {L_L}, v{t[0]}
v_cvt_f32_u32 v{vSgn}, v{t[2]}
v_min_u32 v{t[2]}, 39, v{vL}
v_mul_u32_u24 v{t[2]}, 176, v{t[2]}
v_fma_f32 v{vSgn}, 2.0, v{vSgn}, -1.0
v_add_u32 v{t[2]}, {L_V}, v{t[2]}
s_lshl_b32 s{sT[0]}, s{sW}, 3''')
    for j in range(5):
        it.append(lambda j=j: lg(f'ds_read_b32 v{LR + j}, v{t[0]} offset:{j * 640}'))
        it.append(lambda j=j: lg(f'ds_read_b32 v{LS + j}, v{t[0]} offset:{j * 640 + 32}'))
        it.append(lambda j=j: lg(f'ds_read_b32 v{VA + 2 * j}, v{t[1]} offset:{j * 1408}'))
    it.append(lambda: lg(f'ds_read_b64 {v2(mL8)}, v{t[2]} offset:8'))
    it.append(lambda: lg(f'ds_read_b64 {v2(mL128)}, v{t[2]} offset:128'))
    it.append(f'v_add_u32 v{t[2]}, s{sT[0]}, v{t[2]}')
    it.append(lambda: lg(f'ds_read_b64 {v2(mW)}, v{t[2]} offset:144', 'cst'))
    fix = [lambda: lg.wait('cst')]
    for j in range(5):
        fix += [f'v_mul_f32 v{LS + j}, v{vSgn}, v{LS + j}',
                f'v_mul_f32_dpp v{VA + 2 * j + 1}, v{VA + 2 * j}, v{vSgn} {SWP}']
    return it, fix


def kv_work(vm, lg):
    rd = [lambda: lg(f'ds_read_b128 {v4(SKW)}, v{vSR}'), lambda: lg(f'ds_read_b128 {v4(SKW + 4)}, v{vSR} offset:16', 'skw')]
    for r in range(11):
        off = 1056 + (r - 3) * 128 if r >= 3 else (5 + r) * 128
        rd.append(lambda r=r, off=off: lg(f'ds_read_b64 {v2(KK + 2 * r)}, v{vKR} offset:{off}', 'kk'))
    for r in range(8):
        rd.append(lambda r=r: lg(f'ds_read_b64 {v2(VV + 2 * r)}, v{vKR} offset:{VOFF + 1056 + r * 128}', 'vv'))
    it = [lambda: lg.wait('skw')]
    for e in range(4):
        for i in range(4):
            src = SKW + 2 * e + (i >> 1)
            it.append(f'v_and_b32 v{WW + 4 * i + e}, 0xffff0000, v{src}' if i & 1 else
                      f'v_lshlrev_b32 v{WW + 4 * i + e}, 16, v{src}')
    it.append(lambda: lg.wait('kk'))
    for d in range(2):
        pend = []
        for r in range(11):
            tmp = KT + 2 * (r % 2)
            it += unpack(tmp, KK + 2 * r + d, 1) if r == 0 else []
            nxt = unpack(KT + 2 * ((r + 1) % 2), KK + 2 * (r + 1) + d, 1) if r < 10 else []
            ops = []
            for stage in range(4):
                ta = r - stage
                if 0 <= ta < 8:
                    w = v2(WW + 4 * (3 - stage) + 2 * d)
                    ac = v2(AC + 2 * ta)
                    ops.append(f'v_pk_mul_f32 {ac}, {v2(tmp)}, {w}' if stage == 0 else
                               f'v_pk_fma_f32 {ac}, {v2(tmp)}, {w}, {ac}')
            it += ops[:1] + nxt + ops[1:]
        it.append(lambda: lg.wait('vv'))
        for ta in range(8):
            tmp = KT + 4 + 2 * (ta % 2)
            it += unpack(tmp, VV + 2 * ta + d, 1) + pend
            pend = [f'v_pk_mul_f32 {v2(AC + 2 * ta)}, {v2(AC + 2 * ta)}, {v2(tmp)}']
        it += pend
        for eo in range(2):
            for dd in range(4):
                it.append(f'v_cvt_pk_bf16_f32 v{OUT[2 * d + eo] + dd}, v{AC + 2 * (7 - 2 * dd) + eo}, '
                          f'v{AC + 2 * (6 - 2 * dd) + eo}')

    def st():
        ls = []
        for e in range(4):
            if e:
                ls.append(f's_add_u32 s{sX[0]}, s{sX[0]}, s{sKs}')
            ls.append(f'buffer_store_dwordx4 {v4(OUT[e])}, v{vKS}, {W}, s{sX[0]} offen')
        mode_stores(ls, sKm, OPT['thr'] & 1)
        vm.n += 4
        vm.t['kvst'] = vm.n
    it.append(st)
    return rd, it


def stats_work(vm):
    S, Q, ad = XS, XS + 2, vT[0]
    it = [lambda: vm.wait('xp')]
    for i in range(40):
        it.append(f'v_dot2_f32_bf16 v{S}, v{XP + i}, s{sOnes}, ' + (f'v{S}' if i else '0'))
        it.append(f'v_dot2_f32_bf16 v{Q}, v{XP + i}, v{XP + i}, ' + (f'v{Q}' if i else '0'))
    with Cap() as c:
        for mod in ('quad_perm:[1,0,3,2]', 'quad_perm:[2,3,0,1]', 'row_half_mirror'):
            A(f'v_add_f32_dpp v{S}, v{S}, v{S} {mod} {DPPM}')
            A(f'v_add_f32_dpp v{Q}, v{Q}, v{Q} {mod} {DPPM}')
        inv = 0x3acccccd
        A(f'''v_mul_f32 v{S}, {inv:#x}, v{S}
v_mul_f32 v{Q}, {inv:#x}, v{Q}
v_fma_f32 v{Q}, -v{S}, v{S}, v{Q}
v_max_f32 v{Q}, 0, v{Q}''')
        rnd_bf16(S)
        rnd_bf16(Q)
        A(f'v_add_f32 v{Q}, 0x3727c5ac, v{Q}')
        rnd_bf16(Q)
        A(f'v_sqrt_f32 v{Q}, v{Q}')
        rnd_bf16(Q)
        A(f'''v_rcp_f32 v{S + 1}, v{Q}
v_mov_b32 v{Q}, s{sTag}
v_mov_b32 v{Q + 1}, s{sTag}''')

    def st():
        A(f'''v_lshlrev_b32 v{ad}, 1, v{vL}
s_lshl_b32 s{sT[0]}, s{sR128}, 4
s_add_u32 s{sT[0]}, s{sT[0]}, s{sMem}
s_lshl_b32 s{sT[0]}, s{sT[0]}, 7
s_add_u32 s{sT[0]}, s{sT[0]}, {WS_RS}
s_mov_b32 exec_lo, 0x01010101
s_mov_b32 exec_hi, 0x01010101''')
        vm(f'buffer_store_dwordx4 {v4(S)}, v{ad}, {W}, s{sT[0]} offen sc1')
        A('s_mov_b64 exec, -1')
    return it + c.lines + [st]


def colsum_work(vm):
    cs = XS
    it = [lambda: vm.wait('xp')]
    for i in range(40):
        it.append(f'v_dot2_f32_bf16 v{cs + (i & 1)}, v{XP + i}, s{sOnes}, ' + (f'v{cs + (i & 1)}' if i > 1 else '0'))
    it.append(f'v_add_f32 v{cs}, v{cs}, v{cs + 1}')
    for mod in ('quad_perm:[1,0,3,2]', 'quad_perm:[2,3,0,1]', 'row_half_mirror'):
        it.append(f'v_add_f32_dpp v{cs}, v{cs}, v{cs} {mod} {DPPM}')

    def st():
        A(f"""v_mov_b32 v{cs + 1}, s{sTag}
v_lshlrev_b32 v{vT[0]}, 1, v{vL}
s_lshl_b32 s{sT[0]}, s{sMem}, 3
s_and_b32 s{sT[1]}, s{sR128}, 7
s_add_u32 s{sT[0]}, s{sT[0]}, s{sT[1]}
s_mul_i32 s{sT[0]}, s{sT[0]}, 80
s_and_b32 s{sT[1]}, s{sR128}, 8
s_add_u32 s{sT[0]}, s{sT[0]}, s{sT[1]}
s_add_u32 s{sT[0]}, s{sT[0]}, {WS_CS}
s_mov_b32 exec_lo, 0x01010101
s_mov_b32 exec_hi, 1""")
        vm(f'buffer_store_dwordx2 {v2(cs)}, v{vT[0]}, {W}, s{sT[0]} offen sc1')
        A('s_mov_b64 exec, -1')
    return it + [st]


def fx_store(mods):
    A(f"""s_lshl_b32 s{sT[0]}, s{sG}, 11
s_lshl_b32 s{sT[1]}, s{sJ}, 2
s_add_u32 s{sT[0]}, s{sT[0]}, s{sT[1]}
s_add_u32 s{sT[0]}, s{sT[0]}, {WS_FX}
s_or_b32 s{sT[1]}, s{sTag}, s{sXcc}
v_mov_b32 v{vT[4]}, s{sT[1]}
s_mov_b64 exec, 1
buffer_store_dword v{vT[4]}, off, {W}, s{sT[0]}{mods}
s_mov_b64 exec, -1""")


def mode_check(vm):
    t, x, fa, so = vFX, vT[4], vFXa, sX[2]
    vm.wait('fx')
    lab, done = A.label('again'), A.label('ok')
    A.cond[lab] = lambda c: False
    A(f"""v_xor_b32 v{x}, s{sTag}, v{t}
v_cmp_lt_u32 vcc, 15, v{x}
s_cbranch_vccnz {lab}
{done}:""")
    TAIL.append(f"""{lab}:
s_sub_u32 s{sBud}, s{sBud}, 1
s_cmp_gt_i32 s{sBud}, 0
s_cbranch_scc0 {done}
buffer_load_dword v{t}, v{fa}, {W}, s{so} offen sc1
s_waitcnt vmcnt(0)
v_xor_b32 v{x}, s{sTag}, v{t}
v_cmp_lt_u32 vcc, 15, v{x}
s_cbranch_vccz {done}
s_and_b32 s{sT[1]}, s{sBud}, 3
s_cbranch_scc1 {lab}
buffer_load_dword v{t}, v{fa}, {W}, s{so} offen offset:128 sc1
s_waitcnt vmcnt(0)
v_xor_b32 v{x}, s{sTag}, v{t}
v_cmp_lt_u32 vcc, 15, v{x}
s_cbranch_vccnz {lab}
s_branch {done}""")
    A(f"""s_or_b32 s{sT[1]}, s{sTag}, s{sXcc}
v_cmp_ne_u32 vcc, s{sT[1]}, v{t}
s_cmp_eq_u64 vcc, 0
s_cselect_b32 s{sMode}, {0 if OPT['force_slow'] else 1}, 0
s_cmp_eq_u32 s{sW}, 2
s_cselect_b32 s{sKm}, 0, s{sMode}""")


def gemm_addr():
    t = vT
    A(f"""v_and_b32 v{t[0]}, 1, v{vI}
v_lshrrev_b32 v{t[1]}, 1, v{vI}
v_and_b32 v{t[2]}, 6, v{t[1]}
s_movk_i32 s{sT[3]}, 0x78
v_bfe_u32 v{t[2]}, s{sT[3]}, v{t[2]}, 2
v_xor_b32 v{t[2]}, v{t[2]}, v{vQ}
v_lshl_add_u32 v{t[2]}, v{t[0]}, 2, v{t[2]}
v_lshlrev_b32 v{t[2]}, 4, v{t[2]}
v_lshl_add_u32 v{t[2]}, v{t[1]}, 7, v{t[2]}
v_lshl_add_u32 v{vBA[0]}, v{t[0]}, 10, v{t[2]}
v_xor_b32 v{vBA[1]}, 64, v{vBA[0]}
v_add_u32 v{vBA[2]}, 51200, v{vBA[0]}
v_add_u32 v{vBA[3]}, 51200, v{vBA[1]}
v_mul_u32_u24 v{vAS}, 144, v{t[1]}
v_lshl_add_u32 v{vAS}, v{t[0]}, 2, v{vAS}
v_lshl_add_u32 v{vAS}, v{vQ}, 3, v{vAS}
s_lshl_b32 s{sT[0]}, s{sW}, 5
v_add_u32 v{vAS}, s{sT[0]}, v{vAS}
v_and_b32 v{t[0]}, 6, v{vI}
v_xor_b32 v{t[0]}, v{t[0]}, v{vQ}
v_lshlrev_b32 v{t[0]}, 4, v{t[0]}
v_lshl_add_u32 v{t[0]}, v{vI}, 7, v{t[0]}
v_add_u32 v{vAR}, s{sXm}, v{t[0]}
v_xor_b32 v{vAR2}, 64, v{vAR}""")


def misc_setup():
    t = vT
    A(f'''s_lshr_b32 s{sCs}, s{sX[8]}, 1
s_add_u32 s{sCs}, s{sCs}, 512
s_lshr_b32 s{sT[2]}, s{sMem}, 3
s_lshl_b32 s{sR64}, s{sR128}, 1
s_add_u32 s{sR64}, s{sR64}, s{sT[2]}
s_and_b32 s{sS8}, s{sMem}, 7
s_lshl_b32 s{sFW}, s{sR128}, 10
s_lshl_b32 s{sT[1]}, s{sMem}, 4
s_add_u32 s{sFW}, s{sFW}, s{sT[1]}
s_lshl_b32 s{sT[1]}, s{sW}, 2
s_add_u32 s{sFW}, s{sFW}, s{sT[1]}
s_lshl_b32 s{sFK}, s{sG}, 11
s_add_u32 s{sFK}, s{sFK}, s{sT[1]}
s_lshl_b32 s{sT[1]}, s{sJ}, 4
s_add_u32 s{sFK}, s{sFK}, s{sT[1]}
s_lshl_b32 s{sAgg}, s{sMem}, 5
s_add_u32 s{sAgg}, s{sAgg}, s{sR128}
s_mul_i32 s{sAgg}, s{sAgg}, 640
s_add_u32 s{sAgg}, s{sAgg}, {WS_AGG}
s_cmp_eq_u32 s{sW}, 0
s_cselect_b32 s{sPub}, -1, 0
s_cselect_b32 s{sPub + 1}, 0xff, 0''')
    A(f's_lshl_b32 s{sT[0]}, s{sXs}, 1\ns_mul_i32 s{sT[1]}, s{sMem}, 5')
    for j in range(5):
        A(f"""s_add_u32 s{sT[2]}, s{sT[1]}, {j}
s_lshr_b32 s{sT[3]}, s{sT[2]}, 2
s_lshl_b32 s{sT[3]}, s{sT[3]}, 11
s_and_b32 s{sT[2]}, s{sT[2]}, 3
s_lshl_b32 s{sT[2]}, s{sT[2]}, 8
s_add_u32 s{sT[2]}, s{sT[2]}, s{sT[3]}
s_add_u32 s{sH[j]}, s{sT[2]}, s{sT[0]}""")
    tw, tr, ts = vU[0], vU[1], vU[2]
    A(f'''s_mul_i32 s{sT[0]}, s{sW}, 1280
s_add_u32 s{sT[0]}, s{sT[0]}, {L_TR}
v_mul_u32_u24 v{t[0]}, 80, v{vI}
v_lshl_add_u32 v{t[0]}, v{vQ}, 4, v{t[0]}
v_add_u32 v{tw}, s{sT[0]}, v{t[0]}
v_bfe_u32 v{t[1]}, v{vL}, 2, 2
v_mul_u32_u24 v{t[1]}, 160, v{t[1]}
v_and_b32 v{t[2]}, 3, v{vL}
v_lshl_add_u32 v{t[1]}, v{t[2]}, 4, v{t[1]}
v_lshrrev_b32 v{t[2]}, 1, v{vQ}
v_mul_u32_u24 v{t[3]}, 80, v{t[2]}
v_lshlrev_b32 v{t[2]}, 10, v{t[2]}
v_add3_u32 v{t[1]}, v{t[1]}, v{t[3]}, s{sT[0]}
v_and_b32 v{t[3]}, 1, v{vQ}
v_lshl_add_u32 v{tr}, v{t[3]}, 3, v{t[1]}
v_mul_u32_u24 v{t[3]}, 40960, v{t[3]}
v_lshl_add_u32 v{t[2]}, v{vI}, 4, v{t[2]}
v_add_u32 v{ts}, v{t[2]}, v{t[3]}''')
    park('tw', tw), park('tr', tr), park('ts', ts), park('bd', vBd), park('bd2', vBd2)
    A(f'''v_lshrrev_b32 v{t[0]}, 2, v{vI}
v_mul_u32_u24 v{t[0]}, 5120, v{t[0]}
v_and_b32 v{t[1]}, 3, v{vI}
v_lshl_add_u32 v{t[0]}, v{t[1]}, 4, v{t[0]}
v_lshl_add_u32 v{vUA}, v{vQ}, 6, v{t[0]}''')


def weave(items, extra, first, every):
    extra = list(extra)
    for i, it in enumerate(lines(items)):
        run(it)
        if extra and i >= first and (i - first) % every == 0:
            run(extra.pop(0))
    run(extra)


class Roles:
    def __init__(self, n):
        self.c = [VM() for _ in range(n)]

    def __call__(self, text, name=None):
        A(text)
        for c in self.c:
            c.n += 1
            if name is not None:
                c.t[name] = c.n

    def wait(self, *names):
        k = min(c.n - max(c.t[x] for x in names) for c in self.c)
        A(f's_waitcnt vmcnt({min(k, 63)})')
        for c in self.c:
            c.done = max(c.done, c.n - min(k, 63))

    def each(self, fns):
        lj = A.label('join')
        todo = [w for w in range(4) if fns[w]]
        labs = {w: A.label(f'w{w}') for w in todo}
        for w in todo:
            A.cond[labs[w]] = lambda c, w=w: c['w'] == w
            if w != todo[0] or len(todo) < 4:
                A(f's_cmp_eq_u32 s{sW}, {w}\ns_cbranch_scc1 {labs[w]}')
        if len(todo) < 4:
            A(f's_branch {lj}')
        for w in todo:
            A(f'{labs[w]}:')
            fns[w](self.c[w])
            if w != todo[-1]:
                A(f's_branch {lj}')
        A(f'{lj}:')

    def merged(self):
        for c in self.c[1:]:
            self.c[0].merge(c)
        return self.c[0]


def startup():
    t = vT
    R = Roles(4)

    def bs(vm, g0, g1):
        return [lambda g=g, j=j: b_dma(vm, g, j) for g in range(g0, g1) for j in (0, 2, 4)]

    def head1(vm):
        A(f"""v_min_u32 v{t[0]}, 39, v{vL}
s_mul_i32 s{sT[0]}, s{sMem}, 80
v_lshl_add_u32 v{t[3]}, v{t[0]}, 1, s{sT[0]}""")
        vm(f'global_load_ushort v{PAR}, v{t[3]}, {s2(P_LRE)}{NTP}')
        vm(f'global_load_ushort v{PAR + 1}, v{t[3]}, {s2(P_LIM)}{NTP}')
        vm(f'global_load_ushort v{PAR + 2}, v{t[3]}, {s2(P_LDT)}{NTP}', 'par')

    def head0(vm):
        kv_loads0(vm)
        srd(R_WS, P_WS, WS_SIZE)
        agg = f's_lshl_b32 $, s{sMem}, 5\ns_add_u32 $, $, s{sR128}\ns_mul_i32 $, $, 640\ns_add_u32 $, $, '
        n = touch_addr(t[0], [SEG_ST][:OPT['t0']] + [SEG_F, (9, f's_lshl_b32 $, s{sG}, 11\ns_add_u32 $, $, {WS_FK}'),
                              (5, agg + str(WS_AGG + 16 * 640)), (5, agg + str(WS_AGG + 16 * 640 + AGG_L)),
                              (5, f's_mul_i32 $, s{sMem}, 640\ns_add_u32 $, $, {WS_CS}'),
                              (1, f's_lshl_b32 $, s{sG}, 7\ns_add_u32 $, $, {WS_FY}'),
                              (1, f's_lshl_b32 $, s{sG}, 7\ns_add_u32 $, $, {WS_FB}')])
        A(f's_mov_b32 exec_hi, {(1 << n - 32) - 1}')
        vm(f'buffer_load_dword a250, v{t[0]}, {W}, 0 offen{NTT}')
        A('s_mov_b32 exec_hi, -1')

    def head3(vm):
        srd(R_X, P_X, 2621440)
        A(f'''s_lshl_b32 s{sT[0]}, s{sR128}, 4
s_add_u32 s{sT[0]}, s{sT[0]}, s{sMem}
s_mul_i32 s{sT[0]}, s{sT[0]}, 10240''')
        vm.t['kv'] = 0
        for z in range(10):
            vm(f'buffer_load_dwordx4 {v4(XP + 4 * z)}, v{vR}, {s4(R_X)}, s{sT[0]} offen offset:{z * 128}{NTX}', 'xp')
    def args():
        A('s_waitcnt lgkmcnt(0)')
        if OPT['stamps']:
            A(f'v_writelane_b32 v{vStamp}, s{sSt}, 62')
            stamp('start')
    R.each([lambda vm, f=f: (args(), f(vm)) for f in (head0, lambda vm: (head1(vm), kv_loads1(vm)), kv_loads2, head3)])
    A(f's_load_dword s{sTag}, {s2(P_WS)}, 0')

    def scalars():
        A(f'''s_lshl_b32 s{sC0}, s{sX[8]}, 1
s_lshl_b32 s{sT[0]}, s{sC0}, 1
s_load_dword s{sD[0]}, {s2(P_SD)}, s{sT[0]}
s_and_b32 s{sT[0]}, s{sX[8]}, 0xfffffffc
s_add_u32 s{sT[0]}, s{sT[0]}, 1024
s_load_dword s{sD[1]}, {s2(P_SD)}, s{sT[0]}
s_getreg_b32 s{sXcc}, hwreg(HW_REG_XCC_ID, 0, 4)
s_mov_b32 s{sBud}, {OPT['budget']}
s_mov_b32 s{sOnes}, 0x3f803f80''')
    with Cap() as cc:
        consts()
    cc.lines.remove('s_waitcnt lgkmcnt(0)')

    def tag():
        A(f"""s_waitcnt lgkmcnt(0)
s_lshr_b32 s{sTag}, s{sTag}, 4
s_mul_i32 s{sTag}, s{sTag}, 0x19660d
s_add_u32 s{sTag}, s{sTag}, 0x3c6ef35f
s_lshl_b32 s{sTag}, s{sTag}, 4""")

    def more():
        with Cap() as c:
            A(f'''s_lshl_b32 s{sX[6]}, s{sR128}, 11
s_lshl_b32 s{sT[0]}, s{sW}, 9
s_add_u32 s{sX[6]}, s{sX[6]}, s{sT[0]}
s_add_u32 s{sX[6]}, s{sX[6]}, {WS_RS}
v_and_b32 v{vRS}, 7, v{vI}
v_lshlrev_b32 v{vRS}, 4, v{vRS}
v_lshl_add_u32 v{vRS}, v{vQ}, 7, v{vRS}
s_mul_i32 s{sX[7]}, s{sMem}, 640
s_add_u32 s{sX[7]}, s{sX[7]}, {WS_CS}
v_lshlrev_b32 v{vRS + 1}, 3, v{vL}
v_lshlrev_b32 v{vRS + 2}, 3, v{vI}
v_and_b32 v{vFA}, 31, v{vL}
v_lshlrev_b32 v{vFA}, 4, v{vFA}
s_lshl_b32 s{sX[1]}, s{sS8}, 11
s_add_u32 s{sX[1]}, s{sX[1]}, {WS_FS}
v_and_b32 v{vFXa}, 31, v{vL}
v_lshlrev_b32 v{vFXa}, 2, v{vFXa}
s_lshl_b32 s{sX[2]}, s{sG}, 11
s_add_u32 s{sX[2]}, s{sX[2]}, {WS_FX}''')
            run(conv_setup())
            g2_setup(0)
            run(y_setup())
            for i, r in enumerate(vCA + vCB + YREG + G2REG):
                A(f'v_accvgpr_write_b32 a{A_CV + i}, v{r}')
            z_addr()
            touch_addr(vT[0], [SEG_ST, SEG_F])
            park('rt', vT[0])
        return c.lines

    def w0(vm):
        A(f'v_mov_b32 v{XS}, 0')
        fx_store('')
        fx_store(' offset:128 sc1')
        vm.n += 2
        A(f'''v_mov_b32 v{XS + 1}, 0
v_mov_b32 v{XS + 2}, s{sTag}
v_mov_b32 v{XS + 3}, s{sTag}
s_add_u32 s{sT[0]}, s{sAgg}, {AGG_L}
s_mov_b32 exec_hi, 0xff''')
        vm(f'buffer_store_dwordx4 {v4(XS)}, v{vL16}, {W}, s{sAgg} offen sc1')
        vm(f'buffer_store_dwordx4 {v4(XS)}, v{vL16}, {W}, s{sT[0]} offen sc1')
        A('s_mov_b32 exec_hi, -1')

    def w1(vm):
        vm.wait('par')
        run(cc.lines)
    blocks = dict(A=dma_addr, S=scalars, M=misc_setup, C=lambda: c_loads(R), O=lambda: run(more()), T=tag,
                  G=lambda: (gemm_addr(), kv_addr(), k_addr()), K=lambda: run(k_loads(R)),
                  R=lambda: R.each([None, w1, w0, lambda vm: run(stats_work(vm))]))
    for b in OPT['order'].split(','):
        if b[0] == 'B':
            run(bs(R, int(b[1]), int(b[1]) + 1))
        elif b[0] == 'X':
            x_dma(R, int(b[1]))
        elif b[0] == '@':
            stamp(b[1:])
        else:
            blocks[b]()
    R.wait('kv')
    A('s_waitcnt lgkmcnt(0)\ns_barrier')
    stamp('kv_land')
    R(f'buffer_load_dword v{vFX}, v{vFXa}, {W}, s{sX[2]} offen sc1', 'fx')
    lg = LG()
    crd, fix = const_reads(lg)
    run(crd)
    va, vb = R.c[0], R.c[3]
    va.merge(R.c[1]), va.merge(R.c[2])
    l3, lj = A.label('w3'), A.label('join')
    A.cond[l3] = lambda c: c['w'] == 3
    A(f's_cmp_eq_u32 s{sW}, 3\ns_cbranch_scc1 {l3}')
    def nxt(v):
        out = []
        for b in OPT['post'].split(','):
            if b[0] == 'L':
                if v is vb:
                    out += [lambda g=int(b[1]): b_all(v, g)]
                else:
                    v.t['b', int(b[1])] = 0
                continue
            if b[0] == 'C':
                out.append(lambda: c_loads(v))
                continue
            out += bs(v, int(b[1]), int(b[1]) + 1) if b[0] == 'B' else [lambda b=b: x_dma(v, int(b[1]))] if b[0] == 'X' else \
                [atom(k_loads(v)[:3]), atom(k_loads(v)[3:5]), atom(k_loads(v)[5:])]
        return out
    la = copy.deepcopy(lg)
    rd, it = kv_work(va, la)
    run(rd)
    weave(it[:-1], nxt(va), OPT['wv0'], OPT['wv'])
    if not OPT['mlate']:
        mode_check(va)
    run(it[-1])
    A(f's_branch {lj}\n{l3}:')
    A(f'''s_lshl_b32 s{sT[0]}, s{sMem}, 3
s_and_b32 s{sT[1]}, s{sR128}, 7
s_add_u32 s{sT[0]}, s{sT[0]}, s{sT[1]}
s_mul_i32 s{sT[0]}, s{sT[0]}, 6400
s_mov_b32 exec_hi, 0xff''')
    for z in range(1 if OPT['dbg'] & 8 else 10):
        vb(f'buffer_load_dwordx4 {v4(XP + 4 * z)}, v{vR}, {s4(R_T0)}, s{sT[0]} offen offset:{z * 128}', 'xp')
    A('s_mov_b32 exec_hi, -1')
    run(nxt(vb))
    if not OPT['mlate']:
        mode_check(vb)
    run(colsum_work(vb))
    A(f'{lj}:\ns_waitcnt lgkmcnt(0)')
    va.merge(vb)
    vm = va
    stamp('kv_st')
    run(fix[1:])
    if OPT['cfs'] < 0:
        run(cf_work(vm, LG()))
    stamp('cf_st')
    vm.wait(('x', 1), ('b', 0))
    stamp('land')
    return vm


class G1:
    def __init__(self, layer, vm):
        self.layer, self.vm, self.lg, self.side = layer, vm, LG(), Side()
        self.order = list(range(20)) if layer == 0 else list(range(4, 20)) + list(range(4))

    def rd(self, s, j):
        k = self.order[s]
        idx = (k >> 1) * 5 + j
        a, off = (vBA[k & 1], idx * 2048) if idx < 25 else (vBA[2 + (k & 1)], (idx - 25) * 2048)
        self.lg(f'ds_read_b128 {v4(BF + 20 * (s & 1) + 4 * j)}, v{a} offset:{off}', ('B', s, j))

    def rda(self, s, m):
        self.lg(f'ds_read_b128 {v4(AF + 8 * (s & 1) + 4 * m)}, v{vAR2 if s & 1 else vAR} '
                f'offset:{((2 * (s >> 1) + m) % 7) * 8192}', ('A', s, m))

    def ld(self, f):
        s, m = divmod(f, 2)
        s = self.order[s]
        if s == 16:
            A(f's_add_u32 s{sL[m]}, s{sL[m]}, 4096')
        if s == 0:
            A(f's_sub_u32 s{sL[m]}, s{sL[m]}, 4096')
        self.vm(f'buffer_load_dwordx4 {v4(RING + 4 * (f % NR))}, v{vUA}, {W}, s{sL[m]} offen '
                f'offset:{(s % 16) * 256} sc1', ('u', f))

    def step(self, s):
        vm, lg, layer = self.vm, self.lg, self.layer
        if (s in (0, 4, 8, 12, 16) and OPT['stamps'] != 3) or (OPT['stamps'] == 4 and layer == 0):
            stamp(f'.s{s}_{layer}', 2)
        if layer == 0:
            need = [('x', s + 2)] if s & 1 and s < 19 else []
            if (s + 1) % 4 == 0 and s < 19:
                vm.wait(('b', (s + 1) // 4), *need)
                A('s_barrier')
            elif need:
                vm.wait(*need)
        else:
            vm.wait(('u', 2 * s + 1))
            if s == 15:
                A('s_barrier')
        for j in range(5):
            if not OPT['gw'] or s == 0:
                lg.wait(('B', s, j))
            elif j in (0, 3):
                lg.wait(('B', s, 2 if j == 0 else 4))
            if layer == 0 and s == 19 and j == 0:
                A('s_barrier')
            for m in range(2):
                d = ACC + 8 * j + 4 * m
                c = '0' if s == 0 else v4(d)
                a = RING + 4 * ((2 * s + m) % NR) if layer else AF + 8 * (s & 1) + 4 * m
                A(f'v_mfma_f32_16x16x32_bf16 {v4(d)}, {v4(a)}, {v4(BF + 20 * (s & 1) + 4 * j)}, {c}')
                if m == 0 and s < 19:
                    if j == 0 and layer == 0:
                        self.rda(s + 1, 0)
                        self.rda(s + 1, 1)
                    self.rd(s + 1, j)
                if layer == 0 or m == 1:
                    k = 2 * j + m
                    self.side.run(s, 10 - k if layer == 0 else 5 - j)


c_issued = [0]


def c_load(vm):
    i = c_issued[0]
    c_issued[0] += 1
    if i and i % 4 == 0:
        A(f's_add_u32 s{sL[0]}, s{sL[0]}, 4096')
    vm(f'buffer_load_dwordx4 {a4(4 * i)}, v{vL16}, {W}, s{sL[0]} offen offset:{(i % 4) * 1024} sc1', 'cf')


def k_addr():
    A(f'''s_lshl_b32 s{sT[0]}, s{sC0}, 12
s_lshl_b32 s{sT[1]}, s{sW}, 10
s_add_u32 s{sX[3]}, s{sT[0]}, s{sT[1]}
s_add_u32 s{sX[4]}, s{sX[3]}, 4096
s_lshl_b32 s{sX[5]}, s{sCs}, 12
s_add_u32 s{sX[5]}, s{sX[5]}, s{sT[1]}
s_add_u32 s{sT[1]}, s{sT[1]}, {L_K + 32}
v_add_u32 v{vKO}, s{sT[1]}, v{vL16}
v_lshrrev_b32 v{vT[0]}, 1, v{vL}
v_mul_u32_u24 v{vT[0]}, 4160, v{vT[0]}
v_and_b32 v{vT[1]}, 1, v{vL}
v_lshl_add_u32 v{vT[0]}, v{vT[1]}, 4, v{vT[0]}
v_add_u32 v{vKP}, {L_K}, v{vT[0]}''')


def k_loads(vm):
    it = [lambda: srd(R_T1, P_SSK, 2621440)]
    for sl in range(3):
        if not OPT['dbg'] & 2:
            it.append(lambda sl=sl: vm(f'buffer_load_dwordx4 {v4(KA + 4 * sl)}, v{vL16}, {s4(R_T1)}, s{sX[3 + sl]} offen{NTK}'))
        it.append(lambda sl=sl: vm(f'buffer_load_dwordx4 {v4(KB + 4 * sl)}, v{vL16}, {s4(R_T1)}, s{sX[3 + sl]} offen offset:4{NTK}', 'K'))
    return it


def k_work(vm):
    it = [lambda: vm.wait('K')]
    for sl in range(3):
        it[-1] = atom(it[-1], f'ds_write_b128 v{vKO}, {v4(KA + 4 * sl)} offset:{sl * 8320}')
        it.append(atom([f'v_alignbit_b32 v{KB + 4 * sl + i}, v{KB + 4 * sl + i}, v{KA + 4 * sl + i}, 16' for i in range(4)],
                       f'ds_write_b128 v{vKO}, {v4(KB + 4 * sl)} offset:{sl * 8320 + 4160}'))

    def pads():
        A(f's_cmp_lg_u32 s{sW}, 0')
        with A.skip_if('s_cbranch_scc1', lambda c: c['w'] != 0):
            run([f'v_mov_b32 v{216 + i}, 0' for i in range(4)])
            A(f's_mov_b64 exec, 0xfff\nds_write_b128 v{vKP}, {v4(216)}\ns_mov_b64 exec, 1')
            for sl in range(3):
                A(f'ds_write_b16 v{vKP}, v{KA + 4 * sl} offset:{sl * 8320 + 4160 + 30}')
            A('s_mov_b64 exec, -1')
    return it + [pads]


def front(vm):
    g = G1(0, vm)
    lg, S = g.lg, g.side
    A('s_barrier')
    g.rda(0, 0), g.rda(0, 1)
    for j in range(5):
        g.rd(0, j)
    for p in (2, 3):
        if ('x', p) not in vm.t:
            x_dma(vm, p)
    if OPT['cfs'] >= 0:
        S.spread(OPT['cfs'], OPT['cfper'], cf_work(vm, lg))
    if 'K' not in vm.t:
        S.spread(OPT['kls'], 3, k_loads(vm))
    S.add(0, lambda: x_dma(vm, 4), lambda: x_dma(vm, 5))
    for p in range(6, 20):
        S.add(max(1, p - 6), lambda p=p: x_dma(vm, p))
    for gi in range(1, 5):
        if ('b', gi) in vm.t:
            continue
        for n, j in enumerate((0, 2, 4)):
            S.add(OPT[f'b{gi}s'] + n // 2, lambda gi=gi, j=j: b_dma(vm, gi, j))
    if OPT['mlate']:
        assert OPT['thr'] & 1
        S.add(OPT['kvf'] - 1, lambda: mode_check(vm))
    S.add(OPT['kvf'], atom(lambda: vm.wait('kvst'), lambda: flag_store(f's{sKf}', True, vm, sKm)))
    S.add(OPT['cff'], atom(lambda: vm.wait('cfst'), f's_add_u32 s{sT[0]}, s{sFK}, {WS_FS}',
                           lambda: flag_store(f's{sT[0]}', False, vm)))
    fk = f'buffer_load_dwordx2 {v2(vFP)}, v{vFA}, {W}, s{sX[0]} offen sc1'
    S.add(OPT['fsp'], atom(f's_and_b32 s{sX[0]}, s{sFK}, 0x3800', f's_add_u32 s{sX[0]}, s{sX[0]}, {WS_FK}', lambda: vm(fk, 'fk')))

    def fetch():
        vm.wait('fk')
        check_tags([vFP, vFP + 1], fk)
        for sl in range(2):
            A(f's_lshl_b32 s{sT[0]}, s{sG}, 16\ns_add_u32 s{sT[0]}, s{sT[0]}, s{sX[3 + sl]}\n'
              f's_add_u32 s{sT[0]}, s{sT[0]}, {WS_KV}\ns_lshl_b32 m0, s{sW}, 10')
            if sl:
                A(f's_add_u32 m0, m0, {L_KV + sl * 4608}')
            vm(f'buffer_load_dwordx4 v{vL16}, {W}, s{sT[0]} offen sc1 lds', 'kvT')
    assert OPT['fsc'] >= 7
    S.add(OPT['fsc'], fetch)
    S.add(8, f'''v_lshrrev_b32 v{vT[0]}, 5, v{vL}
v_mul_u32_u24 v{vT[0]}, {4608 - 512}, v{vT[0]}
v_add_u32 v{vT[0]}, v{vT[0]}, v{vL16}''', [f'v_mov_b32 v{216 + i}, 0' for i in range(4)],
          lambda: lg(f'ds_write_b128 v{vT[0]}, {v4(216)} offset:{L_KV + 4096}'),
          lambda: lg(f'ds_write_b128 v{vT[0]}, {v4(216)} offset:{L_KV + 4608 + 4096}'))
    rsl = [f'buffer_load_dwordx3 {v3(RSL)}, v{vRS}, {W}, s{sX[6]} offen sc1',
           f'buffer_load_dwordx2 {v2(RSL + 4)}, v{vRS + 1}, {W}, s{sX[7]} offen sc1',
           f'buffer_load_dwordx2 {v2(RSL + 6)}, v{vRS + 2}, {W}, s{sX[7]} offen offset:512 sc1']
    fc = f'buffer_load_dwordx4 {v4(vFP)}, v{vFA}, {W}, s{sX[1]} offen sc1'
    S.add(OPT['late'], [lambda t=t: vm(t, 'rs') for t in rsl])
    S.add(OPT['csp'], lambda: vm(fc, 'fc'))

    def ccheck():
        vm.wait('fc')
        check_tags([vFP + i for i in range(4)], fc)
        A(f'''s_mul_i32 s{sL[0]}, s{sS8}, 200
s_mul_i32 s{sT[0]}, s{sW}, 50
s_add_u32 s{sL[0]}, s{sL[0]}, s{sT[0]}
s_lshl_b32 s{sL[0]}, s{sL[0]}, 10
s_add_u32 s{sL[0]}, s{sL[0]}, {WS_CF}''')
    marks_gather(S, vm, -1)
    S.add(OPT['csc'], ccheck)
    for i in range(OPT['cl0']):
        S.add(OPT['csc'] + i * (20 - OPT['csc']) // OPT['cl0'], lambda: c_load(vm))

    def rscheck():
        vm.wait('rs')
        check_tags([RSL + 2, RSL + 2, RSL + 5, RSL + 7], rsl)
    S.q.setdefault(OPT['rsc'], []).insert(0, rscheck)
    c = lambda j: CSL + j
    S.add(19, f'''v_mov_b32 v{c(0)}, v{RSL + 4}
v_mov_b32 v{c(1)}, v{RSL + 4}
v_mov_b32 v{c(4)}, v{RSL + 6}
v_permlane16_swap_b32 v{c(0)}, v{c(1)}
v_mov_b32 v{c(2)}, v{c(0)}
v_mov_b32 v{c(3)}, v{c(1)}
v_permlane32_swap_b32 v{c(0)}, v{c(2)}
v_permlane32_swap_b32 v{c(1)}, v{c(3)}''')
    S.add(19, [f'v_mov_b32_dpp v{MM + t}, v{RSL} row_newbcast:{t} {DPPM}\n'
               f'v_mov_b32_dpp v{RR + t}, v{RSL + 1} row_newbcast:{t} {DPPM}' for t in range(8)])
    for s in range(20):
        g.step(s)
    assert not g.side.left()
    stamp('g1_0')
    kw = k_work(vm)
    kw += [f'ds_write_b64 v{vZ + 4}, {v2(RSL)}'] + [[]] * (6 - len(kw))
    scan_1(0, [[k] + [lambda: c_load(vm)] * (i < OPT['cs1']) for i, k in enumerate(kw)], lambda: vm.wait('kvT'))
    lg = LG()
    h1, h2 = horner(0, vm, lg)
    weave(h1, [lambda: c_load(vm)] * OPT['cb'], 10, 6)
    for i, r in enumerate(vCA + vCB):
        A(f'v_accvgpr_read_b32 v{r}, a{A_CV + i}')
    for k in range(2):
        for i in range(1, 4):
            A(f'v_add_u32 v{vCA[k] + i}, {1024 * i}, v{vCA[k]}')
    return vm, lg


MAS, PP, AGL, GR = 90, 244, 88, 88
LT = [128, 144, 160, 176, 104]
PK = [120, 124]
vTW, vTR, vTS = 254, 255, 47


def scan_1(layer, extra=[], last=None):
    b = lambda j, ta: ACC + 8 * j + ta
    if layer == 0:
        for j in range(5):
            sel = 'op_sel:[0,1,0] op_sel_hi:[1,1,1]' if j & 1 else 'op_sel_hi:[1,0,1]'
            for p in range(4):
                d = ACC + 8 * j + 2 * p
                A(f'v_pk_fma_f32 {v2(d)}, {v2(MM + 2 * p)}, {v2(CSL + (j & ~1))}, {v2(d)} {sel} '
                  f'neg_lo:[1,0,0] neg_hi:[1,0,0]')
        for j in range(5):
            for p in range(4):
                d = ACC + 8 * j + 2 * p
                A(f'v_pk_mul_f32 {v2(d)}, {v2(d)}, {v2(RR + 2 * p)}')
    extra = list(extra)
    for ta in range(1, 8):
        if extra:
            run(extra.pop(0))
        for j in range(5):
            A(f'v_fmac_f32 v{b(j, ta)}, v{LR + j}, v{b(j, ta - 1)}')
        for j in range(5):
            A(f'v_fmac_f32_dpp v{b(j, ta)}, v{b(j, ta - 1)}, v{LS + j} {SWP}')
    A(f'''v_add_u32 v{vT[0]}, {L_AS}, v{vAS}
v_min_u32 v{vT[1]}, 39, v{vL}
v_mul_u32_u24 v{vU[2]}, 48, v{vT[1]}
s_lshl_b32 s{sT[0]}, s{sW}, 3
s_add_u32 s{sT[0]}, s{sT[0]}, {L_G}
v_add_u32 v{vU[2]}, s{sT[0]}, v{vU[2]}''')
    for j in range(5):
        A(f'ds_write_b32 v{vT[0]}, v{b(j, 7)} offset:{j * 1152}')
    A(f'''v_mul_u32_u24 v{vU[4]}, 144, v{vT[1]}
v_add_u32 v{vU[4]}, {L_AS}, v{vU[4]}''')
    if last:
        last()
    A('s_waitcnt lgkmcnt(0)\ns_barrier')
    stamp(f'scan1_{layer}')


def horner(layer, vm, lg):
    it = [lambda i=i: lg(f'ds_read_b128 {v4(MAS + 4 * i)}, v{vU[4]} offset:{16 * i}', ('as', i)) for i in range(8)]
    for s in range(1, 16):
        if s == 1 or s % 2 == 0:
            it.append(lambda s=s: lg.wait(('as', s // 2)))
        it += cmul(MAS + 2 * s, MAS + 2 * s - 2, mL8, MAS + 2 * s)

    def pub():
        A(f'''v_mov_b32 v{MAS + 32}, s{sTag}
v_mov_b32 v{MAS + 33}, s{sTag}
s_add_u32 s{sT[0]}, s{sAgg}, {layer * AGG_L + 16 * 640}
s_mov_b64 exec, {s2(sPub)}''')
        A(f'buffer_store_dwordx4 {v4(MAS + 30)}, v{vL16}, {W}, s{sT[0]} offen sc1')
        A('s_mov_b64 exec, -1')
        stamp(f'agg_pub_{layer}')
    it.append(pub)
    first, it = it, []
    def own():
        A(f'v_subrev_u32 v{vU[4]}, {L_AS - L_P}, v{vU[4]}\nv_mov_b32 v{MAS - 2}, 0\nv_mov_b32 v{MAS - 1}, 0\ns_mov_b32 exec_hi, 0xff')
        Roles(4).each([lambda c, w=w: [A(f'ds_write_b128 v{vU[4]}, {v4(MAS - 2 + 8 * w + 4 * i)} offset:{32 * w + 16 * i}')
                                       for i in range(2)] for w in range(4)])
        A('s_mov_b32 exec_hi, -1')
        lg.n += 2
    it.append(own)
    it.append(f'v_add_u32 v{vU[4]}, {L_P}, v{vAS}')
    it += [lambda j=j: lg(f'ds_read_b32 v{PP + 2 * j}, v{vU[4]} offset:{j * 1152}', 'pp') for j in range(5)]
    it += [f'v_and_b32 v{vU[1]}, 1, v{vI}', f'v_cvt_f32_u32 v{vU[1]}, v{vU[1]}', f'v_fma_f32 v{vU[1]}, 2.0, v{vU[1]}, -1.0']
    it.append(lambda: lg.wait('pp'))
    it += [f'v_mul_f32_dpp v{PP + 2 * j + 1}, v{PP + 2 * j}, v{vU[1]} {SWP}' for j in range(5)]
    return first, it


def agg_ld(layer):
    pre = f'''s_lshl_b32 s{sX[3]}, s{sW}, 2
s_sub_u32 s{sX[3]}, 12, s{sX[3]}
s_mul_i32 s{sX[3]}, s{sX[3]}, 640
s_add_u32 s{sX[3]}, s{sX[3]}, s{sAgg}
s_add_u32 s{sX[3]}, s{sX[3]}, {layer * AGG_L}
v_min_u32 v{vU[0]}, 39, v{vL}
v_lshlrev_b32 v{vU[0]}, 4, v{vU[0]}'''
    return pre, [f'buffer_load_dwordx3 {v3(AGL + 4 * z)}, v{vU[0]}, {W}, s{sX[3]} offen offset:{z * 640} sc1' for z in range(4)]


def scan_2(layer, vm, ld, hook={}, defer=False, extra=[]):
    lg = LG()
    t = vT
    A(f'''v_lshrrev_b32 v{t[0]}, 1, v{vI}
v_mul_u32_u24 v{t[1]}, 80, v{t[0]}
v_add_u32 v{t[1]}, {L_L}, v{t[1]}
v_mul_u32_u24 v{t[0]}, 48, v{t[0]}
v_add_u32 v{t[0]}, {L_G}, v{t[0]}''')
    def lrd(j):
        for c in range(4):
            lg(f'ds_read_b128 {v4(LT[j] + 4 * c)}, v{t[1]} offset:{j * 640 + 16 * c}', ('L', j))
    early = 5 if layer else OPT['lpre']
    for j in range(early):
        lrd(j)
    A('\n'.join([unpark('tw', vTW), unpark('tr', vTR), unpark('ts', vTS)]))
    vm.wait('agg')
    check_tags([AGL + 2, AGL + 6, AGL + 10, AGL + 14], ld, x=t[3], y=t[4], inline=2)
    stamp(f'agg_in_{layer}')
    for z in range(1, 4):
        A('\n'.join(cmul(AGL + 4 * z, AGL + 4 * z - 4, mL128, AGL + 4 * z)))
    A('\n'.join(cmul(AGL, AGL + 12, mW)))
    if extra:
        extra.pop()()
    A(f'''s_mov_b32 exec_hi, 0xff
ds_write_b64 v{vU[2]}, {v2(AGL)}
s_mov_b32 exec_hi, -1''')
    stamp(f'.fold{layer}', 5 - 2 * (OPT['stamps'] == 3))
    A('s_waitcnt lgkmcnt(0)')
    stamp(f'.added{layer}', 5 - 2 * (OPT['stamps'] == 3))
    A('s_barrier')
    stamp(f'.gbar{layer}', 5 - 2 * (OPT['stamps'] == 3))
    lg = LG()
    GQ = [88, 96, 224, 88, 96]

    def grd(j):
        lg(f'ds_read_b128 {v4(GQ[j])}, v{t[0]} offset:{j * 384}')
        lg(f'ds_read_b128 {v4(GQ[j] + 4)}, v{t[0]} offset:{j * 384 + 16}', ('G', j))
    for j in range(3):
        grd(j)
    for j in range(early, min(early + 1, 5)):
        lrd(j)
    hb = HB[layer]

    def more():
        if extra:
            extra.pop()()
    more()

    def xy(j):
        lg.wait(('G', j))
        q = GQ[j]
        p, a, gq = v2(PP + 2 * j), v2(VA + 2 * j), v2(q)
        A(f'v_pk_add_f32 {gq}, {gq}, {v2(q + 2)}\nv_pk_add_f32 {v2(q + 4)}, {v2(q + 4)}, {v2(q + 6)}\n'
          f'v_pk_add_f32 {gq}, {gq}, {v2(q + 4)}')
        A(f'v_pk_fma_f32 {p}, {a}, {gq}, {p} op_sel:[0,0,0] op_sel_hi:[1,0,1]')
        A(f'v_pk_fma_f32 {p}, {a}, {gq}, {p} op_sel:[1,1,0] op_sel_hi:[0,1,1] neg_hi:[1,0,0]')
        if j < 2:
            grd(j + 3)

    def upd(j):
        p = v2(PP + 2 * j)
        if early + 1 + j < 5:
            lrd(early + 1 + j)
        if j >= early:
            lg.wait(('L', j))
        for k in range(4):
            d = v2(ACC + 8 * j + 2 * k)
            A(f'v_pk_fma_f32 {d}, {v2(LT[j] + 2 * k)}, {p}, {d} op_sel:[0,0,0] op_sel_hi:[1,0,1]')
        more()
        for k in range(4):
            d = v2(ACC + 8 * j + 2 * k)
            A(f'v_pk_fma_f32 {d}, {v2(LT[j] + 8 + 2 * k)}, {p}, {d} op_sel:[0,1,0] op_sel_hi:[1,1,1]')
        pk = PK[j & 1]
        for d in range(4):
            A(f'v_cvt_pk_bf16_f32 v{pk + d}, v{ACC + 8 * j + 2 * d}, v{ACC + 8 * j + 2 * d + 1}')
        lg(f'ds_write_b128 v{vTW}, {v4(pk)}')
        more()
        lg(f'ds_read_b64_tr_b16 {v2(ACC + 8 * j + 4)}, v{vTR}')
        lg(f'ds_read_b64_tr_b16 {v2(ACC + 8 * j + 6)}, v{vTR} offset:640', ('T', j))

    def st(j, vm=vm):
        A(f's_add_u32 s{sT[1]}, s{sH[j]}, {hb}')
        lg.wait(('T', j))
        mode_stores([f'buffer_store_dwordx4 {v4(ACC + 8 * j + 4)}, v{vTS}, {WH}, s{sT[1]} offen'], through=OPT['thr'] & (2 << layer))
        vm.n += 1
        vm.t['hst'] = vm.n
    xy(0), xy(1)
    lag = OPT['lag']
    for j in range(5 + lag):
        stamp(f'.j{j}_{layer}', 5 - 2 * (OPT['stamps'] == 3))
        if j < 5:
            upd(j)
        if j < 3:
            xy(j + 2)
        if j >= lag and j - lag < (defer or 5):
            st(j - lag)
        if j in hook:
            hook[j](lg)
    if defer:
        lg.wait(('T', 4))
        stamp(f'h_st_{layer}')
        return st
    stamp(f'h_st_{layer}')


def h_flag(layer, vm):
    vm.wait('hst')
    A(f's_add_u32 s{sT[2]}, s{sFW}, {WS_FH + layer * 256}')
    flag_store(f's{sT[2]}', True, vm)
    stamp(f'h_flag_{layer}')


CA, CB, CX, CY = 128, 160, 192, 104
vCA, vCB = [232, 236], [240, 241]
JSET = [[1, 2, 4, 7], [0, 3, 5, 6]]


def conv_setup():
    t = vT
    return lines(f"""v_add_u32 v{t[0]}, 1, v{vI}
v_and_b32 v{t[1]}, 1, v{t[0]}
v_mul_u32_u24 v{t[1]}, 4160, v{t[1]}
v_lshrrev_b32 v{t[0]}, 1, v{t[0]}
v_lshl_add_u32 v{t[1]}, v{t[0]}, 2, v{t[1]}
v_lshl_add_u32 v{t[1]}, v{vQ}, 4, v{t[1]}
v_sub_u32 v{t[0]}, 15, v{vI}
v_lshlrev_b32 v{t[0]}, 5, v{t[0]}
v_lshl_add_u32 v{t[0]}, v{vQ}, 4, v{t[0]}
s_lshr_b32 s{sT[0]}, s{sW}, 1
s_and_b32 s{sT[1]}, s{sW}, 1
s_lshl_b32 s{sT[1]}, s{sT[1]}, 8
s_mul_i32 s{sT[2]}, s{sT[0]}, 8320
s_add_u32 s{sT[2]}, s{sT[2]}, s{sT[1]}
s_add_u32 s{sT[2]}, s{sT[2]}, {L_K}
v_add_u32 v{vCA[0]}, s{sT[2]}, v{t[1]}
s_mul_i32 s{sT[2]}, s{sT[0]}, 4608
s_add_u32 s{sT[2]}, s{sT[2]}, s{sT[1]}
v_add_u32 v{vCB[0]}, s{sT[2]}, v{t[0]}
s_lshl_b32 s{sT[1]}, s{sW}, 7
s_add_u32 s{sT[2]}, s{sT[1]}, {L_K + 2 * 8320}
v_add_u32 v{vCA[1]}, s{sT[2]}, v{t[1]}
s_add_u32 s{sT[2]}, s{sT[1]}, {L_KV + 2 * 4608}
v_add_u32 v{vCB[1]}, s{sT[2]}, v{t[0]}""")


class Conv:
    def __init__(self, units, lg, cont=False):
        self.lg, self.seq, self.todo, self.issued = lg, [], [], set()
        free, seen = {}, ({CX + 4 * j for j in range(8)} if cont else set())
        for k, u, js, acc in units:
            first, last = {}, {}
            for a in range(max(js), -1, -1):
                for j in js:
                    if j < a:
                        continue
                    for f in (('A', a), ('B', j - a)):
                        first.setdefault(f, len(self.seq))
                        last[f] = len(self.seq)
                    d = acc + 4 * js.index(j)
                    self.seq.append((k, u, a, j - a, d, d in seen))
                    seen.add(d)
            for f, need in first.items():
                self.todo.append((max(free.get(f, -1), need - OPT['look']), need, (k, u, f)))
            free.update(last)
        self.todo.sort(key=lambda x: x[:2])

    def rd(self, key):
        k, u, (kind, x) = key
        self.issued.add(key)
        if kind == 'A':
            o = 16 * u + 128 * (x & 1)
            self.lg(f'ds_read2_b32 {v2(CA + 4 * x)}, v{vCA[k] + (x >> 1)} offset0:{o} offset1:{o + 1}')
            self.lg(f'ds_read2_b32 {v2(CA + 4 * x + 2)}, v{vCA[k] + (x >> 1)} offset0:{o + 2} offset1:{o + 3}', key)
        else:
            self.lg(f'ds_read_b128 {v4(CB + 4 * x)}, v{vCB[k]} offset:{64 * u + 512 * (7 - x)}', key)

    def emit(self, n0, n1, side):
        todo = self.todo
        while n0 == 0 and todo[0][0] < 0 and todo[0][1] < 4:
            self.rd(todo.pop(0)[2])
        for gn in range(n0, n1):
            k, u, a, b, d, chain = self.seq[gn]
            self.lg.wait((k, u, ('A', a)), (k, u, ('B', b)))
            A(f'v_mfma_f32_16x16x32_bf16 {v4(d)}, {v4(CA + 4 * a)}, {v4(CB + 4 * b)}, {v4(d) if chain else 0}')
            did = 0
            while todo and todo[0][0] <= gn and (did < 1 or todo[0][1] <= gn + 3):
                self.rd(todo.pop(0)[2])
                did += 1
            if not did or gn % 4 == 3:
                side.run(gn // 4, 4 - gn % 4)

    def force(self, keys):
        for it in [x for x in self.todo if x[2] in keys]:
            self.todo.remove(it)
            self.rd(it[2])


vFY = 120
KVM, KVX = 88, 96
YREG = [246, 247, 248, 249, 250, 251, 252]
yS, yKm, yKx, yPw, yPr, ySr, ySw = YREG


def y_setup():
    t = vT
    return lines(f"""s_lshr_b32 s{sT[1]}, s{sW}, 1
s_add_u32 s{sT[0]}, s{sC0}, s{sT[1]}
s_bitcmp1_b32 s{sT[0]}, 0
s_cselect_b32 s{sT[2]}, 16, 0
s_lshr_b32 s{sD[0]}, s{sD[0]}, s{sT[2]}
s_and_b32 s{sDm[0]}, s{sD[0]}, 0xffff
s_lshl_b32 s{sDm[1]}, s{sD[0]}, 16
s_bitcmp1_b32 s{sCs}, 0
s_cselect_b32 s{sT[2]}, 16, 0
s_lshr_b32 s{sD[1]}, s{sD[1]}, s{sT[2]}
s_and_b32 s{sDm[2]}, s{sD[1]}, 0xffff
s_lshl_b32 s{sDm[3]}, s{sD[1]}, 16
s_lshl_b32 s{sYO[0]}, s{sT[0]}, 12
s_and_b32 s{sT[0]}, s{sW}, 1
s_lshl_b32 s{sT[0]}, s{sT[0]}, 11
s_add_u32 s{sYO[0]}, s{sYO[0]}, s{sT[0]}
s_add_u32 s{sYO[0]}, s{sYO[0]}, {WS_Y}
s_mul_i32 s{sT[1]}, s{sT[1]}, 4608
s_sub_u32 s{sT[1]}, s{sT[1]}, s{sT[0]}
s_add_u32 s{sT[1]}, s{sT[1]}, {L_KV + 4088 - 3 * 512}
v_lshlrev_b32 v{yS}, 5, v{vI}
v_lshl_add_u32 v{yS}, v{vQ}, 3, v{yS}
v_sub_u32 v{yKm}, s{sT[1]}, v{yS}
s_bitcmp1_b32 s{sJ}, 0
s_movk_i32 s{sT[0]}, 0x7421
s_cselect_b32 s{sT[0]}, 0x6530, s{sT[0]}
s_lshl_b32 s{sT[1]}, s{sW}, 2
s_lshr_b32 s{sT[0]}, s{sT[0]}, s{sT[1]}
s_and_b32 s{sT[0]}, s{sT[0]}, 7
s_lshl_b32 s{sT[0]}, s{sT[0]}, 9
s_lshl_b32 s{sYO[1]}, s{sCs}, 12
s_add_u32 s{sYO[1]}, s{sYO[1]}, s{sT[0]}
s_add_u32 s{sYO[1]}, s{sYO[1]}, {WS_Y}
s_sub_u32 s{sT[0]}, {L_KV + 2 * 4608 + 4088}, s{sT[0]}
v_sub_u32 v{yKx}, s{sT[0]}, v{yS}
s_lshl_b32 s{sT[0]}, s{sW}, 12
s_add_u32 s{sT[1]}, s{sT[0]}, {L_PM}
v_add_u32 v{ySw}, s{sT[1]}, v{vL16}
s_add_u32 s{sT[1]}, s{sT[0]}, {L_PS}
v_add_u32 v{yPw}, s{sT[1]}, v{vL16}
s_xor_b32 s{sT[1]}, s{sT[0]}, 4096
s_add_u32 s{sT[1]}, s{sT[1]}, {L_PS}
v_add_u32 v{yPr}, s{sT[1]}, v{vL16}
s_lshl_b32 s{sT[1]}, s{sW}, 10
s_add_u32 s{sT[1]}, s{sT[1]}, {L_PM}
v_add_u32 v{ySr}, s{sT[1]}, v{vL16}""")


def y_dterm(acc, kv, dlo, dhi):
    sel = [(1, dhi), (1, dlo), (0, dhi), (0, dlo)]
    return [f'v_dot2_f32_bf16 v{acc + r}, v{kv + sel[r][0]}, s{sel[r][1]}, v{acc + r}' for r in range(4)]


def marks_gather(S, vm, sg):
    if OPT['clr'] * sg > 0:
        marks(S, vm, abs(OPT['clr']), 228 if sg > 0 else 216)
    if OPT['fbp'] * sg > 0:
        gather(S, vm, abs(OPT['fbp']), abs(OPT['fbc']), 124 if sg > 0 else 220)


def marks(S, vm, at, r):
    S.add(at, [f'v_mov_b32 v{r + i}, -1' for i in range(4)], f'v_lshlrev_b32 v{vT[0]}, 3, v{vL}',
          lambda: vm(f'buffer_store_dwordx2 {v2(r)}, v{vT[0]}, {W}, s{sYO[1]} offen sc1'))
    for i in range(2):
        S.add(at + 1 + i, lambda i=i: vm(f'buffer_store_dwordx4 {v4(r)}, v{vL16}, {W}, s{sYO[0]} offen offset:{1024 * i} sc1'))


def gather(S, vm, at, at2, r):
    fb = f'buffer_load_dwordx4 {v4(r)}, v{vL16}, {W}, s{sKs} offen sc1'
    S.add(at, atom(f's_mov_b32 s{sKs}, {WS_FB}', lambda: vm(fb, 'fb')))

    def go():
        vm.wait('fb')
        check_tags([r + i for i in range(4)], fb)
        A(f'''s_lshl_b32 s{sT[1]}, s{sW}, 6
s_sub_u32 s{sT[0]}, 255, s{sT[1]}
v_sub_u32 v{vT[0]}, s{sT[0]}, v{vL}
v_lshlrev_b32 v{vT[0]}, 11, v{vT[0]}
s_and_b32 s{sT[0]}, s{sCs}, 3
s_lshl_b32 s{sT[0]}, s{sT[0]}, 9
s_bfe_u32 s{sT[2]}, s{sCs}, 0x50002
s_lshl_b32 s{sT[2]}, s{sT[2]}, 4
s_add_u32 s{sT[0]}, s{sT[0]}, s{sT[2]}
s_add_u32 s{sT[0]}, s{sT[0]}, {WS_KB}
s_lshl_b32 s{sT[1]}, s{sT[1]}, 4
s_add_u32 m0, s{sT[1]}, {L_KV + 2 * 4608}''')
        vm(f'buffer_load_dwordx4 v{vT[0]}, {W}, s{sT[0]} offen sc1 lds')
    S.add(at2, go)


def conv(vm, lg):
    S = Side()
    e = S.spread(0, 3, horner(0, vm, lg)[1])
    left = 50 - c_issued[0] - OPT['cl2'] - OPT['cs2']
    for i in range(left):
        S.add(i * OPT['clend'] // left, lambda: c_load(vm))
    S.spread(0, 1, z_loads(vm))
    S.add(0, lambda: lg(f'ds_read_b64 a[{A_ZU}:{A_ZU + 1}], v{vZ + 3}'))
    S.spread(14, 2, [lambda: vm.wait('xt')]
             + [lambda m=m: lg(f'ds_read_b64 a[{A_X + 2 * m}:{A_X + 2 * m + 1}], v{vXT} offset:{32 * m}') for m in range(5)]
             + [lambda m=m: lg(f'ds_read_b64 a[{A_DSK + 2 * m}:{A_DSK + 2 * m + 1}], v{vXT + 1} offset:{2560 + 32 * m}')
                for m in range(5)])
    marks_gather(S, vm, 1)
    S.add(1, lambda: srd(R_T0, P_OUT, 5242880))
    if OPT['tch']:
        S.add(OPT['tch'], retouch())
    if OPT['prefetch'] & 2:
        S.add(10, atom(code_touch()))
    pre, ld = agg_ld(0)
    S.spread(OPT['aggl'] - 2, 4, pre)
    for z in range(4):
        S.add(OPT['aggl'] + z // 2, lambda z=z: vm(ld[z], 'agg'))
    nu = OPT['nu']
    cv = Conv([(0, u, list(range(8)), CX) for u in range(nu)], lg)
    cv.emit(0, 36 * nu, S)
    assert not cv.todo and not S.left(), S.left()
    stamp('conv')
    def glue1(lg):
        for i, r in enumerate(YREG + G2REG):
            A(f'v_accvgpr_read_b32 v{r}, a{A_CV + 4 + i}')
        for j in range(4):
            lg(f'ds_read_b64 {v2(KVM + 2 * j)}, v{yKm} offset:{512 * (3 - j)}')
        lg(f'ds_read_b64 {v2(KVX)}, v{yKx}', 'kvm')

    def glue2():
        A(f's_bitcmp0_b32 s{sW}, 0')
        with A.skip_if('s_cbranch_scc1', lambda c: not c['w'] & 1):
            for i in range(16):
                A(f'v_swap_b32 v{CX + i}, v{CX + 16 + i}')

    def yflag(lg):
        A(f'''s_lshl_b32 s{sT[0]}, s{sC0}, 1
s_add_u32 s{sT[0]}, s{sT[0]}, {WS_FY}
v_mov_b32 v{vT[4]}, s{sTag}
s_and_b32 exec_lo, s{sPub}, 1
s_mov_b32 exec_hi, 0
buffer_store_dword v{vT[4]}, off, {W}, s{sT[0]} sc1
s_mov_b64 exec, -1''')
    fy = f'buffer_load_dwordx4 {v4(vFY)}, v{vL16}, {W}, s{sX[5]} offen sc1'
    extra = [lambda: c_load(vm)] * OPT['cs2']
    st = scan_2(0, vm, ld, {0: yflag, 4: glue1}, OPT['defer'], extra)
    assert not extra
    lt, lj = A.label('type'), A.label('join')
    A.cond[lt] = lambda c: c['ty']
    A(f's_bitcmp1_b32 s{sJ}, 0\ns_cbranch_scc1 {lt}')
    p0 = PREV[0]
    for ty in range(2):
        v, lg, S = copy.deepcopy(vm), LG(), Side()
        PREV[0], c_issued[0] = p0, 50 - OPT['cl2']
        o = 9 * (4 - nu)
        for j in range(OPT['defer'], 5):
            S.add((j - OPT['defer']) * OPT['stp'] // 2, lambda j=j: st(j, v))
        for i in range(OPT['cl2']):
            S.add(OPT['cl2s'] + i * (o + 8 - OPT['cl2s']) // OPT['cl2'], lambda: c_load(v))
        S.add(OPT['hfl'], lambda: h_flag(0, v))
        S.add(o + 1, glue2)
        for j in range(4):
            S.add(o + 2 + j, lambda j=j: lg(f'ds_write_b128 v{yPw}, {v4(CX + 16 + 4 * j)} offset:{1024 * j}'))
        S.add(o + 4, 's_barrier')
        S.add(o + OPT['yp0'], atom(f's_mov_b32 s{sX[5]}, {WS_FY}', lambda: v(fy, 'fy')))
        S.add(o + OPT['hp'], lambda: v(H_POLL, 'fh'))
        cv = Conv([(0, u, list(range(8)), CX) for u in range(nu, 4)] + [(1, u, JSET[ty], CY) for u in range(2)], lg, True)
        cv.emit(0, len(cv.seq), S)
        assert not S.left()
        if ty == 0:
            A(f's_branch {lj}\n{lt}:')
    A(f'{lj}:')
    stamp('conv2')
    PM, PS = 208, 224
    for x in range(4):
        A(f'ds_write_b128 v{ySw}, {v4(CY + 4 * x)} offset:{1024 * x}')
    for j in range(4):
        run(y_dterm(CX + 4 * j, KVM + 2 * j, sDm[0], sDm[1]))
    v.wait('fy')
    check_tags([vFY + i for i in range(4)], fy)
    g2 = G2(0, v)
    g2.begin()
    A('s_waitcnt lgkmcnt(0)\ns_barrier')
    for j in range(4):
        A(f'ds_read_b128 {v4(PM + 4 * j)}, v{yPr} offset:{1024 * j}')
    for x in range(4):
        A(f'ds_read_b128 {v4(PS + 4 * x)}, v{ySr} offset:{4096 * x}')
    it = ['s_waitcnt lgkmcnt(0)']
    for j in range(4):
        p = PM + 4 * j
        it += [f'v_add_f32 v{p + i}, v{CX + 4 * j + i}, v{p + i}' for i in range(4)]
        it += [f'v_cvt_pk_bf16_f32 v{p}, v{p}, v{p + 1}', f'v_cvt_pk_bf16_f32 v{p + 1}, v{p + 2}, v{p + 3}',
               lambda j=j, p=p: v(f'buffer_store_dwordx2 {v2(p)}, v{yS}, {W}, s{sYO[0]} offen offset:{512 * j} sc1')]
    it += y_dterm(PS, KVX, sDm[2], sDm[3])
    it += [f'v_add_f32 v{PS + 4 + i}, v{PS + 4 + i}, v{PS + 8 + i}' for i in range(4)]
    it += [f'v_add_f32 v{PS + i}, v{PS + i}, v{PS + 12 + i}' for i in range(4)]
    it += [f'v_add_f32 v{PS + i}, v{PS + i}, v{PS + 4 + i}' for i in range(4)]
    it += [f'v_cvt_pk_bf16_f32 v{PS}, v{PS}, v{PS + 1}', f'v_cvt_pk_bf16_f32 v{PS + 1}, v{PS + 2}, v{PS + 3}',
           lambda: v(f'buffer_store_dwordx2 {v2(PS)}, v{yS}, {W}, s{sYO[1]} offen sc1')]
    g2.ytail = it
    stamp('y_rd')
    return g2


YF, ZR = BF, BF + 20
P0, P1 = 192, 212
XT, DP, ZU, F1, F2 = 98, 100, 102, 88, 92
vHA, vYD, vYR = 244, 252, 253
G2REG = vU[2:5] + [vHA]
YP = 232


def g2_setup(layer):
    hb = HB[layer]
    A(f's_mul_i32 s{sT[1]}, s{sR64}, 163840\ns_mul_i32 s{sT[2]}, s{sW}, 10240\n'
      f's_add_u32 s{sT[1]}, s{sT[1]}, s{sT[2]}\ns_add_u32 s{sT[1]}, s{sT[1]}, {hb}')
    for z in range(4):
        A(f's_add_u32 s{sT[2]}, s{sW}, {z + 1}\ns_and_b32 s{sT[2]}, s{sT[2]}, 3\n'
          f's_mul_i32 s{sT[3]}, s{sT[2]}, 40960\ns_add_u32 s{sDS[z]}, s{sT[3]}, s{sT[1]}')
        if z < 2:
            A(f's_mul_i32 s{sT[3]}, s{sT[2]}, 10240\ns_add_u32 s{sT[3]}, s{sT[3]}, {L_RED + z * 5120}\n'
              f'v_add_u32 v{vU[2 + z]}, s{sT[3]}, v{vL16}')
        if z == 2:
            A(f's_mul_i32 s{sT[3]}, s{sT[2]}, 5120\nv_add_u32 v{vU[2 + z]}, s{sT[3]}, v{vL16}')
    A(f'''s_lshl_b32 s{sZ[3]}, s{sR128}, 10
s_lshl_b32 s{sT[1]}, s{sW}, 6
s_add_u32 s{sZ[3]}, s{sZ[3]}, s{sT[1]}
s_and_b32 s{sT[1]}, s{sR64}, 1
s_lshl_b32 s{sT[1]}, s{sT[1]}, 3
s_add_u32 s{sZ[3]}, s{sZ[3]}, s{sT[1]}
s_add_u32 s{sZ[3]}, s{sZ[3]}, {WS_FH + layer * 256}
v_and_b32 v{vHA}, 3, v{vL}
v_lshlrev_b32 v{vHA}, 4, v{vHA}''')


def z_addr():
    t = vT
    A(f'''s_lshl_b32 s{sT[0]}, s{sR64}, 6
s_lshr_b32 s{sT[1]}, s{sW}, 1
s_lshl_b32 s{sT[1]}, s{sT[1]}, 5
s_add_u32 s{sT[0]}, s{sT[0]}, s{sT[1]}
s_and_b32 s{sT[1]}, s{sW}, 1
s_lshl_b32 s{sT[1]}, s{sT[1]}, 2
s_add_u32 s{sT[0]}, s{sT[0]}, s{sT[1]}
s_mul_i32 s{sZ[0]}, s{sT[0]}, 1280
s_mul_i32 s{sT[1]}, s{sS8}, 160
s_add_u32 s{sZ[0]}, s{sZ[0]}, s{sT[1]}
s_lshl_b32 s{sZ[2]}, s{sW}, 12
s_add_u32 s{sZ[2]}, s{sZ[2]}, {L_PS}''')
    for z in range(3):
        A(f'''v_add_u32 v{t[0]}, {64 * z}, v{vL}
v_mul_u32_u24 v{t[1]}, 205, v{t[0]}
v_lshrrev_b32 v{t[1]}, 11, v{t[1]}
v_lshrrev_b32 v{t[2]}, 2, v{t[1]}
v_mul_u32_u24 v{t[1]}, 1120, v{t[1]}
v_mul_u32_u24 v{t[2]}, 5120, v{t[2]}
v_lshlrev_b32 v{t[0]}, 4, v{t[0]}
v_add3_u32 v{vZ + z}, v{t[0]}, v{t[1]}, v{t[2]}''')
    A(f'''s_and_b32 s{sT[0]}, s{sR64}, 1
s_lshl_b32 s{sT[0]}, s{sT[0]}, 2
s_add_u32 s{sT[0]}, s{sT[0]}, s{sW}
s_lshr_b32 s{sT[1]}, s{sT[0]}, 1
s_lshl_b32 s{sT[1]}, s{sT[1]}, 8
s_and_b32 s{sT[0]}, s{sT[0]}, 1
s_lshl_b32 s{sT[0]}, s{sT[0]}, 5
s_add_u32 s{sT[0]}, s{sT[0]}, s{sT[1]}
s_add_u32 s{sT[0]}, s{sT[0]}, {L_RS}
v_lshrrev_b32 v{t[1]}, 2, v{vI}
v_lshlrev_b32 v{t[1]}, 6, v{t[1]}
v_and_b32 v{t[2]}, 3, v{vI}
v_lshl_add_u32 v{t[1]}, v{t[2]}, 3, v{t[1]}
v_add_u32 v{vZ + 3}, s{sT[0]}, v{t[1]}
v_and_b32 v{t[2]}, 7, v{vI}
v_lshlrev_b32 v{t[2]}, 3, v{t[2]}
v_lshl_add_u32 v{t[2]}, v{vQ}, 6, v{t[2]}
s_lshl_b32 s{sT[0]}, s{sW}, 8
s_add_u32 s{sT[0]}, s{sT[0]}, {L_RS}
v_add_u32 v{vZ + 4}, s{sT[0]}, v{t[2]}
v_lshl_add_u32 v{vXT + 1}, v{vQ}, 3, s{sZ[2]}
v_mul_u32_u24 v{vXT}, 160, v{vI}
v_lshl_add_u32 v{vXT}, v{vQ}, 3, v{vXT}
v_add_u32 v{vXT}, s{sZ[2]}, v{vXT}''')


def z_loads(vm):
    it = []
    for z in range(3):
        it.append(atom(f's_add_u32 m0, s{sZ[2]}, {1024 * z}', 's_mov_b32 exec_hi, 0' if z == 2 else [],
                       lambda z=z: vm(f'buffer_load_dwordx4 v{vZ + z}, {s4(R_X)}, s{sZ[0]} offen lds', 'xt'),
                       's_mov_b32 exec_hi, -1' if z == 2 else []))
    it.append(atom(lambda: srd(R_T1, P_DSK, 1280), f's_add_u32 m0, s{sZ[2]}, 2560', f's_mul_i32 s{sT[0]}, s{sS8}, 160',
                   's_mov_b64 exec, 0x3ff',
                   lambda: vm(f'buffer_load_dwordx4 v{vL16}, {s4(R_T1)}, s{sT[0]} offen lds', 'xt'), 's_mov_b64 exec, -1'))
    return it


def z_work():
    b = [f'v_accvgpr_read_b32 v{ZU}, a{A_ZU}', f'v_accvgpr_read_b32 v{ZU + 1}, a{A_ZU + 1}', f'v_mul_f32 v{ZU}, v{ZU}, v{ZU + 1}']
    for m in range(5):
        for i in range(2):
            b += [f'v_accvgpr_read_b32 v{XT + i}, a{A_X + 2 * m + i}', f'v_accvgpr_read_b32 v{DP + i}, a{A_DSK + 2 * m + i}']
        b += unpack(ZR + 4 * m, XT, 2) + unpack(F2, DP, 2)
        for i in range(4):
            b.append(f'v_fma_f32 v{F1 + i}, v{ZR + 4 * m + i}, v{ZU + 1}, -v{ZU}')
        for i in range(4):
            b.append(f'v_fmac_f32 v{ZR + 4 * m + i}, v{F1 + i}, v{F2 + i}')
    return b


vTM = 246
H_POLL = f'buffer_load_dwordx2 {v2(vU[0])}, v{vHA}, {W}, s{sZ[3]} offen sc1'


class G2:
    def __init__(self, layer, vm):
        self.layer, self.vm, self.nxt = layer, vm, 0

    def ld(self):
        f = self.nxt
        self.nxt += 1
        z, k = divmod(f, 10)
        if k and k % 4 == 0:
            A(f's_add_u32 s{sDS[z]}, s{sDS[z]}, 4096')
        self.vm(f'buffer_load_dwordx4 {v4(RING + 4 * (f % NR))}, v{vL16}, {WH}, s{sDS[z]} offen '
                f'offset:{(k % 4) * 1024} sc1', ('h', f))

    def begin(self):
        if self.layer == 0:
            self.vm.wait('fh')
        check_tags([vU[0], vU[1]], H_POLL, inline=2 - self.layer)
        self.vm.done = self.vm.n if self.layer else self.vm.done
        stamp(f'h_ready_{self.layer}')
        for f in range(OPT['n0'] if self.layer else OPT['n00']):
            self.ld()


def gemm2(g2):
    layer, vm, ld = g2.layer, g2.vm, g2.ld
    side, lg = Side(), LG()
    n0 = g2.nxt
    last = 0
    for f in range(n0, 40):
        last = max(f - n0, f - NR + 1)
        side.add(last, ld)
    last += 1
    hooks = []
    ze = late = 0
    if layer == 0:
        e = side.spread(OPT['ys'], OPT['yper'], g2.ytail)
        side.add(e, 's_barrier')
        assert e < 11
        late = OPT['zlate']
        zw = z_work()
        if late:
            n = (OPT['rb'] - e) * OPT['zper']
            side.spread(e, OPT['zper'], zw[:n])
            assert side.spread(30, OPT['zper'] + 1, zw[n:]) <= 40
        else:
            ze = side.spread(e, OPT['zper'], zw)
            assert ze <= OPT['rb'] - 4 * OPT['r3'], ze
        side.add(OPT['yp'] + 1, f'''s_mul_i32 s{sX[6]}, s{sS8}, 327680
s_lshl_b32 s{sT[0]}, s{sR64}, 7
s_add_u32 s{sX[6]}, s{sX[6]}, s{sT[0]}
s_lshr_b32 s{sT[0]}, s{sW}, 1
s_mul_i32 s{sX[7]}, s{sT[0]}, 5120
s_add_u32 s{sX[7]}, s{sX[7]}, {L_Y}
s_lshl_b32 s{sT[0]}, s{sT[0]}, 6
s_add_u32 s{sX[6]}, s{sX[6]}, s{sT[0]}
s_add_u32 s{sX[6]}, s{sX[6]}, {WS_Y}
s_mov_b32 s{sX[5]}, s{sX[6]}''')
        side.add(OPT['yp'] + 2, f'''s_and_b32 s{sT[0]}, s{sW}, 1
s_mul_i32 s{sT[1]}, s{sT[0]}, {3 * 65536}
s_add_u32 s{sX[6]}, s{sX[6]}, s{sT[1]}
s_mul_i32 s{sT[1]}, s{sT[0]}, 3072
s_add_u32 s{sX[8]}, s{sX[7]}, s{sT[1]}
s_lshl_b32 s{sT[0]}, s{sT[0]}, 3
s_add_u32 s{sX[7]}, s{sX[7]}, s{sT[0]}
v_lshrrev_b32 v{vYD}, 2, v{vL}
v_lshlrev_b32 v{vYD}, 12, v{vYD}
v_and_b32 v{vT[1]}, 3, v{vL}
v_lshl_add_u32 v{vYD}, v{vT[1]}, 4, v{vYD}''')

        def ydma(m):
            A(f's_add_u32 m0, s{sX[8]}, {m * 1024}')
            if m == 2:
                A(f's_bitcmp1_b32 s{sW}, 0\ns_cselect_b32 s{sX[6]}, {OOB}, s{sX[6]}\ns_cselect_b32 m0, {LDS_SIZE}, m0')
            vm(f'buffer_load_dwordx4 v{vYD}, {W}, s{sX[6]} offen sc1 lds', 'yd')
            A(f's_add_u32 s{sX[6]}, s{sX[6]}, 65536')
        side.add(3 if OPT['dbg'] & 256 else last, *[lambda m=m: ydma(m) for m in range(3)])
        side.add(last + 1, f'v_add_u32 v{vYR}, s{sX[7]}, v{vL16}')
    else:
        side.spread(1, 3, [f'v_accvgpr_read_b32 v{ZR + i}, a{A_Z + i}' for i in range(20)] + unpack(YF, YP, 10))
        if OPT['wb'] & 2:
            side.add(OPT['wbs'] or last + 1, wbl2)
    rd = lambda p, a, off, nm: [lambda i=i: lg(f'ds_read_b128 {v4(p + 4 * i)}, v{a} offset:{off + 1024 * i}', nm) for i in range(5)]
    add = lambda d, s: [f'v_add_f32 v{d + i}, v{d + i}, v{s + i}' for i in range(20)]
    side.add(OPT['ra'] - 1, f's_mul_i32 s{sT[3]}, s{sW}, 10240\ns_add_u32 s{sT[3]}, s{sT[3]}, {L_RED}\n'
                            f'v_add_u32 v{vU[5]}, s{sT[3]}, v{vL16}')
    bar = lambda: (lg.wait('pw'), A('s_barrier'))
    wp = OPT['wper']
    for z in range(3):
        pa = ACC + 20 * (z & 1)
        for m in range(5):
            side.q.setdefault(10 * z + 11 + m // wp, []).insert(
                m % wp, lambda z=z, m=m, pa=pa: lg(f'ds_write_b128 v{vU[2 + z]}, {v4(pa + 4 * m)} offset:{1024 * m}', 'pw'))
    if OPT['r3']:
        e = side.spread(OPT['ra'], 5, [bar] + rd(P0, vU[5], 0, 'p0'))
        side.spread(max(e, ze), 5, [lambda: lg.wait('p0')] + add(ZR, P0))
        e = side.spread(OPT['rb'], OPT['rper'], [bar] + rd(P1, vU[5], 5120, 'p1') + [lambda: lg.wait('p1')] + add(ZR, P1))
    else:
        e = side.spread(OPT['rb'], OPT['rper'], [bar] + rd(P0, vU[5], 0, 'p0') + rd(P1, vU[5], 5120, 'p1') + [lambda: lg.wait('p0')]
                        + (add(ZR, P0) + [lambda: lg.wait('p1')] + add(ZR, P1) if not late else
                           [lambda: lg.wait('p1')] + add(P1, P0)))
    assert e <= 30, e
    side.add(OPT['rc'] - 1, f's_mul_i32 s{sT[3]}, s{sW}, 5120\nv_add_u32 v{vU[5]}, s{sT[3]}, v{vL16}')
    if layer == 0:
        side.add(36, [f's_lshr_b32 s{sX[1 + k]}, s{sTag}, {8 * k}' for k in range(4)], f'v_mov_b32 v{vTM}, 0xff',
                 unpark('bd', 244), unpark('bd2', 245))
    side.add(37, f'''s_lshl_b32 s{sT[0]}, s{sR64}, 15
s_lshl_b32 s{sT[1]}, s{sW}, {9 - layer}
s_add_u32 s{sT[0]}, s{sT[0]}, s{sT[1]}
s_add_u32 s{sT[0]}, s{sT[0]}, {WS_ST + layer * 2048}
s_lshl_b32 s{sT[1]}, s{sS8}, 12
s_add_u32 s{sT[1]}, s{sT[1]}, s{sT[0]}''')
    side.spread(OPT['rc'], 6, [atom(lambda: vm.wait(('h', 39)), bar) if layer else bar] + rd(P0, vU[5], 0, 'p2'))
    for z in range(4):
        if OPT['stamps'] < 3:
            stamp(f'.z{z}_{layer}', 2)
        acc = ACC + 20 * (z & 1)
        for k in range(10):
            f = 10 * z + k
            vm.wait(('h', f))
            for h in list(hooks):
                if vm.t[h[0]] <= vm.done:
                    hooks.remove(h)
                    h[1]()
            for m in range(5):
                d = acc + 4 * m
                c = v4(d) if k else ('0' if z < 3 else v4((P1 if late else ZR) + 4 * m))
                A(f'v_mfma_f32_16x16x32_bf16 {v4(d)}, {a4(4 * (5 * k + m))}, {v4(RING + 4 * (f % NR))}, {c}')
                side.run(f, 5 - m)
    assert not side.left() and not hooks
    stamp(f'g2_{layer}')
    return lg


def allreduce_q(r, t):
    for op in ('v_permlane32_swap_b32', 'v_permlane16_swap_b32'):
        A(f'''v_mov_b32 v{t}, v{r}
v_mov_b32 v{t + 1}, v{r + 1}
{op} v{r}, v{t}
{op} v{r + 1}, v{t + 1}
v_add_f32 v{r}, v{r}, v{t}
v_add_f32 v{r + 1}, v{r + 1}, v{t + 1}''')


def epilogue(layer, vm, lg, g1=None):
    a = ACC + 20
    S = 212
    G = 228
    inv = 0x3acccccd
    lg.wait('p2')
    if layer == 0:
        vm.wait('yd')
        A('s_barrier')
        stamp('y_in')
        lg = LG()
        yrd = [f'ds_read_b64_tr_b16 {v2(YP + 2 * m)}, v{vYR} offset:{m * 1024}' for m in range(5)]
        for m in range(5):
            lg(yrd[m], ('y', m))
    for i in range(10 * (layer == 0 and OPT['zlate'])):
        A(f'v_pk_add_f32 {v2(P0 + 2 * i)}, {v2(P0 + 2 * i)}, {v2(ZR + 2 * i)}')
    for i in range(10):
        A(f'v_pk_add_f32 {v2(a + 2 * i)}, {v2(a + 2 * i)}, {v2(P0 + 2 * i)}')
    A(f'v_pk_add_f32 {v2(S)}, {v2(a)}, {v2(a + 2)}\nv_pk_mul_f32 {v2(S + 2)}, {v2(a)}, {v2(a)}')
    for i in range(1, 10):
        if i >= 2:
            A(f'v_pk_add_f32 {v2(S)}, {v2(S)}, {v2(a + 2 * i)}')
        A(f'v_pk_fma_f32 {v2(S + 2)}, {v2(a + 2 * i)}, {v2(a + 2 * i)}, {v2(S + 2)}')
    if layer == 0:
        AY = 160
        stamp('y_ok')
        lab, done, redo = A.label('again'), A.label('ok'), A.label('redo')
        A.cond[lab] = lambda c: False
        slow = [f'{lab}:', f's_sub_u32 s{sBud}, s{sBud}, 1', f's_cmp_gt_i32 s{sBud}, 0', f's_cbranch_scc0 {done}',
                f's_mul_i32 s{sX[8]}, s{sW}, 10240', f's_add_u32 s{sX[8]}, s{sX[8]}, {L_RED + 5120}',
                f's_and_b32 s{sX[6]}, s{sW}, 1', f's_lshl_b32 s{sX[6]}, s{sX[6]}, 3', f's_add_u32 s{sX[6]}, s{sX[6]}, s{sX[8]}',
                f'v_add_u32 v{vYR}, s{sX[6]}, v{vL16}']
        for m in range(5):
            slow += [f's_add_u32 m0, s{sX[8]}, {m * 1024}', f's_add_u32 s{sX[6]}, s{sX[5]}, {m * 65536}',
                     f'buffer_load_dwordx4 v{vYD}, {W}, s{sX[6]} offen sc1 lds']
        TAIL.append('\n'.join(slow + ['s_waitcnt vmcnt(0)'] + yrd + ['s_waitcnt lgkmcnt(0)', f's_branch {redo}']))
        A(f'{redo}:')
        for m in range(5):
            lg.wait(('y', m))
            A('\n'.join(unpack(YF + 4 * m, YP + 2 * m, 2)))
            if m in (0, 2, 4):
                b_dma(vm, 0, m, 244, 245)
            for i in (2 * m, 2 * m + 1):
                x, y, ay = v2(a + 2 * i), v2(YF + 2 * i), v2(AY + 2 * i)
                A(f'v_pk_mul_f32 {ay}, {x}, {y}')
                if i == 0:
                    A(f'v_pk_mul_f32 {v2(S + 14)}, {y}, {y}\nv_pk_mul_f32 {v2(S + 6)}, {ay}, {x}\n'
                      f'v_pk_mul_f32 {v2(S + 8)}, {ay}, {ay}\nv_pk_mul_f32 {v2(S + 10)}, {ay}, {y}')
                else:
                    p2 = v2(AY) if i == 1 else v2(S + 4)
                    p6 = v2(YF) if i == 1 else v2(S + 12)
                    A(f'v_pk_add_f32 {v2(S + 12)}, {p6}, {y}\nv_pk_fma_f32 {v2(S + 14)}, {y}, {y}, {v2(S + 14)}\n'
                      f'v_pk_add_f32 {v2(S + 4)}, {p2}, {ay}\nv_pk_fma_f32 {v2(S + 6)}, {ay}, {x}, {v2(S + 6)}\n'
                      f'v_pk_fma_f32 {v2(S + 8)}, {ay}, {ay}, {v2(S + 8)}\n'
                      f'v_pk_fma_f32 {v2(S + 10)}, {ay}, {y}, {v2(S + 10)}')
        A(f'v_cmp_u_f32 vcc, v{S + 12}, v{S + 13}\ns_cbranch_vccnz {lab}\n{done}:')
        for k in range(8):
            A(f'v_add_f32 v{S + 2 * k}, v{S + 2 * k}, v{S + 2 * k + 1}')
        for k in range(4):
            A(f'v_permlane16_swap_b32 v{S + 2 * k}, v{S + 2 * k + 8}')
        for k in range(4):
            A(f'v_add_f32 v{G + k}, v{S + 2 * k}, v{S + 2 * k + 8}')
        for k in range(4):
            A(f'v_mov_b32 v{S + k}, v{G + k}')
        for k in range(4):
            A(f'v_permlane32_swap_b32 v{G + k}, v{S + k}')
        for k in range(4):
            A(f'v_add_f32 v{G + k}, v{G + k}, v{S + k}')
        for k in range(4):
            A(f'v_bfi_b32 v{G + k}, v{vTM}, s{sX[1 + k]}, v{G + k}')
        A('s_mov_b32 exec_hi, 0')
        mode_stores([f'buffer_store_dwordx4 {v4(G)}, v{vL16}, {W}, s{sT[1]} offen'], through=OPT['thr'] & 16)
        A('s_mov_b32 exec_hi, -1')
        stamp('st_pub_0')
        if OPT['prefetch'] & 4:
            run(code_touch())
        for i in range(10):
            A(f'v_accvgpr_write_b32 a{A_Y + i}, v{YP + i}')
        A(f'''v_lshrrev_b32 v{vT[0]}, 2, v{vI}
v_mul_u32_u24 v{vT[0]}, 5120, v{vT[0]}
v_and_b32 v{vT[1]}, 3, v{vI}
v_lshl_add_u32 v{vT[0]}, v{vT[1]}, 4, v{vT[0]}
v_lshrrev_b32 v{vT[1]}, 1, v{vQ}
v_lshl_add_u32 v{vT[0]}, v{vT[1]}, 6, v{vT[0]}
v_and_b32 v{vT[1]}, 1, v{vQ}
v_lshl_add_u32 v{vU[5]}, v{vT[1]}, 3, v{vT[0]}
s_lshl_b32 s{sX[1]}, s{sR64}, 2
s_add_u32 s{sX[1]}, s{sX[1]}, s{sW}
s_mul_i32 s{sX[1]}, s{sX[1]}, 20480
s_mul_i32 s{sT[2]}, s{sS8}, 640
s_add_u32 s{sX[1]}, s{sX[1]}, s{sT[2]}
s_add_u32 s{sX[1]}, s{sX[1]}, {WS_U2}''')
        DPk, DF = 190, 108
        for i in range(10):
            A(f'v_accvgpr_read_b32 v{DPk + i}, a{A_DSK + i}')
        A('\n'.join(unpack(DF, DPk, 10)))
        A(f'''s_lshl_b32 s{sX[0]}, s{sR128}, 10
s_lshr_b32 s{sT[1]}, s{sW}, 1
s_lshl_b32 s{sT[1]}, s{sT[1]}, 7
s_add_u32 s{sX[0]}, s{sX[0]}, s{sT[1]}
s_and_b32 s{sT[1]}, s{sW}, 1
s_lshl_b32 s{sT[1]}, s{sT[1]}, 3
s_add_u32 s{sX[0]}, s{sX[0]}, s{sT[1]}
s_add_u32 s{sX[0]}, s{sX[0]}, {WS_FU}
v_and_b32 v{vU[4]}, 7, v{vL}
v_lshlrev_b32 v{vU[4]}, 4, v{vU[4]}
s_add_u32 s{sL[0]}, s{sXs}, {WS_U2}
s_add_u32 s{sL[1]}, s{sL[0]}, 20480
s_lshl_b32 s{sEpW}, s{sR64}, 5
s_lshl_b32 s{sT[1]}, s{sS8}, 2
s_add_u32 s{sEpW}, s{sEpW}, s{sT[1]}
s_add_u32 s{sEpW}, s{sEpW}, s{sW}''')
        A(f'''v_and_b32 v{vT[0]}, 31, v{vL}
v_lshlrev_b32 v{vT[0]}, 4, v{vT[0]}
v_lshrrev_b32 v{vT[1]}, 5, v{vL}
v_lshl_add_u32 v{vT[0]}, v{vT[1]}, 14, v{vT[0]}
s_mov_b32 s{sT[2]}, 0x0c0c0400
s_mov_b32 s{sT[3]}, 0x04000c0c
s_add_u32 s{sX[2]}, s{sT[0]}, 4096
s_add_u32 s{sX[3]}, s{sT[0]}, 8192
s_add_u32 s{sX[4]}, s{sT[0]}, 12288''')
        back = A.label('stpoll')
        A(f'{back}:')
        Q = 128
        for sl, so in enumerate((sT[0], sX[2], sX[3], sX[4])):
            A(f'buffer_load_dwordx4 {v4(Q + 4 * sl)}, v{vT[0]}, {W}, s{so} offen sc1')
        A('s_waitcnt vmcnt(0)')
        for sl in range(4):
            q = Q + 4 * sl
            A(f'v_perm_b32 v{S + 2 * sl}, v{q + 1}, v{q}, s{sT[2]}\nv_perm_b32 v{S + 2 * sl + 1}, v{q + 3}, v{q + 2}, s{sT[3]}')
        for sl in range(4):
            A(f'v_or_b32 v{S + 2 * sl}, v{S + 2 * sl}, v{S + 2 * sl + 1}')
        lo, hi = vT[2], vT[3]
        A(f'''v_min3_u32 v{lo}, v{S}, v{S + 2}, s{sTag}
v_max3_u32 v{hi}, v{S}, v{S + 2}, s{sTag}
v_min3_u32 v{lo}, v{lo}, v{S + 4}, v{S + 6}
v_max3_u32 v{hi}, v{hi}, v{S + 4}, v{S + 6}
v_cmp_ne_u32 vcc, v{lo}, v{hi}''')
        retry(back)
        stamp('st_in_0')
        for hf in (0, 2):
            A(f'v_pk_add_f32 {v2(Q + hf)}, {v2(Q + hf)}, {v2(Q + 4 + hf)}\n'
              f'v_pk_add_f32 {v2(Q + 8 + hf)}, {v2(Q + 8 + hf)}, {v2(Q + 12 + hf)}')
        for hf in (0, 2):
            A(f'v_pk_add_f32 {v2(Q + hf)}, {v2(Q + hf)}, {v2(Q + 8 + hf)}')
        s = lambda k: S + k
        for k in range(4):
            A(f'v_mov_b32 v{Q + 4 + k}, v{Q + k}')
        for k in range(4):
            A(f'v_permlane32_swap_b32 v{Q + k}, v{Q + 4 + k}')
        for k in range(4):
            A(f'v_add_f32 v{s(k)}, v{Q + k}, v{Q + 4 + k}')
        for k in range(4):
            A(f'v_mov_b32 v{s(4 + k)}, v{s(k)}')
        for k in range(4):
            A(f'v_permlane16_swap_b32 v{s(k)}, v{s(4 + k)}')
        m1, r1, k1, t0, t1, r2, k2 = 200, 202, 203, 204, 205, 206, 207
        A(f'''v_mul_f32 v{m1}, {inv:#x}, v{s(0)}
v_mul_f32 v{t0}, {inv:#x}, v{s(1)}
v_fma_f32 v{t0}, -v{m1}, v{m1}, v{t0}
v_max_f32 v{t0}, 0, v{t0}
v_add_f32 v{t0}, 0x3727c5ac, v{t0}
v_rsq_f32 v{r1}, v{t0}
v_mul_f32 v{k1}, v{m1}, v{r1}
v_fma_f32 v{t0}, v{r1}, v{s(2)}, v{s(0)}
v_fma_f32 v{t0}, -v{k1}, v{s(6)}, v{t0}
v_mul_f32 v{t1}, v{r1}, v{s(4)}
v_fma_f32 v{t1}, 2.0, v{s(3)}, v{t1}
v_fma_f32 v{t1}, v{r1}, v{t1}, v{s(1)}
v_fma_f32 v{s(2)}, v{r1}, v{s(5)}, v{s(2)}
v_mul_f32 v{s(7)}, v{k1}, v{s(7)}
v_fma_f32 v{s(2)}, -2.0, v{s(2)}, v{s(7)}
v_fma_f32 v{t1}, v{k1}, v{s(2)}, v{t1}
v_mul_f32 v{t0}, {inv:#x}, v{t0}
v_mul_f32 v{t1}, {inv:#x}, v{t1}
v_fma_f32 v{t1}, -v{t0}, v{t0}, v{t1}
v_max_f32 v{t1}, 0, v{t1}
v_add_f32 v{t1}, 0x3727c5ac, v{t1}
v_rsq_f32 v{r2}, v{t1}
v_mul_f32 v{k2}, v{t0}, v{r2}''')
        bc = 'op_sel:[0,0,1] op_sel_hi:[1,0,1] neg_lo:[0,0,1] neg_hi:[0,0,1]'
        U, UP = 160, 180
        for i in range(10):
            A(f'v_pk_fma_f32 {v2(U + 2 * i)}, {v2(a + 2 * i)}, {v2(r1)}, {v2(r1)} {bc}')
        for i in range(10):
            A(f'v_pk_fma_f32 {v2(a + 2 * i)}, {v2(U + 2 * i)}, {v2(YF + 2 * i)}, {v2(a + 2 * i)}')
        for i in range(10):
            A(f'v_pk_fma_f32 {v2(U + 2 * i)}, {v2(a + 2 * i)}, {v2(r2)}, {v2(r2)} {bc}')
        for i in range(10):
            A(f'v_cvt_pk_bf16_f32 v{UP + i}, v{U + 2 * i}, v{U + 2 * i + 1}')
        mode_stores([f'buffer_store_dwordx2 {v2(UP + 2 * m)}, v{vU[5]}, {W}, s{sX[1]} offen offset:{128 * m}'
                     for m in range(5)], through=OPT['thr'] & 8)
        stamp('u2_st')
        for i in range(10):
            A(f'v_pk_fma_f32 {v2(a + 2 * i)}, {v2(U + 2 * i)}, {v2(DF + 2 * i)}, {v2(a + 2 * i)}')
        for i in range(20):
            A(f'v_accvgpr_write_b32 a{A_Z + i}, v{a + i}')
        A(f's_add_u32 s{sT[1]}, s{sFW}, {WS_FU}\ns_waitcnt vmcnt(0)')
        flag_store(f's{sT[1]}', True)
        A(f's_cmp_lg_u32 s{sEpW}, {31 * 32}')
        with A.skip_if('s_cbranch_scc1', lambda c: True):
            flag_store('0', False)
        fl = f'buffer_load_dwordx2 {v2(vU[0])}, v{vU[4]}, {W}, s{sX[0]} offen sc1'
        for j in range(5):
            g1.rd(0, j)
        check_tags([vU[0], vU[1]], fl, inline=1)
        stamp('u2_ready')
    else:
        A(f'v_add_f32 v{G}, v{S}, v{S + 1}\nv_add_f32 v{G + 1}, v{S + 2}, v{S + 3}\nv_mov_b32 v{G + 2}, s{sTag}\n'
          f'v_mov_b32 v{G + 3}, s{sTag}')
        allreduce_q(G, S)
        A('s_mov_b64 exec, 0xffff')
        mode_stores([f'buffer_store_dwordx4 {v4(G)}, v{vL16}, {W}, s{sT[1]} offen'], through=OPT['thr'] & 16)
        A('s_mov_b64 exec, -1')
        stamp('st_pub_1')
        if OPT['wb'] & 64:
            wbl2()
        lg = LG()
        X3, Y3 = 160, YF
        A(f'''s_mul_i32 s{sT[2]}, s{sW}, 10240
s_add_u32 s{sT[2]}, s{sT[2]}, {L_RED}
v_lshrrev_b32 v{vT[1]}, 1, v{vI}
v_xor_b32 v{vT[1]}, v{vT[1]}, v{vQ}
v_and_b32 v{vT[1]}, 3, v{vT[1]}
v_lshlrev_b32 v{vT[1]}, 4, v{vT[1]}
v_lshl_add_u32 v{vT[1]}, v{vI}, 6, v{vT[1]}
v_add_u32 v{vU[2]}, s{sT[2]}, v{vT[1]}''')
        for m in range(5):
            lg(f'ds_write_b128 v{vU[2]}, {v4(a + 4 * m)} offset:{1024 * m}')
        A(f'''v_lshrrev_b32 v{vT[1]}, 3, v{vL}
v_xor_b32 v{vT[1]}, v{vT[1]}, v{vL}
v_and_b32 v{vT[1]}, 3, v{vT[1]}
v_lshlrev_b32 v{vT[1]}, 4, v{vT[1]}
v_lshrrev_b32 v{vT[2]}, 2, v{vL}
v_lshl_add_u32 v{vT[1]}, v{vT[2]}, 6, v{vT[1]}
v_add_u32 v{vU[3]}, s{sT[2]}, v{vT[1]}''')
        for m in range(5):
            lg(f'ds_read_b128 {v4(X3 + 4 * m)}, v{vU[3]} offset:{1024 * m}')
        A(f'''v_and_b32 v{vT[3]}, 3, v{vL}
v_lshlrev_b32 v{vT[0]}, 13, v{vT[3]}
v_lshl_add_u32 v{vT[0]}, v{vT[2]}, 4, v{vT[0]}
s_add_u32 s{sT[1]}, s{sT[0]}, 4096
v_lshrrev_b32 v{vT[1]}, 2, v{vT[2]}
v_lshl_add_u32 v{vT[1]}, v{vT[1]}, 2, v{vT[2]}
v_mul_u32_u24 v{vT[1]}, 2560, v{vT[1]}
v_lshl_add_u32 v{vU[4]}, v{vT[3]}, 4, v{vT[1]}
s_lshl_b32 s{sT[3]}, s{sR64}, 6
s_lshr_b32 s{sX[1]}, s{sW}, 1
s_lshl_b32 s{sX[1]}, s{sX[1]}, 5
s_add_u32 s{sT[3]}, s{sT[3]}, s{sX[1]}
s_and_b32 s{sX[1]}, s{sW}, 1
s_lshl_b32 s{sX[1]}, s{sX[1]}, 2
s_add_u32 s{sT[3]}, s{sT[3]}, s{sX[1]}
s_mul_i32 s{sT[3]}, s{sT[3]}, 2560
s_mul_i32 s{sX[1]}, s{sS8}, 320
s_add_u32 s{sT[3]}, s{sT[3]}, s{sX[1]}''')
        Q = 128
        ld = [f'buffer_load_dwordx3 {v3(Q)}, v{vT[0]}, {W}, s{sT[0]} offen sc1',
              f'buffer_load_dwordx3 {v3(Q + 4)}, v{vT[0]}, {W}, s{sT[1]} offen sc1']
        check_tags([Q + 2, Q + 6], ld, inline=1)
        A('s_waitcnt lgkmcnt(0)')
        stamp('st_in_1')
        if OPT['wb'] & 32:
            wbl2()
        A(f'v_pk_add_f32 {v2(Q)}, {v2(Q)}, {v2(Q + 4)}')
        for mod in ('quad_perm:[1,0,3,2]', 'quad_perm:[2,3,0,1]'):
            A(f'v_add_f32_dpp v{Q}, v{Q}, v{Q} {mod} {DPPM}\nv_add_f32_dpp v{Q + 1}, v{Q + 1}, v{Q + 1} {mod} {DPPM}')
        r1, t0 = 200, 202
        A(f'''v_mul_f32 v{Q}, {inv:#x}, v{Q}
v_mul_f32 v{t0}, {inv:#x}, v{Q + 1}
v_fma_f32 v{t0}, -v{Q}, v{Q}, v{t0}
v_max_f32 v{t0}, 0, v{t0}
v_add_f32 v{t0}, 0x3727c5ac, v{t0}
v_rsq_f32 v{r1}, v{t0}
v_mul_f32 v{r1 + 1}, v{Q}, v{r1}''')
        bc = 'op_sel:[0,0,1] op_sel_hi:[1,0,1] neg_lo:[0,0,1] neg_hi:[0,0,1]'
        U = 132
        ls = []
        for m in range(5):
            u = U + 4 * (m & 1)
            for hf in range(2):
                ls.append(f'v_pk_fma_f32 {v2(u + 2 * hf)}, {v2(X3 + 4 * m + 2 * hf)}, {v2(r1)}, {v2(r1)} {bc}')
            for hf in range(2):
                i = 4 * m + 2 * hf
                ls.append(f'v_pk_fma_f32 {v2(X3 + i)}, {v2(u + 2 * hf)}, {v2(Y3 + i)}, {v2(X3 + i)}')
            ls.append(f'buffer_store_dwordx4 {v4(X3 + 4 * m)}, v{vU[4]}, {s4(R_T0)}, s{sT[3]} offen offset:{64 * m}'
                      + ['', '', ' nt', ' nt'][OPT['om']])
        mode_stores(ls, through=OPT['om'] in (1, 2))
        if OPT['wb'] & 16:
            wbl2()
        stamp('out_st')


def retry(back):
    lab, done = A.label('retry'), A.label('giveup')
    A.cond[lab] = lambda c: False
    if OPT['inl']:
        A.cond[back] = A.cond[done] = lambda c: False
        A(f's_sub_u32 s{sBud}, s{sBud}, 1\ns_cmp_gt_i32 s{sBud}, 0\ns_cbranch_scc0 {done}\ns_cbranch_vccnz {back}\n{done}:')
        return
    A(f's_cbranch_vccnz {lab}\n{done}:')
    TAIL.append(f'{lab}:\ns_sub_u32 s{sBud}, s{sBud}, 1\ns_cmp_gt_i32 s{sBud}, 0\n'
                f's_cbranch_scc1 {back}\ns_branch {done}')


def dump_stamps():
    if OPT['fixdur']:
        A(f'v_readfirstlane_b32 s3, v{vStamp}\ns_min_u32 s3, s3, 20000')
        if OPT['pick'] >= 0:
            A(f's_lshl_b32 s4, s{sJ}, 3\ns_add_u32 s4, s4, s{sG}\ns_cmp_eq_u32 s4, {OPT["pick"]}\ns_cselect_b32 s3, s3, 0')
        A(f'''s_add_u32 s{sSt}, s{sSt}, s3
L_fix:
s_memrealtime s[0:1]
s_waitcnt lgkmcnt(0)
s_sub_u32 s0, s0, s{sSt}
s_cmp_lt_i32 s0, {OPT['fixdur']}
s_cbranch_scc1 L_fix''')
    if not OPT['stamps']:
        return
    A(f'''s_waitcnt vmcnt(0) lgkmcnt(0)
v_writelane_b32 v{vStamp}, s{sSt}, {PREV[0]}
s_memrealtime {s2(sSt)}
s_waitcnt lgkmcnt(0)
v_writelane_b32 v{vStamp}, s{sSt}, 63
s_lshl_b32 s{sT[0]}, s{sR64}, 3
s_add_u32 s{sT[0]}, s{sT[0]}, s{sS8}
s_lshl_b32 s{sT[0]}, s{sT[0]}, 2
s_add_u32 s{sT[0]}, s{sT[0]}, s{sW}
s_lshl_b32 s{sT[0]}, s{sT[0]}, 8
s_add_u32 s{sT[0]}, s{sT[0]}, {WS_DBG}
v_lshlrev_b32 v{vT[0]}, 2, v{vL}
buffer_store_dword v{vStamp}, v{vT[0]}, {W}, s{sT[0]} offen''')


def body():
    prologue()
    g2 = conv(*front(startup()))
    vm = g2.vm
    lg = gemm2(g2)
    g = G1(1, VM())
    epilogue(0, vm, lg, g)
    n1 = OPT['n1']
    for f in range(n1):
        g.ld(f)
    for f in range(n1, 40):
        g.side.add((f - n1) // 2, lambda f=f: g.ld(f))
    if OPT['wb'] & 1:
        g.side.add(16, wbl2)
    if OPT['tc2']:
        g.side.add(OPT['tc2'], retouch())
    for s in range(20):
        g.step(s)
    stamp('g1_1')
    scan_1(1)
    vm = VM()
    run(horner(1, vm, LG()))
    if OPT['prefetch'] & 8:
        run(code_touch())
    pre, ld = agg_ld(1)
    A(pre)
    for l in ld:
        vm(l, 'agg')
    A(f'''s_mul_i32 s{sT[0]}, s{sW}, 2560
s_add_u32 s{sT[0]}, s{sT[0]}, 24576
v_lshlrev_b32 v{vT[0]}, 5, v{vI}
v_lshl_add_u32 v{vT[0]}, v{vQ}, 3, v{vT[0]}
v_add_u32 v{vT[0]}, s{sT[0]}, v{vT[0]}
v_lshl_add_u32 v{vT[1]}, v{vL}, 3, s{sT[0]}''')
    run([f'ds_write_b64 v{vT[0]}, a[{A_Y + 2 * m}:{A_Y + 2 * m + 1}] offset:{512 * m}' for m in range(5)]
        + [f'ds_read_b64 {v2(YP + 2 * m)}, v{vT[1]} offset:{512 * m}' for m in range(5)])
    scan_2(1, vm, ld)
    g2_setup(1)
    h_flag(1, vm)
    if OPT['wb'] & 8:
        wbl2()
    g2 = G2(1, vm)
    g2.begin()
    lg = gemm2(g2)
    epilogue(1, vm, lg)
    dump_stamps()
    A('L_end:\ns_endpgm')
    for t in TAIL:
        A(t)
    A('s_endpgm\nL_codeend:')


def main():
    hdr = open(os.path.join(os.path.dirname(os.path.abspath(__file__)), NAME + '.s.ref')).read().split('; Override')[0]
    A2 = [hdr.rstrip(), f'; @launch grid=(256,1,1) block=(256,1,1) lds={LDS_SIZE}',
          '.amdgcn_target "amdgcn-amd-amdhsa--gfx950"\n.text',
          f'.globl {NAME}_kernel\n.p2align 8\n.type {NAME}_kernel,@function\n{NAME}_kernel:']
    body()
    n = A.fix_hazards()
    if OPT['align']:
        print('; align: promoted %d, padded %d' % A.align8(999, False), file=sys.stderr)
    cfgs = [dict(w=w, fast=f, ty=ty) for w in range(4) for f in (0, 1) for ty in (0, 1)]
    errs = A.check_waits(cfgs)
    for e in sorted(set(errs))[:40]:
        print('WAITCNT:', e, file=sys.stderr)
    print(f'; {n} hazard pads inserted; {len(A.L)} lines; stamps: {STAMPS}', file=sys.stderr)
    A2.append('; WS ' + '\n; WS '.join(f'{k}={v:#x}' for k, v in dict(RS=WS_RS, H=WS_H, KV=WS_KV, Y=WS_Y, CF=WS_CF,
                                                                   U2=WS_U2, H2=WS_H2, DBG=WS_DBG, CFOLD=1).items()))
    if STAMPS:
        A2.append('; STAMPS ' + ' '.join(STAMPS))
    A2.append(A.text())
    A2.append(f'''.section .rodata,"a"
.p2align 6
.amdhsa_kernel {NAME}_kernel
  .amdhsa_next_free_vgpr 512
  .amdhsa_next_free_sgpr 102
  .amdhsa_accum_offset 256
  .amdhsa_group_segment_fixed_size 0
  .amdhsa_kernarg_size 144
  .amdhsa_user_sgpr_count 2
  .amdhsa_user_sgpr_kernarg_segment_ptr 1
  .amdhsa_system_sgpr_workgroup_id_x 1
.end_amdhsa_kernel''')
    print('\n'.join(A2))


if __name__ == '__main__':
    main()
```

```python
import sys
import os
import copy
sys.path.insert(0, os.path.dirname(os.path.abspath(__file__)))
from asmlib import Asm

NAME = 'interleave_layers__ssm_conv_s5__ssm_conv_h3__prompt'
OPT = dict(stamps=0, rt=1, reuse=1, force_slow=0, budget=1 << 18, align=3, nt=5, prefetch=11,
           gw=1, rsc=17, late=13, lper=3, b1s=0, b2s=0, b3s=0, b4s=2, cfs=0, cfper=14, kls=14, kvf=5, cff=7, fsp=10, fsc=12, wv0=10, wv=16,
           aggl=21, clend=20, cs2=8, nu=3, defer=3, stp=3, cl2s=3, hfl=8, hp=6, yp0=3, clr=3, fbp=-13, fbc=-17, lag=1, cs1=7, cb=5, cl2=12, ys=0, yper=8, zper=8, csp=14, csc=17, cl0=8,
           order='S,A,M,G,T,@setup,R,@roles,O,B0,X0,X1,C', post='L1,L2',
           n0=8, n00=8, n1=8, yp=26, ra=17, rb=24, rper=9, rc=35, wper=2, r3=0, om=0, wb=0, wbw=3, wbs=0, dbg=0, os=4, oper=1, kwl=0, nbar=4, kvd=0, mlate=0, t0=1, zlate=0, hout=1, lpre=2, tc2=17, thr=11, tch=12, inl=1, look=14, light=1, fixdur=0, probe='', pick=-1)
for a in sys.argv[1:]:
    k, v = a.split('=')
    assert k in OPT, k
    OPT[k] = v if k in ('probe', 'order', 'post') else int(v, 0)

WS_FU = 0x1000
WS_FH = WS_FU + 256
WS_FY = 0x6000
WS_FB = 0x8000
WS_FK = 0x10000
WS_FS = WS_FK + 512
WS_FX = WS_FK + 1024
WS_RS = 0x40000
WS_CS = 0x4A000
WS_AGG = 0x50000
AGG_L = 16 * 32 * 640
WS_ST = 0x140000
WS_U = 0x400000
WS_H = 0xA00000
WS_KV = WS_U if OPT['reuse'] else 0x1000000
WS_Y = 0x1300000
WS_CF = 0x1600000
WS_KB = 0x1900000
WS_U2 = WS_U
WS_H2 = WS_H if OPT['reuse'] else 0x1B00000
WS_DBG = 0x2400000
WS_SIZE = 0x2800000
OOB = 0x70000000

L_AR = 102400
L_SK = L_AR + 2 * 8192
VOFF = 12 * 1056
L_SS, L_SS2, L_V = L_SK + VOFF + 9 * 1056, L_SK + VOFF + 11 * 1056, L_SK + 25 * 1056
L_KV = 0
L_TR = 13824
L_K = 102400
L_PM = 102400
L_PS = L_K + 3 * 8320
L_P = L_PS + 16384
L_RED = 102400
L_Y = 143360
L_AS = 152320
L_G = 149504
L_RS = 158720
L_C = 159744
L_L = 160640
LDS_SIZE = 163840

P_X, P_LRE, P_LIM, P_BRE, P_BIM, P_CRE, P_CIM, P_LDT = 16, 18, 20, 22, 24, 26, 28, 30
P_DSK, P_Q, P_K, P_V, P_SK, P_SSK, P_SD, P_OUT, P_DBG, P_WS = 32, 34, 36, 38, 40, 42, 44, 46, 48, 50
R_WS, R_B, R_T0, R_T1, R_X = 52, 56, 60, 64, 68
sG, sJ, sOnes = 0, 1, 2
sR128, sMem, sR64, sS8, sW, sTag, sMode, sBud, sXcc = 3, 4, 5, 6, 7, 8, 9, 10, 11
sT = [12, 13, 14, 15]
sD = [72, 73]
sBs, sBm, sXs, sXm = 74, 75, 76, 77
sH = [78, 79, 80, 81, 82]
sAgg = 83
sFW, sFK = 84, 85
sC0, sCs = 86, 24
sKm, sKf, sKs = 40, 41, 36
sX = [87, 88, 89, 90, 91, 92, 93, 94, 95]
sPub = 96
sPC = 98
sSt = 100
sL = [34, 35]
sDS = [16, 17, 18, 19]
sZ = [20, 21, 48, 49]
sYO = [50, 51]
sDm = [30, 31, 25, 45]
sEpW = 44

vUA, vL, vL16, vI, vQ = 0, 1, 2, 3, 4
vBA = [5, 6, 7, 8]
vAS, vStamp = 9, 10
vT = [11, 12, 13, 14, 15]
LR, LS, VA = 16, 21, 26
mL8, mL128, mW = 36, 38, 40
vU = [42, 43, 44, 45, 46, 47]
ACC, BF, RING, NR = 48, 88, 128, 16
A_Y, A_Z, A_DSK = 200, 210, 230
PARK = dict(tw=240, tr=241, ts=242, bd=243, bd2=244, rt=245, junk=250)
A_CV = 200
A_X, A_ZU = 216, 226

A = Asm()
NT, NTC, NTK, NTP, NTX, NTT = [' nt' if OPT['nt'] >> i & 1 else '' for i in range(6)]
STAMPS = []
PREV = [61]
TAIL = []
DPPM = 'row_mask:0xf bank_mask:0xf'
SWP = f'quad_perm:[1,0,3,2] {DPPM}'
W = f's[{R_WS}:{R_WS + 3}]'
HO = OPT['reuse'] and OPT['hout']
WH = f's[{R_T0}:{R_T0 + 3}]' if HO else W
HB = [0, 0] if HO else [WS_H, WS_H2]


def s2(n): return f's[{n}:{n + 1}]'
def s4(n): return f's[{n}:{n + 3}]'
def v2(n): return f'v[{n}:{n + 1}]'
def v3(n): return f'v[{n}:{n + 2}]'
def v4(n): return f'v[{n}:{n + 3}]'
def a4(n): return f'a[{n}:{n + 3}]'


def srd(r, p, size):
    A(f's_mov_b32 s{r}, s{p}\ns_and_b32 s{r + 1}, s{p + 1}, 0xffff\ns_mov_b32 s{r + 2}, {size}\n'
      f's_mov_b32 s{r + 3}, 0x20000')


def stamp(name, level=1):
    if ':' in OPT['probe']:
        a, b, kind = OPT['probe'].split(':')
        op = 's_memtime' if kind == 'c' else 's_memrealtime'
        if name == a:
            A(f'{op} vcc\ns_waitcnt lgkmcnt(0)\nv_mov_b32 v{vStamp}, vcc_lo')
        if name == b:
            A(f'{op} vcc\ns_waitcnt lgkmcnt(0)\nv_sub_u32 v{vStamp}, vcc_lo, v{vStamp}\n'
              + (f'v_lshrrev_b32 v{vStamp}, 2, v{vStamp}' if kind == 'c' else f'v_lshlrev_b32 v{vStamp}, 2, v{vStamp}'))
    if OPT['probe'] == name:
        A(f's_memrealtime vcc\ns_waitcnt lgkmcnt(0)\ns_sub_u32 vcc_lo, vcc_lo, s{sSt}\ns_lshl_b32 vcc_lo, vcc_lo, 2\n'
          f'v_mov_b32 v{vStamp}, vcc_lo')
    if not OPT['stamps'] or (OPT['stamps'] < 0 and name != 'start') or level > abs(OPT['stamps']):
        return
    if name not in STAMPS:
        STAMPS.append(name)
    i = STAMPS.index(name)
    op = 's_memrealtime' if OPT['rt'] else 's_memtime'
    if name == 'start' or not OPT['light']:
        A(f'{op} {s2(sSt)}\ns_waitcnt lgkmcnt(0)\nv_writelane_b32 v{vStamp}, s{sSt}, {i}')
    else:
        A(f'v_writelane_b32 v{vStamp}, s{sSt}, {PREV[0]} ; nocheck\n{op} {s2(sSt)} ;@{i}')
        PREV[0] = i


class Cnt:
    def __init__(self, what, cap):
        self.n, self.t, self.what, self.cap, self.done = 0, {}, what, cap, 0

    def __call__(self, text, name=None):
        A(text)
        self.n += 1
        if name is not None:
            self.t[name] = self.n
        return self.n

    def wait(self, *names):
        tok = max(self.t[x] if not isinstance(x, int) else x for x in names)
        if tok <= self.done:
            return
        k = self.n - tok
        assert k >= 0
        if k <= self.cap:
            A(f's_waitcnt {self.what}({k})')
            self.done = tok
        else:
            A(f's_waitcnt {self.what}({self.cap})')
            self.done = self.n - self.cap

    def merge(self, o):
        n = max(self.n, o.n)
        t = {}
        for k in set(self.t) | set(o.t):
            t[k] = n - min(c.n - c.t[k] for c in (self, o) if k in c.t)
        self.done = n - max(self.n - self.done, o.n - o.done)
        self.n, self.t = n, t


def VM(): return Cnt('vmcnt', 63)
def LG(): return Cnt('lgkmcnt', 15)


def lines(x):
    if isinstance(x, str):
        return [l for l in x.split('\n') if l.strip()]
    if isinstance(x, (list, tuple)):
        return [l for it in x for l in lines(it)]
    return [x]


def atom(*items):
    return lambda: run(items)


def run(items):
    for it in lines(items):
        A(it) if isinstance(it, str) else it()


class Side:
    def __init__(self):
        self.q = {}

    def add(self, step, *items):
        self.q.setdefault(step, []).extend(lines(items))

    def spread(self, step0, per, items):
        flat = lines(items)
        for i, it in enumerate(flat):
            self.add(step0 + i // per, it)
        return step0 + (len(flat) + per - 1) // per

    def run(self, step, slots_left):
        q = self.q.get(step, [])
        n = -(-len(q) // slots_left)
        self.q[step] = q[n:]
        for it in q[:n]:
            A(it) if isinstance(it, str) else it()

    def left(self, lo=0, hi=999):
        return [k for k, v in self.q.items() if v and lo <= k < hi]


class Cap:
    def __enter__(self):
        self.save = A.L
        A.L = []
        return self

    def __exit__(self, *a):
        self.lines = [i.text for i in A.L]
        A.L = self.save


def check_tags(regs, reload, masked=False, x=None, y=None, inline=0):
    x, y = vT[4] if x is None else x, vT[3] if y is None else y
    if len(regs) <= 2:
        chk = [f'v_xor_b32 v{x}, s{sTag}, v{regs[0]}']
        for r in regs[1:]:
            chk += [f'v_xor_b32 v{y}, s{sTag}, v{r}', f'v_or_b32 v{x}, v{x}, v{y}']
        chk.append(f'v_cmp_lt_u32 vcc, 15, v{x}' if masked else f'v_cmp_ne_u32 vcc, 0, v{x}')
    else:
        assert not masked and len(regs) % 2 == 0
        chk = [f'v_min3_u32 v{x}, v{regs[0]}, v{regs[1]}, s{sTag}', f'v_max3_u32 v{y}, v{regs[0]}, v{regs[1]}, s{sTag}']
        for i in range(2, len(regs), 2):
            chk += [f'v_min3_u32 v{x}, v{x}, v{regs[i]}, v{regs[i + 1]}', f'v_max3_u32 v{y}, v{y}, v{regs[i]}, v{regs[i + 1]}']
        chk.append(f'v_cmp_ne_u32 vcc, v{x}, v{y}')
    lab, done = A.label('again'), A.label('ok')
    A.cond[lab] = lambda c: False
    if inline and OPT['inl']:
        if inline == 2:
            A.cond[done] = lambda c: True
            A('\n'.join(chk) + f'\ns_cbranch_vccz {done}')
        out = A.label('out')
        A.cond[out] = lambda c: False
        run([f'{lab}:'] + lines(reload) + [f's_sub_u32 s{sBud}, s{sBud}, 1', f's_cmp_gt_i32 s{sBud}, 0', 's_waitcnt vmcnt(0)']
            + chk + [f's_cbranch_scc0 {out}', f's_cbranch_vccnz {lab}', f'{out}:', f'{done}:'])
        return
    if inline == 1:
        run(lines(reload) + ['s_waitcnt vmcnt(0)'])
    A('\n'.join(chk) + f'\ns_cbranch_vccnz {lab}\n{done}:')
    TAIL.append('\n'.join([f'{lab}:', f's_sub_u32 s{sBud}, s{sBud}, 1', f's_cmp_gt_i32 s{sBud}, 0', f's_cbranch_scc0 {done}']
                          + lines(reload) + ['s_waitcnt vmcnt(0)'] + chk + [f's_cbranch_vccnz {lab}', f's_branch {done}']))


def mode_stores(ls, mode=sMode, through=False):
    if through:
        return run([(l + ' sc1') if l.startswith('buffer_store') else l for l in ls])
    slow, back = A.label('slow'), A.label('back')
    A.cond[slow] = lambda c: not c['fast'] or (mode != sMode and c['w'] == 2)
    A(f's_cmp_eq_u32 s{mode}, 0\ns_cbranch_scc1 {slow}')
    for l in ls:
        A(l)
    A(f'{back}:')
    TAIL.append(f'{slow}:\n' + '\n'.join((l + ' sc1') if l.startswith('buffer_store') else l for l in ls)
                + f'\ns_nop 1\ns_branch {back}')


def flag_store(soff, local, vm=None, mode=sMode):
    t = vT[4]
    A(f'v_mov_b32 v{t}, s{sTag}\ns_mov_b64 exec, 1')
    line = f'buffer_store_dword v{t}, off, {W}, {soff}'
    if local:
        mode_stores([line], mode)
    else:
        A(line + ' sc1')
    A('s_mov_b64 exec, -1')
    if vm is not None:
        vm.n += 1


def unpack(dst, src, n):
    out = []
    for i in range(n):
        out += [f'v_lshlrev_b32 v{dst + 2 * i}, 16, v{src + i}', f'v_and_b32 v{dst + 2 * i + 1}, 0xffff0000, v{src + i}']
    return out


def rnd_bf16(v):
    A(f'v_cvt_pk_bf16_f32 v{v}, v{v}, v{v}\nv_and_b32 v{v}, 0xffff0000, v{v}')


def cmul(dst, g, lam, add=None):
    if add is None:
        a = f'v_pk_mul_f32 {v2(dst)}, {v2(g)}, {v2(lam)} op_sel:[1,1] op_sel_hi:[0,1] neg_lo:[0,1]'
    else:
        a = f'v_pk_fma_f32 {v2(dst)}, {v2(g)}, {v2(lam)}, {v2(add)} op_sel:[1,1,0] op_sel_hi:[0,1,1] neg_lo:[0,1,0]'
    return [a, f'v_pk_fma_f32 {v2(dst)}, {v2(g)}, {v2(lam)}, {v2(dst)} op_sel:[0,0,0] op_sel_hi:[1,0,1]']


def park(name, v): A(f'v_accvgpr_write_b32 a{PARK[name]}, v{v}')
def unpark(name, v): return f'v_accvgpr_read_b32 v{v}, a{PARK[name]}'


def code_touch():
    return [f's_and_b32 vcc_lo, s{sJ}, 7', 's_lshl_b32 vcc_lo, vcc_lo, 2', f's_add_u32 vcc_lo, vcc_lo, s{sW}',
            's_lshl_b32 vcc_lo, vcc_lo, 11', f'v_lshl_add_u32 v{vT[4]}, v{vI}, 7, vcc_lo',
            f'v_min_u32 v{vT[4]}, L_codeend-L_pc-4, v{vT[4]}', 's_mov_b64 exec, 0xffff',
            f'global_load_dword a250, v{vT[4]}, {s2(sPC)}', 's_mov_b64 exec, -1']


def touch_addr(dst, segs):
    n = 0
    for cnt, code in segs:
        A(code.replace('$', f's{sT[0]}'))
        A(f's_sub_u32 s{sT[0]}, s{sT[0]}, {128 * n}')
        if n:
            A(f'v_cmp_lt_u32 vcc, {n - 1}, v{vL}\nv_mov_b32 v{vT[4]}, s{sT[0]}\nv_cndmask_b32 v{dst}, v{dst}, v{vT[4]}, vcc')
        else:
            A(f'v_mov_b32 v{dst}, s{sT[0]}')
        n += cnt
    A(f'v_lshl_add_u32 v{dst}, v{vL}, 7, v{dst}')
    return n


SEG_ST = (24, f's_lshl_b32 $, s{sR128}, 4\ns_add_u32 $, $, s{sMem}\ns_lshl_b32 $, $, 12\ns_add_u32 $, $, {WS_ST}')
SEG_F = (6, f's_lshl_b32 $, s{sR128}, 10\ns_add_u32 $, $, {WS_FU}')


def retouch():
    return atom(unpark('rt', vT[0]), f's_and_b32 exec_lo, s{sPub}, 0x3fffffff', 's_mov_b32 exec_hi, 0',
                f'buffer_load_dword a250, v{vT[0]}, {W}, 0 offen', 's_mov_b64 exec, -1')


def wbl2():
    A(f's_lshl_b32 vcc_lo, s{sJ}, 2\ns_add_u32 vcc_lo, vcc_lo, s{sW}\ns_cmp_lg_u32 vcc_lo, {OPT["wbw"]}')
    with A.skip_if('s_cbranch_scc1', lambda c: True):
        A('buffer_wbl2 sc1')


AF = 128
vAR, vAR2, vXd, vXd2, vBd, vBd2, vR, vSgn = 144, 145, 146, 147, 148, 149, 150, 151
CR, CI, CT, CTMP, vCd = 176, 180, 192 if OPT['cfs'] >= 0 else 128, 152, 174
vKV, vKS, vKR, vSR, vFX, vFXa = 169, 171, 172, 173, 184, 185
KK, VV, SKW, WW, AC, KT = 48, 70, 88, 96, 112, 216
OUT = [232, 236, 208, 212] if OPT['kvd'] else [232, 236, 88, 92]
XP, XS = 48, 88
PAR = 229
KA, KB, vKO, vKP = 192, 204, 186, 163
vZ, vXT = 224, 242
RSL, vRS, CSL = 152, 160, 246
MM, RR = 88, 96
vFP, vFA = 188, 187


def x_dma(vm, p):
    s2i, m = p >> 1, p & 1
    if OPT['dbg'] & 512 and p >= 7:
        vm.t['x', p] = vm.t['x', 6]
        return
    A(f's_add_u32 m0, s{sXm}, {(p % 7) * 8192}\ns_add_u32 s{sT[3]}, s{sXs}, {4 * m * 1280 + s2i * 128}')
    vm(f'buffer_load_dwordx4 v{vXd}, {s4(R_X)}, s{sT[3]} offen lds')
    vm(f'buffer_load_dwordx4 v{vXd2}, {s4(R_X)}, s{sT[3]} offen offset:1024 lds', ('x', p))


def b_dma(vm, g, j, bd=vBd, bd2=vBd2):
    A(f's_add_u32 m0, s{sBm}, {g * 20480 + j * 2048}\ns_add_u32 s{sT[2]}, s{sBs}, {g * 256 + j * 10240}')
    vm(f'buffer_load_dwordx4 v{bd}, {s4(R_B)}, s{sT[2]} offen lds', ('b', g))
    if j < 4:
        vm(f'buffer_load_dwordx4 v{bd2}, {s4(R_B)}, s{sT[2]} offen offset:2048 lds', ('b', g))


def b_all(vm, g):
    t = vT
    srd(R_T1, P_BRE, 819200)
    A(f'v_xor_b32 v{t[0]}, 64, v{vBd}\nv_xor_b32 v{t[1]}, 64, v{vBd2}\ns_mul_i32 s{sT[3]}, s{sMem}, 51200')
    for hf in range(2):
        for j in (0, 2, 4):
            A(f's_add_u32 s{sT[2]}, s{sT[3]}, {g * 256 + hf * 128 + j * 10240}')
            for comp, (r, a, a2) in enumerate(((R_T1, t[0], t[1]), (R_B, vBd, vBd2))):
                A(f's_mov_b32 m0, {g * 20480 + hf * 10240 + j * 2048 + comp * 1024}')
                vm(f'buffer_load_dwordx4 v{a}, {s4(r)}, s{sT[2]} offen lds', ('b', g))
                if j < 4:
                    vm(f'buffer_load_dwordx4 v{a2}, {s4(r)}, s{sT[2]} offen offset:2048 lds', ('b', g))


def prologue():
    A('s_cmp_ge_u32 s2, 256\ns_cbranch_scc1 L_end')
    A.cond['L_end'] = lambda c: False
    if OPT['stamps'] or OPT['fixdur']:
        A(f's_memrealtime {s2(sSt)}\nv_mov_b32 v{vStamp}, 0')
    A('s_load_dwordx16 s[16:31], s[0:1], 0\ns_load_dwordx16 s[32:47], s[0:1], 64\n'
      's_load_dwordx4 s[48:51], s[0:1], 128')
    t = vT
    A(f'''v_and_b32 v{vL}, 63, v0
v_lshrrev_b32 v{t[0]}, 6, v0
v_lshlrev_b32 v{vL16}, 4, v{vL}
v_readfirstlane_b32 s{sW}, v{t[0]}
v_and_b32 v{vI}, 15, v{vL}
v_lshrrev_b32 v{vQ}, 4, v{vL}
s_and_b32 s{sT[0]}, s2, 7
s_lshr_b32 s{sT[1]}, s2, 3
s_getpc_b64 {s2(sPC)}
L_pc:
s_and_b32 s{sMem}, s{sT[1]}, 15
s_lshr_b32 s{sT[2]}, s{sT[1]}, 4
s_lshl_b32 s{sR128}, s{sT[0]}, 1
s_add_u32 s{sR128}, s{sR128}, s{sT[2]}
s_mov_b32 s{sG}, s{sT[0]}
s_mov_b32 s{sJ}, s{sT[1]}''')
    if OPT['prefetch'] & 1:
        A('\n'.join(code_touch()))
    A(f'''v_lshrrev_b32 v{t[0]}, 3, v{vL}
v_and_b32 v{t[2]}, 7, v{vL}
v_mul_u32_u24 v{vR}, 1280, v{t[0]}
v_lshl_add_u32 v{vR}, v{t[2]}, 4, v{vR}''')
    kv_src()


def dma_addr():
    t = vT
    A(f'''v_lshrrev_b32 v{t[0]}, 3, v{vL}
v_and_b32 v{t[1]}, 6, v{t[0]}
v_and_b32 v{t[2]}, 7, v{vL}
s_movk_i32 s{sT[3]}, 0x78
v_bfe_u32 v{t[3]}, s{sT[3]}, v{t[1]}, 2
v_xor_b32 v{t[3]}, v{t[3]}, v{t[2]}
v_mul_u32_u24 v{vXd}, 1280, v{t[0]}
v_lshl_add_u32 v{vBd}, v{t[3]}, 4, v{vXd}
s_and_b32 s{sT[0]}, s{sW}, 1
s_lshl_b32 s{sT[1]}, s{sT[0]}, 6
v_xor_b32 v{vBd}, s{sT[1]}, v{vBd}
v_add_u32 v{vBd2}, {10240 - 2048}, v{vBd}
v_xor_b32 v{t[1]}, v{t[1]}, v{t[2]}
v_and_b32 v{t[0]}, 4, v{t[0]}
v_mul_u32_u24 v{t[0]}, 1280, v{t[0]}
v_lshl_add_u32 v{t[0]}, v{t[1]}, 4, v{t[0]}
v_add_u32 v{vXd}, v{t[0]}, v{vXd}
v_add_u32 v{vXd2}, {20480 - 1024}, v{vXd}
s_lshr_b32 s{sT[1]}, s{sW}, 1
s_mul_i32 s{sBm}, s{sT[1]}, 10240
s_lshl_b32 s{sT[0]}, s{sT[0]}, 10
s_add_u32 s{sBm}, s{sBm}, s{sT[0]}
s_mul_i32 s{sBs}, s{sMem}, 51200
s_lshl_b32 s{sT[1]}, s{sT[1]}, 7
s_add_u32 s{sBs}, s{sBs}, s{sT[1]}
s_lshl_b32 s{sXs}, s{sR128}, 2
s_add_u32 s{sXs}, s{sXs}, s{sW}
s_mul_i32 s{sXs}, s{sXs}, 40960
s_lshl_b32 s{sXm}, s{sW}, 11
s_add_u32 s{sXm}, s{sXm}, {L_AR}''')
    A(f'''s_bitcmp1_b32 s{sW}, 0
s_cselect_b32 s{R_B}, s{P_BIM}, s{P_BRE}
s_cselect_b32 s{R_B + 1}, s{P_BIM + 1}, s{P_BRE + 1}
s_and_b32 s{R_B + 1}, s{R_B + 1}, 0xffff
s_mov_b32 s{R_B + 2}, 819200
s_mov_b32 s{R_B + 3}, 0x20000
s_bitcmp1_b32 s{sR128}, 3
s_cselect_b32 s{R_T0}, s{P_BIM}, s{P_BRE}
s_cselect_b32 s{R_T0 + 1}, s{P_BIM + 1}, s{P_BRE + 1}
s_and_b32 s{R_T0 + 1}, s{R_T0 + 1}, 0xffff
s_mov_b32 s{R_T0 + 2}, 819200
s_mov_b32 s{R_T0 + 3}, 0x20000''')
    srd(R_X, P_X, 2621440)
    srd(R_WS, P_WS, WS_SIZE)


def kv_src():
    A(f'''s_mul_i32 s{sT[0]}, s{sJ}, 81920
s_lshl_b32 s{sT[1]}, s{sG}, 7
s_add_u32 s{sT[0]}, s{sT[0]}, s{sT[1]}
v_add_u32 v{vKV}, s{sT[0]}, v{vR}
s_lshl_b32 s{sX[8]}, s{sG}, 5
s_add_u32 s{sX[8]}, s{sX[8]}, s{sJ}
s_mul_i32 s{sT[0]}, s{sX[8]}, 10240
s_add_u32 s{sT[0]}, s{sT[0]}, 1024
v_add_u32 v{vKV + 1}, s{sT[0]}, v{vR}''')


def kv_addr():
    t = vT
    A(f'''v_lshrrev_b32 v{t[0]}, 3, v{vL}
v_and_b32 v{t[1]}, 7, v{vL}
v_mul_u32_u24 v{t[2]}, 1056, v{t[1]}
v_lshl_add_u32 v{t[2]}, v{t[0]}, 3, v{t[2]}
s_lshl_b32 s{sT[0]}, s{sW}, 6
s_add_u32 s{sT[0]}, s{sT[0]}, {L_SK}
v_add_u32 v{vKR}, s{sT[0]}, v{t[2]}
s_lshl_b32 s{sT[0]}, s{sW}, 8
s_add_u32 s{sT[0]}, s{sT[0]}, {L_SS}
v_lshl_add_u32 v{vSR}, v{t[0]}, 5, s{sT[0]}
v_sub_u32 v{t[2]}, 7, v{t[1]}
v_lshlrev_b32 v{t[2]}, 4, v{t[2]}
v_lshl_add_u32 v{vKS}, v{t[0]}, 14, v{t[2]}
s_mul_i32 s{sT[0]}, s{sG}, 80
s_lshl_b32 s{sT[1]}, s{sW}, 5
s_add_u32 s{sT[0]}, s{sT[0]}, s{sT[1]}
s_lshl_b32 s{sT[0]}, s{sT[0]}, 12
s_lshl_b32 s{sT[1]}, s{sJ}, 7
s_sub_u32 s{sT[0]}, s{sT[0]}, s{sT[1]}
s_add_u32 s{sX[0]}, s{sT[0]}, {WS_KV + 3968}
s_add_u32 s{sKf}, s{sFK}, {WS_FK}
s_movk_i32 s{sKs}, 4096
s_cmp_lg_u32 s{sW}, 2''')
    with A.skip_if('s_cbranch_scc1', lambda c: c['w'] != 2):
        A(f'''v_bfe_u32 v{t[2]}, v{vL}, 4, 1
v_mul_u32_u24 v{t[2]}, 2112, v{t[2]}
v_and_b32 v{t[3]}, 15, v{vL}
v_lshl_add_u32 v{t[2]}, v{t[3]}, 3, v{t[2]}
v_add_u32 v{vKR}, {L_SK + 9 * 1056}, v{t[2]}
v_and_b32 v{t[2]}, 31, v{vL}
v_lshlrev_b32 v{t[2]}, 5, v{t[2]}
v_add_u32 v{vSR}, {L_SS2}, v{t[2]}
v_cmp_gt_u32 vcc, 32, v{vL}
v_mov_b32 v{t[3]}, {OOB}
s_lshl_b32 s{sX[0]}, s{sX[8]}, 11
s_add_u32 s{sX[0]}, s{sX[0]}, {WS_KB}
v_cndmask_b32 v{vKS}, v{t[3]}, v{vL16}, vcc
s_lshl_b32 s{sKf}, s{sX[8]}, 2
s_add_u32 s{sKf}, s{sKf}, {WS_FB}
s_movk_i32 s{sKs}, 512''')


def kv_dma(vm, r, a, so, pos, halo=False):
    if halo:
        A(f'v_subrev_u32 v{vT[0]}, 10240, v{a}\ns_mov_b32 exec_lo, 0\ns_mov_b32 exec_hi, 0xffffff00')
    A(f's_mov_b32 m0, {L_SK + pos * 1056}')
    if so > 64:
        A(f's_mov_b32 s{sT[0]}, {so}')
    vm(f'buffer_load_dwordx4 v{vT[0] if halo else a}, {s4(r)}, {"s%d" % sT[0] if so > 64 else so} offen{NT} lds', 'kv')
    if halo:
        A('s_mov_b64 exec, -1')


def kv_loads0(vm):
    srd(R_T0, P_K, 2621440)
    for p in range(1, 8):
        kv_dma(vm, R_T0, vKV, (p - 1) * 10240, p)
    kv_dma(vm, R_T0, vKV, 0, 0, True)


def kv_loads1(vm):
    srd(R_T1, P_V, 2621440)
    for p in range(1, 9):
        kv_dma(vm, R_T1, vKV, (p - 1) * 10240, 12 + p)


def kv_loads2(vm):
    srd(R_T0, P_K, 2621440)
    srd(R_T1, P_V, 2621440)
    kv_dma(vm, R_T0, vKV, 7 * 10240, 8)
    for hf in range(2):
        kv_dma(vm, R_T0, vKV + 1, 128 * hf, 10 + 2 * hf)
        kv_dma(vm, R_T1, vKV + 1, 128 * hf, 22 + 2 * hf)
    for hf in range(2):
        kv_dma(vm, R_T0, vKV + 1, 128 * hf, 9 + 2 * hf, True)
    srd(R_T1, P_SK, 5120)
    A(f's_mov_b32 m0, {L_SS2}\ns_movk_i32 s{sT[0]}, 4096')
    vm(f'buffer_load_dwordx4 v{vL16}, {s4(R_T1)}, s{sT[0]} offen{NTP} lds', 'kv')
    A(f's_mov_b32 m0, {L_SS}\ns_lshl_b32 s{sT[0]}, s{sG}, 9\ns_mov_b32 exec_hi, 0')
    vm(f'buffer_load_dwordx4 v{vL16}, {s4(R_T1)}, s{sT[0]} offen{NTP} lds', 'kv')
    A('s_mov_b32 exec_hi, -1')


def c_loads(vm):
    t = vT
    A(f'''v_mul_u32_u24 v{t[0]}, 171, v{vL}
v_lshrrev_b32 v{t[0]}, 11, v{t[0]}
v_mul_u32_u24 v{t[1]}, 12, v{t[0]}
v_sub_u32 v{t[1]}, v{vL}, v{t[1]}
s_mul_i32 s{sT[0]}, s{sMem}, 5
v_min_u32 v{t[2]}, 4, v{t[0]}
v_add_u32 v{t[2]}, s{sT[0]}, v{t[2]}
s_mul_i32 s{sT[1]}, s{sW}, 12
v_add_u32 v{t[1]}, s{sT[1]}, v{t[1]}
v_cmp_gt_u32 vcc, 40, v{t[1]}
v_cmp_gt_u32 {s2(sT[2])}, 5, v{t[0]}
s_lshr_b32 s{sT[1]}, s{sJ}, 4
s_mul_i32 s{sT[1]}, s{sT[1]}, 40
v_min_u32 v{t[1]}, 39, v{t[1]}
s_and_b64 vcc, vcc, {s2(sT[2])}
v_add_u32 v{t[1]}, s{sT[1]}, v{t[1]}
s_mul_i32 s{sT[2]}, s{sG}, 102400
v_mul_u32_u24 v{t[3]}, 1280, v{t[1]}
v_lshl_add_u32 v{t[3]}, v{t[2]}, 4, v{t[3]}
v_add_u32 v{t[3]}, s{sT[2]}, v{t[3]}''')
    if OPT['dbg'] & 16:
        A(f'v_mov_b32 v{t[3]}, v{vL16}')
    vm(f'global_load_dwordx4 {v4(CR)}, v{t[3]}, {s2(P_CRE)}{NTC}')
    vm(f'global_load_dwordx4 {v4(CI)}, v{t[3]}, {s2(P_CIM)}{NTC}', 'craw')
    A(f'''v_lshrrev_b32 v{t[3]}, 2, v{t[2]}
v_mul_u32_u24 v{t[3]}, 10240, v{t[3]}
v_and_b32 v{t[2]}, 3, v{t[2]}
v_lshl_add_u32 v{t[3]}, v{t[2]}, 8, v{t[3]}
v_lshrrev_b32 v{t[2]}, 4, v{t[1]}
v_lshl_add_u32 v{t[3]}, v{t[2]}, 10, v{t[3]}
v_and_b32 v{t[1]}, 15, v{t[1]}
v_lshl_add_u32 v{t[3]}, v{t[1]}, 4, v{t[3]}
v_mov_b32 v{t[2]}, {OOB}
v_cndmask_b32 v{vCd}, v{t[2]}, v{t[3]}, vcc
v_min_u32 v{t[0]}, 4, v{t[0]}
v_lshlrev_b32 v{t[0]}, 6, v{t[0]}
v_add_u32 v{vCd + 1}, {L_C}, v{t[0]}''')


def cf_work(vm, lg):
    it = [lambda d=d: lg(f'ds_read_b128 {v4(CT + 4 * d)}, v{vCd + 1} offset:{16 * d}', 'ctab') for d in range(4)]
    it.append(lambda: (vm.wait('craw'), lg.wait('ctab')))
    r, i, o = CTMP, CTMP + 2, CTMP + 4
    for d in range(4):
        cr, ci = v2(CT + 4 * d), v2(CT + 4 * d + 2)
        it += unpack(r, CR + d, 1) + unpack(i, CI + d, 1)
        it += [f'v_pk_mul_f32 {v2(o)}, {v2(r)}, {cr}',
               f'v_pk_mul_f32 {v2(o + 2)}, {v2(r)}, {ci} neg_lo:[0,1] neg_hi:[0,1]',
               f'v_pk_fma_f32 {v2(o)}, {v2(i)}, {ci}, {v2(o)} neg_lo:[0,1,0] neg_hi:[0,1,0]',
               f'v_pk_fma_f32 {v2(o + 2)}, {v2(i)}, {cr}, {v2(o + 2)} neg_lo:[0,1,0] neg_hi:[0,1,0]',
               f'v_cvt_pk_bf16_f32 v{CR + d}, v{o}, v{o + 1}',
               f'v_cvt_pk_bf16_f32 v{CI + d}, v{o + 2}, v{o + 3}']
    it.append(atom(f's_mul_i32 s{sT[0]}, s{sG}, 204800', f's_add_u32 s{sT[0]}, s{sT[0]}, {WS_CF}',
                   f's_add_u32 s{sT[1]}, s{sT[0]}, 5120',
                   lambda: vm(f'buffer_store_dwordx4 {v4(CR)}, v{vCd}, {W}, s{sT[0]} offen sc1'),
                   lambda: vm(f'buffer_store_dwordx4 {v4(CI)}, v{vCd}, {W}, s{sT[1]} offen sc1', 'cfst')))
    return it


def consts():
    lre, lim, ldt = PAR, PAR + 1, PAR + 2
    t = 96
    zr, zi, e, rev, sn, cs = t, t + 1, t + 2, t + 3, t + 4, t + 5
    aL, aV, aC = t + 6, t + 7, t + 8
    P = t + 10
    V = ACC
    Wt = 84
    A(f'''v_lshlrev_b32 v{lre}, 16, v{lre}
v_lshlrev_b32 v{lim}, 16, v{lim}
v_lshlrev_b32 v{ldt}, 16, v{ldt}
v_mul_f32 v{ldt}, 0x3fb8aa3b, v{ldt}
v_exp_f32 v{ldt}, v{ldt}
v_min_u32 v{aC}, 39, v{vL}
v_mul_u32_u24 v{aL}, 80, v{aC}
v_mul_u32_u24 v{aV}, 176, v{aC}''')
    rnd_bf16(ldt)
    A(f'''v_mul_f32 v{zr}, v{ldt}, v{lre}
v_mul_f32 v{zi}, v{ldt}, v{lim}
v_mul_f32 v{zr}, 0x3fb8aa3b, v{zr}
v_mul_f32 v{zi}, 0x3e22f983, v{zi}''')
    for kf, dst in (('1.0', P), ('0x41000000', V + 2)):
        A(f'''v_mul_f32 v{e}, {kf}, v{zr}
v_mul_f32 v{rev}, {kf}, v{zi}
v_exp_f32 v{e}, v{e}
v_fract_f32 v{rev}, v{rev}
v_sin_f32 v{sn}, v{rev}
v_cos_f32 v{cs}, v{rev}
v_mul_f32 v{dst + 1}, v{e}, v{sn}
v_mul_f32 v{dst}, v{e}, v{cs}''')
    A(f'''v_mul_f32 v{e}, v{lre}, v{lre}
v_fmac_f32 v{e}, v{lim}, v{lim}
v_rcp_f32 v{e}, v{e}
v_add_f32 v{rev}, -1.0, v{P}
v_add_f32 v{e}, v{e}, v{e}
v_mul_f32 v{sn}, v{rev}, v{lre}
v_fmac_f32 v{sn}, v{P + 1}, v{lim}
v_mul_f32 v{cs}, v{P + 1}, v{lre}
v_fma_f32 v{cs}, -v{rev}, v{lim}, v{cs}
v_mul_f32 v{sn}, v{e}, v{sn}
v_mul_f32 v{cs}, v{e}, v{cs}
v_and_b32 v{e}, 1, v{aC}
v_lshrrev_b32 v{aC}, 1, v{aC}
v_lshlrev_b32 v{aC}, 4, v{aC}
v_lshl_add_u32 v{aC}, v{e}, 2, v{aC}
v_add_u32 v{aC}, {L_C}, v{aC}
v_add_u32 v{aL}, {L_L}, v{aL}
v_add_u32 v{aV}, {L_V}, v{aV}
ds_write2_b32 v{aC}, v{sn}, v{cs} offset0:0 offset1:2
s_waitcnt lgkmcnt(0)
v_mov_b32 v{V}, 1.0
v_mov_b32 v{V + 1}, 0
v_mov_b32 v{Wt}, 1.0
v_mov_b32 v{Wt + 1}, 0''')
    a = [cmul(P + 2 * k, P + 2 * k - 2, P) for k in range(1, 7)]
    b = [cmul(V + 2 * s, V + 2 * s - 2, V + 2) for s in range(2, 17)]
    for s, ops in enumerate(b):
        A(ops[0])
        if s < len(a):
            A(a[s][0])
        A(ops[1])
        if s < len(a):
            A(a[s][1])
        if 6 <= s < 13:
            k = s - 6
            A(f'ds_write2_b32 v{aL}, v{P + 2 * k}, v{P + 2 * k + 1} offset0:{k} offset1:{8 + k}')
        if s % 2 == 1:
            A(f'ds_write_b128 v{aV}, {v4(V + 2 * (s - 1))} offset:{8 * (s - 1)}')
    A(f'ds_write2_b32 v{aL}, v{V + 2}, v{V + 3} offset0:7 offset1:15')
    A(f'ds_write_b128 v{aV}, {v4(V + 28)} offset:112')
    A('\n'.join(cmul(e, V + 32, V + 32) + cmul(Wt + 2, e, e) + cmul(Wt + 4, Wt + 2, Wt + 2) + cmul(Wt + 6, Wt + 4, Wt + 2)))
    A(f'''ds_write_b64 v{aV}, {v2(V + 32)} offset:128
ds_write_b128 v{aV}, {v4(Wt)} offset:144
ds_write_b128 v{aV}, {v4(Wt + 4)} offset:160''')


def const_reads(lg):
    t = vT
    it = lines(f'''v_lshrrev_b32 v{t[0]}, 1, v{vI}
v_mul_u32_u24 v{t[1]}, 176, v{t[0]}
v_mul_u32_u24 v{t[0]}, 80, v{t[0]}
v_and_b32 v{t[2]}, 1, v{vI}
v_lshl_add_u32 v{t[1]}, v{t[2]}, 2, v{t[1]}
v_lshl_add_u32 v{t[1]}, v{vQ}, 3, v{t[1]}
s_lshl_b32 s{sT[0]}, s{sW}, 5
s_add_u32 s{sT[0]}, s{sT[0]}, {L_V}
v_add_u32 v{t[1]}, s{sT[0]}, v{t[1]}
v_add_u32 v{t[0]}, {L_L}, v{t[0]}
v_cvt_f32_u32 v{vSgn}, v{t[2]}
v_min_u32 v{t[2]}, 39, v{vL}
v_mul_u32_u24 v{t[2]}, 176, v{t[2]}
v_fma_f32 v{vSgn}, 2.0, v{vSgn}, -1.0
v_add_u32 v{t[2]}, {L_V}, v{t[2]}
s_lshl_b32 s{sT[0]}, s{sW}, 3''')
    for j in range(5):
        it.append(lambda j=j: lg(f'ds_read_b32 v{LR + j}, v{t[0]} offset:{j * 640}'))
        it.append(lambda j=j: lg(f'ds_read_b32 v{LS + j}, v{t[0]} offset:{j * 640 + 32}'))
        it.append(lambda j=j: lg(f'ds_read_b32 v{VA + 2 * j}, v{t[1]} offset:{j * 1408}'))
    it.append(lambda: lg(f'ds_read_b64 {v2(mL8)}, v{t[2]} offset:8'))
    it.append(lambda: lg(f'ds_read_b64 {v2(mL128)}, v{t[2]} offset:128'))
    it.append(f'v_add_u32 v{t[2]}, s{sT[0]}, v{t[2]}')
    it.append(lambda: lg(f'ds_read_b64 {v2(mW)}, v{t[2]} offset:144', 'cst'))
    fix = [lambda: lg.wait('cst')]
    for j in range(5):
        fix += [f'v_mul_f32 v{LS + j}, v{vSgn}, v{LS + j}',
                f'v_mul_f32_dpp v{VA + 2 * j + 1}, v{VA + 2 * j}, v{vSgn} {SWP}']
    return it, fix


def kv_work(vm, lg):
    rd = [lambda: lg(f'ds_read_b128 {v4(SKW)}, v{vSR}'), lambda: lg(f'ds_read_b128 {v4(SKW + 4)}, v{vSR} offset:16', 'skw')]
    for r in range(11):
        off = 1056 + (r - 3) * 128 if r >= 3 else (5 + r) * 128
        rd.append(lambda r=r, off=off: lg(f'ds_read_b64 {v2(KK + 2 * r)}, v{vKR} offset:{off}', 'kk'))
    for r in range(8):
        rd.append(lambda r=r: lg(f'ds_read_b64 {v2(VV + 2 * r)}, v{vKR} offset:{VOFF + 1056 + r * 128}', 'vv'))
    it = [lambda: lg.wait('skw')]
    for e in range(4):
        for i in range(4):
            src = SKW + 2 * e + (i >> 1)
            it.append(f'v_and_b32 v{WW + 4 * i + e}, 0xffff0000, v{src}' if i & 1 else
                      f'v_lshlrev_b32 v{WW + 4 * i + e}, 16, v{src}')
    it.append(lambda: lg.wait('kk'))
    for d in range(2):
        pend = []
        for r in range(11):
            tmp = KT + 2 * (r % 2)
            it += unpack(tmp, KK + 2 * r + d, 1) if r == 0 else []
            nxt = unpack(KT + 2 * ((r + 1) % 2), KK + 2 * (r + 1) + d, 1) if r < 10 else []
            ops = []
            for stage in range(4):
                ta = r - stage
                if 0 <= ta < 8:
                    w = v2(WW + 4 * (3 - stage) + 2 * d)
                    ac = v2(AC + 2 * ta)
                    ops.append(f'v_pk_mul_f32 {ac}, {v2(tmp)}, {w}' if stage == 0 else
                               f'v_pk_fma_f32 {ac}, {v2(tmp)}, {w}, {ac}')
            it += ops[:1] + nxt + ops[1:]
        it.append(lambda: lg.wait('vv'))
        for ta in range(8):
            tmp = KT + 4 + 2 * (ta % 2)
            it += unpack(tmp, VV + 2 * ta + d, 1) + pend
            pend = [f'v_pk_mul_f32 {v2(AC + 2 * ta)}, {v2(AC + 2 * ta)}, {v2(tmp)}']
        it += pend
        for eo in range(2):
            for dd in range(4):
                it.append(f'v_cvt_pk_bf16_f32 v{OUT[2 * d + eo] + dd}, v{AC + 2 * (7 - 2 * dd) + eo}, '
                          f'v{AC + 2 * (6 - 2 * dd) + eo}')

    def st():
        ls = []
        for e in range(4):
            if e:
                ls.append(f's_add_u32 s{sX[0]}, s{sX[0]}, s{sKs}')
            ls.append(f'buffer_store_dwordx4 {v4(OUT[e])}, v{vKS}, {W}, s{sX[0]} offen')
        mode_stores(ls, sKm, OPT['thr'] & 1)
        vm.n += 4
        vm.t['kvst'] = vm.n
    it.append(st)
    return rd, it


def stats_work(vm):
    S, Q, ad = XS, XS + 2, vT[0]
    it = [lambda: vm.wait('xp')]
    for i in range(40):
        it.append(f'v_dot2_f32_bf16 v{S}, v{XP + i}, s{sOnes}, ' + (f'v{S}' if i else '0'))
        it.append(f'v_dot2_f32_bf16 v{Q}, v{XP + i}, v{XP + i}, ' + (f'v{Q}' if i else '0'))
    with Cap() as c:
        for mod in ('quad_perm:[1,0,3,2]', 'quad_perm:[2,3,0,1]', 'row_half_mirror'):
            A(f'v_add_f32_dpp v{S}, v{S}, v{S} {mod} {DPPM}')
            A(f'v_add_f32_dpp v{Q}, v{Q}, v{Q} {mod} {DPPM}')
        inv = 0x3acccccd
        A(f'''v_mul_f32 v{S}, {inv:#x}, v{S}
v_mul_f32 v{Q}, {inv:#x}, v{Q}
v_fma_f32 v{Q}, -v{S}, v{S}, v{Q}
v_max_f32 v{Q}, 0, v{Q}''')
        rnd_bf16(S)
        rnd_bf16(Q)
        A(f'v_add_f32 v{Q}, 0x3727c5ac, v{Q}')
        rnd_bf16(Q)
        A(f'v_sqrt_f32 v{Q}, v{Q}')
        rnd_bf16(Q)
        A(f'''v_rcp_f32 v{S + 1}, v{Q}
v_mov_b32 v{Q}, s{sTag}
v_mov_b32 v{Q + 1}, s{sTag}''')

    def st():
        A(f'''v_lshlrev_b32 v{ad}, 1, v{vL}
s_lshl_b32 s{sT[0]}, s{sR128}, 4
s_add_u32 s{sT[0]}, s{sT[0]}, s{sMem}
s_lshl_b32 s{sT[0]}, s{sT[0]}, 7
s_add_u32 s{sT[0]}, s{sT[0]}, {WS_RS}
s_mov_b32 exec_lo, 0x01010101
s_mov_b32 exec_hi, 0x01010101''')
        vm(f'buffer_store_dwordx4 {v4(S)}, v{ad}, {W}, s{sT[0]} offen sc1')
        A('s_mov_b64 exec, -1')
    return it + c.lines + [st]


def colsum_work(vm):
    cs = XS
    it = [lambda: vm.wait('xp')]
    for i in range(40):
        it.append(f'v_dot2_f32_bf16 v{cs + (i & 1)}, v{XP + i}, s{sOnes}, ' + (f'v{cs + (i & 1)}' if i > 1 else '0'))
    it.append(f'v_add_f32 v{cs}, v{cs}, v{cs + 1}')
    for mod in ('quad_perm:[1,0,3,2]', 'quad_perm:[2,3,0,1]', 'row_half_mirror'):
        it.append(f'v_add_f32_dpp v{cs}, v{cs}, v{cs} {mod} {DPPM}')

    def st():
        A(f"""v_mov_b32 v{cs + 1}, s{sTag}
v_lshlrev_b32 v{vT[0]}, 1, v{vL}
s_lshl_b32 s{sT[0]}, s{sMem}, 3
s_and_b32 s{sT[1]}, s{sR128}, 7
s_add_u32 s{sT[0]}, s{sT[0]}, s{sT[1]}
s_mul_i32 s{sT[0]}, s{sT[0]}, 80
s_and_b32 s{sT[1]}, s{sR128}, 8
s_add_u32 s{sT[0]}, s{sT[0]}, s{sT[1]}
s_add_u32 s{sT[0]}, s{sT[0]}, {WS_CS}
s_mov_b32 exec_lo, 0x01010101
s_mov_b32 exec_hi, 1""")
        vm(f'buffer_store_dwordx2 {v2(cs)}, v{vT[0]}, {W}, s{sT[0]} offen sc1')
        A('s_mov_b64 exec, -1')
    return it + [st]


def fx_store(mods):
    A(f"""s_lshl_b32 s{sT[0]}, s{sG}, 11
s_lshl_b32 s{sT[1]}, s{sJ}, 2
s_add_u32 s{sT[0]}, s{sT[0]}, s{sT[1]}
s_add_u32 s{sT[0]}, s{sT[0]}, {WS_FX}
s_or_b32 s{sT[1]}, s{sTag}, s{sXcc}
v_mov_b32 v{vT[4]}, s{sT[1]}
s_mov_b64 exec, 1
buffer_store_dword v{vT[4]}, off, {W}, s{sT[0]}{mods}
s_mov_b64 exec, -1""")


def mode_check(vm):
    t, x, fa, so = vFX, vT[4], vFXa, sX[2]
    vm.wait('fx')
    lab, done = A.label('again'), A.label('ok')
    A.cond[lab] = lambda c: False
    A(f"""v_xor_b32 v{x}, s{sTag}, v{t}
v_cmp_lt_u32 vcc, 15, v{x}
s_cbranch_vccnz {lab}
{done}:""")
    TAIL.append(f"""{lab}:
s_sub_u32 s{sBud}, s{sBud}, 1
s_cmp_gt_i32 s{sBud}, 0
s_cbranch_scc0 {done}
buffer_load_dword v{t}, v{fa}, {W}, s{so} offen sc1
s_waitcnt vmcnt(0)
v_xor_b32 v{x}, s{sTag}, v{t}
v_cmp_lt_u32 vcc, 15, v{x}
s_cbranch_vccz {done}
s_and_b32 s{sT[1]}, s{sBud}, 3
s_cbranch_scc1 {lab}
buffer_load_dword v{t}, v{fa}, {W}, s{so} offen offset:128 sc1
s_waitcnt vmcnt(0)
v_xor_b32 v{x}, s{sTag}, v{t}
v_cmp_lt_u32 vcc, 15, v{x}
s_cbranch_vccnz {lab}
s_branch {done}""")
    A(f"""s_or_b32 s{sT[1]}, s{sTag}, s{sXcc}
v_cmp_ne_u32 vcc, s{sT[1]}, v{t}
s_cmp_eq_u64 vcc, 0
s_cselect_b32 s{sMode}, {0 if OPT['force_slow'] else 1}, 0
s_cmp_eq_u32 s{sW}, 2
s_cselect_b32 s{sKm}, 0, s{sMode}""")


def gemm_addr():
    t = vT
    A(f"""v_and_b32 v{t[0]}, 1, v{vI}
v_lshrrev_b32 v{t[1]}, 1, v{vI}
v_and_b32 v{t[2]}, 6, v{t[1]}
s_movk_i32 s{sT[3]}, 0x78
v_bfe_u32 v{t[2]}, s{sT[3]}, v{t[2]}, 2
v_xor_b32 v{t[2]}, v{t[2]}, v{vQ}
v_lshl_add_u32 v{t[2]}, v{t[0]}, 2, v{t[2]}
v_lshlrev_b32 v{t[2]}, 4, v{t[2]}
v_lshl_add_u32 v{t[2]}, v{t[1]}, 7, v{t[2]}
v_lshl_add_u32 v{vBA[0]}, v{t[0]}, 10, v{t[2]}
v_xor_b32 v{vBA[1]}, 64, v{vBA[0]}
v_add_u32 v{vBA[2]}, 51200, v{vBA[0]}
v_add_u32 v{vBA[3]}, 51200, v{vBA[1]}
v_mul_u32_u24 v{vAS}, 144, v{t[1]}
v_lshl_add_u32 v{vAS}, v{t[0]}, 2, v{vAS}
v_lshl_add_u32 v{vAS}, v{vQ}, 3, v{vAS}
s_lshl_b32 s{sT[0]}, s{sW}, 5
v_add_u32 v{vAS}, s{sT[0]}, v{vAS}
v_and_b32 v{t[0]}, 6, v{vI}
v_xor_b32 v{t[0]}, v{t[0]}, v{vQ}
v_lshlrev_b32 v{t[0]}, 4, v{t[0]}
v_lshl_add_u32 v{t[0]}, v{vI}, 7, v{t[0]}
v_add_u32 v{vAR}, s{sXm}, v{t[0]}
v_xor_b32 v{vAR2}, 64, v{vAR}""")


def misc_setup():
    t = vT
    A(f'''s_lshr_b32 s{sCs}, s{sX[8]}, 1
s_add_u32 s{sCs}, s{sCs}, 512
s_lshr_b32 s{sT[2]}, s{sMem}, 3
s_lshl_b32 s{sR64}, s{sR128}, 1
s_add_u32 s{sR64}, s{sR64}, s{sT[2]}
s_and_b32 s{sS8}, s{sMem}, 7
s_lshl_b32 s{sFW}, s{sR128}, 10
s_lshl_b32 s{sT[1]}, s{sMem}, 4
s_add_u32 s{sFW}, s{sFW}, s{sT[1]}
s_lshl_b32 s{sT[1]}, s{sW}, 2
s_add_u32 s{sFW}, s{sFW}, s{sT[1]}
s_lshl_b32 s{sFK}, s{sG}, 11
s_add_u32 s{sFK}, s{sFK}, s{sT[1]}
s_lshl_b32 s{sT[1]}, s{sJ}, 4
s_add_u32 s{sFK}, s{sFK}, s{sT[1]}
s_lshl_b32 s{sAgg}, s{sMem}, 5
s_add_u32 s{sAgg}, s{sAgg}, s{sR128}
s_mul_i32 s{sAgg}, s{sAgg}, 640
s_add_u32 s{sAgg}, s{sAgg}, {WS_AGG}
s_cmp_eq_u32 s{sW}, 0
s_cselect_b32 s{sPub}, -1, 0
s_cselect_b32 s{sPub + 1}, 0xff, 0''')
    A(f's_lshl_b32 s{sT[0]}, s{sXs}, 1\ns_mul_i32 s{sT[1]}, s{sMem}, 5')
    for j in range(5):
        A(f"""s_add_u32 s{sT[2]}, s{sT[1]}, {j}
s_lshr_b32 s{sT[3]}, s{sT[2]}, 2
s_lshl_b32 s{sT[3]}, s{sT[3]}, 11
s_and_b32 s{sT[2]}, s{sT[2]}, 3
s_lshl_b32 s{sT[2]}, s{sT[2]}, 8
s_add_u32 s{sT[2]}, s{sT[2]}, s{sT[3]}
s_add_u32 s{sH[j]}, s{sT[2]}, s{sT[0]}""")
    tw, tr, ts = vU[0], vU[1], vU[2]
    A(f'''s_mul_i32 s{sT[0]}, s{sW}, 1280
s_add_u32 s{sT[0]}, s{sT[0]}, {L_TR}
v_mul_u32_u24 v{t[0]}, 80, v{vI}
v_lshl_add_u32 v{t[0]}, v{vQ}, 4, v{t[0]}
v_add_u32 v{tw}, s{sT[0]}, v{t[0]}
v_bfe_u32 v{t[1]}, v{vL}, 2, 2
v_mul_u32_u24 v{t[1]}, 160, v{t[1]}
v_and_b32 v{t[2]}, 3, v{vL}
v_lshl_add_u32 v{t[1]}, v{t[2]}, 4, v{t[1]}
v_lshrrev_b32 v{t[2]}, 1, v{vQ}
v_mul_u32_u24 v{t[3]}, 80, v{t[2]}
v_lshlrev_b32 v{t[2]}, 10, v{t[2]}
v_add3_u32 v{t[1]}, v{t[1]}, v{t[3]}, s{sT[0]}
v_and_b32 v{t[3]}, 1, v{vQ}
v_lshl_add_u32 v{tr}, v{t[3]}, 3, v{t[1]}
v_mul_u32_u24 v{t[3]}, 40960, v{t[3]}
v_lshl_add_u32 v{t[2]}, v{vI}, 4, v{t[2]}
v_add_u32 v{ts}, v{t[2]}, v{t[3]}''')
    park('tw', tw), park('tr', tr), park('ts', ts), park('bd', vBd), park('bd2', vBd2)
    A(f'''v_lshrrev_b32 v{t[0]}, 2, v{vI}
v_mul_u32_u24 v{t[0]}, 5120, v{t[0]}
v_and_b32 v{t[1]}, 3, v{vI}
v_lshl_add_u32 v{t[0]}, v{t[1]}, 4, v{t[0]}
v_lshl_add_u32 v{vUA}, v{vQ}, 6, v{t[0]}''')


def weave(items, extra, first, every):
    extra = list(extra)
    for i, it in enumerate(lines(items)):
        run(it)
        if extra and i >= first and (i - first) % every == 0:
            run(extra.pop(0))
    run(extra)


class Roles:
    def __init__(self, n):
        self.c = [VM() for _ in range(n)]

    def __call__(self, text, name=None):
        A(text)
        for c in self.c:
            c.n += 1
            if name is not None:
                c.t[name] = c.n

    def wait(self, *names):
        k = min(c.n - max(c.t[x] for x in names) for c in self.c)
        A(f's_waitcnt vmcnt({min(k, 63)})')
        for c in self.c:
            c.done = max(c.done, c.n - min(k, 63))

    def each(self, fns):
        lj = A.label('join')
        todo = [w for w in range(4) if fns[w]]
        labs = {w: A.label(f'w{w}') for w in todo}
        for w in todo:
            A.cond[labs[w]] = lambda c, w=w: c['w'] == w
            if w != todo[0] or len(todo) < 4:
                A(f's_cmp_eq_u32 s{sW}, {w}\ns_cbranch_scc1 {labs[w]}')
        if len(todo) < 4:
            A(f's_branch {lj}')
        for w in todo:
            A(f'{labs[w]}:')
            fns[w](self.c[w])
            if w != todo[-1]:
                A(f's_branch {lj}')
        A(f'{lj}:')

    def merged(self):
        for c in self.c[1:]:
            self.c[0].merge(c)
        return self.c[0]


def more():
    pk = lambda regs, o: [f'v_accvgpr_write_b32 a{A_CV + o + i}, v{r}' for i, r in enumerate(regs)]
    return [atom(f'''s_lshl_b32 s{sX[6]}, s{sR128}, 11
s_lshl_b32 s{sT[0]}, s{sW}, 9
s_add_u32 s{sX[6]}, s{sX[6]}, s{sT[0]}
s_add_u32 s{sX[6]}, s{sX[6]}, {WS_RS}
v_and_b32 v{vRS}, 7, v{vI}
v_lshlrev_b32 v{vRS}, 4, v{vRS}
v_lshl_add_u32 v{vRS}, v{vQ}, 7, v{vRS}
s_mul_i32 s{sX[7]}, s{sMem}, 640
s_add_u32 s{sX[7]}, s{sX[7]}, {WS_CS}
v_lshlrev_b32 v{vRS + 1}, 3, v{vL}
v_lshlrev_b32 v{vRS + 2}, 3, v{vI}
v_and_b32 v{vFA}, 31, v{vL}
v_lshlrev_b32 v{vFA}, 4, v{vFA}
s_lshl_b32 s{sX[1]}, s{sS8}, 11
s_add_u32 s{sX[1]}, s{sX[1]}, {WS_FS}'''),
            atom(conv_setup(), pk(vCA + vCB, 0)), atom(lambda: g2_setup(0), pk(G2REG, 11)), atom(y_setup(), pk(YREG, 4)),
            z_addr, atom(lambda: touch_addr(vT[0], [SEG_ST, SEG_F]), lambda: park('rt', vT[0]))]


def startup():
    t = vT
    R = Roles(4)

    def bs(vm, g0, g1):
        return [lambda g=g, j=j: b_dma(vm, g, j) for g in range(g0, g1) for j in (0, 2, 4)]

    def head1(vm):
        A(f"""v_min_u32 v{t[0]}, 39, v{vL}
s_mul_i32 s{sT[0]}, s{sMem}, 80
v_lshl_add_u32 v{t[3]}, v{t[0]}, 1, s{sT[0]}""")
        vm(f'global_load_ushort v{PAR}, v{t[3]}, {s2(P_LRE)}{NTP}')
        vm(f'global_load_ushort v{PAR + 1}, v{t[3]}, {s2(P_LIM)}{NTP}')
        vm(f'global_load_ushort v{PAR + 2}, v{t[3]}, {s2(P_LDT)}{NTP}', 'par')

    def head0(vm):
        kv_loads0(vm)
        srd(R_WS, P_WS, WS_SIZE)
        agg = f's_lshl_b32 $, s{sMem}, 5\ns_add_u32 $, $, s{sR128}\ns_mul_i32 $, $, 640\ns_add_u32 $, $, '
        n = touch_addr(t[0], [SEG_ST][:OPT['t0']] + [SEG_F, (9, f's_lshl_b32 $, s{sG}, 11\ns_add_u32 $, $, {WS_FK}'),
                              (5, agg + str(WS_AGG + 16 * 640)), (5, agg + str(WS_AGG + 16 * 640 + AGG_L)),
                              (5, f's_mul_i32 $, s{sMem}, 640\ns_add_u32 $, $, {WS_CS}'),
                              (1, f's_lshl_b32 $, s{sG}, 7\ns_add_u32 $, $, {WS_FY}'),
                              (1, f's_lshl_b32 $, s{sG}, 7\ns_add_u32 $, $, {WS_FB}')])
        A(f's_mov_b32 exec_hi, {(1 << n - 32) - 1}')
        vm(f'buffer_load_dword a250, v{t[0]}, {W}, 0 offen{NTT}')
        A('s_mov_b32 exec_hi, -1')

    def head3(vm):
        srd(R_X, P_X, 2621440)
        A(f'''s_lshl_b32 s{sT[0]}, s{sR128}, 4
s_add_u32 s{sT[0]}, s{sT[0]}, s{sMem}
s_mul_i32 s{sT[0]}, s{sT[0]}, 10240''')
        vm.t['kv'] = 0
        for z in range(10):
            vm(f'buffer_load_dwordx4 {v4(XP + 4 * z)}, v{vR}, {s4(R_X)}, s{sT[0]} offen offset:{z * 128}{NTX}', 'xp')
    def args():
        A('s_waitcnt lgkmcnt(0)')
        if OPT['stamps']:
            A(f'v_writelane_b32 v{vStamp}, s{sSt}, 62')
            stamp('start')
    R.each([lambda vm, f=f: (args(), f(vm)) for f in (head0, lambda vm: (head1(vm), kv_loads1(vm)), kv_loads2, head3)])
    A(f's_load_dword s{sTag}, {s2(P_WS)}, 0')

    def scalars():
        A(f'''s_lshl_b32 s{sC0}, s{sX[8]}, 1
s_lshl_b32 s{sT[0]}, s{sC0}, 1
s_load_dword s{sD[0]}, {s2(P_SD)}, s{sT[0]}
s_and_b32 s{sT[0]}, s{sX[8]}, 0xfffffffc
s_add_u32 s{sT[0]}, s{sT[0]}, 1024
s_load_dword s{sD[1]}, {s2(P_SD)}, s{sT[0]}
v_and_b32 v{vFXa}, 31, v{vL}
v_lshlrev_b32 v{vFXa}, 2, v{vFXa}
s_lshl_b32 s{sX[2]}, s{sG}, 11
s_add_u32 s{sX[2]}, s{sX[2]}, {WS_FX}
s_getreg_b32 s{sXcc}, hwreg(HW_REG_XCC_ID, 0, 4)
s_mov_b32 s{sBud}, {OPT['budget']}
s_mov_b32 s{sOnes}, 0x3f803f80''')
    with Cap() as cc:
        consts()
    cc.lines.remove('s_waitcnt lgkmcnt(0)')

    def tag():
        A(f"""s_waitcnt lgkmcnt(0)
s_lshr_b32 s{sTag}, s{sTag}, 4
s_mul_i32 s{sTag}, s{sTag}, 0x19660d
s_add_u32 s{sTag}, s{sTag}, 0x3c6ef35f
s_lshl_b32 s{sTag}, s{sTag}, 4""")

    def w0(vm):
        A(f'v_mov_b32 v{XS}, 0')
        fx_store('')
        fx_store(' offset:128 sc1')
        vm.n += 2
        A(f'''v_mov_b32 v{XS + 1}, 0
v_mov_b32 v{XS + 2}, s{sTag}
v_mov_b32 v{XS + 3}, s{sTag}
s_add_u32 s{sT[0]}, s{sAgg}, {AGG_L}
s_mov_b32 exec_hi, 0xff''')
        vm(f'buffer_store_dwordx4 {v4(XS)}, v{vL16}, {W}, s{sAgg} offen sc1')
        vm(f'buffer_store_dwordx4 {v4(XS)}, v{vL16}, {W}, s{sT[0]} offen sc1')
        A('s_mov_b32 exec_hi, -1')

    def w1(vm):
        vm.wait('par')
        run(cc.lines)
    blocks = dict(A=dma_addr, S=scalars, M=misc_setup, C=lambda: c_loads(R), O=lambda: run(more()), T=tag,
                  G=lambda: (gemm_addr(), kv_addr(), k_addr()), K=lambda: run(k_loads(R)),
                  R=lambda: R.each([None, w1, w0, lambda vm: run(stats_work(vm))]))
    for b in OPT['order'].split(','):
        if b[0] == 'B':
            run(bs(R, int(b[1]), int(b[1]) + 1))
        elif b[0] == 'X':
            x_dma(R, int(b[1]))
        elif b[0] == '@':
            stamp(b[1:])
        else:
            blocks[b]()
    R.wait('kv')
    A('s_waitcnt lgkmcnt(0)\ns_barrier')
    stamp('kv_land')
    R(f'buffer_load_dword v{vFX}, v{vFXa}, {W}, s{sX[2]} offen sc1', 'fx')
    lg = LG()
    crd, fix = const_reads(lg)
    run(crd)
    va, vb = R.c[0], R.c[3]
    va.merge(R.c[1]), va.merge(R.c[2])
    l3, lj = A.label('w3'), A.label('join')
    A.cond[l3] = lambda c: c['w'] == 3
    A(f's_cmp_eq_u32 s{sW}, 3\ns_cbranch_scc1 {l3}')
    def nxt(v):
        out = []
        for b in OPT['post'].split(','):
            if b[0] == 'L':
                if v is vb:
                    out += [lambda g=int(b[1]): b_all(v, g)]
                else:
                    v.t['b', int(b[1])] = 0
                continue
            if b[0] == 'C':
                out.append(lambda: c_loads(v))
                continue
            out += bs(v, int(b[1]), int(b[1]) + 1) if b[0] == 'B' else [lambda b=b: x_dma(v, int(b[1]))] if b[0] == 'X' else \
                [atom(k_loads(v)[:3]), atom(k_loads(v)[3:5]), atom(k_loads(v)[5:])]
        return out
    la = copy.deepcopy(lg)
    rd, it = kv_work(va, la)
    run(rd)
    weave(it[:-1], nxt(va), OPT['wv0'], OPT['wv'])
    if not OPT['mlate']:
        mode_check(va)
    if not OPT['kvd']:
        run(it[-1])
    A(f's_branch {lj}\n{l3}:')
    A(f'v_mov_b32 v{vKS}, {OOB}')
    A(f'''s_lshl_b32 s{sT[0]}, s{sMem}, 3
s_and_b32 s{sT[1]}, s{sR128}, 7
s_add_u32 s{sT[0]}, s{sT[0]}, s{sT[1]}
s_mul_i32 s{sT[0]}, s{sT[0]}, 6400
s_mov_b32 exec_hi, 0xff''')
    for z in range(1 if OPT['dbg'] & 8 else 10):
        vb(f'buffer_load_dwordx4 {v4(XP + 4 * z)}, v{vR}, {s4(R_T0)}, s{sT[0]} offen offset:{z * 128}', 'xp')
    A('s_mov_b32 exec_hi, -1')
    run(nxt(vb))
    if not OPT['mlate']:
        mode_check(vb)
    run(colsum_work(vb))
    A(f'{lj}:\ns_waitcnt lgkmcnt(0)')
    va.merge(vb)
    vm = va
    stamp('kv_st')
    run(fix[1:])
    if OPT['cfs'] < 0:
        run(cf_work(vm, LG()))
    stamp('cf_st')
    vm.wait(('x', 1), ('b', 0))
    stamp('land')
    return vm


class G1:
    def __init__(self, layer, vm):
        self.layer, self.vm, self.lg, self.side = layer, vm, LG(), Side()
        self.order = list(range(20)) if layer == 0 else list(range(4, 20)) + list(range(4))

    def rd(self, s, j):
        k = self.order[s]
        idx = (k >> 1) * 5 + j
        a, off = (vBA[k & 1], idx * 2048) if idx < 25 else (vBA[2 + (k & 1)], (idx - 25) * 2048)
        self.lg(f'ds_read_b128 {v4(BF + 20 * (s & 1) + 4 * j)}, v{a} offset:{off}', ('B', s, j))

    def rda(self, s, m):
        self.lg(f'ds_read_b128 {v4(AF + 8 * (s & 1) + 4 * m)}, v{vAR2 if s & 1 else vAR} '
                f'offset:{((2 * (s >> 1) + m) % 7) * 8192}', ('A', s, m))

    def ld(self, f):
        s, m = divmod(f, 2)
        s = self.order[s]
        if s == 16:
            A(f's_add_u32 s{sL[m]}, s{sL[m]}, 4096')
        if s == 0:
            A(f's_sub_u32 s{sL[m]}, s{sL[m]}, 4096')
        self.vm(f'buffer_load_dwordx4 {v4(RING + 4 * (f % NR))}, v{vUA}, {W}, s{sL[m]} offen '
                f'offset:{(s % 16) * 256} sc1', ('u', f))

    def step(self, s):
        vm, lg, layer = self.vm, self.lg, self.layer
        if (s in (0, 4, 8, 12, 16) and OPT['stamps'] != 3) or (OPT['stamps'] == 4 and layer == 0):
            stamp(f'.s{s}_{layer}', 2)
        if layer == 0:
            need = [('x', s + 2)] if s & 1 and s < 19 else []
            if s in (3, 7, 11, 15)[:OPT['nbar']]:
                g = (s + 1) // 4
                vm.wait(*[('b', x) for x in range(g, 5 if g == OPT['nbar'] else g + 1)], *need)
                A('s_barrier')
            elif need:
                vm.wait(*need)
        else:
            vm.wait(('u', 2 * s + 1))
            if s == 15:
                A('s_barrier')
        for j in range(5):
            if not OPT['gw'] or s == 0:
                lg.wait(('B', s, j))
            elif j in (0, 3):
                lg.wait(('B', s, 2 if j == 0 else 4))
            if layer == 0 and s == 19 and j == 0:
                A('s_barrier')
            for m in range(2):
                d = ACC + 8 * j + 4 * m
                c = '0' if s == 0 else v4(d)
                a = RING + 4 * ((2 * s + m) % NR) if layer else AF + 8 * (s & 1) + 4 * m
                A(f'v_mfma_f32_16x16x32_bf16 {v4(d)}, {v4(a)}, {v4(BF + 20 * (s & 1) + 4 * j)}, {c}')
                if m == 0 and s < 19:
                    if j == 0 and layer == 0:
                        self.rda(s + 1, 0)
                        self.rda(s + 1, 1)
                    self.rd(s + 1, j)
                if layer == 0 or m == 1:
                    k = 2 * j + m
                    self.side.run(s, 10 - k if layer == 0 else 5 - j)


c_issued = [0]


def c_load(vm):
    i = c_issued[0]
    c_issued[0] += 1
    if OPT['dbg'] & 1024 and i % 5:
        return
    if i and i % 4 == 0:
        A(f's_add_u32 s{sL[0]}, s{sL[0]}, 4096')
    vm(f'buffer_load_dwordx4 {a4(4 * i)}, v{vL16}, {W}, s{sL[0]} offen offset:{(i % 4) * 1024} sc1', 'cf')


def k_addr():
    A(f'''s_lshl_b32 s{sT[0]}, s{sC0}, 12
s_lshl_b32 s{sT[1]}, s{sW}, 10
s_add_u32 s{sX[3]}, s{sT[0]}, s{sT[1]}
s_add_u32 s{sX[4]}, s{sX[3]}, 4096
s_lshl_b32 s{sX[5]}, s{sCs}, 12
s_add_u32 s{sX[5]}, s{sX[5]}, s{sT[1]}
s_add_u32 s{sT[1]}, s{sT[1]}, {L_K + 32}
v_add_u32 v{vKO}, s{sT[1]}, v{vL16}
v_lshrrev_b32 v{vT[0]}, 1, v{vL}
v_mul_u32_u24 v{vT[0]}, 4160, v{vT[0]}
v_and_b32 v{vT[1]}, 1, v{vL}
v_lshl_add_u32 v{vT[0]}, v{vT[1]}, 4, v{vT[0]}
v_add_u32 v{vKP}, {L_K}, v{vT[0]}''')


def k_loads(vm):
    it = [lambda: srd(R_T1, P_SSK, 2621440)]
    for sl in range(3):
        if not OPT['dbg'] & 2:
            it.append(lambda sl=sl: vm(f'buffer_load_dwordx4 {v4(KA + 4 * sl)}, v{vL16}, {s4(R_T1)}, s{sX[3 + sl]} offen{NTK}'))
        it.append(lambda sl=sl: vm(f'buffer_load_dwordx4 {v4(KB + 4 * sl)}, v{vL16}, {s4(R_T1)}, s{sX[3 + sl]} offen offset:4{NTK}', 'K'))
    return it


def k_work(vm):
    it = [lambda: vm.wait('K')]
    for sl in range(3):
        it[-1] = atom(it[-1], f'ds_write_b128 v{vKO}, {v4(KA + 4 * sl)} offset:{sl * 8320}')
        it.append(atom([f'v_alignbit_b32 v{KB + 4 * sl + i}, v{KB + 4 * sl + i}, v{KA + 4 * sl + i}, 16' for i in range(4)],
                       f'ds_write_b128 v{vKO}, {v4(KB + 4 * sl)} offset:{sl * 8320 + 4160}'))

    def pads():
        A(f's_cmp_lg_u32 s{sW}, 0')
        with A.skip_if('s_cbranch_scc1', lambda c: c['w'] != 0):
            run([f'v_mov_b32 v{216 + i}, 0' for i in range(4)])
            A(f's_mov_b64 exec, 0xfff\nds_write_b128 v{vKP}, {v4(216)}\ns_mov_b64 exec, 1')
            for sl in range(3):
                A(f'ds_write_b16 v{vKP}, v{KA + 4 * sl} offset:{sl * 8320 + 4160 + 30}')
            A('s_mov_b64 exec, -1')
    return it + [pads]


def front(vm):
    g = G1(0, vm)
    lg, S = g.lg, g.side
    A('s_barrier')
    g.rda(0, 0), g.rda(0, 1)
    for j in range(5):
        g.rd(0, j)
    for p in (2, 3):
        if ('x', p) not in vm.t:
            x_dma(vm, p)
    if 'O' not in OPT['order']:
        S.spread(OPT['os'], OPT['oper'], more())
    if OPT['cfs'] >= 0:
        S.spread(OPT['cfs'], OPT['cfper'], cf_work(vm, lg))
    if 'K' not in vm.t:
        S.spread(OPT['kls'], 3, k_loads(vm))
    S.add(0, lambda: x_dma(vm, 4), lambda: x_dma(vm, 5))
    if OPT['kvd']:
        S.add(OPT['kvd'] - 1, kv_work(vm, None)[1][-1])
    for p in range(6, 20):
        S.add(max(1, p - 6), lambda p=p: x_dma(vm, p))
    for gi in range(1, 5):
        if ('b', gi) in vm.t:
            continue
        for n, j in enumerate((0, 2, 4)):
            S.add(OPT[f'b{gi}s'] + n // 2, lambda gi=gi, j=j: b_dma(vm, gi, j))
    if OPT['mlate']:
        assert OPT['thr'] & 1
        S.add(OPT['kvf'] - 1, lambda: mode_check(vm))
    S.add(OPT['kvf'], atom(lambda: vm.wait('kvst'), lambda: flag_store(f's{sKf}', True, vm, sKm)))
    S.add(OPT['cff'], atom(lambda: vm.wait('cfst'), f's_add_u32 s{sT[0]}, s{sFK}, {WS_FS}',
                           lambda: flag_store(f's{sT[0]}', False, vm)))
    fk = f'buffer_load_dwordx2 {v2(vFP)}, v{vFA}, {W}, s{sX[0]} offen sc1'
    S.add(OPT['fsp'], atom(f's_and_b32 s{sX[0]}, s{sFK}, 0x3800', f's_add_u32 s{sX[0]}, s{sX[0]}, {WS_FK}', lambda: vm(fk, 'fk')))

    def fetch():
        vm.wait('fk')
        check_tags([vFP, vFP + 1], fk)
        for sl in range(2):
            A(f's_lshl_b32 s{sT[0]}, s{sG}, 16\ns_add_u32 s{sT[0]}, s{sT[0]}, s{sX[3 + sl]}\n'
              f's_add_u32 s{sT[0]}, s{sT[0]}, {WS_KV}\ns_lshl_b32 m0, s{sW}, 10')
            if sl:
                A(f's_add_u32 m0, m0, {L_KV + sl * 4608}')
            vm(f'buffer_load_dwordx4 v{vL16}, {W}, s{sT[0]} offen sc1 lds', 'kvT')
    assert OPT['fsc'] >= 7
    S.add(OPT['fsc'], fetch)
    S.add(8, atom(f'''s_min_u32 s{sT[0]}, s{sW}, 2
s_mul_i32 s{sT[0]}, s{sT[0]}, 4608
v_add_u32 v{vT[0]}, s{sT[0]}, v{vL16}''', [f'v_mov_b32 v{216 + i}, 0' for i in range(4)], 's_mov_b32 exec_hi, 0',
                  lambda: lg(f'ds_write_b128 v{vT[0]}, {v4(216)} offset:{L_KV + 4096}'), 's_mov_b32 exec_hi, -1'))
    rsl = [f'buffer_load_dwordx3 {v3(RSL)}, v{vRS}, {W}, s{sX[6]} offen sc1',
           f'buffer_load_dwordx2 {v2(RSL + 4)}, v{vRS + 1}, {W}, s{sX[7]} offen sc1',
           f'buffer_load_dwordx2 {v2(RSL + 6)}, v{vRS + 2}, {W}, s{sX[7]} offen offset:512 sc1']
    fc = f'buffer_load_dwordx4 {v4(vFP)}, v{vFA}, {W}, s{sX[1]} offen sc1'
    S.add(OPT['late'], [lambda t=t: vm(t, 'rs') for t in rsl])
    S.add(OPT['csp'], lambda: vm(fc, 'fc'))

    def ccheck():
        vm.wait('fc')
        check_tags([vFP + i for i in range(4)], fc)
        A(f'''s_mul_i32 s{sL[0]}, s{sS8}, 200
s_mul_i32 s{sT[0]}, s{sW}, 50
s_add_u32 s{sL[0]}, s{sL[0]}, s{sT[0]}
s_lshl_b32 s{sL[0]}, s{sL[0]}, 10
s_add_u32 s{sL[0]}, s{sL[0]}, {WS_CF}''')
    marks_gather(S, vm, -1)
    S.add(OPT['csc'], ccheck)
    for i in range(OPT['cl0']):
        S.add(OPT['csc'] + i * (20 - OPT['csc']) // OPT['cl0'], lambda: c_load(vm))

    def rscheck():
        vm.wait('rs')
        check_tags([RSL + 2, RSL + 2, RSL + 5, RSL + 7], rsl)
    S.q.setdefault(OPT['rsc'], []).insert(0, rscheck)
    c = lambda j: CSL + j
    S.add(19, f'''v_mov_b32 v{c(0)}, v{RSL + 4}
v_mov_b32 v{c(1)}, v{RSL + 4}
v_mov_b32 v{c(4)}, v{RSL + 6}
v_permlane16_swap_b32 v{c(0)}, v{c(1)}
v_mov_b32 v{c(2)}, v{c(0)}
v_mov_b32 v{c(3)}, v{c(1)}
v_permlane32_swap_b32 v{c(0)}, v{c(2)}
v_permlane32_swap_b32 v{c(1)}, v{c(3)}''')
    S.add(19, [f'v_mov_b32_dpp v{MM + t}, v{RSL} row_newbcast:{t} {DPPM}\n'
               f'v_mov_b32_dpp v{RR + t}, v{RSL + 1} row_newbcast:{t} {DPPM}' for t in range(8)])
    for s in range(20):
        g.step(s)
    assert not g.side.left()
    stamp('g1_0')
    kw = k_work(vm) if not OPT['kwl'] else []
    kw += [f'ds_write_b64 v{vZ + 4}, {v2(RSL)}'] + [[]] * (6 - len(kw))
    scan_1(0, [[k] + [lambda: c_load(vm)] * (i < OPT['cs1']) for i, k in enumerate(kw)], lambda: vm.wait('kvT'))
    lg = LG()
    h1, h2 = horner(0, vm, lg)
    weave(h1, [lambda: c_load(vm)] * OPT['cb'], 10, 6)
    for i, r in enumerate(vCA + vCB):
        A(f'v_accvgpr_read_b32 v{r}, a{A_CV + i}')
    for k in range(2):
        for i in range(1, 4):
            A(f'v_add_u32 v{vCA[k] + i}, {1024 * i}, v{vCA[k]}')
    if OPT['kwl']:
        run(k_work(vm))
        A('s_waitcnt lgkmcnt(0)\ns_barrier')
    return vm, lg


MAS, PP, AGL, GR = 90, 244, 88, 88
LT = [128, 144, 160, 176, 104]
PK = [120, 124]
vTW, vTR, vTS = 254, 255, 47


def scan_1(layer, extra=[], last=None):
    b = lambda j, ta: ACC + 8 * j + ta
    if layer == 0:
        for j in range(5):
            sel = 'op_sel:[0,1,0] op_sel_hi:[1,1,1]' if j & 1 else 'op_sel_hi:[1,0,1]'
            for p in range(4):
                d = ACC + 8 * j + 2 * p
                A(f'v_pk_fma_f32 {v2(d)}, {v2(MM + 2 * p)}, {v2(CSL + (j & ~1))}, {v2(d)} {sel} '
                  f'neg_lo:[1,0,0] neg_hi:[1,0,0]')
        for j in range(5):
            for p in range(4):
                d = ACC + 8 * j + 2 * p
                A(f'v_pk_mul_f32 {v2(d)}, {v2(d)}, {v2(RR + 2 * p)}')
    extra = list(extra)
    for ta in range(1, 8):
        if extra:
            run(extra.pop(0))
        for j in range(5):
            A(f'v_fmac_f32 v{b(j, ta)}, v{LR + j}, v{b(j, ta - 1)}')
        for j in range(5):
            A(f'v_fmac_f32_dpp v{b(j, ta)}, v{b(j, ta - 1)}, v{LS + j} {SWP}')
    A(f'''v_add_u32 v{vT[0]}, {L_AS}, v{vAS}
v_min_u32 v{vT[1]}, 39, v{vL}
v_mul_u32_u24 v{vU[2]}, 48, v{vT[1]}
s_lshl_b32 s{sT[0]}, s{sW}, 3
s_add_u32 s{sT[0]}, s{sT[0]}, {L_G}
v_add_u32 v{vU[2]}, s{sT[0]}, v{vU[2]}''')
    for j in range(5):
        A(f'ds_write_b32 v{vT[0]}, v{b(j, 7)} offset:{j * 1152}')
    A(f'''v_mul_u32_u24 v{vU[4]}, 144, v{vT[1]}
v_add_u32 v{vU[4]}, {L_AS}, v{vU[4]}''')
    if last:
        last()
    A('s_waitcnt lgkmcnt(0)\ns_barrier')
    stamp(f'scan1_{layer}')


def horner(layer, vm, lg):
    it = [lambda i=i: lg(f'ds_read_b128 {v4(MAS + 4 * i)}, v{vU[4]} offset:{16 * i}', ('as', i)) for i in range(8)]
    for s in range(1, 16):
        if s == 1 or s % 2 == 0:
            it.append(lambda s=s: lg.wait(('as', s // 2)))
        it += cmul(MAS + 2 * s, MAS + 2 * s - 2, mL8, MAS + 2 * s)

    def pub():
        A(f'''v_mov_b32 v{MAS + 32}, s{sTag}
v_mov_b32 v{MAS + 33}, s{sTag}
s_add_u32 s{sT[0]}, s{sAgg}, {layer * AGG_L + 16 * 640}
s_mov_b64 exec, {s2(sPub)}''')
        A(f'buffer_store_dwordx4 {v4(MAS + 30)}, v{vL16}, {W}, s{sT[0]} offen sc1')
        A('s_mov_b64 exec, -1')
        stamp(f'agg_pub_{layer}')
    it.append(pub)
    first, it = it, []
    def own():
        A(f'v_subrev_u32 v{vU[4]}, {L_AS - L_P}, v{vU[4]}\nv_mov_b32 v{MAS - 2}, 0\nv_mov_b32 v{MAS - 1}, 0\ns_mov_b32 exec_hi, 0xff')
        Roles(4).each([lambda c, w=w: [A(f'ds_write_b128 v{vU[4]}, {v4(MAS - 2 + 8 * w + 4 * i)} offset:{32 * w + 16 * i}')
                                       for i in range(2)] for w in range(4)])
        A('s_mov_b32 exec_hi, -1')
        lg.n += 2
    it.append(own)
    it.append(f'v_add_u32 v{vU[4]}, {L_P}, v{vAS}')
    it += [lambda j=j: lg(f'ds_read_b32 v{PP + 2 * j}, v{vU[4]} offset:{j * 1152}', 'pp') for j in range(5)]
    it += [f'v_and_b32 v{vU[1]}, 1, v{vI}', f'v_cvt_f32_u32 v{vU[1]}, v{vU[1]}', f'v_fma_f32 v{vU[1]}, 2.0, v{vU[1]}, -1.0']
    it.append(lambda: lg.wait('pp'))
    it += [f'v_mul_f32_dpp v{PP + 2 * j + 1}, v{PP + 2 * j}, v{vU[1]} {SWP}' for j in range(5)]
    return first, it


def agg_ld(layer):
    pre = f'''s_lshl_b32 s{sX[3]}, s{sW}, 2
s_sub_u32 s{sX[3]}, 12, s{sX[3]}
s_mul_i32 s{sX[3]}, s{sX[3]}, 640
s_add_u32 s{sX[3]}, s{sX[3]}, s{sAgg}
s_add_u32 s{sX[3]}, s{sX[3]}, {layer * AGG_L}
v_min_u32 v{vU[0]}, 39, v{vL}
v_lshlrev_b32 v{vU[0]}, 4, v{vU[0]}'''
    return pre, [f'buffer_load_dwordx3 {v3(AGL + 4 * z)}, v{vU[0]}, {W}, s{sX[3]} offen offset:{z * 640} sc1' for z in range(4)]


def scan_2(layer, vm, ld, hook={}, defer=False, extra=[]):
    lg = LG()
    t = vT
    A(f'''v_lshrrev_b32 v{t[0]}, 1, v{vI}
v_mul_u32_u24 v{t[1]}, 80, v{t[0]}
v_add_u32 v{t[1]}, {L_L}, v{t[1]}
v_mul_u32_u24 v{t[0]}, 48, v{t[0]}
v_add_u32 v{t[0]}, {L_G}, v{t[0]}''')
    def lrd(j):
        for c in range(4):
            lg(f'ds_read_b128 {v4(LT[j] + 4 * c)}, v{t[1]} offset:{j * 640 + 16 * c}', ('L', j))
    early = 5 if layer else OPT['lpre']
    for j in range(early):
        lrd(j)
    A('\n'.join([unpark('tw', vTW), unpark('tr', vTR), unpark('ts', vTS)]))
    vm.wait('agg')
    check_tags([AGL + 2, AGL + 6, AGL + 10, AGL + 14], ld, x=t[3], y=t[4], inline=2)
    stamp(f'agg_in_{layer}')
    for z in range(1, 4):
        A('\n'.join(cmul(AGL + 4 * z, AGL + 4 * z - 4, mL128, AGL + 4 * z)))
    A('\n'.join(cmul(AGL, AGL + 12, mW)))
    if extra:
        extra.pop()()
    A(f'''s_mov_b32 exec_hi, 0xff
ds_write_b64 v{vU[2]}, {v2(AGL)}
s_mov_b32 exec_hi, -1''')
    stamp(f'.fold{layer}', 5 - 2 * (OPT['stamps'] == 3))
    A('s_waitcnt lgkmcnt(0)')
    stamp(f'.added{layer}', 5 - 2 * (OPT['stamps'] == 3))
    A('s_barrier')
    stamp(f'.gbar{layer}', 5 - 2 * (OPT['stamps'] == 3))
    lg = LG()
    GQ = [88, 96, 224, 88, 96]

    def grd(j):
        lg(f'ds_read_b128 {v4(GQ[j])}, v{t[0]} offset:{j * 384}')
        lg(f'ds_read_b128 {v4(GQ[j] + 4)}, v{t[0]} offset:{j * 384 + 16}', ('G', j))
    for j in range(3):
        grd(j)
    for j in range(early, min(early + 1, 5)):
        lrd(j)
    hb = HB[layer]

    def more():
        if extra:
            extra.pop()()
    more()

    def xy(j):
        lg.wait(('G', j))
        q = GQ[j]
        p, a, gq = v2(PP + 2 * j), v2(VA + 2 * j), v2(q)
        A(f'v_pk_add_f32 {gq}, {gq}, {v2(q + 2)}\nv_pk_add_f32 {v2(q + 4)}, {v2(q + 4)}, {v2(q + 6)}\n'
          f'v_pk_add_f32 {gq}, {gq}, {v2(q + 4)}')
        A(f'v_pk_fma_f32 {p}, {a}, {gq}, {p} op_sel:[0,0,0] op_sel_hi:[1,0,1]')
        A(f'v_pk_fma_f32 {p}, {a}, {gq}, {p} op_sel:[1,1,0] op_sel_hi:[0,1,1] neg_hi:[1,0,0]')
        if j < 2:
            grd(j + 3)

    def upd(j):
        p = v2(PP + 2 * j)
        if early + 1 + j < 5:
            lrd(early + 1 + j)
        if j >= early:
            lg.wait(('L', j))
        for k in range(4):
            d = v2(ACC + 8 * j + 2 * k)
            A(f'v_pk_fma_f32 {d}, {v2(LT[j] + 2 * k)}, {p}, {d} op_sel:[0,0,0] op_sel_hi:[1,0,1]')
        more()
        for k in range(4):
            d = v2(ACC + 8 * j + 2 * k)
            A(f'v_pk_fma_f32 {d}, {v2(LT[j] + 8 + 2 * k)}, {p}, {d} op_sel:[0,1,0] op_sel_hi:[1,1,1]')
        pk = PK[j & 1]
        for d in range(4):
            A(f'v_cvt_pk_bf16_f32 v{pk + d}, v{ACC + 8 * j + 2 * d}, v{ACC + 8 * j + 2 * d + 1}')
        lg(f'ds_write_b128 v{vTW}, {v4(pk)}')
        more()
        lg(f'ds_read_b64_tr_b16 {v2(ACC + 8 * j + 4)}, v{vTR}')
        lg(f'ds_read_b64_tr_b16 {v2(ACC + 8 * j + 6)}, v{vTR} offset:640', ('T', j))

    def st(j, vm=vm):
        A(f's_add_u32 s{sT[1]}, s{sH[j]}, {hb}')
        lg.wait(('T', j))
        mode_stores([f'buffer_store_dwordx4 {v4(ACC + 8 * j + 4)}, v{vTS}, {WH}, s{sT[1]} offen'], through=OPT['thr'] & (2 << layer))
        vm.n += 1
        vm.t['hst'] = vm.n
    xy(0), xy(1)
    lag = OPT['lag']
    for j in range(5 + lag):
        stamp(f'.j{j}_{layer}', 5 - 2 * (OPT['stamps'] == 3))
        if j < 5:
            upd(j)
        if j < 3:
            xy(j + 2)
        if j >= lag and j - lag < (defer or 5):
            st(j - lag)
        if j in hook:
            hook[j](lg)
    if defer:
        lg.wait(('T', 4))
        stamp(f'h_st_{layer}')
        return st
    stamp(f'h_st_{layer}')


def h_flag(layer, vm):
    vm.wait('hst')
    A(f's_add_u32 s{sT[2]}, s{sFW}, {WS_FH + layer * 256}')
    flag_store(f's{sT[2]}', True, vm)
    stamp(f'h_flag_{layer}')


CA, CB, CX, CY = 128, 160, 192, 104
vCA, vCB = [232, 236], [240, 241]
JSET = [[1, 2, 4, 7], [0, 3, 5, 6]]


def conv_setup():
    t = vT
    return lines(f"""v_add_u32 v{t[0]}, 1, v{vI}
v_and_b32 v{t[1]}, 1, v{t[0]}
v_mul_u32_u24 v{t[1]}, 4160, v{t[1]}
v_lshrrev_b32 v{t[0]}, 1, v{t[0]}
v_lshl_add_u32 v{t[1]}, v{t[0]}, 2, v{t[1]}
v_lshl_add_u32 v{t[1]}, v{vQ}, 4, v{t[1]}
v_sub_u32 v{t[0]}, 15, v{vI}
v_lshlrev_b32 v{t[0]}, 5, v{t[0]}
v_lshl_add_u32 v{t[0]}, v{vQ}, 4, v{t[0]}
s_lshr_b32 s{sT[0]}, s{sW}, 1
s_and_b32 s{sT[1]}, s{sW}, 1
s_lshl_b32 s{sT[1]}, s{sT[1]}, 8
s_mul_i32 s{sT[2]}, s{sT[0]}, 8320
s_add_u32 s{sT[2]}, s{sT[2]}, s{sT[1]}
s_add_u32 s{sT[2]}, s{sT[2]}, {L_K}
v_add_u32 v{vCA[0]}, s{sT[2]}, v{t[1]}
s_mul_i32 s{sT[2]}, s{sT[0]}, 4608
s_add_u32 s{sT[2]}, s{sT[2]}, s{sT[1]}
v_add_u32 v{vCB[0]}, s{sT[2]}, v{t[0]}
s_lshl_b32 s{sT[1]}, s{sW}, 7
s_add_u32 s{sT[2]}, s{sT[1]}, {L_K + 2 * 8320}
v_add_u32 v{vCA[1]}, s{sT[2]}, v{t[1]}
s_add_u32 s{sT[2]}, s{sT[1]}, {L_KV + 2 * 4608}
v_add_u32 v{vCB[1]}, s{sT[2]}, v{t[0]}""")


class Conv:
    def __init__(self, units, lg, cont=False):
        self.lg, self.seq, self.todo, self.issued = lg, [], [], set()
        free, seen = {}, ({CX + 4 * j for j in range(8)} if cont else set())
        for k, u, js, acc in units:
            first, last = {}, {}
            for a in range(max(js), -1, -1):
                for j in js:
                    if j < a:
                        continue
                    for f in (('A', a), ('B', j - a)):
                        first.setdefault(f, len(self.seq))
                        last[f] = len(self.seq)
                    d = acc + 4 * js.index(j)
                    self.seq.append((k, u, a, j - a, d, d in seen))
                    seen.add(d)
            for f, need in first.items():
                self.todo.append((max(free.get(f, -1), need - OPT['look']), need, (k, u, f)))
            free.update(last)
        self.todo.sort(key=lambda x: x[:2])

    def rd(self, key):
        k, u, (kind, x) = key
        self.issued.add(key)
        if kind == 'A':
            o = 16 * u + 128 * (x & 1)
            self.lg(f'ds_read2_b32 {v2(CA + 4 * x)}, v{vCA[k] + (x >> 1)} offset0:{o} offset1:{o + 1}')
            self.lg(f'ds_read2_b32 {v2(CA + 4 * x + 2)}, v{vCA[k] + (x >> 1)} offset0:{o + 2} offset1:{o + 3}', key)
        else:
            self.lg(f'ds_read_b128 {v4(CB + 4 * x)}, v{vCB[k]} offset:{64 * u + 512 * (7 - x)}', key)

    def emit(self, n0, n1, side):
        todo = self.todo
        while n0 == 0 and todo[0][0] < 0 and todo[0][1] < 4:
            self.rd(todo.pop(0)[2])
        for gn in range(n0, n1):
            k, u, a, b, d, chain = self.seq[gn]
            self.lg.wait((k, u, ('A', a)), (k, u, ('B', b)))
            A(f'v_mfma_f32_16x16x32_bf16 {v4(d)}, {v4(CA + 4 * a)}, {v4(CB + 4 * b)}, {v4(d) if chain else 0}')
            did = 0
            while todo and todo[0][0] <= gn and (did < 1 or todo[0][1] <= gn + 3):
                self.rd(todo.pop(0)[2])
                did += 1
            if not did or gn % 4 == 3:
                side.run(gn // 4, 4 - gn % 4)

    def force(self, keys):
        for it in [x for x in self.todo if x[2] in keys]:
            self.todo.remove(it)
            self.rd(it[2])


vFY = 120
KVM, KVX = 88, 96
YREG = [246, 247, 248, 249, 250, 251, 252]
yS, yKm, yKx, yPw, yPr, ySr, ySw = YREG


def y_setup():
    t = vT
    return lines(f"""s_lshr_b32 s{sT[1]}, s{sW}, 1
s_add_u32 s{sT[0]}, s{sC0}, s{sT[1]}
s_bitcmp1_b32 s{sT[0]}, 0
s_cselect_b32 s{sT[2]}, 16, 0
s_lshr_b32 s{sD[0]}, s{sD[0]}, s{sT[2]}
s_and_b32 s{sDm[0]}, s{sD[0]}, 0xffff
s_lshl_b32 s{sDm[1]}, s{sD[0]}, 16
s_bitcmp1_b32 s{sCs}, 0
s_cselect_b32 s{sT[2]}, 16, 0
s_lshr_b32 s{sD[1]}, s{sD[1]}, s{sT[2]}
s_and_b32 s{sDm[2]}, s{sD[1]}, 0xffff
s_lshl_b32 s{sDm[3]}, s{sD[1]}, 16
s_lshl_b32 s{sYO[0]}, s{sT[0]}, 12
s_and_b32 s{sT[0]}, s{sW}, 1
s_lshl_b32 s{sT[0]}, s{sT[0]}, 11
s_add_u32 s{sYO[0]}, s{sYO[0]}, s{sT[0]}
s_add_u32 s{sYO[0]}, s{sYO[0]}, {WS_Y}
s_mul_i32 s{sT[1]}, s{sT[1]}, 4608
s_sub_u32 s{sT[1]}, s{sT[1]}, s{sT[0]}
s_add_u32 s{sT[1]}, s{sT[1]}, {L_KV + 4088 - 3 * 512}
v_lshlrev_b32 v{yS}, 5, v{vI}
v_lshl_add_u32 v{yS}, v{vQ}, 3, v{yS}
v_sub_u32 v{yKm}, s{sT[1]}, v{yS}
s_bitcmp1_b32 s{sJ}, 0
s_movk_i32 s{sT[0]}, 0x7421
s_cselect_b32 s{sT[0]}, 0x6530, s{sT[0]}
s_lshl_b32 s{sT[1]}, s{sW}, 2
s_lshr_b32 s{sT[0]}, s{sT[0]}, s{sT[1]}
s_and_b32 s{sT[0]}, s{sT[0]}, 7
s_lshl_b32 s{sT[0]}, s{sT[0]}, 9
s_lshl_b32 s{sYO[1]}, s{sCs}, 12
s_add_u32 s{sYO[1]}, s{sYO[1]}, s{sT[0]}
s_add_u32 s{sYO[1]}, s{sYO[1]}, {WS_Y}
s_sub_u32 s{sT[0]}, {L_KV + 2 * 4608 + 4088}, s{sT[0]}
v_sub_u32 v{yKx}, s{sT[0]}, v{yS}
s_lshl_b32 s{sT[0]}, s{sW}, 12
s_add_u32 s{sT[1]}, s{sT[0]}, {L_PM}
v_add_u32 v{ySw}, s{sT[1]}, v{vL16}
s_add_u32 s{sT[1]}, s{sT[0]}, {L_PS}
v_add_u32 v{yPw}, s{sT[1]}, v{vL16}
s_xor_b32 s{sT[1]}, s{sT[0]}, 4096
s_add_u32 s{sT[1]}, s{sT[1]}, {L_PS}
v_add_u32 v{yPr}, s{sT[1]}, v{vL16}
s_lshl_b32 s{sT[1]}, s{sW}, 10
s_add_u32 s{sT[1]}, s{sT[1]}, {L_PM}
v_add_u32 v{ySr}, s{sT[1]}, v{vL16}""")


def y_dterm(acc, kv, dlo, dhi):
    sel = [(1, dhi), (1, dlo), (0, dhi), (0, dlo)]
    return [f'v_dot2_f32_bf16 v{acc + r}, v{kv + sel[r][0]}, s{sel[r][1]}, v{acc + r}' for r in range(4)]


def marks_gather(S, vm, sg):
    if OPT['clr'] * sg > 0:
        marks(S, vm, abs(OPT['clr']), 228 if sg > 0 else 216)
    if OPT['fbp'] * sg > 0:
        gather(S, vm, abs(OPT['fbp']), abs(OPT['fbc']), 124 if sg > 0 else 220)


def marks(S, vm, at, r):
    S.add(at, [f'v_mov_b32 v{r + i}, -1' for i in range(4)], f'v_lshlrev_b32 v{vT[0]}, 3, v{vL}',
          lambda: vm(f'buffer_store_dwordx2 {v2(r)}, v{vT[0]}, {W}, s{sYO[1]} offen sc1'))
    for i in range(2):
        S.add(at + 1 + i, lambda i=i: vm(f'buffer_store_dwordx4 {v4(r)}, v{vL16}, {W}, s{sYO[0]} offen offset:{1024 * i} sc1'))


def gather(S, vm, at, at2, r):
    fb = f'buffer_load_dwordx4 {v4(r)}, v{vL16}, {W}, s{sKs} offen sc1'
    S.add(at, atom(f's_mov_b32 s{sKs}, {WS_FB}', lambda: vm(fb, 'fb')))

    def go():
        vm.wait('fb')
        check_tags([r + i for i in range(4)], fb)
        A(f'''s_lshl_b32 s{sT[1]}, s{sW}, 6
s_sub_u32 s{sT[0]}, 255, s{sT[1]}
v_sub_u32 v{vT[0]}, s{sT[0]}, v{vL}
v_lshlrev_b32 v{vT[0]}, 11, v{vT[0]}
s_and_b32 s{sT[0]}, s{sCs}, 3
s_lshl_b32 s{sT[0]}, s{sT[0]}, 9
s_bfe_u32 s{sT[2]}, s{sCs}, 0x50002
s_lshl_b32 s{sT[2]}, s{sT[2]}, 4
s_add_u32 s{sT[0]}, s{sT[0]}, s{sT[2]}
s_add_u32 s{sT[0]}, s{sT[0]}, {WS_KB}
s_lshl_b32 s{sT[1]}, s{sT[1]}, 4
s_add_u32 m0, s{sT[1]}, {L_KV + 2 * 4608}''')
        vm(f'buffer_load_dwordx4 v{vT[0]}, {W}, s{sT[0]} offen sc1 lds')
    S.add(at2, go)


def conv(vm, lg):
    S = Side()
    e = S.spread(0, 3, horner(0, vm, lg)[1])
    left = 50 - c_issued[0] - OPT['cl2'] - OPT['cs2']
    for i in range(left):
        S.add(i * OPT['clend'] // left, lambda: c_load(vm))
    S.spread(0, 1, z_loads(vm))
    S.add(0, lambda: lg(f'ds_read_b64 a[{A_ZU}:{A_ZU + 1}], v{vZ + 3}'))
    S.spread(14, 2, [lambda: vm.wait('xt')]
             + [lambda m=m: lg(f'ds_read_b64 a[{A_X + 2 * m}:{A_X + 2 * m + 1}], v{vXT} offset:{32 * m}') for m in range(5)]
             + [lambda m=m: lg(f'ds_read_b64 a[{A_DSK + 2 * m}:{A_DSK + 2 * m + 1}], v{vXT + 1} offset:{2560 + 32 * m}')
                for m in range(5)])
    marks_gather(S, vm, 1)
    S.add(1, lambda: srd(R_T0, P_OUT, 5242880))
    if OPT['tch']:
        S.add(OPT['tch'], retouch())
    if OPT['prefetch'] & 2:
        S.add(10, atom(code_touch()))
    pre, ld = agg_ld(0)
    S.spread(OPT['aggl'] - 2, 4, pre)
    for z in range(4):
        S.add(OPT['aggl'] + z // 2, lambda z=z: vm(ld[z], 'agg'))
    nu = OPT['nu']
    cv = Conv([(0, u, list(range(8)), CX) for u in range(nu)], lg)
    cv.emit(0, 36 * nu, S)
    assert not cv.todo and not S.left(), S.left()
    stamp('conv')
    def glue1(lg):
        for i, r in enumerate(YREG + G2REG):
            A(f'v_accvgpr_read_b32 v{r}, a{A_CV + 4 + i}')
        for j in range(4):
            lg(f'ds_read_b64 {v2(KVM + 2 * j)}, v{yKm} offset:{512 * (3 - j)}')
        lg(f'ds_read_b64 {v2(KVX)}, v{yKx}', 'kvm')

    def glue2():
        A(f's_bitcmp0_b32 s{sW}, 0')
        with A.skip_if('s_cbranch_scc1', lambda c: not c['w'] & 1):
            for i in range(16):
                A(f'v_swap_b32 v{CX + i}, v{CX + 16 + i}')

    def yflag(lg):
        A(f'''s_lshl_b32 s{sT[0]}, s{sC0}, 1
s_add_u32 s{sT[0]}, s{sT[0]}, {WS_FY}
v_mov_b32 v{vT[4]}, s{sTag}
s_and_b32 exec_lo, s{sPub}, 1
s_mov_b32 exec_hi, 0
buffer_store_dword v{vT[4]}, off, {W}, s{sT[0]} sc1
s_mov_b64 exec, -1''')
    fy = f'buffer_load_dwordx4 {v4(vFY)}, v{vL16}, {W}, s{sX[5]} offen sc1'
    extra = [lambda: c_load(vm)] * OPT['cs2']
    st = scan_2(0, vm, ld, {0: yflag, 4: glue1}, OPT['defer'], extra)
    assert not extra
    lt, lj = A.label('type'), A.label('join')
    A.cond[lt] = lambda c: c['ty']
    A(f's_bitcmp1_b32 s{sJ}, 0\ns_cbranch_scc1 {lt}')
    p0 = PREV[0]
    for ty in range(2):
        v, lg, S = copy.deepcopy(vm), LG(), Side()
        PREV[0], c_issued[0] = p0, 50 - OPT['cl2']
        o = 9 * (4 - nu)
        for j in range(OPT['defer'], 5):
            S.add((j - OPT['defer']) * OPT['stp'] // 2, lambda j=j: st(j, v))
        for i in range(OPT['cl2']):
            S.add(OPT['cl2s'] + i * (o + 8 - OPT['cl2s']) // OPT['cl2'], lambda: c_load(v))
        S.add(OPT['hfl'], lambda: h_flag(0, v))
        S.add(o + 1, glue2)
        for j in range(4):
            S.add(o + 2 + j, lambda j=j: lg(f'ds_write_b128 v{yPw}, {v4(CX + 16 + 4 * j)} offset:{1024 * j}'))
        S.add(o + 4, 's_barrier')
        S.add(o + OPT['yp0'], atom(f's_mov_b32 s{sX[5]}, {WS_FY}', lambda: v(fy, 'fy')))
        S.add(o + OPT['hp'], lambda: v(H_POLL, 'fh'))
        cv = Conv([(0, u, list(range(8)), CX) for u in range(nu, 4)] + [(1, u, JSET[ty], CY) for u in range(2)], lg, True)
        cv.emit(0, len(cv.seq), S)
        assert not S.left()
        if ty == 0:
            A(f's_branch {lj}\n{lt}:')
    A(f'{lj}:')
    stamp('conv2')
    PM, PS = 208, 224
    for x in range(4):
        A(f'ds_write_b128 v{ySw}, {v4(CY + 4 * x)} offset:{1024 * x}')
    for j in range(4):
        run(y_dterm(CX + 4 * j, KVM + 2 * j, sDm[0], sDm[1]))
    v.wait('fy')
    check_tags([vFY + i for i in range(4)], fy)
    g2 = G2(0, v)
    g2.begin()
    A('s_waitcnt lgkmcnt(0)\ns_barrier')
    for j in range(4):
        A(f'ds_read_b128 {v4(PM + 4 * j)}, v{yPr} offset:{1024 * j}')
    for x in range(4):
        A(f'ds_read_b128 {v4(PS + 4 * x)}, v{ySr} offset:{4096 * x}')
    it = ['s_waitcnt lgkmcnt(0)']
    for j in range(4):
        p = PM + 4 * j
        it += [f'v_add_f32 v{p + i}, v{CX + 4 * j + i}, v{p + i}' for i in range(4)]
        it += [f'v_cvt_pk_bf16_f32 v{p}, v{p}, v{p + 1}', f'v_cvt_pk_bf16_f32 v{p + 1}, v{p + 2}, v{p + 3}',
               lambda j=j, p=p: v(f'buffer_store_dwordx2 {v2(p)}, v{yS}, {W}, s{sYO[0]} offen offset:{512 * j} sc1')]
    it += y_dterm(PS, KVX, sDm[2], sDm[3])
    it += [f'v_add_f32 v{PS + 4 + i}, v{PS + 4 + i}, v{PS + 8 + i}' for i in range(4)]
    it += [f'v_add_f32 v{PS + i}, v{PS + i}, v{PS + 12 + i}' for i in range(4)]
    it += [f'v_add_f32 v{PS + i}, v{PS + i}, v{PS + 4 + i}' for i in range(4)]
    it += [f'v_cvt_pk_bf16_f32 v{PS}, v{PS}, v{PS + 1}', f'v_cvt_pk_bf16_f32 v{PS + 1}, v{PS + 2}, v{PS + 3}',
           lambda: v(f'buffer_store_dwordx2 {v2(PS)}, v{yS}, {W}, s{sYO[1]} offen sc1')]
    g2.ytail = it
    stamp('y_rd')
    return g2


YF, ZR = BF, BF + 20
P0, P1 = 192, 212
XT, DP, ZU, F1, F2 = 98, 100, 102, 88, 92
vHA, vYD, vYR = 244, 252, 253
G2REG = vU[2:5] + [vHA]
YP = 232


def g2_setup(layer):
    hb = HB[layer]
    A(f's_mul_i32 s{sT[1]}, s{sR64}, 163840\ns_mul_i32 s{sT[2]}, s{sW}, 10240\n'
      f's_add_u32 s{sT[1]}, s{sT[1]}, s{sT[2]}\ns_add_u32 s{sT[1]}, s{sT[1]}, {hb}')
    for z in range(4):
        A(f's_add_u32 s{sT[2]}, s{sW}, {z + 1}\ns_and_b32 s{sT[2]}, s{sT[2]}, 3\n'
          f's_mul_i32 s{sT[3]}, s{sT[2]}, 40960\ns_add_u32 s{sDS[z]}, s{sT[3]}, s{sT[1]}')
        if z < 2:
            A(f's_mul_i32 s{sT[3]}, s{sT[2]}, 10240\ns_add_u32 s{sT[3]}, s{sT[3]}, {L_RED + z * 5120}\n'
              f'v_add_u32 v{vU[2 + z]}, s{sT[3]}, v{vL16}')
        if z == 2:
            A(f's_mul_i32 s{sT[3]}, s{sT[2]}, 5120\nv_add_u32 v{vU[2 + z]}, s{sT[3]}, v{vL16}')
    A(f'''s_lshl_b32 s{sZ[3]}, s{sR128}, 10
s_lshl_b32 s{sT[1]}, s{sW}, 6
s_add_u32 s{sZ[3]}, s{sZ[3]}, s{sT[1]}
s_and_b32 s{sT[1]}, s{sR64}, 1
s_lshl_b32 s{sT[1]}, s{sT[1]}, 3
s_add_u32 s{sZ[3]}, s{sZ[3]}, s{sT[1]}
s_add_u32 s{sZ[3]}, s{sZ[3]}, {WS_FH + layer * 256}
v_and_b32 v{vHA}, 3, v{vL}
v_lshlrev_b32 v{vHA}, 4, v{vHA}''')


def z_addr():
    t = vT
    A(f'''s_lshl_b32 s{sT[0]}, s{sR64}, 6
s_lshr_b32 s{sT[1]}, s{sW}, 1
s_lshl_b32 s{sT[1]}, s{sT[1]}, 5
s_add_u32 s{sT[0]}, s{sT[0]}, s{sT[1]}
s_and_b32 s{sT[1]}, s{sW}, 1
s_lshl_b32 s{sT[1]}, s{sT[1]}, 2
s_add_u32 s{sT[0]}, s{sT[0]}, s{sT[1]}
s_mul_i32 s{sZ[0]}, s{sT[0]}, 1280
s_mul_i32 s{sT[1]}, s{sS8}, 160
s_add_u32 s{sZ[0]}, s{sZ[0]}, s{sT[1]}
s_lshl_b32 s{sZ[2]}, s{sW}, 12
s_add_u32 s{sZ[2]}, s{sZ[2]}, {L_PS}''')
    for z in range(3):
        A(f'''v_add_u32 v{t[0]}, {64 * z}, v{vL}
v_mul_u32_u24 v{t[1]}, 205, v{t[0]}
v_lshrrev_b32 v{t[1]}, 11, v{t[1]}
v_lshrrev_b32 v{t[2]}, 2, v{t[1]}
v_mul_u32_u24 v{t[1]}, 1120, v{t[1]}
v_mul_u32_u24 v{t[2]}, 5120, v{t[2]}
v_lshlrev_b32 v{t[0]}, 4, v{t[0]}
v_add3_u32 v{vZ + z}, v{t[0]}, v{t[1]}, v{t[2]}''')
    A(f'''s_and_b32 s{sT[0]}, s{sR64}, 1
s_lshl_b32 s{sT[0]}, s{sT[0]}, 2
s_add_u32 s{sT[0]}, s{sT[0]}, s{sW}
s_lshr_b32 s{sT[1]}, s{sT[0]}, 1
s_lshl_b32 s{sT[1]}, s{sT[1]}, 8
s_and_b32 s{sT[0]}, s{sT[0]}, 1
s_lshl_b32 s{sT[0]}, s{sT[0]}, 5
s_add_u32 s{sT[0]}, s{sT[0]}, s{sT[1]}
s_add_u32 s{sT[0]}, s{sT[0]}, {L_RS}
v_lshrrev_b32 v{t[1]}, 2, v{vI}
v_lshlrev_b32 v{t[1]}, 6, v{t[1]}
v_and_b32 v{t[2]}, 3, v{vI}
v_lshl_add_u32 v{t[1]}, v{t[2]}, 3, v{t[1]}
v_add_u32 v{vZ + 3}, s{sT[0]}, v{t[1]}
v_and_b32 v{t[2]}, 7, v{vI}
v_lshlrev_b32 v{t[2]}, 3, v{t[2]}
v_lshl_add_u32 v{t[2]}, v{vQ}, 6, v{t[2]}
s_lshl_b32 s{sT[0]}, s{sW}, 8
s_add_u32 s{sT[0]}, s{sT[0]}, {L_RS}
v_add_u32 v{vZ + 4}, s{sT[0]}, v{t[2]}
v_lshl_add_u32 v{vXT + 1}, v{vQ}, 3, s{sZ[2]}
v_mul_u32_u24 v{vXT}, 160, v{vI}
v_lshl_add_u32 v{vXT}, v{vQ}, 3, v{vXT}
v_add_u32 v{vXT}, s{sZ[2]}, v{vXT}''')


def z_loads(vm):
    it = []
    for z in range(3):
        it.append(atom(f's_add_u32 m0, s{sZ[2]}, {1024 * z}', 's_mov_b32 exec_hi, 0' if z == 2 else [],
                       lambda z=z: vm(f'buffer_load_dwordx4 v{vZ + z}, {s4(R_X)}, s{sZ[0]} offen lds', 'xt'),
                       's_mov_b32 exec_hi, -1' if z == 2 else []))
    it.append(atom(lambda: srd(R_T1, P_DSK, 1280), f's_add_u32 m0, s{sZ[2]}, 2560', f's_mul_i32 s{sT[0]}, s{sS8}, 160',
                   's_mov_b64 exec, 0x3ff',
                   lambda: vm(f'buffer_load_dwordx4 v{vL16}, {s4(R_T1)}, s{sT[0]} offen lds', 'xt'), 's_mov_b64 exec, -1'))
    return it


def z_work():
    b = [f'v_accvgpr_read_b32 v{ZU}, a{A_ZU}', f'v_accvgpr_read_b32 v{ZU + 1}, a{A_ZU + 1}', f'v_mul_f32 v{ZU}, v{ZU}, v{ZU + 1}']
    for m in range(5):
        for i in range(2):
            b += [f'v_accvgpr_read_b32 v{XT + i}, a{A_X + 2 * m + i}', f'v_accvgpr_read_b32 v{DP + i}, a{A_DSK + 2 * m + i}']
        b += unpack(ZR + 4 * m, XT, 2) + unpack(F2, DP, 2)
        for i in range(4):
            b.append(f'v_fma_f32 v{F1 + i}, v{ZR + 4 * m + i}, v{ZU + 1}, -v{ZU}')
        for i in range(4):
            b.append(f'v_fmac_f32 v{ZR + 4 * m + i}, v{F1 + i}, v{F2 + i}')
    return b


vTM = 246
H_POLL = f'buffer_load_dwordx2 {v2(vU[0])}, v{vHA}, {W}, s{sZ[3]} offen sc1'


class G2:
    def __init__(self, layer, vm):
        self.layer, self.vm, self.nxt = layer, vm, 0

    def ld(self):
        f = self.nxt
        self.nxt += 1
        z, k = divmod(f, 10)
        if k and k % 4 == 0:
            A(f's_add_u32 s{sDS[z]}, s{sDS[z]}, 4096')
        self.vm(f'buffer_load_dwordx4 {v4(RING + 4 * (f % NR))}, v{vL16}, {WH}, s{sDS[z]} offen '
                f'offset:{(k % 4) * 1024} sc1', ('h', f))

    def begin(self):
        if self.layer == 0:
            self.vm.wait('fh')
        check_tags([vU[0], vU[1]], H_POLL, inline=2 - self.layer)
        self.vm.done = self.vm.n if self.layer else self.vm.done
        stamp(f'h_ready_{self.layer}')
        for f in range(OPT['n0'] if self.layer else OPT['n00']):
            self.ld()


def gemm2(g2):
    layer, vm, ld = g2.layer, g2.vm, g2.ld
    side, lg = Side(), LG()
    n0 = g2.nxt
    last = 0
    for f in range(n0, 40):
        last = max(f - n0, f - NR + 1)
        side.add(last, ld)
    last += 1
    hooks = []
    ze = late = 0
    if layer == 0:
        e = side.spread(OPT['ys'], OPT['yper'], g2.ytail)
        side.add(e, 's_barrier')
        assert e < 11
        late = OPT['zlate']
        zw = z_work()
        if late:
            n = (OPT['rb'] - e) * OPT['zper']
            side.spread(e, OPT['zper'], zw[:n])
            assert side.spread(30, OPT['zper'] + 1, zw[n:]) <= 40
        else:
            ze = side.spread(e, OPT['zper'], zw)
            assert ze <= OPT['rb'] - 4 * OPT['r3'], ze
        side.add(OPT['yp'] + 1, f'''s_mul_i32 s{sX[6]}, s{sS8}, 327680
s_lshl_b32 s{sT[0]}, s{sR64}, 7
s_add_u32 s{sX[6]}, s{sX[6]}, s{sT[0]}
s_lshr_b32 s{sT[0]}, s{sW}, 1
s_mul_i32 s{sX[7]}, s{sT[0]}, 5120
s_add_u32 s{sX[7]}, s{sX[7]}, {L_Y}
s_lshl_b32 s{sT[0]}, s{sT[0]}, 6
s_add_u32 s{sX[6]}, s{sX[6]}, s{sT[0]}
s_add_u32 s{sX[6]}, s{sX[6]}, {WS_Y}
s_mov_b32 s{sX[5]}, s{sX[6]}''')
        side.add(OPT['yp'] + 2, f'''s_and_b32 s{sT[0]}, s{sW}, 1
s_mul_i32 s{sT[1]}, s{sT[0]}, {3 * 65536}
s_add_u32 s{sX[6]}, s{sX[6]}, s{sT[1]}
s_mul_i32 s{sT[1]}, s{sT[0]}, 3072
s_add_u32 s{sX[8]}, s{sX[7]}, s{sT[1]}
s_lshl_b32 s{sT[0]}, s{sT[0]}, 3
s_add_u32 s{sX[7]}, s{sX[7]}, s{sT[0]}
v_lshrrev_b32 v{vYD}, 2, v{vL}
v_lshlrev_b32 v{vYD}, 12, v{vYD}
v_and_b32 v{vT[1]}, 3, v{vL}
v_lshl_add_u32 v{vYD}, v{vT[1]}, 4, v{vYD}''')

        def ydma(m):
            A(f's_add_u32 m0, s{sX[8]}, {m * 1024}')
            if m == 2:
                A(f's_bitcmp1_b32 s{sW}, 0\ns_cselect_b32 s{sX[6]}, {OOB}, s{sX[6]}\ns_cselect_b32 m0, {LDS_SIZE}, m0')
            vm(f'buffer_load_dwordx4 v{vYD}, {W}, s{sX[6]} offen sc1 lds', 'yd')
            A(f's_add_u32 s{sX[6]}, s{sX[6]}, 65536')
        side.add(3 if OPT['dbg'] & 256 else last, *[lambda m=m: ydma(m) for m in range(3)])
        side.add(last + 1, f'v_add_u32 v{vYR}, s{sX[7]}, v{vL16}')
    else:
        side.spread(1, 3, [f'v_accvgpr_read_b32 v{ZR + i}, a{A_Z + i}' for i in range(20)] + unpack(YF, YP, 10))
        if OPT['wb'] & 2:
            side.add(OPT['wbs'] or last + 1, wbl2)
    rd = lambda p, a, off, nm: [lambda i=i: lg(f'ds_read_b128 {v4(p + 4 * i)}, v{a} offset:{off + 1024 * i}', nm) for i in range(5)]
    add = lambda d, s: [f'v_add_f32 v{d + i}, v{d + i}, v{s + i}' for i in range(20)]
    side.add(OPT['ra'] - 1, f's_mul_i32 s{sT[3]}, s{sW}, 10240\ns_add_u32 s{sT[3]}, s{sT[3]}, {L_RED}\n'
                            f'v_add_u32 v{vU[5]}, s{sT[3]}, v{vL16}')
    bar = lambda: (lg.wait('pw'), A('s_barrier'))
    wp = OPT['wper']
    for z in range(3):
        pa = ACC + 20 * (z & 1)
        for m in range(5):
            side.q.setdefault(10 * z + 11 + m // wp, []).insert(
                m % wp, lambda z=z, m=m, pa=pa: lg(f'ds_write_b128 v{vU[2 + z]}, {v4(pa + 4 * m)} offset:{1024 * m}', 'pw'))
    if OPT['r3']:
        e = side.spread(OPT['ra'], 5, [bar] + rd(P0, vU[5], 0, 'p0'))
        side.spread(max(e, ze), 5, [lambda: lg.wait('p0')] + add(ZR, P0))
        e = side.spread(OPT['rb'], OPT['rper'], [bar] + rd(P1, vU[5], 5120, 'p1') + [lambda: lg.wait('p1')] + add(ZR, P1))
    else:
        e = side.spread(OPT['rb'], OPT['rper'], [bar] + rd(P0, vU[5], 0, 'p0') + rd(P1, vU[5], 5120, 'p1') + [lambda: lg.wait('p0')]
                        + (add(ZR, P0) + [lambda: lg.wait('p1')] + add(ZR, P1) if not late else
                           [lambda: lg.wait('p1')] + add(P1, P0)))
    assert e <= 30, e
    side.add(OPT['rc'] - 1, f's_mul_i32 s{sT[3]}, s{sW}, 5120\nv_add_u32 v{vU[5]}, s{sT[3]}, v{vL16}')
    if layer == 0:
        side.add(36, [f's_lshr_b32 s{sX[1 + k]}, s{sTag}, {8 * k}' for k in range(4)], f'v_mov_b32 v{vTM}, 0xff',
                 unpark('bd', 244), unpark('bd2', 245))
    side.add(37, f'''s_lshl_b32 s{sT[0]}, s{sR64}, 15
s_lshl_b32 s{sT[1]}, s{sW}, {9 - layer}
s_add_u32 s{sT[0]}, s{sT[0]}, s{sT[1]}
s_add_u32 s{sT[0]}, s{sT[0]}, {WS_ST + layer * 2048}
s_lshl_b32 s{sT[1]}, s{sS8}, 12
s_add_u32 s{sT[1]}, s{sT[1]}, s{sT[0]}''')
    side.spread(OPT['rc'], 6, [atom(lambda: vm.wait(('h', 39)), bar) if layer else bar] + rd(P0, vU[5], 0, 'p2'))
    for z in range(4):
        if OPT['stamps'] < 3:
            stamp(f'.z{z}_{layer}', 2)
        acc = ACC + 20 * (z & 1)
        for k in range(10):
            f = 10 * z + k
            vm.wait(('h', f))
            for h in list(hooks):
                if vm.t[h[0]] <= vm.done:
                    hooks.remove(h)
                    h[1]()
            for m in range(5):
                d = acc + 4 * m
                c = v4(d) if k else ('0' if z < 3 else v4((P1 if late else ZR) + 4 * m))
                A(f'v_mfma_f32_16x16x32_bf16 {v4(d)}, {a4(4 * (5 * k + m))}, {v4(RING + 4 * (f % NR))}, {c}')
                side.run(f, 5 - m)
    assert not side.left() and not hooks
    stamp(f'g2_{layer}')
    return lg


def allreduce_q(r, t):
    for op in ('v_permlane32_swap_b32', 'v_permlane16_swap_b32'):
        A(f'''v_mov_b32 v{t}, v{r}
v_mov_b32 v{t + 1}, v{r + 1}
{op} v{r}, v{t}
{op} v{r + 1}, v{t + 1}
v_add_f32 v{r}, v{r}, v{t}
v_add_f32 v{r + 1}, v{r + 1}, v{t + 1}''')


def epilogue(layer, vm, lg, g1=None):
    a = ACC + 20
    S = 212
    G = 228
    inv = 0x3acccccd
    lg.wait('p2')
    if layer == 0:
        vm.wait('yd')
        A('s_barrier')
        stamp('y_in')
        lg = LG()
        yrd = [f'ds_read_b64_tr_b16 {v2(YP + 2 * m)}, v{vYR} offset:{m * 1024}' for m in range(5)]
        for m in range(5):
            lg(yrd[m], ('y', m))
    for i in range(10 * (layer == 0 and OPT['zlate'])):
        A(f'v_pk_add_f32 {v2(P0 + 2 * i)}, {v2(P0 + 2 * i)}, {v2(ZR + 2 * i)}')
    for i in range(10):
        A(f'v_pk_add_f32 {v2(a + 2 * i)}, {v2(a + 2 * i)}, {v2(P0 + 2 * i)}')
    A(f'v_pk_add_f32 {v2(S)}, {v2(a)}, {v2(a + 2)}\nv_pk_mul_f32 {v2(S + 2)}, {v2(a)}, {v2(a)}')
    for i in range(1, 10):
        if i >= 2:
            A(f'v_pk_add_f32 {v2(S)}, {v2(S)}, {v2(a + 2 * i)}')
        A(f'v_pk_fma_f32 {v2(S + 2)}, {v2(a + 2 * i)}, {v2(a + 2 * i)}, {v2(S + 2)}')
    if layer == 0:
        AY = 160
        stamp('y_ok')
        lab, done, redo = A.label('again'), A.label('ok'), A.label('redo')
        A.cond[lab] = lambda c: False
        slow = [f'{lab}:', f's_sub_u32 s{sBud}, s{sBud}, 1', f's_cmp_gt_i32 s{sBud}, 0', f's_cbranch_scc0 {done}',
                f's_mul_i32 s{sX[8]}, s{sW}, 10240', f's_add_u32 s{sX[8]}, s{sX[8]}, {L_RED + 5120}',
                f's_and_b32 s{sX[6]}, s{sW}, 1', f's_lshl_b32 s{sX[6]}, s{sX[6]}, 3', f's_add_u32 s{sX[6]}, s{sX[6]}, s{sX[8]}',
                f'v_add_u32 v{vYR}, s{sX[6]}, v{vL16}']
        for m in range(5):
            slow += [f's_add_u32 m0, s{sX[8]}, {m * 1024}', f's_add_u32 s{sX[6]}, s{sX[5]}, {m * 65536}',
                     f'buffer_load_dwordx4 v{vYD}, {W}, s{sX[6]} offen sc1 lds']
        TAIL.append('\n'.join(slow + ['s_waitcnt vmcnt(0)'] + yrd + ['s_waitcnt lgkmcnt(0)', f's_branch {redo}']))
        A(f'{redo}:')
        for m in range(5):
            lg.wait(('y', m))
            A('\n'.join(unpack(YF + 4 * m, YP + 2 * m, 2)))
            if m in (0, 2, 4):
                b_dma(vm, 0, m, 244, 245)
            for i in (2 * m, 2 * m + 1):
                x, y, ay = v2(a + 2 * i), v2(YF + 2 * i), v2(AY + 2 * i)
                A(f'v_pk_mul_f32 {ay}, {x}, {y}')
                if i == 0:
                    A(f'v_pk_mul_f32 {v2(S + 14)}, {y}, {y}\nv_pk_mul_f32 {v2(S + 6)}, {ay}, {x}\n'
                      f'v_pk_mul_f32 {v2(S + 8)}, {ay}, {ay}\nv_pk_mul_f32 {v2(S + 10)}, {ay}, {y}')
                else:
                    p2 = v2(AY) if i == 1 else v2(S + 4)
                    p6 = v2(YF) if i == 1 else v2(S + 12)
                    A(f'v_pk_add_f32 {v2(S + 12)}, {p6}, {y}\nv_pk_fma_f32 {v2(S + 14)}, {y}, {y}, {v2(S + 14)}\n'
                      f'v_pk_add_f32 {v2(S + 4)}, {p2}, {ay}\nv_pk_fma_f32 {v2(S + 6)}, {ay}, {x}, {v2(S + 6)}\n'
                      f'v_pk_fma_f32 {v2(S + 8)}, {ay}, {ay}, {v2(S + 8)}\n'
                      f'v_pk_fma_f32 {v2(S + 10)}, {ay}, {y}, {v2(S + 10)}')
        A(f'v_cmp_u_f32 vcc, v{S + 12}, v{S + 13}\ns_cbranch_vccnz {lab}\n{done}:')
        for k in range(8):
            A(f'v_add_f32 v{S + 2 * k}, v{S + 2 * k}, v{S + 2 * k + 1}')
        for k in range(4):
            A(f'v_permlane16_swap_b32 v{S + 2 * k}, v{S + 2 * k + 8}')
        for k in range(4):
            A(f'v_add_f32 v{G + k}, v{S + 2 * k}, v{S + 2 * k + 8}')
        for k in range(4):
            A(f'v_mov_b32 v{S + k}, v{G + k}')
        for k in range(4):
            A(f'v_permlane32_swap_b32 v{G + k}, v{S + k}')
        for k in range(4):
            A(f'v_add_f32 v{G + k}, v{G + k}, v{S + k}')
        for k in range(4):
            A(f'v_bfi_b32 v{G + k}, v{vTM}, s{sX[1 + k]}, v{G + k}')
        A('s_mov_b32 exec_hi, 0')
        mode_stores([f'buffer_store_dwordx4 {v4(G)}, v{vL16}, {W}, s{sT[1]} offen'], through=OPT['thr'] & 16)
        A('s_mov_b32 exec_hi, -1')
        stamp('st_pub_0')
        if OPT['prefetch'] & 4:
            run(code_touch())
        for i in range(10):
            A(f'v_accvgpr_write_b32 a{A_Y + i}, v{YP + i}')
        A(f'''v_lshrrev_b32 v{vT[0]}, 2, v{vI}
v_mul_u32_u24 v{vT[0]}, 5120, v{vT[0]}
v_and_b32 v{vT[1]}, 3, v{vI}
v_lshl_add_u32 v{vT[0]}, v{vT[1]}, 4, v{vT[0]}
v_lshrrev_b32 v{vT[1]}, 1, v{vQ}
v_lshl_add_u32 v{vT[0]}, v{vT[1]}, 6, v{vT[0]}
v_and_b32 v{vT[1]}, 1, v{vQ}
v_lshl_add_u32 v{vU[5]}, v{vT[1]}, 3, v{vT[0]}
s_lshl_b32 s{sX[1]}, s{sR64}, 2
s_add_u32 s{sX[1]}, s{sX[1]}, s{sW}
s_mul_i32 s{sX[1]}, s{sX[1]}, 20480
s_mul_i32 s{sT[2]}, s{sS8}, 640
s_add_u32 s{sX[1]}, s{sX[1]}, s{sT[2]}
s_add_u32 s{sX[1]}, s{sX[1]}, {WS_U2}''')
        DPk, DF = 190, 108
        for i in range(10):
            A(f'v_accvgpr_read_b32 v{DPk + i}, a{A_DSK + i}')
        A('\n'.join(unpack(DF, DPk, 10)))
        A(f'''s_lshl_b32 s{sX[0]}, s{sR128}, 10
s_lshr_b32 s{sT[1]}, s{sW}, 1
s_lshl_b32 s{sT[1]}, s{sT[1]}, 7
s_add_u32 s{sX[0]}, s{sX[0]}, s{sT[1]}
s_and_b32 s{sT[1]}, s{sW}, 1
s_lshl_b32 s{sT[1]}, s{sT[1]}, 3
s_add_u32 s{sX[0]}, s{sX[0]}, s{sT[1]}
s_add_u32 s{sX[0]}, s{sX[0]}, {WS_FU}
v_and_b32 v{vU[4]}, 7, v{vL}
v_lshlrev_b32 v{vU[4]}, 4, v{vU[4]}
s_add_u32 s{sL[0]}, s{sXs}, {WS_U2}
s_add_u32 s{sL[1]}, s{sL[0]}, 20480
s_lshl_b32 s{sEpW}, s{sR64}, 5
s_lshl_b32 s{sT[1]}, s{sS8}, 2
s_add_u32 s{sEpW}, s{sEpW}, s{sT[1]}
s_add_u32 s{sEpW}, s{sEpW}, s{sW}''')
        A(f'''v_and_b32 v{vT[0]}, 31, v{vL}
v_lshlrev_b32 v{vT[0]}, 4, v{vT[0]}
v_lshrrev_b32 v{vT[1]}, 5, v{vL}
v_lshl_add_u32 v{vT[0]}, v{vT[1]}, 14, v{vT[0]}
s_mov_b32 s{sT[2]}, 0x0c0c0400
s_mov_b32 s{sT[3]}, 0x04000c0c
s_add_u32 s{sX[2]}, s{sT[0]}, 4096
s_add_u32 s{sX[3]}, s{sT[0]}, 8192
s_add_u32 s{sX[4]}, s{sT[0]}, 12288''')
        back = A.label('stpoll')
        A(f'{back}:')
        Q = 128
        for sl, so in enumerate((sT[0], sX[2], sX[3], sX[4])):
            A(f'buffer_load_dwordx4 {v4(Q + 4 * sl)}, v{vT[0]}, {W}, s{so} offen sc1')
        A('s_waitcnt vmcnt(0)')
        for sl in range(4):
            q = Q + 4 * sl
            A(f'v_perm_b32 v{S + 2 * sl}, v{q + 1}, v{q}, s{sT[2]}\nv_perm_b32 v{S + 2 * sl + 1}, v{q + 3}, v{q + 2}, s{sT[3]}')
        for sl in range(4):
            A(f'v_or_b32 v{S + 2 * sl}, v{S + 2 * sl}, v{S + 2 * sl + 1}')
        lo, hi = vT[2], vT[3]
        A(f'''v_min3_u32 v{lo}, v{S}, v{S + 2}, s{sTag}
v_max3_u32 v{hi}, v{S}, v{S + 2}, s{sTag}
v_min3_u32 v{lo}, v{lo}, v{S + 4}, v{S + 6}
v_max3_u32 v{hi}, v{hi}, v{S + 4}, v{S + 6}
v_cmp_ne_u32 vcc, v{lo}, v{hi}''')
        retry(back)
        stamp('st_in_0')
        for hf in (0, 2):
            A(f'v_pk_add_f32 {v2(Q + hf)}, {v2(Q + hf)}, {v2(Q + 4 + hf)}\n'
              f'v_pk_add_f32 {v2(Q + 8 + hf)}, {v2(Q + 8 + hf)}, {v2(Q + 12 + hf)}')
        for hf in (0, 2):
            A(f'v_pk_add_f32 {v2(Q + hf)}, {v2(Q + hf)}, {v2(Q + 8 + hf)}')
        s = lambda k: S + k
        for k in range(4):
            A(f'v_mov_b32 v{Q + 4 + k}, v{Q + k}')
        for k in range(4):
            A(f'v_permlane32_swap_b32 v{Q + k}, v{Q + 4 + k}')
        for k in range(4):
            A(f'v_add_f32 v{s(k)}, v{Q + k}, v{Q + 4 + k}')
        for k in range(4):
            A(f'v_mov_b32 v{s(4 + k)}, v{s(k)}')
        for k in range(4):
            A(f'v_permlane16_swap_b32 v{s(k)}, v{s(4 + k)}')
        m1, r1, k1, t0, t1, r2, k2 = 200, 202, 203, 204, 205, 206, 207
        A(f'''v_mul_f32 v{m1}, {inv:#x}, v{s(0)}
v_mul_f32 v{t0}, {inv:#x}, v{s(1)}
v_fma_f32 v{t0}, -v{m1}, v{m1}, v{t0}
v_max_f32 v{t0}, 0, v{t0}
v_add_f32 v{t0}, 0x3727c5ac, v{t0}
v_rsq_f32 v{r1}, v{t0}
v_mul_f32 v{k1}, v{m1}, v{r1}
v_fma_f32 v{t0}, v{r1}, v{s(2)}, v{s(0)}
v_fma_f32 v{t0}, -v{k1}, v{s(6)}, v{t0}
v_mul_f32 v{t1}, v{r1}, v{s(4)}
v_fma_f32 v{t1}, 2.0, v{s(3)}, v{t1}
v_fma_f32 v{t1}, v{r1}, v{t1}, v{s(1)}
v_fma_f32 v{s(2)}, v{r1}, v{s(5)}, v{s(2)}
v_mul_f32 v{s(7)}, v{k1}, v{s(7)}
v_fma_f32 v{s(2)}, -2.0, v{s(2)}, v{s(7)}
v_fma_f32 v{t1}, v{k1}, v{s(2)}, v{t1}
v_mul_f32 v{t0}, {inv:#x}, v{t0}
v_mul_f32 v{t1}, {inv:#x}, v{t1}
v_fma_f32 v{t1}, -v{t0}, v{t0}, v{t1}
v_max_f32 v{t1}, 0, v{t1}
v_add_f32 v{t1}, 0x3727c5ac, v{t1}
v_rsq_f32 v{r2}, v{t1}
v_mul_f32 v{k2}, v{t0}, v{r2}''')
        bc = 'op_sel:[0,0,1] op_sel_hi:[1,0,1] neg_lo:[0,0,1] neg_hi:[0,0,1]'
        U, UP = 160, 180
        for i in range(10):
            A(f'v_pk_fma_f32 {v2(U + 2 * i)}, {v2(a + 2 * i)}, {v2(r1)}, {v2(r1)} {bc}')
        for i in range(10):
            A(f'v_pk_fma_f32 {v2(a + 2 * i)}, {v2(U + 2 * i)}, {v2(YF + 2 * i)}, {v2(a + 2 * i)}')
        for i in range(10):
            A(f'v_pk_fma_f32 {v2(U + 2 * i)}, {v2(a + 2 * i)}, {v2(r2)}, {v2(r2)} {bc}')
        for i in range(10):
            A(f'v_cvt_pk_bf16_f32 v{UP + i}, v{U + 2 * i}, v{U + 2 * i + 1}')
        mode_stores([f'buffer_store_dwordx2 {v2(UP + 2 * m)}, v{vU[5]}, {W}, s{sX[1]} offen offset:{128 * m}'
                     for m in range(5)], through=OPT['thr'] & 8)
        stamp('u2_st')
        for i in range(10):
            A(f'v_pk_fma_f32 {v2(a + 2 * i)}, {v2(U + 2 * i)}, {v2(DF + 2 * i)}, {v2(a + 2 * i)}')
        for i in range(20):
            A(f'v_accvgpr_write_b32 a{A_Z + i}, v{a + i}')
        A(f's_add_u32 s{sT[1]}, s{sFW}, {WS_FU}\ns_waitcnt vmcnt(0)')
        flag_store(f's{sT[1]}', True)
        A(f's_cmp_lg_u32 s{sEpW}, {31 * 32}')
        with A.skip_if('s_cbranch_scc1', lambda c: True):
            flag_store('0', False)
        fl = f'buffer_load_dwordx2 {v2(vU[0])}, v{vU[4]}, {W}, s{sX[0]} offen sc1'
        for j in range(5):
            g1.rd(0, j)
        check_tags([vU[0], vU[1]], fl, inline=1)
        stamp('u2_ready')
    else:
        A(f'v_add_f32 v{G}, v{S}, v{S + 1}\nv_add_f32 v{G + 1}, v{S + 2}, v{S + 3}\nv_mov_b32 v{G + 2}, s{sTag}\n'
          f'v_mov_b32 v{G + 3}, s{sTag}')
        allreduce_q(G, S)
        A('s_mov_b64 exec, 0xffff')
        mode_stores([f'buffer_store_dwordx4 {v4(G)}, v{vL16}, {W}, s{sT[1]} offen'], through=OPT['thr'] & 16)
        A('s_mov_b64 exec, -1')
        stamp('st_pub_1')
        if OPT['wb'] & 64:
            wbl2()
        lg = LG()
        X3, Y3 = 160, YF
        A(f'''s_mul_i32 s{sT[2]}, s{sW}, 10240
s_add_u32 s{sT[2]}, s{sT[2]}, {L_RED}
v_lshrrev_b32 v{vT[1]}, 1, v{vI}
v_xor_b32 v{vT[1]}, v{vT[1]}, v{vQ}
v_and_b32 v{vT[1]}, 3, v{vT[1]}
v_lshlrev_b32 v{vT[1]}, 4, v{vT[1]}
v_lshl_add_u32 v{vT[1]}, v{vI}, 6, v{vT[1]}
v_add_u32 v{vU[2]}, s{sT[2]}, v{vT[1]}''')
        for m in range(5):
            lg(f'ds_write_b128 v{vU[2]}, {v4(a + 4 * m)} offset:{1024 * m}')
        A(f'''v_lshrrev_b32 v{vT[1]}, 3, v{vL}
v_xor_b32 v{vT[1]}, v{vT[1]}, v{vL}
v_and_b32 v{vT[1]}, 3, v{vT[1]}
v_lshlrev_b32 v{vT[1]}, 4, v{vT[1]}
v_lshrrev_b32 v{vT[2]}, 2, v{vL}
v_lshl_add_u32 v{vT[1]}, v{vT[2]}, 6, v{vT[1]}
v_add_u32 v{vU[3]}, s{sT[2]}, v{vT[1]}''')
        for m in range(5):
            lg(f'ds_read_b128 {v4(X3 + 4 * m)}, v{vU[3]} offset:{1024 * m}')
        A(f'''v_and_b32 v{vT[3]}, 3, v{vL}
v_lshlrev_b32 v{vT[0]}, 13, v{vT[3]}
v_lshl_add_u32 v{vT[0]}, v{vT[2]}, 4, v{vT[0]}
s_add_u32 s{sT[1]}, s{sT[0]}, 4096
v_lshrrev_b32 v{vT[1]}, 2, v{vT[2]}
v_lshl_add_u32 v{vT[1]}, v{vT[1]}, 2, v{vT[2]}
v_mul_u32_u24 v{vT[1]}, 2560, v{vT[1]}
v_lshl_add_u32 v{vU[4]}, v{vT[3]}, 4, v{vT[1]}
s_lshl_b32 s{sT[3]}, s{sR64}, 6
s_lshr_b32 s{sX[1]}, s{sW}, 1
s_lshl_b32 s{sX[1]}, s{sX[1]}, 5
s_add_u32 s{sT[3]}, s{sT[3]}, s{sX[1]}
s_and_b32 s{sX[1]}, s{sW}, 1
s_lshl_b32 s{sX[1]}, s{sX[1]}, 2
s_add_u32 s{sT[3]}, s{sT[3]}, s{sX[1]}
s_mul_i32 s{sT[3]}, s{sT[3]}, 2560
s_mul_i32 s{sX[1]}, s{sS8}, 320
s_add_u32 s{sT[3]}, s{sT[3]}, s{sX[1]}''')
        Q = 128
        ld = [f'buffer_load_dwordx3 {v3(Q)}, v{vT[0]}, {W}, s{sT[0]} offen sc1',
              f'buffer_load_dwordx3 {v3(Q + 4)}, v{vT[0]}, {W}, s{sT[1]} offen sc1']
        check_tags([Q + 2, Q + 6], ld, inline=1)
        A('s_waitcnt lgkmcnt(0)')
        stamp('st_in_1')
        if OPT['wb'] & 32:
            wbl2()
        A(f'v_pk_add_f32 {v2(Q)}, {v2(Q)}, {v2(Q + 4)}')
        for mod in ('quad_perm:[1,0,3,2]', 'quad_perm:[2,3,0,1]'):
            A(f'v_add_f32_dpp v{Q}, v{Q}, v{Q} {mod} {DPPM}\nv_add_f32_dpp v{Q + 1}, v{Q + 1}, v{Q + 1} {mod} {DPPM}')
        r1, t0 = 200, 202
        A(f'''v_mul_f32 v{Q}, {inv:#x}, v{Q}
v_mul_f32 v{t0}, {inv:#x}, v{Q + 1}
v_fma_f32 v{t0}, -v{Q}, v{Q}, v{t0}
v_max_f32 v{t0}, 0, v{t0}
v_add_f32 v{t0}, 0x3727c5ac, v{t0}
v_rsq_f32 v{r1}, v{t0}
v_mul_f32 v{r1 + 1}, v{Q}, v{r1}''')
        bc = 'op_sel:[0,0,1] op_sel_hi:[1,0,1] neg_lo:[0,0,1] neg_hi:[0,0,1]'
        U = 132
        ls = []
        for m in range(5):
            u = U + 4 * (m & 1)
            for hf in range(2):
                ls.append(f'v_pk_fma_f32 {v2(u + 2 * hf)}, {v2(X3 + 4 * m + 2 * hf)}, {v2(r1)}, {v2(r1)} {bc}')
            for hf in range(2):
                i = 4 * m + 2 * hf
                ls.append(f'v_pk_fma_f32 {v2(X3 + i)}, {v2(u + 2 * hf)}, {v2(Y3 + i)}, {v2(X3 + i)}')
            ls.append(f'buffer_store_dwordx4 {v4(X3 + 4 * m)}, v{vU[4]}, {s4(R_T0)}, s{sT[3]} offen offset:{64 * m}'
                      + ['', '', ' nt', ' nt'][OPT['om']])
        mode_stores(ls, through=OPT['om'] in (1, 2))
        if OPT['wb'] & 16:
            wbl2()
        stamp('out_st')


def retry(back):
    lab, done = A.label('retry'), A.label('giveup')
    A.cond[lab] = lambda c: False
    if OPT['inl']:
        A.cond[back] = A.cond[done] = lambda c: False
        A(f's_sub_u32 s{sBud}, s{sBud}, 1\ns_cmp_gt_i32 s{sBud}, 0\ns_cbranch_scc0 {done}\ns_cbranch_vccnz {back}\n{done}:')
        return
    A(f's_cbranch_vccnz {lab}\n{done}:')
    TAIL.append(f'{lab}:\ns_sub_u32 s{sBud}, s{sBud}, 1\ns_cmp_gt_i32 s{sBud}, 0\n'
                f's_cbranch_scc1 {back}\ns_branch {done}')


def dump_stamps():
    if OPT['fixdur']:
        A(f'v_readfirstlane_b32 s3, v{vStamp}\ns_min_u32 s3, s3, 20000')
        if OPT['pick'] >= 0:
            A(f's_lshl_b32 s4, s{sJ}, 3\ns_add_u32 s4, s4, s{sG}\ns_cmp_eq_u32 s4, {OPT["pick"]}\ns_cselect_b32 s3, s3, 0')
        A(f'''s_add_u32 s{sSt}, s{sSt}, s3
L_fix:
s_memrealtime s[0:1]
s_waitcnt lgkmcnt(0)
s_sub_u32 s0, s0, s{sSt}
s_cmp_lt_i32 s0, {OPT['fixdur']}
s_cbranch_scc1 L_fix''')
    if not OPT['stamps']:
        return
    A(f'''s_waitcnt vmcnt(0) lgkmcnt(0)
v_writelane_b32 v{vStamp}, s{sSt}, {PREV[0]}
s_memrealtime {s2(sSt)}
s_waitcnt lgkmcnt(0)
v_writelane_b32 v{vStamp}, s{sSt}, 63
s_lshl_b32 s{sT[0]}, s{sR64}, 3
s_add_u32 s{sT[0]}, s{sT[0]}, s{sS8}
s_lshl_b32 s{sT[0]}, s{sT[0]}, 2
s_add_u32 s{sT[0]}, s{sT[0]}, s{sW}
s_lshl_b32 s{sT[0]}, s{sT[0]}, 8
s_add_u32 s{sT[0]}, s{sT[0]}, {WS_DBG}
v_lshlrev_b32 v{vT[0]}, 2, v{vL}
buffer_store_dword v{vStamp}, v{vT[0]}, {W}, s{sT[0]} offen''')


def body():
    prologue()
    g2 = conv(*front(startup()))
    vm = g2.vm
    lg = gemm2(g2)
    g = G1(1, VM())
    epilogue(0, vm, lg, g)
    n1 = OPT['n1']
    for f in range(n1):
        g.ld(f)
    for f in range(n1, 40):
        g.side.add((f - n1) // 2, lambda f=f: g.ld(f))
    if OPT['wb'] & 1:
        g.side.add(16, wbl2)
    if OPT['tc2']:
        g.side.add(OPT['tc2'], retouch())
    for s in range(20):
        g.step(s)
    stamp('g1_1')
    scan_1(1)
    vm = VM()
    run(horner(1, vm, LG()))
    if OPT['prefetch'] & 8:
        run(code_touch())
    pre, ld = agg_ld(1)
    A(pre)
    for l in ld:
        vm(l, 'agg')
    A(f'''s_mul_i32 s{sT[0]}, s{sW}, 2560
s_add_u32 s{sT[0]}, s{sT[0]}, 24576
v_lshlrev_b32 v{vT[0]}, 5, v{vI}
v_lshl_add_u32 v{vT[0]}, v{vQ}, 3, v{vT[0]}
v_add_u32 v{vT[0]}, s{sT[0]}, v{vT[0]}
v_lshl_add_u32 v{vT[1]}, v{vL}, 3, s{sT[0]}''')
    run([f'ds_write_b64 v{vT[0]}, a[{A_Y + 2 * m}:{A_Y + 2 * m + 1}] offset:{512 * m}' for m in range(5)]
        + [f'ds_read_b64 {v2(YP + 2 * m)}, v{vT[1]} offset:{512 * m}' for m in range(5)])
    scan_2(1, vm, ld)
    g2_setup(1)
    h_flag(1, vm)
    if OPT['wb'] & 8:
        wbl2()
    g2 = G2(1, vm)
    g2.begin()
    lg = gemm2(g2)
    epilogue(1, vm, lg)
    dump_stamps()
    A('L_end:\ns_endpgm')
    for t in TAIL:
        A(t)
    A('s_endpgm\nL_codeend:')


def main():
    hdr = open(os.path.join(os.path.dirname(os.path.abspath(__file__)), NAME + '.s.ref')).read().split('; Override')[0]
    A2 = [hdr.rstrip(), f'; @launch grid=(256,1,1) block=(256,1,1) lds={LDS_SIZE}',
          '.amdgcn_target "amdgcn-amd-amdhsa--gfx950"\n.text',
          f'.globl {NAME}_kernel\n.p2align 8\n.type {NAME}_kernel,@function\n{NAME}_kernel:']
    body()
    n = A.fix_hazards()
    if OPT['align']:
        print('; align: promoted %d, padded %d' % A.align8(999, False), file=sys.stderr)
    cfgs = [dict(w=w, fast=f, ty=ty) for w in range(4) for f in (0, 1) for ty in (0, 1)]
    errs = A.check_waits(cfgs)
    for e in sorted(set(errs))[:40]:
        print('WAITCNT:', e, file=sys.stderr)
    print(f'; {n} hazard pads inserted; {len(A.L)} lines; stamps: {STAMPS}', file=sys.stderr)
    A2.append('; WS ' + '\n; WS '.join(f'{k}={v:#x}' for k, v in dict(RS=WS_RS, H=WS_H, KV=WS_KV, Y=WS_Y, CF=WS_CF,
                                                                   U2=WS_U2, H2=WS_H2, DBG=WS_DBG, CFOLD=1).items()))
    if STAMPS:
        A2.append('; STAMPS ' + ' '.join(STAMPS))
    A2.append(A.text())
    A2.append(f'''.section .rodata,"a"
.p2align 6
.amdhsa_kernel {NAME}_kernel
  .amdhsa_next_free_vgpr 512
  .amdhsa_next_free_sgpr 102
  .amdhsa_accum_offset 256
  .amdhsa_group_segment_fixed_size 0
  .amdhsa_kernarg_size 144
  .amdhsa_user_sgpr_count 2
  .amdhsa_user_sgpr_kernarg_segment_ptr 1
  .amdhsa_system_sgpr_workgroup_id_x 1
.end_amdhsa_kernel''')
    print('\n'.join(A2))


if __name__ == '__main__':
    main()
```

```python
import sys
import os
import copy
sys.path.insert(0, os.path.dirname(os.path.abspath(__file__)))
from asmlib import Asm

NAME = 'interleave_layers__ssm_conv_s5__ssm_conv_h3__prompt'
OPT = dict(stamps=0, rt=1, reuse=1, force_slow=0, budget=1 << 18, align=3, nt=5, prefetch=11,
           gw=1, rsc=17, late=13, lper=3, b1s=0, b2s=0, b3s=0, b4s=2, cfs=0, cfper=14, kls=14, kvf=5, cff=7, fsp=10, fsc=12, wv0=10, wv=16,
           aggl=21, clend=20, cs2=8, nu=3, defer=3, stp=3, cl2s=3, hfl=8, hp=6, yp0=3, clr=3, fbp=-13, fbc=-17, lag=1, cs1=7, cb=5, cl2=12, ys=0, yper=8, zper=8, csp=14, csc=17, cl0=8,
           order='S,A,M,G,T,@setup,R,@roles,O,B0,X0,X1,C', post='L1,L2',
           n0=8, n00=8, n1=8, yp=26, ra=17, rb=24, rper=9, rc=35, wper=2, r3=0, om=0, wb=0, wbw=3, wbs=0, dbg=0, uout=1, cfp=0, os=4, oper=1, kwl=0, nbar=4, kvd=0, mlate=0, t0=1, zlate=0, hout=1, lpre=2, tc2=17, thr=11, tch=12, inl=1, look=14, light=1, fixdur=0, probe='', pick=-1)
for a in sys.argv[1:]:
    k, v = a.split('=')
    assert k in OPT, k
    OPT[k] = v if k in ('probe', 'order', 'post') else int(v, 0)

WS_FU = 0x1000
WS_FH = WS_FU + 256
WS_FD = WS_FU + 768
WS_FY = 0x6000
WS_FB = 0x8000
WS_FK = 0x10000
WS_FS = WS_FK + 512
WS_FX = WS_FK + 1024
WS_RS = 0x40000
WS_CS = 0x4A000
WS_AGG = 0x50000
AGG_L = 16 * 32 * 640
WS_ST = 0x140000
WS_U = 0x400000
WS_H = 0xA00000
WS_KV = WS_U if OPT['reuse'] else 0x1000000
WS_Y = 0x1300000
WS_CF = 0x1600000
WS_KB = 0x1900000
WS_U2 = WS_U
WS_H2 = WS_H if OPT['reuse'] else 0x1B00000
WS_DBG = 0x2400000
WS_SIZE = 0x2800000
OOB = 0x70000000

L_AR = 102400
L_SK = L_AR + 2 * 8192
VOFF = 12 * 1056
L_SS, L_SS2, L_V = L_SK + VOFF + 9 * 1056, L_SK + VOFF + 11 * 1056, L_SK + 25 * 1056
L_KV = 0
L_TR = 13824
L_K = 102400
L_PM = 102400
L_PS = L_K + 3 * 8320
L_P = L_PS + 16384
L_RED = 102400
L_Y = 143360
L_AS = 152320
L_G = 149504
L_RS = 158720
L_C = 159744
L_L = 160640
LDS_SIZE = 163840

P_X, P_LRE, P_LIM, P_BRE, P_BIM, P_CRE, P_CIM, P_LDT = 16, 18, 20, 22, 24, 26, 28, 30
P_DSK, P_Q, P_K, P_V, P_SK, P_SSK, P_SD, P_OUT, P_DBG, P_WS = 32, 34, 36, 38, 40, 42, 44, 46, 48, 50
R_WS, R_B, R_T0, R_T1, R_X = 52, 56, 60, 64, 68
sG, sJ, sOnes = 0, 1, 2
sR128, sMem, sR64, sS8, sW, sTag, sMode, sBud, sXcc = 3, 4, 5, 6, 7, 8, 9, 10, 11
sT = [12, 13, 14, 15]
sD = [72, 73]
sBs, sBm, sXs, sXm = 74, 75, 76, 77
sH = [78, 79, 80, 81, 82]
sAgg = 83
sFW, sFK = 84, 85
sC0, sCs = 86, 24
sKm, sKf, sKs = 40, 41, 36
sX = [87, 88, 89, 90, 91, 92, 93, 94, 95]
sPub = 96
sPC = 98
sSt = 100
sL = [34, 35]
sDS = [16, 17, 18, 19]
sZ = [20, 21, 48, 49]
sYO = [50, 51]
sDm = [30, 31, 25, 45]
sEpW = 44

vUA, vL, vL16, vI, vQ = 0, 1, 2, 3, 4
vBA = [5, 6, 7, 8]
vAS, vStamp = 9, 10
vT = [11, 12, 13, 14, 15]
LR, LS, VA = 16, 21, 26
mL8, mL128, mW = 36, 38, 40
vU = [42, 43, 44, 45, 46, 47]
ACC, BF, RING, NR = 48, 88, 128, 16
A_Y, A_Z, A_DSK = 200, 210, 230
PARK = dict(tw=240, tr=241, ts=242, bd=243, bd2=244, rt=245, junk=250)
A_CV = 200
A_X, A_ZU = 216, 226

A = Asm()
NT, NTC, NTK, NTP, NTX, NTT = [' nt' if OPT['nt'] >> i & 1 else '' for i in range(6)]
STAMPS = []
PREV = [61]
TAIL = []
DPPM = 'row_mask:0xf bank_mask:0xf'
SWP = f'quad_perm:[1,0,3,2] {DPPM}'
W = f's[{R_WS}:{R_WS + 3}]'
HO = OPT['reuse'] and OPT['hout']
WH = f's[{R_T0}:{R_T0 + 3}]' if HO else W
HB = [0, 0] if HO else [WS_H, WS_H2]
UO = HO and OPT['uout']
WU = WH if UO else W


def s2(n): return f's[{n}:{n + 1}]'
def s4(n): return f's[{n}:{n + 3}]'
def v2(n): return f'v[{n}:{n + 1}]'
def v3(n): return f'v[{n}:{n + 2}]'
def v4(n): return f'v[{n}:{n + 3}]'
def a4(n): return f'a[{n}:{n + 3}]'


def srd(r, p, size):
    A(f's_mov_b32 s{r}, s{p}\ns_and_b32 s{r + 1}, s{p + 1}, 0xffff\ns_mov_b32 s{r + 2}, {size}\n'
      f's_mov_b32 s{r + 3}, 0x20000')


def stamp(name, level=1):
    if ':' in OPT['probe']:
        a, b, kind = OPT['probe'].split(':')
        op = 's_memtime' if kind == 'c' else 's_memrealtime'
        if name == a:
            A(f'{op} vcc\ns_waitcnt lgkmcnt(0)\nv_mov_b32 v{vStamp}, vcc_lo')
        if name == b:
            A(f'{op} vcc\ns_waitcnt lgkmcnt(0)\nv_sub_u32 v{vStamp}, vcc_lo, v{vStamp}\n'
              + (f'v_lshrrev_b32 v{vStamp}, 2, v{vStamp}' if kind == 'c' else f'v_lshlrev_b32 v{vStamp}, 2, v{vStamp}'))
    if OPT['probe'] == name:
        A(f's_memrealtime vcc\ns_waitcnt lgkmcnt(0)\ns_sub_u32 vcc_lo, vcc_lo, s{sSt}\ns_lshl_b32 vcc_lo, vcc_lo, 2\n'
          f'v_mov_b32 v{vStamp}, vcc_lo')
    if not OPT['stamps'] or (OPT['stamps'] < 0 and name != 'start') or level > abs(OPT['stamps']):
        return
    if name not in STAMPS:
        STAMPS.append(name)
    i = STAMPS.index(name)
    op = 's_memrealtime' if OPT['rt'] else 's_memtime'
    if name == 'start' or not OPT['light']:
        A(f'{op} {s2(sSt)}\ns_waitcnt lgkmcnt(0)\nv_writelane_b32 v{vStamp}, s{sSt}, {i}')
    else:
        A(f'v_writelane_b32 v{vStamp}, s{sSt}, {PREV[0]} ; nocheck\n{op} {s2(sSt)} ;@{i}')
        PREV[0] = i


class Cnt:
    def __init__(self, what, cap):
        self.n, self.t, self.what, self.cap, self.done = 0, {}, what, cap, 0

    def __call__(self, text, name=None):
        A(text)
        self.n += 1
        if name is not None:
            self.t[name] = self.n
        return self.n

    def wait(self, *names):
        tok = max(self.t[x] if not isinstance(x, int) else x for x in names)
        if tok <= self.done:
            return
        k = self.n - tok
        assert k >= 0
        if k <= self.cap:
            A(f's_waitcnt {self.what}({k})')
            self.done = tok
        else:
            A(f's_waitcnt {self.what}({self.cap})')
            self.done = self.n - self.cap

    def merge(self, o):
        n = max(self.n, o.n)
        t = {}
        for k in set(self.t) | set(o.t):
            t[k] = n - min(c.n - c.t[k] for c in (self, o) if k in c.t)
        self.done = n - max(self.n - self.done, o.n - o.done)
        self.n, self.t = n, t


def VM(): return Cnt('vmcnt', 63)
def LG(): return Cnt('lgkmcnt', 15)


def lines(x):
    if isinstance(x, str):
        return [l for l in x.split('\n') if l.strip()]
    if isinstance(x, (list, tuple)):
        return [l for it in x for l in lines(it)]
    return [x]


def atom(*items):
    return lambda: run(items)


def run(items):
    for it in lines(items):
        A(it) if isinstance(it, str) else it()


class Side:
    def __init__(self):
        self.q = {}

    def add(self, step, *items):
        self.q.setdefault(step, []).extend(lines(items))

    def spread(self, step0, per, items):
        flat = lines(items)
        for i, it in enumerate(flat):
            self.add(step0 + i // per, it)
        return step0 + (len(flat) + per - 1) // per

    def run(self, step, slots_left):
        q = self.q.get(step, [])
        n = -(-len(q) // slots_left)
        self.q[step] = q[n:]
        for it in q[:n]:
            A(it) if isinstance(it, str) else it()

    def left(self, lo=0, hi=999):
        return [k for k, v in self.q.items() if v and lo <= k < hi]


class Cap:
    def __enter__(self):
        self.save = A.L
        A.L = []
        return self

    def __exit__(self, *a):
        self.lines = [i.text for i in A.L]
        A.L = self.save


def check_tags(regs, reload, masked=False, x=None, y=None, inline=0):
    x, y = vT[4] if x is None else x, vT[3] if y is None else y
    if len(regs) <= 2:
        chk = [f'v_xor_b32 v{x}, s{sTag}, v{regs[0]}']
        for r in regs[1:]:
            chk += [f'v_xor_b32 v{y}, s{sTag}, v{r}', f'v_or_b32 v{x}, v{x}, v{y}']
        chk.append(f'v_cmp_lt_u32 vcc, 15, v{x}' if masked else f'v_cmp_ne_u32 vcc, 0, v{x}')
    else:
        assert not masked and len(regs) % 2 == 0
        chk = [f'v_min3_u32 v{x}, v{regs[0]}, v{regs[1]}, s{sTag}', f'v_max3_u32 v{y}, v{regs[0]}, v{regs[1]}, s{sTag}']
        for i in range(2, len(regs), 2):
            chk += [f'v_min3_u32 v{x}, v{x}, v{regs[i]}, v{regs[i + 1]}', f'v_max3_u32 v{y}, v{y}, v{regs[i]}, v{regs[i + 1]}']
        chk.append(f'v_cmp_ne_u32 vcc, v{x}, v{y}')
    lab, done = A.label('again'), A.label('ok')
    A.cond[lab] = lambda c: False
    if inline and OPT['inl']:
        if inline == 2:
            A.cond[done] = lambda c: True
            A('\n'.join(chk) + f'\ns_cbranch_vccz {done}')
        out = A.label('out')
        A.cond[out] = lambda c: False
        run([f'{lab}:'] + lines(reload) + [f's_sub_u32 s{sBud}, s{sBud}, 1', f's_cmp_gt_i32 s{sBud}, 0', 's_waitcnt vmcnt(0)']
            + chk + [f's_cbranch_scc0 {out}', f's_cbranch_vccnz {lab}', f'{out}:', f'{done}:'])
        return
    if inline == 1:
        run(lines(reload) + ['s_waitcnt vmcnt(0)'])
    A('\n'.join(chk) + f'\ns_cbranch_vccnz {lab}\n{done}:')
    TAIL.append('\n'.join([f'{lab}:', f's_sub_u32 s{sBud}, s{sBud}, 1', f's_cmp_gt_i32 s{sBud}, 0', f's_cbranch_scc0 {done}']
                          + lines(reload) + ['s_waitcnt vmcnt(0)'] + chk + [f's_cbranch_vccnz {lab}', f's_branch {done}']))


def mode_stores(ls, mode=sMode, through=False):
    if through:
        return run([(l + ' sc1') if l.startswith('buffer_store') else l for l in ls])
    slow, back = A.label('slow'), A.label('back')
    A.cond[slow] = lambda c: not c['fast'] or (mode != sMode and c['w'] == 2)
    A(f's_cmp_eq_u32 s{mode}, 0\ns_cbranch_scc1 {slow}')
    for l in ls:
        A(l)
    A(f'{back}:')
    TAIL.append(f'{slow}:\n' + '\n'.join((l + ' sc1') if l.startswith('buffer_store') else l for l in ls)
                + f'\ns_nop 1\ns_branch {back}')


def flag_store(soff, local, vm=None, mode=sMode):
    t = vT[4]
    A(f'v_mov_b32 v{t}, s{sTag}\ns_mov_b64 exec, 1')
    line = f'buffer_store_dword v{t}, off, {W}, {soff}'
    if local:
        mode_stores([line], mode)
    else:
        A(line + ' sc1')
    A('s_mov_b64 exec, -1')
    if vm is not None:
        vm.n += 1


def unpack(dst, src, n):
    out = []
    for i in range(n):
        out += [f'v_lshlrev_b32 v{dst + 2 * i}, 16, v{src + i}', f'v_and_b32 v{dst + 2 * i + 1}, 0xffff0000, v{src + i}']
    return out


def rnd_bf16(v):
    A(f'v_cvt_pk_bf16_f32 v{v}, v{v}, v{v}\nv_and_b32 v{v}, 0xffff0000, v{v}')


def cmul(dst, g, lam, add=None):
    if add is None:
        a = f'v_pk_mul_f32 {v2(dst)}, {v2(g)}, {v2(lam)} op_sel:[1,1] op_sel_hi:[0,1] neg_lo:[0,1]'
    else:
        a = f'v_pk_fma_f32 {v2(dst)}, {v2(g)}, {v2(lam)}, {v2(add)} op_sel:[1,1,0] op_sel_hi:[0,1,1] neg_lo:[0,1,0]'
    return [a, f'v_pk_fma_f32 {v2(dst)}, {v2(g)}, {v2(lam)}, {v2(dst)} op_sel:[0,0,0] op_sel_hi:[1,0,1]']


def park(name, v): A(f'v_accvgpr_write_b32 a{PARK[name]}, v{v}')
def unpark(name, v): return f'v_accvgpr_read_b32 v{v}, a{PARK[name]}'


def code_touch():
    return [f's_and_b32 vcc_lo, s{sJ}, 7', 's_lshl_b32 vcc_lo, vcc_lo, 2', f's_add_u32 vcc_lo, vcc_lo, s{sW}',
            's_lshl_b32 vcc_lo, vcc_lo, 11', f'v_lshl_add_u32 v{vT[4]}, v{vI}, 7, vcc_lo',
            f'v_min_u32 v{vT[4]}, L_codeend-L_pc-4, v{vT[4]}', 's_mov_b64 exec, 0xffff',
            f'global_load_dword a250, v{vT[4]}, {s2(sPC)}', 's_mov_b64 exec, -1']


def touch_addr(dst, segs):
    n = 0
    for cnt, code in segs:
        A(code.replace('$', f's{sT[0]}'))
        A(f's_sub_u32 s{sT[0]}, s{sT[0]}, {128 * n}')
        if n:
            A(f'v_cmp_lt_u32 vcc, {n - 1}, v{vL}\nv_mov_b32 v{vT[4]}, s{sT[0]}\nv_cndmask_b32 v{dst}, v{dst}, v{vT[4]}, vcc')
        else:
            A(f'v_mov_b32 v{dst}, s{sT[0]}')
        n += cnt
    A(f'v_lshl_add_u32 v{dst}, v{vL}, 7, v{dst}')
    return n


SEG_ST = (24, f's_lshl_b32 $, s{sR128}, 4\ns_add_u32 $, $, s{sMem}\ns_lshl_b32 $, $, 12\ns_add_u32 $, $, {WS_ST}')
SEG_F = (8, f's_lshl_b32 $, s{sR128}, 10\ns_add_u32 $, $, {WS_FU}')


def retouch():
    return atom(unpark('rt', vT[0]), f's_mov_b32 exec_lo, s{sPub}', 's_mov_b32 exec_hi, 0',
                f'buffer_load_dword a250, v{vT[0]}, {W}, 0 offen', 's_mov_b64 exec, -1')


def wbl2():
    A(f's_lshl_b32 vcc_lo, s{sJ}, 2\ns_add_u32 vcc_lo, vcc_lo, s{sW}\ns_cmp_lg_u32 vcc_lo, {OPT["wbw"]}')
    with A.skip_if('s_cbranch_scc1', lambda c: True):
        A('buffer_wbl2 sc1')


AF = 128
vAR, vAR2, vXd, vXd2, vBd, vBd2, vR, vSgn = 144, 145, 146, 147, 148, 149, 150, 151
CR, CI, CT, CTMP, vCd = 176, 180, 192 if OPT['cfs'] >= 0 else 128, 152, 174
vKV, vKS, vKR, vSR, vFX, vFXa = 169, 171, 172, 173, 184, 185
KK, VV, SKW, WW, AC, KT = 48, 70, 88, 96, 112, 216
OUT = [232, 236, 208, 212] if OPT['kvd'] else [232, 236, 88, 92]
XP, XS = 48, 88
PAR = 229
KA, KB, vKO, vKP = 192, 204, 186, 163
vZ, vXT = 224, 242
RSL, vRS, CSL = 152, 160, 246
MM, RR = 88, 96
vFP, vFA = 188, 187


def x_dma(vm, p):
    s2i, m = p >> 1, p & 1
    if OPT['dbg'] & 512 and p >= 7:
        vm.t['x', p] = vm.t['x', 6]
        return
    A(f's_add_u32 m0, s{sXm}, {(p % 7) * 8192}\ns_add_u32 s{sT[3]}, s{sXs}, {4 * m * 1280 + s2i * 128}')
    vm(f'buffer_load_dwordx4 v{vXd}, {s4(R_X)}, s{sT[3]} offen lds')
    vm(f'buffer_load_dwordx4 v{vXd2}, {s4(R_X)}, s{sT[3]} offen offset:1024 lds', ('x', p))


def b_dma(vm, g, j, bd=vBd, bd2=vBd2):
    A(f's_add_u32 m0, s{sBm}, {g * 20480 + j * 2048}\ns_add_u32 s{sT[2]}, s{sBs}, {g * 256 + j * 10240}')
    vm(f'buffer_load_dwordx4 v{bd}, {s4(R_B)}, s{sT[2]} offen lds', ('b', g))
    if j < 4:
        vm(f'buffer_load_dwordx4 v{bd2}, {s4(R_B)}, s{sT[2]} offen offset:2048 lds', ('b', g))


def b_all(vm, g):
    t = vT
    srd(R_T1, P_BRE, 819200)
    A(f'v_xor_b32 v{t[0]}, 64, v{vBd}\nv_xor_b32 v{t[1]}, 64, v{vBd2}\ns_mul_i32 s{sT[3]}, s{sMem}, 51200')
    for hf in range(2):
        for j in (0, 2, 4):
            A(f's_add_u32 s{sT[2]}, s{sT[3]}, {g * 256 + hf * 128 + j * 10240}')
            for comp, (r, a, a2) in enumerate(((R_T1, t[0], t[1]), (R_B, vBd, vBd2))):
                A(f's_mov_b32 m0, {g * 20480 + hf * 10240 + j * 2048 + comp * 1024}')
                vm(f'buffer_load_dwordx4 v{a}, {s4(r)}, s{sT[2]} offen lds', ('b', g))
                if j < 4:
                    vm(f'buffer_load_dwordx4 v{a2}, {s4(r)}, s{sT[2]} offen offset:2048 lds', ('b', g))


def prologue():
    A('s_cmp_ge_u32 s2, 256\ns_cbranch_scc1 L_end')
    A.cond['L_end'] = lambda c: False
    if OPT['stamps'] or OPT['fixdur']:
        A(f's_memrealtime {s2(sSt)}\nv_mov_b32 v{vStamp}, 0')
    A('s_load_dwordx16 s[16:31], s[0:1], 0\ns_load_dwordx16 s[32:47], s[0:1], 64\n'
      's_load_dwordx4 s[48:51], s[0:1], 128')
    t = vT
    A(f'''v_and_b32 v{vL}, 63, v0
v_lshrrev_b32 v{t[0]}, 6, v0
v_lshlrev_b32 v{vL16}, 4, v{vL}
v_readfirstlane_b32 s{sW}, v{t[0]}
v_and_b32 v{vI}, 15, v{vL}
v_lshrrev_b32 v{vQ}, 4, v{vL}
s_and_b32 s{sT[0]}, s2, 7
s_lshr_b32 s{sT[1]}, s2, 3
s_getpc_b64 {s2(sPC)}
L_pc:
s_and_b32 s{sMem}, s{sT[1]}, 15
s_lshr_b32 s{sT[2]}, s{sT[1]}, 4
s_lshl_b32 s{sR128}, s{sT[0]}, 1
s_add_u32 s{sR128}, s{sR128}, s{sT[2]}
s_mov_b32 s{sG}, s{sT[0]}
s_mov_b32 s{sJ}, s{sT[1]}''')
    if OPT['prefetch'] & 1:
        A('\n'.join(code_touch()))
    A(f'''v_lshrrev_b32 v{t[0]}, 3, v{vL}
v_and_b32 v{t[2]}, 7, v{vL}
v_mul_u32_u24 v{vR}, 1280, v{t[0]}
v_lshl_add_u32 v{vR}, v{t[2]}, 4, v{vR}''')
    kv_src()


def dma_addr():
    t = vT
    A(f'''v_lshrrev_b32 v{t[0]}, 3, v{vL}
v_and_b32 v{t[1]}, 6, v{t[0]}
v_and_b32 v{t[2]}, 7, v{vL}
s_movk_i32 s{sT[3]}, 0x78
v_bfe_u32 v{t[3]}, s{sT[3]}, v{t[1]}, 2
v_xor_b32 v{t[3]}, v{t[3]}, v{t[2]}
v_mul_u32_u24 v{vXd}, 1280, v{t[0]}
v_lshl_add_u32 v{vBd}, v{t[3]}, 4, v{vXd}
s_and_b32 s{sT[0]}, s{sW}, 1
s_lshl_b32 s{sT[1]}, s{sT[0]}, 6
v_xor_b32 v{vBd}, s{sT[1]}, v{vBd}
v_add_u32 v{vBd2}, {10240 - 2048}, v{vBd}
v_xor_b32 v{t[1]}, v{t[1]}, v{t[2]}
v_and_b32 v{t[0]}, 4, v{t[0]}
v_mul_u32_u24 v{t[0]}, 1280, v{t[0]}
v_lshl_add_u32 v{t[0]}, v{t[1]}, 4, v{t[0]}
v_add_u32 v{vXd}, v{t[0]}, v{vXd}
v_add_u32 v{vXd2}, {20480 - 1024}, v{vXd}
s_lshr_b32 s{sT[1]}, s{sW}, 1
s_mul_i32 s{sBm}, s{sT[1]}, 10240
s_lshl_b32 s{sT[0]}, s{sT[0]}, 10
s_add_u32 s{sBm}, s{sBm}, s{sT[0]}
s_mul_i32 s{sBs}, s{sMem}, 51200
s_lshl_b32 s{sT[1]}, s{sT[1]}, 7
s_add_u32 s{sBs}, s{sBs}, s{sT[1]}
s_lshl_b32 s{sXs}, s{sR128}, 2
s_add_u32 s{sXs}, s{sXs}, s{sW}
s_mul_i32 s{sXs}, s{sXs}, 40960
s_lshl_b32 s{sXm}, s{sW}, 11
s_add_u32 s{sXm}, s{sXm}, {L_AR}''')
    A(f'''s_bitcmp1_b32 s{sW}, 0
s_cselect_b32 s{R_B}, s{P_BIM}, s{P_BRE}
s_cselect_b32 s{R_B + 1}, s{P_BIM + 1}, s{P_BRE + 1}
s_and_b32 s{R_B + 1}, s{R_B + 1}, 0xffff
s_mov_b32 s{R_B + 2}, 819200
s_mov_b32 s{R_B + 3}, 0x20000
s_bitcmp1_b32 s{sR128}, 3
s_cselect_b32 s{R_T0}, s{P_BIM}, s{P_BRE}
s_cselect_b32 s{R_T0 + 1}, s{P_BIM + 1}, s{P_BRE + 1}
s_and_b32 s{R_T0 + 1}, s{R_T0 + 1}, 0xffff
s_mov_b32 s{R_T0 + 2}, 819200
s_mov_b32 s{R_T0 + 3}, 0x20000''')
    srd(R_X, P_X, 2621440)
    srd(R_WS, P_WS, WS_SIZE)


def kv_src():
    A(f'''s_mul_i32 s{sT[0]}, s{sJ}, 81920
s_lshl_b32 s{sT[1]}, s{sG}, 7
s_add_u32 s{sT[0]}, s{sT[0]}, s{sT[1]}
v_add_u32 v{vKV}, s{sT[0]}, v{vR}
s_lshl_b32 s{sX[8]}, s{sG}, 5
s_add_u32 s{sX[8]}, s{sX[8]}, s{sJ}
s_mul_i32 s{sT[0]}, s{sX[8]}, 10240
s_add_u32 s{sT[0]}, s{sT[0]}, 1024
v_add_u32 v{vKV + 1}, s{sT[0]}, v{vR}''')


def kv_addr():
    t = vT
    A(f'''v_lshrrev_b32 v{t[0]}, 3, v{vL}
v_and_b32 v{t[1]}, 7, v{vL}
v_mul_u32_u24 v{t[2]}, 1056, v{t[1]}
v_lshl_add_u32 v{t[2]}, v{t[0]}, 3, v{t[2]}
s_lshl_b32 s{sT[0]}, s{sW}, 6
s_add_u32 s{sT[0]}, s{sT[0]}, {L_SK}
v_add_u32 v{vKR}, s{sT[0]}, v{t[2]}
s_lshl_b32 s{sT[0]}, s{sW}, 8
s_add_u32 s{sT[0]}, s{sT[0]}, {L_SS}
v_lshl_add_u32 v{vSR}, v{t[0]}, 5, s{sT[0]}
v_sub_u32 v{t[2]}, 7, v{t[1]}
v_lshlrev_b32 v{t[2]}, 4, v{t[2]}
v_lshl_add_u32 v{vKS}, v{t[0]}, 14, v{t[2]}
s_mul_i32 s{sT[0]}, s{sG}, 80
s_lshl_b32 s{sT[1]}, s{sW}, 5
s_add_u32 s{sT[0]}, s{sT[0]}, s{sT[1]}
s_lshl_b32 s{sT[0]}, s{sT[0]}, 12
s_lshl_b32 s{sT[1]}, s{sJ}, 7
s_sub_u32 s{sT[0]}, s{sT[0]}, s{sT[1]}
s_add_u32 s{sX[0]}, s{sT[0]}, {WS_KV + 3968}
s_add_u32 s{sKf}, s{sFK}, {WS_FK}
s_movk_i32 s{sKs}, 4096
s_cmp_lg_u32 s{sW}, 2''')
    with A.skip_if('s_cbranch_scc1', lambda c: c['w'] != 2):
        A(f'''v_bfe_u32 v{t[2]}, v{vL}, 4, 1
v_mul_u32_u24 v{t[2]}, 2112, v{t[2]}
v_and_b32 v{t[3]}, 15, v{vL}
v_lshl_add_u32 v{t[2]}, v{t[3]}, 3, v{t[2]}
v_add_u32 v{vKR}, {L_SK + 9 * 1056}, v{t[2]}
v_and_b32 v{t[2]}, 31, v{vL}
v_lshlrev_b32 v{t[2]}, 5, v{t[2]}
v_add_u32 v{vSR}, {L_SS2}, v{t[2]}
v_cmp_gt_u32 vcc, 32, v{vL}
v_mov_b32 v{t[3]}, {OOB}
s_lshl_b32 s{sX[0]}, s{sX[8]}, 11
s_add_u32 s{sX[0]}, s{sX[0]}, {WS_KB}
v_cndmask_b32 v{vKS}, v{t[3]}, v{vL16}, vcc
s_lshl_b32 s{sKf}, s{sX[8]}, 2
s_add_u32 s{sKf}, s{sKf}, {WS_FB}
s_movk_i32 s{sKs}, 512''')


def kv_dma(vm, r, a, so, pos, halo=False):
    if halo:
        A(f'v_subrev_u32 v{vT[0]}, 10240, v{a}\ns_mov_b32 exec_lo, 0\ns_mov_b32 exec_hi, 0xffffff00')
    A(f's_mov_b32 m0, {L_SK + pos * 1056}')
    if so > 64:
        A(f's_mov_b32 s{sT[0]}, {so}')
    vm(f'buffer_load_dwordx4 v{vT[0] if halo else a}, {s4(r)}, {"s%d" % sT[0] if so > 64 else so} offen{NT} lds', 'kv')
    if halo:
        A('s_mov_b64 exec, -1')


def kv_loads0(vm):
    srd(R_T0, P_K, 2621440)
    for p in range(1, 8):
        kv_dma(vm, R_T0, vKV, (p - 1) * 10240, p)
    kv_dma(vm, R_T0, vKV, 0, 0, True)


def kv_loads1(vm):
    srd(R_T1, P_V, 2621440)
    for p in range(1, 9):
        kv_dma(vm, R_T1, vKV, (p - 1) * 10240, 12 + p)


def kv_loads2(vm):
    srd(R_T0, P_K, 2621440)
    srd(R_T1, P_V, 2621440)
    kv_dma(vm, R_T0, vKV, 7 * 10240, 8)
    for hf in range(2):
        kv_dma(vm, R_T0, vKV + 1, 128 * hf, 10 + 2 * hf)
        kv_dma(vm, R_T1, vKV + 1, 128 * hf, 22 + 2 * hf)
    for hf in range(2):
        kv_dma(vm, R_T0, vKV + 1, 128 * hf, 9 + 2 * hf, True)
    srd(R_T1, P_SK, 5120)
    A(f's_mov_b32 m0, {L_SS2}\ns_movk_i32 s{sT[0]}, 4096')
    vm(f'buffer_load_dwordx4 v{vL16}, {s4(R_T1)}, s{sT[0]} offen{NTP} lds', 'kv')
    A(f's_mov_b32 m0, {L_SS}\ns_lshl_b32 s{sT[0]}, s{sG}, 9\ns_mov_b32 exec_hi, 0')
    vm(f'buffer_load_dwordx4 v{vL16}, {s4(R_T1)}, s{sT[0]} offen{NTP} lds', 'kv')
    A('s_mov_b32 exec_hi, -1')


def c_loads(vm):
    t = vT
    A(f'''v_mul_u32_u24 v{t[0]}, 171, v{vL}
v_lshrrev_b32 v{t[0]}, 11, v{t[0]}
v_mul_u32_u24 v{t[1]}, 12, v{t[0]}
v_sub_u32 v{t[1]}, v{vL}, v{t[1]}
s_mul_i32 s{sT[0]}, s{sMem}, 5
v_min_u32 v{t[2]}, 4, v{t[0]}
v_add_u32 v{t[2]}, s{sT[0]}, v{t[2]}
s_mul_i32 s{sT[1]}, s{sW}, 12
v_add_u32 v{t[1]}, s{sT[1]}, v{t[1]}
v_cmp_gt_u32 vcc, 40, v{t[1]}
v_cmp_gt_u32 {s2(sT[2])}, 5, v{t[0]}
s_lshr_b32 s{sT[1]}, s{sJ}, 4
s_mul_i32 s{sT[1]}, s{sT[1]}, 40
v_min_u32 v{t[1]}, 39, v{t[1]}
s_and_b64 vcc, vcc, {s2(sT[2])}
v_add_u32 v{t[1]}, s{sT[1]}, v{t[1]}
s_mul_i32 s{sT[2]}, s{sG}, 102400
v_mul_u32_u24 v{t[3]}, 1280, v{t[1]}
v_lshl_add_u32 v{t[3]}, v{t[2]}, 4, v{t[3]}
v_add_u32 v{t[3]}, s{sT[2]}, v{t[3]}''')
    if OPT['dbg'] & 16:
        A(f'v_mov_b32 v{t[3]}, v{vL16}')
    vm(f'global_load_dwordx4 {v4(CR)}, v{t[3]}, {s2(P_CRE)}{NTC}')
    vm(f'global_load_dwordx4 {v4(CI)}, v{t[3]}, {s2(P_CIM)}{NTC}', 'craw')
    A(f'''v_lshrrev_b32 v{t[3]}, 2, v{t[2]}
v_mul_u32_u24 v{t[3]}, 10240, v{t[3]}
v_and_b32 v{t[2]}, 3, v{t[2]}
v_lshl_add_u32 v{t[3]}, v{t[2]}, 8, v{t[3]}
v_lshrrev_b32 v{t[2]}, 4, v{t[1]}
v_lshl_add_u32 v{t[3]}, v{t[2]}, 10, v{t[3]}
v_and_b32 v{t[1]}, 15, v{t[1]}
v_lshl_add_u32 v{t[3]}, v{t[1]}, 4, v{t[3]}
v_mov_b32 v{t[2]}, {OOB}
v_cndmask_b32 v{vCd}, v{t[2]}, v{t[3]}, vcc
v_min_u32 v{t[0]}, 4, v{t[0]}
v_lshlrev_b32 v{t[0]}, 6, v{t[0]}
v_add_u32 v{vCd + 1}, {L_C}, v{t[0]}''')


def cf_work(vm, lg):
    it = [lambda d=d: lg(f'ds_read_b128 {v4(CT + 4 * d)}, v{vCd + 1} offset:{16 * d}', 'ctab') for d in range(4)]
    it.append(lambda: (vm.wait('craw'), lg.wait('ctab')))
    r, i, o = CTMP, CTMP + 2, CTMP + 4
    for d in range(4):
        cr, ci = v2(CT + 4 * d), v2(CT + 4 * d + 2)
        it += unpack(r, CR + d, 1) + unpack(i, CI + d, 1)
        if OPT['cfp']:
            c0 = CT + 4 * d
            it += [f'v_mul_f32 v{o + e}, v{r + e}, v{c0 + e}' for e in range(2)]
            it += [f'v_mul_f32 v{o + 2 + e}, v{r + e}, v{c0 + 2 + e}' for e in range(2)]
            it += [f'v_fma_f32 v{o + e}, -v{i + e}, v{c0 + 2 + e}, v{o + e}' for e in range(2)]
            it += [f'v_fma_f32 v{o + 2 + e}, -v{i + e}, v{c0 + e}, -v{o + 2 + e}' for e in range(2)]
            it += [f'v_cvt_pk_bf16_f32 v{CR + d}, v{o}, v{o + 1}', f'v_cvt_pk_bf16_f32 v{CI + d}, v{o + 2}, v{o + 3}']
            continue
        it += [f'v_pk_mul_f32 {v2(o)}, {v2(r)}, {cr}',
               f'v_pk_mul_f32 {v2(o + 2)}, {v2(r)}, {ci} neg_lo:[0,1] neg_hi:[0,1]',
               f'v_pk_fma_f32 {v2(o)}, {v2(i)}, {ci}, {v2(o)} neg_lo:[0,1,0] neg_hi:[0,1,0]',
               f'v_pk_fma_f32 {v2(o + 2)}, {v2(i)}, {cr}, {v2(o + 2)} neg_lo:[0,1,0] neg_hi:[0,1,0]',
               f'v_cvt_pk_bf16_f32 v{CR + d}, v{o}, v{o + 1}',
               f'v_cvt_pk_bf16_f32 v{CI + d}, v{o + 2}, v{o + 3}']
    it.append(atom(f's_mul_i32 s{sT[0]}, s{sG}, 204800', f's_add_u32 s{sT[0]}, s{sT[0]}, {WS_CF}',
                   f's_add_u32 s{sT[1]}, s{sT[0]}, 5120',
                   lambda: vm(f'buffer_store_dwordx4 {v4(CR)}, v{vCd}, {W}, s{sT[0]} offen sc1'),
                   lambda: vm(f'buffer_store_dwordx4 {v4(CI)}, v{vCd}, {W}, s{sT[1]} offen sc1', 'cfst')))
    return it


def consts():
    lre, lim, ldt = PAR, PAR + 1, PAR + 2
    t = 96
    zr, zi, e, rev, sn, cs = t, t + 1, t + 2, t + 3, t + 4, t + 5
    aL, aV, aC = t + 6, t + 7, t + 8
    P = t + 10
    V = ACC
    Wt = 84
    A(f'''v_lshlrev_b32 v{lre}, 16, v{lre}
v_lshlrev_b32 v{lim}, 16, v{lim}
v_lshlrev_b32 v{ldt}, 16, v{ldt}
v_mul_f32 v{ldt}, 0x3fb8aa3b, v{ldt}
v_exp_f32 v{ldt}, v{ldt}
v_min_u32 v{aC}, 39, v{vL}
v_mul_u32_u24 v{aL}, 80, v{aC}
v_mul_u32_u24 v{aV}, 176, v{aC}''')
    rnd_bf16(ldt)
    A(f'''v_mul_f32 v{zr}, v{ldt}, v{lre}
v_mul_f32 v{zi}, v{ldt}, v{lim}
v_mul_f32 v{zr}, 0x3fb8aa3b, v{zr}
v_mul_f32 v{zi}, 0x3e22f983, v{zi}''')
    for kf, dst in (('1.0', P), ('0x41000000', V + 2)):
        A(f'''v_mul_f32 v{e}, {kf}, v{zr}
v_mul_f32 v{rev}, {kf}, v{zi}
v_exp_f32 v{e}, v{e}
v_fract_f32 v{rev}, v{rev}
v_sin_f32 v{sn}, v{rev}
v_cos_f32 v{cs}, v{rev}
v_mul_f32 v{dst + 1}, v{e}, v{sn}
v_mul_f32 v{dst}, v{e}, v{cs}''')
    A(f'''v_mul_f32 v{e}, v{lre}, v{lre}
v_fmac_f32 v{e}, v{lim}, v{lim}
v_rcp_f32 v{e}, v{e}
v_add_f32 v{rev}, -1.0, v{P}
v_add_f32 v{e}, v{e}, v{e}
v_mul_f32 v{sn}, v{rev}, v{lre}
v_fmac_f32 v{sn}, v{P + 1}, v{lim}
v_mul_f32 v{cs}, v{P + 1}, v{lre}
v_fma_f32 v{cs}, -v{rev}, v{lim}, v{cs}
v_mul_f32 v{sn}, v{e}, v{sn}
v_mul_f32 v{cs}, v{e}, v{cs}
v_and_b32 v{e}, 1, v{aC}
v_lshrrev_b32 v{aC}, 1, v{aC}
v_lshlrev_b32 v{aC}, 4, v{aC}
v_lshl_add_u32 v{aC}, v{e}, 2, v{aC}
v_add_u32 v{aC}, {L_C}, v{aC}
v_add_u32 v{aL}, {L_L}, v{aL}
v_add_u32 v{aV}, {L_V}, v{aV}
ds_write2_b32 v{aC}, v{sn}, v{cs} offset0:0 offset1:2
s_waitcnt lgkmcnt(0)
v_mov_b32 v{V}, 1.0
v_mov_b32 v{V + 1}, 0
v_mov_b32 v{Wt}, 1.0
v_mov_b32 v{Wt + 1}, 0''')
    a = [cmul(P + 2 * k, P + 2 * k - 2, P) for k in range(1, 7)]
    b = [cmul(V + 2 * s, V + 2 * s - 2, V + 2) for s in range(2, 17)]
    for s, ops in enumerate(b):
        A(ops[0])
        if s < len(a):
            A(a[s][0])
        A(ops[1])
        if s < len(a):
            A(a[s][1])
        if 6 <= s < 13:
            k = s - 6
            A(f'ds_write2_b32 v{aL}, v{P + 2 * k}, v{P + 2 * k + 1} offset0:{k} offset1:{8 + k}')
        if s % 2 == 1:
            A(f'ds_write_b128 v{aV}, {v4(V + 2 * (s - 1))} offset:{8 * (s - 1)}')
    A(f'ds_write2_b32 v{aL}, v{V + 2}, v{V + 3} offset0:7 offset1:15')
    A(f'ds_write_b128 v{aV}, {v4(V + 28)} offset:112')
    A('\n'.join(cmul(e, V + 32, V + 32) + cmul(Wt + 2, e, e) + cmul(Wt + 4, Wt + 2, Wt + 2) + cmul(Wt + 6, Wt + 4, Wt + 2)))
    A(f'''ds_write_b64 v{aV}, {v2(V + 32)} offset:128
ds_write_b128 v{aV}, {v4(Wt)} offset:144
ds_write_b128 v{aV}, {v4(Wt + 4)} offset:160''')


def const_reads(lg):
    t = vT
    it = lines(f'''v_lshrrev_b32 v{t[0]}, 1, v{vI}
v_mul_u32_u24 v{t[1]}, 176, v{t[0]}
v_mul_u32_u24 v{t[0]}, 80, v{t[0]}
v_and_b32 v{t[2]}, 1, v{vI}
v_lshl_add_u32 v{t[1]}, v{t[2]}, 2, v{t[1]}
v_lshl_add_u32 v{t[1]}, v{vQ}, 3, v{t[1]}
s_lshl_b32 s{sT[0]}, s{sW}, 5
s_add_u32 s{sT[0]}, s{sT[0]}, {L_V}
v_add_u32 v{t[1]}, s{sT[0]}, v{t[1]}
v_add_u32 v{t[0]}, {L_L}, v{t[0]}
v_cvt_f32_u32 v{vSgn}, v{t[2]}
v_min_u32 v{t[2]}, 39, v{vL}
v_mul_u32_u24 v{t[2]}, 176, v{t[2]}
v_fma_f32 v{vSgn}, 2.0, v{vSgn}, -1.0
v_add_u32 v{t[2]}, {L_V}, v{t[2]}
s_lshl_b32 s{sT[0]}, s{sW}, 3''')
    for j in range(5):
        it.append(lambda j=j: lg(f'ds_read_b32 v{LR + j}, v{t[0]} offset:{j * 640}'))
        it.append(lambda j=j: lg(f'ds_read_b32 v{LS + j}, v{t[0]} offset:{j * 640 + 32}'))
        it.append(lambda j=j: lg(f'ds_read_b32 v{VA + 2 * j}, v{t[1]} offset:{j * 1408}'))
    it.append(lambda: lg(f'ds_read_b64 {v2(mL8)}, v{t[2]} offset:8'))
    it.append(lambda: lg(f'ds_read_b64 {v2(mL128)}, v{t[2]} offset:128'))
    it.append(f'v_add_u32 v{t[2]}, s{sT[0]}, v{t[2]}')
    it.append(lambda: lg(f'ds_read_b64 {v2(mW)}, v{t[2]} offset:144', 'cst'))
    fix = [lambda: lg.wait('cst')]
    for j in range(5):
        fix += [f'v_mul_f32 v{LS + j}, v{vSgn}, v{LS + j}',
                f'v_mul_f32_dpp v{VA + 2 * j + 1}, v{VA + 2 * j}, v{vSgn} {SWP}']
    return it, fix


def kv_work(vm, lg):
    rd = [lambda: lg(f'ds_read_b128 {v4(SKW)}, v{vSR}'), lambda: lg(f'ds_read_b128 {v4(SKW + 4)}, v{vSR} offset:16', 'skw')]
    for r in range(11):
        off = 1056 + (r - 3) * 128 if r >= 3 else (5 + r) * 128
        rd.append(lambda r=r, off=off: lg(f'ds_read_b64 {v2(KK + 2 * r)}, v{vKR} offset:{off}', 'kk'))
    for r in range(8):
        rd.append(lambda r=r: lg(f'ds_read_b64 {v2(VV + 2 * r)}, v{vKR} offset:{VOFF + 1056 + r * 128}', 'vv'))
    it = [lambda: lg.wait('skw')]
    for e in range(4):
        for i in range(4):
            src = SKW + 2 * e + (i >> 1)
            it.append(f'v_and_b32 v{WW + 4 * i + e}, 0xffff0000, v{src}' if i & 1 else
                      f'v_lshlrev_b32 v{WW + 4 * i + e}, 16, v{src}')
    it.append(lambda: lg.wait('kk'))
    for d in range(2):
        pend = []
        for r in range(11):
            tmp = KT + 2 * (r % 2)
            it += unpack(tmp, KK + 2 * r + d, 1) if r == 0 else []
            nxt = unpack(KT + 2 * ((r + 1) % 2), KK + 2 * (r + 1) + d, 1) if r < 10 else []
            ops = []
            for stage in range(4):
                ta = r - stage
                if 0 <= ta < 8:
                    w = v2(WW + 4 * (3 - stage) + 2 * d)
                    ac = v2(AC + 2 * ta)
                    ops.append(f'v_pk_mul_f32 {ac}, {v2(tmp)}, {w}' if stage == 0 else
                               f'v_pk_fma_f32 {ac}, {v2(tmp)}, {w}, {ac}')
            it += ops[:1] + nxt + ops[1:]
        it.append(lambda: lg.wait('vv'))
        for ta in range(8):
            tmp = KT + 4 + 2 * (ta % 2)
            it += unpack(tmp, VV + 2 * ta + d, 1) + pend
            pend = [f'v_pk_mul_f32 {v2(AC + 2 * ta)}, {v2(AC + 2 * ta)}, {v2(tmp)}']
        it += pend
        for eo in range(2):
            for dd in range(4):
                it.append(f'v_cvt_pk_bf16_f32 v{OUT[2 * d + eo] + dd}, v{AC + 2 * (7 - 2 * dd) + eo}, '
                          f'v{AC + 2 * (6 - 2 * dd) + eo}')

    def st():
        ls = []
        for e in range(4):
            if e:
                ls.append(f's_add_u32 s{sX[0]}, s{sX[0]}, s{sKs}')
            ls.append(f'buffer_store_dwordx4 {v4(OUT[e])}, v{vKS}, {W}, s{sX[0]} offen')
        mode_stores(ls, sKm, OPT['thr'] & 1)
        vm.n += 4
        vm.t['kvst'] = vm.n
    it.append(st)
    return rd, it


def stats_work(vm):
    S, Q, ad = XS, XS + 2, vT[0]
    it = [lambda: vm.wait('xp')]
    for i in range(40):
        it.append(f'v_dot2_f32_bf16 v{S}, v{XP + i}, s{sOnes}, ' + (f'v{S}' if i else '0'))
        it.append(f'v_dot2_f32_bf16 v{Q}, v{XP + i}, v{XP + i}, ' + (f'v{Q}' if i else '0'))
    with Cap() as c:
        for mod in ('quad_perm:[1,0,3,2]', 'quad_perm:[2,3,0,1]', 'row_half_mirror'):
            A(f'v_add_f32_dpp v{S}, v{S}, v{S} {mod} {DPPM}')
            A(f'v_add_f32_dpp v{Q}, v{Q}, v{Q} {mod} {DPPM}')
        inv = 0x3acccccd
        A(f'''v_mul_f32 v{S}, {inv:#x}, v{S}
v_mul_f32 v{Q}, {inv:#x}, v{Q}
v_fma_f32 v{Q}, -v{S}, v{S}, v{Q}
v_max_f32 v{Q}, 0, v{Q}''')
        rnd_bf16(S)
        rnd_bf16(Q)
        A(f'v_add_f32 v{Q}, 0x3727c5ac, v{Q}')
        rnd_bf16(Q)
        A(f'v_sqrt_f32 v{Q}, v{Q}')
        rnd_bf16(Q)
        A(f'''v_rcp_f32 v{S + 1}, v{Q}
v_mov_b32 v{Q}, s{sTag}
v_mov_b32 v{Q + 1}, s{sTag}''')

    def st():
        A(f'''v_lshlrev_b32 v{ad}, 1, v{vL}
s_lshl_b32 s{sT[0]}, s{sR128}, 4
s_add_u32 s{sT[0]}, s{sT[0]}, s{sMem}
s_lshl_b32 s{sT[0]}, s{sT[0]}, 7
s_add_u32 s{sT[0]}, s{sT[0]}, {WS_RS}
s_mov_b32 exec_lo, 0x01010101
s_mov_b32 exec_hi, 0x01010101''')
        vm(f'buffer_store_dwordx4 {v4(S)}, v{ad}, {W}, s{sT[0]} offen sc1')
        A('s_mov_b64 exec, -1')
    return it + c.lines + [st]


def colsum_work(vm):
    cs = XS
    it = [lambda: vm.wait('xp')]
    for i in range(40):
        it.append(f'v_dot2_f32_bf16 v{cs + (i & 1)}, v{XP + i}, s{sOnes}, ' + (f'v{cs + (i & 1)}' if i > 1 else '0'))
    it.append(f'v_add_f32 v{cs}, v{cs}, v{cs + 1}')
    for mod in ('quad_perm:[1,0,3,2]', 'quad_perm:[2,3,0,1]', 'row_half_mirror'):
        it.append(f'v_add_f32_dpp v{cs}, v{cs}, v{cs} {mod} {DPPM}')

    def st():
        A(f"""v_mov_b32 v{cs + 1}, s{sTag}
v_lshlrev_b32 v{vT[0]}, 1, v{vL}
s_lshl_b32 s{sT[0]}, s{sMem}, 3
s_and_b32 s{sT[1]}, s{sR128}, 7
s_add_u32 s{sT[0]}, s{sT[0]}, s{sT[1]}
s_mul_i32 s{sT[0]}, s{sT[0]}, 80
s_and_b32 s{sT[1]}, s{sR128}, 8
s_add_u32 s{sT[0]}, s{sT[0]}, s{sT[1]}
s_add_u32 s{sT[0]}, s{sT[0]}, {WS_CS}
s_mov_b32 exec_lo, 0x01010101
s_mov_b32 exec_hi, 1""")
        vm(f'buffer_store_dwordx2 {v2(cs)}, v{vT[0]}, {W}, s{sT[0]} offen sc1')
        A('s_mov_b64 exec, -1')
    return it + [st]


def fx_store(mods):
    A(f"""s_lshl_b32 s{sT[0]}, s{sG}, 11
s_lshl_b32 s{sT[1]}, s{sJ}, 2
s_add_u32 s{sT[0]}, s{sT[0]}, s{sT[1]}
s_add_u32 s{sT[0]}, s{sT[0]}, {WS_FX}
s_or_b32 s{sT[1]}, s{sTag}, s{sXcc}
v_mov_b32 v{vT[4]}, s{sT[1]}
s_mov_b64 exec, 1
buffer_store_dword v{vT[4]}, off, {W}, s{sT[0]}{mods}
s_mov_b64 exec, -1""")


def mode_check(vm):
    t, x, fa, so = vFX, vT[4], vFXa, sX[2]
    vm.wait('fx')
    lab, done = A.label('again'), A.label('ok')
    A.cond[lab] = lambda c: False
    A(f"""v_xor_b32 v{x}, s{sTag}, v{t}
v_cmp_lt_u32 vcc, 15, v{x}
s_cbranch_vccnz {lab}
{done}:""")
    TAIL.append(f"""{lab}:
s_sub_u32 s{sBud}, s{sBud}, 1
s_cmp_gt_i32 s{sBud}, 0
s_cbranch_scc0 {done}
buffer_load_dword v{t}, v{fa}, {W}, s{so} offen sc1
s_waitcnt vmcnt(0)
v_xor_b32 v{x}, s{sTag}, v{t}
v_cmp_lt_u32 vcc, 15, v{x}
s_cbranch_vccz {done}
s_and_b32 s{sT[1]}, s{sBud}, 3
s_cbranch_scc1 {lab}
buffer_load_dword v{t}, v{fa}, {W}, s{so} offen offset:128 sc1
s_waitcnt vmcnt(0)
v_xor_b32 v{x}, s{sTag}, v{t}
v_cmp_lt_u32 vcc, 15, v{x}
s_cbranch_vccnz {lab}
s_branch {done}""")
    A(f"""s_or_b32 s{sT[1]}, s{sTag}, s{sXcc}
v_cmp_ne_u32 vcc, s{sT[1]}, v{t}
s_cmp_eq_u64 vcc, 0
s_cselect_b32 s{sMode}, {0 if OPT['force_slow'] else 1}, 0
s_cmp_eq_u32 s{sW}, 2
s_cselect_b32 s{sKm}, 0, s{sMode}""")


def gemm_addr():
    t = vT
    A(f"""v_and_b32 v{t[0]}, 1, v{vI}
v_lshrrev_b32 v{t[1]}, 1, v{vI}
v_and_b32 v{t[2]}, 6, v{t[1]}
s_movk_i32 s{sT[3]}, 0x78
v_bfe_u32 v{t[2]}, s{sT[3]}, v{t[2]}, 2
v_xor_b32 v{t[2]}, v{t[2]}, v{vQ}
v_lshl_add_u32 v{t[2]}, v{t[0]}, 2, v{t[2]}
v_lshlrev_b32 v{t[2]}, 4, v{t[2]}
v_lshl_add_u32 v{t[2]}, v{t[1]}, 7, v{t[2]}
v_lshl_add_u32 v{vBA[0]}, v{t[0]}, 10, v{t[2]}
v_xor_b32 v{vBA[1]}, 64, v{vBA[0]}
v_add_u32 v{vBA[2]}, 51200, v{vBA[0]}
v_add_u32 v{vBA[3]}, 51200, v{vBA[1]}
v_mul_u32_u24 v{vAS}, 144, v{t[1]}
v_lshl_add_u32 v{vAS}, v{t[0]}, 2, v{vAS}
v_lshl_add_u32 v{vAS}, v{vQ}, 3, v{vAS}
s_lshl_b32 s{sT[0]}, s{sW}, 5
v_add_u32 v{vAS}, s{sT[0]}, v{vAS}
v_and_b32 v{t[0]}, 6, v{vI}
v_xor_b32 v{t[0]}, v{t[0]}, v{vQ}
v_lshlrev_b32 v{t[0]}, 4, v{t[0]}
v_lshl_add_u32 v{t[0]}, v{vI}, 7, v{t[0]}
v_add_u32 v{vAR}, s{sXm}, v{t[0]}
v_xor_b32 v{vAR2}, 64, v{vAR}""")


def misc_setup():
    t = vT
    A(f'''s_lshr_b32 s{sCs}, s{sX[8]}, 1
s_add_u32 s{sCs}, s{sCs}, 512
s_lshr_b32 s{sT[2]}, s{sMem}, 3
s_lshl_b32 s{sR64}, s{sR128}, 1
s_add_u32 s{sR64}, s{sR64}, s{sT[2]}
s_and_b32 s{sS8}, s{sMem}, 7
s_lshl_b32 s{sFW}, s{sR128}, 10
s_lshl_b32 s{sT[1]}, s{sMem}, 4
s_add_u32 s{sFW}, s{sFW}, s{sT[1]}
s_lshl_b32 s{sT[1]}, s{sW}, 2
s_add_u32 s{sFW}, s{sFW}, s{sT[1]}
s_lshl_b32 s{sFK}, s{sG}, 11
s_add_u32 s{sFK}, s{sFK}, s{sT[1]}
s_lshl_b32 s{sT[1]}, s{sJ}, 4
s_add_u32 s{sFK}, s{sFK}, s{sT[1]}
s_lshl_b32 s{sAgg}, s{sMem}, 5
s_add_u32 s{sAgg}, s{sAgg}, s{sR128}
s_mul_i32 s{sAgg}, s{sAgg}, 640
s_add_u32 s{sAgg}, s{sAgg}, {WS_AGG}
s_cmp_eq_u32 s{sW}, 0
s_cselect_b32 s{sPub}, -1, 0
s_cselect_b32 s{sPub + 1}, 0xff, 0''')
    A(f's_lshl_b32 s{sT[0]}, s{sXs}, 1\ns_mul_i32 s{sT[1]}, s{sMem}, 5')
    for j in range(5):
        A(f"""s_add_u32 s{sT[2]}, s{sT[1]}, {j}
s_lshr_b32 s{sT[3]}, s{sT[2]}, 2
s_lshl_b32 s{sT[3]}, s{sT[3]}, 11
s_and_b32 s{sT[2]}, s{sT[2]}, 3
s_lshl_b32 s{sT[2]}, s{sT[2]}, 8
s_add_u32 s{sT[2]}, s{sT[2]}, s{sT[3]}
s_add_u32 s{sH[j]}, s{sT[2]}, s{sT[0]}""")
    tw, tr, ts = vU[0], vU[1], vU[2]
    A(f'''s_mul_i32 s{sT[0]}, s{sW}, 1280
s_add_u32 s{sT[0]}, s{sT[0]}, {L_TR}
v_mul_u32_u24 v{t[0]}, 80, v{vI}
v_lshl_add_u32 v{t[0]}, v{vQ}, 4, v{t[0]}
v_add_u32 v{tw}, s{sT[0]}, v{t[0]}
v_bfe_u32 v{t[1]}, v{vL}, 2, 2
v_mul_u32_u24 v{t[1]}, 160, v{t[1]}
v_and_b32 v{t[2]}, 3, v{vL}
v_lshl_add_u32 v{t[1]}, v{t[2]}, 4, v{t[1]}
v_lshrrev_b32 v{t[2]}, 1, v{vQ}
v_mul_u32_u24 v{t[3]}, 80, v{t[2]}
v_lshlrev_b32 v{t[2]}, 10, v{t[2]}
v_add3_u32 v{t[1]}, v{t[1]}, v{t[3]}, s{sT[0]}
v_and_b32 v{t[3]}, 1, v{vQ}
v_lshl_add_u32 v{tr}, v{t[3]}, 3, v{t[1]}
v_mul_u32_u24 v{t[3]}, 40960, v{t[3]}
v_lshl_add_u32 v{t[2]}, v{vI}, 4, v{t[2]}
v_add_u32 v{ts}, v{t[2]}, v{t[3]}''')
    park('tw', tw), park('tr', tr), park('ts', ts), park('bd', vBd), park('bd2', vBd2)
    A(f'''v_lshrrev_b32 v{t[0]}, 2, v{vI}
v_mul_u32_u24 v{t[0]}, 5120, v{t[0]}
v_and_b32 v{t[1]}, 3, v{vI}
v_lshl_add_u32 v{t[0]}, v{t[1]}, 4, v{t[0]}
v_lshl_add_u32 v{vUA}, v{vQ}, 6, v{t[0]}''')


def weave(items, extra, first, every):
    extra = list(extra)
    for i, it in enumerate(lines(items)):
        run(it)
        if extra and i >= first and (i - first) % every == 0:
            run(extra.pop(0))
    run(extra)


class Roles:
    def __init__(self, n):
        self.c = [VM() for _ in range(n)]

    def __call__(self, text, name=None):
        A(text)
        for c in self.c:
            c.n += 1
            if name is not None:
                c.t[name] = c.n

    def wait(self, *names):
        k = min(c.n - max(c.t[x] for x in names) for c in self.c)
        A(f's_waitcnt vmcnt({min(k, 63)})')
        for c in self.c:
            c.done = max(c.done, c.n - min(k, 63))

    def each(self, fns):
        lj = A.label('join')
        todo = [w for w in range(4) if fns[w]]
        labs = {w: A.label(f'w{w}') for w in todo}
        for w in todo:
            A.cond[labs[w]] = lambda c, w=w: c['w'] == w
            if w != todo[0] or len(todo) < 4:
                A(f's_cmp_eq_u32 s{sW}, {w}\ns_cbranch_scc1 {labs[w]}')
        if len(todo) < 4:
            A(f's_branch {lj}')
        for w in todo:
            A(f'{labs[w]}:')
            fns[w](self.c[w])
            if w != todo[-1]:
                A(f's_branch {lj}')
        A(f'{lj}:')

    def merged(self):
        for c in self.c[1:]:
            self.c[0].merge(c)
        return self.c[0]


def more():
    pk = lambda regs, o: [f'v_accvgpr_write_b32 a{A_CV + o + i}, v{r}' for i, r in enumerate(regs)]
    return [atom(f'''s_lshl_b32 s{sX[6]}, s{sR128}, 11
s_lshl_b32 s{sT[0]}, s{sW}, 9
s_add_u32 s{sX[6]}, s{sX[6]}, s{sT[0]}
s_add_u32 s{sX[6]}, s{sX[6]}, {WS_RS}
v_and_b32 v{vRS}, 7, v{vI}
v_lshlrev_b32 v{vRS}, 4, v{vRS}
v_lshl_add_u32 v{vRS}, v{vQ}, 7, v{vRS}
s_mul_i32 s{sX[7]}, s{sMem}, 640
s_add_u32 s{sX[7]}, s{sX[7]}, {WS_CS}
v_lshlrev_b32 v{vRS + 1}, 3, v{vL}
v_lshlrev_b32 v{vRS + 2}, 3, v{vI}
v_and_b32 v{vFA}, 31, v{vL}
v_lshlrev_b32 v{vFA}, 4, v{vFA}
s_lshl_b32 s{sX[1]}, s{sS8}, 11
s_add_u32 s{sX[1]}, s{sX[1]}, {WS_FS}'''),
            atom(conv_setup(), pk(vCA + vCB, 0)), atom(lambda: g2_setup(0), pk(G2REG, 11)), atom(y_setup(), pk(YREG, 4)),
            z_addr, atom(lambda: touch_addr(vT[0], [SEG_ST, SEG_F]), lambda: park('rt', vT[0]))]


def startup():
    t = vT
    R = Roles(4)

    def bs(vm, g0, g1):
        return [lambda g=g, j=j: b_dma(vm, g, j) for g in range(g0, g1) for j in (0, 2, 4)]

    def head1(vm):
        A(f"""v_min_u32 v{t[0]}, 39, v{vL}
s_mul_i32 s{sT[0]}, s{sMem}, 80
v_lshl_add_u32 v{t[3]}, v{t[0]}, 1, s{sT[0]}""")
        vm(f'global_load_ushort v{PAR}, v{t[3]}, {s2(P_LRE)}{NTP}')
        vm(f'global_load_ushort v{PAR + 1}, v{t[3]}, {s2(P_LIM)}{NTP}')
        vm(f'global_load_ushort v{PAR + 2}, v{t[3]}, {s2(P_LDT)}{NTP}', 'par')

    def head0(vm):
        kv_loads0(vm)
        srd(R_WS, P_WS, WS_SIZE)
        agg = f's_lshl_b32 $, s{sMem}, 5\ns_add_u32 $, $, s{sR128}\ns_mul_i32 $, $, 640\ns_add_u32 $, $, '
        n = touch_addr(t[0], [SEG_ST][:OPT['t0']] + [SEG_F, (9, f's_lshl_b32 $, s{sG}, 11\ns_add_u32 $, $, {WS_FK}'),
                              (5, agg + str(WS_AGG + 16 * 640)), (5, agg + str(WS_AGG + 16 * 640 + AGG_L)),
                              (5, f's_mul_i32 $, s{sMem}, 640\ns_add_u32 $, $, {WS_CS}'),
                              (1, f's_lshl_b32 $, s{sG}, 7\ns_add_u32 $, $, {WS_FY}'),
                              (1, f's_lshl_b32 $, s{sG}, 7\ns_add_u32 $, $, {WS_FB}')])
        A(f's_mov_b32 exec_hi, {(1 << n - 32) - 1}')
        vm(f'buffer_load_dword a250, v{t[0]}, {W}, 0 offen{NTT}')
        A('s_mov_b32 exec_hi, -1')

    def head3(vm):
        srd(R_X, P_X, 2621440)
        A(f'''s_lshl_b32 s{sT[0]}, s{sR128}, 4
s_add_u32 s{sT[0]}, s{sT[0]}, s{sMem}
s_mul_i32 s{sT[0]}, s{sT[0]}, 10240''')
        vm.t['kv'] = 0
        for z in range(10):
            vm(f'buffer_load_dwordx4 {v4(XP + 4 * z)}, v{vR}, {s4(R_X)}, s{sT[0]} offen offset:{z * 128}{NTX}', 'xp')
    def args():
        A('s_waitcnt lgkmcnt(0)')
        if OPT['stamps']:
            A(f'v_writelane_b32 v{vStamp}, s{sSt}, 62')
            stamp('start')
    R.each([lambda vm, f=f: (args(), f(vm)) for f in (head0, lambda vm: (head1(vm), kv_loads1(vm)), kv_loads2, head3)])
    A(f's_load_dword s{sTag}, {s2(P_WS)}, 0')

    def scalars():
        A(f'''s_lshl_b32 s{sC0}, s{sX[8]}, 1
s_lshl_b32 s{sT[0]}, s{sC0}, 1
s_load_dword s{sD[0]}, {s2(P_SD)}, s{sT[0]}
s_and_b32 s{sT[0]}, s{sX[8]}, 0xfffffffc
s_add_u32 s{sT[0]}, s{sT[0]}, 1024
s_load_dword s{sD[1]}, {s2(P_SD)}, s{sT[0]}
v_and_b32 v{vFXa}, 31, v{vL}
v_lshlrev_b32 v{vFXa}, 2, v{vFXa}
s_lshl_b32 s{sX[2]}, s{sG}, 11
s_add_u32 s{sX[2]}, s{sX[2]}, {WS_FX}
s_getreg_b32 s{sXcc}, hwreg(HW_REG_XCC_ID, 0, 4)
s_mov_b32 s{sBud}, {OPT['budget']}
s_mov_b32 s{sOnes}, 0x3f803f80''')
    with Cap() as cc:
        consts()
    cc.lines.remove('s_waitcnt lgkmcnt(0)')

    def tag():
        A(f"""s_waitcnt lgkmcnt(0)
s_lshr_b32 s{sTag}, s{sTag}, 4
s_mul_i32 s{sTag}, s{sTag}, 0x19660d
s_add_u32 s{sTag}, s{sTag}, 0x3c6ef35f
s_lshl_b32 s{sTag}, s{sTag}, 4""")

    def w0(vm):
        A(f'v_mov_b32 v{XS}, 0')
        fx_store('')
        fx_store(' offset:128 sc1')
        vm.n += 2
        A(f'''v_mov_b32 v{XS + 1}, 0
v_mov_b32 v{XS + 2}, s{sTag}
v_mov_b32 v{XS + 3}, s{sTag}
s_add_u32 s{sT[0]}, s{sAgg}, {AGG_L}
s_mov_b32 exec_hi, 0xff''')
        vm(f'buffer_store_dwordx4 {v4(XS)}, v{vL16}, {W}, s{sAgg} offen sc1')
        vm(f'buffer_store_dwordx4 {v4(XS)}, v{vL16}, {W}, s{sT[0]} offen sc1')
        A('s_mov_b32 exec_hi, -1')

    def w1(vm):
        vm.wait('par')
        run(cc.lines)
    blocks = dict(A=dma_addr, S=scalars, M=misc_setup, C=lambda: c_loads(R), O=lambda: run(more()), T=tag,
                  G=lambda: (gemm_addr(), kv_addr(), k_addr()), K=lambda: run(k_loads(R)),
                  R=lambda: R.each([None, w1, w0, lambda vm: run(stats_work(vm))]))
    for b in OPT['order'].split(','):
        if b[0] == 'B':
            run(bs(R, int(b[1]), int(b[1]) + 1))
        elif b[0] == 'X':
            x_dma(R, int(b[1]))
        elif b[0] == '@':
            stamp(b[1:])
        else:
            blocks[b]()
    R.wait('kv')
    A('s_waitcnt lgkmcnt(0)\ns_barrier')
    stamp('kv_land')
    R(f'buffer_load_dword v{vFX}, v{vFXa}, {W}, s{sX[2]} offen sc1', 'fx')
    lg = LG()
    crd, fix = const_reads(lg)
    run(crd)
    va, vb = R.c[0], R.c[3]
    va.merge(R.c[1]), va.merge(R.c[2])
    l3, lj = A.label('w3'), A.label('join')
    A.cond[l3] = lambda c: c['w'] == 3
    A(f's_cmp_eq_u32 s{sW}, 3\ns_cbranch_scc1 {l3}')
    def nxt(v):
        out = []
        for b in OPT['post'].split(','):
            if b[0] == 'L':
                if v is vb:
                    out += [lambda g=int(b[1]): b_all(v, g)]
                else:
                    v.t['b', int(b[1])] = 0
                continue
            if b[0] == 'C':
                out.append(lambda: c_loads(v))
                continue
            out += bs(v, int(b[1]), int(b[1]) + 1) if b[0] == 'B' else [lambda b=b: x_dma(v, int(b[1]))] if b[0] == 'X' else \
                [atom(k_loads(v)[:3]), atom(k_loads(v)[3:5]), atom(k_loads(v)[5:])]
        return out
    la = copy.deepcopy(lg)
    rd, it = kv_work(va, la)
    run(rd)
    weave(it[:-1], nxt(va), OPT['wv0'], OPT['wv'])
    if not OPT['mlate']:
        mode_check(va)
    if not OPT['kvd']:
        run(it[-1])
    A(f's_branch {lj}\n{l3}:')
    A(f'v_mov_b32 v{vKS}, {OOB}')
    A(f'''s_lshl_b32 s{sT[0]}, s{sMem}, 3
s_and_b32 s{sT[1]}, s{sR128}, 7
s_add_u32 s{sT[0]}, s{sT[0]}, s{sT[1]}
s_mul_i32 s{sT[0]}, s{sT[0]}, 6400
s_mov_b32 exec_hi, 0xff''')
    for z in range(1 if OPT['dbg'] & 8 else 10):
        vb(f'buffer_load_dwordx4 {v4(XP + 4 * z)}, v{vR}, {s4(R_T0)}, s{sT[0]} offen offset:{z * 128}', 'xp')
    A('s_mov_b32 exec_hi, -1')
    run(nxt(vb))
    if not OPT['mlate']:
        mode_check(vb)
    run(colsum_work(vb))
    A(f'{lj}:\ns_waitcnt lgkmcnt(0)')
    va.merge(vb)
    vm = va
    stamp('kv_st')
    run(fix[1:])
    if OPT['cfs'] < 0:
        run(cf_work(vm, LG()))
    stamp('cf_st')
    vm.wait(('x', 1), ('b', 0))
    stamp('land')
    return vm


class G1:
    def __init__(self, layer, vm):
        self.layer, self.vm, self.lg, self.side = layer, vm, LG(), Side()
        self.order = list(range(20)) if layer == 0 else list(range(4, 20)) + list(range(4))

    def rd(self, s, j):
        k = self.order[s]
        idx = (k >> 1) * 5 + j
        a, off = (vBA[k & 1], idx * 2048) if idx < 25 else (vBA[2 + (k & 1)], (idx - 25) * 2048)
        self.lg(f'ds_read_b128 {v4(BF + 20 * (s & 1) + 4 * j)}, v{a} offset:{off}', ('B', s, j))

    def rda(self, s, m):
        self.lg(f'ds_read_b128 {v4(AF + 8 * (s & 1) + 4 * m)}, v{vAR2 if s & 1 else vAR} '
                f'offset:{((2 * (s >> 1) + m) % 7) * 8192}', ('A', s, m))

    def ld(self, f):
        s, m = divmod(f, 2)
        s = self.order[s]
        if s == 16:
            A(f's_add_u32 s{sL[m]}, s{sL[m]}, 4096')
        if s == 0:
            A(f's_sub_u32 s{sL[m]}, s{sL[m]}, 4096')
        self.vm(f'buffer_load_dwordx4 {v4(RING + 4 * (f % NR))}, v{vUA}, {WU}, s{sL[m]} offen '
                f'offset:{(s % 16) * 256} sc1', ('u', f))

    def step(self, s):
        vm, lg, layer = self.vm, self.lg, self.layer
        if (s in (0, 4, 8, 12, 16) and OPT['stamps'] != 3) or (OPT['stamps'] == 4 and layer == 0):
            stamp(f'.s{s}_{layer}', 2)
        if layer == 0:
            need = [('x', s + 2)] if s & 1 and s < 19 else []
            if s in (3, 7, 11, 15)[:OPT['nbar']]:
                g = (s + 1) // 4
                vm.wait(*[('b', x) for x in range(g, 5 if g == OPT['nbar'] else g + 1)], *need)
                A('s_barrier')
            elif need:
                vm.wait(*need)
        else:
            vm.wait(('u', 2 * s + 1))
            if s == 15:
                A('s_barrier')
        for j in range(5):
            if not OPT['gw'] or s == 0:
                lg.wait(('B', s, j))
            elif j in (0, 3):
                lg.wait(('B', s, 2 if j == 0 else 4))
            if layer == 0 and s == 19 and j == 0:
                A('s_barrier')
            for m in range(2):
                d = ACC + 8 * j + 4 * m
                c = '0' if s == 0 else v4(d)
                a = RING + 4 * ((2 * s + m) % NR) if layer else AF + 8 * (s & 1) + 4 * m
                A(f'v_mfma_f32_16x16x32_bf16 {v4(d)}, {v4(a)}, {v4(BF + 20 * (s & 1) + 4 * j)}, {c}')
                if m == 0 and s < 19:
                    if j == 0 and layer == 0:
                        self.rda(s + 1, 0)
                        self.rda(s + 1, 1)
                    self.rd(s + 1, j)
                if layer == 0 or m == 1:
                    k = 2 * j + m
                    self.side.run(s, 10 - k if layer == 0 else 5 - j)


c_issued = [0]


def c_load(vm):
    i = c_issued[0]
    c_issued[0] += 1
    if OPT['dbg'] & 1024 and i % 5:
        return
    if i and i % 4 == 0:
        A(f's_add_u32 s{sL[0]}, s{sL[0]}, 4096')
    vm(f'buffer_load_dwordx4 {a4(4 * i)}, v{vL16}, {W}, s{sL[0]} offen offset:{(i % 4) * 1024} sc1', 'cf')


def k_addr():
    A(f'''s_lshl_b32 s{sT[0]}, s{sC0}, 12
s_lshl_b32 s{sT[1]}, s{sW}, 10
s_add_u32 s{sX[3]}, s{sT[0]}, s{sT[1]}
s_add_u32 s{sX[4]}, s{sX[3]}, 4096
s_lshl_b32 s{sX[5]}, s{sCs}, 12
s_add_u32 s{sX[5]}, s{sX[5]}, s{sT[1]}
s_add_u32 s{sT[1]}, s{sT[1]}, {L_K + 32}
v_add_u32 v{vKO}, s{sT[1]}, v{vL16}
v_lshrrev_b32 v{vT[0]}, 1, v{vL}
v_mul_u32_u24 v{vT[0]}, 4160, v{vT[0]}
v_and_b32 v{vT[1]}, 1, v{vL}
v_lshl_add_u32 v{vT[0]}, v{vT[1]}, 4, v{vT[0]}
v_add_u32 v{vKP}, {L_K}, v{vT[0]}''')


def k_loads(vm):
    it = [lambda: srd(R_T1, P_SSK, 2621440)]
    for sl in range(3):
        if not OPT['dbg'] & 2:
            it.append(lambda sl=sl: vm(f'buffer_load_dwordx4 {v4(KA + 4 * sl)}, v{vL16}, {s4(R_T1)}, s{sX[3 + sl]} offen{NTK}'))
        it.append(lambda sl=sl: vm(f'buffer_load_dwordx4 {v4(KB + 4 * sl)}, v{vL16}, {s4(R_T1)}, s{sX[3 + sl]} offen offset:4{NTK}', 'K'))
    return it


def k_work(vm):
    it = [lambda: vm.wait('K')]
    for sl in range(3):
        it[-1] = atom(it[-1], f'ds_write_b128 v{vKO}, {v4(KA + 4 * sl)} offset:{sl * 8320}')
        it.append(atom([f'v_alignbit_b32 v{KB + 4 * sl + i}, v{KB + 4 * sl + i}, v{KA + 4 * sl + i}, 16' for i in range(4)],
                       f'ds_write_b128 v{vKO}, {v4(KB + 4 * sl)} offset:{sl * 8320 + 4160}'))

    def pads():
        A(f's_cmp_lg_u32 s{sW}, 0')
        with A.skip_if('s_cbranch_scc1', lambda c: c['w'] != 0):
            run([f'v_mov_b32 v{216 + i}, 0' for i in range(4)])
            A(f's_mov_b64 exec, 0xfff\nds_write_b128 v{vKP}, {v4(216)}\ns_mov_b64 exec, 1')
            for sl in range(3):
                A(f'ds_write_b16 v{vKP}, v{KA + 4 * sl} offset:{sl * 8320 + 4160 + 30}')
            A('s_mov_b64 exec, -1')
    return it + [pads]


def front(vm):
    g = G1(0, vm)
    lg, S = g.lg, g.side
    A('s_barrier')
    g.rda(0, 0), g.rda(0, 1)
    for j in range(5):
        g.rd(0, j)
    for p in (2, 3):
        if ('x', p) not in vm.t:
            x_dma(vm, p)
    if 'O' not in OPT['order']:
        S.spread(OPT['os'], OPT['oper'], more())
    if OPT['cfs'] >= 0:
        S.spread(OPT['cfs'], OPT['cfper'], cf_work(vm, lg))
    if 'K' not in vm.t:
        S.spread(OPT['kls'], 3, k_loads(vm))
    S.add(0, lambda: x_dma(vm, 4), lambda: x_dma(vm, 5))
    if OPT['kvd']:
        S.add(OPT['kvd'] - 1, kv_work(vm, None)[1][-1])
    for p in range(6, 20):
        S.add(max(1, p - 6), lambda p=p: x_dma(vm, p))
    for gi in range(1, 5):
        if ('b', gi) in vm.t:
            continue
        for n, j in enumerate((0, 2, 4)):
            S.add(OPT[f'b{gi}s'] + n // 2, lambda gi=gi, j=j: b_dma(vm, gi, j))
    if OPT['mlate']:
        assert OPT['thr'] & 1
        S.add(OPT['kvf'] - 1, lambda: mode_check(vm))
    S.add(OPT['kvf'], atom(lambda: vm.wait('kvst'), lambda: flag_store(f's{sKf}', True, vm, sKm)))
    S.add(OPT['cff'], atom(lambda: vm.wait('cfst'), f's_add_u32 s{sT[0]}, s{sFK}, {WS_FS}',
                           lambda: flag_store(f's{sT[0]}', False, vm)))
    fk = f'buffer_load_dwordx2 {v2(vFP)}, v{vFA}, {W}, s{sX[0]} offen sc1'
    S.add(OPT['fsp'], atom(f's_and_b32 s{sX[0]}, s{sFK}, 0x3800', f's_add_u32 s{sX[0]}, s{sX[0]}, {WS_FK}', lambda: vm(fk, 'fk')))

    def fetch():
        vm.wait('fk')
        check_tags([vFP, vFP + 1], fk)
        for sl in range(2):
            A(f's_lshl_b32 s{sT[0]}, s{sG}, 16\ns_add_u32 s{sT[0]}, s{sT[0]}, s{sX[3 + sl]}\n'
              f's_add_u32 s{sT[0]}, s{sT[0]}, {WS_KV}\ns_lshl_b32 m0, s{sW}, 10')
            if sl:
                A(f's_add_u32 m0, m0, {L_KV + sl * 4608}')
            vm(f'buffer_load_dwordx4 v{vL16}, {W}, s{sT[0]} offen sc1 lds', 'kvT')
    assert OPT['fsc'] >= 7
    S.add(OPT['fsc'], fetch)
    S.add(8, atom(f'''s_min_u32 s{sT[0]}, s{sW}, 2
s_mul_i32 s{sT[0]}, s{sT[0]}, 4608
v_add_u32 v{vT[0]}, s{sT[0]}, v{vL16}''', [f'v_mov_b32 v{216 + i}, 0' for i in range(4)], 's_mov_b32 exec_hi, 0',
                  lambda: lg(f'ds_write_b128 v{vT[0]}, {v4(216)} offset:{L_KV + 4096}'), 's_mov_b32 exec_hi, -1'))
    rsl = [f'buffer_load_dwordx3 {v3(RSL)}, v{vRS}, {W}, s{sX[6]} offen sc1',
           f'buffer_load_dwordx2 {v2(RSL + 4)}, v{vRS + 1}, {W}, s{sX[7]} offen sc1',
           f'buffer_load_dwordx2 {v2(RSL + 6)}, v{vRS + 2}, {W}, s{sX[7]} offen offset:512 sc1']
    fc = f'buffer_load_dwordx4 {v4(vFP)}, v{vFA}, {W}, s{sX[1]} offen sc1'
    S.add(OPT['late'], [lambda t=t: vm(t, 'rs') for t in rsl])
    S.add(OPT['csp'], lambda: vm(fc, 'fc'))

    def ccheck():
        vm.wait('fc')
        check_tags([vFP + i for i in range(4)], fc)
        A(f'''s_mul_i32 s{sL[0]}, s{sS8}, 200
s_mul_i32 s{sT[0]}, s{sW}, 50
s_add_u32 s{sL[0]}, s{sL[0]}, s{sT[0]}
s_lshl_b32 s{sL[0]}, s{sL[0]}, 10
s_add_u32 s{sL[0]}, s{sL[0]}, {WS_CF}''')
    marks_gather(S, vm, -1)
    S.add(OPT['csc'], ccheck)
    for i in range(OPT['cl0']):
        S.add(OPT['csc'] + i * (20 - OPT['csc']) // OPT['cl0'], lambda: c_load(vm))

    def rscheck():
        vm.wait('rs')
        check_tags([RSL + 2, RSL + 2, RSL + 5, RSL + 7], rsl)
    S.q.setdefault(OPT['rsc'], []).insert(0, rscheck)
    c = lambda j: CSL + j
    S.add(19, f'''v_mov_b32 v{c(0)}, v{RSL + 4}
v_mov_b32 v{c(1)}, v{RSL + 4}
v_mov_b32 v{c(4)}, v{RSL + 6}
v_permlane16_swap_b32 v{c(0)}, v{c(1)}
v_mov_b32 v{c(2)}, v{c(0)}
v_mov_b32 v{c(3)}, v{c(1)}
v_permlane32_swap_b32 v{c(0)}, v{c(2)}
v_permlane32_swap_b32 v{c(1)}, v{c(3)}''')
    S.add(19, [f'v_mov_b32_dpp v{MM + t}, v{RSL} row_newbcast:{t} {DPPM}\n'
               f'v_mov_b32_dpp v{RR + t}, v{RSL + 1} row_newbcast:{t} {DPPM}' for t in range(8)])
    for s in range(20):
        g.step(s)
    assert not g.side.left()
    stamp('g1_0')
    kw = k_work(vm) if not OPT['kwl'] else []
    kw += [f'ds_write_b64 v{vZ + 4}, {v2(RSL)}'] + [[]] * (6 - len(kw))
    scan_1(0, [[k] + [lambda: c_load(vm)] * (i < OPT['cs1']) for i, k in enumerate(kw)], lambda: vm.wait('kvT'))
    lg = LG()
    h1, h2 = horner(0, vm, lg)
    weave(h1, [lambda: c_load(vm)] * OPT['cb'], 10, 6)
    for i, r in enumerate(vCA + vCB):
        A(f'v_accvgpr_read_b32 v{r}, a{A_CV + i}')
    for k in range(2):
        for i in range(1, 4):
            A(f'v_add_u32 v{vCA[k] + i}, {1024 * i}, v{vCA[k]}')
    if OPT['kwl']:
        run(k_work(vm))
        A('s_waitcnt lgkmcnt(0)\ns_barrier')
    return vm, lg


MAS, PP, AGL, GR = 90, 244, 88, 88
LT = [128, 144, 160, 176, 104]
PK = [120, 124]
vTW, vTR, vTS = 254, 255, 47


def scan_1(layer, extra=[], last=None):
    b = lambda j, ta: ACC + 8 * j + ta
    if layer == 0:
        for j in range(5):
            sel = 'op_sel:[0,1,0] op_sel_hi:[1,1,1]' if j & 1 else 'op_sel_hi:[1,0,1]'
            for p in range(4):
                d = ACC + 8 * j + 2 * p
                A(f'v_pk_fma_f32 {v2(d)}, {v2(MM + 2 * p)}, {v2(CSL + (j & ~1))}, {v2(d)} {sel} '
                  f'neg_lo:[1,0,0] neg_hi:[1,0,0]')
        for j in range(5):
            for p in range(4):
                d = ACC + 8 * j + 2 * p
                A(f'v_pk_mul_f32 {v2(d)}, {v2(d)}, {v2(RR + 2 * p)}')
    extra = list(extra)
    for ta in range(1, 8):
        if extra:
            run(extra.pop(0))
        for j in range(5):
            A(f'v_fmac_f32 v{b(j, ta)}, v{LR + j}, v{b(j, ta - 1)}')
        for j in range(5):
            A(f'v_fmac_f32_dpp v{b(j, ta)}, v{b(j, ta - 1)}, v{LS + j} {SWP}')
    A(f'''v_add_u32 v{vT[0]}, {L_AS}, v{vAS}
v_min_u32 v{vT[1]}, 39, v{vL}
v_mul_u32_u24 v{vU[2]}, 48, v{vT[1]}
s_lshl_b32 s{sT[0]}, s{sW}, 3
s_add_u32 s{sT[0]}, s{sT[0]}, {L_G}
v_add_u32 v{vU[2]}, s{sT[0]}, v{vU[2]}''')
    for j in range(5):
        A(f'ds_write_b32 v{vT[0]}, v{b(j, 7)} offset:{j * 1152}')
    A(f'''v_mul_u32_u24 v{vU[4]}, 144, v{vT[1]}
v_add_u32 v{vU[4]}, {L_AS}, v{vU[4]}''')
    if last:
        last()
    A('s_waitcnt lgkmcnt(0)\ns_barrier')
    stamp(f'scan1_{layer}')


def horner(layer, vm, lg):
    it = [lambda i=i: lg(f'ds_read_b128 {v4(MAS + 4 * i)}, v{vU[4]} offset:{16 * i}', ('as', i)) for i in range(8)]
    for s in range(1, 16):
        if s == 1 or s % 2 == 0:
            it.append(lambda s=s: lg.wait(('as', s // 2)))
        it += cmul(MAS + 2 * s, MAS + 2 * s - 2, mL8, MAS + 2 * s)

    def pub():
        A(f'''v_mov_b32 v{MAS + 32}, s{sTag}
v_mov_b32 v{MAS + 33}, s{sTag}
s_add_u32 s{sT[0]}, s{sAgg}, {layer * AGG_L + 16 * 640}
s_mov_b64 exec, {s2(sPub)}''')
        A(f'buffer_store_dwordx4 {v4(MAS + 30)}, v{vL16}, {W}, s{sT[0]} offen sc1')
        A('s_mov_b64 exec, -1')
        stamp(f'agg_pub_{layer}')
    it.append(pub)
    first, it = it, []
    def own():
        A(f'v_subrev_u32 v{vU[4]}, {L_AS - L_P}, v{vU[4]}\nv_mov_b32 v{MAS - 2}, 0\nv_mov_b32 v{MAS - 1}, 0\ns_mov_b32 exec_hi, 0xff')
        Roles(4).each([lambda c, w=w: [A(f'ds_write_b128 v{vU[4]}, {v4(MAS - 2 + 8 * w + 4 * i)} offset:{32 * w + 16 * i}')
                                       for i in range(2)] for w in range(4)])
        A('s_mov_b32 exec_hi, -1')
        lg.n += 2
    it.append(own)
    it.append(f'v_add_u32 v{vU[4]}, {L_P}, v{vAS}')
    it += [lambda j=j: lg(f'ds_read_b32 v{PP + 2 * j}, v{vU[4]} offset:{j * 1152}', 'pp') for j in range(5)]
    it += [f'v_and_b32 v{vU[1]}, 1, v{vI}', f'v_cvt_f32_u32 v{vU[1]}, v{vU[1]}', f'v_fma_f32 v{vU[1]}, 2.0, v{vU[1]}, -1.0']
    it.append(lambda: lg.wait('pp'))
    it += [f'v_mul_f32_dpp v{PP + 2 * j + 1}, v{PP + 2 * j}, v{vU[1]} {SWP}' for j in range(5)]
    return first, it


def agg_ld(layer):
    pre = f'''s_lshl_b32 s{sX[3]}, s{sW}, 2
s_sub_u32 s{sX[3]}, 12, s{sX[3]}
s_mul_i32 s{sX[3]}, s{sX[3]}, 640
s_add_u32 s{sX[3]}, s{sX[3]}, s{sAgg}
s_add_u32 s{sX[3]}, s{sX[3]}, {layer * AGG_L}
v_min_u32 v{vU[0]}, 39, v{vL}
v_lshlrev_b32 v{vU[0]}, 4, v{vU[0]}'''
    return pre, [f'buffer_load_dwordx3 {v3(AGL + 4 * z)}, v{vU[0]}, {W}, s{sX[3]} offen offset:{z * 640} sc1' for z in range(4)]


def scan_2(layer, vm, ld, hook={}, defer=False, extra=[]):
    lg = LG()
    t = vT
    A(f'''v_lshrrev_b32 v{t[0]}, 1, v{vI}
v_mul_u32_u24 v{t[1]}, 80, v{t[0]}
v_add_u32 v{t[1]}, {L_L}, v{t[1]}
v_mul_u32_u24 v{t[0]}, 48, v{t[0]}
v_add_u32 v{t[0]}, {L_G}, v{t[0]}''')
    def lrd(j):
        for c in range(4):
            lg(f'ds_read_b128 {v4(LT[j] + 4 * c)}, v{t[1]} offset:{j * 640 + 16 * c}', ('L', j))
    early = 5 if layer else OPT['lpre']
    for j in range(early):
        lrd(j)
    A('\n'.join([unpark('tw', vTW), unpark('tr', vTR), unpark('ts', vTS)]))
    vm.wait('agg')
    check_tags([AGL + 2, AGL + 6, AGL + 10, AGL + 14], ld, x=t[3], y=t[4], inline=2)
    stamp(f'agg_in_{layer}')
    if 'agg' in hook:
        hook['agg']()
    for z in range(1, 4):
        A('\n'.join(cmul(AGL + 4 * z, AGL + 4 * z - 4, mL128, AGL + 4 * z)))
    A('\n'.join(cmul(AGL, AGL + 12, mW)))
    if extra:
        extra.pop()()
    A(f'''s_mov_b32 exec_hi, 0xff
ds_write_b64 v{vU[2]}, {v2(AGL)}
s_mov_b32 exec_hi, -1''')
    stamp(f'.fold{layer}', 5 - 2 * (OPT['stamps'] == 3))
    A('s_waitcnt lgkmcnt(0)')
    stamp(f'.added{layer}', 5 - 2 * (OPT['stamps'] == 3))
    A('s_barrier')
    stamp(f'.gbar{layer}', 5 - 2 * (OPT['stamps'] == 3))
    lg = LG()
    GQ = [88, 96, 224, 88, 96]

    def grd(j):
        lg(f'ds_read_b128 {v4(GQ[j])}, v{t[0]} offset:{j * 384}')
        lg(f'ds_read_b128 {v4(GQ[j] + 4)}, v{t[0]} offset:{j * 384 + 16}', ('G', j))
    for j in range(3):
        grd(j)
    for j in range(early, min(early + 1, 5)):
        lrd(j)
    hb = HB[layer]

    def more():
        if extra:
            extra.pop()()
    more()

    def xy(j):
        lg.wait(('G', j))
        q = GQ[j]
        p, a, gq = v2(PP + 2 * j), v2(VA + 2 * j), v2(q)
        A(f'v_pk_add_f32 {gq}, {gq}, {v2(q + 2)}\nv_pk_add_f32 {v2(q + 4)}, {v2(q + 4)}, {v2(q + 6)}\n'
          f'v_pk_add_f32 {gq}, {gq}, {v2(q + 4)}')
        A(f'v_pk_fma_f32 {p}, {a}, {gq}, {p} op_sel:[0,0,0] op_sel_hi:[1,0,1]')
        A(f'v_pk_fma_f32 {p}, {a}, {gq}, {p} op_sel:[1,1,0] op_sel_hi:[0,1,1] neg_hi:[1,0,0]')
        if j < 2:
            grd(j + 3)

    def upd(j):
        p = v2(PP + 2 * j)
        if early + 1 + j < 5:
            lrd(early + 1 + j)
        if j >= early:
            lg.wait(('L', j))
        for k in range(4):
            d = v2(ACC + 8 * j + 2 * k)
            A(f'v_pk_fma_f32 {d}, {v2(LT[j] + 2 * k)}, {p}, {d} op_sel:[0,0,0] op_sel_hi:[1,0,1]')
        more()
        for k in range(4):
            d = v2(ACC + 8 * j + 2 * k)
            A(f'v_pk_fma_f32 {d}, {v2(LT[j] + 8 + 2 * k)}, {p}, {d} op_sel:[0,1,0] op_sel_hi:[1,1,1]')
        pk = PK[j & 1]
        for d in range(4):
            A(f'v_cvt_pk_bf16_f32 v{pk + d}, v{ACC + 8 * j + 2 * d}, v{ACC + 8 * j + 2 * d + 1}')
        lg(f'ds_write_b128 v{vTW}, {v4(pk)}')
        more()
        lg(f'ds_read_b64_tr_b16 {v2(ACC + 8 * j + 4)}, v{vTR}')
        lg(f'ds_read_b64_tr_b16 {v2(ACC + 8 * j + 6)}, v{vTR} offset:640', ('T', j))

    def st(j, vm=vm):
        A(f's_add_u32 s{sT[1]}, s{sH[j]}, {hb}')
        lg.wait(('T', j))
        mode_stores([f'buffer_store_dwordx4 {v4(ACC + 8 * j + 4)}, v{vTS}, {WH}, s{sT[1]} offen'], through=OPT['thr'] & (2 << layer))
        vm.n += 1
        vm.t['hst'] = vm.n
    xy(0), xy(1)
    lag = OPT['lag']
    for j in range(5 + lag):
        stamp(f'.j{j}_{layer}', 5 - 2 * (OPT['stamps'] == 3))
        if j < 5:
            upd(j)
        if j < 3:
            xy(j + 2)
        if j >= lag and j - lag < (defer or 5):
            st(j - lag)
        if j in hook:
            hook[j](lg)
    if defer:
        lg.wait(('T', 4))
        stamp(f'h_st_{layer}')
        return st
    stamp(f'h_st_{layer}')


def h_flag(layer, vm):
    vm.wait('hst')
    A(f's_add_u32 s{sT[2]}, s{sFW}, {WS_FH + layer * 256}')
    flag_store(f's{sT[2]}', True, vm)
    stamp(f'h_flag_{layer}')


CA, CB, CX, CY = 128, 160, 192, 104
vCA, vCB = [232, 236], [240, 241]
JSET = [[1, 2, 4, 7], [0, 3, 5, 6]]


def conv_setup():
    t = vT
    return lines(f"""v_add_u32 v{t[0]}, 1, v{vI}
v_and_b32 v{t[1]}, 1, v{t[0]}
v_mul_u32_u24 v{t[1]}, 4160, v{t[1]}
v_lshrrev_b32 v{t[0]}, 1, v{t[0]}
v_lshl_add_u32 v{t[1]}, v{t[0]}, 2, v{t[1]}
v_lshl_add_u32 v{t[1]}, v{vQ}, 4, v{t[1]}
v_sub_u32 v{t[0]}, 15, v{vI}
v_lshlrev_b32 v{t[0]}, 5, v{t[0]}
v_lshl_add_u32 v{t[0]}, v{vQ}, 4, v{t[0]}
s_lshr_b32 s{sT[0]}, s{sW}, 1
s_and_b32 s{sT[1]}, s{sW}, 1
s_lshl_b32 s{sT[1]}, s{sT[1]}, 8
s_mul_i32 s{sT[2]}, s{sT[0]}, 8320
s_add_u32 s{sT[2]}, s{sT[2]}, s{sT[1]}
s_add_u32 s{sT[2]}, s{sT[2]}, {L_K}
v_add_u32 v{vCA[0]}, s{sT[2]}, v{t[1]}
s_mul_i32 s{sT[2]}, s{sT[0]}, 4608
s_add_u32 s{sT[2]}, s{sT[2]}, s{sT[1]}
v_add_u32 v{vCB[0]}, s{sT[2]}, v{t[0]}
s_lshl_b32 s{sT[1]}, s{sW}, 7
s_add_u32 s{sT[2]}, s{sT[1]}, {L_K + 2 * 8320}
v_add_u32 v{vCA[1]}, s{sT[2]}, v{t[1]}
s_add_u32 s{sT[2]}, s{sT[1]}, {L_KV + 2 * 4608}
v_add_u32 v{vCB[1]}, s{sT[2]}, v{t[0]}""")


class Conv:
    def __init__(self, units, lg, cont=False):
        self.lg, self.seq, self.todo, self.issued = lg, [], [], set()
        free, seen = {}, ({CX + 4 * j for j in range(8)} if cont else set())
        for k, u, js, acc in units:
            first, last = {}, {}
            for a in range(max(js), -1, -1):
                for j in js:
                    if j < a:
                        continue
                    for f in (('A', a), ('B', j - a)):
                        first.setdefault(f, len(self.seq))
                        last[f] = len(self.seq)
                    d = acc + 4 * js.index(j)
                    self.seq.append((k, u, a, j - a, d, d in seen))
                    seen.add(d)
            for f, need in first.items():
                self.todo.append((max(free.get(f, -1), need - OPT['look']), need, (k, u, f)))
            free.update(last)
        self.todo.sort(key=lambda x: x[:2])

    def rd(self, key):
        k, u, (kind, x) = key
        self.issued.add(key)
        if kind == 'A':
            o = 16 * u + 128 * (x & 1)
            self.lg(f'ds_read2_b32 {v2(CA + 4 * x)}, v{vCA[k] + (x >> 1)} offset0:{o} offset1:{o + 1}')
            self.lg(f'ds_read2_b32 {v2(CA + 4 * x + 2)}, v{vCA[k] + (x >> 1)} offset0:{o + 2} offset1:{o + 3}', key)
        else:
            self.lg(f'ds_read_b128 {v4(CB + 4 * x)}, v{vCB[k]} offset:{64 * u + 512 * (7 - x)}', key)

    def emit(self, n0, n1, side):
        todo = self.todo
        while n0 == 0 and todo[0][0] < 0 and todo[0][1] < 4:
            self.rd(todo.pop(0)[2])
        for gn in range(n0, n1):
            k, u, a, b, d, chain = self.seq[gn]
            self.lg.wait((k, u, ('A', a)), (k, u, ('B', b)))
            A(f'v_mfma_f32_16x16x32_bf16 {v4(d)}, {v4(CA + 4 * a)}, {v4(CB + 4 * b)}, {v4(d) if chain else 0}')
            did = 0
            while todo and todo[0][0] <= gn and (did < 1 or todo[0][1] <= gn + 3):
                self.rd(todo.pop(0)[2])
                did += 1
            if not did or gn % 4 == 3:
                side.run(gn // 4, 4 - gn % 4)

    def force(self, keys):
        for it in [x for x in self.todo if x[2] in keys]:
            self.todo.remove(it)
            self.rd(it[2])


vFY = 120
KVM, KVX = 88, 96
YREG = [246, 247, 248, 249, 250, 251, 252]
yS, yKm, yKx, yPw, yPr, ySr, ySw = YREG


def y_setup():
    t = vT
    return lines(f"""s_lshr_b32 s{sT[1]}, s{sW}, 1
s_add_u32 s{sT[0]}, s{sC0}, s{sT[1]}
s_bitcmp1_b32 s{sT[0]}, 0
s_cselect_b32 s{sT[2]}, 16, 0
s_lshr_b32 s{sD[0]}, s{sD[0]}, s{sT[2]}
s_and_b32 s{sDm[0]}, s{sD[0]}, 0xffff
s_lshl_b32 s{sDm[1]}, s{sD[0]}, 16
s_bitcmp1_b32 s{sCs}, 0
s_cselect_b32 s{sT[2]}, 16, 0
s_lshr_b32 s{sD[1]}, s{sD[1]}, s{sT[2]}
s_and_b32 s{sDm[2]}, s{sD[1]}, 0xffff
s_lshl_b32 s{sDm[3]}, s{sD[1]}, 16
s_lshl_b32 s{sYO[0]}, s{sT[0]}, 12
s_and_b32 s{sT[0]}, s{sW}, 1
s_lshl_b32 s{sT[0]}, s{sT[0]}, 11
s_add_u32 s{sYO[0]}, s{sYO[0]}, s{sT[0]}
s_add_u32 s{sYO[0]}, s{sYO[0]}, {WS_Y}
s_mul_i32 s{sT[1]}, s{sT[1]}, 4608
s_sub_u32 s{sT[1]}, s{sT[1]}, s{sT[0]}
s_add_u32 s{sT[1]}, s{sT[1]}, {L_KV + 4088 - 3 * 512}
v_lshlrev_b32 v{yS}, 5, v{vI}
v_lshl_add_u32 v{yS}, v{vQ}, 3, v{yS}
v_sub_u32 v{yKm}, s{sT[1]}, v{yS}
s_bitcmp1_b32 s{sJ}, 0
s_movk_i32 s{sT[0]}, 0x7421
s_cselect_b32 s{sT[0]}, 0x6530, s{sT[0]}
s_lshl_b32 s{sT[1]}, s{sW}, 2
s_lshr_b32 s{sT[0]}, s{sT[0]}, s{sT[1]}
s_and_b32 s{sT[0]}, s{sT[0]}, 7
s_lshl_b32 s{sT[0]}, s{sT[0]}, 9
s_lshl_b32 s{sYO[1]}, s{sCs}, 12
s_add_u32 s{sYO[1]}, s{sYO[1]}, s{sT[0]}
s_add_u32 s{sYO[1]}, s{sYO[1]}, {WS_Y}
s_sub_u32 s{sT[0]}, {L_KV + 2 * 4608 + 4088}, s{sT[0]}
v_sub_u32 v{yKx}, s{sT[0]}, v{yS}
s_lshl_b32 s{sT[0]}, s{sW}, 12
s_add_u32 s{sT[1]}, s{sT[0]}, {L_PM}
v_add_u32 v{ySw}, s{sT[1]}, v{vL16}
s_add_u32 s{sT[1]}, s{sT[0]}, {L_PS}
v_add_u32 v{yPw}, s{sT[1]}, v{vL16}
s_xor_b32 s{sT[1]}, s{sT[0]}, 4096
s_add_u32 s{sT[1]}, s{sT[1]}, {L_PS}
v_add_u32 v{yPr}, s{sT[1]}, v{vL16}
s_lshl_b32 s{sT[1]}, s{sW}, 10
s_add_u32 s{sT[1]}, s{sT[1]}, {L_PM}
v_add_u32 v{ySr}, s{sT[1]}, v{vL16}""")


def y_dterm(acc, kv, dlo, dhi):
    sel = [(1, dhi), (1, dlo), (0, dhi), (0, dlo)]
    return [f'v_dot2_f32_bf16 v{acc + r}, v{kv + sel[r][0]}, s{sel[r][1]}, v{acc + r}' for r in range(4)]


def marks_gather(S, vm, sg):
    if OPT['clr'] * sg > 0:
        marks(S, vm, abs(OPT['clr']), 228 if sg > 0 else 216)
    if OPT['fbp'] * sg > 0:
        gather(S, vm, abs(OPT['fbp']), abs(OPT['fbc']), 124 if sg > 0 else 220)


def marks(S, vm, at, r):
    S.add(at, [f'v_mov_b32 v{r + i}, -1' for i in range(4)], f'v_lshlrev_b32 v{vT[0]}, 3, v{vL}',
          lambda: vm(f'buffer_store_dwordx2 {v2(r)}, v{vT[0]}, {W}, s{sYO[1]} offen sc1'))
    for i in range(2):
        S.add(at + 1 + i, lambda i=i: vm(f'buffer_store_dwordx4 {v4(r)}, v{vL16}, {W}, s{sYO[0]} offen offset:{1024 * i} sc1'))


def gather(S, vm, at, at2, r):
    fb = f'buffer_load_dwordx4 {v4(r)}, v{vL16}, {W}, s{sKs} offen sc1'
    S.add(at, atom(f's_mov_b32 s{sKs}, {WS_FB}', lambda: vm(fb, 'fb')))

    def go():
        vm.wait('fb')
        check_tags([r + i for i in range(4)], fb)
        A(f'''s_lshl_b32 s{sT[1]}, s{sW}, 6
s_sub_u32 s{sT[0]}, 255, s{sT[1]}
v_sub_u32 v{vT[0]}, s{sT[0]}, v{vL}
v_lshlrev_b32 v{vT[0]}, 11, v{vT[0]}
s_and_b32 s{sT[0]}, s{sCs}, 3
s_lshl_b32 s{sT[0]}, s{sT[0]}, 9
s_bfe_u32 s{sT[2]}, s{sCs}, 0x50002
s_lshl_b32 s{sT[2]}, s{sT[2]}, 4
s_add_u32 s{sT[0]}, s{sT[0]}, s{sT[2]}
s_add_u32 s{sT[0]}, s{sT[0]}, {WS_KB}
s_lshl_b32 s{sT[1]}, s{sT[1]}, 4
s_add_u32 m0, s{sT[1]}, {L_KV + 2 * 4608}''')
        vm(f'buffer_load_dwordx4 v{vT[0]}, {W}, s{sT[0]} offen sc1 lds')
    S.add(at2, go)


def conv(vm, lg):
    S = Side()
    e = S.spread(0, 3, horner(0, vm, lg)[1])
    left = 50 - c_issued[0] - OPT['cl2'] - OPT['cs2']
    for i in range(left):
        S.add(i * OPT['clend'] // left, lambda: c_load(vm))
    S.spread(0, 1, z_loads(vm))
    S.add(0, lambda: lg(f'ds_read_b64 a[{A_ZU}:{A_ZU + 1}], v{vZ + 3}'))
    S.spread(14, 2, [lambda: vm.wait('xt')]
             + [lambda m=m: lg(f'ds_read_b64 a[{A_X + 2 * m}:{A_X + 2 * m + 1}], v{vXT} offset:{32 * m}') for m in range(5)]
             + [lambda m=m: lg(f'ds_read_b64 a[{A_DSK + 2 * m}:{A_DSK + 2 * m + 1}], v{vXT + 1} offset:{2560 + 32 * m}')
                for m in range(5)])
    marks_gather(S, vm, 1)
    S.add(1, lambda: srd(R_T0, P_OUT, 5242880))
    if OPT['tch']:
        S.add(OPT['tch'], retouch())
    if OPT['prefetch'] & 2:
        S.add(10, atom(code_touch()))
    pre, ld = agg_ld(0)
    S.spread(OPT['aggl'] - 2, 4, pre)
    for z in range(4):
        S.add(OPT['aggl'] + z // 2, lambda z=z: vm(ld[z], 'agg'))
    nu = OPT['nu']
    cv = Conv([(0, u, list(range(8)), CX) for u in range(nu)], lg)
    cv.emit(0, 36 * nu, S)
    assert not cv.todo and not S.left(), S.left()
    stamp('conv')
    def glue1(lg):
        for i, r in enumerate(YREG + G2REG):
            A(f'v_accvgpr_read_b32 v{r}, a{A_CV + 4 + i}')
        for j in range(4):
            lg(f'ds_read_b64 {v2(KVM + 2 * j)}, v{yKm} offset:{512 * (3 - j)}')
        lg(f'ds_read_b64 {v2(KVX)}, v{yKx}', 'kvm')

    def glue2():
        A(f's_bitcmp0_b32 s{sW}, 0')
        with A.skip_if('s_cbranch_scc1', lambda c: not c['w'] & 1):
            for i in range(16):
                A(f'v_swap_b32 v{CX + i}, v{CX + 16 + i}')

    def yflag(lg):
        A(f'''s_lshl_b32 s{sT[0]}, s{sC0}, 1
s_add_u32 s{sT[0]}, s{sT[0]}, {WS_FY}
v_mov_b32 v{vT[4]}, s{sTag}
s_and_b32 exec_lo, s{sPub}, 1
s_mov_b32 exec_hi, 0
buffer_store_dword v{vT[4]}, off, {W}, s{sT[0]} sc1
s_mov_b64 exec, -1''')
    fy = f'buffer_load_dwordx4 {v4(vFY)}, v{vL16}, {W}, s{sX[5]} offen sc1'
    extra = [lambda: c_load(vm)] * OPT['cs2']
    st = scan_2(0, vm, ld, {0: yflag, 4: glue1}, OPT['defer'], extra)
    assert not extra
    lt, lj = A.label('type'), A.label('join')
    A.cond[lt] = lambda c: c['ty']
    A(f's_bitcmp1_b32 s{sJ}, 0\ns_cbranch_scc1 {lt}')
    p0 = PREV[0]
    for ty in range(2):
        v, lg, S = copy.deepcopy(vm), LG(), Side()
        PREV[0], c_issued[0] = p0, 50 - OPT['cl2']
        o = 9 * (4 - nu)
        for j in range(OPT['defer'], 5):
            S.add((j - OPT['defer']) * OPT['stp'] // 2, lambda j=j: st(j, v))
        for i in range(OPT['cl2']):
            S.add(OPT['cl2s'] + i * (o + 8 - OPT['cl2s']) // OPT['cl2'], lambda: c_load(v))
        S.add(OPT['hfl'], lambda: h_flag(0, v))
        S.add(o + 1, glue2)
        for j in range(4):
            S.add(o + 2 + j, lambda j=j: lg(f'ds_write_b128 v{yPw}, {v4(CX + 16 + 4 * j)} offset:{1024 * j}'))
        S.add(o + 4, 's_barrier')
        S.add(o + OPT['yp0'], atom(f's_mov_b32 s{sX[5]}, {WS_FY}', lambda: v(fy, 'fy')))
        S.add(o + OPT['hp'], lambda: v(H_POLL, 'fh'))
        cv = Conv([(0, u, list(range(8)), CX) for u in range(nu, 4)] + [(1, u, JSET[ty], CY) for u in range(2)], lg, True)
        cv.emit(0, len(cv.seq), S)
        assert not S.left()
        if ty == 0:
            A(f's_branch {lj}\n{lt}:')
    A(f'{lj}:')
    stamp('conv2')
    PM, PS = 208, 224
    for x in range(4):
        A(f'ds_write_b128 v{ySw}, {v4(CY + 4 * x)} offset:{1024 * x}')
    for j in range(4):
        run(y_dterm(CX + 4 * j, KVM + 2 * j, sDm[0], sDm[1]))
    v.wait('fy')
    check_tags([vFY + i for i in range(4)], fy)
    g2 = G2(0, v)
    g2.begin()
    A('s_waitcnt lgkmcnt(0)\ns_barrier')
    for j in range(4):
        A(f'ds_read_b128 {v4(PM + 4 * j)}, v{yPr} offset:{1024 * j}')
    for x in range(4):
        A(f'ds_read_b128 {v4(PS + 4 * x)}, v{ySr} offset:{4096 * x}')
    it = ['s_waitcnt lgkmcnt(0)']
    for j in range(4):
        p = PM + 4 * j
        it += [f'v_add_f32 v{p + i}, v{CX + 4 * j + i}, v{p + i}' for i in range(4)]
        it += [f'v_cvt_pk_bf16_f32 v{p}, v{p}, v{p + 1}', f'v_cvt_pk_bf16_f32 v{p + 1}, v{p + 2}, v{p + 3}',
               lambda j=j, p=p: v(f'buffer_store_dwordx2 {v2(p)}, v{yS}, {W}, s{sYO[0]} offen offset:{512 * j} sc1')]
    it += y_dterm(PS, KVX, sDm[2], sDm[3])
    it += [f'v_add_f32 v{PS + 4 + i}, v{PS + 4 + i}, v{PS + 8 + i}' for i in range(4)]
    it += [f'v_add_f32 v{PS + i}, v{PS + i}, v{PS + 12 + i}' for i in range(4)]
    it += [f'v_add_f32 v{PS + i}, v{PS + i}, v{PS + 4 + i}' for i in range(4)]
    it += [f'v_cvt_pk_bf16_f32 v{PS}, v{PS}, v{PS + 1}', f'v_cvt_pk_bf16_f32 v{PS + 1}, v{PS + 2}, v{PS + 3}',
           lambda: v(f'buffer_store_dwordx2 {v2(PS)}, v{yS}, {W}, s{sYO[1]} offen sc1')]
    g2.ytail = it
    stamp('y_rd')
    return g2


YF, ZR = BF, BF + 20
P0, P1 = 192, 212
XT, DP, ZU, F1, F2 = 98, 100, 102, 88, 92
vHA, vYD, vYR = 244, 252, 253
G2REG = vU[2:5] + [vHA]
YP = 232


def g2_setup(layer):
    hb = HB[layer]
    A(f's_mul_i32 s{sT[1]}, s{sR64}, 163840\ns_mul_i32 s{sT[2]}, s{sW}, 10240\n'
      f's_add_u32 s{sT[1]}, s{sT[1]}, s{sT[2]}\ns_add_u32 s{sT[1]}, s{sT[1]}, {hb}')
    for z in range(4):
        A(f's_add_u32 s{sT[2]}, s{sW}, {z + 1}\ns_and_b32 s{sT[2]}, s{sT[2]}, 3\n'
          f's_mul_i32 s{sT[3]}, s{sT[2]}, 40960\ns_add_u32 s{sDS[z]}, s{sT[3]}, s{sT[1]}')
        if z < 2:
            A(f's_mul_i32 s{sT[3]}, s{sT[2]}, 10240\ns_add_u32 s{sT[3]}, s{sT[3]}, {L_RED + z * 5120}\n'
              f'v_add_u32 v{vU[2 + z]}, s{sT[3]}, v{vL16}')
        if z == 2:
            A(f's_mul_i32 s{sT[3]}, s{sT[2]}, 5120\nv_add_u32 v{vU[2 + z]}, s{sT[3]}, v{vL16}')
    A(f'''s_lshl_b32 s{sZ[3]}, s{sR128}, 10
s_lshl_b32 s{sT[1]}, s{sW}, 6
s_add_u32 s{sZ[3]}, s{sZ[3]}, s{sT[1]}
s_and_b32 s{sT[1]}, s{sR64}, 1
s_lshl_b32 s{sT[1]}, s{sT[1]}, 3
s_add_u32 s{sZ[3]}, s{sZ[3]}, s{sT[1]}
s_add_u32 s{sZ[3]}, s{sZ[3]}, {WS_FH + layer * 256}
v_and_b32 v{vHA}, 3, v{vL}
v_lshlrev_b32 v{vHA}, 4, v{vHA}''')


def z_addr():
    t = vT
    A(f'''s_lshl_b32 s{sT[0]}, s{sR64}, 6
s_lshr_b32 s{sT[1]}, s{sW}, 1
s_lshl_b32 s{sT[1]}, s{sT[1]}, 5
s_add_u32 s{sT[0]}, s{sT[0]}, s{sT[1]}
s_and_b32 s{sT[1]}, s{sW}, 1
s_lshl_b32 s{sT[1]}, s{sT[1]}, 2
s_add_u32 s{sT[0]}, s{sT[0]}, s{sT[1]}
s_mul_i32 s{sZ[0]}, s{sT[0]}, 1280
s_mul_i32 s{sT[1]}, s{sS8}, 160
s_add_u32 s{sZ[0]}, s{sZ[0]}, s{sT[1]}
s_lshl_b32 s{sZ[2]}, s{sW}, 12
s_add_u32 s{sZ[2]}, s{sZ[2]}, {L_PS}''')
    for z in range(3):
        A(f'''v_add_u32 v{t[0]}, {64 * z}, v{vL}
v_mul_u32_u24 v{t[1]}, 205, v{t[0]}
v_lshrrev_b32 v{t[1]}, 11, v{t[1]}
v_lshrrev_b32 v{t[2]}, 2, v{t[1]}
v_mul_u32_u24 v{t[1]}, 1120, v{t[1]}
v_mul_u32_u24 v{t[2]}, 5120, v{t[2]}
v_lshlrev_b32 v{t[0]}, 4, v{t[0]}
v_add3_u32 v{vZ + z}, v{t[0]}, v{t[1]}, v{t[2]}''')
    A(f'''s_and_b32 s{sT[0]}, s{sR64}, 1
s_lshl_b32 s{sT[0]}, s{sT[0]}, 2
s_add_u32 s{sT[0]}, s{sT[0]}, s{sW}
s_lshr_b32 s{sT[1]}, s{sT[0]}, 1
s_lshl_b32 s{sT[1]}, s{sT[1]}, 8
s_and_b32 s{sT[0]}, s{sT[0]}, 1
s_lshl_b32 s{sT[0]}, s{sT[0]}, 5
s_add_u32 s{sT[0]}, s{sT[0]}, s{sT[1]}
s_add_u32 s{sT[0]}, s{sT[0]}, {L_RS}
v_lshrrev_b32 v{t[1]}, 2, v{vI}
v_lshlrev_b32 v{t[1]}, 6, v{t[1]}
v_and_b32 v{t[2]}, 3, v{vI}
v_lshl_add_u32 v{t[1]}, v{t[2]}, 3, v{t[1]}
v_add_u32 v{vZ + 3}, s{sT[0]}, v{t[1]}
v_and_b32 v{t[2]}, 7, v{vI}
v_lshlrev_b32 v{t[2]}, 3, v{t[2]}
v_lshl_add_u32 v{t[2]}, v{vQ}, 6, v{t[2]}
s_lshl_b32 s{sT[0]}, s{sW}, 8
s_add_u32 s{sT[0]}, s{sT[0]}, {L_RS}
v_add_u32 v{vZ + 4}, s{sT[0]}, v{t[2]}
v_lshl_add_u32 v{vXT + 1}, v{vQ}, 3, s{sZ[2]}
v_mul_u32_u24 v{vXT}, 160, v{vI}
v_lshl_add_u32 v{vXT}, v{vQ}, 3, v{vXT}
v_add_u32 v{vXT}, s{sZ[2]}, v{vXT}''')


def z_loads(vm):
    it = []
    for z in range(3):
        it.append(atom(f's_add_u32 m0, s{sZ[2]}, {1024 * z}', 's_mov_b32 exec_hi, 0' if z == 2 else [],
                       lambda z=z: vm(f'buffer_load_dwordx4 v{vZ + z}, {s4(R_X)}, s{sZ[0]} offen lds', 'xt'),
                       's_mov_b32 exec_hi, -1' if z == 2 else []))
    it.append(atom(lambda: srd(R_T1, P_DSK, 1280), f's_add_u32 m0, s{sZ[2]}, 2560', f's_mul_i32 s{sT[0]}, s{sS8}, 160',
                   's_mov_b64 exec, 0x3ff',
                   lambda: vm(f'buffer_load_dwordx4 v{vL16}, {s4(R_T1)}, s{sT[0]} offen lds', 'xt'), 's_mov_b64 exec, -1'))
    return it


def z_work():
    b = [f'v_accvgpr_read_b32 v{ZU}, a{A_ZU}', f'v_accvgpr_read_b32 v{ZU + 1}, a{A_ZU + 1}', f'v_mul_f32 v{ZU}, v{ZU}, v{ZU + 1}']
    for m in range(5):
        for i in range(2):
            b += [f'v_accvgpr_read_b32 v{XT + i}, a{A_X + 2 * m + i}', f'v_accvgpr_read_b32 v{DP + i}, a{A_DSK + 2 * m + i}']
        b += unpack(ZR + 4 * m, XT, 2) + unpack(F2, DP, 2)
        for i in range(4):
            b.append(f'v_fma_f32 v{F1 + i}, v{ZR + 4 * m + i}, v{ZU + 1}, -v{ZU}')
        for i in range(4):
            b.append(f'v_fmac_f32 v{ZR + 4 * m + i}, v{F1 + i}, v{F2 + i}')
    return b


vTM = 246
H_POLL = f'buffer_load_dwordx2 {v2(vU[0])}, v{vHA}, {W}, s{sZ[3]} offen sc1'


class G2:
    def __init__(self, layer, vm):
        self.layer, self.vm, self.nxt = layer, vm, 0

    def ld(self):
        f = self.nxt
        self.nxt += 1
        z, k = divmod(f, 10)
        if k and k % 4 == 0:
            A(f's_add_u32 s{sDS[z]}, s{sDS[z]}, 4096')
        self.vm(f'buffer_load_dwordx4 {v4(RING + 4 * (f % NR))}, v{vL16}, {WH}, s{sDS[z]} offen '
                f'offset:{(k % 4) * 1024} sc1', ('h', f))

    def begin(self):
        if self.layer == 0:
            self.vm.wait('fh')
        check_tags([vU[0], vU[1]], H_POLL, inline=2 - self.layer)
        self.vm.done = self.vm.n if self.layer else self.vm.done
        stamp(f'h_ready_{self.layer}')
        for f in range(OPT['n0'] if self.layer else OPT['n00']):
            self.ld()


def gemm2(g2):
    layer, vm, ld = g2.layer, g2.vm, g2.ld
    side, lg = Side(), LG()
    n0 = g2.nxt
    last = 0
    for f in range(n0, 40):
        last = max(f - n0, f - NR + 1)
        side.add(last, ld)
    last += 1
    hooks = []
    ze = late = 0
    if layer == 0:
        e = side.spread(OPT['ys'], OPT['yper'], g2.ytail)
        side.add(e, 's_barrier')
        assert e < 11
        late = OPT['zlate']
        zw = z_work()
        if late:
            n = (OPT['rb'] - e) * OPT['zper']
            side.spread(e, OPT['zper'], zw[:n])
            assert side.spread(30, OPT['zper'] + 1, zw[n:]) <= 40
        else:
            ze = side.spread(e, OPT['zper'], zw)
            assert ze <= OPT['rb'] - 4 * OPT['r3'], ze
        side.add(OPT['yp'] + 1, f'''s_mul_i32 s{sX[6]}, s{sS8}, 327680
s_lshl_b32 s{sT[0]}, s{sR64}, 7
s_add_u32 s{sX[6]}, s{sX[6]}, s{sT[0]}
s_lshr_b32 s{sT[0]}, s{sW}, 1
s_mul_i32 s{sX[7]}, s{sT[0]}, 5120
s_add_u32 s{sX[7]}, s{sX[7]}, {L_Y}
s_lshl_b32 s{sT[0]}, s{sT[0]}, 6
s_add_u32 s{sX[6]}, s{sX[6]}, s{sT[0]}
s_add_u32 s{sX[6]}, s{sX[6]}, {WS_Y}
s_mov_b32 s{sX[5]}, s{sX[6]}''')
        side.add(OPT['yp'] + 2, f'''s_and_b32 s{sT[0]}, s{sW}, 1
s_mul_i32 s{sT[1]}, s{sT[0]}, {3 * 65536}
s_add_u32 s{sX[6]}, s{sX[6]}, s{sT[1]}
s_mul_i32 s{sT[1]}, s{sT[0]}, 3072
s_add_u32 s{sX[8]}, s{sX[7]}, s{sT[1]}
s_lshl_b32 s{sT[0]}, s{sT[0]}, 3
s_add_u32 s{sX[7]}, s{sX[7]}, s{sT[0]}
v_lshrrev_b32 v{vYD}, 2, v{vL}
v_lshlrev_b32 v{vYD}, 12, v{vYD}
v_and_b32 v{vT[1]}, 3, v{vL}
v_lshl_add_u32 v{vYD}, v{vT[1]}, 4, v{vYD}''')

        def ydma(m):
            A(f's_add_u32 m0, s{sX[8]}, {m * 1024}')
            if m == 2:
                A(f's_bitcmp1_b32 s{sW}, 0\ns_cselect_b32 s{sX[6]}, {OOB}, s{sX[6]}\ns_cselect_b32 m0, {LDS_SIZE}, m0')
            vm(f'buffer_load_dwordx4 v{vYD}, {W}, s{sX[6]} offen sc1 lds', 'yd')
            A(f's_add_u32 s{sX[6]}, s{sX[6]}, 65536')
        side.add(3 if OPT['dbg'] & 256 else last, *[lambda m=m: ydma(m) for m in range(3)])
        side.add(last + 1, f'v_add_u32 v{vYR}, s{sX[7]}, v{vL16}')
    else:
        side.spread(1, 3, [f'v_accvgpr_read_b32 v{ZR + i}, a{A_Z + i}' for i in range(20)] + unpack(YF, YP, 10))
        if OPT['wb'] & 2:
            side.add(OPT['wbs'] or last + 1, wbl2)
    rd = lambda p, a, off, nm: [lambda i=i: lg(f'ds_read_b128 {v4(p + 4 * i)}, v{a} offset:{off + 1024 * i}', nm) for i in range(5)]
    add = lambda d, s: [f'v_add_f32 v{d + i}, v{d + i}, v{s + i}' for i in range(20)]
    side.add(OPT['ra'] - 1, f's_mul_i32 s{sT[3]}, s{sW}, 10240\ns_add_u32 s{sT[3]}, s{sT[3]}, {L_RED}\n'
                            f'v_add_u32 v{vU[5]}, s{sT[3]}, v{vL16}')
    bar = lambda: (lg.wait('pw'), A('s_barrier'))
    wp = OPT['wper']
    for z in range(3):
        pa = ACC + 20 * (z & 1)
        for m in range(5):
            side.q.setdefault(10 * z + 11 + m // wp, []).insert(
                m % wp, lambda z=z, m=m, pa=pa: lg(f'ds_write_b128 v{vU[2 + z]}, {v4(pa + 4 * m)} offset:{1024 * m}', 'pw'))
    if OPT['r3']:
        e = side.spread(OPT['ra'], 5, [bar] + rd(P0, vU[5], 0, 'p0'))
        side.spread(max(e, ze), 5, [lambda: lg.wait('p0')] + add(ZR, P0))
        e = side.spread(OPT['rb'], OPT['rper'], [bar] + rd(P1, vU[5], 5120, 'p1') + [lambda: lg.wait('p1')] + add(ZR, P1))
    else:
        e = side.spread(OPT['rb'], OPT['rper'], [bar] + rd(P0, vU[5], 0, 'p0') + rd(P1, vU[5], 5120, 'p1') + [lambda: lg.wait('p0')]
                        + (add(ZR, P0) + [lambda: lg.wait('p1')] + add(ZR, P1) if not late else
                           [lambda: lg.wait('p1')] + add(P1, P0)))
    assert e <= 30, e
    side.add(OPT['rc'] - 1, f's_mul_i32 s{sT[3]}, s{sW}, 5120\nv_add_u32 v{vU[5]}, s{sT[3]}, v{vL16}')
    if layer == 0:
        side.add(36, [f's_lshr_b32 s{sX[1 + k]}, s{sTag}, {8 * k}' for k in range(4)], f'v_mov_b32 v{vTM}, 0xff',
                 unpark('bd', 244), unpark('bd2', 245))
    side.add(37, f'''s_lshl_b32 s{sT[0]}, s{sR64}, 15
s_lshl_b32 s{sT[1]}, s{sW}, {9 - layer}
s_add_u32 s{sT[0]}, s{sT[0]}, s{sT[1]}
s_add_u32 s{sT[0]}, s{sT[0]}, {WS_ST + layer * 2048}
s_lshl_b32 s{sT[1]}, s{sS8}, 12
s_add_u32 s{sT[1]}, s{sT[1]}, s{sT[0]}''')
    side.spread(OPT['rc'], 6, [atom(lambda: vm.wait(('h', 39)), bar) if layer else bar] + rd(P0, vU[5], 0, 'p2'))
    for z in range(4):
        if OPT['stamps'] < 3:
            stamp(f'.z{z}_{layer}', 2)
        acc = ACC + 20 * (z & 1)
        for k in range(10):
            f = 10 * z + k
            vm.wait(('h', f))
            for h in list(hooks):
                if vm.t[h[0]] <= vm.done:
                    hooks.remove(h)
                    h[1]()
            for m in range(5):
                d = acc + 4 * m
                c = v4(d) if k else ('0' if z < 3 else v4((P1 if late else ZR) + 4 * m))
                A(f'v_mfma_f32_16x16x32_bf16 {v4(d)}, {a4(4 * (5 * k + m))}, {v4(RING + 4 * (f % NR))}, {c}')
                side.run(f, 5 - m)
    assert not side.left() and not hooks
    stamp(f'g2_{layer}')
    return lg


def allreduce_q(r, t):
    for op in ('v_permlane32_swap_b32', 'v_permlane16_swap_b32'):
        A(f'''v_mov_b32 v{t}, v{r}
v_mov_b32 v{t + 1}, v{r + 1}
{op} v{r}, v{t}
{op} v{r + 1}, v{t + 1}
v_add_f32 v{r}, v{r}, v{t}
v_add_f32 v{r + 1}, v{r + 1}, v{t + 1}''')


def epilogue(layer, vm, lg, g1=None):
    a = ACC + 20
    S = 212
    G = 228
    inv = 0x3acccccd
    lg.wait('p2')
    if layer == 0:
        vm.wait('yd')
        A('s_barrier')
        stamp('y_in')
        lg = LG()
        yrd = [f'ds_read_b64_tr_b16 {v2(YP + 2 * m)}, v{vYR} offset:{m * 1024}' for m in range(5)]
        for m in range(5):
            lg(yrd[m], ('y', m))
    for i in range(10 * (layer == 0 and OPT['zlate'])):
        A(f'v_pk_add_f32 {v2(P0 + 2 * i)}, {v2(P0 + 2 * i)}, {v2(ZR + 2 * i)}')
    for i in range(10):
        A(f'v_pk_add_f32 {v2(a + 2 * i)}, {v2(a + 2 * i)}, {v2(P0 + 2 * i)}')
    A(f'v_pk_add_f32 {v2(S)}, {v2(a)}, {v2(a + 2)}\nv_pk_mul_f32 {v2(S + 2)}, {v2(a)}, {v2(a)}')
    for i in range(1, 10):
        if i >= 2:
            A(f'v_pk_add_f32 {v2(S)}, {v2(S)}, {v2(a + 2 * i)}')
        A(f'v_pk_fma_f32 {v2(S + 2)}, {v2(a + 2 * i)}, {v2(a + 2 * i)}, {v2(S + 2)}')
    if layer == 0:
        AY = 160
        stamp('y_ok')
        lab, done, redo = A.label('again'), A.label('ok'), A.label('redo')
        A.cond[lab] = lambda c: False
        slow = [f'{lab}:', f's_sub_u32 s{sBud}, s{sBud}, 1', f's_cmp_gt_i32 s{sBud}, 0', f's_cbranch_scc0 {done}',
                f's_mul_i32 s{sX[8]}, s{sW}, 10240', f's_add_u32 s{sX[8]}, s{sX[8]}, {L_RED + 5120}',
                f's_and_b32 s{sX[6]}, s{sW}, 1', f's_lshl_b32 s{sX[6]}, s{sX[6]}, 3', f's_add_u32 s{sX[6]}, s{sX[6]}, s{sX[8]}',
                f'v_add_u32 v{vYR}, s{sX[6]}, v{vL16}']
        for m in range(5):
            slow += [f's_add_u32 m0, s{sX[8]}, {m * 1024}', f's_add_u32 s{sX[6]}, s{sX[5]}, {m * 65536}',
                     f'buffer_load_dwordx4 v{vYD}, {W}, s{sX[6]} offen sc1 lds']
        TAIL.append('\n'.join(slow + ['s_waitcnt vmcnt(0)'] + yrd + ['s_waitcnt lgkmcnt(0)', f's_branch {redo}']))
        A(f'{redo}:')
        for m in range(5):
            lg.wait(('y', m))
            A('\n'.join(unpack(YF + 4 * m, YP + 2 * m, 2)))
            if m in (0, 2, 4):
                b_dma(vm, 0, m, 244, 245)
            for i in (2 * m, 2 * m + 1):
                x, y, ay = v2(a + 2 * i), v2(YF + 2 * i), v2(AY + 2 * i)
                A(f'v_pk_mul_f32 {ay}, {x}, {y}')
                if i == 0:
                    A(f'v_pk_mul_f32 {v2(S + 14)}, {y}, {y}\nv_pk_mul_f32 {v2(S + 6)}, {ay}, {x}\n'
                      f'v_pk_mul_f32 {v2(S + 8)}, {ay}, {ay}\nv_pk_mul_f32 {v2(S + 10)}, {ay}, {y}')
                else:
                    p2 = v2(AY) if i == 1 else v2(S + 4)
                    p6 = v2(YF) if i == 1 else v2(S + 12)
                    A(f'v_pk_add_f32 {v2(S + 12)}, {p6}, {y}\nv_pk_fma_f32 {v2(S + 14)}, {y}, {y}, {v2(S + 14)}\n'
                      f'v_pk_add_f32 {v2(S + 4)}, {p2}, {ay}\nv_pk_fma_f32 {v2(S + 6)}, {ay}, {x}, {v2(S + 6)}\n'
                      f'v_pk_fma_f32 {v2(S + 8)}, {ay}, {ay}, {v2(S + 8)}\n'
                      f'v_pk_fma_f32 {v2(S + 10)}, {ay}, {y}, {v2(S + 10)}')
        A(f'v_cmp_u_f32 vcc, v{S + 12}, v{S + 13}\ns_cbranch_vccnz {lab}\n{done}:')
        for k in range(8):
            A(f'v_add_f32 v{S + 2 * k}, v{S + 2 * k}, v{S + 2 * k + 1}')
        for k in range(4):
            A(f'v_permlane16_swap_b32 v{S + 2 * k}, v{S + 2 * k + 8}')
        for k in range(4):
            A(f'v_add_f32 v{G + k}, v{S + 2 * k}, v{S + 2 * k + 8}')
        for k in range(4):
            A(f'v_mov_b32 v{S + k}, v{G + k}')
        for k in range(4):
            A(f'v_permlane32_swap_b32 v{G + k}, v{S + k}')
        for k in range(4):
            A(f'v_add_f32 v{G + k}, v{G + k}, v{S + k}')
        for k in range(4):
            A(f'v_bfi_b32 v{G + k}, v{vTM}, s{sX[1 + k]}, v{G + k}')
        A('s_mov_b32 exec_hi, 0')
        mode_stores([f'buffer_store_dwordx4 {v4(G)}, v{vL16}, {W}, s{sT[1]} offen'], through=OPT['thr'] & 16)
        A('s_mov_b32 exec_hi, -1')
        stamp('st_pub_0')
        if OPT['prefetch'] & 4:
            run(code_touch())
        for i in range(10):
            A(f'v_accvgpr_write_b32 a{A_Y + i}, v{YP + i}')
        A(f'''v_lshrrev_b32 v{vT[0]}, 2, v{vI}
v_mul_u32_u24 v{vT[0]}, 5120, v{vT[0]}
v_and_b32 v{vT[1]}, 3, v{vI}
v_lshl_add_u32 v{vT[0]}, v{vT[1]}, 4, v{vT[0]}
v_lshrrev_b32 v{vT[1]}, 1, v{vQ}
v_lshl_add_u32 v{vT[0]}, v{vT[1]}, 6, v{vT[0]}
v_and_b32 v{vT[1]}, 1, v{vQ}
v_lshl_add_u32 v{vU[5]}, v{vT[1]}, 3, v{vT[0]}
s_lshl_b32 s{sX[1]}, s{sR64}, {3 if UO else 2}
s_add_u32 s{sX[1]}, s{sX[1]}, s{sW}
s_mul_i32 s{sX[1]}, s{sX[1]}, 20480
s_mul_i32 s{sT[2]}, s{sS8}, 640
s_add_u32 s{sX[1]}, s{sX[1]}, s{sT[2]}
s_add_u32 s{sX[1]}, s{sX[1]}, {0 if UO else WS_U2}''')
        DPk, DF = 190, 108
        for i in range(10):
            A(f'v_accvgpr_read_b32 v{DPk + i}, a{A_DSK + i}')
        A('\n'.join(unpack(DF, DPk, 10)))
        USRC = f's_add_u32 s{sL[0]}, s{sXs}, {WS_U2}'
        if UO:
            USRC = (f's_lshl_b32 s{sL[0]}, s{sXs}, 1\ns_and_b32 s{sT[1]}, s{sW}, 1\ns_mul_i32 s{sT[1]}, s{sT[1]}, 40960\n'
                    f's_sub_u32 s{sL[0]}, s{sL[0]}, s{sT[1]}')
        A(f'''s_lshl_b32 s{sX[0]}, s{sR128}, 10
s_lshr_b32 s{sT[1]}, s{sW}, 1
s_lshl_b32 s{sT[1]}, s{sT[1]}, 7
s_add_u32 s{sX[0]}, s{sX[0]}, s{sT[1]}
s_and_b32 s{sT[1]}, s{sW}, 1
s_lshl_b32 s{sT[1]}, s{sT[1]}, 3
s_add_u32 s{sX[0]}, s{sX[0]}, s{sT[1]}
s_add_u32 s{sX[0]}, s{sX[0]}, {WS_FU}
v_and_b32 v{vU[4]}, 7, v{vL}
v_lshlrev_b32 v{vU[4]}, 4, v{vU[4]}
{USRC}
s_add_u32 s{sL[1]}, s{sL[0]}, 20480
s_lshl_b32 s{sEpW}, s{sR64}, 5
s_lshl_b32 s{sT[1]}, s{sS8}, 2
s_add_u32 s{sEpW}, s{sEpW}, s{sT[1]}
s_add_u32 s{sEpW}, s{sEpW}, s{sW}''')
        A(f'''v_and_b32 v{vT[0]}, 31, v{vL}
v_lshlrev_b32 v{vT[0]}, 4, v{vT[0]}
v_lshrrev_b32 v{vT[1]}, 5, v{vL}
v_lshl_add_u32 v{vT[0]}, v{vT[1]}, 14, v{vT[0]}
s_mov_b32 s{sT[2]}, 0x0c0c0400
s_mov_b32 s{sT[3]}, 0x04000c0c
s_add_u32 s{sX[2]}, s{sT[0]}, 4096
s_add_u32 s{sX[3]}, s{sT[0]}, 8192
s_add_u32 s{sX[4]}, s{sT[0]}, 12288''')
        back = A.label('stpoll')
        A(f'{back}:')
        Q = 128
        for sl, so in enumerate((sT[0], sX[2], sX[3], sX[4])):
            A(f'buffer_load_dwordx4 {v4(Q + 4 * sl)}, v{vT[0]}, {W}, s{so} offen sc1')
        A('s_waitcnt vmcnt(0)')
        for sl in range(4):
            q = Q + 4 * sl
            A(f'v_perm_b32 v{S + 2 * sl}, v{q + 1}, v{q}, s{sT[2]}\nv_perm_b32 v{S + 2 * sl + 1}, v{q + 3}, v{q + 2}, s{sT[3]}')
        for sl in range(4):
            A(f'v_or_b32 v{S + 2 * sl}, v{S + 2 * sl}, v{S + 2 * sl + 1}')
        lo, hi = vT[2], vT[3]
        A(f'''v_min3_u32 v{lo}, v{S}, v{S + 2}, s{sTag}
v_max3_u32 v{hi}, v{S}, v{S + 2}, s{sTag}
v_min3_u32 v{lo}, v{lo}, v{S + 4}, v{S + 6}
v_max3_u32 v{hi}, v{hi}, v{S + 4}, v{S + 6}
v_cmp_ne_u32 vcc, v{lo}, v{hi}''')
        retry(back)
        stamp('st_in_0')
        for hf in (0, 2):
            A(f'v_pk_add_f32 {v2(Q + hf)}, {v2(Q + hf)}, {v2(Q + 4 + hf)}\n'
              f'v_pk_add_f32 {v2(Q + 8 + hf)}, {v2(Q + 8 + hf)}, {v2(Q + 12 + hf)}')
        for hf in (0, 2):
            A(f'v_pk_add_f32 {v2(Q + hf)}, {v2(Q + hf)}, {v2(Q + 8 + hf)}')
        s = lambda k: S + k
        for k in range(4):
            A(f'v_mov_b32 v{Q + 4 + k}, v{Q + k}')
        for k in range(4):
            A(f'v_permlane32_swap_b32 v{Q + k}, v{Q + 4 + k}')
        for k in range(4):
            A(f'v_add_f32 v{s(k)}, v{Q + k}, v{Q + 4 + k}')
        for k in range(4):
            A(f'v_mov_b32 v{s(4 + k)}, v{s(k)}')
        for k in range(4):
            A(f'v_permlane16_swap_b32 v{s(k)}, v{s(4 + k)}')
        m1, r1, k1, t0, t1, r2, k2 = 200, 202, 203, 204, 205, 206, 207
        A(f'''v_mul_f32 v{m1}, {inv:#x}, v{s(0)}
v_mul_f32 v{t0}, {inv:#x}, v{s(1)}
v_fma_f32 v{t0}, -v{m1}, v{m1}, v{t0}
v_max_f32 v{t0}, 0, v{t0}
v_add_f32 v{t0}, 0x3727c5ac, v{t0}
v_rsq_f32 v{r1}, v{t0}
v_mul_f32 v{k1}, v{m1}, v{r1}
v_fma_f32 v{t0}, v{r1}, v{s(2)}, v{s(0)}
v_fma_f32 v{t0}, -v{k1}, v{s(6)}, v{t0}
v_mul_f32 v{t1}, v{r1}, v{s(4)}
v_fma_f32 v{t1}, 2.0, v{s(3)}, v{t1}
v_fma_f32 v{t1}, v{r1}, v{t1}, v{s(1)}
v_fma_f32 v{s(2)}, v{r1}, v{s(5)}, v{s(2)}
v_mul_f32 v{s(7)}, v{k1}, v{s(7)}
v_fma_f32 v{s(2)}, -2.0, v{s(2)}, v{s(7)}
v_fma_f32 v{t1}, v{k1}, v{s(2)}, v{t1}
v_mul_f32 v{t0}, {inv:#x}, v{t0}
v_mul_f32 v{t1}, {inv:#x}, v{t1}
v_fma_f32 v{t1}, -v{t0}, v{t0}, v{t1}
v_max_f32 v{t1}, 0, v{t1}
v_add_f32 v{t1}, 0x3727c5ac, v{t1}
v_rsq_f32 v{r2}, v{t1}
v_mul_f32 v{k2}, v{t0}, v{r2}''')
        bc = 'op_sel:[0,0,1] op_sel_hi:[1,0,1] neg_lo:[0,0,1] neg_hi:[0,0,1]'
        U, UP = 160, 180
        for i in range(10):
            A(f'v_pk_fma_f32 {v2(U + 2 * i)}, {v2(a + 2 * i)}, {v2(r1)}, {v2(r1)} {bc}')
        for i in range(10):
            A(f'v_pk_fma_f32 {v2(a + 2 * i)}, {v2(U + 2 * i)}, {v2(YF + 2 * i)}, {v2(a + 2 * i)}')
        for i in range(10):
            A(f'v_pk_fma_f32 {v2(U + 2 * i)}, {v2(a + 2 * i)}, {v2(r2)}, {v2(r2)} {bc}')
        for i in range(10):
            A(f'v_cvt_pk_bf16_f32 v{UP + i}, v{U + 2 * i}, v{U + 2 * i + 1}')
        mode_stores([f'buffer_store_dwordx2 {v2(UP + 2 * m)}, v{vU[5]}, {WU}, s{sX[1]} offen offset:{128 * m}'
                     for m in range(5)], through=OPT['thr'] & 8 and not UO)
        stamp('u2_st')
        for i in range(10):
            A(f'v_pk_fma_f32 {v2(a + 2 * i)}, {v2(U + 2 * i)}, {v2(DF + 2 * i)}, {v2(a + 2 * i)}')
        for i in range(20):
            A(f'v_accvgpr_write_b32 a{A_Z + i}, v{a + i}')
        A(f's_add_u32 s{sT[1]}, s{sFW}, {WS_FU}\ns_waitcnt vmcnt(0)')
        flag_store(f's{sT[1]}', True)
        A(f's_cmp_lg_u32 s{sEpW}, {31 * 32}')
        with A.skip_if('s_cbranch_scc1', lambda c: True):
            flag_store('0', False)
        fl = f'buffer_load_dwordx2 {v2(vU[0])}, v{vU[4]}, {W}, s{sX[0]} offen sc1'
        for j in range(5):
            g1.rd(0, j)
        check_tags([vU[0], vU[1]], fl, inline=1)
        stamp('u2_ready')
    else:
        A(f'v_add_f32 v{G}, v{S}, v{S + 1}\nv_add_f32 v{G + 1}, v{S + 2}, v{S + 3}\nv_mov_b32 v{G + 2}, s{sTag}\n'
          f'v_mov_b32 v{G + 3}, s{sTag}')
        allreduce_q(G, S)
        A('s_mov_b64 exec, 0xffff')
        mode_stores([f'buffer_store_dwordx4 {v4(G)}, v{vL16}, {W}, s{sT[1]} offen'], through=OPT['thr'] & 16)
        A('s_mov_b64 exec, -1')
        stamp('st_pub_1')
        if OPT['wb'] & 64:
            wbl2()
        lg = LG()
        X3, Y3 = 160, YF
        A(f'''s_mul_i32 s{sT[2]}, s{sW}, 10240
s_add_u32 s{sT[2]}, s{sT[2]}, {L_RED}
v_lshrrev_b32 v{vT[1]}, 1, v{vI}
v_xor_b32 v{vT[1]}, v{vT[1]}, v{vQ}
v_and_b32 v{vT[1]}, 3, v{vT[1]}
v_lshlrev_b32 v{vT[1]}, 4, v{vT[1]}
v_lshl_add_u32 v{vT[1]}, v{vI}, 6, v{vT[1]}
v_add_u32 v{vU[2]}, s{sT[2]}, v{vT[1]}''')
        for m in range(5):
            lg(f'ds_write_b128 v{vU[2]}, {v4(a + 4 * m)} offset:{1024 * m}')
        A(f'''v_lshrrev_b32 v{vT[1]}, 3, v{vL}
v_xor_b32 v{vT[1]}, v{vT[1]}, v{vL}
v_and_b32 v{vT[1]}, 3, v{vT[1]}
v_lshlrev_b32 v{vT[1]}, 4, v{vT[1]}
v_lshrrev_b32 v{vT[2]}, 2, v{vL}
v_lshl_add_u32 v{vT[1]}, v{vT[2]}, 6, v{vT[1]}
v_add_u32 v{vU[3]}, s{sT[2]}, v{vT[1]}''')
        for m in range(5):
            lg(f'ds_read_b128 {v4(X3 + 4 * m)}, v{vU[3]} offset:{1024 * m}')
        A(f'''v_and_b32 v{vT[3]}, 3, v{vL}
v_lshlrev_b32 v{vT[0]}, 13, v{vT[3]}
v_lshl_add_u32 v{vT[0]}, v{vT[2]}, 4, v{vT[0]}
s_add_u32 s{sT[1]}, s{sT[0]}, 4096
v_lshrrev_b32 v{vT[1]}, 2, v{vT[2]}
v_lshl_add_u32 v{vT[1]}, v{vT[1]}, 2, v{vT[2]}
v_mul_u32_u24 v{vT[1]}, 2560, v{vT[1]}
v_lshl_add_u32 v{vU[4]}, v{vT[3]}, 4, v{vT[1]}
s_lshl_b32 s{sT[3]}, s{sR64}, 6
s_lshr_b32 s{sX[1]}, s{sW}, 1
s_lshl_b32 s{sX[1]}, s{sX[1]}, 5
s_add_u32 s{sT[3]}, s{sT[3]}, s{sX[1]}
s_and_b32 s{sX[1]}, s{sW}, 1
s_lshl_b32 s{sX[1]}, s{sX[1]}, 2
s_add_u32 s{sT[3]}, s{sT[3]}, s{sX[1]}
s_mul_i32 s{sT[3]}, s{sT[3]}, 2560
s_mul_i32 s{sX[1]}, s{sS8}, 320
s_add_u32 s{sT[3]}, s{sT[3]}, s{sX[1]}''')
        Q = 128
        ld = [f'buffer_load_dwordx3 {v3(Q)}, v{vT[0]}, {W}, s{sT[0]} offen sc1',
              f'buffer_load_dwordx3 {v3(Q + 4)}, v{vT[0]}, {W}, s{sT[1]} offen sc1']
        check_tags([Q + 2, Q + 6], ld, inline=1)
        A('s_waitcnt lgkmcnt(0)')
        stamp('st_in_1')
        if OPT['wb'] & 32:
            wbl2()
        A(f'v_pk_add_f32 {v2(Q)}, {v2(Q)}, {v2(Q + 4)}')
        for mod in ('quad_perm:[1,0,3,2]', 'quad_perm:[2,3,0,1]'):
            A(f'v_add_f32_dpp v{Q}, v{Q}, v{Q} {mod} {DPPM}\nv_add_f32_dpp v{Q + 1}, v{Q + 1}, v{Q + 1} {mod} {DPPM}')
        r1, t0 = 200, 202
        A(f'''v_mul_f32 v{Q}, {inv:#x}, v{Q}
v_mul_f32 v{t0}, {inv:#x}, v{Q + 1}
v_fma_f32 v{t0}, -v{Q}, v{Q}, v{t0}
v_max_f32 v{t0}, 0, v{t0}
v_add_f32 v{t0}, 0x3727c5ac, v{t0}
v_rsq_f32 v{r1}, v{t0}
v_mul_f32 v{r1 + 1}, v{Q}, v{r1}''')
        bc = 'op_sel:[0,0,1] op_sel_hi:[1,0,1] neg_lo:[0,0,1] neg_hi:[0,0,1]'
        U = 132
        ls = []
        for m in range(5):
            u = U + 4 * (m & 1)
            for hf in range(2):
                ls.append(f'v_pk_fma_f32 {v2(u + 2 * hf)}, {v2(X3 + 4 * m + 2 * hf)}, {v2(r1)}, {v2(r1)} {bc}')
            for hf in range(2):
                i = 4 * m + 2 * hf
                ls.append(f'v_pk_fma_f32 {v2(X3 + i)}, {v2(u + 2 * hf)}, {v2(Y3 + i)}, {v2(X3 + i)}')
            ls.append(f'buffer_store_dwordx4 {v4(X3 + 4 * m)}, v{vU[4]}, {s4(R_T0)}, s{sT[3]} offen offset:{64 * m}'
                      + ['', '', ' nt', ' nt'][OPT['om']])
        mode_stores(ls, through=OPT['om'] in (1, 2))
        if OPT['wb'] & 16:
            wbl2()
        stamp('out_st')


def retry(back):
    lab, done = A.label('retry'), A.label('giveup')
    A.cond[lab] = lambda c: False
    if OPT['inl']:
        A.cond[back] = A.cond[done] = lambda c: False
        A(f's_sub_u32 s{sBud}, s{sBud}, 1\ns_cmp_gt_i32 s{sBud}, 0\ns_cbranch_scc0 {done}\ns_cbranch_vccnz {back}\n{done}:')
        return
    A(f's_cbranch_vccnz {lab}\n{done}:')
    TAIL.append(f'{lab}:\ns_sub_u32 s{sBud}, s{sBud}, 1\ns_cmp_gt_i32 s{sBud}, 0\n'
                f's_cbranch_scc1 {back}\ns_branch {done}')


def dump_stamps():
    if OPT['fixdur']:
        A(f'v_readfirstlane_b32 s3, v{vStamp}\ns_min_u32 s3, s3, 20000')
        if OPT['pick'] >= 0:
            A(f's_lshl_b32 s4, s{sJ}, 3\ns_add_u32 s4, s4, s{sG}\ns_cmp_eq_u32 s4, {OPT["pick"]}\ns_cselect_b32 s3, s3, 0')
        A(f'''s_add_u32 s{sSt}, s{sSt}, s3
L_fix:
s_memrealtime s[0:1]
s_waitcnt lgkmcnt(0)
s_sub_u32 s0, s0, s{sSt}
s_cmp_lt_i32 s0, {OPT['fixdur']}
s_cbranch_scc1 L_fix''')
    if not OPT['stamps']:
        return
    A(f'''s_waitcnt vmcnt(0) lgkmcnt(0)
v_writelane_b32 v{vStamp}, s{sSt}, {PREV[0]}
s_memrealtime {s2(sSt)}
s_waitcnt lgkmcnt(0)
v_writelane_b32 v{vStamp}, s{sSt}, 63
s_lshl_b32 s{sT[0]}, s{sR64}, 3
s_add_u32 s{sT[0]}, s{sT[0]}, s{sS8}
s_lshl_b32 s{sT[0]}, s{sT[0]}, 2
s_add_u32 s{sT[0]}, s{sT[0]}, s{sW}
s_lshl_b32 s{sT[0]}, s{sT[0]}, 8
s_add_u32 s{sT[0]}, s{sT[0]}, {WS_DBG}
v_lshlrev_b32 v{vT[0]}, 2, v{vL}
buffer_store_dword v{vStamp}, v{vT[0]}, {W}, s{sT[0]} offen''')


def body():
    prologue()
    g2 = conv(*front(startup()))
    vm = g2.vm
    lg = gemm2(g2)
    g = G1(1, VM())
    epilogue(0, vm, lg, g)
    n1 = OPT['n1']
    for f in range(n1):
        g.ld(f)
    for f in range(n1, 40):
        g.side.add((f - n1) // 2, lambda f=f: g.ld(f))
    if OPT['wb'] & 1:
        g.side.add(16, wbl2)
    if OPT['tc2']:
        g.side.add(OPT['tc2'], retouch())
    if UO:
        g.side.add(19, atom(f's_add_u32 s{sT[0]}, s{sFW}, {WS_FD}', lambda: flag_store(f's{sT[0]}', True)))
    for s in range(20):
        g.step(s)
    stamp('g1_1')
    scan_1(1)
    vm = VM()
    run(horner(1, vm, LG()))
    if OPT['prefetch'] & 8:
        run(code_touch())
    pre, ld = agg_ld(1)
    A(pre)
    if UO:
        fd = f'buffer_load_dword v192, v193, {W}, s{sX[4]} offen sc1'
        A(f'v_lshlrev_b32 v193, 2, v{vL}\ns_and_b32 s{sX[4]}, s{sFW}, 0x3c00\ns_add_u32 s{sX[4]}, s{sX[4]}, {WS_FD}')
        vm(fd)
    for l in ld:
        vm(l, 'agg')
    A(f'''s_mul_i32 s{sT[0]}, s{sW}, 2560
s_add_u32 s{sT[0]}, s{sT[0]}, 24576
v_lshlrev_b32 v{vT[0]}, 5, v{vI}
v_lshl_add_u32 v{vT[0]}, v{vQ}, 3, v{vT[0]}
v_add_u32 v{vT[0]}, s{sT[0]}, v{vT[0]}
v_lshl_add_u32 v{vT[1]}, v{vL}, 3, s{sT[0]}''')
    run([f'ds_write_b64 v{vT[0]}, a[{A_Y + 2 * m}:{A_Y + 2 * m + 1}] offset:{512 * m}' for m in range(5)]
        + [f'ds_read_b64 {v2(YP + 2 * m)}, v{vT[1]} offset:{512 * m}' for m in range(5)])
    scan_2(1, vm, ld, {'agg': lambda: check_tags([192], fd)} if UO else {})
    g2_setup(1)
    h_flag(1, vm)
    if OPT['wb'] & 8:
        wbl2()
    g2 = G2(1, vm)
    g2.begin()
    lg = gemm2(g2)
    epilogue(1, vm, lg)
    dump_stamps()
    A('L_end:\ns_endpgm')
    for t in TAIL:
        A(t)
    A('s_endpgm\nL_codeend:')


def main():
    hdr = open(os.path.join(os.path.dirname(os.path.abspath(__file__)), NAME + '.s.ref')).read().split('; Override')[0]
    A2 = [hdr.rstrip(), f'; @launch grid=(256,1,1) block=(256,1,1) lds={LDS_SIZE}',
          '.amdgcn_target "amdgcn-amd-amdhsa--gfx950"\n.text',
          f'.globl {NAME}_kernel\n.p2align 8\n.type {NAME}_kernel,@function\n{NAME}_kernel:']
    body()
    n = A.fix_hazards()
    if OPT['align']:
        print('; align: promoted %d, padded %d' % A.align8(999, False), file=sys.stderr)
    cfgs = [dict(w=w, fast=f, ty=ty) for w in range(4) for f in (0, 1) for ty in (0, 1)]
    errs = A.check_waits(cfgs)
    for e in sorted(set(errs))[:40]:
        print('WAITCNT:', e, file=sys.stderr)
    print(f'; {n} hazard pads inserted; {len(A.L)} lines; stamps: {STAMPS}', file=sys.stderr)
    A2.append('; WS ' + '\n; WS '.join(f'{k}={v:#x}' for k, v in dict(RS=WS_RS, H=WS_H, KV=WS_KV, Y=WS_Y, CF=WS_CF,
                                                                   U2=WS_U2, H2=WS_H2, DBG=WS_DBG, CFOLD=1).items()))
    if STAMPS:
        A2.append('; STAMPS ' + ' '.join(STAMPS))
    A2.append(A.text())
    A2.append(f'''.section .rodata,"a"
.p2align 6
.amdhsa_kernel {NAME}_kernel
  .amdhsa_next_free_vgpr 512
  .amdhsa_next_free_sgpr 102
  .amdhsa_accum_offset 256
  .amdhsa_group_segment_fixed_size 0
  .amdhsa_kernarg_size 144
  .amdhsa_user_sgpr_count 2
  .amdhsa_user_sgpr_kernarg_segment_ptr 1
  .amdhsa_system_sgpr_workgroup_id_x 1
.end_amdhsa_kernel''')
    print('\n'.join(A2))


if __name__ == '__main__':
    main()
```

```python
import sys
import os
import copy
sys.path.insert(0, os.path.dirname(os.path.abspath(__file__)))
from asmlib import Asm

NAME = 'interleave_layers__ssm_conv_s5__ssm_conv_h3__prompt'
OPT = dict(stamps=0, rt=1, reuse=1, force_slow=0, budget=1 << 18, align=3, nt=5, prefetch=11,
           gw=1, rsc=17, late=13, lper=3, b1s=0, b2s=0, b3s=0, b4s=2, cfs=0, cfper=14, kls=14, kvf=5, cff=7, fsp=10, fsc=12, wv0=10, wv=16,
           aggl=21, clend=20, cs2=8, nu=3, defer=3, stp=3, cl2s=3, hfl=8, hp=6, yp0=3, clr=3, fbp=-13, fbc=-17, lag=1, cs1=7, cb=5, cl2=12, ys=0, yper=8, zper=8, csp=14, csc=17, cl0=8,
           order='S,A,M,G,T,@setup,R,@roles,O,B0,X0,X1,C', post='L1,L2',
           n0=6, n00=8, n1=6, yp=26, ra=17, rb=24, rper=9, rc=35, wper=2, r3=0, om=0, wb=0, wbw=3, wbs=0, dbg=0, rl=0, rls=1, uout=1, cfp=0, os=4, oper=1, kwl=0, nbar=4, kvd=0, mlate=0, t0=1, zlate=0, hout=1, lpre=2, tc2=17, thr=11, tch=12, inl=1, look=14, light=1, fixdur=0, probe='', pick=-1)
for a in sys.argv[1:]:
    k, v = a.split('=')
    assert k in OPT, k
    OPT[k] = v if k in ('probe', 'order', 'post') else int(v, 0)

WS_FU = 0x1000
WS_FH = WS_FU + 256
WS_FD = WS_FU + 768
WS_FY = 0x6000
WS_FB = 0x8000
WS_FK = 0x10000
WS_FS = WS_FK + 512
WS_FX = WS_FK + 1024
WS_RS = 0x40000
WS_CS = 0x4A000
WS_AGG = 0x50000
AGG_L = 16 * 32 * 640
WS_ST = 0x140000
WS_U = 0x400000
WS_H = 0xA00000
WS_KV = WS_U if OPT['reuse'] else 0x1000000
WS_Y = 0x1300000
WS_CF = 0x1600000
WS_KB = 0x1900000
WS_U2 = WS_U
WS_H2 = WS_H if OPT['reuse'] else 0x1B00000
WS_DBG = 0x2400000
WS_SIZE = 0x2800000
OOB = 0x70000000

L_AR = 102400
L_SK = L_AR + 2 * 8192
VOFF = 12 * 1056
L_SS, L_SS2, L_V = L_SK + VOFF + 9 * 1056, L_SK + VOFF + 11 * 1056, L_SK + 25 * 1056
L_KV = 0
L_TR = 13824
L_K = 102400
L_PM = 102400
L_PS = L_K + 3 * 8320
L_P = L_PS + 16384
L_RED = 102400
L_Y = 143360
L_AS = 152320
L_G = 149504
L_RS = 158720
L_C = 159744
L_L = 160640
LDS_SIZE = 163840

P_X, P_LRE, P_LIM, P_BRE, P_BIM, P_CRE, P_CIM, P_LDT = 16, 18, 20, 22, 24, 26, 28, 30
P_DSK, P_Q, P_K, P_V, P_SK, P_SSK, P_SD, P_OUT, P_DBG, P_WS = 32, 34, 36, 38, 40, 42, 44, 46, 48, 50
R_WS, R_B, R_T0, R_T1, R_X = 52, 56, 60, 64, 68
sG, sJ, sOnes = 0, 1, 2
sR128, sMem, sR64, sS8, sW, sTag, sMode, sBud, sXcc = 3, 4, 5, 6, 7, 8, 9, 10, 11
sT = [12, 13, 14, 15]
sD = [72, 73]
sBs, sBm, sXs, sXm = 74, 75, 76, 77
sH = [78, 79, 80, 81, 82]
sAgg = 83
sFW, sFK = 84, 85
sC0, sCs = 86, 24
sKm, sKf, sKs = 40, 41, 36
sX = [87, 88, 89, 90, 91, 92, 93, 94, 95]
sPub = 96
sPC = 98
sSt = 100
sL = [34, 35]
sDS = [16, 17, 18, 19]
sZ = [20, 21, 48, 49]
sYO = [50, 51]
sDm = [30, 31, 25, 45]
sEpW = 44

vUA, vL, vL16, vI, vQ = 0, 1, 2, 3, 4
vBA = [5, 6, 7, 8]
vAS, vStamp = 9, 10
vT = [11, 12, 13, 14, 15]
LR, LS, VA = 16, 21, 26
mL8, mL128, mW = 36, 38, 40
vU = [42, 43, 44, 45, 46, 47]
ACC, BF, RING, NR = 48, 88, 128, 16
A_Y, A_Z, A_DSK = 200, 210, 230
PARK = dict(tw=240, tr=241, ts=242, bd=243, bd2=244, rt=245, junk=250)
A_CV = 200
A_X, A_ZU = 216, 226

A = Asm()
NT, NTC, NTK, NTP, NTX, NTT = [' nt' if OPT['nt'] >> i & 1 else '' for i in range(6)]
STAMPS = []
PREV = [61]
TAIL = []
DPPM = 'row_mask:0xf bank_mask:0xf'
SWP = f'quad_perm:[1,0,3,2] {DPPM}'
W = f's[{R_WS}:{R_WS + 3}]'
HO = OPT['reuse'] and OPT['hout']
WH = f's[{R_T0}:{R_T0 + 3}]' if HO else W
HB = [0, 0] if HO else [WS_H, WS_H2]
UO = HO and OPT['uout']
WU = WH if UO else W


def s2(n): return f's[{n}:{n + 1}]'
def s4(n): return f's[{n}:{n + 3}]'
def v2(n): return f'v[{n}:{n + 1}]'
def v3(n): return f'v[{n}:{n + 2}]'
def v4(n): return f'v[{n}:{n + 3}]'
def a4(n): return f'a[{n}:{n + 3}]'


def srd(r, p, size):
    A(f's_mov_b32 s{r}, s{p}\ns_and_b32 s{r + 1}, s{p + 1}, 0xffff\ns_mov_b32 s{r + 2}, {size}\n'
      f's_mov_b32 s{r + 3}, 0x20000')


def stamp(name, level=1):
    if ':' in OPT['probe']:
        a, b, kind = OPT['probe'].split(':')
        op = 's_memtime' if kind == 'c' else 's_memrealtime'
        if name == a:
            A(f'{op} vcc\ns_waitcnt lgkmcnt(0)\nv_mov_b32 v{vStamp}, vcc_lo')
        if name == b:
            A(f'{op} vcc\ns_waitcnt lgkmcnt(0)\nv_sub_u32 v{vStamp}, vcc_lo, v{vStamp}\n'
              + (f'v_lshrrev_b32 v{vStamp}, 2, v{vStamp}' if kind == 'c' else f'v_lshlrev_b32 v{vStamp}, 2, v{vStamp}'))
    if OPT['probe'] == name:
        A(f's_memrealtime vcc\ns_waitcnt lgkmcnt(0)\ns_sub_u32 vcc_lo, vcc_lo, s{sSt}\ns_lshl_b32 vcc_lo, vcc_lo, 2\n'
          f'v_mov_b32 v{vStamp}, vcc_lo')
    if not OPT['stamps'] or (OPT['stamps'] < 0 and name != 'start') or level > abs(OPT['stamps']):
        return
    if name not in STAMPS:
        STAMPS.append(name)
    i = STAMPS.index(name)
    op = 's_memrealtime' if OPT['rt'] else 's_memtime'
    if name == 'start' or not OPT['light']:
        A(f'{op} {s2(sSt)}\ns_waitcnt lgkmcnt(0)\nv_writelane_b32 v{vStamp}, s{sSt}, {i}')
    else:
        A(f'v_writelane_b32 v{vStamp}, s{sSt}, {PREV[0]} ; nocheck\n{op} {s2(sSt)} ;@{i}')
        PREV[0] = i


class Cnt:
    def __init__(self, what, cap):
        self.n, self.t, self.what, self.cap, self.done = 0, {}, what, cap, 0

    def __call__(self, text, name=None):
        A(text)
        self.n += 1
        if name is not None:
            self.t[name] = self.n
        return self.n

    def wait(self, *names):
        tok = max(self.t[x] if not isinstance(x, int) else x for x in names)
        if tok <= self.done:
            return
        k = self.n - tok
        assert k >= 0
        if k <= self.cap:
            A(f's_waitcnt {self.what}({k})')
            self.done = tok
        else:
            A(f's_waitcnt {self.what}({self.cap})')
            self.done = self.n - self.cap

    def merge(self, o):
        n = max(self.n, o.n)
        t = {}
        for k in set(self.t) | set(o.t):
            t[k] = n - min(c.n - c.t[k] for c in (self, o) if k in c.t)
        self.done = n - max(self.n - self.done, o.n - o.done)
        self.n, self.t = n, t


def VM(): return Cnt('vmcnt', 63)
def LG(): return Cnt('lgkmcnt', 15)


def lines(x):
    if isinstance(x, str):
        return [l for l in x.split('\n') if l.strip()]
    if isinstance(x, (list, tuple)):
        return [l for it in x for l in lines(it)]
    return [x]


def atom(*items):
    return lambda: run(items)


def run(items):
    for it in lines(items):
        A(it) if isinstance(it, str) else it()


class Side:
    def __init__(self):
        self.q = {}

    def add(self, step, *items):
        self.q.setdefault(step, []).extend(lines(items))

    def spread(self, step0, per, items):
        flat = lines(items)
        for i, it in enumerate(flat):
            self.add(step0 + i // per, it)
        return step0 + (len(flat) + per - 1) // per

    def run(self, step, slots_left):
        q = self.q.get(step, [])
        n = -(-len(q) // slots_left)
        self.q[step] = q[n:]
        for it in q[:n]:
            A(it) if isinstance(it, str) else it()

    def left(self, lo=0, hi=999):
        return [k for k, v in self.q.items() if v and lo <= k < hi]


class Cap:
    def __enter__(self):
        self.save = A.L
        A.L = []
        return self

    def __exit__(self, *a):
        self.lines = [i.text for i in A.L]
        A.L = self.save


def check_tags(regs, reload, masked=False, x=None, y=None, inline=0):
    x, y = vT[4] if x is None else x, vT[3] if y is None else y
    if len(regs) <= 2:
        chk = [f'v_xor_b32 v{x}, s{sTag}, v{regs[0]}']
        for r in regs[1:]:
            chk += [f'v_xor_b32 v{y}, s{sTag}, v{r}', f'v_or_b32 v{x}, v{x}, v{y}']
        chk.append(f'v_cmp_lt_u32 vcc, 15, v{x}' if masked else f'v_cmp_ne_u32 vcc, 0, v{x}')
    else:
        assert not masked and len(regs) % 2 == 0
        chk = [f'v_min3_u32 v{x}, v{regs[0]}, v{regs[1]}, s{sTag}', f'v_max3_u32 v{y}, v{regs[0]}, v{regs[1]}, s{sTag}']
        for i in range(2, len(regs), 2):
            chk += [f'v_min3_u32 v{x}, v{x}, v{regs[i]}, v{regs[i + 1]}', f'v_max3_u32 v{y}, v{y}, v{regs[i]}, v{regs[i + 1]}']
        chk.append(f'v_cmp_ne_u32 vcc, v{x}, v{y}')
    lab, done = A.label('again'), A.label('ok')
    A.cond[lab] = lambda c: False
    if inline and OPT['inl']:
        if inline == 2:
            A.cond[done] = lambda c: True
            A('\n'.join(chk) + f'\ns_cbranch_vccz {done}')
        out = A.label('out')
        A.cond[out] = lambda c: False
        run([f'{lab}:'] + lines(reload) + [f's_sub_u32 s{sBud}, s{sBud}, 1', f's_cmp_gt_i32 s{sBud}, 0', 's_waitcnt vmcnt(0)']
            + chk + [f's_cbranch_scc0 {out}', f's_cbranch_vccnz {lab}', f'{out}:', f'{done}:'])
        return
    if inline == 1:
        run(lines(reload) + ['s_waitcnt vmcnt(0)'])
    A('\n'.join(chk) + f'\ns_cbranch_vccnz {lab}\n{done}:')
    TAIL.append('\n'.join([f'{lab}:', f's_sub_u32 s{sBud}, s{sBud}, 1', f's_cmp_gt_i32 s{sBud}, 0', f's_cbranch_scc0 {done}']
                          + lines(reload) + ['s_waitcnt vmcnt(0)'] + chk + [f's_cbranch_vccnz {lab}', f's_branch {done}']))


def mode_stores(ls, mode=sMode, through=False):
    if through:
        return run([(l + ' sc1') if l.startswith('buffer_store') else l for l in ls])
    slow, back = A.label('slow'), A.label('back')
    A.cond[slow] = lambda c: not c['fast'] or (mode != sMode and c['w'] == 2)
    A(f's_cmp_eq_u32 s{mode}, 0\ns_cbranch_scc1 {slow}')
    for l in ls:
        A(l)
    A(f'{back}:')
    TAIL.append(f'{slow}:\n' + '\n'.join((l + ' sc1') if l.startswith('buffer_store') else l for l in ls)
                + f'\ns_nop 1\ns_branch {back}')


def flag_store(soff, local, vm=None, mode=sMode):
    t = vT[4]
    A(f'v_mov_b32 v{t}, s{sTag}\ns_mov_b64 exec, 1')
    line = f'buffer_store_dword v{t}, off, {W}, {soff}'
    if local:
        mode_stores([line], mode)
    else:
        A(line + ' sc1')
    A('s_mov_b64 exec, -1')
    if vm is not None:
        vm.n += 1


def unpack(dst, src, n):
    out = []
    for i in range(n):
        out += [f'v_lshlrev_b32 v{dst + 2 * i}, 16, v{src + i}', f'v_and_b32 v{dst + 2 * i + 1}, 0xffff0000, v{src + i}']
    return out


def rnd_bf16(v):
    A(f'v_cvt_pk_bf16_f32 v{v}, v{v}, v{v}\nv_and_b32 v{v}, 0xffff0000, v{v}')


def cmul(dst, g, lam, add=None):
    if add is None:
        a = f'v_pk_mul_f32 {v2(dst)}, {v2(g)}, {v2(lam)} op_sel:[1,1] op_sel_hi:[0,1] neg_lo:[0,1]'
    else:
        a = f'v_pk_fma_f32 {v2(dst)}, {v2(g)}, {v2(lam)}, {v2(add)} op_sel:[1,1,0] op_sel_hi:[0,1,1] neg_lo:[0,1,0]'
    return [a, f'v_pk_fma_f32 {v2(dst)}, {v2(g)}, {v2(lam)}, {v2(dst)} op_sel:[0,0,0] op_sel_hi:[1,0,1]']


def park(name, v): A(f'v_accvgpr_write_b32 a{PARK[name]}, v{v}')
def unpark(name, v): return f'v_accvgpr_read_b32 v{v}, a{PARK[name]}'


def code_touch():
    return [f's_and_b32 vcc_lo, s{sJ}, 7', 's_lshl_b32 vcc_lo, vcc_lo, 2', f's_add_u32 vcc_lo, vcc_lo, s{sW}',
            's_lshl_b32 vcc_lo, vcc_lo, 11', f'v_lshl_add_u32 v{vT[4]}, v{vI}, 7, vcc_lo',
            f'v_min_u32 v{vT[4]}, L_codeend-L_pc-4, v{vT[4]}', 's_mov_b64 exec, 0xffff',
            f'global_load_dword a250, v{vT[4]}, {s2(sPC)}', 's_mov_b64 exec, -1']


def touch_addr(dst, segs):
    n = 0
    for cnt, code in segs:
        A(code.replace('$', f's{sT[0]}'))
        A(f's_sub_u32 s{sT[0]}, s{sT[0]}, {128 * n}')
        if n:
            A(f'v_cmp_lt_u32 vcc, {n - 1}, v{vL}\nv_mov_b32 v{vT[4]}, s{sT[0]}\nv_cndmask_b32 v{dst}, v{dst}, v{vT[4]}, vcc')
        else:
            A(f'v_mov_b32 v{dst}, s{sT[0]}')
        n += cnt
    A(f'v_lshl_add_u32 v{dst}, v{vL}, 7, v{dst}')
    return n


SEG_ST = (24, f's_lshl_b32 $, s{sR128}, 4\ns_add_u32 $, $, s{sMem}\ns_lshl_b32 $, $, 12\ns_add_u32 $, $, {WS_ST}')
SEG_F = (8, f's_lshl_b32 $, s{sR128}, 10\ns_add_u32 $, $, {WS_FU}')


def retouch():
    return atom(unpark('rt', vT[0]), f's_mov_b32 exec_lo, s{sPub}', 's_mov_b32 exec_hi, 0',
                f'buffer_load_dword a250, v{vT[0]}, {W}, 0 offen', 's_mov_b64 exec, -1')


def wbl2():
    A(f's_lshl_b32 vcc_lo, s{sJ}, 2\ns_add_u32 vcc_lo, vcc_lo, s{sW}\ns_cmp_lg_u32 vcc_lo, {OPT["wbw"]}')
    with A.skip_if('s_cbranch_scc1', lambda c: True):
        A('buffer_wbl2 sc1')


AF = 128
vAR, vAR2, vXd, vXd2, vBd, vBd2, vR, vSgn = 144, 145, 146, 147, 148, 149, 150, 151
CR, CI, CT, CTMP, vCd = 176, 180, 192 if OPT['cfs'] >= 0 else 128, 152, 174
vKV, vKS, vKR, vSR, vFX, vFXa = 169, 171, 172, 173, 184, 185
KK, VV, SKW, WW, AC, KT = 48, 70, 88, 96, 112, 216
OUT = [232, 236, 208, 212] if OPT['kvd'] else [232, 236, 88, 92]
XP, XS = 48, 88
PAR = 229
KA, KB, vKO, vKP = 192, 204, 186, 163
vZ, vXT = 224, 242
RSL, vRS, CSL = 152, 160, 246
MM, RR = 88, 96
vFP, vFA = 188, 187


def x_dma(vm, p):
    s2i, m = p >> 1, p & 1
    if OPT['dbg'] & 512 and p >= 7:
        vm.t['x', p] = vm.t['x', 6]
        return
    A(f's_add_u32 m0, s{sXm}, {(p % 7) * 8192}\ns_add_u32 s{sT[3]}, s{sXs}, {4 * m * 1280 + s2i * 128}')
    vm(f'buffer_load_dwordx4 v{vXd}, {s4(R_X)}, s{sT[3]} offen lds')
    vm(f'buffer_load_dwordx4 v{vXd2}, {s4(R_X)}, s{sT[3]} offen offset:1024 lds', ('x', p))


def b_dma(vm, g, j, bd=vBd, bd2=vBd2):
    A(f's_add_u32 m0, s{sBm}, {g * 20480 + j * 2048}\ns_add_u32 s{sT[2]}, s{sBs}, {g * 256 + j * 10240}')
    vm(f'buffer_load_dwordx4 v{bd}, {s4(R_B)}, s{sT[2]} offen lds', ('b', g))
    if j < 4:
        vm(f'buffer_load_dwordx4 v{bd2}, {s4(R_B)}, s{sT[2]} offen offset:2048 lds', ('b', g))


def b_all(vm, g):
    t = vT
    srd(R_T1, P_BRE, 819200)
    A(f'v_xor_b32 v{t[0]}, 64, v{vBd}\nv_xor_b32 v{t[1]}, 64, v{vBd2}\ns_mul_i32 s{sT[3]}, s{sMem}, 51200')
    for hf in range(2):
        for j in (0, 2, 4):
            A(f's_add_u32 s{sT[2]}, s{sT[3]}, {g * 256 + hf * 128 + j * 10240}')
            for comp, (r, a, a2) in enumerate(((R_T1, t[0], t[1]), (R_B, vBd, vBd2))):
                A(f's_mov_b32 m0, {g * 20480 + hf * 10240 + j * 2048 + comp * 1024}')
                vm(f'buffer_load_dwordx4 v{a}, {s4(r)}, s{sT[2]} offen lds', ('b', g))
                if j < 4:
                    vm(f'buffer_load_dwordx4 v{a2}, {s4(r)}, s{sT[2]} offen offset:2048 lds', ('b', g))


def prologue():
    A('s_cmp_ge_u32 s2, 256\ns_cbranch_scc1 L_end')
    A.cond['L_end'] = lambda c: False
    if OPT['stamps'] or OPT['fixdur']:
        A(f's_memrealtime {s2(sSt)}\nv_mov_b32 v{vStamp}, 0')
    A('s_load_dwordx16 s[16:31], s[0:1], 0\ns_load_dwordx16 s[32:47], s[0:1], 64\n'
      's_load_dwordx4 s[48:51], s[0:1], 128')
    t = vT
    A(f'''v_and_b32 v{vL}, 63, v0
v_lshrrev_b32 v{t[0]}, 6, v0
v_lshlrev_b32 v{vL16}, 4, v{vL}
v_readfirstlane_b32 s{sW}, v{t[0]}
v_and_b32 v{vI}, 15, v{vL}
v_lshrrev_b32 v{vQ}, 4, v{vL}
s_and_b32 s{sT[0]}, s2, 7
s_lshr_b32 s{sT[1]}, s2, 3
s_getpc_b64 {s2(sPC)}
L_pc:
s_and_b32 s{sMem}, s{sT[1]}, 15
s_lshr_b32 s{sT[2]}, s{sT[1]}, 4
s_lshl_b32 s{sR128}, s{sT[0]}, 1
s_add_u32 s{sR128}, s{sR128}, s{sT[2]}
s_mov_b32 s{sG}, s{sT[0]}
s_mov_b32 s{sJ}, s{sT[1]}''')
    if OPT['prefetch'] & 1:
        A('\n'.join(code_touch()))
    A(f'''v_lshrrev_b32 v{t[0]}, 3, v{vL}
v_and_b32 v{t[2]}, 7, v{vL}
v_mul_u32_u24 v{vR}, 1280, v{t[0]}
v_lshl_add_u32 v{vR}, v{t[2]}, 4, v{vR}''')
    kv_src()


def dma_addr():
    t = vT
    A(f'''v_lshrrev_b32 v{t[0]}, 3, v{vL}
v_and_b32 v{t[1]}, 6, v{t[0]}
v_and_b32 v{t[2]}, 7, v{vL}
s_movk_i32 s{sT[3]}, 0x78
v_bfe_u32 v{t[3]}, s{sT[3]}, v{t[1]}, 2
v_xor_b32 v{t[3]}, v{t[3]}, v{t[2]}
v_mul_u32_u24 v{vXd}, 1280, v{t[0]}
v_lshl_add_u32 v{vBd}, v{t[3]}, 4, v{vXd}
s_and_b32 s{sT[0]}, s{sW}, 1
s_lshl_b32 s{sT[1]}, s{sT[0]}, 6
v_xor_b32 v{vBd}, s{sT[1]}, v{vBd}
v_add_u32 v{vBd2}, {10240 - 2048}, v{vBd}
v_xor_b32 v{t[1]}, v{t[1]}, v{t[2]}
v_and_b32 v{t[0]}, 4, v{t[0]}
v_mul_u32_u24 v{t[0]}, 1280, v{t[0]}
v_lshl_add_u32 v{t[0]}, v{t[1]}, 4, v{t[0]}
v_add_u32 v{vXd}, v{t[0]}, v{vXd}
v_add_u32 v{vXd2}, {20480 - 1024}, v{vXd}
s_lshr_b32 s{sT[1]}, s{sW}, 1
s_mul_i32 s{sBm}, s{sT[1]}, 10240
s_lshl_b32 s{sT[0]}, s{sT[0]}, 10
s_add_u32 s{sBm}, s{sBm}, s{sT[0]}
s_mul_i32 s{sBs}, s{sMem}, 51200
s_lshl_b32 s{sT[1]}, s{sT[1]}, 7
s_add_u32 s{sBs}, s{sBs}, s{sT[1]}
s_lshl_b32 s{sXs}, s{sR128}, 2
s_add_u32 s{sXs}, s{sXs}, s{sW}
s_mul_i32 s{sXs}, s{sXs}, 40960
s_lshl_b32 s{sXm}, s{sW}, 11
s_add_u32 s{sXm}, s{sXm}, {L_AR}''')
    A(f'''s_bitcmp1_b32 s{sW}, 0
s_cselect_b32 s{R_B}, s{P_BIM}, s{P_BRE}
s_cselect_b32 s{R_B + 1}, s{P_BIM + 1}, s{P_BRE + 1}
s_and_b32 s{R_B + 1}, s{R_B + 1}, 0xffff
s_mov_b32 s{R_B + 2}, 819200
s_mov_b32 s{R_B + 3}, 0x20000
s_bitcmp1_b32 s{sR128}, 3
s_cselect_b32 s{R_T0}, s{P_BIM}, s{P_BRE}
s_cselect_b32 s{R_T0 + 1}, s{P_BIM + 1}, s{P_BRE + 1}
s_and_b32 s{R_T0 + 1}, s{R_T0 + 1}, 0xffff
s_mov_b32 s{R_T0 + 2}, 819200
s_mov_b32 s{R_T0 + 3}, 0x20000''')
    srd(R_X, P_X, 2621440)
    srd(R_WS, P_WS, WS_SIZE)


def kv_src():
    A(f'''s_mul_i32 s{sT[0]}, s{sJ}, 81920
s_lshl_b32 s{sT[1]}, s{sG}, 7
s_add_u32 s{sT[0]}, s{sT[0]}, s{sT[1]}
v_add_u32 v{vKV}, s{sT[0]}, v{vR}
s_lshl_b32 s{sX[8]}, s{sG}, 5
s_add_u32 s{sX[8]}, s{sX[8]}, s{sJ}
s_mul_i32 s{sT[0]}, s{sX[8]}, 10240
s_add_u32 s{sT[0]}, s{sT[0]}, 1024
v_add_u32 v{vKV + 1}, s{sT[0]}, v{vR}''')


def kv_addr():
    t = vT
    A(f'''v_lshrrev_b32 v{t[0]}, 3, v{vL}
v_and_b32 v{t[1]}, 7, v{vL}
v_mul_u32_u24 v{t[2]}, 1056, v{t[1]}
v_lshl_add_u32 v{t[2]}, v{t[0]}, 3, v{t[2]}
s_lshl_b32 s{sT[0]}, s{sW}, 6
s_add_u32 s{sT[0]}, s{sT[0]}, {L_SK}
v_add_u32 v{vKR}, s{sT[0]}, v{t[2]}
s_lshl_b32 s{sT[0]}, s{sW}, 8
s_add_u32 s{sT[0]}, s{sT[0]}, {L_SS}
v_lshl_add_u32 v{vSR}, v{t[0]}, 5, s{sT[0]}
v_sub_u32 v{t[2]}, 7, v{t[1]}
v_lshlrev_b32 v{t[2]}, 4, v{t[2]}
v_lshl_add_u32 v{vKS}, v{t[0]}, 14, v{t[2]}
s_mul_i32 s{sT[0]}, s{sG}, 80
s_lshl_b32 s{sT[1]}, s{sW}, 5
s_add_u32 s{sT[0]}, s{sT[0]}, s{sT[1]}
s_lshl_b32 s{sT[0]}, s{sT[0]}, 12
s_lshl_b32 s{sT[1]}, s{sJ}, 7
s_sub_u32 s{sT[0]}, s{sT[0]}, s{sT[1]}
s_add_u32 s{sX[0]}, s{sT[0]}, {WS_KV + 3968}
s_add_u32 s{sKf}, s{sFK}, {WS_FK}
s_movk_i32 s{sKs}, 4096
s_cmp_lg_u32 s{sW}, 2''')
    with A.skip_if('s_cbranch_scc1', lambda c: c['w'] != 2):
        A(f'''v_bfe_u32 v{t[2]}, v{vL}, 4, 1
v_mul_u32_u24 v{t[2]}, 2112, v{t[2]}
v_and_b32 v{t[3]}, 15, v{vL}
v_lshl_add_u32 v{t[2]}, v{t[3]}, 3, v{t[2]}
v_add_u32 v{vKR}, {L_SK + 9 * 1056}, v{t[2]}
v_and_b32 v{t[2]}, 31, v{vL}
v_lshlrev_b32 v{t[2]}, 5, v{t[2]}
v_add_u32 v{vSR}, {L_SS2}, v{t[2]}
v_cmp_gt_u32 vcc, 32, v{vL}
v_mov_b32 v{t[3]}, {OOB}
s_lshl_b32 s{sX[0]}, s{sX[8]}, 11
s_add_u32 s{sX[0]}, s{sX[0]}, {WS_KB}
v_cndmask_b32 v{vKS}, v{t[3]}, v{vL16}, vcc
s_lshl_b32 s{sKf}, s{sX[8]}, 2
s_add_u32 s{sKf}, s{sKf}, {WS_FB}
s_movk_i32 s{sKs}, 512''')


def kv_dma(vm, r, a, so, pos, halo=False):
    if halo:
        A(f'v_subrev_u32 v{vT[0]}, 10240, v{a}\ns_mov_b32 exec_lo, 0\ns_mov_b32 exec_hi, 0xffffff00')
    A(f's_mov_b32 m0, {L_SK + pos * 1056}')
    if so > 64:
        A(f's_mov_b32 s{sT[0]}, {so}')
    vm(f'buffer_load_dwordx4 v{vT[0] if halo else a}, {s4(r)}, {"s%d" % sT[0] if so > 64 else so} offen{NT} lds', 'kv')
    if halo:
        A('s_mov_b64 exec, -1')


def kv_loads0(vm):
    srd(R_T0, P_K, 2621440)
    for p in range(1, 8):
        kv_dma(vm, R_T0, vKV, (p - 1) * 10240, p)
    kv_dma(vm, R_T0, vKV, 0, 0, True)


def kv_loads1(vm):
    srd(R_T1, P_V, 2621440)
    for p in range(1, 9):
        kv_dma(vm, R_T1, vKV, (p - 1) * 10240, 12 + p)


def kv_loads2(vm):
    srd(R_T0, P_K, 2621440)
    srd(R_T1, P_V, 2621440)
    kv_dma(vm, R_T0, vKV, 7 * 10240, 8)
    for hf in range(2):
        kv_dma(vm, R_T0, vKV + 1, 128 * hf, 10 + 2 * hf)
        kv_dma(vm, R_T1, vKV + 1, 128 * hf, 22 + 2 * hf)
    for hf in range(2):
        kv_dma(vm, R_T0, vKV + 1, 128 * hf, 9 + 2 * hf, True)
    srd(R_T1, P_SK, 5120)
    A(f's_mov_b32 m0, {L_SS2}\ns_movk_i32 s{sT[0]}, 4096')
    vm(f'buffer_load_dwordx4 v{vL16}, {s4(R_T1)}, s{sT[0]} offen{NTP} lds', 'kv')
    A(f's_mov_b32 m0, {L_SS}\ns_lshl_b32 s{sT[0]}, s{sG}, 9\ns_mov_b32 exec_hi, 0')
    vm(f'buffer_load_dwordx4 v{vL16}, {s4(R_T1)}, s{sT[0]} offen{NTP} lds', 'kv')
    A('s_mov_b32 exec_hi, -1')


def c_loads(vm):
    t = vT
    A(f'''v_mul_u32_u24 v{t[0]}, 171, v{vL}
v_lshrrev_b32 v{t[0]}, 11, v{t[0]}
v_mul_u32_u24 v{t[1]}, 12, v{t[0]}
v_sub_u32 v{t[1]}, v{vL}, v{t[1]}
s_mul_i32 s{sT[0]}, s{sMem}, 5
v_min_u32 v{t[2]}, 4, v{t[0]}
v_add_u32 v{t[2]}, s{sT[0]}, v{t[2]}
s_mul_i32 s{sT[1]}, s{sW}, 12
v_add_u32 v{t[1]}, s{sT[1]}, v{t[1]}
v_cmp_gt_u32 vcc, 40, v{t[1]}
v_cmp_gt_u32 {s2(sT[2])}, 5, v{t[0]}
s_lshr_b32 s{sT[1]}, s{sJ}, 4
s_mul_i32 s{sT[1]}, s{sT[1]}, 40
v_min_u32 v{t[1]}, 39, v{t[1]}
s_and_b64 vcc, vcc, {s2(sT[2])}
v_add_u32 v{t[1]}, s{sT[1]}, v{t[1]}
s_mul_i32 s{sT[2]}, s{sG}, 102400
v_mul_u32_u24 v{t[3]}, 1280, v{t[1]}
v_lshl_add_u32 v{t[3]}, v{t[2]}, 4, v{t[3]}
v_add_u32 v{t[3]}, s{sT[2]}, v{t[3]}''')
    if OPT['dbg'] & 16:
        A(f'v_mov_b32 v{t[3]}, v{vL16}')
    vm(f'global_load_dwordx4 {v4(CR)}, v{t[3]}, {s2(P_CRE)}{NTC}')
    vm(f'global_load_dwordx4 {v4(CI)}, v{t[3]}, {s2(P_CIM)}{NTC}', 'craw')
    A(f'''v_lshrrev_b32 v{t[3]}, 2, v{t[2]}
v_mul_u32_u24 v{t[3]}, 10240, v{t[3]}
v_and_b32 v{t[2]}, 3, v{t[2]}
v_lshl_add_u32 v{t[3]}, v{t[2]}, 8, v{t[3]}
v_lshrrev_b32 v{t[2]}, 4, v{t[1]}
v_lshl_add_u32 v{t[3]}, v{t[2]}, 10, v{t[3]}
v_and_b32 v{t[1]}, 15, v{t[1]}
v_lshl_add_u32 v{t[3]}, v{t[1]}, 4, v{t[3]}
v_mov_b32 v{t[2]}, {OOB}
v_cndmask_b32 v{vCd}, v{t[2]}, v{t[3]}, vcc
v_min_u32 v{t[0]}, 4, v{t[0]}
v_lshlrev_b32 v{t[0]}, 6, v{t[0]}
v_add_u32 v{vCd + 1}, {L_C}, v{t[0]}''')


def cf_work(vm, lg):
    it = [lambda d=d: lg(f'ds_read_b128 {v4(CT + 4 * d)}, v{vCd + 1} offset:{16 * d}', 'ctab') for d in range(4)]
    it.append(lambda: (vm.wait('craw'), lg.wait('ctab')))
    r, i, o = CTMP, CTMP + 2, CTMP + 4
    for d in range(4):
        cr, ci = v2(CT + 4 * d), v2(CT + 4 * d + 2)
        it += unpack(r, CR + d, 1) + unpack(i, CI + d, 1)
        if OPT['cfp']:
            c0 = CT + 4 * d
            it += [f'v_mul_f32 v{o + e}, v{r + e}, v{c0 + e}' for e in range(2)]
            it += [f'v_mul_f32 v{o + 2 + e}, v{r + e}, v{c0 + 2 + e}' for e in range(2)]
            it += [f'v_fma_f32 v{o + e}, -v{i + e}, v{c0 + 2 + e}, v{o + e}' for e in range(2)]
            it += [f'v_fma_f32 v{o + 2 + e}, -v{i + e}, v{c0 + e}, -v{o + 2 + e}' for e in range(2)]
            it += [f'v_cvt_pk_bf16_f32 v{CR + d}, v{o}, v{o + 1}', f'v_cvt_pk_bf16_f32 v{CI + d}, v{o + 2}, v{o + 3}']
            continue
        it += [f'v_pk_mul_f32 {v2(o)}, {v2(r)}, {cr}',
               f'v_pk_mul_f32 {v2(o + 2)}, {v2(r)}, {ci} neg_lo:[0,1] neg_hi:[0,1]',
               f'v_pk_fma_f32 {v2(o)}, {v2(i)}, {ci}, {v2(o)} neg_lo:[0,1,0] neg_hi:[0,1,0]',
               f'v_pk_fma_f32 {v2(o + 2)}, {v2(i)}, {cr}, {v2(o + 2)} neg_lo:[0,1,0] neg_hi:[0,1,0]',
               f'v_cvt_pk_bf16_f32 v{CR + d}, v{o}, v{o + 1}',
               f'v_cvt_pk_bf16_f32 v{CI + d}, v{o + 2}, v{o + 3}']
    it.append(atom(f's_mul_i32 s{sT[0]}, s{sG}, 204800', f's_add_u32 s{sT[0]}, s{sT[0]}, {WS_CF}',
                   f's_add_u32 s{sT[1]}, s{sT[0]}, 5120',
                   lambda: vm(f'buffer_store_dwordx4 {v4(CR)}, v{vCd}, {W}, s{sT[0]} offen sc1'),
                   lambda: vm(f'buffer_store_dwordx4 {v4(CI)}, v{vCd}, {W}, s{sT[1]} offen sc1', 'cfst')))
    return it


def consts():
    lre, lim, ldt = PAR, PAR + 1, PAR + 2
    t = 96
    zr, zi, e, rev, sn, cs = t, t + 1, t + 2, t + 3, t + 4, t + 5
    aL, aV, aC = t + 6, t + 7, t + 8
    P = t + 10
    V = ACC
    Wt = 84
    A(f'''v_lshlrev_b32 v{lre}, 16, v{lre}
v_lshlrev_b32 v{lim}, 16, v{lim}
v_lshlrev_b32 v{ldt}, 16, v{ldt}
v_mul_f32 v{ldt}, 0x3fb8aa3b, v{ldt}
v_exp_f32 v{ldt}, v{ldt}
v_min_u32 v{aC}, 39, v{vL}
v_mul_u32_u24 v{aL}, 80, v{aC}
v_mul_u32_u24 v{aV}, 176, v{aC}''')
    rnd_bf16(ldt)
    A(f'''v_mul_f32 v{zr}, v{ldt}, v{lre}
v_mul_f32 v{zi}, v{ldt}, v{lim}
v_mul_f32 v{zr}, 0x3fb8aa3b, v{zr}
v_mul_f32 v{zi}, 0x3e22f983, v{zi}''')
    for kf, dst in (('1.0', P), ('0x41000000', V + 2)):
        A(f'''v_mul_f32 v{e}, {kf}, v{zr}
v_mul_f32 v{rev}, {kf}, v{zi}
v_exp_f32 v{e}, v{e}
v_fract_f32 v{rev}, v{rev}
v_sin_f32 v{sn}, v{rev}
v_cos_f32 v{cs}, v{rev}
v_mul_f32 v{dst + 1}, v{e}, v{sn}
v_mul_f32 v{dst}, v{e}, v{cs}''')
    A(f'''v_mul_f32 v{e}, v{lre}, v{lre}
v_fmac_f32 v{e}, v{lim}, v{lim}
v_rcp_f32 v{e}, v{e}
v_add_f32 v{rev}, -1.0, v{P}
v_add_f32 v{e}, v{e}, v{e}
v_mul_f32 v{sn}, v{rev}, v{lre}
v_fmac_f32 v{sn}, v{P + 1}, v{lim}
v_mul_f32 v{cs}, v{P + 1}, v{lre}
v_fma_f32 v{cs}, -v{rev}, v{lim}, v{cs}
v_mul_f32 v{sn}, v{e}, v{sn}
v_mul_f32 v{cs}, v{e}, v{cs}
v_and_b32 v{e}, 1, v{aC}
v_lshrrev_b32 v{aC}, 1, v{aC}
v_lshlrev_b32 v{aC}, 4, v{aC}
v_lshl_add_u32 v{aC}, v{e}, 2, v{aC}
v_add_u32 v{aC}, {L_C}, v{aC}
v_add_u32 v{aL}, {L_L}, v{aL}
v_add_u32 v{aV}, {L_V}, v{aV}
ds_write2_b32 v{aC}, v{sn}, v{cs} offset0:0 offset1:2
s_waitcnt lgkmcnt(0)
v_mov_b32 v{V}, 1.0
v_mov_b32 v{V + 1}, 0
v_mov_b32 v{Wt}, 1.0
v_mov_b32 v{Wt + 1}, 0''')
    a = [cmul(P + 2 * k, P + 2 * k - 2, P) for k in range(1, 7)]
    b = [cmul(V + 2 * s, V + 2 * s - 2, V + 2) for s in range(2, 17)]
    for s, ops in enumerate(b):
        A(ops[0])
        if s < len(a):
            A(a[s][0])
        A(ops[1])
        if s < len(a):
            A(a[s][1])
        if 6 <= s < 13:
            k = s - 6
            A(f'ds_write2_b32 v{aL}, v{P + 2 * k}, v{P + 2 * k + 1} offset0:{k} offset1:{8 + k}')
        if s % 2 == 1:
            A(f'ds_write_b128 v{aV}, {v4(V + 2 * (s - 1))} offset:{8 * (s - 1)}')
    A(f'ds_write2_b32 v{aL}, v{V + 2}, v{V + 3} offset0:7 offset1:15')
    A(f'ds_write_b128 v{aV}, {v4(V + 28)} offset:112')
    A('\n'.join(cmul(e, V + 32, V + 32) + cmul(Wt + 2, e, e) + cmul(Wt + 4, Wt + 2, Wt + 2) + cmul(Wt + 6, Wt + 4, Wt + 2)))
    A(f'''ds_write_b64 v{aV}, {v2(V + 32)} offset:128
ds_write_b128 v{aV}, {v4(Wt)} offset:144
ds_write_b128 v{aV}, {v4(Wt + 4)} offset:160''')


def const_reads(lg):
    t = vT
    it = lines(f'''v_lshrrev_b32 v{t[0]}, 1, v{vI}
v_mul_u32_u24 v{t[1]}, 176, v{t[0]}
v_mul_u32_u24 v{t[0]}, 80, v{t[0]}
v_and_b32 v{t[2]}, 1, v{vI}
v_lshl_add_u32 v{t[1]}, v{t[2]}, 2, v{t[1]}
v_lshl_add_u32 v{t[1]}, v{vQ}, 3, v{t[1]}
s_lshl_b32 s{sT[0]}, s{sW}, 5
s_add_u32 s{sT[0]}, s{sT[0]}, {L_V}
v_add_u32 v{t[1]}, s{sT[0]}, v{t[1]}
v_add_u32 v{t[0]}, {L_L}, v{t[0]}
v_cvt_f32_u32 v{vSgn}, v{t[2]}
v_min_u32 v{t[2]}, 39, v{vL}
v_mul_u32_u24 v{t[2]}, 176, v{t[2]}
v_fma_f32 v{vSgn}, 2.0, v{vSgn}, -1.0
v_add_u32 v{t[2]}, {L_V}, v{t[2]}
s_lshl_b32 s{sT[0]}, s{sW}, 3''')
    for j in range(5):
        it.append(lambda j=j: lg(f'ds_read_b32 v{LR + j}, v{t[0]} offset:{j * 640}'))
        it.append(lambda j=j: lg(f'ds_read_b32 v{LS + j}, v{t[0]} offset:{j * 640 + 32}'))
        it.append(lambda j=j: lg(f'ds_read_b32 v{VA + 2 * j}, v{t[1]} offset:{j * 1408}'))
    it.append(lambda: lg(f'ds_read_b64 {v2(mL8)}, v{t[2]} offset:8'))
    it.append(lambda: lg(f'ds_read_b64 {v2(mL128)}, v{t[2]} offset:128'))
    it.append(f'v_add_u32 v{t[2]}, s{sT[0]}, v{t[2]}')
    it.append(lambda: lg(f'ds_read_b64 {v2(mW)}, v{t[2]} offset:144', 'cst'))
    fix = [lambda: lg.wait('cst')]
    for j in range(5):
        fix += [f'v_mul_f32 v{LS + j}, v{vSgn}, v{LS + j}',
                f'v_mul_f32_dpp v{VA + 2 * j + 1}, v{VA + 2 * j}, v{vSgn} {SWP}']
    return it, fix


def kv_work(vm, lg):
    rd = [lambda: lg(f'ds_read_b128 {v4(SKW)}, v{vSR}'), lambda: lg(f'ds_read_b128 {v4(SKW + 4)}, v{vSR} offset:16', 'skw')]
    for r in range(11):
        off = 1056 + (r - 3) * 128 if r >= 3 else (5 + r) * 128
        rd.append(lambda r=r, off=off: lg(f'ds_read_b64 {v2(KK + 2 * r)}, v{vKR} offset:{off}', 'kk'))
    for r in range(8):
        rd.append(lambda r=r: lg(f'ds_read_b64 {v2(VV + 2 * r)}, v{vKR} offset:{VOFF + 1056 + r * 128}', 'vv'))
    it = [lambda: lg.wait('skw')]
    for e in range(4):
        for i in range(4):
            src = SKW + 2 * e + (i >> 1)
            it.append(f'v_and_b32 v{WW + 4 * i + e}, 0xffff0000, v{src}' if i & 1 else
                      f'v_lshlrev_b32 v{WW + 4 * i + e}, 16, v{src}')
    it.append(lambda: lg.wait('kk'))
    for d in range(2):
        pend = []
        for r in range(11):
            tmp = KT + 2 * (r % 2)
            it += unpack(tmp, KK + 2 * r + d, 1) if r == 0 else []
            nxt = unpack(KT + 2 * ((r + 1) % 2), KK + 2 * (r + 1) + d, 1) if r < 10 else []
            ops = []
            for stage in range(4):
                ta = r - stage
                if 0 <= ta < 8:
                    w = v2(WW + 4 * (3 - stage) + 2 * d)
                    ac = v2(AC + 2 * ta)
                    ops.append(f'v_pk_mul_f32 {ac}, {v2(tmp)}, {w}' if stage == 0 else
                               f'v_pk_fma_f32 {ac}, {v2(tmp)}, {w}, {ac}')
            it += ops[:1] + nxt + ops[1:]
        it.append(lambda: lg.wait('vv'))
        for ta in range(8):
            tmp = KT + 4 + 2 * (ta % 2)
            it += unpack(tmp, VV + 2 * ta + d, 1) + pend
            pend = [f'v_pk_mul_f32 {v2(AC + 2 * ta)}, {v2(AC + 2 * ta)}, {v2(tmp)}']
        it += pend
        for eo in range(2):
            for dd in range(4):
                it.append(f'v_cvt_pk_bf16_f32 v{OUT[2 * d + eo] + dd}, v{AC + 2 * (7 - 2 * dd) + eo}, '
                          f'v{AC + 2 * (6 - 2 * dd) + eo}')

    def st():
        ls = []
        for e in range(4):
            if e:
                ls.append(f's_add_u32 s{sX[0]}, s{sX[0]}, s{sKs}')
            ls.append(f'buffer_store_dwordx4 {v4(OUT[e])}, v{vKS}, {W}, s{sX[0]} offen')
        mode_stores(ls, sKm, OPT['thr'] & 1)
        vm.n += 4
        vm.t['kvst'] = vm.n
    it.append(st)
    return rd, it


def stats_work(vm):
    S, Q, ad = XS, XS + 2, vT[0]
    it = [lambda: vm.wait('xp')]
    for i in range(40):
        it.append(f'v_dot2_f32_bf16 v{S}, v{XP + i}, s{sOnes}, ' + (f'v{S}' if i else '0'))
        it.append(f'v_dot2_f32_bf16 v{Q}, v{XP + i}, v{XP + i}, ' + (f'v{Q}' if i else '0'))
    with Cap() as c:
        for mod in ('quad_perm:[1,0,3,2]', 'quad_perm:[2,3,0,1]', 'row_half_mirror'):
            A(f'v_add_f32_dpp v{S}, v{S}, v{S} {mod} {DPPM}')
            A(f'v_add_f32_dpp v{Q}, v{Q}, v{Q} {mod} {DPPM}')
        inv = 0x3acccccd
        A(f'''v_mul_f32 v{S}, {inv:#x}, v{S}
v_mul_f32 v{Q}, {inv:#x}, v{Q}
v_fma_f32 v{Q}, -v{S}, v{S}, v{Q}
v_max_f32 v{Q}, 0, v{Q}''')
        rnd_bf16(S)
        rnd_bf16(Q)
        A(f'v_add_f32 v{Q}, 0x3727c5ac, v{Q}')
        rnd_bf16(Q)
        A(f'v_sqrt_f32 v{Q}, v{Q}')
        rnd_bf16(Q)
        A(f'''v_rcp_f32 v{S + 1}, v{Q}
v_mov_b32 v{Q}, s{sTag}
v_mov_b32 v{Q + 1}, s{sTag}''')

    def st():
        A(f'''v_lshlrev_b32 v{ad}, 1, v{vL}
s_lshl_b32 s{sT[0]}, s{sR128}, 4
s_add_u32 s{sT[0]}, s{sT[0]}, s{sMem}
s_lshl_b32 s{sT[0]}, s{sT[0]}, 7
s_add_u32 s{sT[0]}, s{sT[0]}, {WS_RS}
s_mov_b32 exec_lo, 0x01010101
s_mov_b32 exec_hi, 0x01010101''')
        vm(f'buffer_store_dwordx4 {v4(S)}, v{ad}, {W}, s{sT[0]} offen sc1')
        A('s_mov_b64 exec, -1')
    return it + c.lines + [st]


def colsum_work(vm):
    cs = XS
    it = [lambda: vm.wait('xp')]
    for i in range(40):
        it.append(f'v_dot2_f32_bf16 v{cs + (i & 1)}, v{XP + i}, s{sOnes}, ' + (f'v{cs + (i & 1)}' if i > 1 else '0'))
    it.append(f'v_add_f32 v{cs}, v{cs}, v{cs + 1}')
    for mod in ('quad_perm:[1,0,3,2]', 'quad_perm:[2,3,0,1]', 'row_half_mirror'):
        it.append(f'v_add_f32_dpp v{cs}, v{cs}, v{cs} {mod} {DPPM}')

    def st():
        A(f"""v_mov_b32 v{cs + 1}, s{sTag}
v_lshlrev_b32 v{vT[0]}, 1, v{vL}
s_lshl_b32 s{sT[0]}, s{sMem}, 3
s_and_b32 s{sT[1]}, s{sR128}, 7
s_add_u32 s{sT[0]}, s{sT[0]}, s{sT[1]}
s_mul_i32 s{sT[0]}, s{sT[0]}, 80
s_and_b32 s{sT[1]}, s{sR128}, 8
s_add_u32 s{sT[0]}, s{sT[0]}, s{sT[1]}
s_add_u32 s{sT[0]}, s{sT[0]}, {WS_CS}
s_mov_b32 exec_lo, 0x01010101
s_mov_b32 exec_hi, 1""")
        vm(f'buffer_store_dwordx2 {v2(cs)}, v{vT[0]}, {W}, s{sT[0]} offen sc1')
        A('s_mov_b64 exec, -1')
    return it + [st]


def fx_store(mods):
    A(f"""s_lshl_b32 s{sT[0]}, s{sG}, 11
s_lshl_b32 s{sT[1]}, s{sJ}, 2
s_add_u32 s{sT[0]}, s{sT[0]}, s{sT[1]}
s_add_u32 s{sT[0]}, s{sT[0]}, {WS_FX}
s_or_b32 s{sT[1]}, s{sTag}, s{sXcc}
v_mov_b32 v{vT[4]}, s{sT[1]}
s_mov_b64 exec, 1
buffer_store_dword v{vT[4]}, off, {W}, s{sT[0]}{mods}
s_mov_b64 exec, -1""")


def mode_check(vm):
    t, x, fa, so = vFX, vT[4], vFXa, sX[2]
    vm.wait('fx')
    lab, done = A.label('again'), A.label('ok')
    A.cond[lab] = lambda c: False
    A(f"""v_xor_b32 v{x}, s{sTag}, v{t}
v_cmp_lt_u32 vcc, 15, v{x}
s_cbranch_vccnz {lab}
{done}:""")
    TAIL.append(f"""{lab}:
s_sub_u32 s{sBud}, s{sBud}, 1
s_cmp_gt_i32 s{sBud}, 0
s_cbranch_scc0 {done}
buffer_load_dword v{t}, v{fa}, {W}, s{so} offen sc1
s_waitcnt vmcnt(0)
v_xor_b32 v{x}, s{sTag}, v{t}
v_cmp_lt_u32 vcc, 15, v{x}
s_cbranch_vccz {done}
s_and_b32 s{sT[1]}, s{sBud}, 3
s_cbranch_scc1 {lab}
buffer_load_dword v{t}, v{fa}, {W}, s{so} offen offset:128 sc1
s_waitcnt vmcnt(0)
v_xor_b32 v{x}, s{sTag}, v{t}
v_cmp_lt_u32 vcc, 15, v{x}
s_cbranch_vccnz {lab}
s_branch {done}""")
    A(f"""s_or_b32 s{sT[1]}, s{sTag}, s{sXcc}
v_cmp_ne_u32 vcc, s{sT[1]}, v{t}
s_cmp_eq_u64 vcc, 0
s_cselect_b32 s{sMode}, {0 if OPT['force_slow'] else 1}, 0
s_cmp_eq_u32 s{sW}, 2
s_cselect_b32 s{sKm}, 0, s{sMode}""")


def gemm_addr():
    t = vT
    A(f"""v_and_b32 v{t[0]}, 1, v{vI}
v_lshrrev_b32 v{t[1]}, 1, v{vI}
v_and_b32 v{t[2]}, 6, v{t[1]}
s_movk_i32 s{sT[3]}, 0x78
v_bfe_u32 v{t[2]}, s{sT[3]}, v{t[2]}, 2
v_xor_b32 v{t[2]}, v{t[2]}, v{vQ}
v_lshl_add_u32 v{t[2]}, v{t[0]}, 2, v{t[2]}
v_lshlrev_b32 v{t[2]}, 4, v{t[2]}
v_lshl_add_u32 v{t[2]}, v{t[1]}, 7, v{t[2]}
v_lshl_add_u32 v{vBA[0]}, v{t[0]}, 10, v{t[2]}
v_xor_b32 v{vBA[1]}, 64, v{vBA[0]}
v_add_u32 v{vBA[2]}, 51200, v{vBA[0]}
v_add_u32 v{vBA[3]}, 51200, v{vBA[1]}
v_mul_u32_u24 v{vAS}, 144, v{t[1]}
v_lshl_add_u32 v{vAS}, v{t[0]}, 2, v{vAS}
v_lshl_add_u32 v{vAS}, v{vQ}, 3, v{vAS}
s_lshl_b32 s{sT[0]}, s{sW}, 5
v_add_u32 v{vAS}, s{sT[0]}, v{vAS}
v_and_b32 v{t[0]}, 6, v{vI}
v_xor_b32 v{t[0]}, v{t[0]}, v{vQ}
v_lshlrev_b32 v{t[0]}, 4, v{t[0]}
v_lshl_add_u32 v{t[0]}, v{vI}, 7, v{t[0]}
v_add_u32 v{vAR}, s{sXm}, v{t[0]}
v_xor_b32 v{vAR2}, 64, v{vAR}""")


def misc_setup():
    t = vT
    A(f'''s_lshr_b32 s{sCs}, s{sX[8]}, 1
s_add_u32 s{sCs}, s{sCs}, 512
s_lshr_b32 s{sT[2]}, s{sMem}, 3
s_lshl_b32 s{sR64}, s{sR128}, 1
s_add_u32 s{sR64}, s{sR64}, s{sT[2]}
s_and_b32 s{sS8}, s{sMem}, 7
s_lshl_b32 s{sFW}, s{sR128}, 10
s_lshl_b32 s{sT[1]}, s{sMem}, 4
s_add_u32 s{sFW}, s{sFW}, s{sT[1]}
s_lshl_b32 s{sT[1]}, s{sW}, 2
s_add_u32 s{sFW}, s{sFW}, s{sT[1]}
s_lshl_b32 s{sFK}, s{sG}, 11
s_add_u32 s{sFK}, s{sFK}, s{sT[1]}
s_lshl_b32 s{sT[1]}, s{sJ}, 4
s_add_u32 s{sFK}, s{sFK}, s{sT[1]}
s_lshl_b32 s{sAgg}, s{sMem}, 5
s_add_u32 s{sAgg}, s{sAgg}, s{sR128}
s_mul_i32 s{sAgg}, s{sAgg}, 640
s_add_u32 s{sAgg}, s{sAgg}, {WS_AGG}
s_cmp_eq_u32 s{sW}, 0
s_cselect_b32 s{sPub}, -1, 0
s_cselect_b32 s{sPub + 1}, 0xff, 0''')
    A(f's_lshl_b32 s{sT[0]}, s{sXs}, 1\ns_mul_i32 s{sT[1]}, s{sMem}, 5')
    for j in range(5):
        A(f"""s_add_u32 s{sT[2]}, s{sT[1]}, {j}
s_lshr_b32 s{sT[3]}, s{sT[2]}, 2
s_lshl_b32 s{sT[3]}, s{sT[3]}, 11
s_and_b32 s{sT[2]}, s{sT[2]}, 3
s_lshl_b32 s{sT[2]}, s{sT[2]}, 8
s_add_u32 s{sT[2]}, s{sT[2]}, s{sT[3]}
s_add_u32 s{sH[j]}, s{sT[2]}, s{sT[0]}""")
    tw, tr, ts = vU[0], vU[1], vU[2]
    A(f'''s_mul_i32 s{sT[0]}, s{sW}, 1280
s_add_u32 s{sT[0]}, s{sT[0]}, {L_TR}
v_mul_u32_u24 v{t[0]}, 80, v{vI}
v_lshl_add_u32 v{t[0]}, v{vQ}, 4, v{t[0]}
v_add_u32 v{tw}, s{sT[0]}, v{t[0]}
v_bfe_u32 v{t[1]}, v{vL}, 2, 2
v_mul_u32_u24 v{t[1]}, 160, v{t[1]}
v_and_b32 v{t[2]}, 3, v{vL}
v_lshl_add_u32 v{t[1]}, v{t[2]}, 4, v{t[1]}
v_lshrrev_b32 v{t[2]}, 1, v{vQ}
v_mul_u32_u24 v{t[3]}, 80, v{t[2]}
v_lshlrev_b32 v{t[2]}, 10, v{t[2]}
v_add3_u32 v{t[1]}, v{t[1]}, v{t[3]}, s{sT[0]}
v_and_b32 v{t[3]}, 1, v{vQ}
v_lshl_add_u32 v{tr}, v{t[3]}, 3, v{t[1]}
v_mul_u32_u24 v{t[3]}, 40960, v{t[3]}
v_lshl_add_u32 v{t[2]}, v{vI}, 4, v{t[2]}
v_add_u32 v{ts}, v{t[2]}, v{t[3]}''')
    park('tw', tw), park('tr', tr), park('ts', ts), park('bd', vBd), park('bd2', vBd2)
    A(f'''v_lshrrev_b32 v{t[0]}, 2, v{vI}
v_mul_u32_u24 v{t[0]}, 5120, v{t[0]}
v_and_b32 v{t[1]}, 3, v{vI}
v_lshl_add_u32 v{t[0]}, v{t[1]}, 4, v{t[0]}
v_lshl_add_u32 v{vUA}, v{vQ}, 6, v{t[0]}''')


def weave(items, extra, first, every):
    extra = list(extra)
    for i, it in enumerate(lines(items)):
        run(it)
        if extra and i >= first and (i - first) % every == 0:
            run(extra.pop(0))
    run(extra)


class Roles:
    def __init__(self, n):
        self.c = [VM() for _ in range(n)]

    def __call__(self, text, name=None):
        A(text)
        for c in self.c:
            c.n += 1
            if name is not None:
                c.t[name] = c.n

    def wait(self, *names):
        k = min(c.n - max(c.t[x] for x in names) for c in self.c)
        A(f's_waitcnt vmcnt({min(k, 63)})')
        for c in self.c:
            c.done = max(c.done, c.n - min(k, 63))

    def each(self, fns):
        lj = A.label('join')
        todo = [w for w in range(4) if fns[w]]
        labs = {w: A.label(f'w{w}') for w in todo}
        for w in todo:
            A.cond[labs[w]] = lambda c, w=w: c['w'] == w
            if w != todo[0] or len(todo) < 4:
                A(f's_cmp_eq_u32 s{sW}, {w}\ns_cbranch_scc1 {labs[w]}')
        if len(todo) < 4:
            A(f's_branch {lj}')
        for w in todo:
            A(f'{labs[w]}:')
            fns[w](self.c[w])
            if w != todo[-1]:
                A(f's_branch {lj}')
        A(f'{lj}:')

    def merged(self):
        for c in self.c[1:]:
            self.c[0].merge(c)
        return self.c[0]


def more():
    pk = lambda regs, o: [f'v_accvgpr_write_b32 a{A_CV + o + i}, v{r}' for i, r in enumerate(regs)]
    return [atom(f'''s_lshl_b32 s{sX[6]}, s{sR128}, 11
s_lshl_b32 s{sT[0]}, s{sW}, 9
s_add_u32 s{sX[6]}, s{sX[6]}, s{sT[0]}
s_add_u32 s{sX[6]}, s{sX[6]}, {WS_RS}
v_and_b32 v{vRS}, 7, v{vI}
v_lshlrev_b32 v{vRS}, 4, v{vRS}
v_lshl_add_u32 v{vRS}, v{vQ}, 7, v{vRS}
s_mul_i32 s{sX[7]}, s{sMem}, 640
s_add_u32 s{sX[7]}, s{sX[7]}, {WS_CS}
v_lshlrev_b32 v{vRS + 1}, 3, v{vL}
v_lshlrev_b32 v{vRS + 2}, 3, v{vI}
v_and_b32 v{vFA}, 31, v{vL}
v_lshlrev_b32 v{vFA}, 4, v{vFA}
s_lshl_b32 s{sX[1]}, s{sS8}, 11
s_add_u32 s{sX[1]}, s{sX[1]}, {WS_FS}'''),
            atom(conv_setup(), pk(vCA + vCB, 0)), atom(lambda: g2_setup(0), pk(G2REG, 11)), atom(y_setup(), pk(YREG, 4)),
            z_addr, atom(lambda: touch_addr(vT[0], [SEG_ST, SEG_F]), lambda: park('rt', vT[0]))]


def startup():
    t = vT
    R = Roles(4)

    def bs(vm, g0, g1):
        return [lambda g=g, j=j: b_dma(vm, g, j) for g in range(g0, g1) for j in (0, 2, 4)]

    def head1(vm):
        A(f"""v_min_u32 v{t[0]}, 39, v{vL}
s_mul_i32 s{sT[0]}, s{sMem}, 80
v_lshl_add_u32 v{t[3]}, v{t[0]}, 1, s{sT[0]}""")
        vm(f'global_load_ushort v{PAR}, v{t[3]}, {s2(P_LRE)}{NTP}')
        vm(f'global_load_ushort v{PAR + 1}, v{t[3]}, {s2(P_LIM)}{NTP}')
        vm(f'global_load_ushort v{PAR + 2}, v{t[3]}, {s2(P_LDT)}{NTP}', 'par')

    def head0(vm):
        kv_loads0(vm)
        srd(R_WS, P_WS, WS_SIZE)
        agg = f's_lshl_b32 $, s{sMem}, 5\ns_add_u32 $, $, s{sR128}\ns_mul_i32 $, $, 640\ns_add_u32 $, $, '
        n = touch_addr(t[0], [SEG_ST][:OPT['t0']] + [SEG_F, (9, f's_lshl_b32 $, s{sG}, 11\ns_add_u32 $, $, {WS_FK}'),
                              (5, agg + str(WS_AGG + 16 * 640)), (5, agg + str(WS_AGG + 16 * 640 + AGG_L)),
                              (5, f's_mul_i32 $, s{sMem}, 640\ns_add_u32 $, $, {WS_CS}'),
                              (1, f's_lshl_b32 $, s{sG}, 7\ns_add_u32 $, $, {WS_FY}'),
                              (1, f's_lshl_b32 $, s{sG}, 7\ns_add_u32 $, $, {WS_FB}')])
        A(f's_mov_b32 exec_hi, {(1 << n - 32) - 1}')
        vm(f'buffer_load_dword a250, v{t[0]}, {W}, 0 offen{NTT}')
        A('s_mov_b32 exec_hi, -1')

    def head3(vm):
        srd(R_X, P_X, 2621440)
        A(f'''s_lshl_b32 s{sT[0]}, s{sR128}, 4
s_add_u32 s{sT[0]}, s{sT[0]}, s{sMem}
s_mul_i32 s{sT[0]}, s{sT[0]}, 10240''')
        vm.t['kv'] = 0
        for z in range(10):
            vm(f'buffer_load_dwordx4 {v4(XP + 4 * z)}, v{vR}, {s4(R_X)}, s{sT[0]} offen offset:{z * 128}{NTX}', 'xp')
    def args():
        A('s_waitcnt lgkmcnt(0)')
        if OPT['stamps']:
            A(f'v_writelane_b32 v{vStamp}, s{sSt}, 62')
            stamp('start')
    R.each([lambda vm, f=f: (args(), f(vm)) for f in (head0, lambda vm: (head1(vm), kv_loads1(vm)), kv_loads2, head3)])
    A(f's_load_dword s{sTag}, {s2(P_WS)}, 0')

    def scalars():
        A(f'''s_lshl_b32 s{sC0}, s{sX[8]}, 1
s_lshl_b32 s{sT[0]}, s{sC0}, 1
s_load_dword s{sD[0]}, {s2(P_SD)}, s{sT[0]}
s_and_b32 s{sT[0]}, s{sX[8]}, 0xfffffffc
s_add_u32 s{sT[0]}, s{sT[0]}, 1024
s_load_dword s{sD[1]}, {s2(P_SD)}, s{sT[0]}
v_and_b32 v{vFXa}, 31, v{vL}
v_lshlrev_b32 v{vFXa}, 2, v{vFXa}
s_lshl_b32 s{sX[2]}, s{sG}, 11
s_add_u32 s{sX[2]}, s{sX[2]}, {WS_FX}
s_getreg_b32 s{sXcc}, hwreg(HW_REG_XCC_ID, 0, 4)
s_mov_b32 s{sBud}, {OPT['budget']}
s_mov_b32 s{sOnes}, 0x3f803f80''')
    with Cap() as cc:
        consts()
    cc.lines.remove('s_waitcnt lgkmcnt(0)')

    def tag():
        A(f"""s_waitcnt lgkmcnt(0)
s_lshr_b32 s{sTag}, s{sTag}, 4
s_mul_i32 s{sTag}, s{sTag}, 0x19660d
s_add_u32 s{sTag}, s{sTag}, 0x3c6ef35f
s_lshl_b32 s{sTag}, s{sTag}, 4""")

    def w0(vm):
        A(f'v_mov_b32 v{XS}, 0')
        fx_store('')
        fx_store(' offset:128 sc1')
        vm.n += 2
        A(f'''v_mov_b32 v{XS + 1}, 0
v_mov_b32 v{XS + 2}, s{sTag}
v_mov_b32 v{XS + 3}, s{sTag}
s_add_u32 s{sT[0]}, s{sAgg}, {AGG_L}
s_mov_b32 exec_hi, 0xff''')
        vm(f'buffer_store_dwordx4 {v4(XS)}, v{vL16}, {W}, s{sAgg} offen sc1')
        vm(f'buffer_store_dwordx4 {v4(XS)}, v{vL16}, {W}, s{sT[0]} offen sc1')
        A('s_mov_b32 exec_hi, -1')

    def w1(vm):
        vm.wait('par')
        run(cc.lines)
    blocks = dict(A=dma_addr, S=scalars, M=misc_setup, C=lambda: c_loads(R), O=lambda: run(more()), T=tag,
                  G=lambda: (gemm_addr(), kv_addr(), k_addr()), K=lambda: run(k_loads(R)),
                  R=lambda: R.each([None, w1, w0, lambda vm: run(stats_work(vm))]))
    for b in OPT['order'].split(','):
        if b[0] == 'B':
            run(bs(R, int(b[1]), int(b[1]) + 1))
        elif b[0] == 'X':
            x_dma(R, int(b[1]))
        elif b[0] == '@':
            stamp(b[1:])
        else:
            blocks[b]()
    R.wait('kv')
    A('s_waitcnt lgkmcnt(0)\ns_barrier')
    stamp('kv_land')
    R(f'buffer_load_dword v{vFX}, v{vFXa}, {W}, s{sX[2]} offen sc1', 'fx')
    lg = LG()
    crd, fix = const_reads(lg)
    run(crd)
    va, vb = R.c[0], R.c[3]
    va.merge(R.c[1]), va.merge(R.c[2])
    l3, lj = A.label('w3'), A.label('join')
    A.cond[l3] = lambda c: c['w'] == 3
    A(f's_cmp_eq_u32 s{sW}, 3\ns_cbranch_scc1 {l3}')
    def nxt(v):
        out = []
        for b in OPT['post'].split(','):
            if b[0] == 'L':
                if v is vb:
                    out += [lambda g=int(b[1]): b_all(v, g)]
                else:
                    v.t['b', int(b[1])] = 0
                continue
            if b[0] == 'C':
                out.append(lambda: c_loads(v))
                continue
            out += bs(v, int(b[1]), int(b[1]) + 1) if b[0] == 'B' else [lambda b=b: x_dma(v, int(b[1]))] if b[0] == 'X' else \
                [atom(k_loads(v)[:3]), atom(k_loads(v)[3:5]), atom(k_loads(v)[5:])]
        return out
    la = copy.deepcopy(lg)
    rd, it = kv_work(va, la)
    run(rd)
    weave(it[:-1], nxt(va), OPT['wv0'], OPT['wv'])
    if not OPT['mlate']:
        mode_check(va)
    if not OPT['kvd']:
        run(it[-1])
    A(f's_branch {lj}\n{l3}:')
    A(f'v_mov_b32 v{vKS}, {OOB}')
    A(f'''s_lshl_b32 s{sT[0]}, s{sMem}, 3
s_and_b32 s{sT[1]}, s{sR128}, 7
s_add_u32 s{sT[0]}, s{sT[0]}, s{sT[1]}
s_mul_i32 s{sT[0]}, s{sT[0]}, 6400
s_mov_b32 exec_hi, 0xff''')
    for z in range(1 if OPT['dbg'] & 8 else 10):
        vb(f'buffer_load_dwordx4 {v4(XP + 4 * z)}, v{vR}, {s4(R_T0)}, s{sT[0]} offen offset:{z * 128}', 'xp')
    A('s_mov_b32 exec_hi, -1')
    run(nxt(vb))
    if not OPT['mlate']:
        mode_check(vb)
    run(colsum_work(vb))
    A(f'{lj}:\ns_waitcnt lgkmcnt(0)')
    va.merge(vb)
    vm = va
    stamp('kv_st')
    run(fix[1:])
    if OPT['cfs'] < 0:
        run(cf_work(vm, LG()))
    stamp('cf_st')
    vm.wait(('x', 1), ('b', 0))
    stamp('land')
    return vm


class G1:
    def __init__(self, layer, vm):
        self.layer, self.vm, self.lg, self.side = layer, vm, LG(), Side()
        self.order = list(range(20)) if layer == 0 else list(range(4, 20)) + list(range(4))

    def rd(self, s, j):
        k = self.order[s]
        idx = (k >> 1) * 5 + j
        a, off = (vBA[k & 1], idx * 2048) if idx < 25 else (vBA[2 + (k & 1)], (idx - 25) * 2048)
        self.lg(f'ds_read_b128 {v4(BF + 20 * (s & 1) + 4 * j)}, v{a} offset:{off}', ('B', s, j))

    def rda(self, s, m):
        self.lg(f'ds_read_b128 {v4(AF + 8 * (s & 1) + 4 * m)}, v{vAR2 if s & 1 else vAR} '
                f'offset:{((2 * (s >> 1) + m) % 7) * 8192}', ('A', s, m))

    def ld(self, f):
        s, m = divmod(f, 2)
        s = self.order[s]
        if s == 16:
            A(f's_add_u32 s{sL[m]}, s{sL[m]}, 4096')
        if s == 0:
            A(f's_sub_u32 s{sL[m]}, s{sL[m]}, 4096')
        self.vm(f'buffer_load_dwordx4 {v4(RING + 4 * (f % NR))}, v{vUA}, {WU}, s{sL[m]} offen '
                f'offset:{(s % 16) * 256} sc1', ('u', f))

    def step(self, s):
        vm, lg, layer = self.vm, self.lg, self.layer
        if (s in (0, 4, 8, 12, 16) and OPT['stamps'] != 3) or (OPT['stamps'] == 4 and layer == 0):
            stamp(f'.s{s}_{layer}', 2)
        if layer == 0:
            need = [('x', s + 2)] if s & 1 and s < 19 else []
            if s in (3, 7, 11, 15)[:OPT['nbar']]:
                g = (s + 1) // 4
                vm.wait(*[('b', x) for x in range(g, 5 if g == OPT['nbar'] else g + 1)], *need)
                A('s_barrier')
            elif need:
                vm.wait(*need)
        else:
            vm.wait(('u', 2 * s + 1))
            if s == 15:
                vm.wait(('b', 0))
                A('s_barrier')
        for j in range(5):
            if not OPT['gw'] or s == 0:
                lg.wait(('B', s, j))
            elif j in (0, 3):
                lg.wait(('B', s, 2 if j == 0 else 4))
            if layer == 0 and s == 19 and j == 0:
                A('s_barrier')
            for m in range(2):
                d = ACC + 8 * j + 4 * m
                c = '0' if s == 0 else v4(d)
                a = RING + 4 * ((2 * s + m) % NR) if layer else AF + 8 * (s & 1) + 4 * m
                A(f'v_mfma_f32_16x16x32_bf16 {v4(d)}, {v4(a)}, {v4(BF + 20 * (s & 1) + 4 * j)}, {c}')
                if m == 0 and s < 19:
                    if j == 0 and layer == 0:
                        self.rda(s + 1, 0)
                        self.rda(s + 1, 1)
                    self.rd(s + 1, j)
                if layer == 0 or m == 1:
                    k = 2 * j + m
                    self.side.run(s, 10 - k if layer == 0 else 5 - j)


c_issued = [0]


def c_load(vm):
    i = c_issued[0]
    c_issued[0] += 1
    if OPT['dbg'] & 1024 and i % 5:
        return
    if i and i % 4 == 0:
        A(f's_add_u32 s{sL[0]}, s{sL[0]}, 4096')
    vm(f'buffer_load_dwordx4 {a4(4 * i)}, v{vL16}, {W}, s{sL[0]} offen offset:{(i % 4) * 1024} sc1', 'cf')


def k_addr():
    A(f'''s_lshl_b32 s{sT[0]}, s{sC0}, 12
s_lshl_b32 s{sT[1]}, s{sW}, 10
s_add_u32 s{sX[3]}, s{sT[0]}, s{sT[1]}
s_add_u32 s{sX[4]}, s{sX[3]}, 4096
s_lshl_b32 s{sX[5]}, s{sCs}, 12
s_add_u32 s{sX[5]}, s{sX[5]}, s{sT[1]}
s_add_u32 s{sT[1]}, s{sT[1]}, {L_K + 32}
v_add_u32 v{vKO}, s{sT[1]}, v{vL16}
v_lshrrev_b32 v{vT[0]}, 1, v{vL}
v_mul_u32_u24 v{vT[0]}, 4160, v{vT[0]}
v_and_b32 v{vT[1]}, 1, v{vL}
v_lshl_add_u32 v{vT[0]}, v{vT[1]}, 4, v{vT[0]}
v_add_u32 v{vKP}, {L_K}, v{vT[0]}''')


def k_loads(vm):
    it = [lambda: srd(R_T1, P_SSK, 2621440)]
    for sl in range(3):
        if not OPT['dbg'] & 2:
            it.append(lambda sl=sl: vm(f'buffer_load_dwordx4 {v4(KA + 4 * sl)}, v{vL16}, {s4(R_T1)}, s{sX[3 + sl]} offen{NTK}'))
        it.append(lambda sl=sl: vm(f'buffer_load_dwordx4 {v4(KB + 4 * sl)}, v{vL16}, {s4(R_T1)}, s{sX[3 + sl]} offen offset:4{NTK}', 'K'))
    return it


def k_work(vm):
    it = [lambda: vm.wait('K')]
    for sl in range(3):
        it[-1] = atom(it[-1], f'ds_write_b128 v{vKO}, {v4(KA + 4 * sl)} offset:{sl * 8320}')
        it.append(atom([f'v_alignbit_b32 v{KB + 4 * sl + i}, v{KB + 4 * sl + i}, v{KA + 4 * sl + i}, 16' for i in range(4)],
                       f'ds_write_b128 v{vKO}, {v4(KB + 4 * sl)} offset:{sl * 8320 + 4160}'))

    def pads():
        A(f's_cmp_lg_u32 s{sW}, 0')
        with A.skip_if('s_cbranch_scc1', lambda c: c['w'] != 0):
            run([f'v_mov_b32 v{216 + i}, 0' for i in range(4)])
            A(f's_mov_b64 exec, 0xfff\nds_write_b128 v{vKP}, {v4(216)}\ns_mov_b64 exec, 1')
            for sl in range(3):
                A(f'ds_write_b16 v{vKP}, v{KA + 4 * sl} offset:{sl * 8320 + 4160 + 30}')
            A('s_mov_b64 exec, -1')
    return it + [pads]


def front(vm):
    g = G1(0, vm)
    lg, S = g.lg, g.side
    A('s_barrier')
    g.rda(0, 0), g.rda(0, 1)
    for j in range(5):
        g.rd(0, j)
    for p in (2, 3):
        if ('x', p) not in vm.t:
            x_dma(vm, p)
    if 'O' not in OPT['order']:
        S.spread(OPT['os'], OPT['oper'], more())
    if OPT['cfs'] >= 0:
        S.spread(OPT['cfs'], OPT['cfper'], cf_work(vm, lg))
    if 'K' not in vm.t:
        S.spread(OPT['kls'], 3, k_loads(vm))
    S.add(0, lambda: x_dma(vm, 4), lambda: x_dma(vm, 5))
    if OPT['kvd']:
        S.add(OPT['kvd'] - 1, kv_work(vm, None)[1][-1])
    for p in range(6, 20):
        S.add(max(1, p - 6), lambda p=p: x_dma(vm, p))
    for gi in range(1, 5):
        if ('b', gi) in vm.t:
            continue
        for n, j in enumerate((0, 2, 4)):
            S.add(OPT[f'b{gi}s'] + n // 2, lambda gi=gi, j=j: b_dma(vm, gi, j))
    if OPT['mlate']:
        assert OPT['thr'] & 1
        S.add(OPT['kvf'] - 1, lambda: mode_check(vm))
    S.add(OPT['kvf'], atom(lambda: vm.wait('kvst'), lambda: flag_store(f's{sKf}', True, vm, sKm)))
    S.add(OPT['cff'], atom(lambda: vm.wait('cfst'), f's_add_u32 s{sT[0]}, s{sFK}, {WS_FS}',
                           lambda: flag_store(f's{sT[0]}', False, vm)))
    fk = f'buffer_load_dwordx2 {v2(vFP)}, v{vFA}, {W}, s{sX[0]} offen sc1'
    S.add(OPT['fsp'], atom(f's_and_b32 s{sX[0]}, s{sFK}, 0x3800', f's_add_u32 s{sX[0]}, s{sX[0]}, {WS_FK}', lambda: vm(fk, 'fk')))

    def fetch():
        vm.wait('fk')
        check_tags([vFP, vFP + 1], fk)
        for sl in range(2):
            A(f's_lshl_b32 s{sT[0]}, s{sG}, 16\ns_add_u32 s{sT[0]}, s{sT[0]}, s{sX[3 + sl]}\n'
              f's_add_u32 s{sT[0]}, s{sT[0]}, {WS_KV}\ns_lshl_b32 m0, s{sW}, 10')
            if sl:
                A(f's_add_u32 m0, m0, {L_KV + sl * 4608}')
            vm(f'buffer_load_dwordx4 v{vL16}, {W}, s{sT[0]} offen sc1 lds', 'kvT')
    assert OPT['fsc'] >= 7
    S.add(OPT['fsc'], fetch)
    S.add(8, atom(f'''s_min_u32 s{sT[0]}, s{sW}, 2
s_mul_i32 s{sT[0]}, s{sT[0]}, 4608
v_add_u32 v{vT[0]}, s{sT[0]}, v{vL16}''', [f'v_mov_b32 v{216 + i}, 0' for i in range(4)], 's_mov_b32 exec_hi, 0',
                  lambda: lg(f'ds_write_b128 v{vT[0]}, {v4(216)} offset:{L_KV + 4096}'), 's_mov_b32 exec_hi, -1'))
    rsl = [f'buffer_load_dwordx3 {v3(RSL)}, v{vRS}, {W}, s{sX[6]} offen sc1',
           f'buffer_load_dwordx2 {v2(RSL + 4)}, v{vRS + 1}, {W}, s{sX[7]} offen sc1',
           f'buffer_load_dwordx2 {v2(RSL + 6)}, v{vRS + 2}, {W}, s{sX[7]} offen offset:512 sc1']
    fc = f'buffer_load_dwordx4 {v4(vFP)}, v{vFA}, {W}, s{sX[1]} offen sc1'
    S.add(OPT['late'], [lambda t=t: vm(t, 'rs') for t in rsl])
    S.add(OPT['csp'], lambda: vm(fc, 'fc'))

    def ccheck():
        vm.wait('fc')
        check_tags([vFP + i for i in range(4)], fc)
        A(f'''s_mul_i32 s{sL[0]}, s{sS8}, 200
s_mul_i32 s{sT[0]}, s{sW}, 50
s_add_u32 s{sL[0]}, s{sL[0]}, s{sT[0]}
s_lshl_b32 s{sL[0]}, s{sL[0]}, 10
s_add_u32 s{sL[0]}, s{sL[0]}, {WS_CF}''')
    marks_gather(S, vm, -1)
    S.add(OPT['csc'], ccheck)
    for i in range(OPT['cl0']):
        S.add(OPT['csc'] + i * (20 - OPT['csc']) // OPT['cl0'], lambda: c_load(vm))

    def rscheck():
        vm.wait('rs')
        check_tags([RSL + 2, RSL + 2, RSL + 5, RSL + 7], rsl)
    S.q.setdefault(OPT['rsc'], []).insert(0, rscheck)
    c = lambda j: CSL + j
    S.add(19, f'''v_mov_b32 v{c(0)}, v{RSL + 4}
v_mov_b32 v{c(1)}, v{RSL + 4}
v_mov_b32 v{c(4)}, v{RSL + 6}
v_permlane16_swap_b32 v{c(0)}, v{c(1)}
v_mov_b32 v{c(2)}, v{c(0)}
v_mov_b32 v{c(3)}, v{c(1)}
v_permlane32_swap_b32 v{c(0)}, v{c(2)}
v_permlane32_swap_b32 v{c(1)}, v{c(3)}''')
    S.add(19, [f'v_mov_b32_dpp v{MM + t}, v{RSL} row_newbcast:{t} {DPPM}\n'
               f'v_mov_b32_dpp v{RR + t}, v{RSL + 1} row_newbcast:{t} {DPPM}' for t in range(8)])
    for s in range(20):
        g.step(s)
    assert not g.side.left()
    stamp('g1_0')
    kw = k_work(vm) if not OPT['kwl'] else []
    kw += [f'ds_write_b64 v{vZ + 4}, {v2(RSL)}'] + [[]] * (6 - len(kw))
    scan_1(0, [[k] + [lambda: c_load(vm)] * (i < OPT['cs1']) for i, k in enumerate(kw)], lambda: vm.wait('kvT'))
    lg = LG()
    h1, h2 = horner(0, vm, lg)
    weave(h1, [lambda: c_load(vm)] * OPT['cb'], 10, 6)
    for i, r in enumerate(vCA + vCB):
        A(f'v_accvgpr_read_b32 v{r}, a{A_CV + i}')
    for k in range(2):
        for i in range(1, 4):
            A(f'v_add_u32 v{vCA[k] + i}, {1024 * i}, v{vCA[k]}')
    if OPT['kwl']:
        run(k_work(vm))
        A('s_waitcnt lgkmcnt(0)\ns_barrier')
    return vm, lg


MAS, PP, AGL, GR = 90, 244, 88, 88
LT = [128, 144, 160, 176, 104]
PK = [120, 124]
vTW, vTR, vTS = 254, 255, 47


def scan_1(layer, extra=[], last=None):
    b = lambda j, ta: ACC + 8 * j + ta
    if layer == 0:
        for j in range(5):
            sel = 'op_sel:[0,1,0] op_sel_hi:[1,1,1]' if j & 1 else 'op_sel_hi:[1,0,1]'
            for p in range(4):
                d = ACC + 8 * j + 2 * p
                A(f'v_pk_fma_f32 {v2(d)}, {v2(MM + 2 * p)}, {v2(CSL + (j & ~1))}, {v2(d)} {sel} '
                  f'neg_lo:[1,0,0] neg_hi:[1,0,0]')
        for j in range(5):
            for p in range(4):
                d = ACC + 8 * j + 2 * p
                A(f'v_pk_mul_f32 {v2(d)}, {v2(d)}, {v2(RR + 2 * p)}')
    extra = list(extra)
    for ta in range(1, 8):
        if extra:
            run(extra.pop(0))
        for j in range(5):
            A(f'v_fmac_f32 v{b(j, ta)}, v{LR + j}, v{b(j, ta - 1)}')
        for j in range(5):
            A(f'v_fmac_f32_dpp v{b(j, ta)}, v{b(j, ta - 1)}, v{LS + j} {SWP}')
    A(f'''v_add_u32 v{vT[0]}, {L_AS}, v{vAS}
v_min_u32 v{vT[1]}, 39, v{vL}
v_mul_u32_u24 v{vU[2]}, 48, v{vT[1]}
s_lshl_b32 s{sT[0]}, s{sW}, 3
s_add_u32 s{sT[0]}, s{sT[0]}, {L_G}
v_add_u32 v{vU[2]}, s{sT[0]}, v{vU[2]}''')
    for j in range(5):
        A(f'ds_write_b32 v{vT[0]}, v{b(j, 7)} offset:{j * 1152}')
    A(f'''v_mul_u32_u24 v{vU[4]}, 144, v{vT[1]}
v_add_u32 v{vU[4]}, {L_AS}, v{vU[4]}''')
    if last:
        last()
    A('s_waitcnt lgkmcnt(0)\ns_barrier')
    stamp(f'scan1_{layer}')


def horner(layer, vm, lg):
    it = [lambda i=i: lg(f'ds_read_b128 {v4(MAS + 4 * i)}, v{vU[4]} offset:{16 * i}', ('as', i)) for i in range(8)]
    for s in range(1, 16):
        if s == 1 or s % 2 == 0:
            it.append(lambda s=s: lg.wait(('as', s // 2)))
        it += cmul(MAS + 2 * s, MAS + 2 * s - 2, mL8, MAS + 2 * s)

    def pub():
        A(f'''v_mov_b32 v{MAS + 32}, s{sTag}
v_mov_b32 v{MAS + 33}, s{sTag}
s_add_u32 s{sT[0]}, s{sAgg}, {layer * AGG_L + 16 * 640}
s_mov_b64 exec, {s2(sPub)}''')
        A(f'buffer_store_dwordx4 {v4(MAS + 30)}, v{vL16}, {W}, s{sT[0]} offen sc1')
        A('s_mov_b64 exec, -1')
        stamp(f'agg_pub_{layer}')
    it.append(pub)
    first, it = it, []
    def own():
        A(f'v_subrev_u32 v{vU[4]}, {L_AS - L_P}, v{vU[4]}\nv_mov_b32 v{MAS - 2}, 0\nv_mov_b32 v{MAS - 1}, 0\ns_mov_b32 exec_hi, 0xff')
        Roles(4).each([lambda c, w=w: [A(f'ds_write_b128 v{vU[4]}, {v4(MAS - 2 + 8 * w + 4 * i)} offset:{32 * w + 16 * i}')
                                       for i in range(2)] for w in range(4)])
        A('s_mov_b32 exec_hi, -1')
        lg.n += 2
    it.append(own)
    it.append(f'v_add_u32 v{vU[4]}, {L_P}, v{vAS}')
    it += [lambda j=j: lg(f'ds_read_b32 v{PP + 2 * j}, v{vU[4]} offset:{j * 1152}', 'pp') for j in range(5)]
    it += [f'v_and_b32 v{vU[1]}, 1, v{vI}', f'v_cvt_f32_u32 v{vU[1]}, v{vU[1]}', f'v_fma_f32 v{vU[1]}, 2.0, v{vU[1]}, -1.0']
    it.append(lambda: lg.wait('pp'))
    it += [f'v_mul_f32_dpp v{PP + 2 * j + 1}, v{PP + 2 * j}, v{vU[1]} {SWP}' for j in range(5)]
    return first, it


def agg_ld(layer):
    pre = f'''s_lshl_b32 s{sX[3]}, s{sW}, 2
s_sub_u32 s{sX[3]}, 12, s{sX[3]}
s_mul_i32 s{sX[3]}, s{sX[3]}, 640
s_add_u32 s{sX[3]}, s{sX[3]}, s{sAgg}
s_add_u32 s{sX[3]}, s{sX[3]}, {layer * AGG_L}
v_min_u32 v{vU[0]}, 39, v{vL}
v_lshlrev_b32 v{vU[0]}, 4, v{vU[0]}'''
    return pre, [f'buffer_load_dwordx3 {v3(AGL + 4 * z)}, v{vU[0]}, {W}, s{sX[3]} offen offset:{z * 640} sc1' for z in range(4)]


def scan_2(layer, vm, ld, hook={}, defer=False, extra=[]):
    lg = LG()
    t = vT
    A(f'''v_lshrrev_b32 v{t[0]}, 1, v{vI}
v_mul_u32_u24 v{t[1]}, 80, v{t[0]}
v_add_u32 v{t[1]}, {L_L}, v{t[1]}
v_mul_u32_u24 v{t[0]}, 48, v{t[0]}
v_add_u32 v{t[0]}, {L_G}, v{t[0]}''')
    def lrd(j):
        for c in range(4):
            lg(f'ds_read_b128 {v4(LT[j] + 4 * c)}, v{t[1]} offset:{j * 640 + 16 * c}', ('L', j))
    early = 5 if layer else OPT['lpre']
    for j in range(early):
        lrd(j)
    A('\n'.join([unpark('tw', vTW), unpark('tr', vTR), unpark('ts', vTS)]))
    vm.wait('agg')
    check_tags([AGL + 2, AGL + 6, AGL + 10, AGL + 14], ld, x=t[3], y=t[4], inline=2)
    stamp(f'agg_in_{layer}')
    if 'agg' in hook:
        hook['agg']()
    for z in range(1, 4):
        A('\n'.join(cmul(AGL + 4 * z, AGL + 4 * z - 4, mL128, AGL + 4 * z)))
    A('\n'.join(cmul(AGL, AGL + 12, mW)))
    if extra:
        extra.pop()()
    A(f'''s_mov_b32 exec_hi, 0xff
ds_write_b64 v{vU[2]}, {v2(AGL)}
s_mov_b32 exec_hi, -1''')
    stamp(f'.fold{layer}', 5 - 2 * (OPT['stamps'] == 3))
    A('s_waitcnt lgkmcnt(0)')
    stamp(f'.added{layer}', 5 - 2 * (OPT['stamps'] == 3))
    A('s_barrier')
    stamp(f'.gbar{layer}', 5 - 2 * (OPT['stamps'] == 3))
    lg = LG()
    GQ = [88, 96, 224, 88, 96]

    def grd(j):
        lg(f'ds_read_b128 {v4(GQ[j])}, v{t[0]} offset:{j * 384}')
        lg(f'ds_read_b128 {v4(GQ[j] + 4)}, v{t[0]} offset:{j * 384 + 16}', ('G', j))
    for j in range(3):
        grd(j)
    for j in range(early, min(early + 1, 5)):
        lrd(j)
    hb = HB[layer]

    def more():
        if extra:
            extra.pop()()
    more()

    def xy(j):
        lg.wait(('G', j))
        q = GQ[j]
        p, a, gq = v2(PP + 2 * j), v2(VA + 2 * j), v2(q)
        A(f'v_pk_add_f32 {gq}, {gq}, {v2(q + 2)}\nv_pk_add_f32 {v2(q + 4)}, {v2(q + 4)}, {v2(q + 6)}\n'
          f'v_pk_add_f32 {gq}, {gq}, {v2(q + 4)}')
        A(f'v_pk_fma_f32 {p}, {a}, {gq}, {p} op_sel:[0,0,0] op_sel_hi:[1,0,1]')
        A(f'v_pk_fma_f32 {p}, {a}, {gq}, {p} op_sel:[1,1,0] op_sel_hi:[0,1,1] neg_hi:[1,0,0]')
        if j < 2:
            grd(j + 3)

    def upd(j):
        p = v2(PP + 2 * j)
        if early + 1 + j < 5:
            lrd(early + 1 + j)
        if j >= early:
            lg.wait(('L', j))
        for k in range(4):
            d = v2(ACC + 8 * j + 2 * k)
            A(f'v_pk_fma_f32 {d}, {v2(LT[j] + 2 * k)}, {p}, {d} op_sel:[0,0,0] op_sel_hi:[1,0,1]')
        more()
        for k in range(4):
            d = v2(ACC + 8 * j + 2 * k)
            A(f'v_pk_fma_f32 {d}, {v2(LT[j] + 8 + 2 * k)}, {p}, {d} op_sel:[0,1,0] op_sel_hi:[1,1,1]')
        pk = PK[j & 1]
        for d in range(4):
            A(f'v_cvt_pk_bf16_f32 v{pk + d}, v{ACC + 8 * j + 2 * d}, v{ACC + 8 * j + 2 * d + 1}')
        lg(f'ds_write_b128 v{vTW}, {v4(pk)}')
        more()
        lg(f'ds_read_b64_tr_b16 {v2(ACC + 8 * j + 4)}, v{vTR}')
        lg(f'ds_read_b64_tr_b16 {v2(ACC + 8 * j + 6)}, v{vTR} offset:640', ('T', j))

    def st(j, vm=vm):
        A(f's_add_u32 s{sT[1]}, s{sH[j]}, {hb}')
        lg.wait(('T', j))
        mode_stores([f'buffer_store_dwordx4 {v4(ACC + 8 * j + 4)}, v{vTS}, {WH}, s{sT[1]} offen'], through=OPT['thr'] & (2 << layer))
        vm.n += 1
        vm.t['hst'] = vm.n
    xy(0), xy(1)
    lag = OPT['lag']
    for j in range(5 + lag):
        stamp(f'.j{j}_{layer}', 5 - 2 * (OPT['stamps'] == 3))
        if j < 5:
            upd(j)
        if j < 3:
            xy(j + 2)
        if j >= lag and j - lag < (defer or 5):
            st(j - lag)
        if j in hook:
            hook[j](lg)
    if defer:
        lg.wait(('T', 4))
        stamp(f'h_st_{layer}')
        return st
    stamp(f'h_st_{layer}')


def h_flag(layer, vm):
    vm.wait('hst')
    A(f's_add_u32 s{sT[2]}, s{sFW}, {WS_FH + layer * 256}')
    flag_store(f's{sT[2]}', True, vm)
    stamp(f'h_flag_{layer}')


CA, CB, CX, CY = 128, 160, 192, 104
vCA, vCB = [232, 236], [240, 241]
JSET = [[1, 2, 4, 7], [0, 3, 5, 6]]


def conv_setup():
    t = vT
    return lines(f"""v_add_u32 v{t[0]}, 1, v{vI}
v_and_b32 v{t[1]}, 1, v{t[0]}
v_mul_u32_u24 v{t[1]}, 4160, v{t[1]}
v_lshrrev_b32 v{t[0]}, 1, v{t[0]}
v_lshl_add_u32 v{t[1]}, v{t[0]}, 2, v{t[1]}
v_lshl_add_u32 v{t[1]}, v{vQ}, 4, v{t[1]}
v_sub_u32 v{t[0]}, 15, v{vI}
v_lshlrev_b32 v{t[0]}, 5, v{t[0]}
v_lshl_add_u32 v{t[0]}, v{vQ}, 4, v{t[0]}
s_lshr_b32 s{sT[0]}, s{sW}, 1
s_and_b32 s{sT[1]}, s{sW}, 1
s_lshl_b32 s{sT[1]}, s{sT[1]}, 8
s_mul_i32 s{sT[2]}, s{sT[0]}, 8320
s_add_u32 s{sT[2]}, s{sT[2]}, s{sT[1]}
s_add_u32 s{sT[2]}, s{sT[2]}, {L_K}
v_add_u32 v{vCA[0]}, s{sT[2]}, v{t[1]}
s_mul_i32 s{sT[2]}, s{sT[0]}, 4608
s_add_u32 s{sT[2]}, s{sT[2]}, s{sT[1]}
v_add_u32 v{vCB[0]}, s{sT[2]}, v{t[0]}
s_lshl_b32 s{sT[1]}, s{sW}, 7
s_add_u32 s{sT[2]}, s{sT[1]}, {L_K + 2 * 8320}
v_add_u32 v{vCA[1]}, s{sT[2]}, v{t[1]}
s_add_u32 s{sT[2]}, s{sT[1]}, {L_KV + 2 * 4608}
v_add_u32 v{vCB[1]}, s{sT[2]}, v{t[0]}""")


class Conv:
    def __init__(self, units, lg, cont=False):
        self.lg, self.seq, self.todo, self.issued = lg, [], [], set()
        free, seen = {}, ({CX + 4 * j for j in range(8)} if cont else set())
        for k, u, js, acc in units:
            first, last = {}, {}
            for a in range(max(js), -1, -1):
                for j in js:
                    if j < a:
                        continue
                    for f in (('A', a), ('B', j - a)):
                        first.setdefault(f, len(self.seq))
                        last[f] = len(self.seq)
                    d = acc + 4 * js.index(j)
                    self.seq.append((k, u, a, j - a, d, d in seen))
                    seen.add(d)
            for f, need in first.items():
                self.todo.append((max(free.get(f, -1), need - OPT['look']), need, (k, u, f)))
            free.update(last)
        self.todo.sort(key=lambda x: x[:2])

    def rd(self, key):
        k, u, (kind, x) = key
        self.issued.add(key)
        if kind == 'A':
            o = 16 * u + 128 * (x & 1)
            self.lg(f'ds_read2_b32 {v2(CA + 4 * x)}, v{vCA[k] + (x >> 1)} offset0:{o} offset1:{o + 1}')
            self.lg(f'ds_read2_b32 {v2(CA + 4 * x + 2)}, v{vCA[k] + (x >> 1)} offset0:{o + 2} offset1:{o + 3}', key)
        else:
            self.lg(f'ds_read_b128 {v4(CB + 4 * x)}, v{vCB[k]} offset:{64 * u + 512 * (7 - x)}', key)

    def emit(self, n0, n1, side):
        todo = self.todo
        while n0 == 0 and todo[0][0] < 0 and todo[0][1] < 4:
            self.rd(todo.pop(0)[2])
        for gn in range(n0, n1):
            k, u, a, b, d, chain = self.seq[gn]
            self.lg.wait((k, u, ('A', a)), (k, u, ('B', b)))
            A(f'v_mfma_f32_16x16x32_bf16 {v4(d)}, {v4(CA + 4 * a)}, {v4(CB + 4 * b)}, {v4(d) if chain else 0}')
            did = 0
            while todo and todo[0][0] <= gn and (did < 1 or todo[0][1] <= gn + 3):
                self.rd(todo.pop(0)[2])
                did += 1
            if not did or gn % 4 == 3:
                side.run(gn // 4, 4 - gn % 4)

    def force(self, keys):
        for it in [x for x in self.todo if x[2] in keys]:
            self.todo.remove(it)
            self.rd(it[2])


vFY = 120
KVM, KVX = 88, 96
YREG = [246, 247, 248, 249, 250, 251, 252]
yS, yKm, yKx, yPw, yPr, ySr, ySw = YREG


def y_setup():
    t = vT
    return lines(f"""s_lshr_b32 s{sT[1]}, s{sW}, 1
s_add_u32 s{sT[0]}, s{sC0}, s{sT[1]}
s_bitcmp1_b32 s{sT[0]}, 0
s_cselect_b32 s{sT[2]}, 16, 0
s_lshr_b32 s{sD[0]}, s{sD[0]}, s{sT[2]}
s_and_b32 s{sDm[0]}, s{sD[0]}, 0xffff
s_lshl_b32 s{sDm[1]}, s{sD[0]}, 16
s_bitcmp1_b32 s{sCs}, 0
s_cselect_b32 s{sT[2]}, 16, 0
s_lshr_b32 s{sD[1]}, s{sD[1]}, s{sT[2]}
s_and_b32 s{sDm[2]}, s{sD[1]}, 0xffff
s_lshl_b32 s{sDm[3]}, s{sD[1]}, 16
s_lshl_b32 s{sYO[0]}, s{sT[0]}, 12
s_and_b32 s{sT[0]}, s{sW}, 1
s_lshl_b32 s{sT[0]}, s{sT[0]}, 11
s_add_u32 s{sYO[0]}, s{sYO[0]}, s{sT[0]}
s_add_u32 s{sYO[0]}, s{sYO[0]}, {WS_Y}
s_mul_i32 s{sT[1]}, s{sT[1]}, 4608
s_sub_u32 s{sT[1]}, s{sT[1]}, s{sT[0]}
s_add_u32 s{sT[1]}, s{sT[1]}, {L_KV + 4088 - 3 * 512}
v_lshlrev_b32 v{yS}, 5, v{vI}
v_lshl_add_u32 v{yS}, v{vQ}, 3, v{yS}
v_sub_u32 v{yKm}, s{sT[1]}, v{yS}
s_bitcmp1_b32 s{sJ}, 0
s_movk_i32 s{sT[0]}, 0x7421
s_cselect_b32 s{sT[0]}, 0x6530, s{sT[0]}
s_lshl_b32 s{sT[1]}, s{sW}, 2
s_lshr_b32 s{sT[0]}, s{sT[0]}, s{sT[1]}
s_and_b32 s{sT[0]}, s{sT[0]}, 7
s_lshl_b32 s{sT[0]}, s{sT[0]}, 9
s_lshl_b32 s{sYO[1]}, s{sCs}, 12
s_add_u32 s{sYO[1]}, s{sYO[1]}, s{sT[0]}
s_add_u32 s{sYO[1]}, s{sYO[1]}, {WS_Y}
s_sub_u32 s{sT[0]}, {L_KV + 2 * 4608 + 4088}, s{sT[0]}
v_sub_u32 v{yKx}, s{sT[0]}, v{yS}
s_lshl_b32 s{sT[0]}, s{sW}, 12
s_add_u32 s{sT[1]}, s{sT[0]}, {L_PM}
v_add_u32 v{ySw}, s{sT[1]}, v{vL16}
s_add_u32 s{sT[1]}, s{sT[0]}, {L_PS}
v_add_u32 v{yPw}, s{sT[1]}, v{vL16}
s_xor_b32 s{sT[1]}, s{sT[0]}, 4096
s_add_u32 s{sT[1]}, s{sT[1]}, {L_PS}
v_add_u32 v{yPr}, s{sT[1]}, v{vL16}
s_lshl_b32 s{sT[1]}, s{sW}, 10
s_add_u32 s{sT[1]}, s{sT[1]}, {L_PM}
v_add_u32 v{ySr}, s{sT[1]}, v{vL16}""")


def y_dterm(acc, kv, dlo, dhi):
    sel = [(1, dhi), (1, dlo), (0, dhi), (0, dlo)]
    return [f'v_dot2_f32_bf16 v{acc + r}, v{kv + sel[r][0]}, s{sel[r][1]}, v{acc + r}' for r in range(4)]


def marks_gather(S, vm, sg):
    if OPT['clr'] * sg > 0:
        marks(S, vm, abs(OPT['clr']), 228 if sg > 0 else 216)
    if OPT['fbp'] * sg > 0:
        gather(S, vm, abs(OPT['fbp']), abs(OPT['fbc']), 124 if sg > 0 else 220)


def marks(S, vm, at, r):
    S.add(at, [f'v_mov_b32 v{r + i}, -1' for i in range(4)], f'v_lshlrev_b32 v{vT[0]}, 3, v{vL}',
          lambda: vm(f'buffer_store_dwordx2 {v2(r)}, v{vT[0]}, {W}, s{sYO[1]} offen sc1'))
    for i in range(2):
        S.add(at + 1 + i, lambda i=i: vm(f'buffer_store_dwordx4 {v4(r)}, v{vL16}, {W}, s{sYO[0]} offen offset:{1024 * i} sc1'))


def gather(S, vm, at, at2, r):
    fb = f'buffer_load_dwordx4 {v4(r)}, v{vL16}, {W}, s{sKs} offen sc1'
    S.add(at, atom(f's_mov_b32 s{sKs}, {WS_FB}', lambda: vm(fb, 'fb')))

    def go():
        vm.wait('fb')
        check_tags([r + i for i in range(4)], fb)
        A(f'''s_lshl_b32 s{sT[1]}, s{sW}, 6
s_sub_u32 s{sT[0]}, 255, s{sT[1]}
v_sub_u32 v{vT[0]}, s{sT[0]}, v{vL}
v_lshlrev_b32 v{vT[0]}, 11, v{vT[0]}
s_and_b32 s{sT[0]}, s{sCs}, 3
s_lshl_b32 s{sT[0]}, s{sT[0]}, 9
s_bfe_u32 s{sT[2]}, s{sCs}, 0x50002
s_lshl_b32 s{sT[2]}, s{sT[2]}, 4
s_add_u32 s{sT[0]}, s{sT[0]}, s{sT[2]}
s_add_u32 s{sT[0]}, s{sT[0]}, {WS_KB}
s_lshl_b32 s{sT[1]}, s{sT[1]}, 4
s_add_u32 m0, s{sT[1]}, {L_KV + 2 * 4608}''')
        vm(f'buffer_load_dwordx4 v{vT[0]}, {W}, s{sT[0]} offen sc1 lds')
    S.add(at2, go)


def conv(vm, lg):
    S = Side()
    e = S.spread(0, 3, horner(0, vm, lg)[1])
    left = 50 - c_issued[0] - OPT['cl2'] - OPT['cs2']
    for i in range(left):
        S.add(i * OPT['clend'] // left, lambda: c_load(vm))
    S.spread(0, 1, z_loads(vm))
    S.add(0, lambda: lg(f'ds_read_b64 a[{A_ZU}:{A_ZU + 1}], v{vZ + 3}'))
    S.spread(14, 2, [lambda: vm.wait('xt')]
             + [lambda m=m: lg(f'ds_read_b64 a[{A_X + 2 * m}:{A_X + 2 * m + 1}], v{vXT} offset:{32 * m}') for m in range(5)]
             + [lambda m=m: lg(f'ds_read_b64 a[{A_DSK + 2 * m}:{A_DSK + 2 * m + 1}], v{vXT + 1} offset:{2560 + 32 * m}')
                for m in range(5)])
    marks_gather(S, vm, 1)
    S.add(1, lambda: srd(R_T0, P_OUT, 5242880))
    if OPT['tch']:
        S.add(OPT['tch'], retouch())
    if OPT['prefetch'] & 2:
        S.add(10, atom(code_touch()))
    pre, ld = agg_ld(0)
    S.spread(OPT['aggl'] - 2, 4, pre)
    for z in range(4):
        S.add(OPT['aggl'] + z // 2, lambda z=z: vm(ld[z], 'agg'))
    nu = OPT['nu']
    cv = Conv([(0, u, list(range(8)), CX) for u in range(nu)], lg)
    cv.emit(0, 36 * nu, S)
    assert not cv.todo and not S.left(), S.left()
    stamp('conv')
    def glue1(lg):
        for i, r in enumerate(YREG + G2REG):
            A(f'v_accvgpr_read_b32 v{r}, a{A_CV + 4 + i}')
        for j in range(4):
            lg(f'ds_read_b64 {v2(KVM + 2 * j)}, v{yKm} offset:{512 * (3 - j)}')
        lg(f'ds_read_b64 {v2(KVX)}, v{yKx}', 'kvm')

    def glue2():
        A(f's_bitcmp0_b32 s{sW}, 0')
        with A.skip_if('s_cbranch_scc1', lambda c: not c['w'] & 1):
            for i in range(16):
                A(f'v_swap_b32 v{CX + i}, v{CX + 16 + i}')

    def yflag(lg):
        A(f'''s_lshl_b32 s{sT[0]}, s{sC0}, 1
s_add_u32 s{sT[0]}, s{sT[0]}, {WS_FY}
v_mov_b32 v{vT[4]}, s{sTag}
s_and_b32 exec_lo, s{sPub}, 1
s_mov_b32 exec_hi, 0
buffer_store_dword v{vT[4]}, off, {W}, s{sT[0]} sc1
s_mov_b64 exec, -1''')
    fy = f'buffer_load_dwordx4 {v4(vFY)}, v{vL16}, {W}, s{sX[5]} offen sc1'
    extra = [lambda: c_load(vm)] * OPT['cs2']
    st = scan_2(0, vm, ld, {0: yflag, 4: glue1}, OPT['defer'], extra)
    assert not extra
    lt, lj = A.label('type'), A.label('join')
    A.cond[lt] = lambda c: c['ty']
    A(f's_bitcmp1_b32 s{sJ}, 0\ns_cbranch_scc1 {lt}')
    p0 = PREV[0]
    for ty in range(2):
        v, lg, S = copy.deepcopy(vm), LG(), Side()
        PREV[0], c_issued[0] = p0, 50 - OPT['cl2']
        o = 9 * (4 - nu)
        for j in range(OPT['defer'], 5):
            S.add((j - OPT['defer']) * OPT['stp'] // 2, lambda j=j: st(j, v))
        for i in range(OPT['cl2']):
            S.add(OPT['cl2s'] + i * (o + 8 - OPT['cl2s']) // OPT['cl2'], lambda: c_load(v))
        S.add(OPT['hfl'], lambda: h_flag(0, v))
        S.add(o + 1, glue2)
        for j in range(4):
            S.add(o + 2 + j, lambda j=j: lg(f'ds_write_b128 v{yPw}, {v4(CX + 16 + 4 * j)} offset:{1024 * j}'))
        S.add(o + 4, 's_barrier')
        S.add(o + OPT['yp0'], atom(f's_mov_b32 s{sX[5]}, {WS_FY}', lambda: v(fy, 'fy')))
        S.add(o + OPT['hp'], lambda: v(H_POLL, 'fh'))
        cv = Conv([(0, u, list(range(8)), CX) for u in range(nu, 4)] + [(1, u, JSET[ty], CY) for u in range(2)], lg, True)
        cv.emit(0, len(cv.seq), S)
        assert not S.left()
        if ty == 0:
            A(f's_branch {lj}\n{lt}:')
    A(f'{lj}:')
    stamp('conv2')
    PM, PS = 208, 224
    for x in range(4):
        A(f'ds_write_b128 v{ySw}, {v4(CY + 4 * x)} offset:{1024 * x}')
    for j in range(4):
        run(y_dterm(CX + 4 * j, KVM + 2 * j, sDm[0], sDm[1]))
    v.wait('fy')
    check_tags([vFY + i for i in range(4)], fy)
    g2 = G2(0, v)
    g2.begin()
    A('s_waitcnt lgkmcnt(0)\ns_barrier')
    for j in range(4):
        A(f'ds_read_b128 {v4(PM + 4 * j)}, v{yPr} offset:{1024 * j}')
    for x in range(4):
        A(f'ds_read_b128 {v4(PS + 4 * x)}, v{ySr} offset:{4096 * x}')
    it = ['s_waitcnt lgkmcnt(0)']
    for j in range(4):
        p = PM + 4 * j
        it += [f'v_add_f32 v{p + i}, v{CX + 4 * j + i}, v{p + i}' for i in range(4)]
        it += [f'v_cvt_pk_bf16_f32 v{p}, v{p}, v{p + 1}', f'v_cvt_pk_bf16_f32 v{p + 1}, v{p + 2}, v{p + 3}',
               lambda j=j, p=p: v(f'buffer_store_dwordx2 {v2(p)}, v{yS}, {W}, s{sYO[0]} offen offset:{512 * j} sc1')]
    it += y_dterm(PS, KVX, sDm[2], sDm[3])
    it += [f'v_add_f32 v{PS + 4 + i}, v{PS + 4 + i}, v{PS + 8 + i}' for i in range(4)]
    it += [f'v_add_f32 v{PS + i}, v{PS + i}, v{PS + 12 + i}' for i in range(4)]
    it += [f'v_add_f32 v{PS + i}, v{PS + i}, v{PS + 4 + i}' for i in range(4)]
    it += [f'v_cvt_pk_bf16_f32 v{PS}, v{PS}, v{PS + 1}', f'v_cvt_pk_bf16_f32 v{PS + 1}, v{PS + 2}, v{PS + 3}',
           lambda: v(f'buffer_store_dwordx2 {v2(PS)}, v{yS}, {W}, s{sYO[1]} offen sc1')]
    g2.ytail = it
    stamp('y_rd')
    return g2


YF, ZR = BF, BF + 20
P0, P1 = 192, 212
XT, DP, ZU, F1, F2 = 98, 100, 102, 88, 92
vHA, vYD, vYR = 244, 252, 253
G2REG = vU[2:5] + [vHA]
YP = 232


def g2_setup(layer):
    hb = HB[layer]
    A(f's_mul_i32 s{sT[1]}, s{sR64}, 163840\ns_mul_i32 s{sT[2]}, s{sW}, 10240\n'
      f's_add_u32 s{sT[1]}, s{sT[1]}, s{sT[2]}\ns_add_u32 s{sT[1]}, s{sT[1]}, {hb}')
    for z in range(4):
        A(f's_add_u32 s{sT[2]}, s{sW}, {z + 1}\ns_and_b32 s{sT[2]}, s{sT[2]}, 3\n'
          f's_mul_i32 s{sT[3]}, s{sT[2]}, 40960\ns_add_u32 s{sDS[z]}, s{sT[3]}, s{sT[1]}')
        if z < 2:
            A(f's_mul_i32 s{sT[3]}, s{sT[2]}, 10240\ns_add_u32 s{sT[3]}, s{sT[3]}, {L_RED + z * 5120}\n'
              f'v_add_u32 v{vU[2 + z]}, s{sT[3]}, v{vL16}')
        if z == 2:
            A(f's_mul_i32 s{sT[3]}, s{sT[2]}, 5120\nv_add_u32 v{vU[2 + z]}, s{sT[3]}, v{vL16}')
    A(f'''s_lshl_b32 s{sZ[3]}, s{sR128}, 10
s_lshl_b32 s{sT[1]}, s{sW}, 6
s_add_u32 s{sZ[3]}, s{sZ[3]}, s{sT[1]}
s_and_b32 s{sT[1]}, s{sR64}, 1
s_lshl_b32 s{sT[1]}, s{sT[1]}, 3
s_add_u32 s{sZ[3]}, s{sZ[3]}, s{sT[1]}
s_add_u32 s{sZ[3]}, s{sZ[3]}, {WS_FH + layer * 256}
v_and_b32 v{vHA}, 3, v{vL}
v_lshlrev_b32 v{vHA}, 4, v{vHA}''')


def z_addr():
    t = vT
    A(f'''s_lshl_b32 s{sT[0]}, s{sR64}, 6
s_lshr_b32 s{sT[1]}, s{sW}, 1
s_lshl_b32 s{sT[1]}, s{sT[1]}, 5
s_add_u32 s{sT[0]}, s{sT[0]}, s{sT[1]}
s_and_b32 s{sT[1]}, s{sW}, 1
s_lshl_b32 s{sT[1]}, s{sT[1]}, 2
s_add_u32 s{sT[0]}, s{sT[0]}, s{sT[1]}
s_mul_i32 s{sZ[0]}, s{sT[0]}, 1280
s_mul_i32 s{sT[1]}, s{sS8}, 160
s_add_u32 s{sZ[0]}, s{sZ[0]}, s{sT[1]}
s_lshl_b32 s{sZ[2]}, s{sW}, 12
s_add_u32 s{sZ[2]}, s{sZ[2]}, {L_PS}''')
    for z in range(3):
        A(f'''v_add_u32 v{t[0]}, {64 * z}, v{vL}
v_mul_u32_u24 v{t[1]}, 205, v{t[0]}
v_lshrrev_b32 v{t[1]}, 11, v{t[1]}
v_lshrrev_b32 v{t[2]}, 2, v{t[1]}
v_mul_u32_u24 v{t[1]}, 1120, v{t[1]}
v_mul_u32_u24 v{t[2]}, 5120, v{t[2]}
v_lshlrev_b32 v{t[0]}, 4, v{t[0]}
v_add3_u32 v{vZ + z}, v{t[0]}, v{t[1]}, v{t[2]}''')
    A(f'''s_and_b32 s{sT[0]}, s{sR64}, 1
s_lshl_b32 s{sT[0]}, s{sT[0]}, 2
s_add_u32 s{sT[0]}, s{sT[0]}, s{sW}
s_lshr_b32 s{sT[1]}, s{sT[0]}, 1
s_lshl_b32 s{sT[1]}, s{sT[1]}, 8
s_and_b32 s{sT[0]}, s{sT[0]}, 1
s_lshl_b32 s{sT[0]}, s{sT[0]}, 5
s_add_u32 s{sT[0]}, s{sT[0]}, s{sT[1]}
s_add_u32 s{sT[0]}, s{sT[0]}, {L_RS}
v_lshrrev_b32 v{t[1]}, 2, v{vI}
v_lshlrev_b32 v{t[1]}, 6, v{t[1]}
v_and_b32 v{t[2]}, 3, v{vI}
v_lshl_add_u32 v{t[1]}, v{t[2]}, 3, v{t[1]}
v_add_u32 v{vZ + 3}, s{sT[0]}, v{t[1]}
v_and_b32 v{t[2]}, 7, v{vI}
v_lshlrev_b32 v{t[2]}, 3, v{t[2]}
v_lshl_add_u32 v{t[2]}, v{vQ}, 6, v{t[2]}
s_lshl_b32 s{sT[0]}, s{sW}, 8
s_add_u32 s{sT[0]}, s{sT[0]}, {L_RS}
v_add_u32 v{vZ + 4}, s{sT[0]}, v{t[2]}
v_lshl_add_u32 v{vXT + 1}, v{vQ}, 3, s{sZ[2]}
v_mul_u32_u24 v{vXT}, 160, v{vI}
v_lshl_add_u32 v{vXT}, v{vQ}, 3, v{vXT}
v_add_u32 v{vXT}, s{sZ[2]}, v{vXT}''')


def z_loads(vm):
    it = []
    for z in range(3):
        it.append(atom(f's_add_u32 m0, s{sZ[2]}, {1024 * z}', 's_mov_b32 exec_hi, 0' if z == 2 else [],
                       lambda z=z: vm(f'buffer_load_dwordx4 v{vZ + z}, {s4(R_X)}, s{sZ[0]} offen lds', 'xt'),
                       's_mov_b32 exec_hi, -1' if z == 2 else []))
    it.append(atom(lambda: srd(R_T1, P_DSK, 1280), f's_add_u32 m0, s{sZ[2]}, 2560', f's_mul_i32 s{sT[0]}, s{sS8}, 160',
                   's_mov_b64 exec, 0x3ff',
                   lambda: vm(f'buffer_load_dwordx4 v{vL16}, {s4(R_T1)}, s{sT[0]} offen lds', 'xt'), 's_mov_b64 exec, -1'))
    return it


def z_work():
    b = [f'v_accvgpr_read_b32 v{ZU}, a{A_ZU}', f'v_accvgpr_read_b32 v{ZU + 1}, a{A_ZU + 1}', f'v_mul_f32 v{ZU}, v{ZU}, v{ZU + 1}']
    for m in range(5):
        for i in range(2):
            b += [f'v_accvgpr_read_b32 v{XT + i}, a{A_X + 2 * m + i}', f'v_accvgpr_read_b32 v{DP + i}, a{A_DSK + 2 * m + i}']
        b += unpack(ZR + 4 * m, XT, 2) + unpack(F2, DP, 2)
        for i in range(4):
            b.append(f'v_fma_f32 v{F1 + i}, v{ZR + 4 * m + i}, v{ZU + 1}, -v{ZU}')
        for i in range(4):
            b.append(f'v_fmac_f32 v{ZR + 4 * m + i}, v{F1 + i}, v{F2 + i}')
    return b


vTM = 246
H_POLL = f'buffer_load_dwordx2 {v2(vU[0])}, v{vHA}, {W}, s{sZ[3]} offen sc1'


class G2:
    def __init__(self, layer, vm):
        self.layer, self.vm, self.nxt = layer, vm, 0

    def ld(self):
        f = self.nxt
        self.nxt += 1
        z, k = divmod(f, 10)
        if k and k % 4 == 0:
            A(f's_add_u32 s{sDS[z]}, s{sDS[z]}, 4096')
        self.vm(f'buffer_load_dwordx4 {v4(RING + 4 * (f % NR))}, v{vL16}, {WH}, s{sDS[z]} offen '
                f'offset:{(k % 4) * 1024} sc1', ('h', f))

    def begin(self):
        if self.layer == 0:
            self.vm.wait('fh')
        check_tags([vU[0], vU[1]], H_POLL, inline=2 - self.layer)
        self.vm.done = self.vm.n if self.layer else self.vm.done
        stamp(f'h_ready_{self.layer}')
        for f in range(OPT['n0'] if self.layer else OPT['n00']):
            self.ld()


def gemm2(g2):
    layer, vm, ld = g2.layer, g2.vm, g2.ld
    side, lg = Side(), LG()
    n0 = g2.nxt
    last = 0
    for f in range(n0, 40):
        last = max(f - n0, f - NR + 1)
        side.add(last, ld)
    last += 1
    hooks = []
    ze = late = 0
    if layer == 0:
        e = side.spread(OPT['ys'], OPT['yper'], g2.ytail)
        side.add(e, 's_barrier')
        assert e < 11
        late = OPT['zlate']
        zw = z_work()
        if late:
            n = (OPT['rb'] - e) * OPT['zper']
            side.spread(e, OPT['zper'], zw[:n])
            assert side.spread(30, OPT['zper'] + 1, zw[n:]) <= 40
        else:
            ze = side.spread(e, OPT['zper'], zw)
            assert ze <= OPT['rb'] - 4 * OPT['r3'], ze
        side.add(OPT['yp'] + 1, f'''s_mul_i32 s{sX[6]}, s{sS8}, 327680
s_lshl_b32 s{sT[0]}, s{sR64}, 7
s_add_u32 s{sX[6]}, s{sX[6]}, s{sT[0]}
s_lshr_b32 s{sT[0]}, s{sW}, 1
s_mul_i32 s{sX[7]}, s{sT[0]}, 5120
s_add_u32 s{sX[7]}, s{sX[7]}, {L_Y}
s_lshl_b32 s{sT[0]}, s{sT[0]}, 6
s_add_u32 s{sX[6]}, s{sX[6]}, s{sT[0]}
s_add_u32 s{sX[6]}, s{sX[6]}, {WS_Y}
s_mov_b32 s{sX[5]}, s{sX[6]}''')
        side.add(OPT['yp'] + 2, f'''s_and_b32 s{sT[0]}, s{sW}, 1
s_mul_i32 s{sT[1]}, s{sT[0]}, {3 * 65536}
s_add_u32 s{sX[6]}, s{sX[6]}, s{sT[1]}
s_mul_i32 s{sT[1]}, s{sT[0]}, 3072
s_add_u32 s{sX[8]}, s{sX[7]}, s{sT[1]}
s_lshl_b32 s{sT[0]}, s{sT[0]}, 3
s_add_u32 s{sX[7]}, s{sX[7]}, s{sT[0]}
v_lshrrev_b32 v{vYD}, 2, v{vL}
v_lshlrev_b32 v{vYD}, 12, v{vYD}
v_and_b32 v{vT[1]}, 3, v{vL}
v_lshl_add_u32 v{vYD}, v{vT[1]}, 4, v{vYD}''')

        def ydma(m):
            A(f's_add_u32 m0, s{sX[8]}, {m * 1024}')
            if m == 2:
                A(f's_bitcmp1_b32 s{sW}, 0\ns_cselect_b32 s{sX[6]}, {OOB}, s{sX[6]}\ns_cselect_b32 m0, {LDS_SIZE}, m0')
            vm(f'buffer_load_dwordx4 v{vYD}, {W}, s{sX[6]} offen sc1 lds', 'yd')
            A(f's_add_u32 s{sX[6]}, s{sX[6]}, 65536')
        side.add(3 if OPT['dbg'] & 256 else last, *[lambda m=m: ydma(m) for m in range(3)])
        side.add(last + 1, f'v_add_u32 v{vYR}, s{sX[7]}, v{vL16}')
    else:
        side.spread(1, 3, [f'v_accvgpr_read_b32 v{ZR + i}, a{A_Z + i}' for i in range(20)] + unpack(YF, YP, 10))
        if OPT['wb'] & 2:
            side.add(OPT['wbs'] or last + 1, wbl2)
    rd = lambda p, a, off, nm: [lambda i=i: lg(f'ds_read_b128 {v4(p + 4 * i)}, v{a} offset:{off + 1024 * i}', nm) for i in range(5)]
    add = lambda d, s: [f'v_add_f32 v{d + i}, v{d + i}, v{s + i}' for i in range(20)]
    side.add(OPT['ra'] - 1, f's_mul_i32 s{sT[3]}, s{sW}, 10240\ns_add_u32 s{sT[3]}, s{sT[3]}, {L_RED}\n'
                            f'v_add_u32 v{vU[5]}, s{sT[3]}, v{vL16}')
    bar = lambda: (lg.wait('pw'), A('s_barrier'))
    wp = OPT['wper']
    for z in range(3):
        pa = ACC + 20 * (z & 1)
        for m in range(5):
            side.q.setdefault(10 * z + 11 + m // wp, []).insert(
                m % wp, lambda z=z, m=m, pa=pa: lg(f'ds_write_b128 v{vU[2 + z]}, {v4(pa + 4 * m)} offset:{1024 * m}', 'pw'))
    if OPT['r3']:
        e = side.spread(OPT['ra'], 5, [bar] + rd(P0, vU[5], 0, 'p0'))
        side.spread(max(e, ze), 5, [lambda: lg.wait('p0')] + add(ZR, P0))
        e = side.spread(OPT['rb'], OPT['rper'], [bar] + rd(P1, vU[5], 5120, 'p1') + [lambda: lg.wait('p1')] + add(ZR, P1))
    else:
        e = side.spread(OPT['rb'], OPT['rper'], [bar] + rd(P0, vU[5], 0, 'p0') + rd(P1, vU[5], 5120, 'p1') + [lambda: lg.wait('p0')]
                        + (add(ZR, P0) + [lambda: lg.wait('p1')] + add(ZR, P1) if not late else
                           [lambda: lg.wait('p1')] + add(P1, P0)))
    assert e <= 30, e
    side.add(OPT['rc'] - 1, f's_mul_i32 s{sT[3]}, s{sW}, 5120\nv_add_u32 v{vU[5]}, s{sT[3]}, v{vL16}')
    if layer == 0:
        side.add(36, [f's_lshr_b32 s{sX[1 + k]}, s{sTag}, {8 * k}' for k in range(4)], f'v_mov_b32 v{vTM}, 0xff',
                 unpark('bd', 244), unpark('bd2', 245))
    side.add(37, f'''s_lshl_b32 s{sT[0]}, s{sR64}, 15
s_lshl_b32 s{sT[1]}, s{sW}, {9 - layer}
s_add_u32 s{sT[0]}, s{sT[0]}, s{sT[1]}
s_add_u32 s{sT[0]}, s{sT[0]}, {WS_ST + layer * 2048}
s_lshl_b32 s{sT[1]}, s{sS8}, 12
s_add_u32 s{sT[1]}, s{sT[1]}, s{sT[0]}''')
    side.spread(OPT['rc'], 6, [atom(lambda: vm.wait(('h', 39)), bar) if layer else bar] + rd(P0, vU[5], 0, 'p2'))
    for z in range(4):
        if OPT['stamps'] < 3:
            stamp(f'.z{z}_{layer}', 2)
        acc = ACC + 20 * (z & 1)
        for k in range(10):
            f = 10 * z + k
            vm.wait(('h', f))
            for h in list(hooks):
                if vm.t[h[0]] <= vm.done:
                    hooks.remove(h)
                    h[1]()
            for m in range(5):
                d = acc + 4 * m
                c = v4(d) if k else ('0' if z < 3 else v4((P1 if late else ZR) + 4 * m))
                A(f'v_mfma_f32_16x16x32_bf16 {v4(d)}, {a4(4 * (5 * k + m))}, {v4(RING + 4 * (f % NR))}, {c}')
                side.run(f, 5 - m)
    assert not side.left() and not hooks
    stamp(f'g2_{layer}')
    return lg


def allreduce_q(r, t):
    for op in ('v_permlane32_swap_b32', 'v_permlane16_swap_b32'):
        A(f'''v_mov_b32 v{t}, v{r}
v_mov_b32 v{t + 1}, v{r + 1}
{op} v{r}, v{t}
{op} v{r + 1}, v{t + 1}
v_add_f32 v{r}, v{r}, v{t}
v_add_f32 v{r + 1}, v{r + 1}, v{t + 1}''')


def epilogue(layer, vm, lg, g1=None):
    a = ACC + 20
    S = 212
    G = 228
    inv = 0x3acccccd
    lg.wait('p2')
    if layer == 0:
        vm.wait('yd')
        A('s_barrier')
        stamp('y_in')
        lg = LG()
        yrd = [f'ds_read_b64_tr_b16 {v2(YP + 2 * m)}, v{vYR} offset:{m * 1024}' for m in range(5)]
        for m in range(5):
            lg(yrd[m], ('y', m))
    for i in range(10 * (layer == 0 and OPT['zlate'])):
        A(f'v_pk_add_f32 {v2(P0 + 2 * i)}, {v2(P0 + 2 * i)}, {v2(ZR + 2 * i)}')
    for i in range(10):
        A(f'v_pk_add_f32 {v2(a + 2 * i)}, {v2(a + 2 * i)}, {v2(P0 + 2 * i)}')
    A(f'v_pk_add_f32 {v2(S)}, {v2(a)}, {v2(a + 2)}\nv_pk_mul_f32 {v2(S + 2)}, {v2(a)}, {v2(a)}')
    for i in range(1, 10):
        if i >= 2:
            A(f'v_pk_add_f32 {v2(S)}, {v2(S)}, {v2(a + 2 * i)}')
        A(f'v_pk_fma_f32 {v2(S + 2)}, {v2(a + 2 * i)}, {v2(a + 2 * i)}, {v2(S + 2)}')
    if layer == 0:
        AY = 160
        stamp('y_ok')
        lab, done, redo = A.label('again'), A.label('ok'), A.label('redo')
        A.cond[lab] = lambda c: False
        slow = [f'{lab}:', f's_sub_u32 s{sBud}, s{sBud}, 1', f's_cmp_gt_i32 s{sBud}, 0', f's_cbranch_scc0 {done}',
                f's_mul_i32 s{sX[8]}, s{sW}, 10240', f's_add_u32 s{sX[8]}, s{sX[8]}, {L_RED + 5120}',
                f's_and_b32 s{sX[6]}, s{sW}, 1', f's_lshl_b32 s{sX[6]}, s{sX[6]}, 3', f's_add_u32 s{sX[6]}, s{sX[6]}, s{sX[8]}',
                f'v_add_u32 v{vYR}, s{sX[6]}, v{vL16}']
        for m in range(5):
            slow += [f's_add_u32 m0, s{sX[8]}, {m * 1024}', f's_add_u32 s{sX[6]}, s{sX[5]}, {m * 65536}',
                     f'buffer_load_dwordx4 v{vYD}, {W}, s{sX[6]} offen sc1 lds']
        TAIL.append('\n'.join(slow + ['s_waitcnt vmcnt(0)'] + yrd + ['s_waitcnt lgkmcnt(0)', f's_branch {redo}']))
        A(f'{redo}:')
        for m in range(5):
            lg.wait(('y', m))
            A('\n'.join(unpack(YF + 4 * m, YP + 2 * m, 2)))
            if m in (0, 2, 4) and OPT['rl'] == 0:
                b_dma(vm, 0, m, 244, 245)
            for i in (2 * m, 2 * m + 1):
                x, y, ay = v2(a + 2 * i), v2(YF + 2 * i), v2(AY + 2 * i)
                A(f'v_pk_mul_f32 {ay}, {x}, {y}')
                if i == 0:
                    A(f'v_pk_mul_f32 {v2(S + 14)}, {y}, {y}\nv_pk_mul_f32 {v2(S + 6)}, {ay}, {x}\n'
                      f'v_pk_mul_f32 {v2(S + 8)}, {ay}, {ay}\nv_pk_mul_f32 {v2(S + 10)}, {ay}, {y}')
                else:
                    p2 = v2(AY) if i == 1 else v2(S + 4)
                    p6 = v2(YF) if i == 1 else v2(S + 12)
                    A(f'v_pk_add_f32 {v2(S + 12)}, {p6}, {y}\nv_pk_fma_f32 {v2(S + 14)}, {y}, {y}, {v2(S + 14)}\n'
                      f'v_pk_add_f32 {v2(S + 4)}, {p2}, {ay}\nv_pk_fma_f32 {v2(S + 6)}, {ay}, {x}, {v2(S + 6)}\n'
                      f'v_pk_fma_f32 {v2(S + 8)}, {ay}, {ay}, {v2(S + 8)}\n'
                      f'v_pk_fma_f32 {v2(S + 10)}, {ay}, {y}, {v2(S + 10)}')
        A(f'v_cmp_u_f32 vcc, v{S + 12}, v{S + 13}\ns_cbranch_vccnz {lab}\n{done}:')
        for k in range(8):
            A(f'v_add_f32 v{S + 2 * k}, v{S + 2 * k}, v{S + 2 * k + 1}')
        for k in range(4):
            A(f'v_permlane16_swap_b32 v{S + 2 * k}, v{S + 2 * k + 8}')
        for k in range(4):
            A(f'v_add_f32 v{G + k}, v{S + 2 * k}, v{S + 2 * k + 8}')
        for k in range(4):
            A(f'v_mov_b32 v{S + k}, v{G + k}')
        for k in range(4):
            A(f'v_permlane32_swap_b32 v{G + k}, v{S + k}')
        for k in range(4):
            A(f'v_add_f32 v{G + k}, v{G + k}, v{S + k}')
        for k in range(4):
            A(f'v_bfi_b32 v{G + k}, v{vTM}, s{sX[1 + k]}, v{G + k}')
        A('s_mov_b32 exec_hi, 0')
        mode_stores([f'buffer_store_dwordx4 {v4(G)}, v{vL16}, {W}, s{sT[1]} offen'], through=OPT['thr'] & 16)
        A('s_mov_b32 exec_hi, -1')
        stamp('st_pub_0')
        for j in (0, 2, 4) * (OPT['rl'] == 1):
            b_dma(vm, 0, j, 244, 245)
        if OPT['prefetch'] & 4:
            run(code_touch())
        for i in range(10):
            A(f'v_accvgpr_write_b32 a{A_Y + i}, v{YP + i}')
        A(f'''v_lshrrev_b32 v{vT[0]}, 2, v{vI}
v_mul_u32_u24 v{vT[0]}, 5120, v{vT[0]}
v_and_b32 v{vT[1]}, 3, v{vI}
v_lshl_add_u32 v{vT[0]}, v{vT[1]}, 4, v{vT[0]}
v_lshrrev_b32 v{vT[1]}, 1, v{vQ}
v_lshl_add_u32 v{vT[0]}, v{vT[1]}, 6, v{vT[0]}
v_and_b32 v{vT[1]}, 1, v{vQ}
v_lshl_add_u32 v{vU[5]}, v{vT[1]}, 3, v{vT[0]}
s_lshl_b32 s{sX[1]}, s{sR64}, {3 if UO else 2}
s_add_u32 s{sX[1]}, s{sX[1]}, s{sW}
s_mul_i32 s{sX[1]}, s{sX[1]}, 20480
s_mul_i32 s{sT[2]}, s{sS8}, 640
s_add_u32 s{sX[1]}, s{sX[1]}, s{sT[2]}
s_add_u32 s{sX[1]}, s{sX[1]}, {0 if UO else WS_U2}''')
        DPk, DF = 190, 108
        for i in range(10):
            A(f'v_accvgpr_read_b32 v{DPk + i}, a{A_DSK + i}')
        A('\n'.join(unpack(DF, DPk, 10)))
        USRC = f's_add_u32 s{sL[0]}, s{sXs}, {WS_U2}'
        if UO:
            USRC = (f's_lshl_b32 s{sL[0]}, s{sXs}, 1\ns_and_b32 s{sT[1]}, s{sW}, 1\ns_mul_i32 s{sT[1]}, s{sT[1]}, 40960\n'
                    f's_sub_u32 s{sL[0]}, s{sL[0]}, s{sT[1]}')
        A(f'''s_lshl_b32 s{sX[0]}, s{sR128}, 10
s_lshr_b32 s{sT[1]}, s{sW}, 1
s_lshl_b32 s{sT[1]}, s{sT[1]}, 7
s_add_u32 s{sX[0]}, s{sX[0]}, s{sT[1]}
s_and_b32 s{sT[1]}, s{sW}, 1
s_lshl_b32 s{sT[1]}, s{sT[1]}, 3
s_add_u32 s{sX[0]}, s{sX[0]}, s{sT[1]}
s_add_u32 s{sX[0]}, s{sX[0]}, {WS_FU}
v_and_b32 v{vU[4]}, 7, v{vL}
v_lshlrev_b32 v{vU[4]}, 4, v{vU[4]}
{USRC}
s_add_u32 s{sL[1]}, s{sL[0]}, 20480
s_lshl_b32 s{sEpW}, s{sR64}, 5
s_lshl_b32 s{sT[1]}, s{sS8}, 2
s_add_u32 s{sEpW}, s{sEpW}, s{sT[1]}
s_add_u32 s{sEpW}, s{sEpW}, s{sW}''')
        A(f'''v_and_b32 v{vT[0]}, 31, v{vL}
v_lshlrev_b32 v{vT[0]}, 4, v{vT[0]}
v_lshrrev_b32 v{vT[1]}, 5, v{vL}
v_lshl_add_u32 v{vT[0]}, v{vT[1]}, 14, v{vT[0]}
s_mov_b32 s{sT[2]}, 0x0c0c0400
s_mov_b32 s{sT[3]}, 0x04000c0c
s_add_u32 s{sX[2]}, s{sT[0]}, 4096
s_add_u32 s{sX[3]}, s{sT[0]}, 8192
s_add_u32 s{sX[4]}, s{sT[0]}, 12288''')
        back = A.label('stpoll')
        A(f'{back}:')
        Q = 128
        for sl, so in enumerate((sT[0], sX[2], sX[3], sX[4])):
            A(f'buffer_load_dwordx4 {v4(Q + 4 * sl)}, v{vT[0]}, {W}, s{so} offen sc1')
        A('s_waitcnt vmcnt(0)')
        for sl in range(4):
            q = Q + 4 * sl
            A(f'v_perm_b32 v{S + 2 * sl}, v{q + 1}, v{q}, s{sT[2]}\nv_perm_b32 v{S + 2 * sl + 1}, v{q + 3}, v{q + 2}, s{sT[3]}')
        for sl in range(4):
            A(f'v_or_b32 v{S + 2 * sl}, v{S + 2 * sl}, v{S + 2 * sl + 1}')
        lo, hi = vT[2], vT[3]
        A(f'''v_min3_u32 v{lo}, v{S}, v{S + 2}, s{sTag}
v_max3_u32 v{hi}, v{S}, v{S + 2}, s{sTag}
v_min3_u32 v{lo}, v{lo}, v{S + 4}, v{S + 6}
v_max3_u32 v{hi}, v{hi}, v{S + 4}, v{S + 6}
v_cmp_ne_u32 vcc, v{lo}, v{hi}''')
        retry(back)
        stamp('st_in_0')
        for hf in (0, 2):
            A(f'v_pk_add_f32 {v2(Q + hf)}, {v2(Q + hf)}, {v2(Q + 4 + hf)}\n'
              f'v_pk_add_f32 {v2(Q + 8 + hf)}, {v2(Q + 8 + hf)}, {v2(Q + 12 + hf)}')
        for hf in (0, 2):
            A(f'v_pk_add_f32 {v2(Q + hf)}, {v2(Q + hf)}, {v2(Q + 8 + hf)}')
        s = lambda k: S + k
        for k in range(4):
            A(f'v_mov_b32 v{Q + 4 + k}, v{Q + k}')
        for k in range(4):
            A(f'v_permlane32_swap_b32 v{Q + k}, v{Q + 4 + k}')
        for k in range(4):
            A(f'v_add_f32 v{s(k)}, v{Q + k}, v{Q + 4 + k}')
        for k in range(4):
            A(f'v_mov_b32 v{s(4 + k)}, v{s(k)}')
        for k in range(4):
            A(f'v_permlane16_swap_b32 v{s(k)}, v{s(4 + k)}')
        m1, r1, k1, t0, t1, r2, k2 = 200, 202, 203, 204, 205, 206, 207
        A(f'''v_mul_f32 v{m1}, {inv:#x}, v{s(0)}
v_mul_f32 v{t0}, {inv:#x}, v{s(1)}
v_fma_f32 v{t0}, -v{m1}, v{m1}, v{t0}
v_max_f32 v{t0}, 0, v{t0}
v_add_f32 v{t0}, 0x3727c5ac, v{t0}
v_rsq_f32 v{r1}, v{t0}
v_mul_f32 v{k1}, v{m1}, v{r1}
v_fma_f32 v{t0}, v{r1}, v{s(2)}, v{s(0)}
v_fma_f32 v{t0}, -v{k1}, v{s(6)}, v{t0}
v_mul_f32 v{t1}, v{r1}, v{s(4)}
v_fma_f32 v{t1}, 2.0, v{s(3)}, v{t1}
v_fma_f32 v{t1}, v{r1}, v{t1}, v{s(1)}
v_fma_f32 v{s(2)}, v{r1}, v{s(5)}, v{s(2)}
v_mul_f32 v{s(7)}, v{k1}, v{s(7)}
v_fma_f32 v{s(2)}, -2.0, v{s(2)}, v{s(7)}
v_fma_f32 v{t1}, v{k1}, v{s(2)}, v{t1}
v_mul_f32 v{t0}, {inv:#x}, v{t0}
v_mul_f32 v{t1}, {inv:#x}, v{t1}
v_fma_f32 v{t1}, -v{t0}, v{t0}, v{t1}
v_max_f32 v{t1}, 0, v{t1}
v_add_f32 v{t1}, 0x3727c5ac, v{t1}
v_rsq_f32 v{r2}, v{t1}
v_mul_f32 v{k2}, v{t0}, v{r2}''')
        bc = 'op_sel:[0,0,1] op_sel_hi:[1,0,1] neg_lo:[0,0,1] neg_hi:[0,0,1]'
        U, UP = 160, 180
        for i in range(10):
            A(f'v_pk_fma_f32 {v2(U + 2 * i)}, {v2(a + 2 * i)}, {v2(r1)}, {v2(r1)} {bc}')
        for i in range(10):
            A(f'v_pk_fma_f32 {v2(a + 2 * i)}, {v2(U + 2 * i)}, {v2(YF + 2 * i)}, {v2(a + 2 * i)}')
        for i in range(10):
            A(f'v_pk_fma_f32 {v2(U + 2 * i)}, {v2(a + 2 * i)}, {v2(r2)}, {v2(r2)} {bc}')
        for i in range(10):
            A(f'v_cvt_pk_bf16_f32 v{UP + i}, v{U + 2 * i}, v{U + 2 * i + 1}')
        mode_stores([f'buffer_store_dwordx2 {v2(UP + 2 * m)}, v{vU[5]}, {WU}, s{sX[1]} offen offset:{128 * m}'
                     for m in range(5)], through=OPT['thr'] & 8 and not UO)
        stamp('u2_st')
        for i in range(10):
            A(f'v_pk_fma_f32 {v2(a + 2 * i)}, {v2(U + 2 * i)}, {v2(DF + 2 * i)}, {v2(a + 2 * i)}')
        for i in range(20):
            A(f'v_accvgpr_write_b32 a{A_Z + i}, v{a + i}')
        A(f's_add_u32 s{sT[1]}, s{sFW}, {WS_FU}\ns_waitcnt vmcnt(0)')
        flag_store(f's{sT[1]}', True)
        A(f's_cmp_lg_u32 s{sEpW}, {31 * 32}')
        with A.skip_if('s_cbranch_scc1', lambda c: True):
            flag_store('0', False)
        fl = f'buffer_load_dwordx2 {v2(vU[0])}, v{vU[4]}, {W}, s{sX[0]} offen sc1'
        for j in range(5):
            g1.rd(0, j)
        check_tags([vU[0], vU[1]], fl, inline=1)
        stamp('u2_ready')
    else:
        A(f'v_add_f32 v{G}, v{S}, v{S + 1}\nv_add_f32 v{G + 1}, v{S + 2}, v{S + 3}\nv_mov_b32 v{G + 2}, s{sTag}\n'
          f'v_mov_b32 v{G + 3}, s{sTag}')
        allreduce_q(G, S)
        A('s_mov_b64 exec, 0xffff')
        mode_stores([f'buffer_store_dwordx4 {v4(G)}, v{vL16}, {W}, s{sT[1]} offen'], through=OPT['thr'] & 16)
        A('s_mov_b64 exec, -1')
        stamp('st_pub_1')
        if OPT['wb'] & 64:
            wbl2()
        lg = LG()
        X3, Y3 = 160, YF
        A(f'''s_mul_i32 s{sT[2]}, s{sW}, 10240
s_add_u32 s{sT[2]}, s{sT[2]}, {L_RED}
v_lshrrev_b32 v{vT[1]}, 1, v{vI}
v_xor_b32 v{vT[1]}, v{vT[1]}, v{vQ}
v_and_b32 v{vT[1]}, 3, v{vT[1]}
v_lshlrev_b32 v{vT[1]}, 4, v{vT[1]}
v_lshl_add_u32 v{vT[1]}, v{vI}, 6, v{vT[1]}
v_add_u32 v{vU[2]}, s{sT[2]}, v{vT[1]}''')
        for m in range(5):
            lg(f'ds_write_b128 v{vU[2]}, {v4(a + 4 * m)} offset:{1024 * m}')
        A(f'''v_lshrrev_b32 v{vT[1]}, 3, v{vL}
v_xor_b32 v{vT[1]}, v{vT[1]}, v{vL}
v_and_b32 v{vT[1]}, 3, v{vT[1]}
v_lshlrev_b32 v{vT[1]}, 4, v{vT[1]}
v_lshrrev_b32 v{vT[2]}, 2, v{vL}
v_lshl_add_u32 v{vT[1]}, v{vT[2]}, 6, v{vT[1]}
v_add_u32 v{vU[3]}, s{sT[2]}, v{vT[1]}''')
        for m in range(5):
            lg(f'ds_read_b128 {v4(X3 + 4 * m)}, v{vU[3]} offset:{1024 * m}')
        A(f'''v_and_b32 v{vT[3]}, 3, v{vL}
v_lshlrev_b32 v{vT[0]}, 13, v{vT[3]}
v_lshl_add_u32 v{vT[0]}, v{vT[2]}, 4, v{vT[0]}
s_add_u32 s{sT[1]}, s{sT[0]}, 4096
v_lshrrev_b32 v{vT[1]}, 2, v{vT[2]}
v_lshl_add_u32 v{vT[1]}, v{vT[1]}, 2, v{vT[2]}
v_mul_u32_u24 v{vT[1]}, 2560, v{vT[1]}
v_lshl_add_u32 v{vU[4]}, v{vT[3]}, 4, v{vT[1]}
s_lshl_b32 s{sT[3]}, s{sR64}, 6
s_lshr_b32 s{sX[1]}, s{sW}, 1
s_lshl_b32 s{sX[1]}, s{sX[1]}, 5
s_add_u32 s{sT[3]}, s{sT[3]}, s{sX[1]}
s_and_b32 s{sX[1]}, s{sW}, 1
s_lshl_b32 s{sX[1]}, s{sX[1]}, 2
s_add_u32 s{sT[3]}, s{sT[3]}, s{sX[1]}
s_mul_i32 s{sT[3]}, s{sT[3]}, 2560
s_mul_i32 s{sX[1]}, s{sS8}, 320
s_add_u32 s{sT[3]}, s{sT[3]}, s{sX[1]}''')
        Q = 128
        ld = [f'buffer_load_dwordx3 {v3(Q)}, v{vT[0]}, {W}, s{sT[0]} offen sc1',
              f'buffer_load_dwordx3 {v3(Q + 4)}, v{vT[0]}, {W}, s{sT[1]} offen sc1']
        check_tags([Q + 2, Q + 6], ld, inline=1)
        A('s_waitcnt lgkmcnt(0)')
        stamp('st_in_1')
        if OPT['wb'] & 32:
            wbl2()
        A(f'v_pk_add_f32 {v2(Q)}, {v2(Q)}, {v2(Q + 4)}')
        for mod in ('quad_perm:[1,0,3,2]', 'quad_perm:[2,3,0,1]'):
            A(f'v_add_f32_dpp v{Q}, v{Q}, v{Q} {mod} {DPPM}\nv_add_f32_dpp v{Q + 1}, v{Q + 1}, v{Q + 1} {mod} {DPPM}')
        r1, t0 = 200, 202
        A(f'''v_mul_f32 v{Q}, {inv:#x}, v{Q}
v_mul_f32 v{t0}, {inv:#x}, v{Q + 1}
v_fma_f32 v{t0}, -v{Q}, v{Q}, v{t0}
v_max_f32 v{t0}, 0, v{t0}
v_add_f32 v{t0}, 0x3727c5ac, v{t0}
v_rsq_f32 v{r1}, v{t0}
v_mul_f32 v{r1 + 1}, v{Q}, v{r1}''')
        bc = 'op_sel:[0,0,1] op_sel_hi:[1,0,1] neg_lo:[0,0,1] neg_hi:[0,0,1]'
        U = 132
        ls = []
        for m in range(5):
            u = U + 4 * (m & 1)
            for hf in range(2):
                ls.append(f'v_pk_fma_f32 {v2(u + 2 * hf)}, {v2(X3 + 4 * m + 2 * hf)}, {v2(r1)}, {v2(r1)} {bc}')
            for hf in range(2):
                i = 4 * m + 2 * hf
                ls.append(f'v_pk_fma_f32 {v2(X3 + i)}, {v2(u + 2 * hf)}, {v2(Y3 + i)}, {v2(X3 + i)}')
            ls.append(f'buffer_store_dwordx4 {v4(X3 + 4 * m)}, v{vU[4]}, {s4(R_T0)}, s{sT[3]} offen offset:{64 * m}'
                      + ['', '', ' nt', ' nt'][OPT['om']])
        mode_stores(ls, through=OPT['om'] in (1, 2))
        if OPT['wb'] & 16:
            wbl2()
        stamp('out_st')


def retry(back):
    lab, done = A.label('retry'), A.label('giveup')
    A.cond[lab] = lambda c: False
    if OPT['inl']:
        A.cond[back] = A.cond[done] = lambda c: False
        A(f's_sub_u32 s{sBud}, s{sBud}, 1\ns_cmp_gt_i32 s{sBud}, 0\ns_cbranch_scc0 {done}\ns_cbranch_vccnz {back}\n{done}:')
        return
    A(f's_cbranch_vccnz {lab}\n{done}:')
    TAIL.append(f'{lab}:\ns_sub_u32 s{sBud}, s{sBud}, 1\ns_cmp_gt_i32 s{sBud}, 0\n'
                f's_cbranch_scc1 {back}\ns_branch {done}')


def dump_stamps():
    if OPT['fixdur']:
        A(f'v_readfirstlane_b32 s3, v{vStamp}\ns_min_u32 s3, s3, 20000')
        if OPT['pick'] >= 0:
            A(f's_lshl_b32 s4, s{sJ}, 3\ns_add_u32 s4, s4, s{sG}\ns_cmp_eq_u32 s4, {OPT["pick"]}\ns_cselect_b32 s3, s3, 0')
        A(f'''s_add_u32 s{sSt}, s{sSt}, s3
L_fix:
s_memrealtime s[0:1]
s_waitcnt lgkmcnt(0)
s_sub_u32 s0, s0, s{sSt}
s_cmp_lt_i32 s0, {OPT['fixdur']}
s_cbranch_scc1 L_fix''')
    if not OPT['stamps']:
        return
    A(f'''s_waitcnt vmcnt(0) lgkmcnt(0)
v_writelane_b32 v{vStamp}, s{sSt}, {PREV[0]}
s_memrealtime {s2(sSt)}
s_waitcnt lgkmcnt(0)
v_writelane_b32 v{vStamp}, s{sSt}, 63
s_lshl_b32 s{sT[0]}, s{sR64}, 3
s_add_u32 s{sT[0]}, s{sT[0]}, s{sS8}
s_lshl_b32 s{sT[0]}, s{sT[0]}, 2
s_add_u32 s{sT[0]}, s{sT[0]}, s{sW}
s_lshl_b32 s{sT[0]}, s{sT[0]}, 8
s_add_u32 s{sT[0]}, s{sT[0]}, {WS_DBG}
v_lshlrev_b32 v{vT[0]}, 2, v{vL}
buffer_store_dword v{vStamp}, v{vT[0]}, {W}, s{sT[0]} offen''')


def body():
    prologue()
    g2 = conv(*front(startup()))
    vm = g2.vm
    lg = gemm2(g2)
    g = G1(1, VM())
    epilogue(0, vm, lg, g)
    n1 = OPT['n1']
    for f in range(n1):
        g.ld(f)
    for f in range(n1, 40):
        g.side.add((f - n1) // 2, lambda f=f: g.ld(f))
    if OPT['wb'] & 1:
        g.side.add(16, wbl2)
    g.vm.t['b', 0] = 0
    for n, j in enumerate((0, 2, 4) * (OPT['rl'] >= 2)):
        g.side.add(OPT['rl'] - 2 + n * OPT['rls'], lambda j=j: b_dma(g.vm, 0, j, 244, 245))
    if OPT['tc2']:
        g.side.add(OPT['tc2'], retouch())
    if UO:
        g.side.add(19, atom(f's_add_u32 s{sT[0]}, s{sFW}, {WS_FD}', lambda: flag_store(f's{sT[0]}', True)))
    for s in range(20):
        g.step(s)
    stamp('g1_1')
    scan_1(1)
    vm = VM()
    run(horner(1, vm, LG()))
    if OPT['prefetch'] & 8:
        run(code_touch())
    pre, ld = agg_ld(1)
    A(pre)
    if UO:
        fd = f'buffer_load_dword v192, v193, {W}, s{sX[4]} offen sc1'
        A(f'v_lshlrev_b32 v193, 2, v{vL}\ns_and_b32 s{sX[4]}, s{sFW}, 0x3c00\ns_add_u32 s{sX[4]}, s{sX[4]}, {WS_FD}')
        vm(fd)
    for l in ld:
        vm(l, 'agg')
    A(f'''s_mul_i32 s{sT[0]}, s{sW}, 2560
s_add_u32 s{sT[0]}, s{sT[0]}, 24576
v_lshlrev_b32 v{vT[0]}, 5, v{vI}
v_lshl_add_u32 v{vT[0]}, v{vQ}, 3, v{vT[0]}
v_add_u32 v{vT[0]}, s{sT[0]}, v{vT[0]}
v_lshl_add_u32 v{vT[1]}, v{vL}, 3, s{sT[0]}''')
    run([f'ds_write_b64 v{vT[0]}, a[{A_Y + 2 * m}:{A_Y + 2 * m + 1}] offset:{512 * m}' for m in range(5)]
        + [f'ds_read_b64 {v2(YP + 2 * m)}, v{vT[1]} offset:{512 * m}' for m in range(5)])
    scan_2(1, vm, ld, {'agg': lambda: check_tags([192], fd)} if UO else {})
    g2_setup(1)
    h_flag(1, vm)
    if OPT['wb'] & 8:
        wbl2()
    g2 = G2(1, vm)
    g2.begin()
    lg = gemm2(g2)
    epilogue(1, vm, lg)
    dump_stamps()
    A('L_end:\ns_endpgm')
    for t in TAIL:
        A(t)
    A('s_endpgm\nL_codeend:')


def main():
    hdr = open(os.path.join(os.path.dirname(os.path.abspath(__file__)), NAME + '.s.ref')).read().split('; Override')[0]
    A2 = [hdr.rstrip(), f'; @launch grid=(256,1,1) block=(256,1,1) lds={LDS_SIZE}',
          '.amdgcn_target "amdgcn-amd-amdhsa--gfx950"\n.text',
          f'.globl {NAME}_kernel\n.p2align 8\n.type {NAME}_kernel,@function\n{NAME}_kernel:']
    body()
    n = A.fix_hazards()
    if OPT['align']:
        print('; align: promoted %d, padded %d' % A.align8(999, False), file=sys.stderr)
    cfgs = [dict(w=w, fast=f, ty=ty) for w in range(4) for f in (0, 1) for ty in (0, 1)]
    errs = A.check_waits(cfgs)
    for e in sorted(set(errs))[:40]:
        print('WAITCNT:', e, file=sys.stderr)
    print(f'; {n} hazard pads inserted; {len(A.L)} lines; stamps: {STAMPS}', file=sys.stderr)
    A2.append('; WS ' + '\n; WS '.join(f'{k}={v:#x}' for k, v in dict(RS=WS_RS, H=WS_H, KV=WS_KV, Y=WS_Y, CF=WS_CF,
                                                                   U2=WS_U2, H2=WS_H2, DBG=WS_DBG, CFOLD=1).items()))
    if STAMPS:
        A2.append('; STAMPS ' + ' '.join(STAMPS))
    A2.append(A.text())
    A2.append(f'''.section .rodata,"a"
.p2align 6
.amdhsa_kernel {NAME}_kernel
  .amdhsa_next_free_vgpr 512
  .amdhsa_next_free_sgpr 102
  .amdhsa_accum_offset 256
  .amdhsa_group_segment_fixed_size 0
  .amdhsa_kernarg_size 144
  .amdhsa_user_sgpr_count 2
  .amdhsa_user_sgpr_kernarg_segment_ptr 1
  .amdhsa_system_sgpr_workgroup_id_x 1
.end_amdhsa_kernel''')
    print('\n'.join(A2))


if __name__ == '__main__':
    main()
```
